```python
import torch

def _softmax(x, axis=-1):
    return torch.softmax(x, dim=axis)
def _gelu(x):
    return torch.nn.functional.gelu(x, approximate="tanh")
def _silu(x):
    return torch.nn.functional.silu(x)
def _sigmoid(x):
    return torch.sigmoid(x)
def _layernorm(x, axis=-1, eps=1e-5):
    m = x.mean(dim=axis, keepdim=True)
    v = x.var(dim=axis, keepdim=True, unbiased=False)
    return (x - m) / torch.sqrt(v + eps)
def _scatter_add(tgt, idx, src, axis=0):
    return tgt.clone().index_add_(axis, idx, src)
def _segment_sum(src, seg, n):
    out = torch.zeros((n,) + src.shape[1:], dtype=src.dtype)
    return out.index_add_(0, seg, src)
def _pad(x, pw):
    flat = tuple(v for pair in reversed(pw) for v in pair)
    return torch.nn.functional.pad(x, flat)

kernel_name = 'standalone__gqa_block_cached__near_ridge'

def setup_inputs():

    _w = (lambda a: (lambda t: t.to(torch.bfloat16) if t.is_floating_point() else t)(torch.as_tensor(a)))
    B, Sq, D = 8, 288, 512
    Hq, Hkv, Sk, Dh = 32, 32, 1024, 128
    assert Hq % Hkv == 0, (Hq, Hkv)
    return {
        "x": _w((lambda *s: torch.randn(*s, dtype=torch.bfloat16) * 0.8)(B, Sq, D)),
        "k_cache": _w((lambda *s: torch.randn(*s, dtype=torch.bfloat16) * 0.8)(B, Hkv, Sk, Dh)),
        "v_cache": _w((lambda *s: torch.randn(*s, dtype=torch.bfloat16) * 0.05)(B, Hkv, Sk, Dh)),
        "wq": _w((lambda *s: torch.randn(*s, dtype=torch.bfloat16) * 0.8)(D, Hq * Dh) * (D ** -0.5)),
        "wo": _w((lambda *s: torch.randn(*s, dtype=torch.bfloat16) * 0.05)(Hq * Dh, D) * ((Hq * Dh) ** -0.5)),
    }

def reference(x, k_cache, v_cache, wq, wo):
    B, Sq, D = x.shape
    Hq, Dh = 32, 128
    Hkv = k_cache.shape[1]
    rep = Hq // Hkv
    q = (lambda x, *d: x.permute(*d))((x @ wq).reshape(B, Sq, Hq, Dh), 0, 2, 1, 3)
    k = (lambda x, n, axis: torch.repeat_interleave(x, n, dim=axis))(k_cache, rep, axis=1)
    v = (lambda x, n, axis: torch.repeat_interleave(x, n, dim=axis))(v_cache, rep, axis=1)
    scores = torch.einsum("bhqd,bhkd->bhqk", q, k) * (Dh ** -0.5)
    p = _softmax(scores, axis=-1)
    o = torch.einsum("bhqk,bhkd->bhqd", p, v)
    return (lambda x, *d: x.permute(*d))(o, 0, 2, 1, 3).reshape(B, Sq, Hq * Dh) @ wo
```

```python
import re

def vr(a, n=1):
    return f"v{a}" if n == 1 else f"v[{a}:{a+n-1}]"
def ar(a, n=1):
    return f"a{a}" if n == 1 else f"a[{a}:{a+n-1}]"
def sr(a, n=1):
    return f"s{a}" if n == 1 else f"s[{a}:{a+n-1}]"

_reg_re = re.compile(r"^(-|abs\()?([vas])(?:(\d+)|\[(\d+):(\d+)\])\)?$")
def parse_reg(tok):
    tok = tok.strip()
    if tok in ("vcc", "exec", "m0", "scc"):
        return {tok}
    if tok in ("vcc_lo", "vcc_hi"): return {"vcc"}
    m = _reg_re.match(tok)
    if not m: return set()
    k = m.group(2)
    if m.group(3) is not None: return {f"{k}{m.group(3)}"}
    return {f"{k}{i}" for i in range(int(m.group(4)), int(m.group(5)) + 1)}

TRANS = ("v_exp_f32", "v_log_f32", "v_rcp_f32", "v_rsq_f32", "v_sqrt_f32")

class Ins:
    __slots__ = ("text", "op", "ops", "w", "r", "kind", "passes", "srcc", "ab")
    def __init__(self, text):
        self.text = text
        t = text.split(";")[0].strip()
        self.w = set(); self.r = set(); self.kind = "other"; self.passes = 0; self.srcc = set(); self.ab = set()
        if not t or t.endswith(":") or t.startswith("."):
            self.op = ""; self.kind = "label"; return
        parts = t.split(None, 1)
        self.op = op = parts[0]
        rest = parts[1] if len(parts) > 1 else ""
        toks = [x.strip() for x in rest.split(",")] if rest else []
        if toks:
            last = toks[-1].split()
            mods = last[1:]; toks[-1] = last[0] if last else ""
        else:
            mods = []
        self.ops = toks
        R = [parse_reg(x) for x in toks]
        if op.startswith("v_mfma"):
            self.kind = "mfma"; self.passes = 8 if "32x32x16" in op else 4
            self.w = R[0]; self.ab = R[1] | R[2]; self.srcc = R[3]; self.r = self.ab | self.srcc
        elif op.startswith("ds_read"):
            self.kind = "ds"; self.w = R[0]; self.r = R[1]
        elif op.startswith("ds_write"):
            self.kind = "ds"; self.r = set().union(*R)
        elif op.startswith("ds_"):
            self.kind = "ds"; self.w = R[0]; self.r = set().union(*R[1:])
        elif op.startswith("buffer_load"):
            self.kind = "vmem"
            if "lds" in mods:
                self.r = set().union(*R) | {"m0"}; self.kind = "dma"
            else:
                self.w = R[0]; self.r = set().union(*R[1:])
        elif op.startswith("buffer_store") or op.startswith("buffer_atomic"):
            self.kind = "vstore"; self.r = set().union(*R); self.ab = R[0]
        elif op.startswith("global_load"):
            self.kind = "vmem"; self.w = R[0]; self.r = set().union(*R[1:])
        elif op.startswith("buffer_") or op.startswith("global_"):
            self.kind = "vmem"; self.r = set().union(*R) if R else set()
        elif op.startswith("v_"):
            self.kind = "valu"
            if op.startswith("v_cmp"):
                self.w = R[0]; self.r = set().union(*R[1:])
            elif op.startswith("v_permlane32_swap") or op.startswith("v_permlane16_swap"):
                self.w = R[0] | R[1]; self.r = R[0] | R[1]; self.kind = "perm"
            elif op.startswith("v_readfirstlane") or op.startswith("v_readlane"):
                self.w = R[0]; self.r = set().union(*R[1:]); self.kind = "rfl"
            elif op.startswith("v_fmac") :
                self.w = R[0]; self.r = set().union(*R)
            elif op.startswith("v_add_co") or op.startswith("v_addc_co"):
                self.w = R[0] | R[1]; self.r = set().union(*R[2:])
            else:
                self.w = R[0]; self.r = set().union(*R[1:]) if len(R) > 1 else set()
                if op.startswith("v_cndmask") and len(toks) == 3: self.r |= {"vcc"}
        elif op.startswith("s_"):
            self.kind = "salu"
            if op in ("s_waitcnt", "s_barrier", "s_nop", "s_endpgm", "s_branch", "s_setprio", "s_sleep") or op.startswith("s_cbranch"):
                self.kind = op if op in ("s_nop",) else "sctl"
            elif op.startswith("s_cmp"):
                self.r = set().union(*R); self.w = {"scc"}
            elif op.startswith("s_load") or op.startswith("s_memtime") or op.startswith("s_memrealtime"):
                self.w = R[0]; self.r = set().union(*R[1:]) if len(R) > 1 else set(); self.kind = "smem"
            else:
                self.w = R[0] | {"scc"}; self.r = set().union(*R[1:]) if len(R) > 1 else set()
                if op.startswith("s_mov") : self.w = R[0]
    def states(self):
        if self.kind == "label": return 0
        if self.op == "s_nop": return int(self.ops[0], 0) + 1
        return 1

def required(p, c):
    need = 0
    isvalu = lambda i: i.kind in ("valu", "perm", "rfl")
    if p.kind == "mfma":
        big = 12 if p.passes == 8 else 8
        if c.kind == "mfma":
            if p.w & c.ab: need = max(need, big)
            if p.w & c.srcc:
                if not (p.w == c.srcc and p.passes == c.passes): need = max(need, 10 if p.passes == 8 else 6)
            elif p.w & c.w:
                need = max(need, big)
        elif isvalu(c) or c.kind in ("ds", "vmem", "vstore", "dma"):
            if p.w & (c.r | c.w): need = max(need, big)
        if isvalu(c) and (p.srcc & c.w): need = max(need, 7 if p.passes == 8 else 3)
    if isvalu(p):
        vw = {x for x in p.w if x[0] in "va" and x not in ("vcc",)}
        sw = p.w - vw
        if c.kind == "mfma" and (vw & c.r): need = max(need, 2)
        if c.kind == "perm" and (vw & c.r): need = max(need, 2)
        if c.kind == "rfl" and (vw & c.r): need = max(need, 1)
        if p.op.startswith(TRANS) and isvalu(c) and not c.op.startswith(TRANS) and (vw & c.r): need = max(need, 1)
        if sw:
            if isvalu(c) and (sw & c.r): need = max(need, 2 if c.kind != "rfl" else 4)
            if c.kind in ("vmem", "vstore", "dma") and (sw & c.r): need = max(need, 5)
            if c.kind in ("salu", "sctl") and (sw & c.r or (("vcc" in sw) and c.op.startswith("s_cbranch_vcc"))): need = max(need, 4)
    if p.kind == "salu" and "m0" in p.w and c.kind == "dma": need = max(need, 1)
    if p.kind == "vstore" and ("x4" in p.op or "x3" in p.op) and (p.ab & c.w): need = max(need, 2)
    if p.kind == "ds" and p.op.startswith("ds_write") and isvalu(c) and (p.r & c.w) and "128" in p.op: need = max(need, 2)
    return need

def check_hazards(lines, name="", fix=False):
    out = []; hist = []
    bad = 0
    for t in lines:
        c = Ins(t)
        if c.kind == "label":
            out.append(t); continue
        dist = 0; need_pad = 0
        for p in reversed(hist[-24:]):
            n = required(p, c)
            if n > dist: need_pad = max(need_pad, n - dist)
            dist += p.states()
            if dist > 20: break
        if need_pad:
            if fix:
                k = need_pad
                while k > 0:
                    q = min(k, 16); out.append(f"s_nop {q-1}"); hist.append(Ins(f"s_nop {q-1}")); k -= q
            else:
                bad += 1; print(f"HAZARD[{name}] needs {need_pad} more before: {t}")
        out.append(t); hist.append(c)
    return out, bad
```

```python
import sys, math, struct
from asmlib import *

class Cfg:
    stamp = False
    map_bh = "b"
    np_pf = 2
    pf_dist = 1
    sm_start = -6
    no_dma = False
    no_sm = False
    dump_q = False
cfg = Cfg()
for a in sys.argv[2:]:
    k, v = a.split("=")
    old = getattr(cfg, k)
    setattr(cfg, k, (v == "1") if isinstance(old, bool) else type(old)(v))

def f2u(x): return struct.unpack("<I", struct.pack("<f", x))[0]
QSCALE = f2u(math.log2(math.e) / math.sqrt(128.0))
LTHRESH = f2u(2.0 ** 40)

MF32 = "v_mfma_f32_32x32x16_bf16"
MF16 = "v_mfma_f32_16x16x32_bf16"

class Item:
    def __init__(self, lines, cost, it=0, kind=""):
        self.lines = lines if isinstance(lines, list) else [lines]
        self.cost = cost; self.it = it; self.kind = kind

class Sched:
    def __init__(self, n, periodic=False):
        self.n = n; self.periodic = periodic
        self.mf = [None] * n; self.gap = [[] for _ in range(n)]; self.cost = [0] * n
    def norm(self, g, it):
        if self.periodic:
            return g % self.n
        assert 0 <= g < self.n, g
        return g
    def put(self, g, item, front=False):
        g = self.norm(g, item.it)
        if front: self.gap[g].insert(0, item)
        else: self.gap[g].append(item)
        self.cost[g] += item.cost
    def put_win(self, lo, hi, item, cap=24):
        best = None
        for g in range(lo, hi + 1):
            c = self.cost[self.norm(g, 0)]
            if c + item.cost <= cap: best = g; break
        if best is None:
            best = min(range(lo, hi + 1), key=lambda g: self.cost[self.norm(g, 0)])
        self.put(best, item); return best
    def linear(self, lo, hi, keep=lambda it, g: True):
        out = []
        for g in range(lo, hi):
            if self.mf[g] is not None and keep(self.mf[g].it, g):
                for l in self.mf[g].lines: out.append((g, l))
            for item in self.gap[g]:
                if keep(item.it, g):
                    for l in item.lines: out.append((g, l))
        return out

def lgkm_waits(seq, slack=3):
    out = []; q = []
    for g, t in seq:
        i = Ins(t)
        if i.op == "s_waitcnt" and "lgkmcnt(0)" in t: q = []
        use = (i.r | i.w) if i.kind != "label" else set()
        idx = -1
        for k, (gg, regs) in enumerate(q):
            if regs & use: idx = k
        if idx >= 0:
            while idx + 1 < len(q) and q[idx + 1][0] <= g - slack: idx += 1
            n = len(q) - 1 - idx
            if n > 15: n = 15
            out.append((g, f"s_waitcnt lgkmcnt({n})"))
            q = q[len(q) - n:] if n else []
        if i.kind == "ds":
            q.append((g, set(i.w)))
        out.append((g, t))
    return out

sK, sV, sX, sWQ, sO, sD = 8, 12, 16, 20, 24, 28
sPTR = 32
sW, sB, sH, sT0, sT1 = 3, 4, 5, 6, 7
sOff0, sOff1 = 48, 49
sM0 = 50
sCnt, sRedo = 58, 59
sXo, sXm, sWo_, sWm = 60, 61, 62, 63
sPf = 64
sQs = 65
sST = 70
vTid = 0
vKv = 1
vVv = 5
vPfo = 7
vQ = 8
vNM = 104
vS = 152
vP = 184
vKa = 200
vVa = 216
vL = 224
vPfd = 255
vT = 228
vAcc = 104
vQp = vQ + 64
aO = 0; aK = 192; aV = 224
LDS_K = (131072, 98304); LDS_V = (0, 32768); LDS_KB = 98304
LDS_EX = 65536
QSLOT = (0, 53248, 106496)
LDS_TOTAL = 163840

UNIT_TILE = [0, 1, 2, 0, 1, 0, 1, 0, 1]
UNIT_KT =   [0, 0, 0, 1, 1, 2, 2, 3, 3]

def stamp(o, idx):
    if cfg.stamp:
        o.append(f"s_memtime s[{sST+2*idx}:{sST+2*idx+1}]")

def kv_dma_items(stage_slot, which, it):
    items = []
    for grp in range(2):
        m0 = sM0 + (0 if which == "K" else 4) + 2 * stage_slot + grp
        items.append(Item([f"s_mov_b32 m0, s{m0}"], 4, it, "salu"))
        for q in range(4):
            vo = (vKv + q) if which == "K" else (vVv + (q & 1))
            srd = sK if which == "K" else sV
            so = sOff0 + grp
            off = f" offset:{1024*q}" if q else ""
            if cfg.no_dma: continue
            items.append(Item([f"buffer_load_dwordx4 v{vo}, s[{srd}:{srd+3}], s{so} offen{off} lds"], 8, it, "dma"))
    return items

def pf_lines():
    out = []
    for i in range(cfg.np_pf):
        srd = sK if i < cfg.np_pf // 2 else sV
        sub = i % max(cfg.np_pf // 2, 1)
        off = f" offset:{64*sub}" if sub else ""
        out.append(f"buffer_load_dword v{vPfd}, v{vPfo}, s[{srd}:{srd+3}], s{sPf} offen{off}")
    return out

def k_read(j, c, slot):
    imm = (LDS_K[slot] - LDS_KB) + (c >> 2) * 1024
    return f"ds_read_b128 {ar(aK+4*c,4)}, v{vKa+4*j+(c&3)} offset:{imm}"
def v_read(j, ch, t, jj, slot):
    imm = LDS_V[slot] + (2*ch + jj) * 2048 + (t >> 1) * 1024
    return f"ds_read_b64_tr_b16 {ar(aV+4*(4*ch+t)+2*jj,2)}, v{vVa+2*j+(t&1)} offset:{imm}"

def gen_attn_sched():
    NU = 18; N = NU * 16
    S = Sched(N, periodic=True)
    def tile(n): return UNIT_TILE[n % 9]
    def kt(n): return UNIT_KT[n % 9]
    def slot(n): return (n // 9) & 1
    def last_of_kt(n): return UNIT_KT[n % 9] != UNIT_KT[(n + 1) % 9] or n % 9 == 8
    for n in range(NU):
        u = n + 1; it = 1 if u == NU else 0
        sb = vS + 16 * (u & 1)
        for c in range(8):
            cin = vr(vNM + 16 * tile(u), 16) if c == 0 else vr(sb, 16)
            S.mf[16*n + c] = Item(f"{MF32} {vr(sb,16)}, {ar(aK+4*c,4)}, {vr(vQ+32*tile(u)+4*c,4)}, {cin}", 8, it)
        pb = vP + 8 * (n & 1)
        for i in range(8):
            ch, t = i >> 2, i & 3
            o = ar(aO + 64 * tile(n) + 16 * t, 16)
            S.mf[16*n + 8 + i] = Item(f"{MF32} {o}, {ar(aV+4*i,4)}, {vr(pb+4*ch,4)}, {o}", 8, 0)
    for n in range(1, NU + 1):
        sb = vS + 16 * (n & 1); pb = vP + 8 * (n & 1); l = vL + tile(n)
        for j in range(16):
            if cfg.no_sm: break
            g = 16*n + cfg.sm_start + j
            def itf(g): return 1 if (n == NU and g < N) else 0
            S.put(g, Item(f"v_exp_f32 v{sb+j}, v{sb+j}", 8, itf(g)))
            S.put(g + 1, Item(f"v_add_f32 v{l}, v{l}, v{sb+j}", 4, itf(g + 1)))
            if j & 1:
                S.put(g + 1, Item(f"v_cvt_pk_bf16_f32 v{pb+(j>>1)}, v{sb+j-1}, v{sb+j}", 4, itf(g + 1)))
    bar = [16*7 + 7, 144 + 16*7 + 7]
    for b in bar:
        S.put(b, Item([f"s_waitcnt vmcnt({cfg.np_pf}) lgkmcnt(0)", "s_barrier"], 8, 0, "bar"))
    for n in range(NU):
        u = n + 1
        if last_of_kt(u):
            nu = u + 1; it = 1 if nu >= NU else 0
            if u == NU: nu, it = 1 + 0, 0
            for c in range(8):
                lo = 16*n + c; hi = 16*n + 16 + c - 5
                if u % 9 == 8: lo = max(lo, 16*n + 7)
                S.put_win(lo, hi, Item(k_read(kt(nu), c, slot(nu)), 4, it, "ds"), cap=20)
    for n in range(NU):
        if last_of_kt(n):
            nu = n + 1
            for i in range(8):
                ch, t = i >> 2, i & 3
                for jj in range(2):
                    lo = 16*n + 8 + i; hi = lo + 16 - 5
                    if nu % 9 == 7: hi = min(hi, 16*(n+1) + 3)
                    item = Item(v_read(kt(nu), ch, t, jj, slot(nu)), 4, 0, "ds")
                    g = S.put_win(lo, hi, item, cap=20)
                    if nu >= NU and g < N: item.it = 1
    for bi, b in enumerate(bar):
        sl = bi
        items = [Item([f"s_add_u32 s{sOff0}, s{sOff0}, 32768", f"s_add_u32 s{sOff1}, s{sOff1}, 32768"], 8, 0, "salu")]
        items += kv_dma_items(sl, "K", 0) + kv_dma_items(sl, "V", 0)
        if cfg.np_pf:
            items += [Item([f"s_add_u32 s{sPf}, s{sPf}, 32768"], 4, 0, "salu")]
            items += [Item(l, 8, 0, "dma") for l in pf_lines()]
        g = b + 1
        pend = []
        for item in items:
            if item.kind == "salu": pend += item.lines; continue
            merged = Item(pend + (["s_nop 0"] if pend and "m0" in pend[-1] and False else []) + item.lines, item.cost + 4*len(pend), 0, "dma")
            if pend and "m0" in pend[-1]:
                merged.lines = pend + ["s_nop 0"] + item.lines
            pend = []
            gg = S.put_win(g, g + 12, merged, cap=24)
            if bi == 1 and gg < N: merged.it = 1
            g = gg + cfg_dma_step
        if pend:
            m = Item(pend, 4*len(pend), 0); gg = S.put_win(g, g + 4, m)
            if bi == 1 and gg < N: m.it = 1
    return S, bar
cfg_dma_step = 3

def gen_k1():
    o = []
    e = o.append
    e("attn_kernel:")
    e("s_cmp_ge_u32 s2, 256"); e("s_cbranch_scc1 L1_end")
    stamp(o, 0)
    if cfg.stamp: e(f"s_memrealtime s[{sST+14}:{sST+15}]")
    e(f"s_load_dwordx16 s[{sPTR}:{sPTR+15}], s[0:1], 0")
    e("v_lshrrev_b32 v1, 6, v0"); e("s_nop 0"); e(f"v_readfirstlane_b32 s{sW}, v1")
    e("v_and_b32 v0, 63, v0")
    if cfg.map_bh == "b":
        e(f"s_and_b32 s{sB}, s2, 7"); e(f"s_lshr_b32 s{sH}, s2, 3")
    else:
        e(f"s_lshr_b32 s{sB}, s2, 5"); e(f"s_and_b32 s{sT0}, s2, 7"); e(f"s_lshl_b32 s{sT0}, s{sT0}, 2")
        e(f"s_lshr_b32 s{sT1}, s2, 3"); e(f"s_and_b32 s{sT1}, s{sT1}, 3"); e(f"s_add_u32 s{sH}, s{sT0}, s{sT1}")
    e(f"s_mov_b32 s{sQs}, {QSCALE:#x}")
    e(f"s_mov_b32 s{sRedo}, 0")
    t = vT
    r8, p8, tA, tB, tC = t, t+1, t+2, t+3, t+4
    e(f"v_lshrrev_b32 v{r8}, 3, v0"); e(f"v_and_b32 v{p8}, 7, v0")
    vXv = vQp + 11; vWv = vQp + 13
    e(f"s_and_b32 s{sT0}, s{sW}, 1"); e(f"s_lshl_b32 s{sT0}, s{sT0}, 2")
    e(f"v_lshrrev_b32 v{tA}, 1, v{r8}")
    e(f"v_xor_b32 v{tB}, v{tA}, v{p8}"); e(f"v_xor_b32 v{tB}, s{sT0}, v{tB}")
    e(f"v_lshlrev_b32 v{tC}, 10, v{r8}")
    e(f"v_lshl_add_u32 v{vXv}, v{tB}, 4, v{tC}")
    e(f"v_xor_b32 v{vXv+1}, 64, v{vXv}")
    e(f"v_and_b32 v{tB}, 1, v{tA}"); e(f"v_lshlrev_b32 v{tB}, 2, v{tB}"); e(f"v_xor_b32 v{tB}, v{tB}, v{p8}")
    e(f"v_lshlrev_b32 v{tC}, 13, v{r8}")
    e(f"v_lshl_add_u32 v{vWv}, v{tB}, 4, v{tC}")
    e(f"v_lshlrev_b32 v{tC}, 8, v{r8}")
    e(f"v_lshl_add_u32 v{vVv+1}, v{tB}, 4, v{tC}")
    e(f"v_add_u32 v{vVv}, 1024, v{vVv+1}"); e(f"v_add_u32 v{vVv+1}, 128, v{vVv+1}")
    e(f"v_xor_b32 v{tB}, v{tA}, v{p8}")
    e(f"v_lshl_add_u32 v{vKv+1}, v{tB}, 4, v{tC}")
    e(f"v_xor_b32 v{vKv+3}, 64, v{vKv+1}")
    e(f"v_add_u32 v{vKv}, 1024, v{vKv+1}"); e(f"v_add_u32 v{vKv+2}, 1024, v{vKv+3}")
    e(f"v_add_u32 v{vKv+1}, 128, v{vKv+1}"); e(f"v_add_u32 v{vKv+3}, 128, v{vKv+3}")
    e(f"v_lshlrev_b32 v{vPfo}, 7, v0"); e(f"v_add_u32 v{vPfo}, 1024, v{vPfo}")
    e("s_waitcnt lgkmcnt(0)")
    def srd(s, lo, hi, nrec):
        e(f"s_and_b32 s{s+1}, s{hi}, 0xffff") if False else None
    e(f"s_mul_i32 s{sT0}, s{sB}, 294912")
    e(f"s_add_u32 s{sX}, s{sPTR+0}, s{sT0}"); e(f"s_addc_u32 s{sX+1}, s{sPTR+1}, 0")
    e(f"s_mov_b32 s{sX+2}, 294912"); e(f"s_mov_b32 s{sX+3}, 0x20000")
    e(f"s_lshl_b32 s{sT0}, s{sH}, 8")
    e(f"s_add_u32 s{sWQ}, s{sPTR+6}, s{sT0}"); e(f"s_addc_u32 s{sWQ+1}, s{sPTR+7}, 0")
    e(f"s_sub_u32 s{sWQ+2}, 4194304, s{sT0}"); e(f"s_mov_b32 s{sWQ+3}, 0x20000")
    e(f"s_mul_i32 s{sXo}, s{sW}, {9*8192}"); e(f"s_mul_i32 s{sXm}, s{sW}, {9*1024}")
    e(f"s_lshl_b32 s{sWo_}, s{sW}, 17")
    e(f"s_lshl_b32 s{sWm}, s{sW}, 12"); e(f"s_add_u32 s{sWm}, s{sWm}, 36864")
    def q_dma_items(c):
        items = []
        sl = QSLOT[c % 3]
        for q in range(4):
            go = c * 64 * 8192 + (q >> 1) * 65536 + (q & 1) * 128
            items.append(Item([f"s_add_u32 m0, s{sWm}, {sl + 1024*q}", f"s_add_u32 s{sT0}, s{sWo_}, {go}",
                               f"buffer_load_dwordx4 v{vWv}, s[{sWQ}:{sWQ+3}], s{sT0} offen lds"], 16, 0, "dma"))
        for i in range(9):
            items.append(Item([f"s_add_u32 m0, s{sXm}, {sl + 1024*i}", f"s_add_u32 s{sT0}, s{sXo}, {i*8192 + c*128}",
                               f"buffer_load_dwordx4 v{vXv+(i&1)}, s[{sX}:{sX+3}], s{sT0} offen lds"], 16, 0, "dma"))
        return items
    for c in range(3):
        for item in q_dma_items(c):
            for l in item.lines: e(l)
    e(f"s_lshl_b32 s{sT0}, s{sB}, 5"); e(f"s_add_u32 s{sT0}, s{sT0}, s{sH}")
    e(f"s_lshl_b32 s{sT0}, s{sT0}, 18")
    for s, p in ((sK, sPTR + 2), (sV, sPTR + 4)):
        e(f"s_add_u32 s{s}, s{p}, s{sT0}"); e(f"s_addc_u32 s{s+1}, s{p+1}, 0")
        e(f"s_sub_u32 s{s}, s{s}, 1024"); e(f"s_subb_u32 s{s+1}, s{s+1}, 0")
        e(f"s_mov_b32 s{s+2}, {262144+1024}"); e(f"s_mov_b32 s{s+3}, 0x20000")
    e(f"s_mul_i32 s{sT0}, s{sB}, 2359296")
    e(f"s_add_u32 s{sO}, s{sPTR+14}, s{sT0}"); e(f"s_addc_u32 s{sO+1}, s{sPTR+15}, 0")
    e(f"s_mov_b32 s{sO+2}, 2359296"); e(f"s_mov_b32 s{sO+3}, 0x20000")
    e(f"s_lshl_b32 s{sOff0}, s{sW}, 13"); e(f"s_add_u32 s{sOff1}, s{sOff0}, 4096")
    for sl in range(2):
        for g in range(2):
            e(f"s_add_u32 s{sM0+2*sl+g}, s{sOff0}, {LDS_K[sl] + 4096*g}")
            e(f"s_add_u32 s{sM0+4+2*sl+g}, s{sOff0}, {LDS_V[sl] + 4096*g}")
    e(f"s_mov_b32 s{sPf}, s{sOff0}")
    npf0 = 0
    if cfg.np_pf:
        for st in range(cfg.pf_dist + 1):
            if st: e(f"s_add_u32 s{sPf}, s{sPf}, 32768")
            for l in pf_lines(): e(l); npf0 += 1
    vXs, vXa, vWa = vQp, vQp + 4, vQp + 8
    m, hi, g1, r4, c4 = t+5, t+6, t+7, t+8, t+9
    e(f"v_and_b32 v{m}, 31, v0"); e(f"v_lshrrev_b32 v{hi}, 5, v0")
    e(f"v_lshrrev_b32 v{tA}, 3, v{m}"); e(f"v_lshlrev_b32 v{tA}, 10, v{tA}")
    e(f"v_and_b32 v{tB}, 7, v{m}"); e(f"v_lshl_add_u32 v{tA}, v{tB}, 7, v{tA}")
    e(f"v_bfe_u32 v{tB}, v{m}, 1, 3"); e(f"v_xor_b32 v{tB}, v{tB}, v{hi}")
    e(f"v_lshl_add_u32 v{vXs}, v{tB}, 4, v{tA}")
    for s in range(1, 4): e(f"v_xor_b32 v{vXs+s}, {32*s}, v{vXs}")
    for s in range(4): e(f"v_add_u32 v{vXa+s}, s{sOff0}, v{vXs+s}")
    e(f"v_bfe_u32 v{g1}, v0, 4, 1"); e(f"v_bfe_u32 v{r4}, v0, 2, 2"); e(f"v_and_b32 v{c4}, 3, v0")
    e(f"v_and_b32 v{tA}, 1, v{c4}"); e(f"v_lshlrev_b32 v{tA}, 1, v{tA}"); e(f"v_lshrrev_b32 v{tB}, 1, v{c4}"); e(f"v_or_b32 v{tA}, v{tA}, v{tB}")
    e(f"v_lshlrev_b32 v{tA}, 3, v{tA}"); e(f"v_lshl_add_u32 v{tA}, v{g1}, 5, v{tA}"); e(f"v_lshl_add_u32 v{tA}, v{r4}, 7, v{tA}")
    e(f"v_lshl_add_u32 v{tA}, v{hi}, 11, v{tA}"); e(f"v_lshrrev_b32 v{tB}, 1, v{r4}"); e(f"v_lshl_add_u32 v{tA}, v{tB}, 6, v{tA}")
    e(f"v_add_u32 v{vWa}, 36864, v{tA}"); e(f"v_xor_b32 v{vWa+1}, 64, v{vWa}")
    e(f"s_and_b32 s{sT0}, s{sW}, 1"); e(f"s_lshl_b32 s{sT0}, s{sT0}, 6")
    e(f"s_lshr_b32 s{sT1}, s{sW}, 1"); e(f"s_lshl_b32 s{sT1}, s{sT1}, 10")
    e(f"v_xor_b32 v{vWa+2}, s{sT0}, v{vWa}"); e(f"v_add_u32 v{vWa+2}, s{sT1}, v{vWa+2}")

    S = Sched(288)
    def fragA(p, t_): return aK + 32 * p + 4 * t_
    def fragB(p, T): return aK + 32 * p + 20 + 4 * T
    def q_reads(ks):
        p = ks & 1; s = ks & 3
        def ra(t_, jj):
            if t_ < 4: return f"ds_read_b64_tr_b16 {ar(fragA(p,t_)+2*jj,2)}, v{vWa+(t_&1)} offset:{s*4096+(t_>>1)*1024+jj*512}"
            return f"ds_read_b64_tr_b16 {ar(fragA(p,4)+2*jj,2)}, v{vWa+2} offset:{s*4096+jj*512}"
        rb = [f"ds_read_b128 {ar(fragB(p,0),4)}, v{vXa+s}", f"ds_read_b128 {ar(fragB(p,1),4)}, v{vXa+s} offset:4096",
              f"ds_read_b128 {ar(fragB(p,2),4)}, v{vXs+s} offset:32768"]
        return [ra(0,0), ra(0,1), rb[0], rb[1], ra(1,0), ra(1,1), ra(2,0), ra(2,1), ra(3,0), ra(3,1), ra(4,0), ra(4,1), rb[2]]
    for ks in range(32):
        p = ks & 1
        for i in range(9):
            if i < 8: T, t_ = i & 1, i >> 1; acc = vAcc + 64 * T + 16 * t_; A = fragA(p, t_)
            else: T, acc, A = 2, vAcc + 128, fragA(p, 4)
            cin = "0" if ks == 0 else vr(acc, 16)
            S.mf[9*ks + i] = Item(f"{MF32} {vr(acc,16)}, {ar(A,4)}, {ar(fragB(p,T),4)}, {cin}", 8)
    naddr = 11
    out_after = {}
    for c in range(8):
        gb = 36 * c + 26
        if c <= 1: n = 13 + npf0
        elif c <= 5: n = 13
        elif c == 6: n = 8 if not cfg.no_dma else 0
        else: n = None
        lines = []
        if n is not None: lines.append(f"s_waitcnt vmcnt({n}) lgkmcnt(0)")
        else: lines.append("s_waitcnt lgkmcnt(0)")
        lines.append("s_barrier")
        if c < 7:
            d = QSLOT[(c + 1) % 3] - QSLOT[c % 3]
            for k in range(naddr):
                lines.append(f"v_add_u32 v{vQp+k}, {d & 0xffffffff:#x}, v{vQp+k}")
        S.put(gb, Item(lines, 4 * len(lines)))
    for ks in range(1, 32):
        base = 9 * (ks - 1)
        rs = q_reads(ks)
        for k, r in enumerate(rs):
            lo = base + (k * 6) // 13
            if ks % 4 == 0: lo = max(lo, base)
            S.put(lo, Item(r, 4, 0, "ds"))
    for c in range(8):
        gb = 36 * c + 27
        if c + 3 < 8: items = q_dma_items(c + 3)
        elif c == 5: items = kv_dma_items(0, "K", 0)
        elif c == 6: items = kv_dma_items(0, "V", 0)
        else: items = []
        g = gb; pend = []
        for item in items:
            if item.kind == "salu": pend += item.lines + ["s_nop 0"]; continue
            mi = Item(pend + item.lines, item.cost + 4 * len(pend)); pend = []
            gg = S.put_win(g, min(g + 1, 287), mi, cap=24); g = gg + 1
            assert gg < 36 * (c + 1) + 26
    z = [f"v_accvgpr_write_b32 a{i}, 0" for i in range(192)]
    g = 0
    for l in z:
        g = S.put_win(g, 287, Item(l, 4), cap=20)
    e(f"s_waitcnt vmcnt({26 + npf0})"); e("s_barrier")
    stamp(o, 1)
    seq = [(-9, r) for r in q_reads(0)] + S.linear(0, 288)
    for g, l in lgkm_waits(seq, slack=3): e(l)
    stamp(o, 2)
    e("s_nop 7")
    def cvt_tile(acc, dst, n):
        for i in range(n):
            e(f"v_mul_f32 v{acc+2*i}, s{sQs}, v{acc+2*i}"); e(f"v_mul_f32 v{acc+2*i+1}, s{sQs}, v{acc+2*i+1}")
        for i in range(n):
            e(f"v_cvt_pk_bf16_f32 v{dst+i}, v{acc+2*i}, v{acc+2*i+1}")
    cvt_tile(vAcc, vQ, 32); cvt_tile(vAcc + 64, vQ + 32, 32)
    cvt_tile(vAcc + 128, vT + 20, 8)
    e(f"v_lshlrev_b32 v{tA}, 4, v0"); e(f"s_lshl_b32 s{sT0}, s{sW}, 11"); e(f"v_add_u32 v{tB}, s{sT0}, v{tA}")
    e(f"ds_write_b128 v{tB}, {vr(vT+20,4)} offset:{LDS_EX - 0}") if LDS_EX < 65536 else None
    e(f"v_add_u32 v{tB}, {LDS_EX}, v{tB}"); e(f"v_add_u32 v{tA}, {LDS_EX}, v{tA}")
    e(f"ds_write_b128 v{tB}, {vr(vT+20,4)}"); e(f"ds_write_b128 v{tB}, {vr(vT+24,4)} offset:1024")
    e(f"v_and_b32 v{m}, 31, v0"); e(f"v_lshrrev_b32 v{hi}, 5, v0")
    k0 = t + 10
    e(f"v_lshrrev_b32 v{tC}, 3, v{m}"); e(f"v_lshlrev_b32 v{tC}, 11, v{tC}")
    e(f"v_and_b32 v{r8}, 7, v{m}"); e(f"v_lshl_add_u32 v{tC}, v{r8}, 7, v{tC}")
    e(f"v_bfe_u32 v{r8}, v{m}, 1, 3"); e(f"v_xor_b32 v{r8}, v{r8}, v{hi}")
    e(f"v_lshl_add_u32 v{k0}, v{r8}, 4, v{tC}"); e(f"v_add_u32 v{k0}, {LDS_KB}, v{k0}")
    for c in range(1, 4): e(f"v_xor_b32 v{k0+c}, {32*c}, v{k0}")
    e(f"v_bfe_u32 v{g1}, v0, 4, 1"); e(f"v_bfe_u32 v{r4}, v0, 2, 2"); e(f"v_and_b32 v{c4}, 3, v0")
    e(f"v_lshlrev_b32 v{tC}, 3, v{c4}"); e(f"v_lshl_add_u32 v{tC}, v{g1}, 5, v{tC}"); e(f"v_lshl_add_u32 v{tC}, v{r4}, 7, v{tC}")
    e(f"v_lshl_add_u32 v{tC}, v{hi}, 9, v{tC}"); e(f"v_lshrrev_b32 v{r8}, 1, v{r4}"); e(f"v_lshl_add_u32 v{tC}, v{r8}, 6, v{tC}")
    for j in range(4):
        e(f"s_add_u32 s{sT0}, s{sW}, {j}"); e(f"s_and_b32 s{sT0}, s{sT0}, 3"); e(f"s_lshl_b32 s{sT0}, s{sT0}, 13")
        for c in range(4): e(f"v_add_u32 v{vKa+4*j+c}, s{sT0}, v{k0+c}")
        e(f"v_add_u32 v{vVa+2*j}, s{sT0}, v{tC}"); e(f"v_xor_b32 v{vVa+2*j+1}, 64, v{vVa+2*j}")
    e("s_waitcnt vmcnt(0) lgkmcnt(0)"); e("s_barrier")
    for c in range(8): e(f"ds_read_b128 {vr(vQ+64+4*c,4)}, v{tA} offset:{1024*c}")
    for c in range(8):
        e(f"ds_read_b128 {ar(aK+4*c,4)}, v{k0+(c&3)} offset:{LDS_K[0]-LDS_KB+(c>>2)*1024}")
    e("s_waitcnt lgkmcnt(0)")
    if cfg.dump_q:
        e(f"v_lshlrev_b32 v{tB}, 4, v0"); e(f"s_lshl_b32 s{sT0}, s{sH}, 2"); e(f"s_add_u32 s{sT0}, s{sT0}, s{sW}"); e(f"s_mul_i32 s{sT0}, s{sT0}, {18*1024}")
        for i in range(18):
            e(f"buffer_store_dwordx4 {vr(vQ+4*i + (24 if False else 0),4)}, v{tB}, s[{sO}:{sO+3}], s{sT0} offen"); e(f"s_add_u32 s{sT0}, s{sT0}, 1024")
        e("s_waitcnt vmcnt(0)"); e("s_endpgm")
    for T in range(3):
        nb = vNM + 16 * T
        for c in range(8):
            e(f"{MF32} {vr(nb,16)}, {ar(aK+4*c,4)}, {vr(vQ+32*T+4*c,4)}, {'0' if c == 0 else vr(nb,16)}")
    def negm_finish(T, src):
        nb = vNM + 16 * T
        e(f"v_mov_b32 v{tB}, v{src}"); e("s_nop 1"); e(f"v_permlane32_swap_b32 v{src}, v{tB}")
        e(f"v_max_f32 v{tB}, v{src}, v{tB}")
        for i in range(16): e(f"v_sub_f32 v{nb+i}, 0, v{tB}")
    for T in range(3):
        nb = vNM + 16 * T
        if T == 0: e("s_nop 3")
        if T == 2: e("s_nop 0")
        e(f"v_max3_f32 v{tC}, v{nb}, v{nb+1}, v{nb+2}")
        for i in range(3, 15, 2): e(f"v_max3_f32 v{tC}, v{tC}, v{nb+i}, v{nb+i+1}")
        e(f"v_max_f32 v{tC}, v{tC}, v{nb+15}")
        negm_finish(T, tC)
    e("L1_att:")
    for T in range(3): e(f"v_mov_b32 v{vL+T}, 0")
    e(f"s_mov_b32 s{sCnt}, 4")
    stamp(o, 3)
    A, bar = gen_attn_sched()
    N = 288; CUT = 272
    pro = A.linear(bar[1], N, keep=lambda it, g: it == 1)
    pro = lgkm_waits(pro, slack=3)
    pl, _ = check_hazards([l for g, l in pro], "pro", fix=True)
    o += pl
    e("s_waitcnt lgkmcnt(0)")
    body = A.linear(0, N)
    two = lgkm_waits([(g, l) for g, l in body] + [(10**6, "MARK:")] + [(g + N, l) for g, l in body], slack=3)
    k = [i for i, (g, l) in enumerate(two) if l == "MARK:"][0]
    body2 = [(g - N, l) for g, l in two[k+1:]]
    e(".p2align 6") if False else None
    e("L1_loop:")
    first = True
    bl = []
    for g, l in body2:
        if g >= CUT and first:
            bl += [f"s_sub_u32 s{sCnt}, s{sCnt}, 1", f"s_cmp_eq_u32 s{sCnt}, 0", "s_cbranch_scc1 L1_tail"]; first = False
        bl.append(l)
    bl.append("s_branch L1_loop")
    _, bad = check_hazards(pl[-30:] + bl[:-1] + bl[:-1], "loop")
    assert bad == 0 or cfg.no_sm
    o += bl
    e("L1_tail:")
    e("s_waitcnt lgkmcnt(0)")
    tail = [l for g, l in A.linear(CUT, N, keep=lambda it, g: it == 0)]
    pre = [l for g, l in body2 if CUT - 8 <= g < CUT]
    tl, _ = check_hazards(pre + ["X:"] + tail, "tail", fix=True)
    o += tl[tl.index("X:") + 1:]
    stamp(o, 4)
    cs = [A.cost[g] for g in range(N)]
    sys.stderr.write(f"attn gap cost: max {max(cs)} avg {sum(cs)/N:.1f} over24 {sum(c > 24 for c in cs)}\n")
    ep = []
    E = ep.append
    for T in range(3):
        E(f"v_mov_b32 v{vT+T}, v{vL+T}")
    E("s_nop 1")
    for T in range(3): E(f"v_permlane32_swap_b32 v{vL+T}, v{vT+T}")
    for T in range(3): E(f"v_add_f32 v{vL+T}, v{vL+T}, v{vT+T}")
    E(f"s_mov_b32 s{sT0}, {LTHRESH:#x}")
    E(f"v_max3_f32 v{vT}, v{vL}, v{vL+1}, v{vL+2}")
    E(f"v_add_f32 v{vT+1}, v{vL}, v{vL+1}"); E(f"v_add_f32 v{vT+1}, v{vT+1}, v{vL+2}")
    E(f"v_cmp_nge_f32 vcc, s{sT0}, v{vT+1}")
    E("s_nop 4")
    E(f"s_cmp_lg_u64 vcc, 0"); E(f"s_cselect_b32 s{sT1}, 1, 0")
    E("s_waitcnt vmcnt(0)"); E("s_barrier")
    tA_, tB_ = vT + 3, vT + 4
    E(f"v_lshlrev_b32 v{tA_}, 4, v0"); E(f"s_lshl_b32 s{sT0}, s{sW}, 14"); E(f"v_add_u32 v{tB_}, s{sT0}, v{tA_}")
    for i in range(16): E(f"ds_write_b128 v{tB_}, {ar(aO+128+4*i,4)} offset:{1024*i}")
    E(f"v_lshlrev_b32 v{vT+5}, 2, v0"); E(f"s_lshl_b32 s{sT0}, s{sW}, 8"); E(f"s_add_u32 s{sT0}, s{sT0}, {LDS_EX}")
    E(f"v_add_u32 v{vT+6}, s{sT0}, v{vT+5}"); E(f"v_mov_b32 v{vT+7}, s{sT1}")
    E(f"ds_write_b32 v{vT+6}, v{vL+2}"); E(f"ds_write_b32 v{vT+6}, v{vT+7} offset:1024")
    E(f"v_add_u32 v{vT+5}, {LDS_EX}, v{vT+5}")
    E(f"v_rcp_f32 v{vL}, v{vL}"); E(f"v_rcp_f32 v{vL+1}, v{vL+1}")
    va = vT + 8
    E(f"v_bfe_u32 v{va}, v0, 4, 1"); E(f"v_lshlrev_b32 v{va}, 17, v{va}")
    E(f"v_lshrrev_b32 v{va+1}, 5, v0"); E(f"v_lshl_add_u32 v{va}, v{va+1}, 8, v{va}")
    E(f"v_and_b32 v{va+1}, 15, v0"); E(f"v_lshl_add_u32 v{va}, v{va+1}, 4, v{va}")
    E("s_waitcnt lgkmcnt(0)"); E("s_barrier")
    for wv in range(4):
        E(f"ds_read_b32 v{vT+10+wv}, v{vT+5} offset:{256*wv}"); E(f"ds_read_b32 v{vT+14+wv}, v{vT+5} offset:{1024+256*wv}")
    E(f"s_lshl_b32 s{sT0}, s{sW}, 12"); E(f"v_add_u32 v{tA_}, s{sT0}, v{tA_}")
    sp = vNM
    for wv in range(4):
        for i in range(4): E(f"ds_read_b128 {vr(sp+16*wv+4*i,4)}, v{tA_} offset:{16384*wv+1024*i}")
    E("s_waitcnt lgkmcnt(15)")
    E(f"v_or_b32 v{vT+14}, v{vT+14}, v{vT+15}"); E(f"v_or3_b32 v{vT+14}, v{vT+14}, v{vT+16}, v{vT+17}")
    E("s_nop 0"); E(f"v_readfirstlane_b32 s{sT1}, v{vT+14}")
    E(f"v_add_f32 v{vT+10}, v{vT+10}, v{vT+11}"); E(f"v_add_f32 v{vT+12}, v{vT+12}, v{vT+13}"); E(f"v_add_f32 v{vT+10}, v{vT+10}, v{vT+12}")
    E(f"v_rcp_f32 v{vL+2}, v{vT+10}")
    E(f"s_andn2_b32 s{sT1}, s{sT1}, s{sRedo}"); E(f"s_cmp_lg_u32 s{sT1}, 0"); E("s_cbranch_scc1 L1_fallback")
    E(f"s_lshl_b32 s{sT0}, s{sW}, 19"); E(f"s_lshl_b32 s{sT1}, s{sH}, 12"); E(f"s_add_u32 s{sT0}, s{sT0}, s{sT1}")
    tmp = vQ
    k = 0
    for T in range(2):
        for t_ in range(4):
            for cp in range(2):
                b0 = tmp + 12 * (k % 6); k += 1
                for i in range(8): E(f"v_accvgpr_read_b32 v{b0+i}, a{aO+64*T+16*t_+8*cp+i}")
                for i in range(8): E(f"v_mul_f32 v{b0+i}, v{vL+T}, v{b0+i}")
                for i in range(4): E(f"v_cvt_pk_bf16_f32 v{b0+8+i}, v{b0+2*i}, v{b0+2*i+1}")
                E(f"buffer_store_dwordx4 {vr(b0+8,4)}, v{va}, s[{sO}:{sO+3}], s{sT0} offen offset:{1024*t_+512*cp}")
        if T == 0: E(f"s_add_u32 s{sT0}, s{sT0}, 262144")
    E("s_waitcnt lgkmcnt(0)")
    for i in range(16):
        E(f"v_add_f32 v{sp+i}, v{sp+i}, v{sp+16+i}"); E(f"v_add_f32 v{sp+32+i}, v{sp+32+i}, v{sp+48+i}")
    for i in range(16): E(f"v_add_f32 v{sp+i}, v{sp+i}, v{sp+32+i}")
    for i in range(16): E(f"v_mul_f32 v{sp+i}, v{vL+2}, v{sp+i}")
    for i in range(8): E(f"v_cvt_pk_bf16_f32 v{sp+16+i}, v{sp+2*i}, v{sp+2*i+1}")
    E(f"s_lshl_b32 s{sT0}, s{sW}, 10"); E(f"s_add_u32 s{sT0}, s{sT0}, s{sT1}"); E(f"s_add_u32 s{sT0}, s{sT0}, {16*131072}")
    E(f"buffer_store_dwordx4 {vr(sp+16,4)}, v{va}, s[{sO}:{sO+3}], s{sT0} offen")
    E(f"buffer_store_dwordx4 {vr(sp+20,4)}, v{va}, s[{sO}:{sO+3}], s{sT0} offen offset:512")
    if cfg.stamp:
        E("s_waitcnt vmcnt(0)")
        E(f"s_memtime s[{sST+10}:{sST+11}]"); E(f"s_memrealtime s[{sST+12}:{sST+13}]"); E("s_waitcnt lgkmcnt(0)")
        E(f"s_add_u32 s{sD}, s{sPTR+14}, 0x4000000"); E(f"s_addc_u32 s{sD+1}, s{sPTR+15}, 0")
        E(f"s_mov_b32 s{sD+2}, 0x100000"); E(f"s_mov_b32 s{sD+3}, 0x20000")
        E(f"s_lshl_b32 s{sT0}, s2, 2"); E(f"s_add_u32 s{sT0}, s{sT0}, s{sW}"); E(f"s_lshl_b32 s{sT0}, s{sT0}, 6")
        for i in range(16): E(f"v_mov_b32 v{vT+i}, s{sST+i}")
        E(f"v_mov_b32 v{vT+16}, 0")
        for i in range(4): E(f"buffer_store_dwordx4 {vr(vT+4*i,4)}, v{vT+16}, s[{sD}:{sD+3}], s{sT0} offen offset:{16*i}")
    E("L1_end:"); E("s_endpgm")
    E("L1_fallback:")
    E("s_waitcnt lgkmcnt(0)")
    E(f"s_mov_b32 s{sRedo}, 1")
    mx = vT + 20
    for T in range(3): E(f"v_mov_b32 v{mx+T}, 0xff800000")
    E(f"s_lshl_b32 s{sOff0}, s{sW}, 13"); E(f"s_add_u32 s{sOff1}, s{sOff0}, 4096")
    E(f"s_mov_b32 s{sCnt}, 8")
    E("L1_fb_loop:")
    E("s_barrier")
    for item in kv_dma_items(0, "K", 0):
        for l in item.lines: E(l)
        if item.kind == "salu": E("s_nop 0")
    E(f"s_add_u32 s{sOff0}, s{sOff0}, 32768"); E(f"s_add_u32 s{sOff1}, s{sOff1}, 32768")
    E("s_waitcnt vmcnt(0)"); E("s_barrier")
    for j in range(4):
        for c in range(8): E(k_read(j, c, 0))
        E("s_waitcnt lgkmcnt(0)")
        for T in range(3):
            nb = vNM + 16 * T
            for c in range(8):
                E(f"{MF32} {vr(nb,16)}, {ar(aK+4*c,4)}, {vr(vQ+32*T+4*c,4)}, {'0' if c == 0 else vr(nb,16)}")
        E("s_nop 15")
        for T in range(3):
            nb = vNM + 16 * T
            for i in range(0, 16, 2): E(f"v_max3_f32 v{mx+T}, v{mx+T}, v{nb+i}, v{nb+i+1}")
        E("s_nop 7")
    E(f"s_sub_u32 s{sCnt}, s{sCnt}, 1"); E(f"s_cmp_lg_u32 s{sCnt}, 0"); E("s_cbranch_scc1 L1_fb_loop")
    E("s_barrier")
    E(f"s_lshl_b32 s{sOff0}, s{sW}, 13"); E(f"s_add_u32 s{sOff1}, s{sOff0}, 4096")
    E(f"s_add_u32 s{sPf}, s{sOff0}, {32768*cfg.pf_dist}")
    for wh in "KV":
        for item in kv_dma_items(0, wh, 0):
            for l in item.lines: E(l)
            if item.kind == "salu": E("s_nop 0")
    for i in range(192): E(f"v_accvgpr_write_b32 a{i}, 0")
    for T in range(3):
        nb = vNM + 16 * T
        E(f"v_mov_b32 v{tB}, v{mx+T}"); E("s_nop 1"); E(f"v_permlane32_swap_b32 v{mx+T}, v{tB}")
        E(f"v_max_f32 v{tB}, v{mx+T}, v{tB}")
        for i in range(16): E(f"v_sub_f32 v{nb+i}, 0, v{tB}")
    E("s_waitcnt vmcnt(0)"); E("s_barrier")
    E("s_branch L1_att")
    el, _ = check_hazards(tl[-16:] + ["Y:"] + ep, "ep", fix=True)
    o += el[el.index("Y:") + 1:]
    return o

def gen_k2():
    o = []; e = o.append
    DEP = 5
    NSL = 8
    sOa, sOb, sWO, sOut, sOutb = 8, 12, 16, 20, 24
    sRg, sCg, sMt, sSo, sSw, sM = 48, 49, 50, 51, 52, 53
    vOo = 1
    vWv = 6
    vRa = 10
    vt = 14
    vAcc2 = 32
    vA = 112
    vBf = 144
    aBf = 0
    NB = DEP + 1
    e("oproj_kernel:")
    e("s_cmp_ge_u32 s2, 256"); e("s_cbranch_scc1 L2_end")
    if cfg.stamp:
        e(f"s_memtime s[{sST}:{sST+1}]"); e(f"s_memrealtime s[{sST+14}:{sST+15}]")
    e(f"s_load_dwordx8 s[{sPTR+8}:{sPTR+15}], s[0:1], 32")
    e("v_lshrrev_b32 v1, 6, v0"); e("s_nop 0"); e(f"v_readfirstlane_b32 s{sW}, v1")
    e("v_and_b32 v0, 63, v0")
    e(f"s_and_b32 s{sB}, s2, 7"); e(f"s_lshr_b32 s{sT0}, s2, 3")
    e(f"s_and_b32 s{sRg}, s{sT0}, 3"); e(f"s_lshr_b32 s{sCg}, s{sT0}, 2")
    e(f"s_lshr_b32 s{sMt}, s{sRg}, 1"); e(f"s_mul_i32 s{sMt}, s{sMt}, 9"); e(f"s_and_b32 s{sT1}, s{sRg}, 1")
    e(f"s_mul_i32 s{sT0}, s{sT1}, 5"); e(f"s_add_u32 s{sMt}, s{sMt}, s{sT0}")
    e(f"v_lshlrev_b32 v{vOo}, 4, v0")
    for i in range(1, 5): e(f"v_add_u32 v{vOo+i}, {131072*i}, v{vOo}")
    r8, p8, tA, tB = vt, vt+1, vt+2, vt+3
    e(f"v_lshrrev_b32 v{r8}, 3, v0"); e(f"v_and_b32 v{p8}, 7, v0")
    e(f"v_bfe_u32 v{tA}, v{r8}, 1, 2"); e(f"v_lshlrev_b32 v{tA}, 1, v{tA}"); e(f"v_xor_b32 v{tA}, v{tA}, v{p8}")
    e(f"v_lshlrev_b32 v{tB}, 10, v{r8}"); e(f"v_lshl_add_u32 v{vWv}, v{tA}, 4, v{tB}")
    for q in range(1, 4): e(f"v_add_u32 v{vWv+q}, {7168*q}, v{vWv}")
    kg, r4, c4 = vt+4, vt+5, vt+6
    e(f"v_lshrrev_b32 v{kg}, 4, v0"); e(f"v_bfe_u32 v{r4}, v0, 2, 2"); e(f"v_and_b32 v{c4}, 3, v0")
    e(f"v_and_b32 v{tA}, 1, v{kg}"); e(f"v_lshl_add_u32 v{tA}, v{tA}, 2, v{r4}")
    e(f"v_lshrrev_b32 v{tB}, 1, v{tA}"); e(f"v_lshlrev_b32 v{tB}, 5, v{tB}")
    e(f"v_lshl_add_u32 v{tB}, v{tA}, 7, v{tB}"); e(f"v_lshrrev_b32 v{tA}, 1, v{kg}"); e(f"v_lshl_add_u32 v{tB}, v{tA}, 11, v{tB}")
    e(f"v_lshl_add_u32 v{tB}, v{c4}, 3, v{tB}")
    e(f"s_lshl_b32 s{sM}, s{sW}, 15"); e(f"v_add_u32 v{vRa}, s{sM}, v{tB}")
    for nt in range(1, 4): e(f"v_xor_b32 v{vRa+nt}, {32*nt}, v{vRa}")
    e("s_waitcnt lgkmcnt(0)")
    e(f"s_mul_i32 s{sT0}, s{sB}, 18"); e(f"s_add_u32 s{sT0}, s{sT0}, s{sMt}"); e(f"s_lshl_b32 s{sT0}, s{sT0}, 17")
    e(f"s_add_u32 s{sOa}, s{sPTR+14}, s{sT0}"); e(f"s_addc_u32 s{sOa+1}, s{sPTR+15}, 0")
    e(f"s_mov_b32 s{sOa+2}, {5*131072}"); e(f"s_mov_b32 s{sOa+3}, 0x20000")
    e(f"s_lshl_b32 s{sT0}, s{sT1}, 17"); e(f"s_sub_u32 s{sOa+2}, {5*131072}, s{sT0}")
    e(f"s_lshl_b32 s{sT0}, s{sCg}, 7")
    e(f"s_add_u32 s{sWO}, s{sPTR+8}, s{sT0}"); e(f"s_addc_u32 s{sWO+1}, s{sPTR+9}, 0")
    e(f"s_sub_u32 s{sWO+2}, 4194304, s{sT0}"); e(f"s_mov_b32 s{sWO+3}, 0x20000")
    e(f"s_lshl_b32 s{sSo}, s{sW}, 15")
    e(f"s_lshl_b32 s{sSw}, s{sW}, 20")
    def loads(k):
        L = []
        L.append(f"s_add_u32 m0, s{sM}, {4096*(k % NSL)}")
        L.append(f"s_add_u32 s{sT0}, s{sSw}, {32768*k}")
        for q in range(4):
            L.append(f"buffer_load_dwordx4 v{vWv+q}, s[{sWO}:{sWO+3}], s{sT0} offen offset:{1024*q} lds")
        if k % 4 == 0 and k: L.append(f"s_add_u32 s{sSo}, s{sSo}, 4096")
        for i in range(5):
            L.append(f"buffer_load_dwordx4 {ar(aBf+20*(k % NB)+4*i,4)}, v{vOo+i}, s[{sOa}:{sOa+3}], s{sSo} offen offset:{1024*(k % 4)}")
        return L
    def areads(k):
        return [f"ds_read_b64_tr_b16 {vr(vA+16*(k&1)+4*nt+2*jj,2)}, v{vRa+nt} offset:{4096*(k % NSL)+1024*jj}" for nt in range(4) for jj in range(2)]
    for k in range(DEP):
        for l in loads(k): e(l)
    e(f"s_mul_i32 s{sT0}, s{sB}, 18"); e(f"s_add_u32 s{sT0}, s{sT0}, s{sMt}"); e(f"s_lshl_b32 s{sT0}, s{sT0}, 14")
    e(f"s_add_u32 s{sOut}, s{sPTR+10}, s{sT0}"); e(f"s_addc_u32 s{sOut+1}, s{sPTR+11}, 0")
    e(f"s_lshl_b32 s{sT0}, s{sT1}, 14"); e(f"s_sub_u32 s{sOut+2}, {5*16384}, s{sT0}"); e(f"s_mov_b32 s{sOut+3}, 0x20000")
    e(f"s_waitcnt vmcnt({9*(DEP-1)})")
    for l in areads(0): e(l)
    for k in range(32):
        fill = []
        if k + DEP < 32: fill += loads(k + DEP)
        pre = []
        if k + 1 < 32:
            n = 9 * max(0, min(k + DEP - 1, 31) - (k + 1))
            pre = [f"s_waitcnt vmcnt({n})"] + areads(k + 1)
        e(f"s_waitcnt lgkmcnt(0)")
        seq = pre + fill
        mi = 0
        for i in range(5):
            for nt in range(4):
                acc = vAcc2 + 4 * (4 * i + nt)
                e(f"{MF16} {vr(acc,4)}, {vr(vA+16*(k&1)+4*nt,4)}, {ar(aBf+20*(k % NB)+4*i,4)}, {'0' if k == 0 else vr(acc,4)}")
                mi += 1
                take = -(-len(seq) // (21 - mi)) if mi < 20 else len(seq)
                for l in seq[:take]: e(l)
                seq = seq[take:]
    e("s_nop 7"); e("s_barrier")
    e(f"v_lshlrev_b32 v{tA}, 4, v0"); e(f"s_mul_i32 s{sT0}, s{sW}, 20480"); e(f"v_add_u32 v{tB}, s{sT0}, v{tA}")
    for i in range(20): e(f"ds_write_b128 v{tB}, {vr(vAcc2+4*i,4)} offset:{1024*i}")
    e(f"s_lshl_b32 s{sT0}, s{sW}, 10"); e(f"v_add_u32 v{tA}, s{sT0}, v{tA}")
    e(f"v_add_u32 v{tB}, 40960, v{tA}")
    va = vt + 4
    e(f"v_and_b32 v{va}, 15, v0"); e(f"v_lshlrev_b32 v{va}, 10, v{va}"); e(f"v_lshrrev_b32 v{va+1}, 4, v0")
    e(f"v_lshl_add_u32 v{va}, v{va+1}, 3, v{va}")
    e(f"s_lshl_b32 s{sT0}, s{sCg}, 7"); e(f"s_lshl_b32 s{sT1}, s{sW}, 5"); e(f"s_add_u32 s{sT0}, s{sT0}, s{sT1}")
    e("s_waitcnt lgkmcnt(0)"); e("s_barrier")
    for i in range(5):
        for wv in range(4):
            e(f"ds_read_b128 {vr(vAcc2+16*i+4*wv,4)}, v{tA if wv < 2 else tB} offset:{20480*(wv&1)+4096*i}")
    for i in range(5):
        e(f"s_waitcnt lgkmcnt({min(15, 4*(4-i))})")
        b0 = vAcc2 + 16 * i
        for r in range(4): e(f"v_add_f32 v{b0+r}, v{b0+r}, v{b0+4+r}"); e(f"v_add_f32 v{b0+8+r}, v{b0+8+r}, v{b0+12+r}")
        for r in range(4): e(f"v_add_f32 v{b0+r}, v{b0+r}, v{b0+8+r}")
        e(f"v_cvt_pk_bf16_f32 v{b0+4}, v{b0}, v{b0+1}"); e(f"v_cvt_pk_bf16_f32 v{b0+5}, v{b0+2}, v{b0+3}")
        e(f"buffer_store_dwordx2 {vr(b0+4,2)}, v{va}, s[{sOut}:{sOut+3}], s{sT0} offen")
        e(f"s_add_u32 s{sT0}, s{sT0}, 16384")
    if cfg.stamp:
        e("s_waitcnt vmcnt(0)")
        e(f"s_memtime s[{sST+10}:{sST+11}]"); e(f"s_memrealtime s[{sST+12}:{sST+13}]"); e("s_waitcnt lgkmcnt(0)")
        e(f"s_add_u32 s{sD}, s{sPTR+14}, 0x4100000"); e(f"s_addc_u32 s{sD+1}, s{sPTR+15}, 0")
        e(f"s_mov_b32 s{sD+2}, 0x100000"); e(f"s_mov_b32 s{sD+3}, 0x20000")
        e(f"s_lshl_b32 s{sT0}, s2, 2"); e(f"s_add_u32 s{sT0}, s{sT0}, s{sW}"); e(f"s_lshl_b32 s{sT0}, s{sT0}, 6")
        for i in range(16): e(f"v_mov_b32 v{vt+i}, s{sST+i}")
        e(f"v_mov_b32 v{vt+16}, 0")
        for i in range(4): e(f"buffer_store_dwordx4 {vr(vt+4*i,4)}, v{vt+16}, s[{sD}:{sD+3}], s{sT0} offen offset:{16*i}")
    e("L2_end:"); e("s_endpgm")
    o, _ = check_hazards(o, "k2", fix=True)
    return o, 144, 144 + 20 * NB

def kd(name, nv, acc):
    return f""".amdhsa_kernel {name}
  .amdhsa_next_free_vgpr {nv}
  .amdhsa_next_free_sgpr 96
  .amdhsa_accum_offset {acc}
  .amdhsa_group_segment_fixed_size 0
  .amdhsa_kernarg_size 64
  .amdhsa_user_sgpr_count 2
  .amdhsa_user_sgpr_kernarg_segment_ptr 1
  .amdhsa_system_sgpr_workgroup_id_x 1
.end_amdhsa_kernel
"""

def main():
    k1 = gen_k1()
    k1, _ = check_hazards(k1, "k1", fix=True)
    k2, acc2, nv2 = gen_k2()
    hdr = open("standalone__gqa_block_cached__near_ridge.s.ref").read().split("\n")
    hdr = [l for l in hdr[:9]]
    out = hdr + [f"; @launch kernel=attn_kernel grid=(256,1,1) block=(256,1,1) lds={LDS_TOTAL}",
                 "; @launch kernel=oproj_kernel grid=(256,1,1) block=(256,1,1) lds=131072",
                 '.amdgcn_target "amdgcn-amd-amdhsa--gfx950"', ".text"]
    def fmt(l): return l if l.endswith(":") else "    " + l
    out += [".globl attn_kernel", ".p2align 8", ".type attn_kernel,@function"] + [fmt(l) for l in k1 if l]
    out += [".globl oproj_kernel", ".p2align 8", ".type oproj_kernel,@function"] + [fmt(l) for l in k2 if l]
    out += ['.section .rodata,"a"', ".p2align 6", kd("attn_kernel", 512, 256), ".p2align 6", kd("oproj_kernel", nv2, acc2)]
    open(sys.argv[1], "w").write("\n".join(out))
main()
```

```python
import sys, math, struct
from asmlib import *

class Cfg:
    stamp = False
    map_bh = "b"
    np_pf = 2
    pf_dist = 1
    sm_start = -6
    no_dma = False
    no_sm = False
    dump_q = False
    kv_nt = False
    pf_nt = False
    q_nt = False
    o_nt = False
    k2o_nt = False
    k2w_nt = False
    k2map = 'b'
cfg = Cfg()
for a in sys.argv[2:]:
    k, v = a.split("=")
    old = getattr(cfg, k)
    setattr(cfg, k, (v == "1") if isinstance(old, bool) else type(old)(v))

def NT(f): return ' nt' if f else ''
def f2u(x): return struct.unpack("<I", struct.pack("<f", x))[0]
QSCALE = f2u(math.log2(math.e) / math.sqrt(128.0))
LTHRESH = f2u(2.0 ** 40)

MF32 = "v_mfma_f32_32x32x16_bf16"
MF16 = "v_mfma_f32_16x16x32_bf16"

class Item:
    def __init__(self, lines, cost, it=0, kind=""):
        self.lines = lines if isinstance(lines, list) else [lines]
        self.cost = cost; self.it = it; self.kind = kind

class Sched:
    def __init__(self, n, periodic=False):
        self.n = n; self.periodic = periodic
        self.mf = [None] * n; self.gap = [[] for _ in range(n)]; self.cost = [0] * n
    def norm(self, g, it):
        if self.periodic:
            return g % self.n
        assert 0 <= g < self.n, g
        return g
    def put(self, g, item, front=False):
        g = self.norm(g, item.it)
        if front: self.gap[g].insert(0, item)
        else: self.gap[g].append(item)
        self.cost[g] += item.cost
    def put_win(self, lo, hi, item, cap=24):
        best = None
        for g in range(lo, hi + 1):
            c = self.cost[self.norm(g, 0)]
            if c + item.cost <= cap: best = g; break
        if best is None:
            best = min(range(lo, hi + 1), key=lambda g: self.cost[self.norm(g, 0)])
        self.put(best, item); return best
    def linear(self, lo, hi, keep=lambda it, g: True):
        out = []
        for g in range(lo, hi):
            if self.mf[g] is not None and keep(self.mf[g].it, g):
                for l in self.mf[g].lines: out.append((g, l))
            for item in self.gap[g]:
                if keep(item.it, g):
                    for l in item.lines: out.append((g, l))
        return out

def lgkm_waits(seq, slack=3):
    out = []; q = []
    for g, t in seq:
        i = Ins(t)
        if i.op == "s_waitcnt" and "lgkmcnt(0)" in t: q = []
        use = (i.r | i.w) if i.kind != "label" else set()
        idx = -1
        for k, (gg, regs) in enumerate(q):
            if regs & use: idx = k
        if idx >= 0:
            while idx + 1 < len(q) and q[idx + 1][0] <= g - slack: idx += 1
            n = len(q) - 1 - idx
            if n > 15: n = 15
            out.append((g, f"s_waitcnt lgkmcnt({n})"))
            q = q[len(q) - n:] if n else []
        if i.kind == "ds":
            q.append((g, set(i.w)))
        out.append((g, t))
    return out

sK, sV, sX, sWQ, sO, sD = 8, 12, 16, 20, 24, 28
sPTR = 32
sW, sB, sH, sT0, sT1 = 3, 4, 5, 6, 7
sOff0, sOff1 = 48, 49
sM0 = 50
sCnt, sRedo = 58, 59
sXo, sXm, sWo_, sWm = 60, 61, 62, 63
sPf = 64
sQs = 65
sST = 70
vTid = 0
vKv = 1
vVv = 5
vPfo = 7
vQ = 8
vNM = 104
vS = 152
vP = 184
vKa = 200
vVa = 216
vL = 224
vPfd = 255
vT = 228
vAcc = 104
vQp = vQ + 64
aO = 0; aK = 192; aV = 224
LDS_K = (131072, 98304); LDS_V = (0, 32768); LDS_KB = 98304
LDS_EX = 65536
QSLOT = (0, 53248, 106496)
LDS_TOTAL = 163840

UNIT_TILE = [0, 1, 2, 0, 1, 0, 1, 0, 1]
UNIT_KT =   [0, 0, 0, 1, 1, 2, 2, 3, 3]

def stamp(o, idx):
    if cfg.stamp:
        o.append(f"s_memtime s[{sST+2*idx}:{sST+2*idx+1}]")

def kv_dma_items(stage_slot, which, it):
    items = []
    for grp in range(2):
        m0 = sM0 + (0 if which == "K" else 4) + 2 * stage_slot + grp
        items.append(Item([f"s_mov_b32 m0, s{m0}"], 4, it, "salu"))
        for q in range(4):
            vo = (vKv + q) if which == "K" else (vVv + (q & 1))
            srd = sK if which == "K" else sV
            so = sOff0 + grp
            off = f" offset:{1024*q}" if q else ""
            if cfg.no_dma: continue
            items.append(Item([f"buffer_load_dwordx4 v{vo}, s[{srd}:{srd+3}], s{so} offen{off}{NT(cfg.kv_nt)} lds"], 8, it, "dma"))
    return items

def pf_lines():
    out = []
    for i in range(cfg.np_pf):
        srd = sK if i < cfg.np_pf // 2 else sV
        sub = i % max(cfg.np_pf // 2, 1)
        off = f" offset:{64*sub}" if sub else ""
        out.append(f"buffer_load_dword v{vPfd}, v{vPfo}, s[{srd}:{srd+3}], s{sPf} offen{off}{NT(cfg.pf_nt)}")
    return out

def k_read(j, c, slot):
    imm = (LDS_K[slot] - LDS_KB) + (c >> 2) * 1024
    return f"ds_read_b128 {ar(aK+4*c,4)}, v{vKa+4*j+(c&3)} offset:{imm}"
def v_read(j, ch, t, jj, slot):
    imm = LDS_V[slot] + (2*ch + jj) * 2048 + (t >> 1) * 1024
    return f"ds_read_b64_tr_b16 {ar(aV+4*(4*ch+t)+2*jj,2)}, v{vVa+2*j+(t&1)} offset:{imm}"

def gen_attn_sched():
    NU = 18; N = NU * 16
    S = Sched(N, periodic=True)
    def tile(n): return UNIT_TILE[n % 9]
    def kt(n): return UNIT_KT[n % 9]
    def slot(n): return (n // 9) & 1
    def last_of_kt(n): return UNIT_KT[n % 9] != UNIT_KT[(n + 1) % 9] or n % 9 == 8
    for n in range(NU):
        u = n + 1; it = 1 if u == NU else 0
        sb = vS + 16 * (u & 1)
        for c in range(8):
            cin = vr(vNM + 16 * tile(u), 16) if c == 0 else vr(sb, 16)
            S.mf[16*n + c] = Item(f"{MF32} {vr(sb,16)}, {ar(aK+4*c,4)}, {vr(vQ+32*tile(u)+4*c,4)}, {cin}", 8, it)
        pb = vP + 8 * (n & 1)
        for i in range(8):
            ch, t = i >> 2, i & 3
            o = ar(aO + 64 * tile(n) + 16 * t, 16)
            S.mf[16*n + 8 + i] = Item(f"{MF32} {o}, {ar(aV+4*i,4)}, {vr(pb+4*ch,4)}, {o}", 8, 0)
    for n in range(1, NU + 1):
        sb = vS + 16 * (n & 1); pb = vP + 8 * (n & 1); l = vL + tile(n)
        for j in range(16):
            if cfg.no_sm: break
            g = 16*n + cfg.sm_start + j
            def itf(g): return 1 if (n == NU and g < N) else 0
            S.put(g, Item(f"v_exp_f32 v{sb+j}, v{sb+j}", 8, itf(g)))
            S.put(g + 1, Item(f"v_add_f32 v{l}, v{l}, v{sb+j}", 4, itf(g + 1)))
            if j & 1:
                S.put(g + 1, Item(f"v_cvt_pk_bf16_f32 v{pb+(j>>1)}, v{sb+j-1}, v{sb+j}", 4, itf(g + 1)))
    bar = [16*7 + 7, 144 + 16*7 + 7]
    for b in bar:
        S.put(b, Item([f"s_waitcnt vmcnt({cfg.np_pf}) lgkmcnt(0)", "s_barrier"], 8, 0, "bar"))
    for n in range(NU):
        u = n + 1
        if last_of_kt(u):
            nu = u + 1; it = 1 if nu >= NU else 0
            if u == NU: nu, it = 1 + 0, 0
            for c in range(8):
                lo = 16*n + c; hi = 16*n + 16 + c - 5
                if u % 9 == 8: lo = max(lo, 16*n + 7)
                S.put_win(lo, hi, Item(k_read(kt(nu), c, slot(nu)), 4, it, "ds"), cap=20)
    for n in range(NU):
        if last_of_kt(n):
            nu = n + 1
            for i in range(8):
                ch, t = i >> 2, i & 3
                for jj in range(2):
                    lo = 16*n + 8 + i; hi = lo + 16 - 5
                    if nu % 9 == 7: hi = min(hi, 16*(n+1) + 3)
                    item = Item(v_read(kt(nu), ch, t, jj, slot(nu)), 4, 0, "ds")
                    g = S.put_win(lo, hi, item, cap=20)
                    if nu >= NU and g < N: item.it = 1
    for bi, b in enumerate(bar):
        sl = bi
        items = [Item([f"s_add_u32 s{sOff0}, s{sOff0}, 32768", f"s_add_u32 s{sOff1}, s{sOff1}, 32768"], 8, 0, "salu")]
        items += kv_dma_items(sl, "K", 0) + kv_dma_items(sl, "V", 0)
        if cfg.np_pf:
            items += [Item([f"s_add_u32 s{sPf}, s{sPf}, 32768"], 4, 0, "salu")]
            items += [Item(l, 8, 0, "dma") for l in pf_lines()]
        g = b + 1
        pend = []
        for item in items:
            if item.kind == "salu": pend += item.lines; continue
            merged = Item(pend + (["s_nop 0"] if pend and "m0" in pend[-1] and False else []) + item.lines, item.cost + 4*len(pend), 0, "dma")
            if pend and "m0" in pend[-1]:
                merged.lines = pend + ["s_nop 0"] + item.lines
            pend = []
            gg = S.put_win(g, g + 12, merged, cap=24)
            if bi == 1 and gg < N: merged.it = 1
            g = gg + cfg_dma_step
        if pend:
            m = Item(pend, 4*len(pend), 0); gg = S.put_win(g, g + 4, m)
            if bi == 1 and gg < N: m.it = 1
    return S, bar
cfg_dma_step = 3

def gen_k1():
    o = []
    e = o.append
    e("attn_kernel:")
    e("s_cmp_ge_u32 s2, 256"); e("s_cbranch_scc1 L1_end")
    stamp(o, 0)
    if cfg.stamp: e(f"s_memrealtime s[{sST+14}:{sST+15}]")
    e(f"s_load_dwordx16 s[{sPTR}:{sPTR+15}], s[0:1], 0")
    e("v_lshrrev_b32 v1, 6, v0"); e("s_nop 0"); e(f"v_readfirstlane_b32 s{sW}, v1")
    e("v_and_b32 v0, 63, v0")
    if cfg.map_bh == "b":
        e(f"s_and_b32 s{sB}, s2, 7"); e(f"s_lshr_b32 s{sH}, s2, 3")
    else:
        e(f"s_lshr_b32 s{sB}, s2, 5"); e(f"s_and_b32 s{sT0}, s2, 7"); e(f"s_lshl_b32 s{sT0}, s{sT0}, 2")
        e(f"s_lshr_b32 s{sT1}, s2, 3"); e(f"s_and_b32 s{sT1}, s{sT1}, 3"); e(f"s_add_u32 s{sH}, s{sT0}, s{sT1}")
    e(f"s_mov_b32 s{sQs}, {QSCALE:#x}")
    e(f"s_mov_b32 s{sRedo}, 0")
    t = vT
    r8, p8, tA, tB, tC = t, t+1, t+2, t+3, t+4
    e(f"v_lshrrev_b32 v{r8}, 3, v0"); e(f"v_and_b32 v{p8}, 7, v0")
    vXv = vQp + 11; vWv = vQp + 13
    e(f"s_and_b32 s{sT0}, s{sW}, 1"); e(f"s_lshl_b32 s{sT0}, s{sT0}, 2")
    e(f"v_lshrrev_b32 v{tA}, 1, v{r8}")
    e(f"v_xor_b32 v{tB}, v{tA}, v{p8}"); e(f"v_xor_b32 v{tB}, s{sT0}, v{tB}")
    e(f"v_lshlrev_b32 v{tC}, 10, v{r8}")
    e(f"v_lshl_add_u32 v{vXv}, v{tB}, 4, v{tC}")
    e(f"v_xor_b32 v{vXv+1}, 64, v{vXv}")
    e(f"v_and_b32 v{tB}, 1, v{tA}"); e(f"v_lshlrev_b32 v{tB}, 2, v{tB}"); e(f"v_xor_b32 v{tB}, v{tB}, v{p8}")
    e(f"v_lshlrev_b32 v{tC}, 13, v{r8}")
    e(f"v_lshl_add_u32 v{vWv}, v{tB}, 4, v{tC}")
    e(f"v_lshlrev_b32 v{tC}, 8, v{r8}")
    e(f"v_lshl_add_u32 v{vVv+1}, v{tB}, 4, v{tC}")
    e(f"v_add_u32 v{vVv}, 1024, v{vVv+1}"); e(f"v_add_u32 v{vVv+1}, 128, v{vVv+1}")
    e(f"v_xor_b32 v{tB}, v{tA}, v{p8}")
    e(f"v_lshl_add_u32 v{vKv+1}, v{tB}, 4, v{tC}")
    e(f"v_xor_b32 v{vKv+3}, 64, v{vKv+1}")
    e(f"v_add_u32 v{vKv}, 1024, v{vKv+1}"); e(f"v_add_u32 v{vKv+2}, 1024, v{vKv+3}")
    e(f"v_add_u32 v{vKv+1}, 128, v{vKv+1}"); e(f"v_add_u32 v{vKv+3}, 128, v{vKv+3}")
    e(f"v_lshlrev_b32 v{vPfo}, 7, v0"); e(f"v_add_u32 v{vPfo}, 1024, v{vPfo}")
    e("s_waitcnt lgkmcnt(0)")
    def srd(s, lo, hi, nrec):
        e(f"s_and_b32 s{s+1}, s{hi}, 0xffff") if False else None
    e(f"s_mul_i32 s{sT0}, s{sB}, 294912")
    e(f"s_add_u32 s{sX}, s{sPTR+0}, s{sT0}"); e(f"s_addc_u32 s{sX+1}, s{sPTR+1}, 0")
    e(f"s_mov_b32 s{sX+2}, 294912"); e(f"s_mov_b32 s{sX+3}, 0x20000")
    e(f"s_lshl_b32 s{sT0}, s{sH}, 8")
    e(f"s_add_u32 s{sWQ}, s{sPTR+6}, s{sT0}"); e(f"s_addc_u32 s{sWQ+1}, s{sPTR+7}, 0")
    e(f"s_sub_u32 s{sWQ+2}, 4194304, s{sT0}"); e(f"s_mov_b32 s{sWQ+3}, 0x20000")
    e(f"s_mul_i32 s{sXo}, s{sW}, {9*8192}"); e(f"s_mul_i32 s{sXm}, s{sW}, {9*1024}")
    e(f"s_lshl_b32 s{sWo_}, s{sW}, 17")
    e(f"s_lshl_b32 s{sWm}, s{sW}, 12"); e(f"s_add_u32 s{sWm}, s{sWm}, 36864")
    def q_dma_items(c):
        items = []
        sl = QSLOT[c % 3]
        for q in range(4):
            go = c * 64 * 8192 + (q >> 1) * 65536 + (q & 1) * 128
            items.append(Item([f"s_add_u32 m0, s{sWm}, {sl + 1024*q}", f"s_add_u32 s{sT0}, s{sWo_}, {go}",
                               f"buffer_load_dwordx4 v{vWv}, s[{sWQ}:{sWQ+3}], s{sT0} offen{NT(cfg.q_nt)} lds"], 16, 0, "dma"))
        for i in range(9):
            items.append(Item([f"s_add_u32 m0, s{sXm}, {sl + 1024*i}", f"s_add_u32 s{sT0}, s{sXo}, {i*8192 + c*128}",
                               f"buffer_load_dwordx4 v{vXv+(i&1)}, s[{sX}:{sX+3}], s{sT0} offen{NT(cfg.q_nt)} lds"], 16, 0, "dma"))
        return items
    for c in range(3):
        for item in q_dma_items(c):
            for l in item.lines: e(l)
    e(f"s_lshl_b32 s{sT0}, s{sB}, 5"); e(f"s_add_u32 s{sT0}, s{sT0}, s{sH}")
    e(f"s_lshl_b32 s{sT0}, s{sT0}, 18")
    for s, p in ((sK, sPTR + 2), (sV, sPTR + 4)):
        e(f"s_add_u32 s{s}, s{p}, s{sT0}"); e(f"s_addc_u32 s{s+1}, s{p+1}, 0")
        e(f"s_sub_u32 s{s}, s{s}, 1024"); e(f"s_subb_u32 s{s+1}, s{s+1}, 0")
        e(f"s_mov_b32 s{s+2}, {262144+1024}"); e(f"s_mov_b32 s{s+3}, 0x20000")
    e(f"s_mul_i32 s{sT0}, s{sB}, 2359296")
    e(f"s_add_u32 s{sO}, s{sPTR+14}, s{sT0}"); e(f"s_addc_u32 s{sO+1}, s{sPTR+15}, 0")
    e(f"s_mov_b32 s{sO+2}, 2359296"); e(f"s_mov_b32 s{sO+3}, 0x20000")
    e(f"s_lshl_b32 s{sOff0}, s{sW}, 13"); e(f"s_add_u32 s{sOff1}, s{sOff0}, 4096")
    for sl in range(2):
        for g in range(2):
            e(f"s_add_u32 s{sM0+2*sl+g}, s{sOff0}, {LDS_K[sl] + 4096*g}")
            e(f"s_add_u32 s{sM0+4+2*sl+g}, s{sOff0}, {LDS_V[sl] + 4096*g}")
    e(f"s_mov_b32 s{sPf}, s{sOff0}")
    npf0 = 0
    if cfg.np_pf:
        for st in range(cfg.pf_dist + 1):
            if st: e(f"s_add_u32 s{sPf}, s{sPf}, 32768")
            for l in pf_lines(): e(l); npf0 += 1
    vXs, vXa, vWa = vQp, vQp + 4, vQp + 8
    m, hi, g1, r4, c4 = t+5, t+6, t+7, t+8, t+9
    e(f"v_and_b32 v{m}, 31, v0"); e(f"v_lshrrev_b32 v{hi}, 5, v0")
    e(f"v_lshrrev_b32 v{tA}, 3, v{m}"); e(f"v_lshlrev_b32 v{tA}, 10, v{tA}")
    e(f"v_and_b32 v{tB}, 7, v{m}"); e(f"v_lshl_add_u32 v{tA}, v{tB}, 7, v{tA}")
    e(f"v_bfe_u32 v{tB}, v{m}, 1, 3"); e(f"v_xor_b32 v{tB}, v{tB}, v{hi}")
    e(f"v_lshl_add_u32 v{vXs}, v{tB}, 4, v{tA}")
    for s in range(1, 4): e(f"v_xor_b32 v{vXs+s}, {32*s}, v{vXs}")
    for s in range(4): e(f"v_add_u32 v{vXa+s}, s{sOff0}, v{vXs+s}")
    e(f"v_bfe_u32 v{g1}, v0, 4, 1"); e(f"v_bfe_u32 v{r4}, v0, 2, 2"); e(f"v_and_b32 v{c4}, 3, v0")
    e(f"v_and_b32 v{tA}, 1, v{c4}"); e(f"v_lshlrev_b32 v{tA}, 1, v{tA}"); e(f"v_lshrrev_b32 v{tB}, 1, v{c4}"); e(f"v_or_b32 v{tA}, v{tA}, v{tB}")
    e(f"v_lshlrev_b32 v{tA}, 3, v{tA}"); e(f"v_lshl_add_u32 v{tA}, v{g1}, 5, v{tA}"); e(f"v_lshl_add_u32 v{tA}, v{r4}, 7, v{tA}")
    e(f"v_lshl_add_u32 v{tA}, v{hi}, 11, v{tA}"); e(f"v_lshrrev_b32 v{tB}, 1, v{r4}"); e(f"v_lshl_add_u32 v{tA}, v{tB}, 6, v{tA}")
    e(f"v_add_u32 v{vWa}, 36864, v{tA}"); e(f"v_xor_b32 v{vWa+1}, 64, v{vWa}")
    e(f"s_and_b32 s{sT0}, s{sW}, 1"); e(f"s_lshl_b32 s{sT0}, s{sT0}, 6")
    e(f"s_lshr_b32 s{sT1}, s{sW}, 1"); e(f"s_lshl_b32 s{sT1}, s{sT1}, 10")
    e(f"v_xor_b32 v{vWa+2}, s{sT0}, v{vWa}"); e(f"v_add_u32 v{vWa+2}, s{sT1}, v{vWa+2}")

    S = Sched(288)
    def fragA(p, t_): return aK + 32 * p + 4 * t_
    def fragB(p, T): return aK + 32 * p + 20 + 4 * T
    def q_reads(ks):
        p = ks & 1; s = ks & 3
        def ra(t_, jj):
            if t_ < 4: return f"ds_read_b64_tr_b16 {ar(fragA(p,t_)+2*jj,2)}, v{vWa+(t_&1)} offset:{s*4096+(t_>>1)*1024+jj*512}"
            return f"ds_read_b64_tr_b16 {ar(fragA(p,4)+2*jj,2)}, v{vWa+2} offset:{s*4096+jj*512}"
        rb = [f"ds_read_b128 {ar(fragB(p,0),4)}, v{vXa+s}", f"ds_read_b128 {ar(fragB(p,1),4)}, v{vXa+s} offset:4096",
              f"ds_read_b128 {ar(fragB(p,2),4)}, v{vXs+s} offset:32768"]
        return [ra(0,0), ra(0,1), rb[0], rb[1], ra(1,0), ra(1,1), ra(2,0), ra(2,1), ra(3,0), ra(3,1), ra(4,0), ra(4,1), rb[2]]
    for ks in range(32):
        p = ks & 1
        for i in range(9):
            if i < 8: T, t_ = i & 1, i >> 1; acc = vAcc + 64 * T + 16 * t_; A = fragA(p, t_)
            else: T, acc, A = 2, vAcc + 128, fragA(p, 4)
            cin = "0" if ks == 0 else vr(acc, 16)
            S.mf[9*ks + i] = Item(f"{MF32} {vr(acc,16)}, {ar(A,4)}, {ar(fragB(p,T),4)}, {cin}", 8)
    naddr = 11
    out_after = {}
    for c in range(8):
        gb = 36 * c + 26
        if c <= 1: n = 13 + npf0
        elif c <= 5: n = 13
        elif c == 6: n = 8 if not cfg.no_dma else 0
        else: n = None
        lines = []
        if n is not None: lines.append(f"s_waitcnt vmcnt({n}) lgkmcnt(0)")
        else: lines.append("s_waitcnt lgkmcnt(0)")
        lines.append("s_barrier")
        if c < 7:
            d = QSLOT[(c + 1) % 3] - QSLOT[c % 3]
            for k in range(naddr):
                lines.append(f"v_add_u32 v{vQp+k}, {d & 0xffffffff:#x}, v{vQp+k}")
        S.put(gb, Item(lines, 4 * len(lines)))
    for ks in range(1, 32):
        base = 9 * (ks - 1)
        rs = q_reads(ks)
        for k, r in enumerate(rs):
            lo = base + (k * 6) // 13
            if ks % 4 == 0: lo = max(lo, base)
            S.put(lo, Item(r, 4, 0, "ds"))
    for c in range(8):
        gb = 36 * c + 27
        if c + 3 < 8: items = q_dma_items(c + 3)
        elif c == 5: items = kv_dma_items(0, "K", 0)
        elif c == 6: items = kv_dma_items(0, "V", 0)
        else: items = []
        g = gb; pend = []
        for item in items:
            if item.kind == "salu": pend += item.lines + ["s_nop 0"]; continue
            mi = Item(pend + item.lines, item.cost + 4 * len(pend)); pend = []
            gg = S.put_win(g, min(g + 1, 287), mi, cap=24); g = gg + 1
            assert gg < 36 * (c + 1) + 26
    z = [f"v_accvgpr_write_b32 a{i}, 0" for i in range(192)]
    g = 0
    for l in z:
        g = S.put_win(g, 287, Item(l, 4), cap=20)
    e(f"s_waitcnt vmcnt({26 + npf0})"); e("s_barrier")
    stamp(o, 1)
    seq = [(-9, r) for r in q_reads(0)] + S.linear(0, 288)
    for g, l in lgkm_waits(seq, slack=3): e(l)
    stamp(o, 2)
    e("s_nop 7")
    def cvt_tile(acc, dst, n):
        for i in range(n):
            e(f"v_mul_f32 v{acc+2*i}, s{sQs}, v{acc+2*i}"); e(f"v_mul_f32 v{acc+2*i+1}, s{sQs}, v{acc+2*i+1}")
        for i in range(n):
            e(f"v_cvt_pk_bf16_f32 v{dst+i}, v{acc+2*i}, v{acc+2*i+1}")
    cvt_tile(vAcc, vQ, 32); cvt_tile(vAcc + 64, vQ + 32, 32)
    cvt_tile(vAcc + 128, vT + 20, 8)
    e(f"v_lshlrev_b32 v{tA}, 4, v0"); e(f"s_lshl_b32 s{sT0}, s{sW}, 11"); e(f"v_add_u32 v{tB}, s{sT0}, v{tA}")
    e(f"ds_write_b128 v{tB}, {vr(vT+20,4)} offset:{LDS_EX - 0}") if LDS_EX < 65536 else None
    e(f"v_add_u32 v{tB}, {LDS_EX}, v{tB}"); e(f"v_add_u32 v{tA}, {LDS_EX}, v{tA}")
    e(f"ds_write_b128 v{tB}, {vr(vT+20,4)}"); e(f"ds_write_b128 v{tB}, {vr(vT+24,4)} offset:1024")
    e(f"v_and_b32 v{m}, 31, v0"); e(f"v_lshrrev_b32 v{hi}, 5, v0")
    k0 = t + 10
    e(f"v_lshrrev_b32 v{tC}, 3, v{m}"); e(f"v_lshlrev_b32 v{tC}, 11, v{tC}")
    e(f"v_and_b32 v{r8}, 7, v{m}"); e(f"v_lshl_add_u32 v{tC}, v{r8}, 7, v{tC}")
    e(f"v_bfe_u32 v{r8}, v{m}, 1, 3"); e(f"v_xor_b32 v{r8}, v{r8}, v{hi}")
    e(f"v_lshl_add_u32 v{k0}, v{r8}, 4, v{tC}"); e(f"v_add_u32 v{k0}, {LDS_KB}, v{k0}")
    for c in range(1, 4): e(f"v_xor_b32 v{k0+c}, {32*c}, v{k0}")
    e(f"v_bfe_u32 v{g1}, v0, 4, 1"); e(f"v_bfe_u32 v{r4}, v0, 2, 2"); e(f"v_and_b32 v{c4}, 3, v0")
    e(f"v_lshlrev_b32 v{tC}, 3, v{c4}"); e(f"v_lshl_add_u32 v{tC}, v{g1}, 5, v{tC}"); e(f"v_lshl_add_u32 v{tC}, v{r4}, 7, v{tC}")
    e(f"v_lshl_add_u32 v{tC}, v{hi}, 9, v{tC}"); e(f"v_lshrrev_b32 v{r8}, 1, v{r4}"); e(f"v_lshl_add_u32 v{tC}, v{r8}, 6, v{tC}")
    for j in range(4):
        e(f"s_add_u32 s{sT0}, s{sW}, {j}"); e(f"s_and_b32 s{sT0}, s{sT0}, 3"); e(f"s_lshl_b32 s{sT0}, s{sT0}, 13")
        for c in range(4): e(f"v_add_u32 v{vKa+4*j+c}, s{sT0}, v{k0+c}")
        e(f"v_add_u32 v{vVa+2*j}, s{sT0}, v{tC}"); e(f"v_xor_b32 v{vVa+2*j+1}, 64, v{vVa+2*j}")
    e("s_waitcnt vmcnt(0) lgkmcnt(0)"); e("s_barrier")
    for c in range(8): e(f"ds_read_b128 {vr(vQ+64+4*c,4)}, v{tA} offset:{1024*c}")
    for c in range(8):
        e(f"ds_read_b128 {ar(aK+4*c,4)}, v{k0+(c&3)} offset:{LDS_K[0]-LDS_KB+(c>>2)*1024}")
    e("s_waitcnt lgkmcnt(0)")
    if cfg.dump_q:
        e(f"v_lshlrev_b32 v{tB}, 4, v0"); e(f"s_lshl_b32 s{sT0}, s{sH}, 2"); e(f"s_add_u32 s{sT0}, s{sT0}, s{sW}"); e(f"s_mul_i32 s{sT0}, s{sT0}, {18*1024}")
        for i in range(18):
            e(f"buffer_store_dwordx4 {vr(vQ+4*i + (24 if False else 0),4)}, v{tB}, s[{sO}:{sO+3}], s{sT0} offen"); e(f"s_add_u32 s{sT0}, s{sT0}, 1024")
        e("s_waitcnt vmcnt(0)"); e("s_endpgm")
    for T in range(3):
        nb = vNM + 16 * T
        for c in range(8):
            e(f"{MF32} {vr(nb,16)}, {ar(aK+4*c,4)}, {vr(vQ+32*T+4*c,4)}, {'0' if c == 0 else vr(nb,16)}")
    def negm_finish(T, src):
        nb = vNM + 16 * T
        e(f"v_mov_b32 v{tB}, v{src}"); e("s_nop 1"); e(f"v_permlane32_swap_b32 v{src}, v{tB}")
        e(f"v_max_f32 v{tB}, v{src}, v{tB}")
        for i in range(16): e(f"v_sub_f32 v{nb+i}, 0, v{tB}")
    for T in range(3):
        nb = vNM + 16 * T
        if T == 0: e("s_nop 3")
        if T == 2: e("s_nop 0")
        e(f"v_max3_f32 v{tC}, v{nb}, v{nb+1}, v{nb+2}")
        for i in range(3, 15, 2): e(f"v_max3_f32 v{tC}, v{tC}, v{nb+i}, v{nb+i+1}")
        e(f"v_max_f32 v{tC}, v{tC}, v{nb+15}")
        negm_finish(T, tC)
    e("L1_att:")
    for T in range(3): e(f"v_mov_b32 v{vL+T}, 0")
    e(f"s_mov_b32 s{sCnt}, 4")
    stamp(o, 3)
    A, bar = gen_attn_sched()
    N = 288; CUT = 272
    pro = A.linear(bar[1], N, keep=lambda it, g: it == 1)
    pro = lgkm_waits(pro, slack=3)
    pl, _ = check_hazards([l for g, l in pro], "pro", fix=True)
    o += pl
    e("s_waitcnt lgkmcnt(0)")
    body = A.linear(0, N)
    two = lgkm_waits([(g, l) for g, l in body] + [(10**6, "MARK:")] + [(g + N, l) for g, l in body], slack=3)
    k = [i for i, (g, l) in enumerate(two) if l == "MARK:"][0]
    body2 = [(g - N, l) for g, l in two[k+1:]]
    e(".p2align 6") if False else None
    e("L1_loop:")
    first = True
    bl = []
    for g, l in body2:
        if g >= CUT and first:
            bl += [f"s_sub_u32 s{sCnt}, s{sCnt}, 1", f"s_cmp_eq_u32 s{sCnt}, 0", "s_cbranch_scc1 L1_tail"]; first = False
        bl.append(l)
    bl.append("s_branch L1_loop")
    _, bad = check_hazards(pl[-30:] + bl[:-1] + bl[:-1], "loop")
    assert bad == 0 or cfg.no_sm
    o += bl
    e("L1_tail:")
    e("s_waitcnt lgkmcnt(0)")
    tail = [l for g, l in A.linear(CUT, N, keep=lambda it, g: it == 0)]
    pre = [l for g, l in body2 if CUT - 8 <= g < CUT]
    tl, _ = check_hazards(pre + ["X:"] + tail, "tail", fix=True)
    o += tl[tl.index("X:") + 1:]
    stamp(o, 4)
    cs = [A.cost[g] for g in range(N)]
    sys.stderr.write(f"attn gap cost: max {max(cs)} avg {sum(cs)/N:.1f} over24 {sum(c > 24 for c in cs)}\n")
    ep = []
    E = ep.append
    for T in range(3):
        E(f"v_mov_b32 v{vT+T}, v{vL+T}")
    E("s_nop 1")
    for T in range(3): E(f"v_permlane32_swap_b32 v{vL+T}, v{vT+T}")
    for T in range(3): E(f"v_add_f32 v{vL+T}, v{vL+T}, v{vT+T}")
    E(f"s_mov_b32 s{sT0}, {LTHRESH:#x}")
    E(f"v_max3_f32 v{vT}, v{vL}, v{vL+1}, v{vL+2}")
    E(f"v_add_f32 v{vT+1}, v{vL}, v{vL+1}"); E(f"v_add_f32 v{vT+1}, v{vT+1}, v{vL+2}")
    E(f"v_cmp_nge_f32 vcc, s{sT0}, v{vT+1}")
    E("s_nop 4")
    E(f"s_cmp_lg_u64 vcc, 0"); E(f"s_cselect_b32 s{sT1}, 1, 0")
    E("s_waitcnt vmcnt(0)"); E("s_barrier")
    tA_, tB_ = vT + 3, vT + 4
    E(f"v_lshlrev_b32 v{tA_}, 4, v0"); E(f"s_lshl_b32 s{sT0}, s{sW}, 14"); E(f"v_add_u32 v{tB_}, s{sT0}, v{tA_}")
    for i in range(16): E(f"ds_write_b128 v{tB_}, {ar(aO+128+4*i,4)} offset:{1024*i}")
    E(f"v_lshlrev_b32 v{vT+5}, 2, v0"); E(f"s_lshl_b32 s{sT0}, s{sW}, 8"); E(f"s_add_u32 s{sT0}, s{sT0}, {LDS_EX}")
    E(f"v_add_u32 v{vT+6}, s{sT0}, v{vT+5}"); E(f"v_mov_b32 v{vT+7}, s{sT1}")
    E(f"ds_write_b32 v{vT+6}, v{vL+2}"); E(f"ds_write_b32 v{vT+6}, v{vT+7} offset:1024")
    E(f"v_add_u32 v{vT+5}, {LDS_EX}, v{vT+5}")
    E(f"v_rcp_f32 v{vL}, v{vL}"); E(f"v_rcp_f32 v{vL+1}, v{vL+1}")
    va = vT + 8
    E(f"v_bfe_u32 v{va}, v0, 4, 1"); E(f"v_lshlrev_b32 v{va}, 17, v{va}")
    E(f"v_lshrrev_b32 v{va+1}, 5, v0"); E(f"v_lshl_add_u32 v{va}, v{va+1}, 8, v{va}")
    E(f"v_and_b32 v{va+1}, 15, v0"); E(f"v_lshl_add_u32 v{va}, v{va+1}, 4, v{va}")
    E("s_waitcnt lgkmcnt(0)"); E("s_barrier")
    for wv in range(4):
        E(f"ds_read_b32 v{vT+10+wv}, v{vT+5} offset:{256*wv}"); E(f"ds_read_b32 v{vT+14+wv}, v{vT+5} offset:{1024+256*wv}")
    E(f"s_lshl_b32 s{sT0}, s{sW}, 12"); E(f"v_add_u32 v{tA_}, s{sT0}, v{tA_}")
    sp = vNM
    for wv in range(4):
        for i in range(4): E(f"ds_read_b128 {vr(sp+16*wv+4*i,4)}, v{tA_} offset:{16384*wv+1024*i}")
    E("s_waitcnt lgkmcnt(15)")
    E(f"v_or_b32 v{vT+14}, v{vT+14}, v{vT+15}"); E(f"v_or3_b32 v{vT+14}, v{vT+14}, v{vT+16}, v{vT+17}")
    E("s_nop 0"); E(f"v_readfirstlane_b32 s{sT1}, v{vT+14}")
    E(f"v_add_f32 v{vT+10}, v{vT+10}, v{vT+11}"); E(f"v_add_f32 v{vT+12}, v{vT+12}, v{vT+13}"); E(f"v_add_f32 v{vT+10}, v{vT+10}, v{vT+12}")
    E(f"v_rcp_f32 v{vL+2}, v{vT+10}")
    E(f"s_andn2_b32 s{sT1}, s{sT1}, s{sRedo}"); E(f"s_cmp_lg_u32 s{sT1}, 0"); E("s_cbranch_scc1 L1_fallback")
    E(f"s_lshl_b32 s{sT0}, s{sW}, 19"); E(f"s_lshl_b32 s{sT1}, s{sH}, 12"); E(f"s_add_u32 s{sT0}, s{sT0}, s{sT1}")
    tmp = vQ
    k = 0
    for T in range(2):
        for t_ in range(4):
            for cp in range(2):
                b0 = tmp + 12 * (k % 6); k += 1
                for i in range(8): E(f"v_accvgpr_read_b32 v{b0+i}, a{aO+64*T+16*t_+8*cp+i}")
                for i in range(8): E(f"v_mul_f32 v{b0+i}, v{vL+T}, v{b0+i}")
                for i in range(4): E(f"v_cvt_pk_bf16_f32 v{b0+8+i}, v{b0+2*i}, v{b0+2*i+1}")
                E(f"buffer_store_dwordx4 {vr(b0+8,4)}, v{va}, s[{sO}:{sO+3}], s{sT0} offen offset:{1024*t_+512*cp}{NT(cfg.o_nt)}")
        if T == 0: E(f"s_add_u32 s{sT0}, s{sT0}, 262144")
    E("s_waitcnt lgkmcnt(0)")
    for i in range(16):
        E(f"v_add_f32 v{sp+i}, v{sp+i}, v{sp+16+i}"); E(f"v_add_f32 v{sp+32+i}, v{sp+32+i}, v{sp+48+i}")
    for i in range(16): E(f"v_add_f32 v{sp+i}, v{sp+i}, v{sp+32+i}")
    for i in range(16): E(f"v_mul_f32 v{sp+i}, v{vL+2}, v{sp+i}")
    for i in range(8): E(f"v_cvt_pk_bf16_f32 v{sp+16+i}, v{sp+2*i}, v{sp+2*i+1}")
    E(f"s_lshl_b32 s{sT0}, s{sW}, 10"); E(f"s_add_u32 s{sT0}, s{sT0}, s{sT1}"); E(f"s_add_u32 s{sT0}, s{sT0}, {16*131072}")
    E(f"buffer_store_dwordx4 {vr(sp+16,4)}, v{va}, s[{sO}:{sO+3}], s{sT0} offen")
    E(f"buffer_store_dwordx4 {vr(sp+20,4)}, v{va}, s[{sO}:{sO+3}], s{sT0} offen offset:512")
    if cfg.stamp:
        E("s_waitcnt vmcnt(0)")
        E(f"s_memtime s[{sST+10}:{sST+11}]"); E(f"s_memrealtime s[{sST+12}:{sST+13}]"); E("s_waitcnt lgkmcnt(0)")
        E(f"s_add_u32 s{sD}, s{sPTR+14}, 0x4000000"); E(f"s_addc_u32 s{sD+1}, s{sPTR+15}, 0")
        E(f"s_mov_b32 s{sD+2}, 0x100000"); E(f"s_mov_b32 s{sD+3}, 0x20000")
        E(f"s_lshl_b32 s{sT0}, s2, 2"); E(f"s_add_u32 s{sT0}, s{sT0}, s{sW}"); E(f"s_lshl_b32 s{sT0}, s{sT0}, 6")
        for i in range(16): E(f"v_mov_b32 v{vT+i}, s{sST+i}")
        E(f"v_mov_b32 v{vT+16}, 0")
        for i in range(4): E(f"buffer_store_dwordx4 {vr(vT+4*i,4)}, v{vT+16}, s[{sD}:{sD+3}], s{sT0} offen offset:{16*i}")
    E("L1_end:"); E("s_endpgm")
    E("L1_fallback:")
    E("s_waitcnt lgkmcnt(0)")
    E(f"s_mov_b32 s{sRedo}, 1")
    mx = vT + 20
    for T in range(3): E(f"v_mov_b32 v{mx+T}, 0xff800000")
    E(f"s_lshl_b32 s{sOff0}, s{sW}, 13"); E(f"s_add_u32 s{sOff1}, s{sOff0}, 4096")
    E(f"s_mov_b32 s{sCnt}, 8")
    E("L1_fb_loop:")
    E("s_barrier")
    for item in kv_dma_items(0, "K", 0):
        for l in item.lines: E(l)
        if item.kind == "salu": E("s_nop 0")
    E(f"s_add_u32 s{sOff0}, s{sOff0}, 32768"); E(f"s_add_u32 s{sOff1}, s{sOff1}, 32768")
    E("s_waitcnt vmcnt(0)"); E("s_barrier")
    for j in range(4):
        for c in range(8): E(k_read(j, c, 0))
        E("s_waitcnt lgkmcnt(0)")
        for T in range(3):
            nb = vNM + 16 * T
            for c in range(8):
                E(f"{MF32} {vr(nb,16)}, {ar(aK+4*c,4)}, {vr(vQ+32*T+4*c,4)}, {'0' if c == 0 else vr(nb,16)}")
        E("s_nop 15")
        for T in range(3):
            nb = vNM + 16 * T
            for i in range(0, 16, 2): E(f"v_max3_f32 v{mx+T}, v{mx+T}, v{nb+i}, v{nb+i+1}")
        E("s_nop 7")
    E(f"s_sub_u32 s{sCnt}, s{sCnt}, 1"); E(f"s_cmp_lg_u32 s{sCnt}, 0"); E("s_cbranch_scc1 L1_fb_loop")
    E("s_barrier")
    E(f"s_lshl_b32 s{sOff0}, s{sW}, 13"); E(f"s_add_u32 s{sOff1}, s{sOff0}, 4096")
    E(f"s_add_u32 s{sPf}, s{sOff0}, {32768*cfg.pf_dist}")
    for wh in "KV":
        for item in kv_dma_items(0, wh, 0):
            for l in item.lines: E(l)
            if item.kind == "salu": E("s_nop 0")
    for i in range(192): E(f"v_accvgpr_write_b32 a{i}, 0")
    for T in range(3):
        nb = vNM + 16 * T
        E(f"v_mov_b32 v{tB}, v{mx+T}"); E("s_nop 1"); E(f"v_permlane32_swap_b32 v{mx+T}, v{tB}")
        E(f"v_max_f32 v{tB}, v{mx+T}, v{tB}")
        for i in range(16): E(f"v_sub_f32 v{nb+i}, 0, v{tB}")
    E("s_waitcnt vmcnt(0)"); E("s_barrier")
    E("s_branch L1_att")
    el, _ = check_hazards(tl[-16:] + ["Y:"] + ep, "ep", fix=True)
    o += el[el.index("Y:") + 1:]
    return o

def gen_k2():
    o = []; e = o.append
    DEP = 5
    NSL = 8
    sOa, sOb, sWO, sOut, sOutb = 8, 12, 16, 20, 24
    sRg, sCg, sMt, sSo, sSw, sM = 48, 49, 50, 51, 52, 53
    vOo = 1
    vWv = 6
    vRa = 10
    vt = 14
    vAcc2 = 32
    vA = 112
    vBf = 144
    aBf = 0
    NB = DEP + 1
    e("oproj_kernel:")
    e("s_cmp_ge_u32 s2, 256"); e("s_cbranch_scc1 L2_end")
    if cfg.stamp:
        e(f"s_memtime s[{sST}:{sST+1}]"); e(f"s_memrealtime s[{sST+14}:{sST+15}]")
    e(f"s_load_dwordx8 s[{sPTR+8}:{sPTR+15}], s[0:1], 32")
    e("v_lshrrev_b32 v1, 6, v0"); e("s_nop 0"); e(f"v_readfirstlane_b32 s{sW}, v1")
    e("v_and_b32 v0, 63, v0")
    e(f"s_and_b32 s{sB}, s2, 7"); e(f"s_lshr_b32 s{sT0}, s2, 3")
    e(f"s_and_b32 s{sRg}, s{sT0}, 3"); e(f"s_lshr_b32 s{sCg}, s{sT0}, 2")
    e(f"s_lshr_b32 s{sMt}, s{sRg}, 1"); e(f"s_mul_i32 s{sMt}, s{sMt}, 9"); e(f"s_and_b32 s{sT1}, s{sRg}, 1")
    e(f"s_mul_i32 s{sT0}, s{sT1}, 5"); e(f"s_add_u32 s{sMt}, s{sMt}, s{sT0}")
    e(f"v_lshlrev_b32 v{vOo}, 4, v0")
    for i in range(1, 5): e(f"v_add_u32 v{vOo+i}, {131072*i}, v{vOo}")
    r8, p8, tA, tB = vt, vt+1, vt+2, vt+3
    e(f"v_lshrrev_b32 v{r8}, 3, v0"); e(f"v_and_b32 v{p8}, 7, v0")
    e(f"v_bfe_u32 v{tA}, v{r8}, 1, 2"); e(f"v_lshlrev_b32 v{tA}, 1, v{tA}"); e(f"v_xor_b32 v{tA}, v{tA}, v{p8}")
    e(f"v_lshlrev_b32 v{tB}, 10, v{r8}"); e(f"v_lshl_add_u32 v{vWv}, v{tA}, 4, v{tB}")
    for q in range(1, 4): e(f"v_add_u32 v{vWv+q}, {7168*q}, v{vWv}")
    kg, r4, c4 = vt+4, vt+5, vt+6
    e(f"v_lshrrev_b32 v{kg}, 4, v0"); e(f"v_bfe_u32 v{r4}, v0, 2, 2"); e(f"v_and_b32 v{c4}, 3, v0")
    e(f"v_and_b32 v{tA}, 1, v{kg}"); e(f"v_lshl_add_u32 v{tA}, v{tA}, 2, v{r4}")
    e(f"v_lshrrev_b32 v{tB}, 1, v{tA}"); e(f"v_lshlrev_b32 v{tB}, 5, v{tB}")
    e(f"v_lshl_add_u32 v{tB}, v{tA}, 7, v{tB}"); e(f"v_lshrrev_b32 v{tA}, 1, v{kg}"); e(f"v_lshl_add_u32 v{tB}, v{tA}, 11, v{tB}")
    e(f"v_lshl_add_u32 v{tB}, v{c4}, 3, v{tB}")
    e(f"s_lshl_b32 s{sM}, s{sW}, 15"); e(f"v_add_u32 v{vRa}, s{sM}, v{tB}")
    for nt in range(1, 4): e(f"v_xor_b32 v{vRa+nt}, {32*nt}, v{vRa}")
    e("s_waitcnt lgkmcnt(0)")
    e(f"s_mul_i32 s{sT0}, s{sB}, 18"); e(f"s_add_u32 s{sT0}, s{sT0}, s{sMt}"); e(f"s_lshl_b32 s{sT0}, s{sT0}, 17")
    e(f"s_add_u32 s{sOa}, s{sPTR+14}, s{sT0}"); e(f"s_addc_u32 s{sOa+1}, s{sPTR+15}, 0")
    e(f"s_mov_b32 s{sOa+2}, {5*131072}"); e(f"s_mov_b32 s{sOa+3}, 0x20000")
    e(f"s_lshl_b32 s{sT0}, s{sT1}, 17"); e(f"s_sub_u32 s{sOa+2}, {5*131072}, s{sT0}")
    e(f"s_lshl_b32 s{sT0}, s{sCg}, 7")
    e(f"s_add_u32 s{sWO}, s{sPTR+8}, s{sT0}"); e(f"s_addc_u32 s{sWO+1}, s{sPTR+9}, 0")
    e(f"s_sub_u32 s{sWO+2}, 4194304, s{sT0}"); e(f"s_mov_b32 s{sWO+3}, 0x20000")
    e(f"s_lshl_b32 s{sSo}, s{sW}, 15")
    e(f"s_lshl_b32 s{sSw}, s{sW}, 20")
    def loads(k):
        L = []
        L.append(f"s_add_u32 m0, s{sM}, {4096*(k % NSL)}")
        L.append(f"s_add_u32 s{sT0}, s{sSw}, {32768*k}")
        for q in range(4):
            L.append(f"buffer_load_dwordx4 v{vWv+q}, s[{sWO}:{sWO+3}], s{sT0} offen offset:{1024*q}{NT(cfg.k2w_nt)} lds")
        if k % 4 == 0 and k: L.append(f"s_add_u32 s{sSo}, s{sSo}, 4096")
        for i in range(5):
            L.append(f"buffer_load_dwordx4 {ar(aBf+20*(k % NB)+4*i,4)}, v{vOo+i}, s[{sOa}:{sOa+3}], s{sSo} offen offset:{1024*(k % 4)}{NT(cfg.k2o_nt)}")
        return L
    def areads(k):
        return [f"ds_read_b64_tr_b16 {vr(vA+16*(k&1)+4*nt+2*jj,2)}, v{vRa+nt} offset:{4096*(k % NSL)+1024*jj}" for nt in range(4) for jj in range(2)]
    for k in range(DEP):
        for l in loads(k): e(l)
    e(f"s_mul_i32 s{sT0}, s{sB}, 18"); e(f"s_add_u32 s{sT0}, s{sT0}, s{sMt}"); e(f"s_lshl_b32 s{sT0}, s{sT0}, 14")
    e(f"s_add_u32 s{sOut}, s{sPTR+10}, s{sT0}"); e(f"s_addc_u32 s{sOut+1}, s{sPTR+11}, 0")
    e(f"s_lshl_b32 s{sT0}, s{sT1}, 14"); e(f"s_sub_u32 s{sOut+2}, {5*16384}, s{sT0}"); e(f"s_mov_b32 s{sOut+3}, 0x20000")
    e(f"s_waitcnt vmcnt({9*(DEP-1)})")
    for l in areads(0): e(l)
    for k in range(32):
        fill = []
        if k + DEP < 32: fill += loads(k + DEP)
        pre = []
        if k + 1 < 32:
            n = 9 * max(0, min(k + DEP - 1, 31) - (k + 1))
            pre = [f"s_waitcnt vmcnt({n})"] + areads(k + 1)
        e(f"s_waitcnt lgkmcnt(0)")
        seq = pre + fill
        mi = 0
        for i in range(5):
            for nt in range(4):
                acc = vAcc2 + 4 * (4 * i + nt)
                e(f"{MF16} {vr(acc,4)}, {vr(vA+16*(k&1)+4*nt,4)}, {ar(aBf+20*(k % NB)+4*i,4)}, {'0' if k == 0 else vr(acc,4)}")
                mi += 1
                take = -(-len(seq) // (21 - mi)) if mi < 20 else len(seq)
                for l in seq[:take]: e(l)
                seq = seq[take:]
    e("s_nop 7"); e("s_barrier")
    e(f"v_lshlrev_b32 v{tA}, 4, v0"); e(f"s_mul_i32 s{sT0}, s{sW}, 20480"); e(f"v_add_u32 v{tB}, s{sT0}, v{tA}")
    for i in range(20): e(f"ds_write_b128 v{tB}, {vr(vAcc2+4*i,4)} offset:{1024*i}")
    e(f"s_lshl_b32 s{sT0}, s{sW}, 10"); e(f"v_add_u32 v{tA}, s{sT0}, v{tA}")
    e(f"v_add_u32 v{tB}, 40960, v{tA}")
    va = vt + 4
    e(f"v_and_b32 v{va}, 15, v0"); e(f"v_lshlrev_b32 v{va}, 10, v{va}"); e(f"v_lshrrev_b32 v{va+1}, 4, v0")
    e(f"v_lshl_add_u32 v{va}, v{va+1}, 3, v{va}")
    e(f"s_lshl_b32 s{sT0}, s{sCg}, 7"); e(f"s_lshl_b32 s{sT1}, s{sW}, 5"); e(f"s_add_u32 s{sT0}, s{sT0}, s{sT1}")
    e("s_waitcnt lgkmcnt(0)"); e("s_barrier")
    for i in range(5):
        for wv in range(4):
            e(f"ds_read_b128 {vr(vAcc2+16*i+4*wv,4)}, v{tA if wv < 2 else tB} offset:{20480*(wv&1)+4096*i}")
    for i in range(5):
        e(f"s_waitcnt lgkmcnt({min(15, 4*(4-i))})")
        b0 = vAcc2 + 16 * i
        for r in range(4): e(f"v_add_f32 v{b0+r}, v{b0+r}, v{b0+4+r}"); e(f"v_add_f32 v{b0+8+r}, v{b0+8+r}, v{b0+12+r}")
        for r in range(4): e(f"v_add_f32 v{b0+r}, v{b0+r}, v{b0+8+r}")
        e(f"v_cvt_pk_bf16_f32 v{b0+4}, v{b0}, v{b0+1}"); e(f"v_cvt_pk_bf16_f32 v{b0+5}, v{b0+2}, v{b0+3}")
        e(f"buffer_store_dwordx2 {vr(b0+4,2)}, v{va}, s[{sOut}:{sOut+3}], s{sT0} offen")
        e(f"s_add_u32 s{sT0}, s{sT0}, 16384")
    if cfg.stamp:
        e("s_waitcnt vmcnt(0)")
        e(f"s_memtime s[{sST+10}:{sST+11}]"); e(f"s_memrealtime s[{sST+12}:{sST+13}]"); e("s_waitcnt lgkmcnt(0)")
        e(f"s_add_u32 s{sD}, s{sPTR+14}, 0x4100000"); e(f"s_addc_u32 s{sD+1}, s{sPTR+15}, 0")
        e(f"s_mov_b32 s{sD+2}, 0x100000"); e(f"s_mov_b32 s{sD+3}, 0x20000")
        e(f"s_lshl_b32 s{sT0}, s2, 2"); e(f"s_add_u32 s{sT0}, s{sT0}, s{sW}"); e(f"s_lshl_b32 s{sT0}, s{sT0}, 6")
        for i in range(16): e(f"v_mov_b32 v{vt+i}, s{sST+i}")
        e(f"v_mov_b32 v{vt+16}, 0")
        for i in range(4): e(f"buffer_store_dwordx4 {vr(vt+4*i,4)}, v{vt+16}, s[{sD}:{sD+3}], s{sT0} offen offset:{16*i}")
    e("L2_end:"); e("s_endpgm")
    o, _ = check_hazards(o, "k2", fix=True)
    return o, 144, 144 + 20 * NB

def kd(name, nv, acc):
    return f""".amdhsa_kernel {name}
  .amdhsa_next_free_vgpr {nv}
  .amdhsa_next_free_sgpr 96
  .amdhsa_accum_offset {acc}
  .amdhsa_group_segment_fixed_size 0
  .amdhsa_kernarg_size 64
  .amdhsa_user_sgpr_count 2
  .amdhsa_user_sgpr_kernarg_segment_ptr 1
  .amdhsa_system_sgpr_workgroup_id_x 1
.end_amdhsa_kernel
"""

def main():
    k1 = gen_k1()
    k1, _ = check_hazards(k1, "k1", fix=True)
    k2, acc2, nv2 = gen_k2()
    hdr = open("standalone__gqa_block_cached__near_ridge.s.ref").read().split("\n")
    hdr = [l for l in hdr[:9]]
    out = hdr + [f"; @launch kernel=attn_kernel grid=(256,1,1) block=(256,1,1) lds={LDS_TOTAL}",
                 "; @launch kernel=oproj_kernel grid=(256,1,1) block=(256,1,1) lds=131072",
                 '.amdgcn_target "amdgcn-amd-amdhsa--gfx950"', ".text"]
    def fmt(l): return l if l.endswith(":") else "    " + l
    out += [".globl attn_kernel", ".p2align 8", ".type attn_kernel,@function"] + [fmt(l) for l in k1 if l]
    out += [".globl oproj_kernel", ".p2align 8", ".type oproj_kernel,@function"] + [fmt(l) for l in k2 if l]
    out += ['.section .rodata,"a"', ".p2align 6", kd("attn_kernel", 512, 256), ".p2align 6", kd("oproj_kernel", nv2, acc2)]
    open(sys.argv[1], "w").write("\n".join(out))
main()
```

```python
import sys, math, struct
from asmlib import *

class Cfg:
    stamp = False
    map_bh = "b"
    np_pf = 2
    pf_dist = 1
    sm_start = -6
    no_dma = False
    no_sm = False
    dump_q = False
    dbg = False
    dbgoff = 0
    kv_nt = False
    pf_nt = False
    q_nt = False
    o_nt = False
    k2o_nt = False
    k2w_nt = False
    k2map = 'b'
cfg = Cfg()
for a in sys.argv[2:]:
    k, v = a.split("=")
    old = getattr(cfg, k)
    setattr(cfg, k, (v == "1") if isinstance(old, bool) else type(old)(v))

def NT(f): return ' nt' if f else ''
def f2u(x): return struct.unpack("<I", struct.pack("<f", x))[0]
QSCALE = f2u(math.log2(math.e) / math.sqrt(128.0))
LTHRESH = f2u(2.0 ** 40)

MF32 = "v_mfma_f32_32x32x16_bf16"
MF16 = "v_mfma_f32_16x16x32_bf16"

class Item:
    def __init__(self, lines, cost, it=0, kind=""):
        self.lines = lines if isinstance(lines, list) else [lines]
        self.cost = cost; self.it = it; self.kind = kind

class Sched:
    def __init__(self, n, periodic=False):
        self.n = n; self.periodic = periodic
        self.mf = [None] * n; self.gap = [[] for _ in range(n)]; self.cost = [0] * n
    def norm(self, g, it):
        if self.periodic:
            return g % self.n
        assert 0 <= g < self.n, g
        return g
    def put(self, g, item, front=False):
        g = self.norm(g, item.it)
        if front: self.gap[g].insert(0, item)
        else: self.gap[g].append(item)
        self.cost[g] += item.cost
    def put_win(self, lo, hi, item, cap=24):
        best = None
        for g in range(lo, hi + 1):
            c = self.cost[self.norm(g, 0)]
            if c + item.cost <= cap: best = g; break
        if best is None:
            best = min(range(lo, hi + 1), key=lambda g: self.cost[self.norm(g, 0)])
        self.put(best, item); return best
    def linear(self, lo, hi, keep=lambda it, g: True):
        out = []
        for g in range(lo, hi):
            if self.mf[g] is not None and keep(self.mf[g].it, g):
                for l in self.mf[g].lines: out.append((g, l))
            for item in self.gap[g]:
                if keep(item.it, g):
                    for l in item.lines: out.append((g, l))
        return out

def lgkm_waits(seq, slack=3):
    out = []; q = []
    for g, t in seq:
        i = Ins(t)
        if i.op == "s_waitcnt" and "lgkmcnt(0)" in t: q = []
        use = (i.r | i.w) if i.kind != "label" else set()
        idx = -1
        for k, (gg, regs) in enumerate(q):
            if regs & use: idx = k
        if idx >= 0:
            while idx + 1 < len(q) and q[idx + 1][0] <= g - slack: idx += 1
            n = len(q) - 1 - idx
            if n > 15: n = 15
            out.append((g, f"s_waitcnt lgkmcnt({n})"))
            q = q[len(q) - n:] if n else []
        if i.kind == "ds":
            q.append((g, set(i.w)))
        out.append((g, t))
    return out

sK, sV, sX, sWQ, sO, sD = 8, 12, 16, 20, 24, 28
sPTR = 32
sW, sB, sH, sT0, sT1 = 3, 4, 5, 6, 7
sOff0, sOff1 = 48, 49
sM0 = 50
sCnt, sRedo = 58, 59
sXo, sXm, sWo_, sWm = 60, 61, 62, 63
sPf = 64
sQs = 65
sST = 70
vTid = 0
vKv = 1
vVv = 5
vPfo = 7
vQ = 8
vNM = 104
vS = 152
vP = 184
vKa = 200
vVa = 216
vL = 224
vPfd = 255
vT = 228
vAcc = 104
vQp = vQ + 64
aO = 0; aK = 192; aV = 224
LDS_K = (131072, 98304); LDS_V = (0, 32768); LDS_KB = 98304
LDS_EX = 65536
QSLOT = (0, 53248, 106496)
LDS_TOTAL = 163840

UNIT_TILE = [0, 1, 2, 0, 1, 0, 1, 0, 1]
UNIT_KT =   [0, 0, 0, 1, 1, 2, 2, 3, 3]

def stamp(o, idx):
    if cfg.stamp:
        o.append(f"s_memtime s[{sST+2*idx}:{sST+2*idx+1}]")

def kv_dma_items(stage_slot, which, it):
    items = []
    for grp in range(2):
        m0 = sM0 + (0 if which == "K" else 4) + 2 * stage_slot + grp
        items.append(Item([f"s_mov_b32 m0, s{m0}"], 4, it, "salu"))
        for q in range(4):
            vo = (vKv + q) if which == "K" else (vVv + (q & 1))
            srd = sK if which == "K" else sV
            so = sOff0 + grp
            off = f" offset:{1024*q}" if q else ""
            if cfg.no_dma: continue
            items.append(Item([f"buffer_load_dwordx4 v{vo}, s[{srd}:{srd+3}], s{so} offen{off}{NT(cfg.kv_nt)} lds"], 8, it, "dma"))
    return items

def pf_lines():
    out = []
    for i in range(cfg.np_pf):
        srd = sK if i < cfg.np_pf // 2 else sV
        sub = i % max(cfg.np_pf // 2, 1)
        off = f" offset:{64*sub}" if sub else ""
        out.append(f"buffer_load_dword v{vPfd}, v{vPfo}, s[{srd}:{srd+3}], s{sPf} offen{off}{NT(cfg.pf_nt)}")
    return out

def k_read(j, c, slot):
    imm = (LDS_K[slot] - LDS_KB) + (c >> 2) * 1024
    return f"ds_read_b128 {ar(aK+4*c,4)}, v{vKa+4*j+(c&3)} offset:{imm}"
def v_read(j, ch, t, jj, slot):
    imm = LDS_V[slot] + (2*ch + jj) * 2048 + (t >> 1) * 1024
    return f"ds_read_b64_tr_b16 {ar(aV+4*(4*ch+t)+2*jj,2)}, v{vVa+2*j+(t&1)} offset:{imm}"

def gen_attn_sched():
    NU = 18; N = NU * 16
    S = Sched(N, periodic=True)
    def tile(n): return UNIT_TILE[n % 9]
    def kt(n): return UNIT_KT[n % 9]
    def slot(n): return (n // 9) & 1
    def last_of_kt(n): return UNIT_KT[n % 9] != UNIT_KT[(n + 1) % 9] or n % 9 == 8
    for n in range(NU):
        u = n + 1; it = 1 if u == NU else 0
        sb = vS + 16 * (u & 1)
        for c in range(8):
            cin = vr(vNM + 16 * tile(u), 16) if c == 0 else vr(sb, 16)
            S.mf[16*n + c] = Item(f"{MF32} {vr(sb,16)}, {ar(aK+4*c,4)}, {vr(vQ+32*tile(u)+4*c,4)}, {cin}", 8, it)
        pb = vP + 8 * (n & 1)
        for i in range(8):
            ch, t = i >> 2, i & 3
            o = ar(aO + 64 * tile(n) + 16 * t, 16)
            S.mf[16*n + 8 + i] = Item(f"{MF32} {o}, {ar(aV+4*i,4)}, {vr(pb+4*ch,4)}, {o}", 8, 0)
    for n in range(1, NU + 1):
        sb = vS + 16 * (n & 1); pb = vP + 8 * (n & 1); l = vL + tile(n)
        for j in range(16):
            if cfg.no_sm: break
            g = 16*n + cfg.sm_start + j
            def itf(g): return 1 if (n == NU and g < N) else 0
            S.put(g, Item(f"v_exp_f32 v{sb+j}, v{sb+j}", 8, itf(g)))
            S.put(g + 1, Item(f"v_add_f32 v{l}, v{l}, v{sb+j}", 4, itf(g + 1)))
            if j & 1:
                S.put(g + 1, Item(f"v_cvt_pk_bf16_f32 v{pb+(j>>1)}, v{sb+j-1}, v{sb+j}", 4, itf(g + 1)))
    bar = [16*7 + 7, 144 + 16*7 + 7]
    for b in bar:
        S.put(b, Item([f"s_waitcnt vmcnt({cfg.np_pf}) lgkmcnt(0)", "s_barrier"], 8, 0, "bar"))
    for n in range(NU):
        u = n + 1
        if last_of_kt(u):
            nu = u + 1; it = 1 if nu >= NU else 0
            if u == NU: nu, it = 1 + 0, 0
            for c in range(8):
                lo = 16*n + c; hi = 16*n + 16 + c - 5
                if u % 9 == 8: lo = max(lo, 16*n + 7)
                S.put_win(lo, hi, Item(k_read(kt(nu), c, slot(nu)), 4, it, "ds"), cap=20)
    for n in range(NU):
        if last_of_kt(n):
            nu = n + 1
            for i in range(8):
                ch, t = i >> 2, i & 3
                for jj in range(2):
                    lo = 16*n + 8 + i; hi = lo + 16 - 5
                    if nu % 9 == 7: hi = min(hi, 16*(n+1) + 3)
                    item = Item(v_read(kt(nu), ch, t, jj, slot(nu)), 4, 0, "ds")
                    g = S.put_win(lo, hi, item, cap=20)
                    if nu >= NU and g < N: item.it = 1
    for bi, b in enumerate(bar):
        sl = bi
        items = [Item([f"s_add_u32 s{sOff0}, s{sOff0}, 32768", f"s_add_u32 s{sOff1}, s{sOff1}, 32768"], 8, 0, "salu")]
        items += kv_dma_items(sl, "K", 0) + kv_dma_items(sl, "V", 0)
        if cfg.np_pf:
            items += [Item([f"s_add_u32 s{sPf}, s{sPf}, 32768"], 4, 0, "salu")]
            items += [Item(l, 8, 0, "dma") for l in pf_lines()]
        g = b + 1
        pend = []
        for item in items:
            if item.kind == "salu": pend += item.lines; continue
            merged = Item(pend + (["s_nop 0"] if pend and "m0" in pend[-1] and False else []) + item.lines, item.cost + 4*len(pend), 0, "dma")
            if pend and "m0" in pend[-1]:
                merged.lines = pend + ["s_nop 0"] + item.lines
            pend = []
            gg = S.put_win(g, g + 12, merged, cap=24)
            if bi == 1 and gg < N: merged.it = 1
            g = gg + cfg_dma_step
        if pend:
            m = Item(pend, 4*len(pend), 0); gg = S.put_win(g, g + 4, m)
            if bi == 1 and gg < N: m.it = 1
    return S, bar
cfg_dma_step = 3

def gen_k1():
    o = []
    e = o.append
    e("attn_kernel:")
    e("s_cmp_ge_u32 s2, 256"); e("s_cbranch_scc1 L1_end")
    stamp(o, 0)
    if cfg.stamp: e(f"s_memrealtime s[{sST+14}:{sST+15}]")
    e(f"s_load_dwordx16 s[{sPTR}:{sPTR+15}], s[0:1], 0")
    e("v_lshrrev_b32 v1, 6, v0"); e("s_nop 0"); e(f"v_readfirstlane_b32 s{sW}, v1")
    e("v_and_b32 v0, 63, v0")
    if cfg.map_bh == "b":
        e(f"s_and_b32 s{sB}, s2, 7"); e(f"s_lshr_b32 s{sH}, s2, 3")
    else:
        e(f"s_lshr_b32 s{sB}, s2, 5"); e(f"s_and_b32 s{sT0}, s2, 7"); e(f"s_lshl_b32 s{sT0}, s{sT0}, 2")
        e(f"s_lshr_b32 s{sT1}, s2, 3"); e(f"s_and_b32 s{sT1}, s{sT1}, 3"); e(f"s_add_u32 s{sH}, s{sT0}, s{sT1}")
    e(f"s_mov_b32 s{sQs}, {QSCALE:#x}")
    e(f"s_mov_b32 s{sRedo}, 0")
    t = vT
    r8, p8, tA, tB, tC = t, t+1, t+2, t+3, t+4
    e(f"v_lshrrev_b32 v{r8}, 3, v0"); e(f"v_and_b32 v{p8}, 7, v0")
    vXv = vQp + 11; vWv = vQp + 13
    e(f"s_and_b32 s{sT0}, s{sW}, 1"); e(f"s_lshl_b32 s{sT0}, s{sT0}, 2")
    e(f"v_lshrrev_b32 v{tA}, 1, v{r8}")
    e(f"v_xor_b32 v{tB}, v{tA}, v{p8}"); e(f"v_xor_b32 v{tB}, s{sT0}, v{tB}")
    e(f"v_lshlrev_b32 v{tC}, 10, v{r8}")
    e(f"v_lshl_add_u32 v{vXv}, v{tB}, 4, v{tC}")
    e(f"v_xor_b32 v{vXv+1}, 64, v{vXv}")
    e(f"v_and_b32 v{tB}, 1, v{tA}"); e(f"v_lshlrev_b32 v{tB}, 2, v{tB}"); e(f"v_xor_b32 v{tB}, v{tB}, v{p8}")
    e(f"v_lshlrev_b32 v{tC}, 13, v{r8}")
    e(f"v_lshl_add_u32 v{vWv}, v{tB}, 4, v{tC}")
    e(f"v_lshlrev_b32 v{tC}, 8, v{r8}")
    e(f"v_lshl_add_u32 v{vVv+1}, v{tB}, 4, v{tC}")
    e(f"v_add_u32 v{vVv}, 1024, v{vVv+1}"); e(f"v_add_u32 v{vVv+1}, 128, v{vVv+1}")
    e(f"v_xor_b32 v{tB}, v{tA}, v{p8}")
    e(f"v_lshl_add_u32 v{vKv+1}, v{tB}, 4, v{tC}")
    e(f"v_xor_b32 v{vKv+3}, 64, v{vKv+1}")
    e(f"v_add_u32 v{vKv}, 1024, v{vKv+1}"); e(f"v_add_u32 v{vKv+2}, 1024, v{vKv+3}")
    e(f"v_add_u32 v{vKv+1}, 128, v{vKv+1}"); e(f"v_add_u32 v{vKv+3}, 128, v{vKv+3}")
    e(f"v_lshlrev_b32 v{vPfo}, 7, v0"); e(f"v_add_u32 v{vPfo}, 1024, v{vPfo}")
    e("s_waitcnt lgkmcnt(0)")
    def srd(s, lo, hi, nrec):
        e(f"s_and_b32 s{s+1}, s{hi}, 0xffff") if False else None
    e(f"s_mul_i32 s{sT0}, s{sB}, 294912")
    e(f"s_add_u32 s{sX}, s{sPTR+0}, s{sT0}"); e(f"s_addc_u32 s{sX+1}, s{sPTR+1}, 0")
    e(f"s_mov_b32 s{sX+2}, 294912"); e(f"s_mov_b32 s{sX+3}, 0x20000")
    e(f"s_lshl_b32 s{sT0}, s{sH}, 8")
    e(f"s_add_u32 s{sWQ}, s{sPTR+6}, s{sT0}"); e(f"s_addc_u32 s{sWQ+1}, s{sPTR+7}, 0")
    e(f"s_sub_u32 s{sWQ+2}, 4194304, s{sT0}"); e(f"s_mov_b32 s{sWQ+3}, 0x20000")
    e(f"s_mul_i32 s{sXo}, s{sW}, {9*8192}"); e(f"s_mul_i32 s{sXm}, s{sW}, {9*1024}")
    e(f"s_lshl_b32 s{sWo_}, s{sW}, 17")
    e(f"s_lshl_b32 s{sWm}, s{sW}, 12"); e(f"s_add_u32 s{sWm}, s{sWm}, 36864")
    def q_dma_items(c):
        items = []
        sl = QSLOT[c % 3]
        for q in range(4):
            go = c * 64 * 8192 + (q >> 1) * 65536 + (q & 1) * 128
            items.append(Item([f"s_add_u32 m0, s{sWm}, {sl + 1024*q}", f"s_add_u32 s{sT0}, s{sWo_}, {go}",
                               f"buffer_load_dwordx4 v{vWv}, s[{sWQ}:{sWQ+3}], s{sT0} offen{NT(cfg.q_nt)} lds"], 16, 0, "dma"))
        for i in range(9):
            items.append(Item([f"s_add_u32 m0, s{sXm}, {sl + 1024*i}", f"s_add_u32 s{sT0}, s{sXo}, {i*8192 + c*128}",
                               f"buffer_load_dwordx4 v{vXv+(i&1)}, s[{sX}:{sX+3}], s{sT0} offen{NT(cfg.q_nt)} lds"], 16, 0, "dma"))
        return items
    for c in range(3):
        for item in q_dma_items(c):
            for l in item.lines: e(l)
    e(f"s_lshl_b32 s{sT0}, s{sB}, 5"); e(f"s_add_u32 s{sT0}, s{sT0}, s{sH}")
    e(f"s_lshl_b32 s{sT0}, s{sT0}, 18")
    for s, p in ((sK, sPTR + 2), (sV, sPTR + 4)):
        e(f"s_add_u32 s{s}, s{p}, s{sT0}"); e(f"s_addc_u32 s{s+1}, s{p+1}, 0")
        e(f"s_sub_u32 s{s}, s{s}, 1024"); e(f"s_subb_u32 s{s+1}, s{s+1}, 0")
        e(f"s_mov_b32 s{s+2}, {262144+1024}"); e(f"s_mov_b32 s{s+3}, 0x20000")
    e(f"s_mul_i32 s{sT0}, s{sB}, 2359296")
    e(f"s_add_u32 s{sO}, s{sPTR+14}, s{sT0}"); e(f"s_addc_u32 s{sO+1}, s{sPTR+15}, 0")
    e(f"s_mov_b32 s{sO+2}, 2359296"); e(f"s_mov_b32 s{sO+3}, 0x20000")
    e(f"s_lshl_b32 s{sOff0}, s{sW}, 13"); e(f"s_add_u32 s{sOff1}, s{sOff0}, 4096")
    for sl in range(2):
        for g in range(2):
            e(f"s_add_u32 s{sM0+2*sl+g}, s{sOff0}, {LDS_K[sl] + 4096*g}")
            e(f"s_add_u32 s{sM0+4+2*sl+g}, s{sOff0}, {LDS_V[sl] + 4096*g}")
    e(f"s_mov_b32 s{sPf}, s{sOff0}")
    npf0 = 0
    if cfg.np_pf:
        for st in range(cfg.pf_dist + 1):
            if st: e(f"s_add_u32 s{sPf}, s{sPf}, 32768")
            for l in pf_lines(): e(l); npf0 += 1
    vXs, vXa, vWa = vQp, vQp + 4, vQp + 8
    m, hi, g1, r4, c4 = t+5, t+6, t+7, t+8, t+9
    e(f"v_and_b32 v{m}, 31, v0"); e(f"v_lshrrev_b32 v{hi}, 5, v0")
    e(f"v_lshrrev_b32 v{tA}, 3, v{m}"); e(f"v_lshlrev_b32 v{tA}, 10, v{tA}")
    e(f"v_and_b32 v{tB}, 7, v{m}"); e(f"v_lshl_add_u32 v{tA}, v{tB}, 7, v{tA}")
    e(f"v_bfe_u32 v{tB}, v{m}, 1, 3"); e(f"v_xor_b32 v{tB}, v{tB}, v{hi}")
    e(f"v_lshl_add_u32 v{vXs}, v{tB}, 4, v{tA}")
    for s in range(1, 4): e(f"v_xor_b32 v{vXs+s}, {32*s}, v{vXs}")
    for s in range(4): e(f"v_add_u32 v{vXa+s}, s{sOff0}, v{vXs+s}")
    e(f"v_bfe_u32 v{g1}, v0, 4, 1"); e(f"v_bfe_u32 v{r4}, v0, 2, 2"); e(f"v_and_b32 v{c4}, 3, v0")
    e(f"v_and_b32 v{tA}, 1, v{c4}"); e(f"v_lshlrev_b32 v{tA}, 1, v{tA}"); e(f"v_lshrrev_b32 v{tB}, 1, v{c4}"); e(f"v_or_b32 v{tA}, v{tA}, v{tB}")
    e(f"v_lshlrev_b32 v{tA}, 3, v{tA}"); e(f"v_lshl_add_u32 v{tA}, v{g1}, 5, v{tA}"); e(f"v_lshl_add_u32 v{tA}, v{r4}, 7, v{tA}")
    e(f"v_lshl_add_u32 v{tA}, v{hi}, 11, v{tA}"); e(f"v_lshrrev_b32 v{tB}, 1, v{r4}"); e(f"v_lshl_add_u32 v{tA}, v{tB}, 6, v{tA}")
    e(f"v_add_u32 v{vWa}, 36864, v{tA}"); e(f"v_xor_b32 v{vWa+1}, 64, v{vWa}")
    e(f"s_and_b32 s{sT0}, s{sW}, 1"); e(f"s_lshl_b32 s{sT0}, s{sT0}, 6")
    e(f"s_lshr_b32 s{sT1}, s{sW}, 1"); e(f"s_lshl_b32 s{sT1}, s{sT1}, 10")
    e(f"v_xor_b32 v{vWa+2}, s{sT0}, v{vWa}"); e(f"v_add_u32 v{vWa+2}, s{sT1}, v{vWa+2}")

    S = Sched(288)
    def fragA(p, t_): return aK + 32 * p + 4 * t_
    def fragB(p, T): return aK + 32 * p + 20 + 4 * T
    def q_reads(ks):
        p = ks & 1; s = ks & 3
        def ra(t_, jj):
            if t_ < 4: return f"ds_read_b64_tr_b16 {ar(fragA(p,t_)+2*jj,2)}, v{vWa+(t_&1)} offset:{s*4096+(t_>>1)*1024+jj*512}"
            return f"ds_read_b64_tr_b16 {ar(fragA(p,4)+2*jj,2)}, v{vWa+2} offset:{s*4096+jj*512}"
        rb = [f"ds_read_b128 {ar(fragB(p,0),4)}, v{vXa+s}", f"ds_read_b128 {ar(fragB(p,1),4)}, v{vXa+s} offset:4096",
              f"ds_read_b128 {ar(fragB(p,2),4)}, v{vXs+s} offset:32768"]
        return [ra(0,0), ra(0,1), rb[0], rb[1], ra(1,0), ra(1,1), ra(2,0), ra(2,1), ra(3,0), ra(3,1), ra(4,0), ra(4,1), rb[2]]
    for ks in range(32):
        p = ks & 1
        for i in range(9):
            if i < 8: T, t_ = i & 1, i >> 1; acc = vAcc + 64 * T + 16 * t_; A = fragA(p, t_)
            else: T, acc, A = 2, vAcc + 128, fragA(p, 4)
            cin = "0" if ks == 0 else vr(acc, 16)
            S.mf[9*ks + i] = Item(f"{MF32} {vr(acc,16)}, {ar(A,4)}, {ar(fragB(p,T),4)}, {cin}", 8)
    naddr = 11
    out_after = {}
    for c in range(8):
        gb = 36 * c + 26
        if c <= 1: n = 13 + npf0
        elif c <= 5: n = 13
        elif c == 6: n = 8 if not cfg.no_dma else 0
        else: n = None
        lines = []
        if n is not None: lines.append(f"s_waitcnt vmcnt({n}) lgkmcnt(0)")
        else: lines.append("s_waitcnt lgkmcnt(0)")
        lines.append("s_barrier")
        if c < 7:
            d = QSLOT[(c + 1) % 3] - QSLOT[c % 3]
            for k in range(naddr):
                lines.append(f"v_add_u32 v{vQp+k}, {d & 0xffffffff:#x}, v{vQp+k}")
        S.put(gb, Item(lines, 4 * len(lines)))
    for ks in range(1, 32):
        base = 9 * (ks - 1)
        rs = q_reads(ks)
        for k, r in enumerate(rs):
            lo = base + (k * 6) // 13
            if ks % 4 == 0: lo = max(lo, base)
            S.put(lo, Item(r, 4, 0, "ds"))
    for c in range(8):
        gb = 36 * c + 27
        if c + 3 < 8: items = q_dma_items(c + 3)
        elif c == 5: items = kv_dma_items(0, "K", 0)
        elif c == 6: items = kv_dma_items(0, "V", 0)
        else: items = []
        g = gb; pend = []
        for item in items:
            if item.kind == "salu": pend += item.lines + ["s_nop 0"]; continue
            mi = Item(pend + item.lines, item.cost + 4 * len(pend)); pend = []
            gg = S.put_win(g, min(g + 1, 287), mi, cap=24); g = gg + 1
            assert gg < 36 * (c + 1) + 26
    z = [f"v_accvgpr_write_b32 a{i}, 0" for i in range(192)]
    g = 0
    for l in z:
        g = S.put_win(g, 287, Item(l, 4), cap=20)
    e(f"s_waitcnt vmcnt({26 + npf0})"); e("s_barrier")
    stamp(o, 1)
    seq = [(-9, r) for r in q_reads(0)] + S.linear(0, 288)
    for g, l in lgkm_waits(seq, slack=3): e(l)
    stamp(o, 2)
    e("s_nop 7")
    def cvt_tile(acc, dst, n):
        for i in range(n):
            e(f"v_mul_f32 v{acc+2*i}, s{sQs}, v{acc+2*i}"); e(f"v_mul_f32 v{acc+2*i+1}, s{sQs}, v{acc+2*i+1}")
        for i in range(n):
            e(f"v_cvt_pk_bf16_f32 v{dst+i}, v{acc+2*i}, v{acc+2*i+1}")
    cvt_tile(vAcc, vQ, 32); cvt_tile(vAcc + 64, vQ + 32, 32)
    cvt_tile(vAcc + 128, vT + 20, 8)
    e(f"v_lshlrev_b32 v{tA}, 4, v0"); e(f"s_lshl_b32 s{sT0}, s{sW}, 11"); e(f"v_add_u32 v{tB}, s{sT0}, v{tA}")
    e(f"ds_write_b128 v{tB}, {vr(vT+20,4)} offset:{LDS_EX - 0}") if LDS_EX < 65536 else None
    e(f"v_add_u32 v{tB}, {LDS_EX}, v{tB}"); e(f"v_add_u32 v{tA}, {LDS_EX}, v{tA}")
    e(f"ds_write_b128 v{tB}, {vr(vT+20,4)}"); e(f"ds_write_b128 v{tB}, {vr(vT+24,4)} offset:1024")
    e(f"v_and_b32 v{m}, 31, v0"); e(f"v_lshrrev_b32 v{hi}, 5, v0")
    k0 = t + 10
    e(f"v_lshrrev_b32 v{tC}, 3, v{m}"); e(f"v_lshlrev_b32 v{tC}, 11, v{tC}")
    e(f"v_and_b32 v{r8}, 7, v{m}"); e(f"v_lshl_add_u32 v{tC}, v{r8}, 7, v{tC}")
    e(f"v_bfe_u32 v{r8}, v{m}, 1, 3"); e(f"v_xor_b32 v{r8}, v{r8}, v{hi}")
    e(f"v_lshl_add_u32 v{k0}, v{r8}, 4, v{tC}"); e(f"v_add_u32 v{k0}, {LDS_KB}, v{k0}")
    for c in range(1, 4): e(f"v_xor_b32 v{k0+c}, {32*c}, v{k0}")
    e(f"v_bfe_u32 v{g1}, v0, 4, 1"); e(f"v_bfe_u32 v{r4}, v0, 2, 2"); e(f"v_and_b32 v{c4}, 3, v0")
    e(f"v_lshlrev_b32 v{tC}, 3, v{c4}"); e(f"v_lshl_add_u32 v{tC}, v{g1}, 5, v{tC}"); e(f"v_lshl_add_u32 v{tC}, v{r4}, 7, v{tC}")
    e(f"v_lshl_add_u32 v{tC}, v{hi}, 9, v{tC}"); e(f"v_lshrrev_b32 v{r8}, 1, v{r4}"); e(f"v_lshl_add_u32 v{tC}, v{r8}, 6, v{tC}")
    for j in range(4):
        e(f"s_add_u32 s{sT0}, s{sW}, {j}"); e(f"s_and_b32 s{sT0}, s{sT0}, 3"); e(f"s_lshl_b32 s{sT0}, s{sT0}, 13")
        for c in range(4): e(f"v_add_u32 v{vKa+4*j+c}, s{sT0}, v{k0+c}")
        e(f"v_add_u32 v{vVa+2*j}, s{sT0}, v{tC}"); e(f"v_xor_b32 v{vVa+2*j+1}, 64, v{vVa+2*j}")
    e("s_waitcnt vmcnt(0) lgkmcnt(0)"); e("s_barrier")
    for c in range(8): e(f"ds_read_b128 {vr(vQ+64+4*c,4)}, v{tA} offset:{1024*c}")
    for c in range(8):
        e(f"ds_read_b128 {ar(aK+4*c,4)}, v{k0+(c&3)} offset:{LDS_K[0]-LDS_KB+(c>>2)*1024}")
    e("s_waitcnt lgkmcnt(0)")
    if cfg.dump_q:
        e(f"v_lshlrev_b32 v{tB}, 4, v0"); e(f"s_lshl_b32 s{sT0}, s{sH}, 2"); e(f"s_add_u32 s{sT0}, s{sT0}, s{sW}"); e(f"s_mul_i32 s{sT0}, s{sT0}, {18*1024}")
        for i in range(18):
            e(f"buffer_store_dwordx4 {vr(vQ+4*i + (24 if False else 0),4)}, v{tB}, s[{sO}:{sO+3}], s{sT0} offen"); e(f"s_add_u32 s{sT0}, s{sT0}, 1024")
        e("s_waitcnt vmcnt(0)"); e("s_endpgm")
    for T in range(3):
        nb = vNM + 16 * T
        for c in range(8):
            e(f"{MF32} {vr(nb,16)}, {ar(aK+4*c,4)}, {vr(vQ+32*T+4*c,4)}, {'0' if c == 0 else vr(nb,16)}")
    def negm_finish(T, src):
        nb = vNM + 16 * T
        e(f"v_mov_b32 v{tB}, v{src}"); e("s_nop 1"); e(f"v_permlane32_swap_b32 v{src}, v{tB}")
        e(f"v_max_f32 v{tB}, v{src}, v{tB}")
        for i in range(16): e(f"v_sub_f32 v{nb+i}, 0, v{tB}")
    for T in range(3):
        nb = vNM + 16 * T
        if T == 0: e("s_nop 3")
        if T == 2: e("s_nop 0")
        e(f"v_max3_f32 v{tC}, v{nb}, v{nb+1}, v{nb+2}")
        for i in range(3, 15, 2): e(f"v_max3_f32 v{tC}, v{tC}, v{nb+i}, v{nb+i+1}")
        e(f"v_max_f32 v{tC}, v{tC}, v{nb+15}")
        negm_finish(T, tC)
    e("L1_att:")
    for T in range(3): e(f"v_mov_b32 v{vL+T}, 0")
    e(f"s_mov_b32 s{sCnt}, 4")
    stamp(o, 3)
    A, bar = gen_attn_sched()
    N = 288; CUT = 272
    pro = A.linear(bar[1], N, keep=lambda it, g: it == 1)
    pro = lgkm_waits(pro, slack=3)
    pl, _ = check_hazards([l for g, l in pro], "pro", fix=True)
    o += pl
    e("s_waitcnt lgkmcnt(0)")
    body = A.linear(0, N)
    two = lgkm_waits([(g, l) for g, l in body] + [(10**6, "MARK:")] + [(g + N, l) for g, l in body], slack=3)
    k = [i for i, (g, l) in enumerate(two) if l == "MARK:"][0]
    body2 = [(g - N, l) for g, l in two[k+1:]]
    e(".p2align 6") if False else None
    e("L1_loop:")
    first = True
    bl = []
    for g, l in body2:
        if g >= CUT and first:
            bl += [f"s_sub_u32 s{sCnt}, s{sCnt}, 1", f"s_cmp_eq_u32 s{sCnt}, 0", "s_cbranch_scc1 L1_tail"]; first = False
        bl.append(l)
    bl.append("s_branch L1_loop")
    _, bad = check_hazards(pl[-30:] + bl[:-1] + bl[:-1], "loop")
    assert bad == 0 or cfg.no_sm
    o += bl
    e("L1_tail:")
    e("s_waitcnt lgkmcnt(0)")
    tail = [l for g, l in A.linear(CUT, N, keep=lambda it, g: it == 0)]
    pre = [l for g, l in body2 if CUT - 8 <= g < CUT]
    tl, _ = check_hazards(pre + ["X:"] + tail, "tail", fix=True)
    o += tl[tl.index("X:") + 1:]
    stamp(o, 4)
    cs = [A.cost[g] for g in range(N)]
    sys.stderr.write(f"attn gap cost: max {max(cs)} avg {sum(cs)/N:.1f} over24 {sum(c > 24 for c in cs)}\n")
    ep = []
    E = ep.append
    for T in range(3):
        E(f"v_mov_b32 v{vT+T}, v{vL+T}")
    E("s_nop 1")
    for T in range(3): E(f"v_permlane32_swap_b32 v{vL+T}, v{vT+T}")
    for T in range(3): E(f"v_add_f32 v{vL+T}, v{vL+T}, v{vT+T}")
    E(f"s_mov_b32 s{sT0}, {LTHRESH:#x}")
    E(f"v_max3_f32 v{vT}, v{vL}, v{vL+1}, v{vL+2}")
    E(f"v_add_f32 v{vT+1}, v{vL}, v{vL+1}"); E(f"v_add_f32 v{vT+1}, v{vT+1}, v{vL+2}")
    E(f"v_cmp_nge_f32 vcc, s{sT0}, v{vT+1}")
    E("s_nop 4")
    E(f"s_cmp_lg_u64 vcc, 0"); E(f"s_cselect_b32 s{sT1}, 1, 0")
    E("s_waitcnt vmcnt(0)"); E("s_barrier")
    tA_, tB_ = vT + 3, vT + 4
    E(f"v_lshlrev_b32 v{tA_}, 4, v0"); E(f"s_lshl_b32 s{sT0}, s{sW}, 14"); E(f"v_add_u32 v{tB_}, s{sT0}, v{tA_}")
    for i in range(16): E(f"ds_write_b128 v{tB_}, {ar(aO+128+4*i,4)} offset:{1024*i}")
    E(f"v_lshlrev_b32 v{vT+5}, 2, v0"); E(f"s_lshl_b32 s{sT0}, s{sW}, 8"); E(f"s_add_u32 s{sT0}, s{sT0}, {LDS_EX}")
    E(f"v_add_u32 v{vT+6}, s{sT0}, v{vT+5}"); E(f"v_mov_b32 v{vT+7}, s{sT1}")
    E(f"ds_write_b32 v{vT+6}, v{vL+2}"); E(f"ds_write_b32 v{vT+6}, v{vT+7} offset:1024")
    E(f"v_add_u32 v{vT+5}, {LDS_EX}, v{vT+5}")
    E(f"v_rcp_f32 v{vL}, v{vL}"); E(f"v_rcp_f32 v{vL+1}, v{vL+1}")
    va = vT + 8
    E(f"v_bfe_u32 v{va}, v0, 4, 1"); E(f"v_lshlrev_b32 v{va}, 17, v{va}")
    E(f"v_lshrrev_b32 v{va+1}, 5, v0"); E(f"v_lshl_add_u32 v{va}, v{va+1}, 8, v{va}")
    E(f"v_and_b32 v{va+1}, 15, v0"); E(f"v_lshl_add_u32 v{va}, v{va+1}, 4, v{va}")
    E("s_waitcnt lgkmcnt(0)"); E("s_barrier")
    for wv in range(4):
        E(f"ds_read_b32 v{vT+10+wv}, v{vT+5} offset:{256*wv}"); E(f"ds_read_b32 v{vT+14+wv}, v{vT+5} offset:{1024+256*wv}")
    E(f"s_lshl_b32 s{sT0}, s{sW}, 12"); E(f"v_add_u32 v{tA_}, s{sT0}, v{tA_}")
    sp = vNM
    for wv in range(4):
        for i in range(4): E(f"ds_read_b128 {vr(sp+16*wv+4*i,4)}, v{tA_} offset:{16384*wv+1024*i}")
    E("s_waitcnt lgkmcnt(15)")
    E(f"v_or_b32 v{vT+14}, v{vT+14}, v{vT+15}"); E(f"v_or3_b32 v{vT+14}, v{vT+14}, v{vT+16}, v{vT+17}")
    E("s_nop 0"); E(f"v_readfirstlane_b32 s{sT1}, v{vT+14}")
    E(f"v_add_f32 v{vT+10}, v{vT+10}, v{vT+11}"); E(f"v_add_f32 v{vT+12}, v{vT+12}, v{vT+13}"); E(f"v_add_f32 v{vT+10}, v{vT+10}, v{vT+12}")
    E(f"v_rcp_f32 v{vL+2}, v{vT+10}")
    E(f"s_andn2_b32 s{sT1}, s{sT1}, s{sRedo}"); E(f"s_cmp_lg_u32 s{sT1}, 0"); E("s_cbranch_scc1 L1_fallback")
    E(f"s_lshl_b32 s{sT0}, s{sW}, 19"); E(f"s_lshl_b32 s{sT1}, s{sH}, 12"); E(f"s_add_u32 s{sT0}, s{sT0}, s{sT1}")
    tmp = vQ
    k = 0
    for T in range(2):
        for t_ in range(4):
            for cp in range(2):
                b0 = tmp + 12 * (k % 6); k += 1
                for i in range(8): E(f"v_accvgpr_read_b32 v{b0+i}, a{aO+64*T+16*t_+8*cp+i}")
                for i in range(8): E(f"v_mul_f32 v{b0+i}, v{vL+T}, v{b0+i}")
                for i in range(4): E(f"v_cvt_pk_bf16_f32 v{b0+8+i}, v{b0+2*i}, v{b0+2*i+1}")
                E(f"buffer_store_dwordx4 {vr(b0+8,4)}, v{va}, s[{sO}:{sO+3}], s{sT0} offen offset:{1024*t_+512*cp}{NT(cfg.o_nt)}")
        if T == 0: E(f"s_add_u32 s{sT0}, s{sT0}, 262144")
    E("s_waitcnt lgkmcnt(0)")
    for i in range(16):
        E(f"v_add_f32 v{sp+i}, v{sp+i}, v{sp+16+i}"); E(f"v_add_f32 v{sp+32+i}, v{sp+32+i}, v{sp+48+i}")
    for i in range(16): E(f"v_add_f32 v{sp+i}, v{sp+i}, v{sp+32+i}")
    for i in range(16): E(f"v_mul_f32 v{sp+i}, v{vL+2}, v{sp+i}")
    for i in range(8): E(f"v_cvt_pk_bf16_f32 v{sp+16+i}, v{sp+2*i}, v{sp+2*i+1}")
    E(f"s_lshl_b32 s{sT0}, s{sW}, 10"); E(f"s_add_u32 s{sT0}, s{sT0}, s{sT1}"); E(f"s_add_u32 s{sT0}, s{sT0}, {16*131072}")
    E(f"buffer_store_dwordx4 {vr(sp+16,4)}, v{va}, s[{sO}:{sO+3}], s{sT0} offen")
    E(f"buffer_store_dwordx4 {vr(sp+20,4)}, v{va}, s[{sO}:{sO+3}], s{sT0} offen offset:512")
    if cfg.stamp:
        E("s_waitcnt vmcnt(0)")
        E(f"s_memtime s[{sST+10}:{sST+11}]"); E(f"s_memrealtime s[{sST+12}:{sST+13}]"); E("s_waitcnt lgkmcnt(0)")
        E(f"s_add_u32 s{sD}, s{sPTR+14}, 0x4000000"); E(f"s_addc_u32 s{sD+1}, s{sPTR+15}, 0")
        E(f"s_mov_b32 s{sD+2}, 0x100000"); E(f"s_mov_b32 s{sD+3}, 0x20000")
        E(f"s_lshl_b32 s{sT0}, s2, 2"); E(f"s_add_u32 s{sT0}, s{sT0}, s{sW}"); E(f"s_lshl_b32 s{sT0}, s{sT0}, 6")
        for i in range(16): E(f"v_mov_b32 v{vT+i}, s{sST+i}")
        E(f"v_mov_b32 v{vT+16}, 0")
        for i in range(4): E(f"buffer_store_dwordx4 {vr(vT+4*i,4)}, v{vT+16}, s[{sD}:{sD+3}], s{sT0} offen offset:{16*i}")
        if cfg.dbg:
            E(f"s_cmp_lg_u32 s{sW}, 0"); E("s_cbranch_scc1 L1_end")
            E(f"s_add_u32 s{sD}, s{sPTR+12}, {cfg.dbgoff}"); E(f"s_addc_u32 s{sD+1}, s{sPTR+13}, 0"); E(f"s_mov_b32 s{sD+2}, 256")
            E("s_mov_b64 exec, 1")
            for i in range(5):
                E(f"s_sub_u32 s{sT0}, s{sST+2*i+2}, s{sST+2*i}"); E(f"v_mov_b32 v{vT}, s{sT0}")
                E(f"buffer_atomic_add v{vT}, v{vT+16}, s[{sD}:{sD+3}], 0 offen offset:{4*i}")
            E(f"s_sub_u32 s{sT0}, s{sST+12}, s{sST+14}"); E(f"v_mov_b32 v{vT}, s{sT0}")
            E(f"buffer_atomic_add v{vT}, v{vT+16}, s[{sD}:{sD+3}], 0 offen offset:20")
            E(f"s_not_b32 s{sT0}, s{sST+14}"); E(f"v_mov_b32 v{vT}, s{sT0}")
            E(f"buffer_atomic_umax v{vT}, v{vT+16}, s[{sD}:{sD+3}], 0 offen offset:24")
            E(f"v_mov_b32 v{vT}, s{sST+12}")
            E(f"buffer_atomic_umax v{vT}, v{vT+16}, s[{sD}:{sD+3}], 0 offen offset:28")
    E("L1_end:"); E("s_endpgm")
    E("L1_fallback:")
    E("s_waitcnt lgkmcnt(0)")
    E(f"s_mov_b32 s{sRedo}, 1")
    mx = vT + 20
    for T in range(3): E(f"v_mov_b32 v{mx+T}, 0xff800000")
    E(f"s_lshl_b32 s{sOff0}, s{sW}, 13"); E(f"s_add_u32 s{sOff1}, s{sOff0}, 4096")
    E(f"s_mov_b32 s{sCnt}, 8")
    E("L1_fb_loop:")
    E("s_barrier")
    for item in kv_dma_items(0, "K", 0):
        for l in item.lines: E(l)
        if item.kind == "salu": E("s_nop 0")
    E(f"s_add_u32 s{sOff0}, s{sOff0}, 32768"); E(f"s_add_u32 s{sOff1}, s{sOff1}, 32768")
    E("s_waitcnt vmcnt(0)"); E("s_barrier")
    for j in range(4):
        for c in range(8): E(k_read(j, c, 0))
        E("s_waitcnt lgkmcnt(0)")
        for T in range(3):
            nb = vNM + 16 * T
            for c in range(8):
                E(f"{MF32} {vr(nb,16)}, {ar(aK+4*c,4)}, {vr(vQ+32*T+4*c,4)}, {'0' if c == 0 else vr(nb,16)}")
        E("s_nop 15")
        for T in range(3):
            nb = vNM + 16 * T
            for i in range(0, 16, 2): E(f"v_max3_f32 v{mx+T}, v{mx+T}, v{nb+i}, v{nb+i+1}")
        E("s_nop 7")
    E(f"s_sub_u32 s{sCnt}, s{sCnt}, 1"); E(f"s_cmp_lg_u32 s{sCnt}, 0"); E("s_cbranch_scc1 L1_fb_loop")
    E("s_barrier")
    E(f"s_lshl_b32 s{sOff0}, s{sW}, 13"); E(f"s_add_u32 s{sOff1}, s{sOff0}, 4096")
    E(f"s_add_u32 s{sPf}, s{sOff0}, {32768*cfg.pf_dist}")
    for wh in "KV":
        for item in kv_dma_items(0, wh, 0):
            for l in item.lines: E(l)
            if item.kind == "salu": E("s_nop 0")
    for i in range(192): E(f"v_accvgpr_write_b32 a{i}, 0")
    for T in range(3):
        nb = vNM + 16 * T
        E(f"v_mov_b32 v{tB}, v{mx+T}"); E("s_nop 1"); E(f"v_permlane32_swap_b32 v{mx+T}, v{tB}")
        E(f"v_max_f32 v{tB}, v{mx+T}, v{tB}")
        for i in range(16): E(f"v_sub_f32 v{nb+i}, 0, v{tB}")
    E("s_waitcnt vmcnt(0)"); E("s_barrier")
    E("s_branch L1_att")
    el, _ = check_hazards(tl[-16:] + ["Y:"] + ep, "ep", fix=True)
    o += el[el.index("Y:") + 1:]
    return o

def gen_k2():
    o = []; e = o.append
    DEP = 5
    NSL = 8
    sOa, sOb, sWO, sOut, sOutb = 8, 12, 16, 20, 24
    sRg, sCg, sMt, sSo, sSw, sM = 48, 49, 50, 51, 52, 53
    vOo = 1
    vWv = 6
    vRa = 10
    vt = 14
    vAcc2 = 32
    vA = 112
    vBf = 144
    aBf = 0
    NB = DEP + 1
    e("oproj_kernel:")
    e("s_cmp_ge_u32 s2, 256"); e("s_cbranch_scc1 L2_end")
    if cfg.stamp:
        e(f"s_memtime s[{sST}:{sST+1}]"); e(f"s_memrealtime s[{sST+14}:{sST+15}]")
    e(f"s_load_dwordx8 s[{sPTR+8}:{sPTR+15}], s[0:1], 32")
    e("v_lshrrev_b32 v1, 6, v0"); e("s_nop 0"); e(f"v_readfirstlane_b32 s{sW}, v1")
    e("v_and_b32 v0, 63, v0")
    e(f"s_and_b32 s{sB}, s2, 7"); e(f"s_lshr_b32 s{sT0}, s2, 3")
    e(f"s_and_b32 s{sRg}, s{sT0}, 3"); e(f"s_lshr_b32 s{sCg}, s{sT0}, 2")
    e(f"s_lshr_b32 s{sMt}, s{sRg}, 1"); e(f"s_mul_i32 s{sMt}, s{sMt}, 9"); e(f"s_and_b32 s{sT1}, s{sRg}, 1")
    e(f"s_mul_i32 s{sT0}, s{sT1}, 5"); e(f"s_add_u32 s{sMt}, s{sMt}, s{sT0}")
    e(f"v_lshlrev_b32 v{vOo}, 4, v0")
    for i in range(1, 5): e(f"v_add_u32 v{vOo+i}, {131072*i}, v{vOo}")
    r8, p8, tA, tB = vt, vt+1, vt+2, vt+3
    e(f"v_lshrrev_b32 v{r8}, 3, v0"); e(f"v_and_b32 v{p8}, 7, v0")
    e(f"v_bfe_u32 v{tA}, v{r8}, 1, 2"); e(f"v_lshlrev_b32 v{tA}, 1, v{tA}"); e(f"v_xor_b32 v{tA}, v{tA}, v{p8}")
    e(f"v_lshlrev_b32 v{tB}, 10, v{r8}"); e(f"v_lshl_add_u32 v{vWv}, v{tA}, 4, v{tB}")
    for q in range(1, 4): e(f"v_add_u32 v{vWv+q}, {7168*q}, v{vWv}")
    kg, r4, c4 = vt+4, vt+5, vt+6
    e(f"v_lshrrev_b32 v{kg}, 4, v0"); e(f"v_bfe_u32 v{r4}, v0, 2, 2"); e(f"v_and_b32 v{c4}, 3, v0")
    e(f"v_and_b32 v{tA}, 1, v{kg}"); e(f"v_lshl_add_u32 v{tA}, v{tA}, 2, v{r4}")
    e(f"v_lshrrev_b32 v{tB}, 1, v{tA}"); e(f"v_lshlrev_b32 v{tB}, 5, v{tB}")
    e(f"v_lshl_add_u32 v{tB}, v{tA}, 7, v{tB}"); e(f"v_lshrrev_b32 v{tA}, 1, v{kg}"); e(f"v_lshl_add_u32 v{tB}, v{tA}, 11, v{tB}")
    e(f"v_lshl_add_u32 v{tB}, v{c4}, 3, v{tB}")
    e(f"s_lshl_b32 s{sM}, s{sW}, 15"); e(f"v_add_u32 v{vRa}, s{sM}, v{tB}")
    for nt in range(1, 4): e(f"v_xor_b32 v{vRa+nt}, {32*nt}, v{vRa}")
    e("s_waitcnt lgkmcnt(0)")
    e(f"s_mul_i32 s{sT0}, s{sB}, 18"); e(f"s_add_u32 s{sT0}, s{sT0}, s{sMt}"); e(f"s_lshl_b32 s{sT0}, s{sT0}, 17")
    e(f"s_add_u32 s{sOa}, s{sPTR+14}, s{sT0}"); e(f"s_addc_u32 s{sOa+1}, s{sPTR+15}, 0")
    e(f"s_mov_b32 s{sOa+2}, {5*131072}"); e(f"s_mov_b32 s{sOa+3}, 0x20000")
    e(f"s_lshl_b32 s{sT0}, s{sT1}, 17"); e(f"s_sub_u32 s{sOa+2}, {5*131072}, s{sT0}")
    e(f"s_lshl_b32 s{sT0}, s{sCg}, 7")
    e(f"s_add_u32 s{sWO}, s{sPTR+8}, s{sT0}"); e(f"s_addc_u32 s{sWO+1}, s{sPTR+9}, 0")
    e(f"s_sub_u32 s{sWO+2}, 4194304, s{sT0}"); e(f"s_mov_b32 s{sWO+3}, 0x20000")
    e(f"s_lshl_b32 s{sSo}, s{sW}, 15")
    e(f"s_lshl_b32 s{sSw}, s{sW}, 20")
    def loads(k):
        L = []
        L.append(f"s_add_u32 m0, s{sM}, {4096*(k % NSL)}")
        L.append(f"s_add_u32 s{sT0}, s{sSw}, {32768*k}")
        for q in range(4):
            L.append(f"buffer_load_dwordx4 v{vWv+q}, s[{sWO}:{sWO+3}], s{sT0} offen offset:{1024*q}{NT(cfg.k2w_nt)} lds")
        if k % 4 == 0 and k: L.append(f"s_add_u32 s{sSo}, s{sSo}, 4096")
        for i in range(5):
            L.append(f"buffer_load_dwordx4 {ar(aBf+20*(k % NB)+4*i,4)}, v{vOo+i}, s[{sOa}:{sOa+3}], s{sSo} offen offset:{1024*(k % 4)}{NT(cfg.k2o_nt)}")
        return L
    def areads(k):
        return [f"ds_read_b64_tr_b16 {vr(vA+16*(k&1)+4*nt+2*jj,2)}, v{vRa+nt} offset:{4096*(k % NSL)+1024*jj}" for nt in range(4) for jj in range(2)]
    for k in range(DEP):
        for l in loads(k): e(l)
    e(f"s_mul_i32 s{sT0}, s{sB}, 18"); e(f"s_add_u32 s{sT0}, s{sT0}, s{sMt}"); e(f"s_lshl_b32 s{sT0}, s{sT0}, 14")
    e(f"s_add_u32 s{sOut}, s{sPTR+10}, s{sT0}"); e(f"s_addc_u32 s{sOut+1}, s{sPTR+11}, 0")
    e(f"s_lshl_b32 s{sT0}, s{sT1}, 14"); e(f"s_sub_u32 s{sOut+2}, {5*16384}, s{sT0}"); e(f"s_mov_b32 s{sOut+3}, 0x20000")
    e(f"s_waitcnt vmcnt({9*(DEP-1)})")
    for l in areads(0): e(l)
    for k in range(32):
        fill = []
        if k + DEP < 32: fill += loads(k + DEP)
        pre = []
        if k + 1 < 32:
            n = 9 * max(0, min(k + DEP - 1, 31) - (k + 1))
            pre = [f"s_waitcnt vmcnt({n})"] + areads(k + 1)
        e(f"s_waitcnt lgkmcnt(0)")
        seq = pre + fill
        mi = 0
        for i in range(5):
            for nt in range(4):
                acc = vAcc2 + 4 * (4 * i + nt)
                e(f"{MF16} {vr(acc,4)}, {vr(vA+16*(k&1)+4*nt,4)}, {ar(aBf+20*(k % NB)+4*i,4)}, {'0' if k == 0 else vr(acc,4)}")
                mi += 1
                take = -(-len(seq) // (21 - mi)) if mi < 20 else len(seq)
                for l in seq[:take]: e(l)
                seq = seq[take:]
    e("s_nop 7"); e("s_barrier")
    e(f"v_lshlrev_b32 v{tA}, 4, v0"); e(f"s_mul_i32 s{sT0}, s{sW}, 20480"); e(f"v_add_u32 v{tB}, s{sT0}, v{tA}")
    for i in range(20): e(f"ds_write_b128 v{tB}, {vr(vAcc2+4*i,4)} offset:{1024*i}")
    e(f"s_lshl_b32 s{sT0}, s{sW}, 10"); e(f"v_add_u32 v{tA}, s{sT0}, v{tA}")
    e(f"v_add_u32 v{tB}, 40960, v{tA}")
    va = vt + 4
    e(f"v_and_b32 v{va}, 15, v0"); e(f"v_lshlrev_b32 v{va}, 10, v{va}"); e(f"v_lshrrev_b32 v{va+1}, 4, v0")
    e(f"v_lshl_add_u32 v{va}, v{va+1}, 3, v{va}")
    e(f"s_lshl_b32 s{sT0}, s{sCg}, 7"); e(f"s_lshl_b32 s{sT1}, s{sW}, 5"); e(f"s_add_u32 s{sT0}, s{sT0}, s{sT1}")
    e("s_waitcnt lgkmcnt(0)"); e("s_barrier")
    for i in range(5):
        for wv in range(4):
            e(f"ds_read_b128 {vr(vAcc2+16*i+4*wv,4)}, v{tA if wv < 2 else tB} offset:{20480*(wv&1)+4096*i}")
    for i in range(5):
        e(f"s_waitcnt lgkmcnt({min(15, 4*(4-i))})")
        b0 = vAcc2 + 16 * i
        for r in range(4): e(f"v_add_f32 v{b0+r}, v{b0+r}, v{b0+4+r}"); e(f"v_add_f32 v{b0+8+r}, v{b0+8+r}, v{b0+12+r}")
        for r in range(4): e(f"v_add_f32 v{b0+r}, v{b0+r}, v{b0+8+r}")
        e(f"v_cvt_pk_bf16_f32 v{b0+4}, v{b0}, v{b0+1}"); e(f"v_cvt_pk_bf16_f32 v{b0+5}, v{b0+2}, v{b0+3}")
        e(f"buffer_store_dwordx2 {vr(b0+4,2)}, v{va}, s[{sOut}:{sOut+3}], s{sT0} offen")
        e(f"s_add_u32 s{sT0}, s{sT0}, 16384")
    if cfg.stamp:
        e("s_waitcnt vmcnt(0)")
        e(f"s_memtime s[{sST+10}:{sST+11}]"); e(f"s_memrealtime s[{sST+12}:{sST+13}]"); e("s_waitcnt lgkmcnt(0)")
        e(f"s_add_u32 s{sD}, s{sPTR+14}, 0x4100000"); e(f"s_addc_u32 s{sD+1}, s{sPTR+15}, 0")
        e(f"s_mov_b32 s{sD+2}, 0x100000"); e(f"s_mov_b32 s{sD+3}, 0x20000")
        e(f"s_lshl_b32 s{sT0}, s2, 2"); e(f"s_add_u32 s{sT0}, s{sT0}, s{sW}"); e(f"s_lshl_b32 s{sT0}, s{sT0}, 6")
        for i in range(16): e(f"v_mov_b32 v{vt+i}, s{sST+i}")
        e(f"v_mov_b32 v{vt+16}, 0")
        for i in range(4): e(f"buffer_store_dwordx4 {vr(vt+4*i,4)}, v{vt+16}, s[{sD}:{sD+3}], s{sT0} offen offset:{16*i}")
        if cfg.dbg:
            e(f"s_cmp_lg_u32 s{sW}, 0"); e("s_cbranch_scc1 L2_end")
            e(f"s_sub_u32 s{sD}, s{sPTR+12}, {512-cfg.dbgoff}"); e(f"s_subb_u32 s{sD+1}, s{sPTR+13}, 0"); e(f"s_mov_b32 s{sD+2}, 256")
            e("s_mov_b64 exec, 1")
            e(f"s_sub_u32 s{sT0}, s{sST+10}, s{sST}"); e(f"v_mov_b32 v{vt}, s{sT0}")
            e(f"buffer_atomic_add v{vt}, v{vt+16}, s[{sD}:{sD+3}], 0 offen offset:32")
            e(f"s_not_b32 s{sT0}, s{sST+14}"); e(f"v_mov_b32 v{vt}, s{sT0}")
            e(f"buffer_atomic_umax v{vt}, v{vt+16}, s[{sD}:{sD+3}], 0 offen offset:36")
            e(f"v_mov_b32 v{vt}, s{sST+12}")
            e(f"buffer_atomic_umax v{vt}, v{vt+16}, s[{sD}:{sD+3}], 0 offen offset:40")
            e(f"s_sub_u32 s{sT0}, s{sST+12}, s{sST+14}"); e(f"v_mov_b32 v{vt}, s{sT0}")
            e(f"buffer_atomic_add v{vt}, v{vt+16}, s[{sD}:{sD+3}], 0 offen offset:44")
    e("L2_end:"); e("s_endpgm")
    o, _ = check_hazards(o, "k2", fix=True)
    return o, 144, 144 + 20 * NB

def kd(name, nv, acc):
    return f""".amdhsa_kernel {name}
  .amdhsa_next_free_vgpr {nv}
  .amdhsa_next_free_sgpr 96
  .amdhsa_accum_offset {acc}
  .amdhsa_group_segment_fixed_size 0
  .amdhsa_kernarg_size 64
  .amdhsa_user_sgpr_count 2
  .amdhsa_user_sgpr_kernarg_segment_ptr 1
  .amdhsa_system_sgpr_workgroup_id_x 1
.end_amdhsa_kernel
"""

def main():
    k1 = gen_k1()
    k1, _ = check_hazards(k1, "k1", fix=True)
    k2, acc2, nv2 = gen_k2()
    hdr = open("standalone__gqa_block_cached__near_ridge.s.ref").read().split("\n")
    hdr = [l for l in hdr[:9]]
    out = hdr + [f"; @launch kernel=attn_kernel grid=(256,1,1) block=(256,1,1) lds={LDS_TOTAL}",
                 "; @launch kernel=oproj_kernel grid=(256,1,1) block=(256,1,1) lds=131072",
                 '.amdgcn_target "amdgcn-amd-amdhsa--gfx950"', ".text"]
    def fmt(l): return l if l.endswith(":") else "    " + l
    out += [".globl attn_kernel", ".p2align 8", ".type attn_kernel,@function"] + [fmt(l) for l in k1 if l]
    out += [".globl oproj_kernel", ".p2align 8", ".type oproj_kernel,@function"] + [fmt(l) for l in k2 if l]
    out += ['.section .rodata,"a"', ".p2align 6", kd("attn_kernel", 512, 256), ".p2align 6", kd("oproj_kernel", nv2, acc2)]
    open(sys.argv[1], "w").write("\n".join(out))
main()
```

```python
import sys, math, struct
from asmlib import *

class Cfg:
    stamp = False; dbg = False; dbgoff = 512
    map_bh = "h"
    kv_nt = True; q_nt = False; o_nt = False; k2o_nt = False; k2w_nt = False
    no_dma = False; dump_q = False
    e0 = 9
    qpf = 0
    k2pf = 0
    k2dep = 5
    wopf = 0
    dma_step = 4
    qstamp = 0
    qstep = 5
    qinit = 2
    qhalf = 0
cfg = Cfg()
for a in sys.argv[2:]:
    k, v = a.split("=")
    old = getattr(cfg, k)
    setattr(cfg, k, (v == "1") if isinstance(old, bool) else type(old)(v))

def NT(f): return " nt" if f else ""
def f2u(x): return struct.unpack("<I", struct.pack("<f", x))[0]
QSCALE = f2u(math.log2(math.e) / math.sqrt(128.0))
LTHRESH = f2u(2.0 ** 40)
MF = "v_mfma_f32_16x16x32_bf16"
CAP = 8

class Item:
    def __init__(self, text, kind, it=0):
        self.text = text; self.kind = kind; self.it = it
        self.cost = {"s": 0, "ds": 4, "v": 4, "t": 8, "dma": 8, "mf": 0}[kind]

class Sched:
    def __init__(self, n, periodic=False):
        self.n = n; self.periodic = periodic
        self.mf = [None] * n; self.gap = [[] for _ in range(n)]; self.cost = [0] * n
    def norm(self, g):
        if self.periodic: return g % self.n
        assert 0 <= g < self.n, g
        return g
    def put(self, g, item):
        g = self.norm(g); self.gap[g].append(item); self.cost[g] += item.cost
    def put_win(self, lo, hi, item, pack=False):
        cand = [g for g in range(lo, hi + 1) if self.cost[self.norm(g)] + item.cost <= CAP]
        if cand:
            if pack:
                part = [g for g in cand if self.cost[self.norm(g)] > 0]
                best = part[0] if part and part[0] <= cand[0] + 3 else cand[0]
            else: best = cand[0]
        else:
            best = min(range(lo, hi + 1), key=lambda g: self.cost[self.norm(g)])
        self.put(best, item); return best
    def linear(self, lo, hi, keep=lambda it: True):
        out = []
        order = {"s": 0, "dma": 1, "ds": 1, "v": 2, "t": 2}
        for g in range(lo, hi):
            if self.mf[g] is not None and keep(self.mf[g].it): out.append((g, "mf", self.mf[g].text))
            for item in sorted(self.gap[g], key=lambda x: order[x.kind]):
                if keep(item.it): out.append((g, item.kind, item.text))
        return out

def lgkm_waits(seq, slack=6):
    out = []; q = []
    mfi = [i for i, x in enumerate(seq) if x[1] == "mf"]
    nxt = {}
    for a, b in zip(mfi, mfi[1:]): nxt[a] = b
    def need(use, g):
        nonlocal q
        idx = -1
        for k, (gg, regs) in enumerate(q):
            if regs & use: idx = k
        if idx >= 0:
            while idx + 1 < len(q) and q[idx + 1][0] <= g - slack: idx += 1
            n = min(len(q) - 1 - idx, 15)
            out.append((g, "s", f"s_waitcnt lgkmcnt({n})"))
            q = q[len(q) - n:] if n else []
    for i, (g, k, t) in enumerate(seq):
        ins = Ins(t)
        if ins.op == "s_waitcnt" and "lgkmcnt(0)" in t: q = []
        if ins.kind != "label": need(ins.r | ins.w, g)
        if ins.kind == "ds": q.append((g, set(ins.w)))
        out.append((g, k, t))
        if k == "mf" and i in nxt:
            n = Ins(seq[nxt[i]][2]); need(n.r | n.w, g)
    return out

sK, sV, sX, sWQ, sO, sD = 8, 12, 16, 20, 24, 28
sPTR = 32
sW, sB, sH, sT0, sT1 = 3, 4, 5, 6, 7
sOff0, sOff1 = 48, 49
sM0 = 50
sCnt, sRedo = 58, 59
sXo, sXm, sWo_, sWm = 60, 61, 62, 63
sT2, sQs, sT3 = 64, 65, 66
sST = 70
vKv = 1; vVv = 5; vPfd = 7
vQ = 8; vNM = 104; vL = 128; vS = 152; vP = 184; vKa = 200; vVa = 208; vOne = 224; vT = 228
vAcc = 104
aO = 0; aK = 192; aV = 224
LDS_K = (131072, 98304); LDS_V = (0, 32768); LDS_KB = 98304; LDS_EX = 65536
QSLOT = (0, 53248, 106496); LDS_TOTAL = 163840
UNIT_TILE = [0, 1, 2, 0, 1, 0, 1, 0, 1]
UNIT_KT =   [0, 0, 0, 1, 1, 2, 2, 3, 3]
PER = 34

def stamp(o, idx):
    if cfg.stamp: o.append(f"s_memtime s[{sST+2*idx}:{sST+2*idx+1}]")

def kv_dma(slot, which):
    r = []
    for grp in range(2):
        m0 = sM0 + (0 if which == "K" else 4) + 2 * slot + grp
        for q in range(4):
            vo = (vKv + q) if which == "K" else (vVv + (q & 1))
            srd = sK if which == "K" else sV
            off = f" offset:{1024*q}" if q else ""
            r.append(([f"s_mov_b32 m0, s{m0}"] if q == 0 else [],
                      f"buffer_load_dwordx4 v{vo}, s[{srd}:{srd+3}], s{sOff0+grp} offen{off}{NT(cfg.kv_nt)} lds"))
    return r

def place_dmas(S, lst, g, step, itf=lambda g: 0, limit=None):
    for pre, d in lst:
        gg = g
        while S.cost[S.norm(gg)] > 0 or any(x.kind == "bar" for x in []): gg += 1
        if limit is not None: assert gg < limit, (gg, limit)
        for p in pre: S.put(gg - 1, Item(p, "s", itf(gg - 1)))
        if not cfg.no_dma: S.put(gg, Item(d, "dma", itf(gg)))
        g = gg + step
    return g

def k_read(j, k16, c, slot, base=None):
    imm = (LDS_K[slot] - LDS_KB) + k16 * 4096 + (c >> 1) * 1024
    va = (vKa + 2 * j if base is None else base) + (c & 1)
    return f"ds_read_b128 {ar(aK+16*k16+4*c,4)}, v{va} offset:{imm}"
def v_read(j, t, jj, slot):
    imm = LDS_V[slot] + jj * 4096 + (t >> 2) * 1024
    return f"ds_read_b64_tr_b16 {ar(aV+4*t+2*jj,2)}, v{vVa+4*j+(t&3)} offset:{imm}"

def gen_attn_sched():
    NU = 18; N = NU * PER
    S = Sched(N, periodic=True)
    tile = lambda n: UNIT_TILE[n % 9]
    kt = lambda n: UNIT_KT[n % 9]
    slot = lambda n: (n // 9) & 1
    last = lambda n: UNIT_KT[n % 9] != UNIT_KT[(n + 1) % 9] or n % 9 == 8
    for n in range(NU):
        u = n + 1; it = 1 if u == NU else 0
        for i in range(16):
            q, k16, c = i >> 3, (i >> 2) & 1, i & 3
            qt = 2 * tile(u) + q; sb = vS + 16 * (u & 1) + 8 * q + 4 * k16
            cin = vr(vNM + 4 * qt, 4) if c == 0 else vr(sb, 4)
            S.mf[PER*n + i] = Item(f"{MF} {vr(sb,4)}, {ar(aK+16*k16+4*c,4)}, {vr(vQ+16*qt+4*c,4)}, {cin}", "mf", it)
        for i in range(18):
            q, t = i // 9, i % 9
            qt = 2 * tile(n) + q; pb = vr(vP + 8 * (n & 1) + 4 * q, 4)
            if t < 8:
                o = ar(aO + 32 * qt + 4 * t, 4)
                S.mf[PER*n + 16 + i] = Item(f"{MF} {o}, {ar(aV+4*t,4)}, {pb}, {o}", "mf")
            else:
                l = vr(vL + 4 * qt, 4)
                S.mf[PER*n + 16 + i] = Item(f"{MF} {l}, {vr(vOne,4)}, {pb}, {l}", "mf")
    for n in range(1, NU + 1):
        sb = vS + 16 * (n & 1); pb = vP + 8 * (n & 1)
        itf = lambda g: 1 if (n == NU and g < N) else 0
        for j in range(16):
            g = PER * (n - 1) + cfg.e0 + 2 * j
            S.put(g, Item(f"v_exp_f32 v{sb+j}, v{sb+j}", "t", itf(g)))
            if j & 1: S.put(g + 1, Item(f"v_cvt_pk_bf16_f32 v{pb+(j>>1)}, v{sb+j-1}, v{sb+j}", "v", itf(g + 1)))
    BG = PER * 7 + 16
    bar = [BG, 9 * PER + BG]
    for b in bar:
        S.put(b, Item("s_waitcnt vmcnt(0) lgkmcnt(0)", "s")); S.put(b, Item("s_barrier", "s"))
    for n in range(NU):
        if last(n):
            nu = n + 1
            for t in range(8):
                for jj in range(2):
                    lo = PER*n + 16 + 9 + t; hi = lo + 15
                    if nu % 9 == 7: hi = min(hi, PER*(n+1) + 10)
                    item = Item(v_read(kt(nu), t, jj, slot(nu)), "ds")
                    g = S.put_win(lo, hi, item, pack=True)
                    if nu >= NU and g < N: item.it = 1
    for n in range(NU):
        u = n + 1
        if last(u):
            nu = u + 1; it = 1 if nu >= NU else 0
            for idx in range(8):
                lo = PER*n + 8 + idx; hi = lo + 16
                if u % 9 == 8: lo = max(lo, PER*n + 16)
                S.put_win(lo, hi, Item(k_read(kt(nu), idx >> 2, idx & 3, slot(nu)), "ds", it), pack=True)
    for bi, b in enumerate(bar):
        itf = lambda g: 1 if (bi == 1 and g < N) else 0
        lst = kv_dma(bi, "K") + kv_dma(bi, "V")
        lst[0] = ([f"s_add_u32 s{sOff0}, s{sOff0}, 32768", f"s_add_u32 s{sOff1}, s{sOff1}, 32768"] + lst[0][0], lst[0][1])
        place_dmas(S, lst, b + 2, cfg.dma_step, itf, limit=b + 9 * PER - 60)
    return S, bar

def gen_k1():
    o = []; e = o.append
    e("attn_kernel:")
    e("s_cmp_ge_u32 s2, 256"); e("s_cbranch_scc1 L1_end")
    e(f"s_load_dwordx16 s[{sPTR}:{sPTR+15}], s[0:1], 0")
    stamp(o, 0)
    if cfg.stamp: e(f"s_memrealtime s[{sST+14}:{sST+15}]")
    e("v_lshrrev_b32 v1, 6, v0"); e("v_and_b32 v0, 63, v0"); e(f"v_readfirstlane_b32 s{sW}, v1")
    if cfg.map_bh == "b":
        e(f"s_and_b32 s{sB}, s2, 7"); e(f"s_lshr_b32 s{sH}, s2, 3")
    else:
        e(f"s_lshr_b32 s{sB}, s2, 5"); e(f"s_and_b32 s{sT0}, s2, 7"); e(f"s_lshl_b32 s{sT0}, s{sT0}, 2")
        e(f"s_bfe_u32 s{sT1}, s2, 0x20003"); e(f"s_add_u32 s{sH}, s{sT0}, s{sT1}")
    t = vT
    r8, p8, tA, tB, tC = t, t+1, t+2, t+3, t+4
    vB = 8
    vAd = 48
    vXv = 68; vWv = 70
    e(f"v_lshrrev_b32 v{r8}, 3, v0"); e(f"v_and_b32 v{p8}, 7, v0")
    e(f"v_lshrrev_b32 v{tA}, 1, v{r8}")
    e(f"v_and_b32 v{tB}, 1, v{tA}"); e(f"v_lshlrev_b32 v{tB}, 1, v{tB}"); e(f"v_xor_b32 v{tB}, v{tB}, v{p8}")
    e(f"v_lshlrev_b32 v{tC}, 13, v{r8}"); e(f"v_lshl_add_u32 v{vWv}, v{tB}, 4, v{tC}"); e(f"v_xor_b32 v{vWv+1}, 64, v{vWv}")
    e(f"s_and_b32 s{sT0}, s{sW}, 1"); e(f"s_lshl_b32 s{sT0}, s{sT0}, 2")
    e(f"v_xor_b32 v{tB}, v{tA}, v{p8}"); e(f"v_xor_b32 v{tC+1}, s{sT0}, v{tB}")
    e(f"v_lshlrev_b32 v{tC}, 10, v{r8}"); e(f"v_lshl_add_u32 v{vXv}, v{tC+1}, 4, v{tC}"); e(f"v_xor_b32 v{vXv+1}, 64, v{vXv}")
    e(f"s_mul_i32 s{sXo}, s{sW}, {9*8192}"); e(f"s_mul_i32 s{sXm}, s{sW}, {9*1024}")
    e(f"s_lshl_b32 s{sWo_}, s{sW}, 17"); e(f"s_lshl_b32 s{sWm}, s{sW}, 12"); e(f"s_add_u32 s{sWm}, s{sWm}, 36864")
    e(f"s_mul_i32 s{sT0}, s{sB}, 294912"); e(f"s_lshl_b32 s{sT1}, s{sH}, 8")
    e(f"s_mov_b32 s{sX+2}, 294912"); e(f"s_mov_b32 s{sX+3}, 0x20000")
    e(f"s_sub_u32 s{sWQ+2}, 4194304, s{sT1}"); e(f"s_mov_b32 s{sWQ+3}, 0x20000")
    e("s_waitcnt lgkmcnt(0)")
    e(f"s_add_u32 s{sX}, s{sPTR+0}, s{sT0}"); e(f"s_addc_u32 s{sX+1}, s{sPTR+1}, 0")
    e(f"s_add_u32 s{sWQ}, s{sPTR+6}, s{sT1}"); e(f"s_addc_u32 s{sWQ+1}, s{sPTR+7}, 0")
    def q_dma(c):
        r = []; sl = QSLOT[c % 3]; k = 0
        for q in range(4):
            go = c * 64 * 8192 + (q >> 1) * 65536 + (q & 1) * 128
            so = sT2 if k & 1 else sT0; k += 1
            r.append(([f"s_add_u32 m0, s{sWm}, {sl + 1024*q}", f"s_add_u32 s{so}, s{sWo_}, {go}"],
                      f"buffer_load_dwordx4 v{vWv+(q>>1)}, s[{sWQ}:{sWQ+3}], s{so} offen{NT(cfg.q_nt)} lds"))
        for i in range(9):
            so = sT2 if k & 1 else sT0; k += 1
            r.append(([f"s_add_u32 m0, s{sXm}, {sl + 1024*i}", f"s_add_u32 s{so}, s{sXo}, {i*8192 + c*128}"],
                      f"buffer_load_dwordx4 v{vXv+(i&1)}, s[{sX}:{sX+3}], s{so} offen{NT(cfg.q_nt)} lds"))
        return r
    for c in range(1 if cfg.qinit == 2 else 3):
        for pre, d in q_dma(c):
            o += pre; e(d)
    npf0 = 0
    if cfg.qpf:
        e(f"v_mul_u32_u24 v{tC}, 13108, v0"); e(f"v_lshrrev_b32 v{tC}, 16, v{tC}")
        e(f"v_mul_u32_u24 v{tC+1}, 5, v{tC}"); e(f"v_sub_u32 v{tC+1}, v0, v{tC+1}")
        e(f"v_lshlrev_b32 v{tC}, 10, v{tC}"); e(f"v_lshl_add_u32 v{tC}, v{tC+1}, 7, v{tC}")
        e(f"s_and_b32 s{sT0}, s{sH}, 3"); e(f"s_mul_i32 s{sT0}, s{sT0}, {72*1024}"); e(f"s_mul_i32 s{sT2}, s{sW}, {18*1024}")
        e(f"s_add_u32 s{sT0}, s{sT0}, s{sT2}"); e(f"s_add_u32 s{sT0}, s{sT0}, 384")
        e(f"buffer_load_dword v{vPfd}, v{tC}, s[{sX}:{sX+3}], s{sT0} offen"); e(f"s_add_u32 s{sT0}, s{sT0}, {9*1024}")
        e(f"buffer_load_dword v{vPfd}, v{tC}, s[{sX}:{sX+3}], s{sT0} offen")
        e(f"v_lshrrev_b32 v{tC}, 1, v0"); e(f"v_lshlrev_b32 v{tC}, 13, v{tC}"); e(f"v_and_b32 v{tC+1}, 1, v0")
        e(f"v_lshl_add_u32 v{tC}, v{tC+1}, 7, v{tC}")
        e(f"s_mul_i32 s{sT0}, s{sB}, 40"); e(f"s_mul_i32 s{sT2}, s{sW}, 10"); e(f"s_add_u32 s{sT0}, s{sT0}, s{sT2}")
        e(f"s_add_u32 s{sT0}, s{sT0}, 192"); e(f"s_lshl_b32 s{sT0}, s{sT0}, 13")
        e("s_mov_b64 exec, 0xfffff")
        e(f"buffer_load_dword v{vPfd}, v{tC}, s[{sWQ}:{sWQ+3}], s{sT0} offen")
        e("s_mov_b64 exec, -1")
        npf0 = 3
    e(f"s_mov_b32 s{sQs}, {QSCALE:#x}"); e(f"s_mov_b32 s{sRedo}, 0")
    e(f"v_lshlrev_b32 v{tC}, 8, v{r8}")
    e(f"v_lshl_add_u32 v{vKv+1}, v{tB}, 4, v{tC}"); e(f"v_xor_b32 v{vKv+3}, 64, v{vKv+1}")
    e(f"v_add_u32 v{vKv}, 1024, v{vKv+1}"); e(f"v_add_u32 v{vKv+2}, 1024, v{vKv+3}")
    e(f"v_add_u32 v{vKv+1}, 128, v{vKv+1}"); e(f"v_add_u32 v{vKv+3}, 128, v{vKv+3}")
    e(f"v_lshlrev_b32 v{tB}, 1, v{tA}"); e(f"v_xor_b32 v{tB}, v{tB}, v{p8}")
    e(f"v_lshl_add_u32 v{vVv+1}, v{tB}, 4, v{tC}")
    e(f"v_add_u32 v{vVv}, 1024, v{vVv+1}"); e(f"v_add_u32 v{vVv+1}, 128, v{vVv+1}")
    e(f"s_lshl_b32 s{sT0}, s{sB}, 5"); e(f"s_add_u32 s{sT0}, s{sT0}, s{sH}"); e(f"s_lshl_b32 s{sT0}, s{sT0}, 18")
    for s, p in ((sK, sPTR + 2), (sV, sPTR + 4)):
        e(f"s_add_u32 s{s}, s{p}, s{sT0}"); e(f"s_addc_u32 s{s+1}, s{p+1}, 0")
        e(f"s_sub_u32 s{s}, s{s}, 1024"); e(f"s_subb_u32 s{s+1}, s{s+1}, 0")
        e(f"s_mov_b32 s{s+2}, {262144+1024}"); e(f"s_mov_b32 s{s+3}, 0x20000")
    e(f"s_mul_i32 s{sT0}, s{sB}, 2359296")
    e(f"s_add_u32 s{sO}, s{sPTR+14}, s{sT0}"); e(f"s_addc_u32 s{sO+1}, s{sPTR+15}, 0")
    e(f"s_mov_b32 s{sO+2}, 2359296"); e(f"s_mov_b32 s{sO+3}, 0x20000")
    e(f"s_lshl_b32 s{sOff0}, s{sW}, 13"); e(f"s_add_u32 s{sOff1}, s{sOff0}, 4096")
    for sl in range(2):
        for g in range(2):
            e(f"s_add_u32 s{sM0+2*sl+g}, s{sOff0}, {LDS_K[sl] + 4096*g}")
            e(f"s_add_u32 s{sM0+4+2*sl+g}, s{sOff0}, {LDS_V[sl] + 4096*g}")
    q16, kg, r4, c4 = t+6, t+7, t+8, t+9
    e(f"v_and_b32 v{q16}, 15, v0"); e(f"v_lshrrev_b32 v{kg}, 4, v0"); e(f"v_bfe_u32 v{r4}, v0, 2, 2"); e(f"v_and_b32 v{c4}, 3, v0")
    e(f"v_lshrrev_b32 v{tA}, 3, v{q16}"); e(f"v_lshlrev_b32 v{tA}, 10, v{tA}")
    e(f"v_and_b32 v{tB}, 7, v{q16}"); e(f"v_lshl_add_u32 v{tA}, v{tB}, 7, v{tA}")
    e(f"v_lshrrev_b32 v{tB}, 1, v{q16}"); e(f"v_xor_b32 v{tB}, v{tB}, v{kg}")
    e(f"v_lshl_add_u32 v{vAd}, v{tB}, 4, v{tA}"); e(f"v_xor_b32 v{vAd+1}, 64, v{vAd}")
    e(f"v_add_u32 v{vAd+2}, s{sOff0}, v{vAd}"); e(f"v_add_u32 v{vAd+3}, s{sOff0}, v{vAd+1}")
    e(f"v_lshrrev_b32 v{tA}, 1, v{r4}"); e(f"v_and_b32 v{tB}, 1, v{kg}"); e(f"v_lshl_add_u32 v{tA}, v{tB}, 1, v{tA}")
    e(f"v_lshlrev_b32 v{tA}, 5, v{tA}"); e(f"v_lshl_add_u32 v{tA}, v{c4}, 3, v{tA}"); e(f"v_lshl_add_u32 v{tA}, v{r4}, 7, v{tA}")
    e(f"v_lshl_add_u32 v{tA}, v{kg}, 11, v{tA}"); e(f"v_add_u32 v{vAd+4}, 36864, v{tA}")
    for k in range(1, 4): e(f"v_xor_b32 v{vAd+4+k}, {32*k}, v{vAd+4}")
    e(f"s_and_b32 s{sT0}, s{sW}, 1"); e(f"s_lshl_b32 s{sT0}, s{sT0}, 6"); e(f"s_lshr_b32 s{sT1}, s{sW}, 1"); e(f"s_lshl_b32 s{sT1}, s{sT1}, 10")
    e(f"v_xor_b32 v{vAd+8}, s{sT0}, v{vAd+4}"); e(f"v_add_u32 v{vAd+8}, s{sT1}, v{vAd+8}"); e(f"v_xor_b32 v{vAd+9}, 32, v{vAd+8}")

    NQ = 16 * 36
    S = Sched(NQ)
    fA = lambda t_: aK + 4 * t_
    fB = lambda p, q: vB + 16 * p + 4 * q
    fBs = lambda q: vB + 32 + 4 * q
    acc = lambda q, t_: vAcc + 32 * q + 4 * t_
    accs = lambda qs, u: vAcc + 128 + 8 * qs + 4 * u
    def rdA(ks, t_, jj):
        ad = vAd + 10 * ((ks >> 1) & 1); s = ks & 1
        if t_ < 8: return f"ds_read_b64_tr_b16 {ar(fA(t_)+2*jj,2)}, v{ad+4+(t_&3)} offset:{s*8192+(t_>>2)*1024+jj*512}"
        return f"ds_read_b64_tr_b16 {ar(fA(t_)+2*jj,2)}, v{ad+t_} offset:{s*8192+jj*512}"
    def rdB(ks, q):
        ad = vAd + 10 * ((ks >> 1) & 1); s = ks & 1
        if q < 4: return f"ds_read_b128 {vr(fB(ks&1,q),4)}, v{ad+2+s} offset:{2048*q}"
        return f"ds_read_b128 {vr(fBs(q-4),4)}, v{ad+s} offset:{32768+2048*(q-4)}"
    for ks in range(16):
        for i in range(36):
            if i < 32: t_, q = i >> 2, i & 3; a_, A, Bf = acc(q, t_), fA(t_), fB(ks & 1, q)
            else: u, qs = (i - 32) >> 1, i & 1; a_, A, Bf = accs(qs, u), fA(8 + u), fBs(qs)
            S.mf[36*ks + i] = Item(f"{MF} {vr(a_,4)}, {ar(A,4)}, {vr(Bf,4)}, {'0' if ks == 0 else vr(a_,4)}", "mf")
    QB = 9
    for c in range(8):
        gb = 72 * c + 36 + QB
        n = 13 + npf0 if (c <= 1 and cfg.qinit == 3) else (13 if c <= 5 else (8 if c == 6 and not cfg.no_dma else None))
        if cfg.qstamp == 1: S.put(gb, Item(f"s_memtime s[{86+2*(c&3)}:{87+2*(c&3)}]", "s")) if (c >> 2) == cfg.qhalf else None
        S.put(gb, Item(f"s_waitcnt vmcnt({n}) lgkmcnt(0)" if n is not None else "s_waitcnt lgkmcnt(0)", "s"))
        S.put(gb, Item("s_barrier", "s"))
        if cfg.qstamp == 2: S.put(gb, Item(f"s_memtime s[{86+2*(c&3)}:{87+2*(c&3)}]", "s")) if (c >> 2) == cfg.qhalf else None
    for ks in range(16):
        base = 36 * ks
        if ks:
            for k_, r in enumerate([rdA(ks, 8, 0), rdA(ks, 8, 1), rdB(ks, 4), rdB(ks, 5), rdA(ks, 9, 0), rdA(ks, 9, 1)]):
                S.put(base + (k_ >> 1), Item(r, "ds"))
        if ks < 15:
            lo0 = base + (QB if ks & 1 else 3)
            for q in range(4): S.put_win(lo0, base + 24, Item(rdB(ks + 1, q), "ds"))
            for t_ in range(8):
                for jj in range(2):
                    lo = max(base + 4 * t_ + 3, lo0)
                    S.put_win(lo, min(lo + 20, NQ - 1), Item(rdA(ks + 1, t_, jj), "ds"))
    for c in range(8):
        gb = 72 * c + 36 + QB
        lst = q_dma(c + 3) if c + 3 < 8 else (kv_dma(0, "K") if c == 5 else (kv_dma(0, "V") if c == 6 else []))
        place_dmas(S, lst, gb + 2, cfg.qstep, limit=gb + 72)
    if cfg.qinit == 2: place_dmas(S, q_dma(2), 1, 2, limit=36 + QB)
    for c in range(7):
        d = QSLOT[(c + 1) % 3] - QSLOT[c % 3]
        for k in range(10):
            S.put_win(72 * c + 4, 72 * c + 40, Item(f"v_add_u32 v{vAd+10*((c+1)&1)+k}, {d & 0xffffffff:#x}, v{vAd+10*(c&1)+k}", "v"))
    g = 0
    for i in range(192): g = S.put_win(g, NQ - 1, Item(f"v_accvgpr_write_b32 a{i}, 0", "v"))
    sys.stderr.write(f"qproj gaps over cap: {sum(c > CAP for c in S.cost)}\n")
    if cfg.qinit == 2:
        for pre, d in q_dma(1):
            o += pre; e(d)
        e(f"s_waitcnt vmcnt({13 + npf0})"); e("s_barrier")
    else:
        e(f"s_waitcnt vmcnt({26 + npf0})"); e("s_barrier")
    stamp(o, 1)
    first = [rdA(0, 0, 0), rdA(0, 0, 1)] + [rdB(0, q) for q in range(4)] + [rdA(0, t_, jj) for t_ in range(1, 10) for jj in range(2)] + [rdB(0, 4), rdB(0, 5)]
    seq = [(-2, "ds", r) for r in first] + S.linear(0, NQ)
    for g, k, l in lgkm_waits(seq): e(l)
    stamp(o, 2)
    def cvt_frag(src, dst):
        L = [f"v_mul_f32 v{src+i}, s{sQs}, v{src+i}" for i in range(8)]
        L += [f"v_cvt_pk_bf16_f32 v{dst+i}, v{src+2*i}, v{src+2*i+1}" for i in range(4)]
        W = [f"v_permlane32_swap_b32 v{dst}, v{dst+2}", f"v_permlane32_swap_b32 v{dst+1}, v{dst+3}",
             f"v_permlane16_swap_b32 v{dst}, v{dst+2}", f"v_permlane16_swap_b32 v{dst+1}, v{dst+3}"]
        return L, W
    frs = [(acc(q, 2 * c), vQ + 16 * q + 4 * c) for c in range(4) for q in range(4)]
    frs = [(accs(0, 0), vT + 20), (accs(1, 0), vT + 24)] + frs
    frs = frs[2:6] + frs[:2] + frs[6:]
    pendW = []
    for idx, (s_, d_) in enumerate(frs):
        L, W = cvt_frag(s_, d_)
        o += L[:4] + pendW[:2] + L[4:8] + pendW[2:] + L[8:]
        pendW = W
    o += pendW
    tA2 = t + 5
    e(f"v_lshlrev_b32 v{tA2}, 4, v0"); e(f"s_lshl_b32 s{sT0}, s{sW}, 10"); e(f"s_add_u32 s{sT0}, s{sT0}, {LDS_EX}")
    e(f"v_add_u32 v{tB}, s{sT0}, v{tA2}"); e(f"v_add_u32 v{tA2}, {LDS_EX}, v{tA2}")
    e(f"ds_write_b128 v{tB}, {vr(vT+20,4)}"); e(f"ds_write_b128 v{tB}, {vr(vT+24,4)} offset:4096")
    k0 = t + 10
    e(f"v_and_b32 v{q16}, 15, v0"); e(f"v_lshrrev_b32 v{kg}, 4, v0"); e(f"v_bfe_u32 v{r4}, v0, 2, 2"); e(f"v_and_b32 v{c4}, 3, v0")
    e(f"v_lshrrev_b32 v{tA}, 3, v{q16}"); e(f"v_lshlrev_b32 v{tA}, 11, v{tA}")
    e(f"v_and_b32 v{tB}, 7, v{q16}"); e(f"v_lshl_add_u32 v{tA}, v{tB}, 7, v{tA}")
    e(f"v_lshrrev_b32 v{tB}, 1, v{q16}"); e(f"v_xor_b32 v{tB}, v{tB}, v{kg}")
    e(f"v_lshl_add_u32 v{k0}, v{tB}, 4, v{tA}"); e(f"v_add_u32 v{k0}, {LDS_KB}, v{k0}"); e(f"v_xor_b32 v{k0+1}, 64, v{k0}")
    e(f"v_and_b32 v{tA}, 1, v{kg}"); e(f"v_lshl_add_u32 v{tA}, v{tA}, 2, v{r4}")
    e(f"v_lshrrev_b32 v{tB}, 1, v{tA}"); e(f"v_lshlrev_b32 v{tB}, 5, v{tB}"); e(f"v_lshl_add_u32 v{tB}, v{tA}, 7, v{tB}")
    e(f"v_lshrrev_b32 v{tA}, 1, v{kg}"); e(f"v_lshl_add_u32 v{tB}, v{tA}, 11, v{tB}"); e(f"v_lshl_add_u32 v{tC}, v{c4}, 3, v{tB}")
    for j in range(4):
        e(f"s_add_u32 s{sT0}, s{sW}, {j}"); e(f"s_and_b32 s{sT0}, s{sT0}, 3"); e(f"s_lshl_b32 s{sT0}, s{sT0}, 13")
        for c in range(2): e(f"v_add_u32 v{vKa+2*j+c}, s{sT0}, v{k0+c}")
        e(f"v_add_u32 v{vVa+4*j}, s{sT0}, v{tC}")
        for k in range(1, 4): e(f"v_xor_b32 v{vVa+4*j+k}, {32*k}, v{vVa+4*j}")
    for i in range(4): e(f"v_mov_b32 v{vOne+i}, 0x3f803f80")
    e("s_waitcnt vmcnt(0) lgkmcnt(0)"); e("s_barrier")
    for c in range(4): e(k_read(0, 0, c, 0, base=k0))
    for i in range(8): e(f"ds_read_b128 {vr(vQ+64+4*i,4)}, v{tA2} offset:{1024*i}")
    if cfg.dump_q:
        e("s_waitcnt lgkmcnt(0)")
        e(f"v_lshlrev_b32 v{tB}, 4, v0"); e(f"s_lshl_b32 s{sT0}, s{sH}, 2"); e(f"s_add_u32 s{sT0}, s{sT0}, s{sW}"); e(f"s_mul_i32 s{sT0}, s{sT0}, {18*1024}")
        for i in range(18):
            e(f"buffer_store_dwordx4 {vr(vQ+4*i,4)}, v{tB}, s[{sO}:{sO+3}], s{sT0} offen"); e(f"s_add_u32 s{sT0}, s{sT0}, 1024")
        e("s_waitcnt vmcnt(0)"); e("s_endpgm")
    def negm(E, srcs):
        tm = [vS + qt for qt in range(6)]
        for qt in range(6): E(f"v_mov_b32 v{tm[qt]}, v{srcs[qt]}")
        for qt in range(6): E(f"v_permlane32_swap_b32 v{srcs[qt]}, v{tm[qt]}")
        for qt in range(6): E(f"v_max_f32 v{srcs[qt]}, v{srcs[qt]}, v{tm[qt]}")
        for qt in range(6): E(f"v_mov_b32 v{tm[qt]}, v{srcs[qt]}")
        for qt in range(6): E(f"v_permlane16_swap_b32 v{srcs[qt]}, v{tm[qt]}")
        for qt in range(6): E(f"v_max_f32 v{srcs[qt]}, v{srcs[qt]}, v{tm[qt]}")
        for qt in range(6):
            for i in range(4): E(f"v_sub_f32 v{vNM+4*qt+i}, 0, v{srcs[qt]}")
    e("s_waitcnt lgkmcnt(8)")
    mx = [vS + 8 + qt for qt in range(6)]
    for qt in range(6):
        if qt == 4: e("s_waitcnt lgkmcnt(0)")
        nb = vNM + 4 * qt
        for c in range(4):
            e(f"{MF} {vr(nb,4)}, {ar(aK+4*c,4)}, {vr(vQ+16*qt+4*c,4)}, {'0' if c == 0 else vr(nb,4)}")
            if qt >= 2 and c == 1:
                p = vNM + 4 * (qt - 2); e(f"v_max3_f32 v{mx[qt-2]}, v{p}, v{p+1}, v{p+2}"); e(f"v_max_f32 v{mx[qt-2]}, v{mx[qt-2]}, v{p+3}")
    for qt in (4, 5):
        p = vNM + 4 * qt; e(f"v_max3_f32 v{mx[qt]}, v{p}, v{p+1}, v{p+2}"); e(f"v_max_f32 v{mx[qt]}, v{mx[qt]}, v{p+3}")
    negm(e, mx)
    e("L1_att:")
    for i in range(24): e(f"v_mov_b32 v{vL+i}, 0")
    e(f"s_mov_b32 s{sCnt}, 4")
    stamp(o, 3)
    A, bar = gen_attn_sched()
    N = A.n; CUT = 17 * PER
    pro = lgkm_waits(A.linear(bar[1], N, keep=lambda it: it == 1), slack=100)
    pl, _ = check_hazards([l for g, k, l in pro], "pro", fix=True)
    o += pl
    e("s_waitcnt lgkmcnt(0)")
    body = A.linear(0, N)
    two = lgkm_waits(body + [(10**6, "x", "MARK:")] + [(g + N, k, l) for g, k, l in body] + [(2 * N, "mf", body[0][2])])
    k_ = [i for i, x in enumerate(two) if x[2] == "MARK:"][0]
    body2 = [(g - N, k, l) for g, k, l in two[k_+1:-1]]
    e("L1_loop:")
    bl = []
    for g, k, l in body2:
        if g == CUT and k == "mf": bl.append("s_cbranch_scc1 L1_tail")
        bl.append(l)
        if g == CUT - 1 and k == "mf": bl += [f"s_sub_u32 s{sCnt}, s{sCnt}, 1", f"s_cmp_eq_u32 s{sCnt}, 0"]
    ci = bl.index(f"s_cmp_eq_u32 s{sCnt}, 0"); bi_ = bl.index("s_cbranch_scc1 L1_tail")
    assert not any("scc" in Ins(x).w for x in bl[ci+1:bi_]), bl[ci:bi_]
    bl.append("s_branch L1_loop")
    _, bad = check_hazards(pl[-30:] + bl[:-1] + bl[:-1], "loop"); assert bad == 0
    o += bl
    e("L1_tail:")
    e("s_waitcnt lgkmcnt(0)")
    tail = [l for g, k, l in A.linear(CUT, N, keep=lambda it: it == 0)]
    pre = [l for g, k, l in body2 if CUT - 12 <= g < CUT]
    tl, _ = check_hazards(pre + ["X:"] + tail, "tail", fix=True)
    o += tl[tl.index("X:") + 1:]
    stamp(o, 4)
    sys.stderr.write(f"attn gaps over cap: {sum(c > CAP for c in A.cost)}; empty {sum(c == 0 for c in A.cost)}; waits {sum('lgkmcnt' in l for g,k,l in body2)}\n")
    ep = []; E = ep.append
    E(f"s_mov_b32 s{sT0}, {LTHRESH:#x}")
    tA_, tB_ = vT + 3, vT + 4
    E(f"v_lshlrev_b32 v{tA_}, 4, v0"); E(f"s_lshl_b32 s{sT2}, s{sW}, 14"); E(f"v_add_u32 v{tB_}, s{sT2}, v{tA_}")
    E(f"v_lshlrev_b32 v{vT+5}, 2, v0"); E(f"s_lshl_b32 s{sT2}, s{sW}, 8"); E(f"s_add_u32 s{sT2}, s{sT2}, {LDS_EX}")
    E(f"v_add_u32 v{vT+6}, s{sT2}, v{vT+5}"); E(f"v_add_u32 v{vT+5}, {LDS_EX}, v{vT+5}")
    E(f"v_add_f32 v{vT}, v{vL}, v{vL+4}"); E(f"v_add_f32 v{vT+1}, v{vL+8}, v{vL+12}"); E(f"v_add_f32 v{vT+2}, v{vL+16}, v{vL+20}")
    E(f"v_add_f32 v{vT}, v{vT}, v{vT+1}"); E(f"v_add_f32 v{vT}, v{vT}, v{vT+2}")
    E(f"v_cmp_nge_f32 vcc, s{sT0}, v{vT}")
    for qt in range(4): E(f"v_rcp_f32 v{vL+4*qt}, v{vL+4*qt}")
    E(f"s_cmp_lg_u64 vcc, 0"); E(f"s_cselect_b32 s{sT1}, 1, 0")
    E("s_waitcnt vmcnt(0)"); E("s_barrier")
    E(f"v_mov_b32 v{vT+7}, s{sT1}")
    for i in range(16): E(f"ds_write_b128 v{tB_}, {ar(aO+128+4*i,4)} offset:{1024*i}")
    E(f"ds_write_b32 v{vT+6}, v{vL+16}"); E(f"ds_write_b32 v{vT+6}, v{vL+20} offset:1024"); E(f"ds_write_b32 v{vT+6}, v{vT+7} offset:2048")
    E("s_waitcnt lgkmcnt(0)"); E("s_barrier")
    fl = vT + 8
    for wv in range(4):
        for k in range(3): E(f"ds_read_b32 v{fl+4*k+wv}, v{vT+5} offset:{1024*k+256*wv}")
    E(f"s_lshl_b32 s{sT0}, s{sW}, 11"); E(f"v_add_u32 v{tB_}, s{sT0}, v{tA_}")
    sp = vS
    sp = vNM - 0
    E("s_waitcnt lgkmcnt(0)")
    E(f"v_or_b32 v{fl+8}, v{fl+8}, v{fl+9}"); E(f"v_or3_b32 v{fl+8}, v{fl+8}, v{fl+10}, v{fl+11}")
    E("s_nop 0"); E(f"v_readfirstlane_b32 s{sT1}, v{fl+8}")
    for k in range(2):
        b_ = fl + 4 * k
        E(f"v_add_f32 v{b_}, v{b_}, v{b_+1}"); E(f"v_add_f32 v{b_+2}, v{b_+2}, v{b_+3}"); E(f"v_add_f32 v{b_}, v{b_}, v{b_+2}")
    E(f"s_andn2_b32 s{sT1}, s{sT1}, s{sRedo}"); E(f"s_cmp_lg_u32 s{sT1}, 0"); E("s_cbranch_scc1 L1_fallback")
    sp = vS
    for wv in range(4):
        for qs in range(2):
            for u in range(2): E(f"ds_read_b128 {vr(sp+16*wv+8*qs+4*u,4)}, v{tB_} offset:{16384*wv+8192*qs+1024*u}")
    E(f"v_rcp_f32 v{fl}, v{fl}"); E(f"v_rcp_f32 v{fl+4}, v{fl+4}")
    E(f"s_lshl_b32 s{sT0}, s{sW}, 19"); E(f"s_lshl_b32 s{sT1}, s{sH}, 12"); E(f"s_add_u32 s{sT0}, s{sT0}, s{sT1}")
    k = 0
    for qt in range(4):
        for kc in range(4):
            b0 = vQ + 12 * (k % 6); k += 1
            for i in range(8): E(f"v_accvgpr_read_b32 v{b0+i}, a{aO+32*qt+8*kc+i}")
            for i in range(8): E(f"v_mul_f32 v{b0+i}, v{vL+4*qt}, v{b0+i}")
            for i in range(4): E(f"v_cvt_pk_bf16_f32 v{b0+8+i}, v{b0+2*i}, v{b0+2*i+1}")
            E(f"buffer_store_dwordx4 {vr(b0+8,4)}, v{tA_}, s[{sO}:{sO+3}], s{sT0} offen offset:{1024*kc}{NT(cfg.o_nt)}")
        if qt < 3: E(f"s_add_u32 s{sT0}, s{sT0}, 131072")
    E("s_waitcnt lgkmcnt(0)")
    for i in range(16):
        E(f"v_add_f32 v{sp+i}, v{sp+i}, v{sp+16+i}"); E(f"v_add_f32 v{sp+32+i}, v{sp+32+i}, v{sp+48+i}")
    for i in range(16): E(f"v_add_f32 v{sp+i}, v{sp+i}, v{sp+32+i}")
    for i in range(16): E(f"v_mul_f32 v{sp+i}, v{fl+4*(i>>3)}, v{sp+i}")
    for i in range(8): E(f"v_cvt_pk_bf16_f32 v{sp+16+i}, v{sp+2*i}, v{sp+2*i+1}")
    E(f"s_lshl_b32 s{sT0}, s{sW}, 10"); E(f"s_add_u32 s{sT0}, s{sT0}, s{sT1}"); E(f"s_add_u32 s{sT0}, s{sT0}, {16*131072}")
    E(f"buffer_store_dwordx4 {vr(sp+16,4)}, v{tA_}, s[{sO}:{sO+3}], s{sT0} offen{NT(cfg.o_nt)}"); E(f"s_add_u32 s{sT0}, s{sT0}, 131072")
    E(f"buffer_store_dwordx4 {vr(sp+20,4)}, v{tA_}, s[{sO}:{sO+3}], s{sT0} offen{NT(cfg.o_nt)}")
    if cfg.wopf:
        E(f"s_mov_b32 s{sD}, s{sPTR+8}"); E(f"s_mov_b32 s{sD+1}, s{sPTR+9}"); E(f"s_mov_b32 s{sD+2}, 4194304"); E(f"s_mov_b32 s{sD+3}, 0x20000")
        E(f"v_lshlrev_b32 v{vT}, 6, v0"); E(f"s_lshl_b32 s{sT0}, s2, 14"); E(f"s_lshl_b32 s{sT1}, s{sW}, 12"); E(f"s_add_u32 s{sT0}, s{sT0}, s{sT1}")
        E(f"buffer_load_dword v{vPfd}, v{vT}, s[{sD}:{sD+3}], s{sT0} offen")
    stamp_out(E, 0x4000000, vT, "L1_end", 1)
    E("L1_end:"); E("s_endpgm")
    E("L1_fallback:")
    E(f"s_mov_b32 s{sRedo}, 1")
    mx = [vT + 20 + qt for qt in range(6)]
    for qt in range(6): E(f"v_mov_b32 v{mx[qt]}, 0xff800000")
    E(f"s_lshl_b32 s{sOff0}, s{sW}, 13"); E(f"s_add_u32 s{sOff1}, s{sOff0}, 4096")
    E(f"s_mov_b32 s{sCnt}, 8")
    E("L1_fb_loop:")
    E("s_barrier")
    for pre, d in kv_dma(0, "K"):
        for p in pre: E(p)
        E(d)
    E(f"s_add_u32 s{sOff0}, s{sOff0}, 32768"); E(f"s_add_u32 s{sOff1}, s{sOff1}, 32768")
    E("s_waitcnt vmcnt(0)"); E("s_barrier")
    for j in range(4):
        for idx in range(8): E(k_read(j, idx >> 2, idx & 3, 0))
        E("s_waitcnt lgkmcnt(0)")
        for k16 in range(2):
            for qt in range(6):
                nb = vNM + 4 * qt
                for c in range(4):
                    E(f"{MF} {vr(nb,4)}, {ar(aK+16*k16+4*c,4)}, {vr(vQ+16*qt+4*c,4)}, {'0' if c == 0 else vr(nb,4)}")
            E("s_nop 7")
            for qt in range(6):
                nb = vNM + 4 * qt
                E(f"v_max3_f32 v{mx[qt]}, v{mx[qt]}, v{nb}, v{nb+1}"); E(f"v_max3_f32 v{mx[qt]}, v{mx[qt]}, v{nb+2}, v{nb+3}")
            E("s_nop 3")
    E(f"s_sub_u32 s{sCnt}, s{sCnt}, 1"); E(f"s_cmp_lg_u32 s{sCnt}, 0"); E("s_cbranch_scc1 L1_fb_loop")
    E("s_barrier")
    E(f"s_lshl_b32 s{sOff0}, s{sW}, 13"); E(f"s_add_u32 s{sOff1}, s{sOff0}, 4096")
    for wh in "KV":
        for pre, d in kv_dma(0, wh):
            for p in pre: E(p)
            E(d)
    for i in range(192): E(f"v_accvgpr_write_b32 a{i}, 0")
    negm(E, mx)
    E("s_waitcnt vmcnt(0)"); E("s_barrier")
    E("s_branch L1_att")
    el, _ = check_hazards(tl[-16:] + ["Y:"] + ep, "ep", fix=True)
    o += el[el.index("Y:") + 1:]
    return o

def stamp_out(E, off, vt, endl, which):
    if not cfg.stamp: return
    E("s_waitcnt vmcnt(0)")
    E(f"s_memtime s[{sST+10}:{sST+11}]"); E(f"s_memrealtime s[{sST+12}:{sST+13}]"); E("s_waitcnt lgkmcnt(0)")
    E(f"s_add_u32 s{sD}, s{sPTR+14}, {off:#x}"); E(f"s_addc_u32 s{sD+1}, s{sPTR+15}, 0")
    E(f"s_mov_b32 s{sD+2}, 0x100000"); E(f"s_mov_b32 s{sD+3}, 0x20000")
    E(f"s_lshl_b32 s{sT0}, s2, 2"); E(f"s_add_u32 s{sT0}, s{sT0}, s{sW}"); E(f"s_lshl_b32 s{sT0}, s{sT0}, 6")
    if cfg.qstamp and which == 1:
        for i in range(4): E(f"s_mov_b32 s{sST+4+2*i}, s{86+2*i}"); E(f"s_mov_b32 s{sST+5+2*i}, s{87+2*i}")
    for i in range(16): E(f"v_mov_b32 v{vt+i}, s{sST+i}")
    E(f"v_mov_b32 v{vt+16}, 0")
    for i in range(4): E(f"buffer_store_dwordx4 {vr(vt+4*i,4)}, v{vt+16}, s[{sD}:{sD+3}], s{sT0} offen offset:{16*i}")

def gen_k2():
    o = []; e = o.append
    DEP = cfg.k2dep; NSL = 8; NB = DEP + 1
    sOa, sWO, sOut = 8, 16, 20
    sRg, sCg, sMt, sSo, sSw, sM = 48, 49, 50, 51, 52, 53
    vOo = 1; vWv = 6; vRa = 10; vt = 14; vAcc2 = 32; vA = 112; aBf = 0
    e("oproj_kernel:")
    e("s_cmp_ge_u32 s2, 256"); e("s_cbranch_scc1 L2_end")
    e(f"s_load_dwordx8 s[{sPTR+8}:{sPTR+15}], s[0:1], 32")
    if cfg.stamp:
        e(f"s_memtime s[{sST}:{sST+1}]"); e(f"s_memrealtime s[{sST+14}:{sST+15}]")
    e("v_lshrrev_b32 v1, 6, v0"); e("v_and_b32 v0, 63, v0"); e(f"v_readfirstlane_b32 s{sW}, v1")
    e(f"s_and_b32 s{sB}, s2, 7"); e(f"s_lshr_b32 s{sT0}, s2, 3")
    e(f"s_and_b32 s{sRg}, s{sT0}, 3"); e(f"s_lshr_b32 s{sCg}, s{sT0}, 2")
    e(f"s_lshr_b32 s{sMt}, s{sRg}, 1"); e(f"s_mul_i32 s{sMt}, s{sMt}, 9"); e(f"s_and_b32 s{sT1}, s{sRg}, 1")
    e(f"s_mul_i32 s{sT0}, s{sT1}, 5"); e(f"s_add_u32 s{sMt}, s{sMt}, s{sT0}")
    e(f"v_lshlrev_b32 v{vOo}, 4, v0")
    for i in range(1, 5): e(f"v_add_u32 v{vOo+i}, {131072*i}, v{vOo}")
    r8, p8, tA, tB = vt, vt+1, vt+2, vt+3
    e(f"v_lshrrev_b32 v{r8}, 3, v0"); e(f"v_and_b32 v{p8}, 7, v0")
    e(f"v_bfe_u32 v{tA}, v{r8}, 1, 2"); e(f"v_lshlrev_b32 v{tA}, 1, v{tA}"); e(f"v_xor_b32 v{tA}, v{tA}, v{p8}")
    e(f"v_lshlrev_b32 v{tB}, 10, v{r8}"); e(f"v_lshl_add_u32 v{vWv}, v{tA}, 4, v{tB}")
    for q in range(1, 4): e(f"v_add_u32 v{vWv+q}, {7168*q}, v{vWv}")
    kg, r4, c4 = vt+4, vt+5, vt+6
    e(f"v_lshrrev_b32 v{kg}, 4, v0"); e(f"v_bfe_u32 v{r4}, v0, 2, 2"); e(f"v_and_b32 v{c4}, 3, v0")
    e(f"v_and_b32 v{tA}, 1, v{kg}"); e(f"v_lshl_add_u32 v{tA}, v{tA}, 2, v{r4}")
    e(f"v_lshrrev_b32 v{tB}, 1, v{tA}"); e(f"v_lshlrev_b32 v{tB}, 5, v{tB}")
    e(f"v_lshl_add_u32 v{tB}, v{tA}, 7, v{tB}"); e(f"v_lshrrev_b32 v{tA}, 1, v{kg}"); e(f"v_lshl_add_u32 v{tB}, v{tA}, 10, v{tB}")
    e(f"v_lshl_add_u32 v{tB}, v{c4}, 3, v{tB}")
    e(f"s_lshl_b32 s{sM}, s{sW}, 15"); e(f"v_add_u32 v{vRa}, s{sM}, v{tB}")
    for nt in range(1, 4): e(f"v_xor_b32 v{vRa+nt}, {32*nt}, v{vRa}")
    e("s_waitcnt lgkmcnt(0)")
    e(f"s_mul_i32 s{sT0}, s{sB}, 18"); e(f"s_add_u32 s{sT0}, s{sT0}, s{sMt}"); e(f"s_lshl_b32 s{sT0}, s{sT0}, 17")
    e(f"s_add_u32 s{sOa}, s{sPTR+14}, s{sT0}"); e(f"s_addc_u32 s{sOa+1}, s{sPTR+15}, 0")
    e(f"s_mov_b32 s{sOa+3}, 0x20000")
    e(f"s_lshl_b32 s{sT0}, s{sT1}, 17"); e(f"s_sub_u32 s{sOa+2}, {5*131072}, s{sT0}")
    e(f"s_lshl_b32 s{sT0}, s{sCg}, 7")
    e(f"s_add_u32 s{sWO}, s{sPTR+8}, s{sT0}"); e(f"s_addc_u32 s{sWO+1}, s{sPTR+9}, 0")
    e(f"s_sub_u32 s{sWO+2}, 4194304, s{sT0}"); e(f"s_mov_b32 s{sWO+3}, 0x20000")
    e(f"s_lshl_b32 s{sSo}, s{sW}, 15"); e(f"s_lshl_b32 s{sSw}, s{sW}, 20")
    vPw, vPo, sPw, sPo = vt + 8, vt + 9, 54, 55
    if cfg.k2pf:
        e(f"v_lshlrev_b32 v{vPw}, 10, v0"); e(f"s_lshl_b32 s{sPw}, s{sRg}, 16"); e(f"s_add_u32 s{sPw}, s{sPw}, s{sSw}")
        e(f"v_lshrrev_b32 v{vPo}, 3, v0"); e(f"v_lshlrev_b32 v{vPo}, 17, v{vPo}"); e(f"v_and_b32 v{tA}, 7, v0"); e(f"v_lshl_add_u32 v{vPo}, v{tA}, 7, v{vPo}")
        e(f"s_lshl_b32 s{sPo}, s{sCg}, 10"); e(f"s_add_u32 s{sPo}, s{sPo}, s{sSo}")
    def pf(grp):
        return [f"buffer_load_dword v{vt+10}, v{vPw}, s[{sWO}:{sWO+3}], s{sPw} offen", f"s_add_u32 s{sPw}, s{sPw}, 262144",
                f"buffer_load_dword v{vt+10}, v{vPo}, s[{sOa}:{sOa+3}], s{sPo} offen", f"s_add_u32 s{sPo}, s{sPo}, 8192"]
    hist = []
    def loads(k):
        L = [f"s_add_u32 m0, s{sM}, {4096*(k % NSL)}", f"s_add_u32 s{sT0}, s{sSw}, {32768*k}"]
        for q in range(4):
            L.append(f"buffer_load_dwordx4 v{vWv+q}, s[{sWO}:{sWO+3}], s{sT0} offen offset:{1024*q}{NT(cfg.k2w_nt)} lds")
        if k % 4 == 0 and k: L.append(f"s_add_u32 s{sSo}, s{sSo}, 4096")
        for i in range(5):
            L.append(f"buffer_load_dwordx4 {ar(aBf+20*(k % NB)+4*i,4)}, v{vOo+i}, s[{sOa}:{sOa+3}], s{sSo} offen offset:{1024*(k % 4)}{NT(cfg.k2o_nt)}")
        hist.extend([k] * 9)
        return L
    def wait_for(k):
        last = max(i for i, x in enumerate(hist) if x == k)
        return f"s_waitcnt vmcnt({len(hist) - 1 - last})"
    def areads(k):
        return [f"ds_read_b64_tr_b16 {vr(vA+16*(k&1)+4*nt+2*jj,2)}, v{vRa+nt} offset:{4096*(k % NSL)+2048*jj}" for nt in range(4) for jj in range(2)]
    pfq = list(range(4))
    if cfg.k2pf:
        for l in loads(0): e(l)
        for _ in range(cfg.k2pf):
            for l in pf(pfq.pop(0)): e(l)
            hist.extend([-1, -1])
        for k in range(1, DEP):
            for l in loads(k): e(l)
    else:
        for k in range(DEP):
            for l in loads(k): e(l)
    e(f"s_mul_i32 s{sT0}, s{sB}, 18"); e(f"s_add_u32 s{sT0}, s{sT0}, s{sMt}"); e(f"s_lshl_b32 s{sT0}, s{sT0}, 14")
    e(f"s_add_u32 s{sOut}, s{sPTR+10}, s{sT0}"); e(f"s_addc_u32 s{sOut+1}, s{sPTR+11}, 0")
    e(f"s_lshl_b32 s{sT0}, s{sT1}, 14"); e(f"s_sub_u32 s{sOut+2}, {5*16384}, s{sT0}"); e(f"s_mov_b32 s{sOut+3}, 0x20000")
    e(wait_for(0))
    for l in areads(0): e(l)
    for k in range(32):
        pre = []
        if k + 1 < 32: pre = [wait_for(k + 1)] + areads(k + 1)
        fill = []
        if cfg.k2pf and pfq and k % 6 == 2:
            fill += pf(pfq.pop(0)); hist.extend([-1, -1])
        if k + DEP < 32: fill += loads(k + DEP)
        e(f"s_waitcnt lgkmcnt(0)")
        seq = pre + fill; mi = 0
        for i in range(5):
            for nt in range(4):
                acc = vAcc2 + 4 * (4 * i + nt)
                e(f"{MF} {vr(acc,4)}, {vr(vA+16*(k&1)+4*nt,4)}, {ar(aBf+20*(k % NB)+4*i,4)}, {'0' if k == 0 else vr(acc,4)}")
                mi += 1
                take = -(-len(seq) // (21 - mi)) if mi < 20 else len(seq)
                for l in seq[:take]: e(l)
                seq = seq[take:]
    e("s_nop 7"); e("s_barrier")
    e(f"v_lshlrev_b32 v{tA}, 4, v0"); e(f"s_mul_i32 s{sT0}, s{sW}, 20480"); e(f"v_add_u32 v{tB}, s{sT0}, v{tA}")
    for i in range(20): e(f"ds_write_b128 v{tB}, {vr(vAcc2+4*i,4)} offset:{1024*i}")
    e(f"s_lshl_b32 s{sT0}, s{sW}, 10"); e(f"v_add_u32 v{tA}, s{sT0}, v{tA}")
    e(f"v_add_u32 v{tB}, 40960, v{tA}")
    va = vt + 4
    e(f"v_and_b32 v{va}, 15, v0"); e(f"v_lshlrev_b32 v{va}, 10, v{va}"); e(f"v_lshrrev_b32 v{va+1}, 4, v0")
    e(f"v_lshl_add_u32 v{va}, v{va+1}, 3, v{va}")
    e(f"s_lshl_b32 s{sT0}, s{sCg}, 7"); e(f"s_lshl_b32 s{sT1}, s{sW}, 5"); e(f"s_add_u32 s{sT0}, s{sT0}, s{sT1}")
    e("s_waitcnt lgkmcnt(0)"); e("s_barrier")
    for i in range(5):
        for wv in range(4):
            e(f"ds_read_b128 {vr(vAcc2+16*i+4*wv,4)}, v{tA if wv < 2 else tB} offset:{20480*(wv&1)+4096*i}")
    for i in range(5):
        e(f"s_waitcnt lgkmcnt({min(15, 4*(4-i))})")
        b0 = vAcc2 + 16 * i
        for r in range(4): e(f"v_add_f32 v{b0+r}, v{b0+r}, v{b0+4+r}"); e(f"v_add_f32 v{b0+8+r}, v{b0+8+r}, v{b0+12+r}")
        for r in range(4): e(f"v_add_f32 v{b0+r}, v{b0+r}, v{b0+8+r}")
        e(f"v_cvt_pk_bf16_f32 v{b0+4}, v{b0}, v{b0+1}"); e(f"v_cvt_pk_bf16_f32 v{b0+5}, v{b0+2}, v{b0+3}")
        e(f"buffer_store_dwordx2 {vr(b0+4,2)}, v{va}, s[{sOut}:{sOut+3}], s{sT0} offen")
        e(f"s_add_u32 s{sT0}, s{sT0}, 16384")
    stamp_out(e, 0x4100000, vt, "L2_end", 2)
    e("L2_end:"); e("s_endpgm")
    o, _ = check_hazards(o, "k2", fix=True)
    return o, 144, 144 + 20 * NB

def kd(name, nv, acc):
    return f""".amdhsa_kernel {name}
  .amdhsa_next_free_vgpr {nv}
  .amdhsa_next_free_sgpr 96
  .amdhsa_accum_offset {acc}
  .amdhsa_group_segment_fixed_size 0
  .amdhsa_kernarg_size 64
  .amdhsa_user_sgpr_count 2
  .amdhsa_user_sgpr_kernarg_segment_ptr 1
  .amdhsa_system_sgpr_workgroup_id_x 1
.end_amdhsa_kernel
"""

def main():
    k1 = [l for l in gen_k1() if l]
    n0 = len(k1); k1, _ = check_hazards(k1, "k1", fix=True)
    sys.stderr.write(f"k1: {len(k1)} lines, {len(k1)-n0} nops added by final pass\n")
    k2, acc2, nv2 = gen_k2()
    hdr = open("standalone__gqa_block_cached__near_ridge.s.ref").read().split("\n")[:9]
    out = hdr + [f"; @launch kernel=attn_kernel grid=(256,1,1) block=(256,1,1) lds={LDS_TOTAL}",
                 "; @launch kernel=oproj_kernel grid=(256,1,1) block=(256,1,1) lds=131072",
                 '.amdgcn_target "amdgcn-amd-amdhsa--gfx950"', ".text"]
    fmt = lambda l: l if l.endswith(":") else "    " + l
    out += [".globl attn_kernel", ".p2align 8", ".type attn_kernel,@function"] + [fmt(l) for l in k1]
    out += [".globl oproj_kernel", ".p2align 8", ".type oproj_kernel,@function"] + [fmt(l) for l in k2 if l]
    out += ['.section .rodata,"a"', ".p2align 6", kd("attn_kernel", 512, 256), ".p2align 6", kd("oproj_kernel", nv2, acc2)]
    open(sys.argv[1], "w").write("\n".join(out))
main()
```

```python
import sys, math, struct
from asmlib import *

class Cfg:
    name = "standalone__gqa_block_cached__near_ridge_kernel"
    stamp = False
    map_bh = "h"
    kv_nt = True; q_nt = False
    dump_q = False
    e0 = 9
    dma_step = 20.0; qstep = 5
    wowarm = 0; k0pf = 0; dm = '2,4,5,7,9,11,13,15'; trlag = 8; npost = 1; ola = 2; ostep = 1; epi = 'mix'; cpf = 1; cpf_n = 4; cpf2 = 1; qrot = 0; orot = 0; nost = 0; olay = 0; pf_nt = False; pf0 = 4; pfpos = '107,237,367,497'
    wopf = 1
    opf = 0
    qpf = 0
    sleep = 4
    lstamp = False
    st_sc = " sc1"; ld_sc = " sc1"
cfg = Cfg()
for a in sys.argv[2:]:
    k, v = a.split("=")
    old = getattr(cfg, k)
    if k in ("st_sc", "ld_sc"): v = "".join(" " + x for x in v.split("+") if x)
    setattr(cfg, k, (v == "1") if isinstance(old, bool) else type(old)(v))

def NT(f): return " nt" if f else ""
def f2u(x): return struct.unpack("<I", struct.pack("<f", x))[0]
QSCALE = f2u(math.log2(math.e) / math.sqrt(128.0))
LTHRESH = f2u(2.0 ** 40)
MF = "v_mfma_f32_16x16x32_bf16"
CAP = 8

class Item:
    def __init__(self, text, kind, it=0):
        self.text = text; self.kind = kind; self.it = it
        self.cost = {"s": 0, "ds": 4, "v": 4, "t": 8, "dma": 8, "mf": 0}[kind]

class Sched:
    def __init__(self, n, periodic=False):
        self.n = n; self.periodic = periodic
        self.mf = [None] * n; self.gap = [[] for _ in range(n)]; self.cost = [0] * n
    def norm(self, g):
        if self.periodic: return g % self.n
        assert 0 <= g < self.n, g
        return g
    def put(self, g, item):
        g = self.norm(g); self.gap[g].append(item); self.cost[g] += item.cost
    def put_win(self, lo, hi, item, pack=False):
        cand = [g for g in range(lo, hi + 1) if self.cost[self.norm(g)] + item.cost <= CAP]
        if cand:
            if pack:
                part = [g for g in cand if self.cost[self.norm(g)] > 0]
                best = part[0] if part and part[0] <= cand[0] + 3 else cand[0]
            else: best = cand[0]
        else:
            best = min(range(lo, hi + 1), key=lambda g: self.cost[self.norm(g)])
        self.put(best, item); return best
    def linear(self, lo, hi, keep=lambda it: True):
        out = []
        order = {"s": 0, "dma": 1, "ds": 1, "v": 2, "t": 2}
        for g in range(lo, hi):
            if self.mf[g] is not None and keep(self.mf[g].it): out.append((g, "mf", self.mf[g].text))
            for item in sorted(self.gap[g], key=lambda x: order[x.kind]):
                if keep(item.it): out.append((g, item.kind, item.text))
        return out

def lgkm_waits(seq, slack=6):
    out = []; q = []
    mfi = [i for i, x in enumerate(seq) if x[1] == "mf"]
    nxt = dict(zip(mfi, mfi[1:]))
    def need(use, g):
        nonlocal q
        idx = -1
        for k, (gg, regs) in enumerate(q):
            if regs & use: idx = k
        if idx >= 0:
            while idx + 1 < len(q) and q[idx + 1][0] <= g - slack: idx += 1
            n = min(len(q) - 1 - idx, 15)
            out.append((g, "s", f"s_waitcnt lgkmcnt({n})"))
            q = q[len(q) - n:] if n else []
    for i, (g, k, t) in enumerate(seq):
        ins = Ins(t)
        if ins.op == "s_waitcnt" and "lgkmcnt(0)" in t: q = []
        if ins.kind != "label": need(ins.r | ins.w, g)
        if ins.kind == "ds": q.append((g, set(ins.w)))
        out.append((g, k, t))
        if k == "mf" and i in nxt:
            n = Ins(seq[nxt[i]][2]); need(n.r | n.w, g)
    return out

sK, sV, sX, sWQ, sO, sD = 8, 12, 16, 20, 24, 28
sPTR = 32
sW, sB, sH, sT0, sT1 = 3, 4, 5, 6, 7
sKo, sVo = 48, 50
sKs, sVs = 52, 53
sVm = 54
sCnt, sRedo = 58, 59
sXo, sXm, sWo_, sWm = 60, 61, 62, 63
sT2, sQs, sT3 = 64, 65, 66
sKb, sKm, sKd, sKw = 67, 68, 69, 86
sRg, sCg, sMt, sOdd = 87, 88, 89, 90
sW8 = 91
sPfo = 101
sRot, sXc = 100, 101
sR4 = 63
sKt = 100
sST = 70
sST2 = 92
vKv = 1; vVv = 5; vPfd = 9
vQ = 12; vNM = 108; vL = 132; vS = 156; vP = 188; vKa = 204; vVa = 212; vOne = 228; vT = 232
vAcc = 108
aO = 0; aK = 192; aV = 224
KR = (131072, 98304, 65536); LDS_V = (0, 32768); LDS_EX = 65536
QSLOT = (0, 53248, 106496); LDS_TOTAL = 163840
UNIT_TILE = [0, 1, 2, 0, 1, 0, 1, 0, 1]
UNIT_KT =   [0, 0, 0, 1, 1, 2, 2, 3, 3]
PER = 34

def stamp(o, idx):
    if cfg.stamp:
        r = sST + 2 * idx if idx < 5 else sST2 + 2 * (idx - 5)
        o.append(f"s_memtime s[{r}:{r+1}]")

def k_dma():
    r = []
    for grp in range(2):
        for q in range(4):
            pre = []
            if q == 0: pre = [f"s_mov_b32 m0, s{sKm}"] if grp == 0 else [f"s_add_u32 m0, s{sKm}, 4096"]
            off = f" offset:{1024*q}" if q else ""
            r.append((pre, f"buffer_load_dwordx4 v{vKv+q}, s[{sK}:{sK+3}], s{sKo+grp} offen{off}{NT(cfg.kv_nt)} lds"))
    return r
def v_dma(slot):
    r = []
    for grp in range(2):
        for q in range(4):
            off = f" offset:{1024*q}" if q else ""
            r.append(([f"s_mov_b32 m0, s{sVm+2*slot+grp}"] if q == 0 else [],
                      f"buffer_load_dwordx4 v{vVv+q}, s[{sV}:{sV+3}], s{sVo+grp} offen{off}{NT(cfg.kv_nt)} lds"))
    return r
def adv(base, stride): return [f"s_add_u32 s{base}, s{base}, s{stride}", f"s_add_u32 s{base+1}, s{base+1}, s{stride}"]
def flat(lst):
    out = []
    for pre, d in lst: out += pre + [d]
    return out

def place_dmas(S, lst, g, step, itf=lambda g: 0, limit=None):
    for pre, d in lst:
        gg = g
        while S.cost[S.norm(gg)] > 0: gg += 1
        if limit is not None: assert gg < limit, (gg, limit)
        for p in pre: S.put(gg - 1, Item(p, "s", itf(gg - 1)))
        S.put(gg, Item(d, "dma", itf(gg)))
        g = gg + step
    return g

def k_read(j, k16, c, base=None):
    va = (vKa + 2 * j if base is None else base) + (c & 1)
    return f"ds_read_b128 {ar(aK+16*k16+4*c,4)}, v{va} offset:{k16*4096 + (c>>1)*1024}"
def v_read(j, t, jj, slot):
    imm = LDS_V[slot] + jj * 4096 + (t >> 2) * 1024
    return f"ds_read_b64_tr_b16 {ar(aV+4*t+2*jj,2)}, v{vVa+4*j+(t&3)} offset:{imm}"

BG = PER * 7 + 16
def gen_attn_sched():
    NU = 18; N = NU * PER; CUT = 17 * PER
    S = Sched(N, periodic=True)
    tile = lambda n: UNIT_TILE[n % 9]
    kt = lambda n: UNIT_KT[n % 9]
    slot = lambda n: (n // 9) & 1
    last = lambda n: UNIT_KT[n % 9] != UNIT_KT[(n + 1) % 9] or n % 9 == 8
    for n in range(NU):
        u = n + 1; it = 1 if u == NU else 0
        for i in range(16):
            q, k16, c = i >> 3, (i >> 2) & 1, i & 3
            qt = 2 * tile(u) + q; sb = vS + 16 * (u & 1) + 8 * q + 4 * k16
            cin = vr(vNM + 4 * qt, 4) if c == 0 else vr(sb, 4)
            S.mf[PER*n + i] = Item(f"{MF} {vr(sb,4)}, {ar(aK+16*k16+4*c,4)}, {vr(vQ+16*qt+4*c,4)}, {cin}", "mf", it)
        for i in range(18):
            q, t = i // 9, i % 9
            qt = 2 * tile(n) + q; pb = vr(vP + 8 * (n & 1) + 4 * q, 4)
            if t < 8:
                o = ar(aO + 32 * qt + 4 * t, 4)
                S.mf[PER*n + 16 + i] = Item(f"{MF} {o}, {ar(aV+4*t,4)}, {pb}, {o}", "mf")
            else:
                l = vr(vL + 4 * qt, 4)
                S.mf[PER*n + 16 + i] = Item(f"{MF} {l}, {vr(vOne,4)}, {pb}, {l}", "mf")
    for n in range(1, NU + 1):
        sb = vS + 16 * (n & 1); pb = vP + 8 * (n & 1)
        itf = lambda g: 1 if (n == NU and g < N) else 0
        for j in range(16):
            g = PER * (n - 1) + cfg.e0 + 2 * j
            S.put(g, Item(f"v_exp_f32 v{sb+j}, v{sb+j}", "t", itf(g)))
            if j & 1: S.put(g + 1, Item(f"v_cvt_pk_bf16_f32 v{pb+(j>>1)}, v{sb+j-1}, v{sb+j}", "v", itf(g + 1)))
    bar = [BG, 9 * PER + BG]
    for bi, b in enumerate(bar):
        if cfg.lstamp: S.put(b, Item("s_memtime s[96:97]", "s"))
        S.put(b, Item("s_waitcnt vmcnt(8) lgkmcnt(0)", "s")); S.put(b, Item("s_barrier", "s"))
        if cfg.lstamp:
            S.put(b, Item(f"v_mov_b32 v240, s96", "s")); S.put(b, Item("s_memtime s[96:97]", "s")); S.put(b, Item("s_waitcnt lgkmcnt(0)", "s"))
            S.put(b, Item(f"v_mov_b32 v241, s96", "s"))
            S.put(b, Item(f"buffer_store_dwordx2 v[240:241], v242, s[{sX}:{sX+3}], 0 offen", "s")); S.put(b, Item(f"v_add_u32 v242, 8, v242", "s"))
        S.put(b, Item(f"SWITCH{bi}:", "s"))
    for n in range(NU):
        if last(n):
            nu = n + 1
            for t in range(8):
                for jj in range(2):
                    lo = PER*n + 16 + 9 + t; hi = lo + 15
                    if nu % 9 == 7: hi = min(hi, PER*(n+1) + 10)
                    item = Item(v_read(kt(nu), t, jj, slot(nu)), "ds")
                    g = S.put_win(lo, hi, item, pack=True)
                    if nu >= NU and g < N: item.it = 1
    for n in range(NU):
        u = n + 1
        if last(u):
            nu = u + 1; it = 1 if nu >= NU else 0
            for idx in range(8):
                lo = PER*n + 8 + idx; hi = lo + 16
                if u % 9 == 8: lo = max(lo, PER*n + 16)
                S.put_win(lo, hi, Item(k_read(kt(nu), idx >> 2, idx & 3), "ds", it), pack=True)
    for bi, b in enumerate(bar):
        g0 = b - 40
        for l in [f"s_mov_b32 s{sKt}, s{sKb}", f"s_cmp_eq_u32 s{sKb}, s{sKw}"]: S.put(g0, Item(l, "s"))
        S.put(b + 1, Item(f"s_mov_b32 s{sKm}, s{sKt}", "s"))
        S.put(g0, Item(f"s_cselect_b32 s{sKd}, s{sT3}, s{sQs}", "s"))
        S.put(g0 + 1, Item(f"s_add_u32 s{sKb}, s{sKb}, s{sKd}", "s"))
        for i in range(8): S.put_win(g0 + 2, b - 1, Item(f"v_add_u32 v{vKa+i}, s{sKd}, v{vKa+i}", "v"), pack=True)
        itf = lambda g: 1 if (bi == 1 and g < N) else 0
        lv = v_dma(bi); lk = k_dma()
        lv[0] = (adv(sVo, sVs) + lv[0][0], lv[0][1]); lk[0] = (adv(sKo, sKs) + lk[0][0], lk[0][1])
        st0 = (b + 2) if bi == 0 else CUT + 1
        lim = b + 9 * PER - 14
        step = min(cfg.dma_step, (lim - 36 - st0) / 15)
        g = st0
        for i, x in enumerate(lv + lk):
            g = place_dmas(S, [x], max(g, st0 + int(i * step)), 2, itf, limit=lim)
    if cfg.wopf:
        for i, g in enumerate(int(x) for x in cfg.pfpos.split(",")):
            place_dmas(S, [([f"s_add_u32 s{sPfo}, s{sPfo}, {262144 // len(cfg.pfpos.split(','))}"], f"buffer_load_dword v{vPfd}, v{vPfo}, s[{sD}:{sD+3}], s{sPfo} offen{NT(cfg.pf_nt)} ; pf{i}")], g, 1)
    for bi, b in enumerate(bar):
        n = 0; g = b - 1
        while True:
            its = [x for x in S.gap[g % N] if x.kind == "dma"]
            if its and f"s[{sV}:{sV+3}]" in its[0].text: break
            n += len(its); g -= 1
        for x in S.gap[b]:
            if "vmcnt(8)" in x.text: x.text = x.text.replace("vmcnt(8)", f"vmcnt({n})")
    return S, bar

def kv_setup(e, t):
    r8, p8, tA, tB, tC = t, t+1, t+2, t+3, t+4
    e(f"v_lshrrev_b32 v{r8}, 3, v0"); e(f"v_and_b32 v{p8}, 7, v0"); e(f"v_lshrrev_b32 v{tA}, 1, v{r8}")
    e(f"v_xor_b32 v{tB}, v{tA}, v{p8}"); e(f"v_lshlrev_b32 v{tC}, 8, v{r8}")
    e(f"v_lshl_add_u32 v{vKv+1}, v{tB}, 4, v{tC}"); e(f"v_xor_b32 v{vKv+3}, 64, v{vKv+1}")
    e(f"v_add_u32 v{vKv}, 1024, v{vKv+1}"); e(f"v_add_u32 v{vKv+2}, 1024, v{vKv+3}")
    e(f"v_add_u32 v{vKv+1}, 128, v{vKv+1}"); e(f"v_add_u32 v{vKv+3}, 128, v{vKv+3}")
    e(f"v_lshlrev_b32 v{tB}, 1, v{tA}"); e(f"v_xor_b32 v{tB}, v{tB}, v{p8}")
    e(f"v_lshl_add_u32 v{vVv+1}, v{tB}, 4, v{tC}")
    e(f"v_add_u32 v{vVv}, 1024, v{vVv+1}"); e(f"v_add_u32 v{vVv+1}, 128, v{vVv+1}")
    e(f"v_mov_b32 v{vVv+2}, v{vVv}"); e(f"v_mov_b32 v{vVv+3}, v{vVv+1}")
    e(f"s_lshl_b32 s{sT0}, s{sB}, 5"); e(f"s_add_u32 s{sT0}, s{sT0}, s{sH}"); e(f"s_lshl_b32 s{sT0}, s{sT0}, 18")
    for s, p in ((sK, sPTR + 2), (sV, sPTR + 4)):
        e(f"s_add_u32 s{s}, s{p}, s{sT0}"); e(f"s_addc_u32 s{s+1}, s{p+1}, 0")
        e(f"s_sub_u32 s{s}, s{s}, 1024"); e(f"s_subb_u32 s{s+1}, s{s+1}, 0")
        e(f"s_mov_b32 s{s+2}, {262144+1024}"); e(f"s_mov_b32 s{s+3}, 0x20000")
    for b_ in (sKo, sVo):
        e(f"s_mov_b32 s{b_}, s{sW8}"); e(f"s_add_u32 s{b_+1}, s{sW8}, 4096")
    e(f"s_mov_b32 s{sKs}, 32768"); e(f"s_mov_b32 s{sVs}, 32768")
    e(f"s_add_u32 s{sKb}, s{sW8}, {KR[0]}"); e(f"s_mov_b32 s{sKm}, s{sKb}"); e(f"s_add_u32 s{sKw}, s{sW8}, {KR[2]}")

def att_addr(t):
    L = []; e = L.append
    tA, tB, tC, q16, kg, r4, c4, k0 = t, t+1, t+2, t+3, t+4, t+5, t+6, t+7
    e(f"v_and_b32 v{q16}, 15, v0"); e(f"v_lshrrev_b32 v{kg}, 4, v0")
    e(f"v_lshrrev_b32 v{tA}, 3, v{q16}"); e(f"v_lshlrev_b32 v{tA}, 11, v{tA}")
    e(f"v_and_b32 v{tB}, 7, v{q16}"); e(f"v_lshl_add_u32 v{tA}, v{tB}, 7, v{tA}")
    e(f"v_lshrrev_b32 v{tB}, 1, v{q16}"); e(f"v_xor_b32 v{tB}, v{tB}, v{kg}")
    e(f"v_lshl_add_u32 v{k0}, v{tB}, 4, v{tA}"); e(f"v_add_u32 v{k0}, {KR[0]}, v{k0}"); e(f"v_xor_b32 v{k0+1}, 64, v{k0}")
    n1 = len(L)
    e(f"v_bfe_u32 v{r4}, v0, 2, 2"); e(f"v_and_b32 v{c4}, 3, v0")
    e(f"v_and_b32 v{tA}, 1, v{kg}"); e(f"v_lshl_add_u32 v{tA}, v{tA}, 2, v{r4}")
    e(f"v_lshrrev_b32 v{tB}, 1, v{tA}"); e(f"v_lshlrev_b32 v{tB}, 5, v{tB}"); e(f"v_lshl_add_u32 v{tB}, v{tA}, 7, v{tB}")
    e(f"v_lshrrev_b32 v{tA}, 1, v{kg}"); e(f"v_lshl_add_u32 v{tB}, v{tA}, 11, v{tB}"); e(f"v_lshl_add_u32 v{tC}, v{c4}, 3, v{tB}")
    for j in range(4):
        e(f"s_add_u32 s{sT0}, s{sW}, {j}"); e(f"s_and_b32 s{sT0}, s{sT0}, 3"); e(f"s_lshl_b32 s{sT0}, s{sT0}, 13")
        for c in range(2): e(f"v_add_u32 v{vKa+2*j+c}, s{sT0}, v{k0+c}")
        e(f"v_add_u32 v{vVa+4*j}, s{sT0}, v{tC}")
        for k in range(1, 4): e(f"v_xor_b32 v{vVa+4*j+k}, {32*k}, v{vVa+4*j}")
    for i in range(4): e(f"v_mov_b32 v{vOne+i}, 0x3f803f80")
    return L[:n1], L[n1:], k0

def wo_voff(e, dst, t):
    r8, p8, tA, tB = t, t+1, t+2, t+3
    e(f"v_lshrrev_b32 v{r8}, 3, v0"); e(f"v_and_b32 v{p8}, 7, v0")
    e(f"v_bfe_u32 v{tA}, v{r8}, 1, 2"); e(f"v_lshlrev_b32 v{tA}, 1, v{tA}"); e(f"v_xor_b32 v{tA}, v{tA}, v{p8}")
    e(f"v_lshlrev_b32 v{tB}, 10, v{r8}"); e(f"v_lshl_add_u32 v{dst}, v{tA}, 4, v{tB}")
    for q in range(1, 4): e(f"v_add_u32 v{dst+q}, {7168*q}, v{dst}")
def wo_srd(e, s):
    e(f"s_lshl_b32 s{sT0}, s{sCg}, 7")
    e(f"s_add_u32 s{s}, s{sPTR+8}, s{sT0}"); e(f"s_addc_u32 s{s+1}, s{sPTR+9}, 0")
    e(f"s_sub_u32 s{s+2}, 4194304, s{sT0}"); e(f"s_mov_b32 s{s+3}, 0x20000")

vPfo = 243
vRa = 244
def wo_pf(e, srd, first, n):
    e(f"v_lshlrev_b32 v{vT}, 12, v0"); e(f"s_lshl_b32 s{sT0}, s{sW}, 20"); e(f"s_lshl_b32 s{sT1}, s{sRg}, 10"); e(f"s_add_u32 s{sT0}, s{sT0}, s{sT1}")
    e(f"s_add_u32 s{sT0}, s{sT0}, {first*32768}")
    for i in range(n):
        if i: e(f"s_add_u32 s{sT0}, s{sT0}, 262144")
        part = first + 8 * i + 8 > 32
        if part: e(f"s_mov_b64 exec, {(1 << (8 * (32 - first - 8 * i))) - 1:#x}")
        e(f"buffer_load_dword v{vPfd}, v{vT}, s[{srd}:{srd+3}], s{sT0} offen")
        if part: e("s_mov_b64 exec, -1")
def switch_block(bi):
    L = []; e = L.append
    e(f"s_cmp_lg_u32 s{sCnt}, {2 if bi == 1 else 1}"); e(f"s_cbranch_scc1 L_sw{bi}")
    if bi == 1:
        wo_voff(e, vKv, vT); wo_srd(e, sK)
        e(f"s_and_b32 s{sR4}, s{sCg}, {cfg.orot}"); e(f"s_lshl_b32 s{sR4}, s{sR4}, 15"); e(f"s_lshl_b32 s{sT1}, s{sW}, 20"); e(f"s_or_b32 s{sR4}, s{sR4}, s{sT1}")
        e(f"s_xor_b32 s{sKs}, s{sR4}, 131072"); e(f"s_sub_u32 s{sKs}, s{sKs}, s{sR4}")
        e(f"s_sub_u32 s{sKo}, s{sR4}, s{sKs}"); e(f"s_xor_b32 s{sKo+1}, s{sR4}, 32768"); e(f"s_sub_u32 s{sKo+1}, s{sKo+1}, s{sKs}")
        kg, r4, c4, tA, tB = vT, vT+1, vT+2, vT+3, vT+4
        e(f"v_lshrrev_b32 v{kg}, 4, v0"); e(f"v_bfe_u32 v{r4}, v0, 2, 2"); e(f"v_and_b32 v{c4}, 3, v0")
        e(f"v_and_b32 v{tA}, 1, v{kg}"); e(f"v_lshl_add_u32 v{tA}, v{tA}, 2, v{r4}")
        e(f"v_lshrrev_b32 v{tB}, 1, v{tA}"); e(f"v_lshlrev_b32 v{tB}, 5, v{tB}")
        e(f"v_lshl_add_u32 v{tB}, v{tA}, 7, v{tB}"); e(f"v_lshrrev_b32 v{tA}, 1, v{kg}"); e(f"v_lshl_add_u32 v{tB}, v{tA}, 10, v{tB}")
        e(f"v_lshl_add_u32 v{tB}, v{c4}, 3, v{tB}"); e(f"v_add_u32 v{vRa}, s{sW8}, v{tB}")
        for nt in range(1, 4): e(f"v_xor_b32 v{vRa+nt}, {32*nt}, v{vRa}")
        for s_ in range(1, 3):
            for nt in range(4): e(f"v_add_u32 v{vRa+4*s_+nt}, {65536*s_}, v{vRa+nt}")
        e(f"v_lshlrev_b32 v10, 4, v0"); e(f"s_lshl_b32 s{sWo_}, s{sW}, 20")
    elif bi == 0:
        for q in range(4): e(f"v_mov_b32 v{vVv+q}, v{vKv+q}")
        wo_srd(e, sV)
        if cfg.cpf2:
            e(f"s_getpc_b64 s[{sT0}:{sT1}]"); e("L_pc1:")
            e(f"s_add_u32 s{sT0}, s{sT0}, L_tail-L_pc1"); e(f"s_addc_u32 s{sT1}, s{sT1}, 0")
            e(f"s_lshr_b32 s{sT2}, s2, 3"); e(f"s_lshl_b32 s{sT2}, s{sT2}, 2"); e(f"s_add_u32 s{sT2}, s{sT2}, s{sW}"); e(f"s_lshl_b32 s{sT2}, s{sT2}, 6")
            e(f"v_min_u32 v{vT}, 1, v0"); e(f"v_lshlrev_b32 v{vT}, 13, v{vT}"); e(f"v_add_u32 v{vT}, s{sT2}, v{vT}")
            e(f"global_load_dword v{vPfd}, v{vT}, s[{sT0}:{sT1}]")
        e(f"s_xor_b32 s{sVo}, s{sR4}, 65536"); e(f"s_xor_b32 s{sVo+1}, s{sR4}, 98304"); e(f"s_mov_b32 s{sVs}, 0")
    e(f"L_sw{bi}:")
    L, _ = check_hazards(L, "sw", fix=True)
    return L

def gen():
    o = []; e = o.append
    e(f"{cfg.name}:")
    e("s_cmp_ge_u32 s2, 256"); e("s_cbranch_scc1 L_end")
    e(f"s_load_dwordx16 s[{sPTR}:{sPTR+15}], s[0:1], 0")
    stamp(o, 0)
    if cfg.stamp: e(f"s_memrealtime s[{sST+14}:{sST+15}]")
    e("v_lshrrev_b32 v1, 6, v0"); e("v_and_b32 v0, 63, v0"); e(f"v_readfirstlane_b32 s{sW}, v1")
    if cfg.map_bh == "b":
        e(f"s_and_b32 s{sB}, s2, 7"); e(f"s_lshr_b32 s{sH}, s2, 3")
    else:
        e(f"s_lshr_b32 s{sB}, s2, 5"); e(f"s_and_b32 s{sT0}, s2, 7"); e(f"s_lshl_b32 s{sT0}, s{sT0}, 2")
        e(f"s_bfe_u32 s{sT1}, s2, 0x20003"); e(f"s_add_u32 s{sH}, s{sT0}, s{sT1}")
    t = vT
    r8, p8, tA, tB, tC = t, t+1, t+2, t+3, t+4
    vB = vQ; vAd = vQ + 40; vXv = vQ + 60; vWv = vQ + 62; vSh = vQ + 64
    e(f"v_lshrrev_b32 v{r8}, 3, v0"); e(f"v_and_b32 v{p8}, 7, v0")
    e(f"v_lshrrev_b32 v{tA}, 1, v{r8}")
    e(f"v_and_b32 v{tB}, 1, v{tA}"); e(f"v_lshlrev_b32 v{tB}, 1, v{tB}"); e(f"v_xor_b32 v{tB}, v{tB}, v{p8}")
    e(f"v_lshlrev_b32 v{tC}, 13, v{r8}"); e(f"v_lshl_add_u32 v{vWv}, v{tB}, 4, v{tC}"); e(f"v_xor_b32 v{vWv+1}, 64, v{vWv}")
    e(f"s_and_b32 s{sT0}, s{sW}, 1"); e(f"s_lshl_b32 s{sT0}, s{sT0}, 2")
    e(f"v_xor_b32 v{tB}, v{tA}, v{p8}"); e(f"v_xor_b32 v{tC+1}, s{sT0}, v{tB}")
    e(f"v_lshlrev_b32 v{tC}, 10, v{r8}"); e(f"v_lshl_add_u32 v{vXv}, v{tC+1}, 4, v{tC}"); e(f"v_xor_b32 v{vXv+1}, 64, v{vXv}")
    e(f"s_mul_i32 s{sXo}, s{sW}, {9*8192}"); e(f"s_mul_i32 s{sXm}, s{sW}, {9*1024}")
    e(f"s_lshl_b32 s{sWo_}, s{sW}, 17"); e(f"s_lshl_b32 s{sWm}, s{sW}, 12"); e(f"s_add_u32 s{sWm}, s{sWm}, 36864")
    e(f"s_mul_i32 s{sT0}, s{sB}, 294912"); e(f"s_lshl_b32 s{sT1}, s{sH}, 8")
    e(f"s_mov_b32 s{sX+2}, 294912"); e(f"s_mov_b32 s{sX+3}, 0x20000")
    e(f"s_sub_u32 s{sWQ+2}, 4194304, s{sT1}"); e(f"s_mov_b32 s{sWQ+3}, 0x20000")
    e(f"s_add_u32 s{sRot}, s{sH}, s{sB}"); e(f"s_and_b32 s{sRot}, s{sRot}, {cfg.qrot}")
    e("s_waitcnt lgkmcnt(0)")
    e(f"s_add_u32 s{sX}, s{sPTR+0}, s{sT0}"); e(f"s_addc_u32 s{sX+1}, s{sPTR+1}, 0")
    e(f"s_add_u32 s{sWQ}, s{sPTR+6}, s{sT1}"); e(f"s_addc_u32 s{sWQ+1}, s{sPTR+7}, 0")
    def q_dma(c):
        r = []; sl = QSLOT[c % 3]
        for q in range(4):
            go = (q >> 1) * 65536 + (q & 1) * 128
            rot = [f"s_xor_b32 s{sXc}, s{sRot}, {c}", f"s_lshl_b32 s{sT3}, s{sXc}, 19", f"s_add_u32 s{sT3}, s{sT3}, s{sWo_}",
                   f"s_lshl_b32 s{sXc}, s{sXc}, 7", f"s_add_u32 s{sXc}, s{sXc}, s{sXo}"] if q == 0 else []
            r.append((rot + [f"s_add_u32 m0, s{sWm}, {sl + 1024*q}", f"s_add_u32 s{sT2}, s{sT3}, {go}"],
                      f"buffer_load_dwordx4 v{vWv+(q>>1)}, s[{sWQ}:{sWQ+3}], s{sT2} offen{NT(cfg.q_nt)} lds"))
        for i in range(9):
            r.append(([f"s_add_u32 m0, s{sXm}, {sl + 1024*i}", f"s_add_u32 s{sT2}, s{sXc}, {i*8192}"],
                      f"buffer_load_dwordx4 v{vXv+(i&1)}, s[{sX}:{sX+3}], s{sT2} offen{NT(cfg.q_nt)} lds"))
        return r
    o += flat(q_dma(0))
    if cfg.cpf:
        e("s_getpc_b64 s[92:93]"); e("L_pc0:")
        e(f"s_lshr_b32 s94, s2, 3"); e(f"s_lshl_b32 s94, s94, 2"); e(f"s_add_u32 s94, s94, s{sW}"); e("s_lshl_b32 s94, s94, 6")
        for i in range(cfg.cpf_n):
            e(f"s_load_dword s95, s[92:93], s94"); e("s_add_u32 s94, s94, 8192")
    e(f"s_mov_b32 s{sRedo}, 0"); e(f"s_lshl_b32 s{sW8}, s{sW}, 13")
    kv_setup(e, t)
    for sl in range(2):
        for g in range(2): e(f"s_add_u32 s{sVm+2*sl+g}, s{sW8}, {LDS_V[sl] + 4096*g}")
    e(f"s_mul_i32 s{sT0}, s{sB}, 2359296")
    e(f"s_add_u32 s{sO}, s{sPTR+14}, s{sT0}"); e(f"s_addc_u32 s{sO+1}, s{sPTR+15}, 0")
    e(f"s_mov_b32 s{sO+2}, 2359296"); e(f"s_mov_b32 s{sO+3}, 0x20000")
    e(f"s_bfe_u32 s{sRg}, s2, 0x20003"); e(f"s_lshr_b32 s{sCg}, s2, 5")
    e(f"s_lshr_b32 s{sMt}, s{sRg}, 1"); e(f"s_mul_i32 s{sMt}, s{sMt}, 9"); e(f"s_and_b32 s{sOdd}, s{sRg}, 1")
    e(f"s_mul_i32 s{sT0}, s{sOdd}, 5"); e(f"s_add_u32 s{sMt}, s{sMt}, s{sT0}")
    e(f"s_and_b32 s{sT0}, s2, 7"); e(f"s_mul_i32 s{sT0}, s{sT0}, 18"); e(f"s_add_u32 s{sMt}, s{sMt}, s{sT0}")
    q16, kg, r4, c4 = t+6, t+7, t+8, t+9
    e(f"v_and_b32 v{q16}, 15, v0"); e(f"v_lshrrev_b32 v{kg}, 4, v0"); e(f"v_bfe_u32 v{r4}, v0, 2, 2"); e(f"v_and_b32 v{c4}, 3, v0")
    e(f"v_lshrrev_b32 v{tA}, 3, v{q16}"); e(f"v_lshlrev_b32 v{tA}, 10, v{tA}")
    e(f"v_and_b32 v{tB}, 7, v{q16}"); e(f"v_lshl_add_u32 v{tA}, v{tB}, 7, v{tA}")
    e(f"v_lshrrev_b32 v{tB}, 1, v{q16}"); e(f"v_xor_b32 v{tB}, v{tB}, v{kg}")
    e(f"v_lshl_add_u32 v{vAd}, v{tB}, 4, v{tA}"); e(f"v_xor_b32 v{vAd+1}, 64, v{vAd}")
    e(f"v_add_u32 v{vAd+2}, s{sW8}, v{vAd}"); e(f"v_add_u32 v{vAd+3}, s{sW8}, v{vAd+1}")
    e(f"v_lshrrev_b32 v{tA}, 1, v{r4}"); e(f"v_and_b32 v{tB}, 1, v{kg}"); e(f"v_lshl_add_u32 v{tA}, v{tB}, 1, v{tA}")
    e(f"v_lshlrev_b32 v{tA}, 5, v{tA}"); e(f"v_lshl_add_u32 v{tA}, v{c4}, 3, v{tA}"); e(f"v_lshl_add_u32 v{tA}, v{r4}, 7, v{tA}")
    e(f"v_lshl_add_u32 v{tA}, v{kg}, 11, v{tA}"); e(f"v_add_u32 v{vAd+4}, 36864, v{tA}")
    for k in range(1, 4): e(f"v_xor_b32 v{vAd+4+k}, {32*k}, v{vAd+4}")
    e(f"s_and_b32 s{sT0}, s{sW}, 1"); e(f"s_lshl_b32 s{sT0}, s{sT0}, 6"); e(f"s_lshr_b32 s{sT1}, s{sW}, 1"); e(f"s_lshl_b32 s{sT1}, s{sT1}, 10")
    e(f"v_xor_b32 v{vAd+8}, s{sT0}, v{vAd+4}"); e(f"v_add_u32 v{vAd+8}, s{sT1}, v{vAd+8}"); e(f"v_xor_b32 v{vAd+9}, 32, v{vAd+8}")
    e(f"s_mov_b32 s{sQs}, {QSCALE:#x}")

    NQ = 16 * 36
    S = Sched(NQ)
    fA = lambda t_: aK + 4 * t_
    fB = lambda p, q: vB + 16 * p + 4 * q
    fBs = lambda q: vB + 32 + 4 * q
    acc = lambda q, t_: vAcc + 32 * q + 4 * t_
    accs = lambda qs, u: vAcc + 128 + 8 * qs + 4 * u
    def rdA(ks, t_, jj):
        ad = vAd + 10 * ((ks >> 1) & 1); s = ks & 1
        if t_ < 8: return f"ds_read_b64_tr_b16 {ar(fA(t_)+2*jj,2)}, v{ad+4+(t_&3)} offset:{s*8192+(t_>>2)*1024+jj*512}"
        return f"ds_read_b64_tr_b16 {ar(fA(t_)+2*jj,2)}, v{ad+t_} offset:{s*8192+jj*512}"
    def rdB(ks, q):
        ad = vAd + 10 * ((ks >> 1) & 1); s = ks & 1
        if q < 4: return f"ds_read_b128 {vr(fB(ks&1,q),4)}, v{ad+2+s} offset:{2048*q}"
        return f"ds_read_b128 {vr(fBs(q-4),4)}, v{ad+s} offset:{32768+2048*(q-4)}"
    for ks in range(16):
        for i in range(36):
            if i < 32: t_, q = i >> 2, i & 3; a_, A, Bf = acc(q, t_), fA(t_), fB(ks & 1, q)
            else: u, qs = (i - 32) >> 1, i & 1; a_, A, Bf = accs(qs, u), fA(8 + u), fBs(qs)
            S.mf[36*ks + i] = Item(f"{MF} {vr(a_,4)}, {ar(A,4)}, {vr(Bf,4)}, {'0' if ks == 0 else vr(a_,4)}", "mf")
    QB = 9
    for c in range(8):
        gb = 72 * c + 36 + QB
        n = (13 + (cfg.wowarm if c == 0 else 0)) if c <= 5 else (8 if c == 6 else None)
        S.put(gb, Item(f"s_waitcnt vmcnt({n}) lgkmcnt(0)" if n is not None else "s_waitcnt lgkmcnt(0)", "s"))
        S.put(gb, Item("s_barrier", "s"))
    for ks in range(16):
        base = 36 * ks
        if ks:
            for k_, r in enumerate([rdA(ks, 8, 0), rdA(ks, 8, 1), rdB(ks, 4), rdB(ks, 5), rdA(ks, 9, 0), rdA(ks, 9, 1)]):
                S.put(base + (k_ >> 1), Item(r, "ds"))
        if ks < 15:
            lo0 = base + (QB if ks & 1 else 3)
            for q in range(4): S.put_win(lo0, base + 24, Item(rdB(ks + 1, q), "ds"))
            for t_ in range(8):
                for jj in range(2):
                    lo = max(base + 4 * t_ + 3, lo0)
                    S.put_win(lo, min(lo + 20, NQ - 1), Item(rdA(ks + 1, t_, jj), "ds"))
    for c in range(8):
        gb = 72 * c + 36 + QB
        if c + 3 < 8: lst = q_dma(c + 3)
        elif c == 5: lst = k_dma()
        elif c == 6: lst = v_dma(0)
        else:
            lst = k_dma(); lst[0] = (adv(sKo, sKs) + [f"s_add_u32 s{sKm}, s{sW8}, {KR[1]}"] + lst[0][0], lst[0][1])
        place_dmas(S, lst, gb + 2, cfg.qstep if c < 7 else 3, limit=min(gb + 72, NQ))
    place_dmas(S, q_dma(2), 1, 2, limit=36 + QB)
    for c in range(7):
        d = QSLOT[(c + 1) % 3] - QSLOT[c % 3]
        for k in range(10):
            S.put_win(72 * c + 4, 72 * c + 40, Item(f"v_add_u32 v{vAd+10*((c+1)&1)+k}, {d & 0xffffffff:#x}, v{vAd+10*(c&1)+k}", "v"))
    g = 0
    for i in range(192): g = S.put_win(g, NQ - 1, Item(f"v_accvgpr_write_b32 a{i}, 0", "v"))
    sys.stderr.write(f"qproj gaps over cap: {sum(c > CAP for c in S.cost)}\n")
    o += flat(q_dma(1))
    if cfg.wowarm:
        e(f"s_mov_b32 s{sD}, s{sPTR+8}"); e(f"s_mov_b32 s{sD+1}, s{sPTR+9}"); e(f"s_mov_b32 s{sD+2}, 4194304"); e(f"s_mov_b32 s{sD+3}, 0x20000")
        e(f"v_and_b32 v{tA}, 31, v0"); e(f"v_lshlrev_b32 v{tA}, 7, v{tA}"); e(f"s_lshl_b32 s{sT0}, s2, 14"); e(f"s_lshl_b32 s{sT1}, s{sW}, 12"); e(f"s_add_u32 s{sT0}, s{sT0}, s{sT1}")
        e(f"buffer_load_dword v{vPfd}, v{tA}, s[{sD}:{sD+3}], s{sT0} offen")
    e(f"s_waitcnt vmcnt({13 + cfg.wowarm}) lgkmcnt(0)"); e("s_barrier")
    stamp(o, 1)
    first = [rdA(0, 0, 0), rdA(0, 0, 1)] + [rdB(0, q) for q in range(4)] + [rdA(0, t_, jj) for t_ in range(1, 10) for jj in range(2)] + [rdB(0, 4), rdB(0, 5)]
    for g, k, l in lgkm_waits([(-2, "ds", r) for r in first] + S.linear(0, NQ)): e(l)
    stamp(o, 2)
    def cvt_frag(src, dst):
        L = [f"v_mul_f32 v{src+i}, s{sQs}, v{src+i}" for i in range(8)]
        L += [f"v_cvt_pk_bf16_f32 v{dst+i}, v{src+2*i}, v{src+2*i+1}" for i in range(4)]
        W = [f"v_permlane32_swap_b32 v{dst}, v{dst+2}", f"v_permlane32_swap_b32 v{dst+1}, v{dst+3}",
             f"v_permlane16_swap_b32 v{dst}, v{dst+2}", f"v_permlane16_swap_b32 v{dst+1}, v{dst+3}"]
        return L, W
    own = [(acc(q, 2 * c), vQ + 16 * q + 4 * c) for c in range(4) for q in range(4)]
    frs = own[:2] + [(accs(0, 0), vSh), (accs(1, 0), vSh + 4)] + own[2:]
    pendW = []
    for idx, (s_, d_) in enumerate(frs):
        L, W = cvt_frag(s_, d_)
        o += L[:4] + pendW[:2] + L[4:8] + pendW[2:] + L[8:]
        pendW = W
        if idx == 4:
            e(f"v_lshlrev_b32 v10, 4, v0"); e(f"s_lshl_b32 s{sT0}, s{sW}, 10"); e(f"s_add_u32 s{sT0}, s{sT0}, {LDS_EX}")
            e(f"v_add_u32 v11, s{sT0}, v10"); e(f"v_add_u32 v10, {LDS_EX}, v10")
            e(f"ds_write_b128 v11, {vr(vSh,4)}"); e(f"ds_write_b128 v11, {vr(vSh+4,4)} offset:4096")
    o += pendW
    a1, a2, k0 = att_addr(vT)
    o += a1
    e("s_waitcnt vmcnt(8) lgkmcnt(0)"); e("s_barrier")
    for c in range(4): e(k_read(0, 0, c, base=k0))
    for i in range(8): e(f"ds_read_b128 {vr(vQ+64+4*i,4)}, v10 offset:{1024*i}")
    if cfg.dump_q:
        e("s_waitcnt lgkmcnt(0)")
        e(f"v_lshlrev_b32 v{tB}, 4, v0"); e(f"s_lshl_b32 s{sT0}, s{sH}, 2"); e(f"s_add_u32 s{sT0}, s{sT0}, s{sW}"); e(f"s_mul_i32 s{sT0}, s{sT0}, {18*1024}")
        for i in range(18):
            e(f"buffer_store_dwordx4 {vr(vQ+4*i,4)}, v{tB}, s[{sO}:{sO+3}], s{sT0} offen"); e(f"s_add_u32 s{sT0}, s{sT0}, 1024")
        e("s_waitcnt vmcnt(0)"); e("s_endpgm")
    def negm(E, srcs):
        tm = [vS + qt for qt in range(6)]
        for qt in range(6): E(f"v_mov_b32 v{tm[qt]}, v{srcs[qt]}")
        for qt in range(6): E(f"v_permlane32_swap_b32 v{srcs[qt]}, v{tm[qt]}")
        for qt in range(6): E(f"v_max_f32 v{srcs[qt]}, v{srcs[qt]}, v{tm[qt]}")
        for qt in range(6): E(f"v_mov_b32 v{tm[qt]}, v{srcs[qt]}")
        for qt in range(6): E(f"v_permlane16_swap_b32 v{srcs[qt]}, v{tm[qt]}")
        for qt in range(6): E(f"v_max_f32 v{srcs[qt]}, v{srcs[qt]}, v{tm[qt]}")
        for qt in range(6):
            for i in range(4): E(f"v_sub_f32 v{vNM+4*qt+i}, 0, v{srcs[qt]}")
    o += a2[:10]; a2 = a2[10:]
    e("s_waitcnt lgkmcnt(8)")
    mx = [vS + 8 + qt for qt in range(6)]
    for qt in range(6):
        if qt == 4: e("s_waitcnt lgkmcnt(0)")
        nb = vNM + 4 * qt
        for c in range(4):
            e(f"{MF} {vr(nb,4)}, {ar(aK+4*c,4)}, {vr(vQ+16*qt+4*c,4)}, {'0' if c == 0 else vr(nb,4)}")
            if qt >= 2 and c == 1:
                p = vNM + 4 * (qt - 2); e(f"v_max3_f32 v{mx[qt-2]}, v{p}, v{p+1}, v{p+2}"); e(f"v_max_f32 v{mx[qt-2]}, v{mx[qt-2]}, v{p+3}")
            else:
                nv = 0
                while a2 and nv < 2:
                    l = a2.pop(0); e(l); nv += l.startswith("v_")
    o += a2
    for qt in (4, 5):
        p = vNM + 4 * qt; e(f"v_max3_f32 v{mx[qt]}, v{p}, v{p+1}, v{p+2}"); e(f"v_max_f32 v{mx[qt]}, v{mx[qt]}, v{p+3}")
    negm(e, mx)
    e("s_barrier")
    e("L_att:")
    for i in range(24): e(f"v_mov_b32 v{vL+i}, 0")
    e(f"s_mov_b32 s{sCnt}, 4"); e(f"s_mov_b32 s{sT3}, 65536"); e(f"s_mov_b32 s{sQs}, {(-32768) & 0xffffffff:#x}")
    e(f"s_add_u32 s{sKm}, s{sW8}, {KR[2]}")
    e(f"s_mov_b32 s{sD}, s{sPTR+8}"); e(f"s_mov_b32 s{sD+1}, s{sPTR+9}"); e(f"s_mov_b32 s{sD+2}, 4194304"); e(f"s_mov_b32 s{sD+3}, 0x20000")
    npf = len(cfg.pfpos.split(",")); sh = {1: 13, 2: 12, 4: 11, 8: 10}[npf]
    e(f"s_lshr_b32 s{sPfo}, s2, 3"); e(f"s_lshl_b32 s{sPfo}, s{sPfo}, {sh}"); e(f"s_lshl_b32 s{sT0}, s{sW}, 20"); e(f"s_add_u32 s{sPfo}, s{sPfo}, s{sT0}")
    e(f"s_sub_u32 s{sPfo}, s{sPfo}, {32 << sh}")
    e(f"v_and_b32 v{vPfo}, {(1 << (sh - 7)) - 1}, v0"); e(f"v_lshlrev_b32 v{vPfo}, 7, v{vPfo}")
    stamp(o, 3)
    if cfg.lstamp:
        e(f"s_add_u32 s{sX}, s{sPTR+14}, 0x4100000"); e(f"s_addc_u32 s{sX+1}, s{sPTR+15}, 0"); e(f"s_mov_b32 s{sX+2}, 0x100000"); e(f"s_mov_b32 s{sX+3}, 0x20000")
        e(f"s_lshl_b32 s{sT0}, s2, 2"); e(f"s_add_u32 s{sT0}, s{sT0}, s{sW}"); e(f"s_lshl_b32 s{sT0}, s{sT0}, 6"); e(f"v_mov_b32 v242, s{sT0}")
    A, bar = gen_attn_sched()
    N = A.n; CUT = 17 * PER
    pro = lgkm_waits(A.linear(bar[1], N, keep=lambda it: it == 1), slack=100)
    pl, _ = check_hazards([l for g, k, l in pro], "pro", fix=True)
    o += pl
    e("s_waitcnt lgkmcnt(0)")
    body = A.linear(0, N)
    two = lgkm_waits(body + [(10**6, "x", "MARK:")] + [(g + N, k, l) for g, k, l in body] + [(2 * N, "mf", body[0][2])])
    k_ = [i for i, x in enumerate(two) if x[2] == "MARK:"][0]
    body2 = [(g - N, k, l) for g, k, l in two[k_+1:-1]]
    e("L_loop:")
    bl = []
    for g, k, l in body2:
        if g == CUT and k == "mf": bl.append("s_cbranch_scc1 L_tail")
        if l.startswith("SWITCH"): bl += switch_block(int(l[6])); continue
        bl.append(l)
        if g == CUT - 1 and k == "mf": bl += [f"s_sub_u32 s{sCnt}, s{sCnt}, 1", f"s_cmp_eq_u32 s{sCnt}, 0"]
    ci = bl.index(f"s_cmp_eq_u32 s{sCnt}, 0"); bi_ = bl.index("s_cbranch_scc1 L_tail")
    assert not any("scc" in Ins(x).w for x in bl[ci+1:bi_]), bl[ci:bi_]
    bl.append("s_branch L_loop")
    nosw = [l for g, k, l in body2 if not l.startswith("SWITCH")]
    _, bad = check_hazards(pl[-30:] + nosw + nosw, "loop"); assert bad == 0 or cfg.lstamp
    _, bad = check_hazards(bl[:-1], "loop+switch"); assert bad == 0 or cfg.lstamp
    o += bl
    ep = []; hist = []
    def E(l, tag=None):
        if cfg.nost and tag == "st" and (cfg.nost == 1 or len([x for x in hist if x == "st"]) % 2): l = l.replace(f"s[{sO}:{sO+3}]", f"s[{sWQ}:{sWQ+3}]")
        ep.append(l)
        if Ins(l).kind in ("vmem", "dma", "vstore"): hist.append(tag)
    def vwait(tag):
        last = max(i for i, x in enumerate(hist) if x == tag)
        n = sum(1 for x in hist[last+1:] if x != "sig")
        return f"s_waitcnt vmcnt({min(63, n)})"
    vwait1 = vwait
    LS = [KR[2], KR[2] + 4096, LDS_V[0], LDS_V[0] + 4096, KR[0], KR[0] + 4096, LDS_V[1], LDS_V[1] + 4096, KR[1], KR[1] + 4096]
    RS = [("a", 192), ("a", 208), ("a", 224), ("a", 240), ("v", 156), ("v", 172), ("v", 188), ("v", 204),
          ("a", 128), ("a", 144), ("a", 160), ("a", 176), ("v", 12), ("v", 28), ("v", 44), ("v", 60), ("a", 112)]
    LSOF = [0, 1, 2, 3, 4, 5, 0, 1, 2, 4, 5, 0, 1, 3, 6, 7, 8, 9, 2, 4, 5, 0, 1, 3, 6, 7, 8, 9, 2, 4, 5, 0]
    NR = len(RS); NB = 5
    aRing = 0; vOo = 5; vR = 236; vLn = 10; vZ = 11
    ac2 = lambda i: 108 + 4 * i if i < 12 else 76 + 4 * (i - 12)
    def rreg(step, nt, jj=None):
        k, b = RS[step % NR]; f = vr if k == "v" else ar
        return f(b + 4 * nt, 4) if jj is None else f(b + 4 * nt + 2 * jj, 2)
    def tr_reads(step):
        a = LS[LSOF[step]]; s_ = a >> 16
        return [f"ds_read_b64_tr_b16 {rreg(step, nt, jj)}, v{vRa+4*s_+nt} offset:{(a & 0xffff) + 2048*jj} ; wo step {step}" for nt in range(4) for jj in range(2)]
    def wo_dma(step):
        return [(([f"s_add_u32 m0, s{sW8}, {LS[LSOF[step]]}", f"s_xor_b32 s{sT2}, s{sR4}, {32768*step}"] if q == 0 else []),
                 f"buffer_load_dwordx4 v{vKv+q}, s[{sK}:{sK+3}], s{sT2} offen offset:{1024*q} lds ; wo step {step}") for q in range(4)]
    def emit_dma(step):
        for l in flat(wo_dma(step)): E(l, ("w", step))
    def emit_tr(step):
        if step >= 6: E(vwait(("w", step)))
        for l in tr_reads(step): E(l)
    E("L_tail:")
    E("s_waitcnt lgkmcnt(0)")
    tail = [(k, l) for g, k, l in A.linear(CUT, N, keep=lambda it: it == 0)]
    extra = [[r] for r in []]
    t01 = tr_reads(0) + tr_reads(1)
    d67 = ["s_waitcnt lgkmcnt(0)"] + flat(wo_dma(6)) + flat(wo_dma(7))
    nm = 0
    for k, l in tail:
        E(l)
        if k == "mf":
            nm += 1
            if nm <= 8: E(t01[2*nm-2]); E(t01[2*nm-1])
            elif nm >= 11:
                while d67:
                    x = d67.pop(0); E(x, ("w", int(x.split()[-1])) if "wo step" in x else None)
                    if "wo step" in x: break
    assert not d67
    stamp(ep, 4)
    sys.stderr.write(f"attn gaps over cap: {sum(c > CAP for c in A.cost)}; empty {sum(c == 0 for c in A.cost)}\n")
    T = vT
    if cfg.nost: E(f"s_mov_b32 s{sWQ+2}, 0")
    vF = 242
    E(f"s_lshl_b32 s{sT0}, s{sW}, 19"); E(f"s_lshl_b32 s{sT1}, s{sH}, 12"); E(f"s_add_u32 s{sT0}, s{sT0}, s{sT1}")
    E(f"s_lshl_b32 s{sT2}, s{sW}, 14"); E(f"s_and_b32 s{sT3}, s{sW}, 2"); E(f"s_lshl_b32 s{sT3}, s{sT3}, 14"); E(f"s_add_u32 s{sT2}, s{sT2}, s{sT3}")
    E(f"s_add_u32 s{sT2}, s{sT2}, {LDS_V[1]}"); E(f"v_add_u32 v{T+3}, s{sT2}, v{vLn}")
    assert LDS_V[1] + 65536 == KR[1]
    E("s_waitcnt vmcnt(8)")
    emit_tr(3)
    for qt in range(4): E(f"v_rcp_f32 v{vR+qt}, v{vL+4*qt}")
    pw = [f"ds_write_b128 v{T+3}, {ar(aO+128+4*i,4)} offset:{1024*i}" for i in range(16)]
    chk = [f"s_mov_b32 s{sT3}, {LTHRESH:#x}",
           f"v_add_f32 v{T}, v{vL}, v{vL+4}", f"v_add_f32 v{T+1}, v{vL+8}, v{vL+12}", f"v_add_f32 v{T+2}, v{vL+16}, v{vL+20}",
           f"v_add_f32 v{T}, v{T}, v{T+1}", f"v_add_f32 v{T}, v{T}, v{T+2}", f"v_cmp_nge_f32 vcc, s{sT3}, v{T}",
           f"v_lshlrev_b32 v{vF}, 2, v0", f"v_add_u32 v{vF}, {LS[3]}, v{vF}", f"v_add_u32 v{T+1}, s{sW8}, v{vF}",
           f"s_cmp_lg_u64 vcc, 0", f"s_cselect_b32 s{sT3}, 1, 0", f"v_mov_b32 v{T+2}, s{sT3}",
           "s_waitcnt lgkmcnt(15)",
           f"ds_write_b32 v{T+1}, v{vL+16}", f"ds_write_b32 v{T+1}, v{vL+20} offset:256", f"ds_write_b32 v{T+1}, v{T+2} offset:512"]
    fl = 220; sp = 12
    def pk(b, r):
        return f"v_pk_mul_f32 {vr(b,2)}, {vr(b,2)}, {vr(r & ~1,2)} op_sel:[0,{r & 1}] op_sel_hi:[1,{r & 1}]"
    DM = {int(x): [8 + i] for i, x in enumerate(cfg.dm.split(","))} if cfg.dm else {}
    ND = 8 + len(DM)
    TR = {k_ + cfg.trlag: v_[0] for k_, v_ in DM.items() if k_ + cfg.trlag < 16 and v_[0] <= 10}
    for k in range(16):
        qt, kc = k >> 2, k & 3
        b0 = 108 + 12 * (k % 2)
        if k == 2:
            E("s_waitcnt lgkmcnt(0)"); E("s_barrier")
            for wv in range(4):
                for j in range(3): E(f"ds_read_b32 v{fl+4*j+wv}, v{vF} offset:{8192*wv+256*j}")
        if k == 3:
            E("s_waitcnt lgkmcnt(0)")
            E(f"v_or_b32 v{fl+8}, v{fl+8}, v{fl+9}"); E(f"v_or3_b32 v{fl+8}, v{fl+8}, v{fl+10}, v{fl+11}")
            for j in range(2):
                b_ = fl + 4 * j
                E(f"v_add_f32 v{b_}, v{b_}, v{b_+1}"); E(f"v_add_f32 v{b_+2}, v{b_+2}, v{b_+3}"); E(f"v_add_f32 v{b_}, v{b_}, v{b_+2}")
            E(f"v_readfirstlane_b32 s{sT2}, v{fl+8}")
            E(f"v_rcp_f32 v{vR+4}, v{fl}"); E(f"v_rcp_f32 v{vR+5}, v{fl+4}")
            E(f"s_lshl_b32 s{sT3}, s{sW}, 11"); E(f"s_add_u32 s{sT3}, s{sT3}, {LDS_V[1]}"); E(f"v_add_u32 v{T}, s{sT3}, v{vLn}"); E(f"v_add_u32 v{T+1}, 65536, v{T}")
            E(f"s_andn2_b32 s{sT2}, s{sT2}, s{sRedo}"); E(f"s_cmp_lg_u32 s{sT2}, 0"); E("s_cbranch_scc1 L_fallback")
            for wv in range(4):
                for qs in range(2):
                    for u in range(2):
                        E(f"ds_read_b128 {vr(sp+16*wv+8*qs+4*u,4)}, v{T+(wv>>1)} offset:{16384*(wv&1)+8192*qs+1024*u}")
            E(vwait(("w", 7)))
            for l in tr_reads(6) + tr_reads(7): E(l)
        if k == 4: E("s_waitcnt lgkmcnt(0)"); E("s_barrier")
        for st in DM.get(k, []): emit_dma(st)
        if k in TR: emit_tr(TR[k])
        for i in range(8):
            E(f"v_accvgpr_read_b32 v{b0+i}, a{aO+32*qt+8*kc+i}")
            if k < 2: E(pw.pop(0))
        for i in range(4): E(pk(b0 + 2 * i, vR + qt))
        for i in range(4): E(f"v_cvt_pk_bf16_f32 v{b0+8+i}, v{b0+2*i}, v{b0+2*i+1}")
        E(f"buffer_store_dwordx4 {vr(b0+8,4)}, v{vLn}, s[{sO}:{sO+3}], s{sT0} offen offset:{1024*kc}{cfg.st_sc}", "st")
        if kc == 3 and qt < 3: E(f"s_add_u32 s{sT0}, s{sT0}, 131072")
        if k == 1:
            for l in chk: E(l)
            for st in (2, 4, 5): emit_tr(st)
        if k == 5:
            for i in range(0, 16, 2):
                E(f"v_pk_add_f32 {vr(sp+i,2)}, {vr(sp+i,2)}, {vr(sp+16+i,2)}"); E(f"v_pk_add_f32 {vr(sp+32+i,2)}, {vr(sp+32+i,2)}, {vr(sp+48+i,2)}")
            for i in range(0, 16, 2): E(f"v_pk_add_f32 {vr(sp+i,2)}, {vr(sp+i,2)}, {vr(sp+32+i,2)}")
            for i in range(0, 16, 2): E(pk(sp + i, vR + 4 + (i >> 3)))
            for i in range(8): E(f"v_cvt_pk_bf16_f32 v{sp+64+i}, v{sp+2*i}, v{sp+2*i+1}")
            E(f"s_lshl_b32 s{sT3}, s{sW}, 10"); E(f"s_add_u32 s{sT3}, s{sT3}, s{sT1}"); E(f"s_add_u32 s{sT3}, s{sT3}, {16*131072}")
            E(f"buffer_store_dwordx4 {vr(sp+64,4)}, v{vLn}, s[{sO}:{sO+3}], s{sT3} offen{cfg.st_sc}", "st"); E(f"s_add_u32 s{sT3}, s{sT3}, 131072")
            E(f"buffer_store_dwordx4 {vr(sp+68,4)}, v{vLn}, s[{sO}:{sO+3}], s{sT3} offen{cfg.st_sc}", "st")
    stamp(ep, 5)
    for st in range(ND, ND + cfg.npost): emit_dma(st)
    ND += cfg.npost
    E(f"s_mov_b32 s{sD}, s{sPTR+12}"); E(f"s_mov_b32 s{sD+1}, s{sPTR+13}"); E(f"s_mov_b32 s{sD+2}, 256"); E(f"s_mov_b32 s{sD+3}, 0x20000")
    E(f"s_lshl_b32 s{sT0}, s{sMt}, 17"); E(f"s_add_u32 s{sX}, s{sPTR+14}, s{sT0}"); E(f"s_addc_u32 s{sX+1}, s{sPTR+15}, 0")
    E(f"s_lshl_b32 s{sT0}, s{sOdd}, 17"); E(f"s_sub_u32 s{sX+2}, {5*131072}, s{sT0}"); E(f"s_mov_b32 s{sX+3}, 0x20000")
    E(f"s_lshl_b32 s{sT0}, s{sMt}, 14"); E(f"s_add_u32 s{sWQ}, s{sPTR+10}, s{sT0}"); E(f"s_addc_u32 s{sWQ+1}, s{sPTR+11}, 0")
    E(f"s_lshl_b32 s{sT0}, s{sOdd}, 14"); E(f"s_sub_u32 s{sWQ+2}, {5*16384}, s{sT0}"); E(f"s_mov_b32 s{sWQ+3}, 0x20000")
    E(f"v_mov_b32 v{vZ}, 0"); E(f"v_mov_b32 v{T}, 1"); E(f"v_mov_b32 v{vOo}, v{vLn}")
    for i in range(1, 5): E(f"v_add_u32 v{vOo+i}, {131072*i}, v{vLn}")
    vPo = T + 1; vPd = T + 2
    E(f"v_lshrrev_b32 v{vPo}, 3, v0"); E(f"v_lshlrev_b32 v{vPo}, 17, v{vPo}"); E(f"v_and_b32 v{T+3}, 7, v0"); E(f"v_lshl_add_u32 v{vPo}, v{T+3}, 7, v{vPo}")
    sSo, sPo = sXo, sXm
    assert not cfg.opf
    E(f"s_lshr_b32 s{sPo}, s{sR4}, 5")
    E(f"s_lshl_b32 s{sT0}, s{sB}, 5"); E(f"s_and_b32 s{sT1}, s2, 7"); E(f"s_lshl_b32 s{sT1}, s{sT1}, 5")
    E(vwait("st")); E("s_barrier")
    E(f"s_cmp_lg_u32 s{sW}, 0"); E("s_cbranch_scc1 L_nosig")
    E("s_mov_b64 exec, 1"); ep.append(f"buffer_atomic_add v{T}, v{vZ}, s[{sD}:{sD+3}], s{sT0} offen"); E("s_mov_b64 exec, -1")
    E("L_nosig:")
    stamp(ep, 6)
    done = set(range(8)) | set(TR.values())
    nxt = ND
    def refill():
        nonlocal nxt
        while nxt <= 26 and (nxt <= 17 or nxt - 10 in settled): emit_dma(nxt); nxt += 1
    settled = set(done); E("s_waitcnt lgkmcnt(0)"); refill()
    prev = None
    for st in range(8, 17):
        if st in done: continue
        emit_tr(st)
        if prev is not None: E("s_waitcnt lgkmcnt(8)"); settled.add(prev); refill()
        prev = st
    E("s_waitcnt lgkmcnt(0)"); settled.add(prev); refill()
    assert nxt == 27
    stamp(ep, 7)
    E(f"s_cmp_lg_u32 s{sW}, 0"); E("s_cbranch_scc1 L_ready")
    E(f"s_mov_b32 s{sCnt}, 0x40000")
    E("L_poll:")
    ep.append(f"buffer_load_dword v{T+3}, v{vZ}, s[{sD}:{sD+3}], s{sT1} offen sc1")
    E("s_waitcnt vmcnt(0)"); E(f"v_readfirstlane_b32 s{sT0}, v{T+3}")
    E(f"s_sub_u32 s{sCnt}, s{sCnt}, 1"); E(f"s_cmp_eq_u32 s{sCnt}, 0"); E("s_cbranch_scc1 L_ready")
    E(f"s_cmp_ge_u32 s{sT0}, 32"); E("s_cbranch_scc1 L_ready")
    E(f"s_sleep {cfg.sleep}"); E("s_branch L_poll")
    E("L_ready:")
    E("s_barrier")
    stamp(ep, 8)
    def o_loads(st):
        r = []
        for i in range(5):
            pre = [f"s_xor_b32 s{sSo}, s{sPo}, {1024*st}"] if i == 0 else []
            r.append((pre, f"buffer_load_dwordx4 {ar(aRing+20*(st % NB)+4*i,4)}, v{vOo+i}, s[{sX}:{sX+3}], s{sSo} offen{cfg.ld_sc} ; o step {st}"))
        return r
    def o_pf(g): return [(([f"s_add_u32 s{sPo}, s{sPo}, 8192"] if g else []), f"buffer_load_dword v{vPd}, v{vPo}, s[{sX}:{sX+3}], s{sPo} offen{cfg.ld_sc} ; prefetch {g}")]
    LA = cfg.ola
    for st in range(LA):
        for l in flat(o_loads(st)): E(l, ("o", st))
        if cfg.opf and st in (1, 3):
            for l in flat(o_pf(st >> 1)): E(l, "pf")
    SO = Sched(640); tags = {}
    for st in range(32):
        for i in range(20):
            tl_, nt = i >> 2, i & 3; a_ = vr(ac2(i), 4)
            SO.mf[20*st + i] = Item(f"{MF} {a_}, {rreg(st, nt)}, {ar(aRing+20*(st % NB)+4*tl_,4)}, {'0' if st == 0 else a_}", "mf")
    for st in range(32):
        g0 = 20 * st
        if 1 <= st <= 15:
            for k_, r in enumerate(tr_reads(st + 16)):
                SO.put(g0 + 12 + (k_ >> 1), Item(r, "ds"))
                if k_ == 0: tags[r] = ("need", ("w", st + 16))
    for st in range(32):
        g0 = 20 * st; lst = []
        if st + LA < 32: lst += [(p, d, ("o", st + LA)) for p, d in o_loads(st + LA)]
        if 2 <= st <= 6:
            w_ = wo_dma(st + 25); w_[0] = (["s_waitcnt lgkmcnt(0)"] + w_[0][0], w_[0][1])
            lst = lst + [(p, d, ("w", st + 25)) for p, d in w_]
        if cfg.opf and st in (2, 8): lst += [(p, d, "pf") for p, d in o_pf(2 if st == 2 else 3)]
        g = g0 + (1 if st == 0 else 0)
        for p, d, tg in lst:
            tags[d] = ("prov", tg)
            g = place_dmas(SO, [(p, d)], g, cfg.ostep, limit=g0 + 21)
    seq = lgkm_waits(SO.linear(0, 640))
    E(vwait1(("o", 0)))
    for idx, (g, k, l) in enumerate(seq):
        tg = tags.get(l)
        if tg and tg[0] == "need": E(vwait1(tg[1]))
        E(l, tg[1] if tg and tg[0] == "prov" else None)
        if k == "mf" and g % 20 == 19 and g < 639: E(vwait1(("o", g // 20 + 1)))
    tA, tB, va = T + 3, T + 4, T + 5
    E(f"s_mul_i32 s{sT0}, s{sW}, 20480"); E(f"v_add_u32 v{tB}, s{sT0}, v{vLn}")
    E(f"s_lshl_b32 s{sT0}, s{sW}, 10"); E(f"v_add_u32 v{tA}, s{sT0}, v{vLn}")
    E(f"v_and_b32 v{va}, 15, v0"); E(f"v_lshlrev_b32 v{va}, 10, v{va}"); E(f"v_lshrrev_b32 v{va+1}, 4, v0")
    E(f"v_lshl_add_u32 v{va}, v{va+1}, 3, v{va}")
    E(f"s_lshl_b32 s{sT0}, s{sCg}, 7"); E(f"s_lshl_b32 s{sT1}, s{sW}, 5"); E(f"s_add_u32 s{sT0}, s{sT0}, s{sT1}")
    E("s_barrier")
    for i in range(20): E(f"ds_write_b128 v{tB}, {vr(ac2(i),4)} offset:{1024*i}")
    E(f"v_add_u32 v{tB}, 40960, v{tA}")
    E("s_waitcnt lgkmcnt(0)"); E("s_barrier")
    for i in range(5):
        for wv in range(4):
            E(f"ds_read_b128 {vr(ac2(4*i+wv),4)}, v{tA if wv < 2 else tB} offset:{20480*(wv&1)+4096*i}")
    for i in range(5):
        E(f"s_waitcnt lgkmcnt({min(15, 4*(4-i))})")
        b0 = ac2(4 * i)
        for r in range(4): E(f"v_add_f32 v{b0+r}, v{b0+r}, v{b0+4+r}"); E(f"v_add_f32 v{b0+8+r}, v{b0+8+r}, v{b0+12+r}")
        for r in range(4): E(f"v_add_f32 v{b0+r}, v{b0+r}, v{b0+8+r}")
        E(f"v_cvt_pk_bf16_f32 v{b0+4}, v{b0}, v{b0+1}"); E(f"v_cvt_pk_bf16_f32 v{b0+5}, v{b0+2}, v{b0+3}")
        E(f"buffer_store_dwordx2 {vr(b0+4,2)}, v{va}, s[{sWQ}:{sWQ+3}], s{sT0} offen")
        E(f"s_add_u32 s{sT0}, s{sT0}, 16384")
    if cfg.stamp:
        vt = 108
        E("s_waitcnt vmcnt(0)")
        E(f"s_memtime s[{sST+10}:{sST+11}]"); E(f"s_memrealtime s[{sST+12}:{sST+13}]"); E("s_waitcnt lgkmcnt(0)")
        E(f"s_add_u32 s{sD}, s{sPTR+14}, 0x4000000"); E(f"s_addc_u32 s{sD+1}, s{sPTR+15}, 0")
        E(f"s_mov_b32 s{sD+2}, 0x100000"); E(f"s_mov_b32 s{sD+3}, 0x20000")
        E(f"s_lshl_b32 s{sT0}, s2, 2"); E(f"s_add_u32 s{sT0}, s{sT0}, s{sW}"); E(f"s_lshl_b32 s{sT0}, s{sT0}, 7")
        for i in range(16): E(f"v_mov_b32 v{vt+i}, s{sST+i}")
        for i in range(8): E(f"v_mov_b32 v{vt+16+i}, s{sST2+i}")
        for i in range(6): E(f"buffer_store_dwordx4 {vr(vt+4*i,4)}, v{vZ}, s[{sD}:{sD+3}], s{sT0} offen offset:{16*i}")
    E("L_end:"); E("s_endpgm")
    E("L_fallback:")
    E(f"s_mov_b32 s{sRedo}, 1"); E("s_waitcnt vmcnt(0)")
    kv_setup(E, T)
    a1, a2, k0 = att_addr(T)
    for l in a1 + a2: E(l)
    mx = [vT + 12 + qt for qt in range(6)]
    for qt in range(6): E(f"v_mov_b32 v{mx[qt]}, 0xff800000")
    E(f"s_mov_b32 s{sCnt}, 8")
    E("L_fb_loop:")
    E("s_barrier")
    for l in flat(k_dma()) + adv(sKo, sKs): E(l)
    E("s_waitcnt vmcnt(0)"); E("s_barrier")
    for j in range(4):
        for idx in range(8): E(k_read(j, idx >> 2, idx & 3))
        E("s_waitcnt lgkmcnt(0)")
        for k16 in range(2):
            for qt in range(6):
                nb = vNM + 4 * qt
                for c in range(4):
                    E(f"{MF} {vr(nb,4)}, {ar(aK+16*k16+4*c,4)}, {vr(vQ+16*qt+4*c,4)}, {'0' if c == 0 else vr(nb,4)}")
            E("s_nop 7")
            for qt in range(6):
                nb = vNM + 4 * qt
                E(f"v_max3_f32 v{mx[qt]}, v{mx[qt]}, v{nb}, v{nb+1}"); E(f"v_max3_f32 v{mx[qt]}, v{mx[qt]}, v{nb+2}, v{nb+3}")
            E("s_nop 3")
    E(f"s_sub_u32 s{sCnt}, s{sCnt}, 1"); E(f"s_cmp_lg_u32 s{sCnt}, 0"); E("s_cbranch_scc1 L_fb_loop")
    E("s_barrier")
    E(f"s_mov_b32 s{sKo}, s{sW8}"); E(f"s_add_u32 s{sKo+1}, s{sW8}, 4096")
    for l in flat(k_dma()) + flat(v_dma(0)) + adv(sKo, sKs) + [f"s_add_u32 s{sKm}, s{sW8}, {KR[1]}"] + flat(k_dma()): E(l)
    for i in range(192): E(f"v_accvgpr_write_b32 a{i}, 0")
    negm(E, mx)
    E("s_waitcnt vmcnt(0)"); E("s_barrier")
    E("s_branch L_att")
    pre = [l for g, k, l in body2 if CUT - 12 <= g < CUT]
    el, _ = check_hazards(pre + ["Y:"] + ep, "ep", fix=True)
    o += el[el.index("Y:") + 1:]
    return o

def main():
    k1 = [l for l in gen() if l]
    n0 = len(k1); k1, _ = check_hazards(k1, "k1", fix=True)
    sys.stderr.write(f"{len(k1)} lines, {len(k1)-n0} nops added by final pass\n")
    hdr = open("standalone__gqa_block_cached__near_ridge.s.ref").read().split("\n")[:9]
    out = hdr + [f"; @launch grid=(256,1,1) block=(256,1,1) lds={LDS_TOTAL}",
                 '.amdgcn_target "amdgcn-amd-amdhsa--gfx950"', ".text"]
    fmt = lambda l: l if l.endswith(":") else "    " + l
    out += [f".globl {cfg.name}", ".p2align 8", f".type {cfg.name},@function"] + [fmt(l) for l in k1]
    out += ['.section .rodata,"a"', ".p2align 6", f""".amdhsa_kernel {cfg.name}
  .amdhsa_next_free_vgpr 512
  .amdhsa_next_free_sgpr 102
  .amdhsa_accum_offset 256
  .amdhsa_group_segment_fixed_size 0
  .amdhsa_kernarg_size 64
  .amdhsa_user_sgpr_count 2
  .amdhsa_user_sgpr_kernarg_segment_ptr 1
  .amdhsa_system_sgpr_workgroup_id_x 1
.end_amdhsa_kernel
"""]
    open(sys.argv[1], "w").write("\n".join(out))
main()
```

```python
import sys, math, struct
from asmlib import *

class Cfg:
    name = "standalone__gqa_block_cached__near_ridge_kernel"
    stamp = False
    map_bh = "h"
    kv_nt = True; q_nt = False
    dump_q = False
    e0 = 9
    dma_step = 20.0; qstep = 5
    wowarm = 0; k0pf = 0; dm = ''; trlag = 8; npost = 2; ola = 2; ostep = 1; epi = 'mix'; qstamp = False; cpf = 1; cpf_n = 4; cpf2 = 1; qrot = 1; orot = 0; ostamp = False; krot = 0; pkq = 1; epoll = 0; wwpos = 0; poll1 = 1; pflate = 1; pfk = 0; pfsh = 13; xrot = 1; qx = 0; pfcut = 0; wo_nt = False; fastred = 1; k1pos = 1; nost = 0; olay = 0; pf_nt = False; pf0 = 4; pfpos = '88,180,270,360'
    wopf = 1
    opf = 0
    qpf = 0
    sleep = 4
    lstamp = False
    st_sc = " sc1"; ld_sc = " sc1"
cfg = Cfg()
for a in sys.argv[2:]:
    k, v = a.split("=")
    old = getattr(cfg, k)
    if k in ("st_sc", "ld_sc"): v = "".join(" " + x for x in v.split("+") if x)
    setattr(cfg, k, (v == "1") if isinstance(old, bool) else type(old)(v))

def NT(f): return " nt" if f else ""
def f2u(x): return struct.unpack("<I", struct.pack("<f", x))[0]
QSCALE = f2u(math.log2(math.e) / math.sqrt(128.0))
LTHRESH = f2u(2.0 ** 40)
MF = "v_mfma_f32_16x16x32_bf16"
CAP = 8

class Item:
    def __init__(self, text, kind, it=0):
        self.text = text; self.kind = kind; self.it = it
        self.cost = {"s": 0, "ds": 4, "v": 4, "t": 8, "dma": 8, "mf": 0}[kind]

class Sched:
    def __init__(self, n, periodic=False):
        self.n = n; self.periodic = periodic
        self.mf = [None] * n; self.gap = [[] for _ in range(n)]; self.cost = [0] * n
    def norm(self, g):
        if self.periodic: return g % self.n
        assert 0 <= g < self.n, g
        return g
    def put(self, g, item):
        g = self.norm(g); self.gap[g].append(item); self.cost[g] += item.cost
    def put_win(self, lo, hi, item, pack=False):
        cand = [g for g in range(lo, hi + 1) if self.cost[self.norm(g)] + item.cost <= CAP]
        if cand:
            if pack:
                part = [g for g in cand if self.cost[self.norm(g)] > 0]
                best = part[0] if part and part[0] <= cand[0] + 3 else cand[0]
            else: best = cand[0]
        else:
            best = min(range(lo, hi + 1), key=lambda g: self.cost[self.norm(g)])
        self.put(best, item); return best
    def linear(self, lo, hi, keep=lambda it: True):
        out = []
        order = {"s": 0, "dma": 1, "ds": 1, "v": 2, "t": 2}
        for g in range(lo, hi):
            if self.mf[g] is not None and keep(self.mf[g].it): out.append((g, "mf", self.mf[g].text))
            for item in sorted(self.gap[g], key=lambda x: order[x.kind]):
                if keep(item.it): out.append((g, item.kind, item.text))
        return out

def lgkm_waits(seq, slack=6):
    out = []; q = []
    mfi = [i for i, x in enumerate(seq) if x[1] == "mf"]
    nxt = dict(zip(mfi, mfi[1:]))
    def need(use, g):
        nonlocal q
        idx = -1
        for k, (gg, regs) in enumerate(q):
            if regs & use: idx = k
        if idx >= 0:
            while idx + 1 < len(q) and q[idx + 1][0] <= g - slack: idx += 1
            n = min(len(q) - 1 - idx, 15)
            out.append((g, "s", f"s_waitcnt lgkmcnt({n})"))
            q = q[len(q) - n:] if n else []
    for i, (g, k, t) in enumerate(seq):
        ins = Ins(t)
        if ins.op == "s_waitcnt" and "lgkmcnt(0)" in t: q = []
        if ins.kind != "label": need(ins.r | ins.w, g)
        if ins.kind == "ds": q.append((g, set(ins.w)))
        out.append((g, k, t))
        if k == "mf" and i in nxt:
            n = Ins(seq[nxt[i]][2]); need(n.r | n.w, g)
    return out

sK, sV, sX, sWQ, sO, sD = 8, 12, 16, 20, 24, 28
sPTR = 32
sW, sB, sH, sT0, sT1 = 3, 4, 5, 6, 7
sKo, sVo = 48, 50
sKs, sVs = 52, 53
sVm = 54
sCnt, sRedo = 58, 59
sXo, sXm, sWo_, sWm = 60, 61, 62, 63
sT2, sQs, sT3 = 64, 65, 66
sKb, sKm, sKd, sKw = 67, 68, 69, 86
sRg, sCg, sMt, sOdd = 87, 88, 89, 90
sW8 = 91
sPfo = 101
sPfx, sPfr = 39, 60
sKt2 = 39
sKmask, sVmask, sK0 = 32, 33, 38
sRot, sXc = 100, 101
sR4 = 63
sKt = 100
sST = 70
sST2 = 92
vKv = 1; vVv = 5; vPfd = 9
vQ = 12; vNM = 108; vL = 132; vS = 156; vP = 188; vKa = 204; vVa = 212; vOne = 228; vT = 232
vAcc = 108
aO = 0; aK = 192; aV = 224
KR = (131072, 98304, 65536); LDS_V = (0, 32768); LDS_EX = 65536
QSLOT = (0, 53248, 106496); LDS_TOTAL = 163840
UNIT_TILE = [0, 1, 2, 0, 1, 0, 1, 0, 1]
UNIT_KT =   [0, 0, 0, 1, 1, 2, 2, 3, 3]
PER = 34

def stamp(o, idx, alt=False):
    if idx >= 5 and alt != cfg.ostamp: return
    if cfg.stamp:
        r = sST + 2 * idx if idx < 5 else sST2 + 2 * (idx - 5)
        o.append(f"s_memtime s[{r}:{r+1}]")

def k_dma():
    r = []
    for grp in range(2):
        for q in range(4):
            pre = []
            if q == 0: pre = [f"s_mov_b32 m0, s{sKm}"] if grp == 0 else [f"s_add_u32 m0, s{sKm}, 4096"]
            off = f" offset:{1024*q}" if q else ""
            r.append((pre, f"buffer_load_dwordx4 v{vKv+q}, s[{sK}:{sK+3}], s{sKo+grp} offen{off}{NT(cfg.kv_nt)} lds"))
    return r
def v_dma(slot):
    r = []
    for grp in range(2):
        for q in range(4):
            off = f" offset:{1024*q}" if q else ""
            r.append(([f"s_mov_b32 m0, s{sVm+2*slot+grp}"] if q == 0 else [],
                      f"buffer_load_dwordx4 v{vVv+q}, s[{sV}:{sV+3}], s{sVo+grp} offen{off}{NT(cfg.kv_nt)} lds"))
    return r
def adv(base, stride):
    m = sKmask if base == sKo else sVmask
    return [f"s_add_u32 s{base}, s{base}, s{stride}", f"s_add_u32 s{base+1}, s{base+1}, s{stride}",
            f"s_and_b32 s{base}, s{base}, s{m}", f"s_and_b32 s{base+1}, s{base+1}, s{m}"]
def flat(lst):
    out = []
    for pre, d in lst: out += pre + [d]
    return out

def place_dmas(S, lst, g, step, itf=lambda g: 0, limit=None):
    for pre, d in lst:
        gg = g
        while S.cost[S.norm(gg)] > 0: gg += 1
        if limit is not None: assert gg < limit, (gg, limit)
        for p in pre: S.put(gg - 1, Item(p, "s", itf(gg - 1)))
        S.put(gg, Item(d, "dma", itf(gg)))
        g = gg + step
    return g

def k_read(j, k16, c, base=None):
    va = (vKa + 2 * j if base is None else base) + (c & 1)
    return f"ds_read_b128 {ar(aK+16*k16+4*c,4)}, v{va} offset:{k16*4096 + (c>>1)*1024}"
def v_read(j, t, jj, slot):
    imm = LDS_V[slot] + jj * 4096 + (t >> 2) * 1024
    return f"ds_read_b64_tr_b16 {ar(aV+4*t+2*jj,2)}, v{vVa+4*j+(t&3)} offset:{imm}"

BG = PER * 7 + 16
def gen_attn_sched():
    NU = 18; N = NU * PER; CUT = 17 * PER
    S = Sched(N, periodic=True)
    tile = lambda n: UNIT_TILE[n % 9]
    kt = lambda n: UNIT_KT[n % 9]
    slot = lambda n: (n // 9) & 1
    last = lambda n: UNIT_KT[n % 9] != UNIT_KT[(n + 1) % 9] or n % 9 == 8
    for n in range(NU):
        u = n + 1; it = 1 if u == NU else 0
        for i in range(16):
            q, k16, c = i >> 3, (i >> 2) & 1, i & 3
            qt = 2 * tile(u) + q; sb = vS + 16 * (u & 1) + 8 * q + 4 * k16
            cin = vr(vNM + 4 * qt, 4) if c == 0 else vr(sb, 4)
            S.mf[PER*n + i] = Item(f"{MF} {vr(sb,4)}, {ar(aK+16*k16+4*c,4)}, {vr(vQ+16*qt+4*c,4)}, {cin}", "mf", it)
        for i in range(18):
            q, t = i // 9, i % 9
            qt = 2 * tile(n) + q; pb = vr(vP + 8 * (n & 1) + 4 * q, 4)
            if t < 8:
                o = ar(aO + 32 * qt + 4 * t, 4)
                S.mf[PER*n + 16 + i] = Item(f"{MF} {o}, {ar(aV+4*t,4)}, {pb}, {o}", "mf")
            else:
                l = vr(vL + 4 * qt, 4)
                S.mf[PER*n + 16 + i] = Item(f"{MF} {l}, {vr(vOne,4)}, {pb}, {l}", "mf")
    for n in range(1, NU + 1):
        sb = vS + 16 * (n & 1); pb = vP + 8 * (n & 1)
        itf = lambda g: 1 if (n == NU and g < N) else 0
        for j in range(16):
            g = PER * (n - 1) + cfg.e0 + 2 * j
            S.put(g, Item(f"v_exp_f32 v{sb+j}, v{sb+j}", "t", itf(g)))
            if j & 1: S.put(g + 1, Item(f"v_cvt_pk_bf16_f32 v{pb+(j>>1)}, v{sb+j-1}, v{sb+j}", "v", itf(g + 1)))
    bar = [BG, 9 * PER + BG]
    for bi, b in enumerate(bar):
        if cfg.lstamp: S.put(b, Item("s_memtime s[96:97]", "s"))
        S.put(b, Item("s_waitcnt vmcnt(8) lgkmcnt(0)", "s")); S.put(b, Item("s_barrier", "s"))
        if cfg.lstamp:
            S.put(b, Item(f"v_mov_b32 v240, s96", "s")); S.put(b, Item("s_memtime s[96:97]", "s")); S.put(b, Item("s_waitcnt lgkmcnt(0)", "s"))
            S.put(b, Item(f"v_mov_b32 v241, s96", "s"))
            S.put(b, Item(f"buffer_store_dwordx2 v[240:241], v242, s[{sX}:{sX+3}], 0 offen", "s")); S.put(b, Item(f"v_add_u32 v242, 8, v242", "s"))
        S.put(b, Item(f"SWITCH{bi}:", "s"))
    for n in range(NU):
        if last(n):
            nu = n + 1
            for t in range(8):
                for jj in range(2):
                    lo = PER*n + 16 + 9 + t; hi = lo + 15
                    if nu % 9 == 7: hi = min(hi, PER*(n+1) + 10)
                    item = Item(v_read(kt(nu), t, jj, slot(nu)), "ds")
                    g = S.put_win(lo, hi, item, pack=True)
                    if nu >= NU and g < N: item.it = 1
    for n in range(NU):
        u = n + 1
        if last(u):
            nu = u + 1; it = 1 if nu >= NU else 0
            for idx in range(8):
                lo = PER*n + 8 + idx; hi = lo + 16
                if u % 9 == 8: lo = max(lo, PER*n + 16)
                S.put_win(lo, hi, Item(k_read(kt(nu), idx >> 2, idx & 3), "ds", it), pack=True)
    for bi, b in enumerate(bar):
        g0 = b - 40
        for l in [f"s_mov_b32 s{sKt}, s{sKb}", f"s_cmp_eq_u32 s{sKb}, s{sKw}"]: S.put(g0, Item(l, "s"))
        S.put(b + 1, Item(f"s_mov_b32 s{sKm}, s{sKt}", "s"))
        S.put(g0, Item(f"s_cselect_b32 s{sKd}, s{sT3}, s{sQs}", "s"))
        S.put(g0 + 1, Item(f"s_add_u32 s{sKb}, s{sKb}, s{sKd}", "s"))
        for i in range(8): S.put_win(g0 + 2, b - 1, Item(f"v_add_u32 v{vKa+i}, s{sKd}, v{vKa+i}", "v"), pack=True)
        itf = lambda g: 1 if (bi == 1 and g < N) else 0
        lv = v_dma(bi); lk = k_dma()
        lv[0] = (adv(sVo, sVs) + lv[0][0], lv[0][1]); lk[0] = (adv(sKo, sKs) + lk[0][0], lk[0][1])
        st0 = (b + 2) if bi == 0 else CUT + 1
        lim = b + 9 * PER - 14
        step = min(cfg.dma_step, (lim - 36 - st0) / 15)
        g = st0
        for i, x in enumerate(lv + lk):
            g = place_dmas(S, [x], max(g, st0 + int(i * step)), 2, itf, limit=lim)
    if cfg.wopf:
        for i, g in enumerate(int(x) for x in cfg.pfpos.split(",")):
            place_dmas(S, [([f"s_add_u32 s{sPfo}, s{sPfo}, {(32 << cfg.pfsh) if cfg.pfsh else 262144 // len(cfg.pfpos.split(','))}", f"s_xor_b32 s{sPfx}, s{sPfo}, s{sPfr}"], f"buffer_load_dword v{vPfd}, v{vPfo}, s[{sD}:{sD+3}], s{sPfx} offen{NT(cfg.pf_nt)} ; pf{i}")], g, 1)
    for bi, b in enumerate(bar):
        n = 0; g = b - 1
        while True:
            its = [x for x in S.gap[g % N] if x.kind == "dma"]
            if its and f"s[{sV}:{sV+3}]" in its[0].text: break
            n += len(its); g -= 1
        for x in S.gap[b]:
            if "vmcnt(8)" in x.text: x.text = x.text.replace("vmcnt(8)", f"vmcnt({n})")
    return S, bar

def kv_setup(e, t):
    r8, p8, tA, tB, tC = t, t+1, t+2, t+3, t+4
    e(f"v_lshrrev_b32 v{r8}, 3, v0"); e(f"v_and_b32 v{p8}, 7, v0"); e(f"v_lshrrev_b32 v{tA}, 1, v{r8}")
    e(f"v_xor_b32 v{tB}, v{tA}, v{p8}"); e(f"v_lshlrev_b32 v{tC}, 8, v{r8}")
    e(f"v_lshl_add_u32 v{vKv+1}, v{tB}, 4, v{tC}"); e(f"v_xor_b32 v{vKv+3}, 64, v{vKv+1}")
    e(f"v_add_u32 v{vKv}, 1024, v{vKv+1}"); e(f"v_add_u32 v{vKv+2}, 1024, v{vKv+3}")
    e(f"v_add_u32 v{vKv+1}, 128, v{vKv+1}"); e(f"v_add_u32 v{vKv+3}, 128, v{vKv+3}")
    e(f"v_lshlrev_b32 v{tB}, 1, v{tA}"); e(f"v_xor_b32 v{tB}, v{tB}, v{p8}")
    e(f"v_lshl_add_u32 v{vVv+1}, v{tB}, 4, v{tC}")
    e(f"v_add_u32 v{vVv}, 1024, v{vVv+1}"); e(f"v_add_u32 v{vVv+1}, 128, v{vVv+1}")
    e(f"v_mov_b32 v{vVv+2}, v{vVv}"); e(f"v_mov_b32 v{vVv+3}, v{vVv+1}")
    e(f"s_lshl_b32 s{sT0}, s{sB}, 5"); e(f"s_add_u32 s{sT0}, s{sT0}, s{sH}"); e(f"s_lshl_b32 s{sT0}, s{sT0}, 18")
    for s, p in ((sK, sPTR + 2), (sV, sPTR + 4)):
        e(f"s_add_u32 s{s}, s{p}, s{sT0}"); e(f"s_addc_u32 s{s+1}, s{p+1}, 0")
        e(f"s_sub_u32 s{s}, s{s}, 1024"); e(f"s_subb_u32 s{s+1}, s{s+1}, 0")
        e(f"s_mov_b32 s{s+2}, {262144+1024}"); e(f"s_mov_b32 s{s+3}, 0x20000")
    e(f"s_lshr_b32 s{sK0}, s2, 3"); e(f"s_xor_b32 s{sK0}, s{sK0}, s2"); e(f"s_and_b32 s{sK0}, s{sK0}, {cfg.krot}"); e(f"s_lshl_b32 s{sK0}, s{sK0}, 15")
    e(f"s_add_u32 s{sK0}, s{sK0}, s{sW8}"); e(f"s_mov_b32 s{sKmask}, 0x3ffff"); e(f"s_mov_b32 s{sVmask}, 0x3ffff")
    for b_ in (sKo, sVo):
        e(f"s_mov_b32 s{b_}, s{sK0}"); e(f"s_add_u32 s{b_+1}, s{sK0}, 4096")
    e(f"s_mov_b32 s{sKs}, 32768"); e(f"s_mov_b32 s{sVs}, 32768")
    e(f"s_add_u32 s{sKb}, s{sW8}, {KR[0]}"); e(f"s_mov_b32 s{sKm}, s{sKb}"); e(f"s_add_u32 s{sKw}, s{sW8}, {KR[2]}")

def att_addr(t):
    L = []; e = L.append
    tA, tB, tC, q16, kg, r4, c4, k0 = t, t+1, t+2, t+3, t+4, t+5, t+6, t+7
    e(f"v_and_b32 v{q16}, 15, v0"); e(f"v_lshrrev_b32 v{kg}, 4, v0")
    e(f"v_lshrrev_b32 v{tA}, 3, v{q16}"); e(f"v_lshlrev_b32 v{tA}, 11, v{tA}")
    e(f"v_and_b32 v{tB}, 7, v{q16}"); e(f"v_lshl_add_u32 v{tA}, v{tB}, 7, v{tA}")
    e(f"v_lshrrev_b32 v{tB}, 1, v{q16}"); e(f"v_xor_b32 v{tB}, v{tB}, v{kg}")
    e(f"v_lshl_add_u32 v{k0}, v{tB}, 4, v{tA}"); e(f"v_add_u32 v{k0}, {KR[0]}, v{k0}"); e(f"v_xor_b32 v{k0+1}, 64, v{k0}")
    n1 = len(L)
    e(f"v_bfe_u32 v{r4}, v0, 2, 2"); e(f"v_and_b32 v{c4}, 3, v0")
    e(f"v_and_b32 v{tA}, 1, v{kg}"); e(f"v_lshl_add_u32 v{tA}, v{tA}, 2, v{r4}")
    e(f"v_lshrrev_b32 v{tB}, 1, v{tA}"); e(f"v_lshlrev_b32 v{tB}, 5, v{tB}"); e(f"v_lshl_add_u32 v{tB}, v{tA}, 7, v{tB}")
    e(f"v_lshrrev_b32 v{tA}, 1, v{kg}"); e(f"v_lshl_add_u32 v{tB}, v{tA}, 11, v{tB}"); e(f"v_lshl_add_u32 v{tC}, v{c4}, 3, v{tB}")
    for j in range(4):
        e(f"s_add_u32 s{sT0}, s{sW}, {j}"); e(f"s_and_b32 s{sT0}, s{sT0}, 3"); e(f"s_lshl_b32 s{sT0}, s{sT0}, 13")
        for c in range(2): e(f"v_add_u32 v{vKa+2*j+c}, s{sT0}, v{k0+c}")
        e(f"v_add_u32 v{vVa+4*j}, s{sT0}, v{tC}")
        for k in range(1, 4): e(f"v_xor_b32 v{vVa+4*j+k}, {32*k}, v{vVa+4*j}")
    for i in range(4): e(f"v_mov_b32 v{vOne+i}, 0x3f803f80")
    return L[:n1], L[n1:], k0

def wo_voff(e, dst, t):
    r8, p8, tA, tB = t, t+1, t+2, t+3
    e(f"v_lshrrev_b32 v{r8}, 3, v0"); e(f"v_and_b32 v{p8}, 7, v0")
    e(f"v_bfe_u32 v{tA}, v{r8}, 1, 2"); e(f"v_lshlrev_b32 v{tA}, 1, v{tA}"); e(f"v_xor_b32 v{tA}, v{tA}, v{p8}")
    e(f"v_lshlrev_b32 v{tB}, 10, v{r8}"); e(f"v_lshl_add_u32 v{dst}, v{tA}, 4, v{tB}")
    for q in range(1, 4): e(f"v_add_u32 v{dst+q}, {7168*q}, v{dst}")
def wo_srd(e, s):
    e(f"s_lshl_b32 s{sT0}, s{sCg}, 7")
    e(f"s_add_u32 s{s}, s{sPTR+8}, s{sT0}"); e(f"s_addc_u32 s{s+1}, s{sPTR+9}, 0")
    e(f"s_sub_u32 s{s+2}, 4194304, s{sT0}"); e(f"s_mov_b32 s{s+3}, 0x20000")

vPfo = 243
vRa = 244
def wo_pf(e, srd, first, n):
    e(f"v_lshlrev_b32 v{vT}, 12, v0"); e(f"s_lshl_b32 s{sT0}, s{sW}, 20"); e(f"s_lshl_b32 s{sT1}, s{sRg}, 10"); e(f"s_add_u32 s{sT0}, s{sT0}, s{sT1}")
    e(f"s_add_u32 s{sT0}, s{sT0}, {first*32768}")
    for i in range(n):
        if i: e(f"s_add_u32 s{sT0}, s{sT0}, 262144")
        part = first + 8 * i + 8 > 32
        if part: e(f"s_mov_b64 exec, {(1 << (8 * (32 - first - 8 * i))) - 1:#x}")
        e(f"buffer_load_dword v{vPfd}, v{vT}, s[{srd}:{srd+3}], s{sT0} offen")
        if part: e("s_mov_b64 exec, -1")
def switch_block(bi):
    L = []; e = L.append
    e(f"s_cmp_lg_u32 s{sCnt}, {2 if bi == 1 else 1}"); e(f"s_cbranch_scc1 L_sw{bi}")
    if bi == 1:
        wo_voff(e, vKv, vT); wo_srd(e, sK); e(f"s_mov_b32 s{sKmask}, -1")
        e(f"s_and_b32 s{sR4}, s{sCg}, {cfg.orot}"); e(f"s_lshl_b32 s{sR4}, s{sR4}, 15"); e(f"s_lshl_b32 s{sT1}, s{sW}, 20"); e(f"s_or_b32 s{sR4}, s{sR4}, s{sT1}")
        if cfg.xrot: e(f"s_and_b32 s{sT1}, s2, 7"); e(f"s_lshl_b32 s{sT1}, s{sT1}, 17"); e(f"s_xor_b32 s{sR4}, s{sR4}, s{sT1}")
        e(f"s_xor_b32 s{sKs}, s{sR4}, 131072"); e(f"s_sub_u32 s{sKs}, s{sKs}, s{sR4}")
        e(f"s_sub_u32 s{sKo}, s{sR4}, s{sKs}"); e(f"s_xor_b32 s{sKo+1}, s{sR4}, 32768"); e(f"s_sub_u32 s{sKo+1}, s{sKo+1}, s{sKs}")
        kg, r4, c4, tA, tB = vT, vT+1, vT+2, vT+3, vT+4
        e(f"v_lshrrev_b32 v{kg}, 4, v0"); e(f"v_bfe_u32 v{r4}, v0, 2, 2"); e(f"v_and_b32 v{c4}, 3, v0")
        e(f"v_and_b32 v{tA}, 1, v{kg}"); e(f"v_lshl_add_u32 v{tA}, v{tA}, 2, v{r4}")
        e(f"v_lshrrev_b32 v{tB}, 1, v{tA}"); e(f"v_lshlrev_b32 v{tB}, 5, v{tB}")
        e(f"v_lshl_add_u32 v{tB}, v{tA}, 7, v{tB}"); e(f"v_lshrrev_b32 v{tA}, 1, v{kg}"); e(f"v_lshl_add_u32 v{tB}, v{tA}, 10, v{tB}")
        e(f"v_lshl_add_u32 v{tB}, v{c4}, 3, v{tB}"); e(f"v_add_u32 v{vRa}, s{sW8}, v{tB}")
        if cfg.fastred: e(f"s_lshl_b32 s{sT1}, s{sW}, 5"); e(f"v_xor_b32 v{vRa}, s{sT1}, v{vRa}")
        for nt in range(1, 4): e(f"v_xor_b32 v{vRa+nt}, {32*nt}, v{vRa}")
        for s_ in range(1, 3):
            for nt in range(4): e(f"v_add_u32 v{vRa+4*s_+nt}, {65536*s_}, v{vRa+nt}")
        e(f"v_lshlrev_b32 v10, 4, v0"); e(f"s_lshl_b32 s{sWo_}, s{sW}, 20")
        if cfg.pfcut: e(f"s_mov_b32 s{sD+2}, 0")
        if cfg.pflate:
            e(f"s_mov_b32 s{sD+2}, 4194304")
            e(f"s_lshr_b32 s{sPfo}, s2, 3"); e(f"s_lshl_b32 s{sPfo}, s{sPfo}, 13"); e(f"s_add_u32 s{sPfo}, s{sPfo}, s{sWo_}"); e(f"s_sub_u32 s{sPfo}, s{sPfo}, 262144")
    elif bi == 0:
        for q in range(4): e(f"v_mov_b32 v{vVv+q}, v{vKv+q}")
        wo_srd(e, sV); e(f"s_mov_b32 s{sVmask}, -1")
        if cfg.cpf2:
            e(f"s_getpc_b64 s[{sT0}:{sT1}]"); e("L_pc1:")
            e(f"s_add_u32 s{sT0}, s{sT0}, L_tail-L_pc1"); e(f"s_addc_u32 s{sT1}, s{sT1}, 0")
            e(f"s_lshr_b32 s{sT2}, s2, 3"); e(f"s_lshl_b32 s{sT2}, s{sT2}, 2"); e(f"s_add_u32 s{sT2}, s{sT2}, s{sW}"); e(f"s_lshl_b32 s{sT2}, s{sT2}, 6")
            e(f"v_min_u32 v{vT}, 1, v0"); e(f"v_lshlrev_b32 v{vT}, 13, v{vT}"); e(f"v_add_u32 v{vT}, s{sT2}, v{vT}")
            e(f"global_load_dword v{vPfd}, v{vT}, s[{sT0}:{sT1}]")
        e(f"s_xor_b32 s{sVo}, s{sR4}, 65536"); e(f"s_xor_b32 s{sVo+1}, s{sR4}, 98304"); e(f"s_mov_b32 s{sVs}, 0")
    e(f"L_sw{bi}:")
    L, _ = check_hazards(L, "sw", fix=True)
    return L

def gen():
    o = []; e = o.append
    e(f"{cfg.name}:")
    e("s_cmp_ge_u32 s2, 256"); e("s_cbranch_scc1 L_end")
    e(f"s_load_dwordx16 s[{sPTR}:{sPTR+15}], s[0:1], 0")
    stamp(o, 0)
    if cfg.stamp: e(f"s_memrealtime s[{sST+14}:{sST+15}]")
    e("v_lshrrev_b32 v1, 6, v0"); e("v_and_b32 v0, 63, v0"); e(f"v_readfirstlane_b32 s{sW}, v1")
    if cfg.map_bh == "b":
        e(f"s_and_b32 s{sB}, s2, 7"); e(f"s_lshr_b32 s{sH}, s2, 3")
    else:
        e(f"s_lshr_b32 s{sB}, s2, 5"); e(f"s_and_b32 s{sT0}, s2, 7"); e(f"s_lshl_b32 s{sT0}, s{sT0}, 2")
        e(f"s_bfe_u32 s{sT1}, s2, 0x20003"); e(f"s_add_u32 s{sH}, s{sT0}, s{sT1}")
    t = vT
    r8, p8, tA, tB, tC = t, t+1, t+2, t+3, t+4
    vB = vQ; vAd = vQ + 40; vXv = vQ + 60; vWv = vQ + 62; vSh = vQ + 64
    e(f"v_lshrrev_b32 v{r8}, 3, v0"); e(f"v_and_b32 v{p8}, 7, v0")
    e(f"v_lshrrev_b32 v{tA}, 1, v{r8}")
    e(f"v_and_b32 v{tB}, 1, v{tA}"); e(f"v_lshlrev_b32 v{tB}, 1, v{tB}"); e(f"v_xor_b32 v{tB}, v{tB}, v{p8}")
    e(f"v_lshlrev_b32 v{tC}, 13, v{r8}"); e(f"v_lshl_add_u32 v{vWv}, v{tB}, 4, v{tC}"); e(f"v_xor_b32 v{vWv+1}, 64, v{vWv}")
    e(f"s_and_b32 s{sT0}, s{sW}, 1"); e(f"s_lshl_b32 s{sT0}, s{sT0}, 2")
    e(f"v_xor_b32 v{tB}, v{tA}, v{p8}"); e(f"v_xor_b32 v{tC+1}, s{sT0}, v{tB}")
    e(f"v_lshlrev_b32 v{tC}, 10, v{r8}"); e(f"v_lshl_add_u32 v{vXv}, v{tC+1}, 4, v{tC}"); e(f"v_xor_b32 v{vXv+1}, 64, v{vXv}")
    e(f"s_mul_i32 s{sXo}, s{sW}, {9*8192}"); e(f"s_mul_i32 s{sXm}, s{sW}, {9*1024}")
    e(f"s_lshl_b32 s{sWo_}, s{sW}, 17"); e(f"s_lshl_b32 s{sWm}, s{sW}, 12"); e(f"s_add_u32 s{sWm}, s{sWm}, 36864")
    e(f"s_mul_i32 s{sT0}, s{sB}, 294912"); e(f"s_lshl_b32 s{sT1}, s{sH}, 8")
    e(f"s_mov_b32 s{sX+2}, 294912"); e(f"s_mov_b32 s{sX+3}, 0x20000")
    e(f"s_sub_u32 s{sWQ+2}, 4194304, s{sT1}"); e(f"s_mov_b32 s{sWQ+3}, 0x20000")
    e(f"s_add_u32 s{sRot}, s{sH}, s{sB}"); e(f"s_and_b32 s{sRot}, s{sRot}, {cfg.qrot}")
    if cfg.qx: e(f"s_and_b32 s{sXc}, s2, {cfg.qx}"); e(f"s_xor_b32 s{sRot}, s{sRot}, s{sXc}")
    e("s_waitcnt lgkmcnt(0)")
    e(f"s_add_u32 s{sX}, s{sPTR+0}, s{sT0}"); e(f"s_addc_u32 s{sX+1}, s{sPTR+1}, 0")
    e(f"s_add_u32 s{sWQ}, s{sPTR+6}, s{sT1}"); e(f"s_addc_u32 s{sWQ+1}, s{sPTR+7}, 0")
    def q_dma(c):
        r = []; sl = QSLOT[c % 3]
        for q in range(4):
            go = (q >> 1) * 65536 + (q & 1) * 128
            rot = [f"s_xor_b32 s{sXc}, s{sRot}, {c}", f"s_lshl_b32 s{sT3}, s{sXc}, 19", f"s_add_u32 s{sT3}, s{sT3}, s{sWo_}",
                   f"s_lshl_b32 s{sXc}, s{sXc}, 7", f"s_add_u32 s{sXc}, s{sXc}, s{sXo}"] if q == 0 else []
            r.append((rot + [f"s_add_u32 m0, s{sWm}, {sl + 1024*q}", f"s_add_u32 s{sT2}, s{sT3}, {go}"],
                      f"buffer_load_dwordx4 v{vWv+(q>>1)}, s[{sWQ}:{sWQ+3}], s{sT2} offen{NT(cfg.q_nt)} lds"))
        for i in range(9):
            r.append(([f"s_add_u32 m0, s{sXm}, {sl + 1024*i}", f"s_add_u32 s{sT2}, s{sXc}, {i*8192}"],
                      f"buffer_load_dwordx4 v{vXv+(i&1)}, s[{sX}:{sX+3}], s{sT2} offen{NT(cfg.q_nt)} lds"))
        return r
    o += flat(q_dma(0))
    if cfg.cpf:
        e("s_getpc_b64 s[92:93]"); e("L_pc0:")
        e(f"s_lshr_b32 s94, s2, 3"); e(f"s_lshl_b32 s94, s94, 2"); e(f"s_add_u32 s94, s94, s{sW}"); e("s_lshl_b32 s94, s94, 6")
        for i in range(cfg.cpf_n):
            e(f"s_load_dword s95, s[92:93], s94"); e("s_add_u32 s94, s94, 8192")
    e(f"s_mov_b32 s{sRedo}, 0"); e(f"s_lshl_b32 s{sW8}, s{sW}, 13")
    kv_setup(e, t)
    for sl in range(2):
        for g in range(2): e(f"s_add_u32 s{sVm+2*sl+g}, s{sW8}, {LDS_V[sl] + 4096*g}")
    e(f"s_mul_i32 s{sT0}, s{sB}, 2359296")
    e(f"s_add_u32 s{sO}, s{sPTR+14}, s{sT0}"); e(f"s_addc_u32 s{sO+1}, s{sPTR+15}, 0")
    e(f"s_mov_b32 s{sO+2}, 2359296"); e(f"s_mov_b32 s{sO+3}, 0x20000")
    e(f"s_bfe_u32 s{sRg}, s2, 0x20003"); e(f"s_lshr_b32 s{sCg}, s2, 5")
    e(f"s_lshr_b32 s{sMt}, s{sRg}, 1"); e(f"s_mul_i32 s{sMt}, s{sMt}, 9"); e(f"s_and_b32 s{sOdd}, s{sRg}, 1")
    e(f"s_mul_i32 s{sT0}, s{sOdd}, 5"); e(f"s_add_u32 s{sMt}, s{sMt}, s{sT0}")
    e(f"s_and_b32 s{sT0}, s2, 7"); e(f"s_mul_i32 s{sT0}, s{sT0}, 18"); e(f"s_add_u32 s{sMt}, s{sMt}, s{sT0}")
    q16, kg, r4, c4 = t+6, t+7, t+8, t+9
    e(f"v_and_b32 v{q16}, 15, v0"); e(f"v_lshrrev_b32 v{kg}, 4, v0"); e(f"v_bfe_u32 v{r4}, v0, 2, 2"); e(f"v_and_b32 v{c4}, 3, v0")
    e(f"v_lshrrev_b32 v{tA}, 3, v{q16}"); e(f"v_lshlrev_b32 v{tA}, 10, v{tA}")
    e(f"v_and_b32 v{tB}, 7, v{q16}"); e(f"v_lshl_add_u32 v{tA}, v{tB}, 7, v{tA}")
    e(f"v_lshrrev_b32 v{tB}, 1, v{q16}"); e(f"v_xor_b32 v{tB}, v{tB}, v{kg}")
    e(f"v_lshl_add_u32 v{vAd}, v{tB}, 4, v{tA}"); e(f"v_xor_b32 v{vAd+1}, 64, v{vAd}")
    e(f"v_add_u32 v{vAd+2}, s{sW8}, v{vAd}"); e(f"v_add_u32 v{vAd+3}, s{sW8}, v{vAd+1}")
    e(f"v_lshrrev_b32 v{tA}, 1, v{r4}"); e(f"v_and_b32 v{tB}, 1, v{kg}"); e(f"v_lshl_add_u32 v{tA}, v{tB}, 1, v{tA}")
    e(f"v_lshlrev_b32 v{tA}, 5, v{tA}"); e(f"v_lshl_add_u32 v{tA}, v{c4}, 3, v{tA}"); e(f"v_lshl_add_u32 v{tA}, v{r4}, 7, v{tA}")
    e(f"v_lshl_add_u32 v{tA}, v{kg}, 11, v{tA}"); e(f"v_add_u32 v{vAd+4}, 36864, v{tA}")
    for k in range(1, 4): e(f"v_xor_b32 v{vAd+4+k}, {32*k}, v{vAd+4}")
    e(f"s_and_b32 s{sT0}, s{sW}, 1"); e(f"s_lshl_b32 s{sT0}, s{sT0}, 6"); e(f"s_lshr_b32 s{sT1}, s{sW}, 1"); e(f"s_lshl_b32 s{sT1}, s{sT1}, 10")
    e(f"v_xor_b32 v{vAd+8}, s{sT0}, v{vAd+4}"); e(f"v_add_u32 v{vAd+8}, s{sT1}, v{vAd+8}"); e(f"v_xor_b32 v{vAd+9}, 32, v{vAd+8}")
    e(f"s_mov_b32 s{sQs}, {QSCALE:#x}")
    if cfg.wwpos:
        e(f"s_mov_b32 s{sD}, s{sPTR+8}"); e(f"s_mov_b32 s{sD+1}, s{sPTR+9}"); e(f"s_mov_b32 s{sD+2}, 4194304"); e(f"s_mov_b32 s{sD+3}, 0x20000")
        e(f"v_and_b32 v254, 31, v0"); e(f"v_lshlrev_b32 v254, 7, v254"); e(f"s_lshl_b32 s{sKt2}, s2, 14"); e(f"s_lshl_b32 s{sT1}, s{sW}, 12"); e(f"s_add_u32 s{sKt2}, s{sKt2}, s{sT1}")
    if cfg.pkq: e(f"v_mov_b32 v252, s{sQs}"); e(f"v_mov_b32 v253, s{sQs}")
    if cfg.k0pf: e("v_lshlrev_b32 v252, 7, v0"); e("v_add_u32 v252, 1024, v252")

    NQ = 16 * 36
    S = Sched(NQ)
    fA = lambda t_: aK + 4 * t_
    fB = lambda p, q: vB + 16 * p + 4 * q
    fBs = lambda q: vB + 32 + 4 * q
    acc = lambda q, t_: vAcc + 32 * q + 4 * t_
    accs = lambda qs, u: vAcc + 128 + 8 * qs + 4 * u
    def rdA(ks, t_, jj):
        ad = vAd + 10 * ((ks >> 1) & 1); s = ks & 1
        if t_ < 8: return f"ds_read_b64_tr_b16 {ar(fA(t_)+2*jj,2)}, v{ad+4+(t_&3)} offset:{s*8192+(t_>>2)*1024+jj*512}"
        return f"ds_read_b64_tr_b16 {ar(fA(t_)+2*jj,2)}, v{ad+t_} offset:{s*8192+jj*512}"
    def rdB(ks, q):
        ad = vAd + 10 * ((ks >> 1) & 1); s = ks & 1
        if q < 4: return f"ds_read_b128 {vr(fB(ks&1,q),4)}, v{ad+2+s} offset:{2048*q}"
        return f"ds_read_b128 {vr(fBs(q-4),4)}, v{ad+s} offset:{32768+2048*(q-4)}"
    for ks in range(16):
        for i in range(36):
            if i < 32: t_, q = i >> 2, i & 3; a_, A, Bf = acc(q, t_), fA(t_), fB(ks & 1, q)
            else: u, qs = (i - 32) >> 1, i & 1; a_, A, Bf = accs(qs, u), fA(8 + u), fBs(qs)
            S.mf[36*ks + i] = Item(f"{MF} {vr(a_,4)}, {ar(A,4)}, {vr(Bf,4)}, {'0' if ks == 0 else vr(a_,4)}", "mf")
    QB = 9
    for c in range(8):
        gb = 72 * c + 36 + QB
        n = (13 + (cfg.wowarm if c == 0 else 0)) if c <= 5 else (8 if c == 6 else None)
        if cfg.k0pf and c in (cfg.k0pf, cfg.k0pf + 1): n += 1
        if cfg.wwpos and c in (cfg.wwpos, cfg.wwpos + 1) and n is not None: n += 1
        if cfg.qstamp: S.put(gb, Item("s_memtime s[96:97]", "s"))
        S.put(gb, Item(f"s_waitcnt vmcnt({n}) lgkmcnt(0)" if n is not None else "s_waitcnt lgkmcnt(0)", "s"))
        S.put(gb, Item("s_barrier", "s"))
        if cfg.qstamp:
            S.put(gb, Item(f"v_mov_b32 v252, s96", "s")); S.put(gb, Item("s_memtime s[96:97]", "s")); S.put(gb, Item("s_waitcnt lgkmcnt(0)", "s"))
            S.put(gb, Item(f"v_mov_b32 v253, s96", "s"))
            S.put(gb, Item(f"buffer_store_dwordx2 v[252:253], v254, s[{sD}:{sD+3}], 0 offen", "s")); S.put(gb, Item(f"v_add_u32 v254, 8, v254", "s"))
    for ks in range(16):
        base = 36 * ks
        if ks:
            for k_, r in enumerate([rdA(ks, 8, 0), rdA(ks, 8, 1), rdB(ks, 4), rdB(ks, 5), rdA(ks, 9, 0), rdA(ks, 9, 1)]):
                S.put(base + (k_ >> 1), Item(r, "ds"))
        if ks < 15:
            lo0 = base + (QB if ks & 1 else 3)
            for q in range(4): S.put_win(lo0, base + 24, Item(rdB(ks + 1, q), "ds"))
            for t_ in range(8):
                for jj in range(2):
                    lo = max(base + 4 * t_ + 3, lo0)
                    S.put_win(lo, min(lo + 20, NQ - 1), Item(rdA(ks + 1, t_, jj), "ds"))
    for c in range(8):
        gb = 72 * c + 36 + QB
        if c + 3 < 8: lst = q_dma(c + 3)
        elif c == 5: lst = k_dma()
        elif c == 6: lst = v_dma(0)
        else:
            lst = k_dma(); lst[0] = (adv(sKo, sKs) + [f"s_add_u32 s{sKm}, s{sW8}, {KR[1]}"] + lst[0][0], lst[0][1])
            if cfg.k1pos: k1l = lst; lst = []
        if cfg.wwpos and c == cfg.wwpos - 1:
            lst = lst + [([], f"buffer_load_dword v{vPfd}, v254, s[{sD}:{sD+3}], s{sKt2} offen")]
        if cfg.k0pf and c == cfg.k0pf - 1:
            lst = lst + [([], f"buffer_load_dword v{vPfd}, v252, s[{sK}:{sK+3}], s{sKo} offen nt")]
        place_dmas(S, lst, gb + 2, (cfg.qstep - (len(lst) > 13)) if c < 7 else 3, limit=min(gb + 72, NQ))
    place_dmas(S, q_dma(2), 1, 2, limit=36 + QB)
    for c in range(7):
        d = QSLOT[(c + 1) % 3] - QSLOT[c % 3]
        for k in range(10):
            S.put_win(72 * c + 4, 72 * c + 40, Item(f"v_add_u32 v{vAd+10*((c+1)&1)+k}, {d & 0xffffffff:#x}, v{vAd+10*(c&1)+k}", "v"))
    g = 0
    for i in range(192): g = S.put_win(g, NQ - 1, Item(f"v_accvgpr_write_b32 a{i}, 0", "v"))
    sys.stderr.write(f"qproj gaps over cap: {sum(c > CAP for c in S.cost)}\n")
    o += flat(q_dma(1))
    if cfg.qstamp:
        e(f"s_add_u32 s{sD}, s{sPTR+14}, 0x4100000"); e(f"s_addc_u32 s{sD+1}, s{sPTR+15}, 0"); e(f"s_mov_b32 s{sD+2}, 0x100000"); e(f"s_mov_b32 s{sD+3}, 0x20000")
        e(f"s_lshl_b32 s{sT0}, s2, 2"); e(f"s_add_u32 s{sT0}, s{sT0}, s{sW}"); e(f"s_lshl_b32 s{sT0}, s{sT0}, 6"); e(f"v_mov_b32 v254, s{sT0}")
    if cfg.wowarm:
        e(f"s_mov_b32 s{sD}, s{sPTR+8}"); e(f"s_mov_b32 s{sD+1}, s{sPTR+9}"); e(f"s_mov_b32 s{sD+2}, 4194304"); e(f"s_mov_b32 s{sD+3}, 0x20000")
        e(f"v_and_b32 v{tA}, 31, v0"); e(f"v_lshlrev_b32 v{tA}, 7, v{tA}"); e(f"s_lshl_b32 s{sT0}, s2, 14"); e(f"s_lshl_b32 s{sT1}, s{sW}, 12"); e(f"s_add_u32 s{sT0}, s{sT0}, s{sT1}")
        e(f"buffer_load_dword v{vPfd}, v{tA}, s[{sD}:{sD+3}], s{sT0} offen")
    e(f"s_waitcnt vmcnt({13 + cfg.wowarm}) lgkmcnt(0)"); e("s_barrier")
    stamp(o, 1)
    first = [rdA(0, 0, 0), rdA(0, 0, 1)] + [rdB(0, q) for q in range(4)] + [rdA(0, t_, jj) for t_ in range(1, 10) for jj in range(2)] + [rdB(0, 4), rdB(0, 5)]
    for g, k, l in lgkm_waits([(-2, "ds", r) for r in first] + S.linear(0, NQ)): e(l)
    stamp(o, 2)
    def cvt_frag(src, dst):
        L = [f"v_mul_f32 v{src+i}, s{sQs}, v{src+i}" for i in range(8)]
        if cfg.pkq: L = [x for i in range(4) for x in (f"v_pk_mul_f32 {vr(src+2*i,2)}, {vr(src+2*i,2)}, v[252:253]", None)]
        L += [f"v_cvt_pk_bf16_f32 v{dst+i}, v{src+2*i}, v{src+2*i+1}" for i in range(4)]
        W = [f"v_permlane32_swap_b32 v{dst}, v{dst+2}", f"v_permlane32_swap_b32 v{dst+1}, v{dst+3}",
             f"v_permlane16_swap_b32 v{dst}, v{dst+2}", f"v_permlane16_swap_b32 v{dst+1}, v{dst+3}"]
        return L, W
    own = [(acc(q, 2 * c), vQ + 16 * q + 4 * c) for c in range(4) for q in range(4)]
    frs = own[:2] + [(accs(0, 0), vSh), (accs(1, 0), vSh + 4)] + own[2:]
    pendW = []
    for idx, (s_, d_) in enumerate(frs):
        L, W = cvt_frag(s_, d_)
        o += [x for x in L[:4] + pendW[:2] + L[4:8] + pendW[2:] + L[8:] if x]
        pendW = W
        if cfg.k1pos and idx >= 2 and idx % 2 == 0: o += flat([k1l.pop(0)])
        if idx == 4:
            e(f"v_lshlrev_b32 v10, 4, v0"); e(f"s_lshl_b32 s{sT0}, s{sW}, 10"); e(f"s_add_u32 s{sT0}, s{sT0}, {LDS_EX}")
            e(f"v_add_u32 v11, s{sT0}, v10"); e(f"v_add_u32 v10, {LDS_EX}, v10")
            e(f"ds_write_b128 v11, {vr(vSh,4)}"); e(f"ds_write_b128 v11, {vr(vSh+4,4)} offset:4096")
    o += pendW
    a1, a2, k0 = att_addr(vT)
    o += a1
    e("s_waitcnt vmcnt(8) lgkmcnt(0)"); e("s_barrier")
    for c in range(4): e(k_read(0, 0, c, base=k0))
    for i in range(8): e(f"ds_read_b128 {vr(vQ+64+4*i,4)}, v10 offset:{1024*i}")
    if cfg.dump_q:
        e("s_waitcnt lgkmcnt(0)")
        e(f"v_lshlrev_b32 v{tB}, 4, v0"); e(f"s_lshl_b32 s{sT0}, s{sH}, 2"); e(f"s_add_u32 s{sT0}, s{sT0}, s{sW}"); e(f"s_mul_i32 s{sT0}, s{sT0}, {18*1024}")
        for i in range(18):
            e(f"buffer_store_dwordx4 {vr(vQ+4*i,4)}, v{tB}, s[{sO}:{sO+3}], s{sT0} offen"); e(f"s_add_u32 s{sT0}, s{sT0}, 1024")
        e("s_waitcnt vmcnt(0)"); e("s_endpgm")
    def negm(E, srcs):
        tm = [vS + qt for qt in range(6)]
        for qt in range(6): E(f"v_mov_b32 v{tm[qt]}, v{srcs[qt]}")
        for qt in range(6): E(f"v_permlane32_swap_b32 v{srcs[qt]}, v{tm[qt]}")
        for qt in range(6): E(f"v_max_f32 v{srcs[qt]}, v{srcs[qt]}, v{tm[qt]}")
        for qt in range(6): E(f"v_mov_b32 v{tm[qt]}, v{srcs[qt]}")
        for qt in range(6): E(f"v_permlane16_swap_b32 v{srcs[qt]}, v{tm[qt]}")
        for qt in range(6): E(f"v_max_f32 v{srcs[qt]}, v{srcs[qt]}, v{tm[qt]}")
        for qt in range(6):
            for i in range(4): E(f"v_sub_f32 v{vNM+4*qt+i}, 0, v{srcs[qt]}")
    o += a2[:10]; a2 = a2[10:]
    e("s_waitcnt lgkmcnt(8)")
    mx = [vS + 8 + qt for qt in range(6)]
    for qt in range(6):
        if qt == 4: e("s_waitcnt lgkmcnt(0)")
        nb = vNM + 4 * qt
        for c in range(4):
            e(f"{MF} {vr(nb,4)}, {ar(aK+4*c,4)}, {vr(vQ+16*qt+4*c,4)}, {'0' if c == 0 else vr(nb,4)}")
            if qt >= 2 and c == 1:
                p = vNM + 4 * (qt - 2); e(f"v_max3_f32 v{mx[qt-2]}, v{p}, v{p+1}, v{p+2}"); e(f"v_max_f32 v{mx[qt-2]}, v{mx[qt-2]}, v{p+3}")
            else:
                nv = 0
                while a2 and nv < 2:
                    l = a2.pop(0); e(l); nv += l.startswith("v_")
    o += a2
    for qt in (4, 5):
        p = vNM + 4 * qt; e(f"v_max3_f32 v{mx[qt]}, v{p}, v{p+1}, v{p+2}"); e(f"v_max_f32 v{mx[qt]}, v{mx[qt]}, v{p+3}")
    negm(e, mx)
    e("s_barrier")
    e("L_att:")
    for i in range(24): e(f"v_mov_b32 v{vL+i}, 0")
    e(f"s_mov_b32 s{sCnt}, 4"); e(f"s_mov_b32 s{sT3}, 65536"); e(f"s_mov_b32 s{sQs}, {(-32768) & 0xffffffff:#x}")
    e(f"s_add_u32 s{sKm}, s{sW8}, {KR[2]}")
    e(f"s_mov_b32 s{sD}, s{sPTR+8}"); e(f"s_mov_b32 s{sD+1}, s{sPTR+9}"); e(f"s_mov_b32 s{sD+2}, 4194304"); e(f"s_mov_b32 s{sD+3}, 0x20000")
    npf = len(cfg.pfpos.split(",")); sh = cfg.pfsh or {1: 13, 2: 12, 4: 11, 8: 10}[npf]
    e(f"s_lshr_b32 s{sPfo}, s2, 3"); e(f"s_lshl_b32 s{sPfo}, s{sPfo}, {sh}"); e(f"s_lshl_b32 s{sT0}, s{sW}, 20"); e(f"s_add_u32 s{sPfo}, s{sPfo}, s{sT0}")
    e(f"s_sub_u32 s{sPfo}, s{sPfo}, {32 << sh}")
    e(f"s_and_b32 s{sPfr}, s2, {(6 if cfg.pflate else 7) if cfg.xrot else 0}"); e(f"s_lshl_b32 s{sPfr}, s{sPfr}, 17")
    if cfg.pfk == 1:
        e(f"s_mov_b32 s{sD}, s{sPTR+2}"); e(f"s_mov_b32 s{sD+1}, s{sPTR+3}")
    if cfg.pfk == 2:
        e(f"s_mov_b32 s{sD}, s{sX}"); e(f"s_mov_b32 s{sD+1}, s{sX+1}"); e(f"s_mov_b32 s{sD+2}, 294912"); e(f"s_and_b32 s{sPfo}, s{sPfo}, 0xffff")
    if cfg.pfk == 3 or cfg.pflate:
        e(f"s_mov_b32 s{sD+2}, 0")
    e(f"v_and_b32 v{vPfo}, {(1 << (sh - 7)) - 1}, v0"); e(f"v_lshlrev_b32 v{vPfo}, 7, v{vPfo}")
    stamp(o, 3)
    if cfg.lstamp:
        e(f"s_add_u32 s{sX}, s{sPTR+14}, 0x4100000"); e(f"s_addc_u32 s{sX+1}, s{sPTR+15}, 0"); e(f"s_mov_b32 s{sX+2}, 0x100000"); e(f"s_mov_b32 s{sX+3}, 0x20000")
        e(f"s_lshl_b32 s{sT0}, s2, 2"); e(f"s_add_u32 s{sT0}, s{sT0}, s{sW}"); e(f"s_lshl_b32 s{sT0}, s{sT0}, 6"); e(f"v_mov_b32 v242, s{sT0}")
    A, bar = gen_attn_sched()
    N = A.n; CUT = 17 * PER
    pro = lgkm_waits(A.linear(bar[1], N, keep=lambda it: it == 1), slack=100)
    pl, _ = check_hazards([l for g, k, l in pro], "pro", fix=True)
    o += pl
    e("s_waitcnt lgkmcnt(0)")
    body = A.linear(0, N)
    two = lgkm_waits(body + [(10**6, "x", "MARK:")] + [(g + N, k, l) for g, k, l in body] + [(2 * N, "mf", body[0][2])])
    k_ = [i for i, x in enumerate(two) if x[2] == "MARK:"][0]
    body2 = [(g - N, k, l) for g, k, l in two[k_+1:-1]]
    e("L_loop:")
    bl = []
    for g, k, l in body2:
        if g == CUT and k == "mf": bl.append("s_cbranch_scc1 L_tail")
        if l.startswith("SWITCH"): bl += switch_block(int(l[6])); continue
        bl.append(l)
        if g == CUT - 1 and k == "mf": bl += [f"s_sub_u32 s{sCnt}, s{sCnt}, 1", f"s_cmp_eq_u32 s{sCnt}, 0"]
    ci = bl.index(f"s_cmp_eq_u32 s{sCnt}, 0"); bi_ = bl.index("s_cbranch_scc1 L_tail")
    assert not any("scc" in Ins(x).w for x in bl[ci+1:bi_]), bl[ci:bi_]
    bl.append("s_branch L_loop")
    nosw = [l for g, k, l in body2 if not l.startswith("SWITCH")]
    _, bad = check_hazards(pl[-30:] + nosw + nosw, "loop"); assert bad == 0 or cfg.lstamp
    _, bad = check_hazards(bl[:-1], "loop+switch"); assert bad == 0 or cfg.lstamp
    o += bl
    ep = []; hist = []
    def E(l, tag=None):
        if cfg.nost and tag == "st" and (cfg.nost == 1 or len([x for x in hist if x == "st"]) % 2): l = l.replace(f"s[{sO}:{sO+3}]", f"s[{sWQ}:{sWQ+3}]")
        ep.append(l)
        if Ins(l).kind in ("vmem", "dma", "vstore"): hist.append(tag)
    def vwait(tag):
        last = max(i for i, x in enumerate(hist) if x == tag)
        n = sum(1 for x in hist[last+1:] if x != "sig")
        return f"s_waitcnt vmcnt({min(63, n)})"
    vwait1 = vwait
    LS = [KR[2], KR[2] + 4096, LDS_V[0], LDS_V[0] + 4096, KR[0], KR[0] + 4096, LDS_V[1], LDS_V[1] + 4096, KR[1], KR[1] + 4096]
    RS = [("a", 192), ("a", 208), ("a", 224), ("a", 240), ("v", 156), ("v", 172), ("v", 188), ("v", 204),
          ("a", 128), ("a", 144), ("a", 160), ("a", 176), ("v", 12), ("v", 28), ("v", 44), ("v", 60), ("a", 112)]
    LSOF = [0, 1, 2, 3, 4, 5, 0, 1, 2, 4, 5, 0, 1, 3, 6, 7, 8, 9, 2, 4, 5, 0, 1, 3, 6, 7, 8, 9, 2, 4, 5, 0]
    NR = len(RS); NB = 5
    aRing = 0; vOo = 5; vR = 236; vLn = 10; vZ = 11
    ac2 = lambda i: 108 + 4 * i if i < 12 else 76 + 4 * (i - 12)
    def rreg(step, nt, jj=None):
        k, b = RS[step % NR]; f = vr if k == "v" else ar
        return f(b + 4 * nt, 4) if jj is None else f(b + 4 * nt + 2 * jj, 2)
    def tr_reads(step):
        a = LS[LSOF[step]]; s_ = a >> 16
        return [f"ds_read_b64_tr_b16 {rreg(step, nt, jj)}, v{vRa+4*s_+nt} offset:{(a & 0xffff) + 2048*jj} ; wo step {step}" for nt in range(4) for jj in range(2)]
    def wo_dma(step):
        return [(([f"s_add_u32 m0, s{sW8}, {LS[LSOF[step]]}", f"s_xor_b32 s{sT2}, s{sR4}, {32768*step}"] if q == 0 else []),
                 f"buffer_load_dwordx4 v{vKv+q}, s[{sK}:{sK+3}], s{sT2} offen offset:{1024*q}{NT(cfg.wo_nt)} lds ; wo step {step}") for q in range(4)]
    def emit_dma(step):
        for l in flat(wo_dma(step)): E(l, ("w", step))
    def emit_tr(step):
        if step >= 6: E(vwait(("w", step)))
        for l in tr_reads(step): E(l)
    E("L_tail:")
    E("s_waitcnt lgkmcnt(0)")
    tail = [(k, l) for g, k, l in A.linear(CUT, N, keep=lambda it: it == 0)]
    extra = [[r] for r in []]
    t01 = tr_reads(0) + tr_reads(1)
    d67 = ["s_waitcnt lgkmcnt(0)"] + flat(wo_dma(6)) + flat(wo_dma(7))
    nm = 0
    for k, l in tail:
        E(l)
        if k == "mf":
            nm += 1
            if nm <= 8: E(t01[2*nm-2]); E(t01[2*nm-1])
            elif nm >= 11:
                while d67:
                    x = d67.pop(0); E(x, ("w", int(x.split()[-1])) if "wo step" in x else None)
                    if "wo step" in x: break
    assert not d67
    stamp(ep, 4)
    sys.stderr.write(f"attn gaps over cap: {sum(c > CAP for c in A.cost)}; empty {sum(c == 0 for c in A.cost)}\n")
    T = vT
    if cfg.nost: E(f"s_mov_b32 s{sWQ+2}, 0")
    vF = 242
    E(f"s_lshl_b32 s{sT0}, s{sW}, 19"); E(f"s_lshl_b32 s{sT1}, s{sH}, 12"); E(f"s_add_u32 s{sT0}, s{sT0}, s{sT1}")
    E(f"s_lshl_b32 s{sT2}, s{sW}, 14"); E(f"s_and_b32 s{sT3}, s{sW}, 2"); E(f"s_lshl_b32 s{sT3}, s{sT3}, 14"); E(f"s_add_u32 s{sT2}, s{sT2}, s{sT3}")
    E(f"s_add_u32 s{sT2}, s{sT2}, {LDS_V[1]}"); E(f"v_add_u32 v{T+3}, s{sT2}, v{vLn}")
    assert LDS_V[1] + 65536 == KR[1]
    E("s_waitcnt vmcnt(8)")
    emit_tr(3)
    for qt in range(4): E(f"v_rcp_f32 v{vR+qt}, v{vL+4*qt}")
    pw = [f"ds_write_b128 v{T+3}, {ar(aO+128+4*i,4)} offset:{1024*i}" for i in range(16)]
    chk = [f"s_mov_b32 s{sT3}, {LTHRESH:#x}",
           f"v_add_f32 v{T}, v{vL}, v{vL+4}", f"v_add_f32 v{T+1}, v{vL+8}, v{vL+12}", f"v_add_f32 v{T+2}, v{vL+16}, v{vL+20}",
           f"v_add_f32 v{T}, v{T}, v{T+1}", f"v_add_f32 v{T}, v{T}, v{T+2}", f"v_cmp_nge_f32 vcc, s{sT3}, v{T}",
           f"v_lshlrev_b32 v{vF}, 2, v0", f"v_add_u32 v{vF}, {LS[3]}, v{vF}", f"v_add_u32 v{T+1}, s{sW8}, v{vF}",
           f"s_cmp_lg_u64 vcc, 0", f"s_cselect_b32 s{sT3}, 1, 0", f"v_mov_b32 v{T+2}, s{sT3}",
           "s_waitcnt lgkmcnt(15)",
           f"ds_write_b32 v{T+1}, v{vL+16}", f"ds_write_b32 v{T+1}, v{vL+20} offset:256", f"ds_write_b32 v{T+1}, v{T+2} offset:512"]
    fl = 220; sp = 12
    def pk(b, r):
        return f"v_pk_mul_f32 {vr(b,2)}, {vr(b,2)}, {vr(r & ~1,2)} op_sel:[0,{r & 1}] op_sel_hi:[1,{r & 1}]"
    DM = {int(x): [8 + i] for i, x in enumerate(cfg.dm.split(","))} if cfg.dm else {}
    ND = 8 + len(DM)
    TR = {k_ + cfg.trlag: v_[0] for k_, v_ in DM.items() if k_ + cfg.trlag < 16 and v_[0] <= 10}
    for k in range(16):
        qt, kc = k >> 2, k & 3
        b0 = 108 + 12 * (k % 2)
        if k == 2:
            E("s_waitcnt lgkmcnt(0)"); E("s_barrier")
            for wv in range(4):
                for j in range(3): E(f"ds_read_b32 v{fl+4*j+wv}, v{vF} offset:{8192*wv+256*j}")
        if k == 3:
            E("s_waitcnt lgkmcnt(0)")
            E(f"v_or_b32 v{fl+8}, v{fl+8}, v{fl+9}"); E(f"v_or3_b32 v{fl+8}, v{fl+8}, v{fl+10}, v{fl+11}")
            for j in range(2):
                b_ = fl + 4 * j
                E(f"v_add_f32 v{b_}, v{b_}, v{b_+1}"); E(f"v_add_f32 v{b_+2}, v{b_+2}, v{b_+3}"); E(f"v_add_f32 v{b_}, v{b_}, v{b_+2}")
            E(f"v_readfirstlane_b32 s{sT2}, v{fl+8}")
            E(f"v_rcp_f32 v{vR+4}, v{fl}"); E(f"v_rcp_f32 v{vR+5}, v{fl+4}")
            E(f"s_lshl_b32 s{sT3}, s{sW}, 11"); E(f"s_add_u32 s{sT3}, s{sT3}, {LDS_V[1]}"); E(f"v_add_u32 v{T}, s{sT3}, v{vLn}"); E(f"v_add_u32 v{T+1}, 65536, v{T}")
            E(f"s_andn2_b32 s{sT2}, s{sT2}, s{sRedo}"); E(f"s_cmp_lg_u32 s{sT2}, 0"); E("s_cbranch_scc1 L_fallback")
            for wv in range(4):
                for qs in range(2):
                    for u in range(2):
                        E(f"ds_read_b128 {vr(sp+16*wv+8*qs+4*u,4)}, v{T+(wv>>1)} offset:{16384*(wv&1)+8192*qs+1024*u}")
            E(vwait(("w", 7)))
            for l in tr_reads(6) + tr_reads(7): E(l)
        if k == 4: E("s_waitcnt lgkmcnt(0)"); E("s_barrier")
        for st in DM.get(k, []): emit_dma(st)
        if k in TR: emit_tr(TR[k])
        for i in range(8):
            E(f"v_accvgpr_read_b32 v{b0+i}, a{aO+32*qt+8*kc+i}")
            if k < 2: E(pw.pop(0))
        for i in range(4): E(pk(b0 + 2 * i, vR + qt))
        for i in range(4): E(f"v_cvt_pk_bf16_f32 v{b0+8+i}, v{b0+2*i}, v{b0+2*i+1}")
        E(f"buffer_store_dwordx4 {vr(b0+8,4)}, v{vLn}, s[{sO}:{sO+3}], s{sT0} offen offset:{1024*kc}{cfg.st_sc}", "st")
        if kc == 3 and qt < 3: E(f"s_add_u32 s{sT0}, s{sT0}, 131072")
        if k == 1:
            for l in chk: E(l)
            for st in (2, 4, 5): emit_tr(st)
        if k == 5:
            for i in range(0, 16, 2):
                E(f"v_pk_add_f32 {vr(sp+i,2)}, {vr(sp+i,2)}, {vr(sp+16+i,2)}"); E(f"v_pk_add_f32 {vr(sp+32+i,2)}, {vr(sp+32+i,2)}, {vr(sp+48+i,2)}")
            for i in range(0, 16, 2): E(f"v_pk_add_f32 {vr(sp+i,2)}, {vr(sp+i,2)}, {vr(sp+32+i,2)}")
            for i in range(0, 16, 2): E(pk(sp + i, vR + 4 + (i >> 3)))
            for i in range(8): E(f"v_cvt_pk_bf16_f32 v{sp+64+i}, v{sp+2*i}, v{sp+2*i+1}")
            E(f"s_lshl_b32 s{sT3}, s{sW}, 10"); E(f"s_add_u32 s{sT3}, s{sT3}, s{sT1}"); E(f"s_add_u32 s{sT3}, s{sT3}, {16*131072}")
            E(f"buffer_store_dwordx4 {vr(sp+64,4)}, v{vLn}, s[{sO}:{sO+3}], s{sT3} offen{cfg.st_sc}", "st"); E(f"s_add_u32 s{sT3}, s{sT3}, 131072")
            E(f"buffer_store_dwordx4 {vr(sp+68,4)}, v{vLn}, s[{sO}:{sO+3}], s{sT3} offen{cfg.st_sc}", "st")
    stamp(ep, 5)
    for st in range(ND, ND + cfg.npost): emit_dma(st)
    ND += cfg.npost
    E(f"s_mov_b32 s{sD}, s{sPTR+12}"); E(f"s_mov_b32 s{sD+1}, s{sPTR+13}"); E(f"s_mov_b32 s{sD+2}, 256"); E(f"s_mov_b32 s{sD+3}, 0x20000")
    E(f"s_lshl_b32 s{sT0}, s{sMt}, 17"); E(f"s_add_u32 s{sX}, s{sPTR+14}, s{sT0}"); E(f"s_addc_u32 s{sX+1}, s{sPTR+15}, 0")
    E(f"s_lshl_b32 s{sT0}, s{sOdd}, 17"); E(f"s_sub_u32 s{sX+2}, {5*131072}, s{sT0}"); E(f"s_mov_b32 s{sX+3}, 0x20000")
    E(f"s_lshl_b32 s{sT0}, s{sMt}, 14"); E(f"s_add_u32 s{sWQ}, s{sPTR+10}, s{sT0}"); E(f"s_addc_u32 s{sWQ+1}, s{sPTR+11}, 0")
    E(f"s_lshl_b32 s{sT0}, s{sOdd}, 14"); E(f"s_sub_u32 s{sWQ+2}, {5*16384}, s{sT0}"); E(f"s_mov_b32 s{sWQ+3}, 0x20000")
    E(f"v_mov_b32 v{vZ}, 0"); E(f"v_mov_b32 v{T}, 1"); E(f"v_mov_b32 v{vOo}, v{vLn}")
    for i in range(1, 5): E(f"v_add_u32 v{vOo+i}, {131072*i}, v{vLn}")
    vPo = T + 1; vPd = T + 2
    E(f"v_lshrrev_b32 v{vPo}, 3, v0"); E(f"v_lshlrev_b32 v{vPo}, 17, v{vPo}"); E(f"v_and_b32 v{T+3}, 7, v0"); E(f"v_lshl_add_u32 v{vPo}, v{T+3}, 7, v{vPo}")
    sSo, sPo = sXo, sXm
    assert not cfg.opf
    E(f"s_lshr_b32 s{sPo}, s{sR4}, 5")
    E(f"s_lshl_b32 s{sT0}, s{sB}, 5"); E(f"s_and_b32 s{sT1}, s2, 7"); E(f"s_lshl_b32 s{sT1}, s{sT1}, 5")
    E(vwait("st")); E("s_barrier")
    E(f"s_cmp_lg_u32 s{sW}, 0"); E("s_cbranch_scc1 L_nosig")
    E("s_mov_b64 exec, 1"); ep.append(f"buffer_atomic_add v{T}, v{vZ}, s[{sD}:{sD+3}], s{sT0} offen")
    if cfg.epoll: ep.append(f"buffer_load_dword v{T+3}, v{vZ}, s[{sD}:{sD+3}], s{sT1} offen sc1")
    E("s_mov_b64 exec, -1")
    E("L_nosig:")
    hist.append("sig")
    stamp(ep, 6)
    done = set(range(8)) | set(TR.values())
    nxt = ND
    def refill():
        nonlocal nxt
        while nxt <= 26 and (nxt <= 17 or nxt - 10 in settled): emit_dma(nxt); nxt += 1
    settled = set(done); E("s_waitcnt lgkmcnt(0)"); refill()
    prev = None
    for st in range(8, 17):
        if st in done: continue
        emit_tr(st)
        if prev is not None: E("s_waitcnt lgkmcnt(8)"); settled.add(prev); refill()
        prev = st
    E("s_waitcnt lgkmcnt(0)"); settled.add(prev); refill()
    assert nxt == 27
    assert ND <= 16
    stamp(ep, 7)
    E(f"s_cmp_lg_u32 s{sW}, 0"); E("s_cbranch_scc1 L_ready")
    E(f"s_mov_b32 s{sCnt}, 0x40000")
    if cfg.epoll:
        E(f"v_readfirstlane_b32 s{sT0}, v{T+3}"); E(f"s_cmp_ge_u32 s{sT0}, 32"); E("s_cbranch_scc1 L_ready")
    if cfg.poll1: E("s_mov_b64 exec, 1")
    E("L_poll:")
    ep.append(f"buffer_load_dword v{T+3}, v{vZ}, s[{sD}:{sD+3}], s{sT1} offen sc1")
    E("s_waitcnt vmcnt(0)"); E(f"v_readfirstlane_b32 s{sT0}, v{T+3}")
    E(f"s_sub_u32 s{sCnt}, s{sCnt}, 1"); E(f"s_cmp_eq_u32 s{sCnt}, 0"); E("s_cbranch_scc1 L_got")
    E(f"s_cmp_ge_u32 s{sT0}, 32"); E("s_cbranch_scc1 L_got")
    E(f"s_sleep {cfg.sleep}"); E("s_branch L_poll")
    E("L_got:"); E("s_mov_b64 exec, -1")
    E("L_ready:")
    E("s_barrier")
    stamp(ep, 8); stamp(ep, 5, True)
    def o_loads(st):
        r = []
        for i in range(5):
            pre = [f"s_xor_b32 s{sSo}, s{sPo}, {1024*st}"] if i == 0 else []
            r.append((pre, f"buffer_load_dwordx4 {ar(aRing+20*(st % NB)+4*i,4)}, v{vOo+i}, s[{sX}:{sX+3}], s{sSo} offen{cfg.ld_sc} ; o step {st}"))
        return r
    def o_pf(g): return [(([f"s_add_u32 s{sPo}, s{sPo}, 8192"] if g else []), f"buffer_load_dword v{vPd}, v{vPo}, s[{sX}:{sX+3}], s{sPo} offen{cfg.ld_sc} ; prefetch {g}")]
    LA = cfg.ola
    for st in range(LA):
        for i, x in enumerate(o_loads(st)):
            for l in flat([x]): E(l, ("o", st, i))
        if cfg.opf and st in (1, 3):
            for l in flat(o_pf(st >> 1)): E(l, "pf")
    SO = Sched(640); tags = {}
    TM = 28 if cfg.fastred else 32
    order = [(st, i >> 2, i & 3) for st in range(TM) for i in range(20)] + [(st, tl_, nt) for tl_ in range(5) for st in range(TM, 32) for nt in range(4)]
    for g, (st, tl_, nt) in enumerate(order):
        a_ = vr(ac2(4 * tl_ + nt), 4)
        SO.mf[g] = Item(f"{MF} {a_}, {rreg(st, nt)}, {ar(aRing+20*(st % NB)+4*tl_,4)}, {'0' if st == 0 else a_} ; o step {st} tile {tl_}", "mf")
    for st in range(1, 16):
        for k_, r in enumerate(tr_reads(st + 16)):
            SO.put(20 * st + 12 + (k_ >> 1), Item(r, "ds"))
            if k_ == 0: tags[r] = ("need", ("w", st + 16))
    for st in range(min(TM, 32)):
        g0 = 20 * st; lst = []
        if st + LA < TM: lst += [(p, d, ("o", st + LA, i)) for i, (p, d) in enumerate(o_loads(st + LA))]
        if 2 <= st <= 6:
            w_ = wo_dma(st + 25); w_[0] = (["s_waitcnt lgkmcnt(0)"] + w_[0][0], w_[0][1])
            lst = lst + [(p, d, ("w", st + 25)) for p, d in w_]
        g = g0 + (1 if st == 0 else 0)
        for p, d, tg in lst:
            tags[d] = ("prov", tg)
            g = place_dmas(SO, [(p, d)], g, cfg.ostep, limit=g0 + 21)
    tA, tB, va, vx = T + 3, T + 4, T + 5, 220
    if cfg.fastred:
        sS4 = [sKo, sKo + 1, sVo, sVo + 1]
        for j in range(4): SO.put(20 * 20 + j, Item(f"s_xor_b32 s{sS4[j]}, s{sPo}, {1024*(TM+j)}", "s"))
        g = 20 * (TM - LA)
        for tl_ in range(5):
            for j in range(4):
                st = TM + j
                d = f"buffer_load_dwordx4 {ar(aRing+20*(st % NB)+4*tl_,4)}, v{vOo+tl_}, s[{sX}:{sX+3}], s{sS4[j]} offen{cfg.ld_sc} ; o step {st} tile {tl_}"
                lo = max(g, 20 * (st - NB) + 4 * tl_ + 4)
                tags[d] = ("prov", ("o", st, tl_))
                g = place_dmas(SO, [([], d)], lo, 4 if (4 * tl_ + j) % 5 == 4 else 4, limit=20 * TM + 16 * tl_ + 4 * j - 12)
        SO.put(20 * 21, Item("s_waitcnt lgkmcnt(0)", "s")); SO.put(20 * 21, Item("s_barrier", "s"))
        ad = [f"s_xor_b32 s{sT0}, s{sW}, 1", f"s_mul_i32 s{sT0}, s{sT0}, 15360", f"v_add_u32 v{vx}, s{sT0}, v{vLn}",
              f"s_xor_b32 s{sT0}, s{sW}, 2", f"s_mul_i32 s{sT0}, s{sT0}, 15360", f"v_add_u32 v{vx+1}, s{sT0}, v{vLn}",
              f"s_xor_b32 s{sT0}, s{sW}, 3", f"s_mul_i32 s{sT0}, s{sT0}, 15360", f"v_add_u32 v{vx+2}, s{sT0}, v{vLn}",
              f"s_mul_i32 s{sT0}, s{sW}, 15360", f"v_add_u32 v{tA}, s{sT0}, v{vLn}",
              f"v_and_b32 v{va}, 15, v0", f"v_lshlrev_b32 v{va}, 10, v{va}", f"v_lshrrev_b32 v{va+1}, 4, v0", f"v_lshl_add_u32 v{va}, v{va+1}, 3, v{va}",
              f"s_lshl_b32 s{sT0}, s{sCg}, 7", f"s_lshl_b32 s{sT1}, s{sW}, 5", f"s_add_u32 s{sT0}, s{sT0}, s{sT1}"]
        g = 20 * 22 + 6
        for l in ad:
            if l.startswith("v_"): SO.put(g, Item(l, "v")); g += 1
            else: SO.put(g, Item(l, "s"))
        late = []
        for tl_ in range(5):
            for j in range(1, 4):
                wr = f"ds_write_b128 v{vx+j-1}, {vr(ac2(4*tl_+j),4)} offset:{5120*(j-1)+1024*tl_}"
                gg = 20 * TM + 16 * tl_ + 12 + j + 9
                if gg < 640: SO.put(gg, Item(wr, "ds"))
                else: late.append(wr)
    seq = lgkm_waits(SO.linear(0, 640))
    def owait(st, tl_): return vwait(("o", st, tl_))
    E(owait(0, 4)); stamp(ep, 6, True)
    for idx, (g, k, l) in enumerate(seq):
        tg = tags.get(l)
        if tg and tg[0] == "need": E(vwait(tg[1]))
        E(l, tg[1] if tg and tg[0] == "prov" else None)
        if k == "mf" and g < 639:
            st, tl_, nt = order[g + 1]
            if st < TM and (g + 1) % 20 == 0: E(owait(st, 4))
            if st >= TM and nt == 0: E(owait(st, tl_))
        if k == "mf" and g == 319: stamp(ep, 7, True)
        if k == "mf" and g == 639: stamp(ep, 8, True)
    if cfg.fastred:
        for l in late: E(l)
        E("s_waitcnt lgkmcnt(0)"); E("s_barrier")
        rb = 12
        for i in range(5):
            for j in range(3): E(f"ds_read_b128 {vr(rb+12*i+4*j,4)}, v{tA} offset:{5120*j+1024*i}")
        for i in range(5):
            E(f"s_waitcnt lgkmcnt({3*(4-i)})")
            b0 = rb + 12 * i; a0 = ac2(4 * i)
            for r in range(0, 4, 2): E(f"v_pk_add_f32 {vr(a0+r,2)}, {vr(a0+r,2)}, {vr(b0+r,2)}"); E(f"v_pk_add_f32 {vr(b0+4+r,2)}, {vr(b0+4+r,2)}, {vr(b0+8+r,2)}")
            for r in range(0, 4, 2): E(f"v_pk_add_f32 {vr(a0+r,2)}, {vr(a0+r,2)}, {vr(b0+4+r,2)}")
            E(f"v_cvt_pk_bf16_f32 v{b0}, v{a0}, v{a0+1}"); E(f"v_cvt_pk_bf16_f32 v{b0+1}, v{a0+2}, v{a0+3}")
            E(f"buffer_store_dwordx2 {vr(b0,2)}, v{va}, s[{sWQ}:{sWQ+3}], s{sT0} offen")
            E(f"s_add_u32 s{sT0}, s{sT0}, 16384")
    else:
        E(f"s_mul_i32 s{sT0}, s{sW}, 20480"); E(f"v_add_u32 v{tB}, s{sT0}, v{vLn}")
        E(f"s_lshl_b32 s{sT0}, s{sW}, 10"); E(f"v_add_u32 v{tA}, s{sT0}, v{vLn}")
        E(f"v_and_b32 v{va}, 15, v0"); E(f"v_lshlrev_b32 v{va}, 10, v{va}"); E(f"v_lshrrev_b32 v{va+1}, 4, v0")
        E(f"v_lshl_add_u32 v{va}, v{va+1}, 3, v{va}")
        E(f"s_lshl_b32 s{sT0}, s{sCg}, 7"); E(f"s_lshl_b32 s{sT1}, s{sW}, 5"); E(f"s_add_u32 s{sT0}, s{sT0}, s{sT1}")
        E("s_barrier")
        for i in range(20): E(f"ds_write_b128 v{tB}, {vr(ac2(i),4)} offset:{1024*i}")
        E(f"v_add_u32 v{tB}, 40960, v{tA}")
        E("s_waitcnt lgkmcnt(0)"); E("s_barrier")
        for i in range(5):
            for wv in range(4):
                E(f"ds_read_b128 {vr(ac2(4*i+wv),4)}, v{tA if wv < 2 else tB} offset:{20480*(wv&1)+4096*i}")
        for i in range(5):
            E(f"s_waitcnt lgkmcnt({min(15, 4*(4-i))})")
            b0 = ac2(4 * i)
            for r in range(4): E(f"v_add_f32 v{b0+r}, v{b0+r}, v{b0+4+r}"); E(f"v_add_f32 v{b0+8+r}, v{b0+8+r}, v{b0+12+r}")
            for r in range(4): E(f"v_add_f32 v{b0+r}, v{b0+r}, v{b0+8+r}")
            E(f"v_cvt_pk_bf16_f32 v{b0+4}, v{b0}, v{b0+1}"); E(f"v_cvt_pk_bf16_f32 v{b0+5}, v{b0+2}, v{b0+3}")
            E(f"buffer_store_dwordx2 {vr(b0+4,2)}, v{va}, s[{sWQ}:{sWQ+3}], s{sT0} offen")
            E(f"s_add_u32 s{sT0}, s{sT0}, 16384")
    if cfg.stamp:
        vt = 108
        E("s_waitcnt vmcnt(0)")
        E(f"s_memtime s[{sST+10}:{sST+11}]"); E(f"s_memrealtime s[{sST+12}:{sST+13}]"); E("s_waitcnt lgkmcnt(0)")
        E(f"s_add_u32 s{sD}, s{sPTR+14}, 0x4000000"); E(f"s_addc_u32 s{sD+1}, s{sPTR+15}, 0")
        E(f"s_mov_b32 s{sD+2}, 0x100000"); E(f"s_mov_b32 s{sD+3}, 0x20000")
        E(f"s_lshl_b32 s{sT0}, s2, 2"); E(f"s_add_u32 s{sT0}, s{sT0}, s{sW}"); E(f"s_lshl_b32 s{sT0}, s{sT0}, 7")
        for i in range(16): E(f"v_mov_b32 v{vt+i}, s{sST+i}")
        for i in range(8): E(f"v_mov_b32 v{vt+16+i}, s{sST2+i}")
        for i in range(6): E(f"buffer_store_dwordx4 {vr(vt+4*i,4)}, v{vZ}, s[{sD}:{sD+3}], s{sT0} offen offset:{16*i}")
    E("L_end:"); E("s_endpgm")
    E("L_fallback:")
    E(f"s_mov_b32 s{sRedo}, 1"); E("s_waitcnt vmcnt(0)")
    kv_setup(E, T)
    a1, a2, k0 = att_addr(T)
    for l in a1 + a2: E(l)
    mx = [vT + 12 + qt for qt in range(6)]
    for qt in range(6): E(f"v_mov_b32 v{mx[qt]}, 0xff800000")
    E(f"s_mov_b32 s{sCnt}, 8")
    E("L_fb_loop:")
    E("s_barrier")
    for l in flat(k_dma()) + adv(sKo, sKs): E(l)
    E("s_waitcnt vmcnt(0)"); E("s_barrier")
    for j in range(4):
        for idx in range(8): E(k_read(j, idx >> 2, idx & 3))
        E("s_waitcnt lgkmcnt(0)")
        for k16 in range(2):
            for qt in range(6):
                nb = vNM + 4 * qt
                for c in range(4):
                    E(f"{MF} {vr(nb,4)}, {ar(aK+16*k16+4*c,4)}, {vr(vQ+16*qt+4*c,4)}, {'0' if c == 0 else vr(nb,4)}")
            E("s_nop 7")
            for qt in range(6):
                nb = vNM + 4 * qt
                E(f"v_max3_f32 v{mx[qt]}, v{mx[qt]}, v{nb}, v{nb+1}"); E(f"v_max3_f32 v{mx[qt]}, v{mx[qt]}, v{nb+2}, v{nb+3}")
            E("s_nop 3")
    E(f"s_sub_u32 s{sCnt}, s{sCnt}, 1"); E(f"s_cmp_lg_u32 s{sCnt}, 0"); E("s_cbranch_scc1 L_fb_loop")
    E("s_barrier")
    E(f"s_mov_b32 s{sKo}, s{sK0}"); E(f"s_add_u32 s{sKo+1}, s{sK0}, 4096")
    for l in flat(k_dma()) + flat(v_dma(0)) + adv(sKo, sKs) + [f"s_add_u32 s{sKm}, s{sW8}, {KR[1]}"] + flat(k_dma()): E(l)
    for i in range(192): E(f"v_accvgpr_write_b32 a{i}, 0")
    negm(E, mx)
    E("s_waitcnt vmcnt(0)"); E("s_barrier")
    E("s_branch L_att")
    pre = [l for g, k, l in body2 if CUT - 12 <= g < CUT]
    el, _ = check_hazards(pre + ["Y:"] + ep, "ep", fix=True)
    o += el[el.index("Y:") + 1:]
    return o

def main():
    k1 = [l for l in gen() if l]
    n0 = len(k1); k1, _ = check_hazards(k1, "k1", fix=True)
    sys.stderr.write(f"{len(k1)} lines, {len(k1)-n0} nops added by final pass\n")
    hdr = open("standalone__gqa_block_cached__near_ridge.s.ref").read().split("\n")[:9]
    out = hdr + [f"; @launch grid=(256,1,1) block=(256,1,1) lds={LDS_TOTAL}",
                 '.amdgcn_target "amdgcn-amd-amdhsa--gfx950"', ".text"]
    fmt = lambda l: l if l.endswith(":") else "    " + l
    out += [f".globl {cfg.name}", ".p2align 8", f".type {cfg.name},@function"] + [fmt(l) for l in k1]
    out += ['.section .rodata,"a"', ".p2align 6", f""".amdhsa_kernel {cfg.name}
  .amdhsa_next_free_vgpr 512
  .amdhsa_next_free_sgpr 102
  .amdhsa_accum_offset 256
  .amdhsa_group_segment_fixed_size 0
  .amdhsa_kernarg_size 64
  .amdhsa_user_sgpr_count 2
  .amdhsa_user_sgpr_kernarg_segment_ptr 1
  .amdhsa_system_sgpr_workgroup_id_x 1
.end_amdhsa_kernel
"""]
    open(sys.argv[1], "w").write("\n".join(out))
main()
```

```python
import sys, math, struct
from asmlib import *

class Cfg:
    name = "standalone__gqa_block_cached__near_ridge_kernel"
    stamp = False
    map_bh = "h"
    kv_nt = True; q_nt = False
    dump_q = False
    e0 = 9
    dma_step = 20.0; qstep = 5
    wowarm = 0; k0pf = 0; dm = ''; trlag = 8; npost = 3; ola = 2; ostep = 1; epi = 'mix'; qstamp = False; cpf = 1; cpf_n = 5; cpf2 = 1; qrot = 1; orot = 0; ostamp = False; krot = 0; xw0 = 346; land = 45; xcap = 12; dstep = 17; pf_end = 0; pkq = 1; epoll = 0; wwpos = 0; poll1 = 1; pflate = 1; pfk = 0; pfsh = 13; xrot = 1; qx = 0; pfcut = 0; wo_nt = False; fastred = 1; k1pos = 1; nost = 0; olay = 0; pf_nt = False; pf0 = 4; pfpos = '40,42,44'; d0 = 380; cpos = 38; v7step = 5
    wopf = 1
    opf = 0
    qpf = 0
    sleep = 4
    lstamp = False
    st_sc = " sc1"; ld_sc = " sc1"
cfg = Cfg()
for a in sys.argv[2:]:
    k, v = a.split("=")
    old = getattr(cfg, k)
    if k in ("st_sc", "ld_sc"): v = "".join(" " + x for x in v.split("+") if x)
    setattr(cfg, k, (v == "1") if isinstance(old, bool) else type(old)(v))

def NT(f): return " nt" if f else ""
def f2u(x): return struct.unpack("<I", struct.pack("<f", x))[0]
QSCALE = f2u(math.log2(math.e) / math.sqrt(128.0))
LTHRESH = f2u(2.0 ** 40)
MF = "v_mfma_f32_16x16x32_bf16"
CAP = 8

class Item:
    def __init__(self, text, kind, it=0):
        self.text = text; self.kind = kind; self.it = it
        self.cost = {"s": 0, "ds": 4, "v": 4, "t": 8, "dma": 8, "mf": 0}[kind]

class Sched:
    def __init__(self, n, periodic=False):
        self.n = n; self.periodic = periodic
        self.mf = [None] * n; self.gap = [[] for _ in range(n)]; self.cost = [0] * n
    def norm(self, g):
        if self.periodic: return g % self.n
        assert 0 <= g < self.n, g
        return g
    def put(self, g, item):
        g = self.norm(g); self.gap[g].append(item); self.cost[g] += item.cost
    def put_win(self, lo, hi, item, pack=False, cap=CAP):
        if not self.periodic: hi = min(hi, self.n - 1)
        cand = [g for g in range(lo, hi + 1) if self.cost[self.norm(g)] + item.cost <= cap]
        if cand:
            if pack:
                part = [g for g in cand if self.cost[self.norm(g)] > 0]
                best = part[0] if part and part[0] <= cand[0] + 3 else cand[0]
            else: best = cand[0]
        else:
            best = min(range(lo, hi + 1), key=lambda g: self.cost[self.norm(g)])
        self.put(best, item); return best
    def linear(self, lo, hi, keep=lambda it: True):
        out = []
        order = {"s": 0, "dma": 1, "ds": 1, "v": 2, "t": 2}
        for g in range(lo, hi):
            if self.mf[g] is not None and keep(self.mf[g].it): out.append((g, "mf", self.mf[g].text))
            for item in sorted(self.gap[g], key=lambda x: order[x.kind]):
                if keep(item.it): out.append((g, item.kind, item.text))
        return out

def lgkm_waits(seq, slack=6):
    out = []; q = []
    mfi = [i for i, x in enumerate(seq) if x[1] == "mf"]
    nxt = dict(zip(mfi, mfi[1:]))
    def need(use, g):
        nonlocal q
        idx = -1
        for k, (gg, regs) in enumerate(q):
            if regs & use: idx = k
        if idx >= 0:
            while idx + 1 < len(q) and q[idx + 1][0] <= g - slack: idx += 1
            n = min(len(q) - 1 - idx, 15)
            out.append((g, "s", f"s_waitcnt lgkmcnt({n})"))
            q = q[len(q) - n:] if n else []
    for i, (g, k, t) in enumerate(seq):
        ins = Ins(t)
        if ins.op == "s_waitcnt" and "lgkmcnt(0)" in t: q = []
        if ins.kind != "label": need(ins.r | ins.w, g)
        if ins.kind == "ds": q.append((g, set(ins.w)))
        out.append((g, k, t))
        if k == "mf" and i in nxt:
            n = Ins(seq[nxt[i]][2]); need(n.r | n.w, g)
    return out

sK, sV, sX, sWQ, sO, sD = 8, 12, 16, 20, 24, 28
sPTR = 32
sW, sB, sH, sT0, sT1 = 3, 4, 5, 6, 7
sKo, sVo = 48, 50
sKs, sVs = 52, 53
sVm = 54
sCnt, sRedo = 58, 59
sXo, sXm, sWo_, sWm = 60, 61, 62, 63
sT2, sQs, sT3 = 64, 65, 66
sKb, sKm, sKd, sKw = 67, 68, 69, 86
sRg, sCg, sMt, sOdd = 87, 88, 89, 90
sW8 = 91
sPfo = 101
sPfx, sPfr = 39, 60
sKt2 = 39
sKmask, sVmask, sK0 = 32, 33, 38
sRot, sXc = 100, 101
sR4 = 63
sKt = 100
sST = 70
sST2 = 92
vKv = 1; vVv = 5; vPfd = 9
vQ = 12; vNM = 108; vL = 132; vS = 156; vP = 188; vKa = 204; vVa = 212; vOne = 228; vT = 232
vAcc = 108
aO = 0; aK = 192; aV = 224
KR = (131072, 98304, 65536); LDS_V = (0, 32768); LDS_EX = 65536
QSLOT = (0, 53248, 106496); LDS_TOTAL = 163840
UNIT_TILE = [0, 1, 2, 0, 1, 0, 1, 0, 1]
UNIT_KT =   [0, 0, 0, 1, 1, 2, 2, 3, 3]
PER = 34

def stamp(o, idx, alt=False):
    if idx >= 5 and alt != cfg.ostamp: return
    if cfg.stamp:
        r = sST + 2 * idx if idx < 5 else sST2 + 2 * (idx - 5)
        o.append(f"s_memtime s[{r}:{r+1}]")

def k_dma():
    r = []
    for grp in range(2):
        for q in range(4):
            pre = []
            if q == 0: pre = [f"s_mov_b32 m0, s{sKm}"] if grp == 0 else [f"s_add_u32 m0, s{sKm}, 4096"]
            off = f" offset:{1024*q}" if q else ""
            r.append((pre, f"buffer_load_dwordx4 v{vKv+q}, s[{sK}:{sK+3}], s{sKo+grp} offen{off}{NT(cfg.kv_nt)} lds"))
    return r
def v_dma(slot):
    r = []
    for grp in range(2):
        for q in range(4):
            off = f" offset:{1024*q}" if q else ""
            r.append(([f"s_mov_b32 m0, s{sVm+2*slot+grp}"] if q == 0 else [],
                      f"buffer_load_dwordx4 v{vVv+q}, s[{sV}:{sV+3}], s{sVo+grp} offen{off}{NT(cfg.kv_nt)} lds"))
    return r
def adv(base, stride):
    m = sKmask if base == sKo else sVmask
    return [f"s_add_u32 s{base}, s{base}, s{stride}", f"s_add_u32 s{base+1}, s{base+1}, s{stride}",
            f"s_and_b32 s{base}, s{base}, s{m}", f"s_and_b32 s{base+1}, s{base+1}, s{m}"]
def flat(lst):
    out = []
    for pre, d in lst: out += pre + [d]
    return out

def place_dmas(S, lst, g, step, itf=lambda g: 0, limit=None):
    for pre, d in lst:
        gg = g
        while S.cost[S.norm(gg)] > 0: gg += 1
        if limit is not None: assert gg < limit, (gg, limit)
        for p in pre: S.put(gg - 1, Item(p, "s", itf(gg - 1)))
        S.put(gg, Item(d, "dma", itf(gg)))
        g = gg + step
    return g

def k_read(j, k16, c, base=None):
    va = (vKa + 2 * j if base is None else base) + (c & 1)
    return f"ds_read_b128 {ar(aK+16*k16+4*c,4)}, v{va} offset:{k16*4096 + (c>>1)*1024}"
def v_read(j, t, jj, slot):
    imm = LDS_V[slot] + jj * 4096 + (t >> 2) * 1024
    return f"ds_read_b64_tr_b16 {ar(aV+4*t+2*jj,2)}, v{vVa+4*j+(t&3)} offset:{imm}"

BG = PER * 7 + 16
LAST_TILE = [2, 0, 1, 0, 1, 0, 1, 0, 1]
def gen_attn_sched(peel=False):
    NU = 18; N = NU * PER; CUT = 17 * PER
    S = Sched(N, periodic=True)
    tile = lambda n: (LAST_TILE[n - 9] if (peel and 9 <= n < 18) else UNIT_TILE[n % 9])
    kt = lambda n: UNIT_KT[n % 9]
    slot = lambda n: (n // 9) & 1
    last = lambda n: UNIT_KT[n % 9] != UNIT_KT[(n + 1) % 9] or n % 9 == 8
    for n in range(NU):
        u = n + 1; it = 1 if u == NU else 0
        for i in range(16):
            q, k16, c = i >> 3, (i >> 2) & 1, i & 3
            qt = 2 * tile(u) + q; sb = vS + 16 * (u & 1) + 8 * q + 4 * k16
            cin = vr(vNM + 4 * qt, 4) if c == 0 else vr(sb, 4)
            S.mf[PER*n + i] = Item(f"{MF} {vr(sb,4)}, {ar(aK+16*k16+4*c,4)}, {vr(vQ+16*qt+4*c,4)}, {cin}", "mf", it)
        for i in range(18):
            q, t = i // 9, i % 9
            qt = 2 * tile(n) + q; pb = vr(vP + 8 * (n & 1) + 4 * q, 4)
            if t < 8:
                o = ar(aO + 32 * qt + 4 * t, 4)
                S.mf[PER*n + 16 + i] = Item(f"{MF} {o}, {ar(aV+4*t,4)}, {pb}, {o}", "mf")
            else:
                l = vr(vL + 4 * qt, 4)
                S.mf[PER*n + 16 + i] = Item(f"{MF} {l}, {vr(vOne,4)}, {pb}, {l}", "mf")
    for n in range(1, NU + 1):
        sb = vS + 16 * (n & 1); pb = vP + 8 * (n & 1)
        itf = lambda g: 1 if (n == NU and g < N) else 0
        for j in range(16):
            g = PER * (n - 1) + cfg.e0 + 2 * j
            S.put(g, Item(f"v_exp_f32 v{sb+j}, v{sb+j}", "t", itf(g)))
            if j & 1: S.put(g + 1, Item(f"v_cvt_pk_bf16_f32 v{pb+(j>>1)}, v{sb+j-1}, v{sb+j}", "v", itf(g + 1)))
    bar = [BG, 9 * PER + BG]
    for bi, b in enumerate(bar):
        if cfg.lstamp: S.put(b, Item("s_memtime s[96:97]", "s"))
        S.put(b, Item("s_waitcnt vmcnt(8) lgkmcnt(0)", "s")); S.put(b, Item("s_barrier", "s"))
        if cfg.lstamp:
            S.put(b, Item(f"v_mov_b32 v240, s96", "s")); S.put(b, Item("s_memtime s[96:97]", "s")); S.put(b, Item("s_waitcnt lgkmcnt(0)", "s"))
            S.put(b, Item(f"v_mov_b32 v241, s96", "s"))
            S.put(b, Item(f"buffer_store_dwordx2 v[240:241], v242, s[{sX}:{sX+3}], 0 offen", "s")); S.put(b, Item(f"v_add_u32 v242, 8, v242", "s"))
        S.put(b, Item(f"SWITCH{bi}:", "s"))
    for n in range(NU):
        if last(n):
            nu = n + 1
            for t in range(8):
                for jj in range(2):
                    lo = PER*n + 16 + 9 + t; hi = lo + 15
                    if nu % 9 == 7: hi = min(hi, PER*(n+1) + 10)
                    item = Item(v_read(kt(nu), t, jj, slot(nu)), "ds")
                    g = S.put_win(lo, hi, item, pack=True)
                    if nu >= NU and g < N: item.it = 1
    for n in range(NU):
        u = n + 1
        if last(u):
            nu = u + 1; it = 1 if nu >= NU else 0
            for idx in range(8):
                lo = PER*n + 8 + idx; hi = lo + 16
                if u % 9 == 8: lo = max(lo, PER*n + 16)
                S.put_win(lo, hi, Item(k_read(kt(nu), idx >> 2, idx & 3), "ds", it), pack=True)
    if peel: return S, bar
    for bi, b in enumerate(bar):
        g0 = b - 40
        for l in [f"s_mov_b32 s{sKt}, s{sKb}", f"s_cmp_eq_u32 s{sKb}, s{sKw}"]: S.put(g0, Item(l, "s"))
        S.put(b + 1, Item(f"s_mov_b32 s{sKm}, s{sKt}", "s"))
        S.put(g0, Item(f"s_cselect_b32 s{sKd}, s{sT3}, s{sQs}", "s"))
        S.put(g0 + 1, Item(f"s_add_u32 s{sKb}, s{sKb}, s{sKd}", "s"))
        for i in range(8): S.put_win(g0 + 2, b - 1, Item(f"v_add_u32 v{vKa+i}, s{sKd}, v{vKa+i}", "v"), pack=True)
        itf = lambda g: 1 if (bi == 1 and g < N) else 0
        lv = v_dma(bi); lk = k_dma()
        lv[0] = (adv(sVo, sVs) + lv[0][0], lv[0][1]); lk[0] = (adv(sKo, sKs) + lk[0][0], lk[0][1])
        st0 = (b + 2) if bi == 0 else CUT + 1
        lim = b + 9 * PER - 14
        step = min(cfg.dma_step, (lim - 36 - st0) / 15)
        g = st0
        for i, x in enumerate(lv + lk):
            g = place_dmas(S, [x], max(g, st0 + int(i * step)), 2, itf, limit=lim)
    if False:
        for i, g in enumerate(int(x) for x in cfg.pfpos.split(",")):
            place_dmas(S, [([f"s_add_u32 s{sPfo}, s{sPfo}, {(32 << cfg.pfsh) if cfg.pfsh else 262144 // len(cfg.pfpos.split(','))}", f"s_xor_b32 s{sPfx}, s{sPfo}, s{sPfr}"], f"buffer_load_dword v{vPfd}, v{vPfo}, s[{sD}:{sD+3}], s{sPfx} offen{NT(cfg.pf_nt)} ; pf{i}")], g, 1, itf=lambda g: 1 if g >= CUT else 0)
    for bi, b in enumerate(bar):
        n = 0; g = b - 1
        while True:
            its = [x for x in S.gap[g % N] if x.kind == "dma"]
            if its and f"s[{sV}:{sV+3}]" in its[0].text: break
            n += len(its); g -= 1
        for x in S.gap[b]:
            if "vmcnt(8)" in x.text: x.text = x.text.replace("vmcnt(8)", f"vmcnt({n})")
    return S, bar

def kv_setup(e, t):
    r8, p8, tA, tB, tC = t, t+1, t+2, t+3, t+4
    e(f"v_lshrrev_b32 v{r8}, 3, v0"); e(f"v_and_b32 v{p8}, 7, v0"); e(f"v_lshrrev_b32 v{tA}, 1, v{r8}")
    e(f"v_xor_b32 v{tB}, v{tA}, v{p8}"); e(f"v_lshlrev_b32 v{tC}, 8, v{r8}")
    e(f"v_lshl_add_u32 v{vKv+1}, v{tB}, 4, v{tC}"); e(f"v_xor_b32 v{vKv+3}, 64, v{vKv+1}")
    e(f"v_add_u32 v{vKv}, 1024, v{vKv+1}"); e(f"v_add_u32 v{vKv+2}, 1024, v{vKv+3}")
    e(f"v_add_u32 v{vKv+1}, 128, v{vKv+1}"); e(f"v_add_u32 v{vKv+3}, 128, v{vKv+3}")
    e(f"v_lshlrev_b32 v{tB}, 1, v{tA}"); e(f"v_xor_b32 v{tB}, v{tB}, v{p8}")
    e(f"v_lshl_add_u32 v{vVv+1}, v{tB}, 4, v{tC}")
    e(f"v_add_u32 v{vVv}, 1024, v{vVv+1}"); e(f"v_add_u32 v{vVv+1}, 128, v{vVv+1}")
    e(f"v_mov_b32 v{vVv+2}, v{vVv}"); e(f"v_mov_b32 v{vVv+3}, v{vVv+1}")
    e(f"s_lshl_b32 s{sT0}, s{sB}, 5"); e(f"s_add_u32 s{sT0}, s{sT0}, s{sH}"); e(f"s_lshl_b32 s{sT0}, s{sT0}, 18")
    for s, p in ((sK, sPTR + 2), (sV, sPTR + 4)):
        e(f"s_add_u32 s{s}, s{p}, s{sT0}"); e(f"s_addc_u32 s{s+1}, s{p+1}, 0")
        e(f"s_sub_u32 s{s}, s{s}, 1024"); e(f"s_subb_u32 s{s+1}, s{s+1}, 0")
        e(f"s_mov_b32 s{s+2}, {262144+1024}"); e(f"s_mov_b32 s{s+3}, 0x20000")
    e(f"s_lshr_b32 s{sK0}, s2, 3"); e(f"s_xor_b32 s{sK0}, s{sK0}, s2"); e(f"s_and_b32 s{sK0}, s{sK0}, {cfg.krot}"); e(f"s_lshl_b32 s{sK0}, s{sK0}, 15")
    e(f"s_add_u32 s{sK0}, s{sK0}, s{sW8}"); e(f"s_mov_b32 s{sKmask}, 0x3ffff"); e(f"s_mov_b32 s{sVmask}, 0x3ffff")
    for b_ in (sKo, sVo):
        e(f"s_mov_b32 s{b_}, s{sK0}"); e(f"s_add_u32 s{b_+1}, s{sK0}, 4096")
    e(f"s_mov_b32 s{sKs}, 32768"); e(f"s_mov_b32 s{sVs}, 32768")
    e(f"s_add_u32 s{sKb}, s{sW8}, {KR[0]}"); e(f"s_mov_b32 s{sKm}, s{sKb}"); e(f"s_add_u32 s{sKw}, s{sW8}, {KR[2]}")

def att_addr(t):
    L = []; e = L.append
    tA, tB, tC, q16, kg, r4, c4, k0 = t, t+1, t+2, t+3, t+4, t+5, t+6, t+7
    e(f"v_and_b32 v{q16}, 15, v0"); e(f"v_lshrrev_b32 v{kg}, 4, v0")
    e(f"v_lshrrev_b32 v{tA}, 3, v{q16}"); e(f"v_lshlrev_b32 v{tA}, 11, v{tA}")
    e(f"v_and_b32 v{tB}, 7, v{q16}"); e(f"v_lshl_add_u32 v{tA}, v{tB}, 7, v{tA}")
    e(f"v_lshrrev_b32 v{tB}, 1, v{q16}"); e(f"v_xor_b32 v{tB}, v{tB}, v{kg}")
    e(f"v_lshl_add_u32 v{k0}, v{tB}, 4, v{tA}"); e(f"v_add_u32 v{k0}, {KR[0]}, v{k0}"); e(f"v_xor_b32 v{k0+1}, 64, v{k0}")
    n1 = len(L)
    e(f"v_bfe_u32 v{r4}, v0, 2, 2"); e(f"v_and_b32 v{c4}, 3, v0")
    e(f"v_and_b32 v{tA}, 1, v{kg}"); e(f"v_lshl_add_u32 v{tA}, v{tA}, 2, v{r4}")
    e(f"v_lshrrev_b32 v{tB}, 1, v{tA}"); e(f"v_lshlrev_b32 v{tB}, 5, v{tB}"); e(f"v_lshl_add_u32 v{tB}, v{tA}, 7, v{tB}")
    e(f"v_lshrrev_b32 v{tA}, 1, v{kg}"); e(f"v_lshl_add_u32 v{tB}, v{tA}, 11, v{tB}"); e(f"v_lshl_add_u32 v{tC}, v{c4}, 3, v{tB}")
    for j in range(4):
        e(f"s_add_u32 s{sT0}, s{sW}, {j}"); e(f"s_and_b32 s{sT0}, s{sT0}, 3"); e(f"s_lshl_b32 s{sT0}, s{sT0}, 13")
        for c in range(2): e(f"v_add_u32 v{vKa+2*j+c}, s{sT0}, v{k0+c}")
        e(f"v_add_u32 v{vVa+4*j}, s{sT0}, v{tC}")
        for k in range(1, 4): e(f"v_xor_b32 v{vVa+4*j+k}, {32*k}, v{vVa+4*j}")
    for i in range(4): e(f"v_mov_b32 v{vOne+i}, 0x3f803f80")
    return L[:n1], L[n1:], k0

def wo_voff(e, dst, t):
    r8, p8, tA, tB = t, t+1, t+2, t+3
    e(f"v_lshrrev_b32 v{r8}, 3, v0"); e(f"v_and_b32 v{p8}, 7, v0")
    e(f"v_bfe_u32 v{tA}, v{r8}, 1, 2"); e(f"v_lshlrev_b32 v{tA}, 1, v{tA}"); e(f"v_xor_b32 v{tA}, v{tA}, v{p8}")
    e(f"v_lshlrev_b32 v{tB}, 10, v{r8}"); e(f"v_lshl_add_u32 v{dst}, v{tA}, 4, v{tB}")
    for q in range(1, 4): e(f"v_add_u32 v{dst+q}, {7168*q}, v{dst}")
def wo_srd(e, s):
    e(f"s_lshl_b32 s{sT0}, s{sCg}, 7")
    e(f"s_add_u32 s{s}, s{sPTR+8}, s{sT0}"); e(f"s_addc_u32 s{s+1}, s{sPTR+9}, 0")
    e(f"s_sub_u32 s{s+2}, 4194304, s{sT0}"); e(f"s_mov_b32 s{s+3}, 0x20000")

vPfo = 243
vRa = 244
def wo_pf(e, srd, first, n):
    e(f"v_lshlrev_b32 v{vT}, 12, v0"); e(f"s_lshl_b32 s{sT0}, s{sW}, 20"); e(f"s_lshl_b32 s{sT1}, s{sRg}, 10"); e(f"s_add_u32 s{sT0}, s{sT0}, s{sT1}")
    e(f"s_add_u32 s{sT0}, s{sT0}, {first*32768}")
    for i in range(n):
        if i: e(f"s_add_u32 s{sT0}, s{sT0}, 262144")
        part = first + 8 * i + 8 > 32
        if part: e(f"s_mov_b64 exec, {(1 << (8 * (32 - first - 8 * i))) - 1:#x}")
        e(f"buffer_load_dword v{vPfd}, v{vT}, s[{srd}:{srd+3}], s{sT0} offen")
        if part: e("s_mov_b64 exec, -1")
def switch_block(bi):
    L = []; e = L.append
    e(f"s_cmp_lg_u32 s{sCnt}, {2 if bi == 1 else 1}"); e(f"s_cbranch_scc1 L_sw{bi}")
    if bi == 1:
        wo_voff(e, vKv, vT); wo_srd(e, sK); e(f"s_mov_b32 s{sKmask}, -1")
        e(f"s_and_b32 s{sR4}, s{sCg}, {cfg.orot}"); e(f"s_lshl_b32 s{sR4}, s{sR4}, 15"); e(f"s_lshl_b32 s{sT1}, s{sW}, 20"); e(f"s_or_b32 s{sR4}, s{sR4}, s{sT1}")
        if cfg.xrot: e(f"s_and_b32 s{sT1}, s2, 7"); e(f"s_lshl_b32 s{sT1}, s{sT1}, 17"); e(f"s_xor_b32 s{sR4}, s{sR4}, s{sT1}")
        e(f"s_mov_b32 s{sKs}, 0"); e(f"s_mov_b32 s{sKo}, s{sR4}"); e(f"s_mov_b32 s{sKo+1}, 0x40000000")
        kg, r4, c4, tA, tB = vT, vT+1, vT+2, vT+3, vT+4
        e(f"v_lshrrev_b32 v{kg}, 4, v0"); e(f"v_bfe_u32 v{r4}, v0, 2, 2"); e(f"v_and_b32 v{c4}, 3, v0")
        e(f"v_and_b32 v{tA}, 1, v{kg}"); e(f"v_lshl_add_u32 v{tA}, v{tA}, 2, v{r4}")
        e(f"v_lshrrev_b32 v{tB}, 1, v{tA}"); e(f"v_lshlrev_b32 v{tB}, 5, v{tB}")
        e(f"v_lshl_add_u32 v{tB}, v{tA}, 7, v{tB}"); e(f"v_lshrrev_b32 v{tA}, 1, v{kg}"); e(f"v_lshl_add_u32 v{tB}, v{tA}, 10, v{tB}")
        e(f"v_lshl_add_u32 v{tB}, v{c4}, 3, v{tB}"); e(f"v_add_u32 v{vRa}, s{sW8}, v{tB}")
        if cfg.fastred: e(f"s_lshl_b32 s{sT1}, s{sW}, 5"); e(f"v_xor_b32 v{vRa}, s{sT1}, v{vRa}")
        for nt in range(1, 4): e(f"v_xor_b32 v{vRa+nt}, {32*nt}, v{vRa}")
        for s_ in range(1, 3):
            for nt in range(4): e(f"v_add_u32 v{vRa+4*s_+nt}, {65536*s_}, v{vRa+nt}")
        e(f"v_lshlrev_b32 v10, 4, v0"); e(f"s_lshl_b32 s{sWo_}, s{sW}, 20")
        if cfg.pfcut: e(f"s_mov_b32 s{sD+2}, 0")
        if cfg.pflate:
            e(f"s_mov_b32 s{sD+2}, 4194304")
            e(f"s_lshr_b32 s{sPfo}, s2, 3"); e(f"s_lshl_b32 s{sPfo}, s{sPfo}, 13"); e(f"s_add_u32 s{sPfo}, s{sPfo}, s{sWo_}"); e(f"s_sub_u32 s{sPfo}, s{sPfo}, 262144")
    elif bi == 0:
        for q in range(4): e(f"v_mov_b32 v{vVv+q}, v{vKv+q}")
        wo_srd(e, sV); e(f"s_mov_b32 s{sVmask}, -1")
        if cfg.cpf2:
            e(f"s_getpc_b64 s[{sT0}:{sT1}]"); e("L_pc1:")
            e(f"s_add_u32 s{sT0}, s{sT0}, L_tail-L_pc1"); e(f"s_addc_u32 s{sT1}, s{sT1}, 0")
            e(f"s_lshr_b32 s{sT2}, s2, 3"); e(f"s_lshl_b32 s{sT2}, s{sT2}, 2"); e(f"s_add_u32 s{sT2}, s{sT2}, s{sW}"); e(f"s_lshl_b32 s{sT2}, s{sT2}, 6")
            e(f"v_min_u32 v{vT}, 1, v0"); e(f"v_lshlrev_b32 v{vT}, 13, v{vT}"); e(f"v_add_u32 v{vT}, s{sT2}, v{vT}")
            e(f"global_load_dword v{vPfd}, v{vT}, s[{sT0}:{sT1}]")
        e(f"s_xor_b32 s{sVo}, s{sR4}, 65536"); e(f"s_xor_b32 s{sVo+1}, s{sR4}, 98304"); e(f"s_mov_b32 s{sVs}, 0")
    e(f"L_sw{bi}:")
    L, _ = check_hazards(L, "sw", fix=True)
    return L

def gen():
    o = []; e = o.append
    e(f"{cfg.name}:")
    e("s_cmp_ge_u32 s2, 256"); e("s_cbranch_scc1 L_end")
    e(f"s_load_dwordx16 s[{sPTR}:{sPTR+15}], s[0:1], 0")
    stamp(o, 0)
    if cfg.stamp: e(f"s_memrealtime s[{sST+14}:{sST+15}]")
    e("v_lshrrev_b32 v1, 6, v0"); e("v_and_b32 v0, 63, v0"); e(f"v_readfirstlane_b32 s{sW}, v1")
    e(f"s_mov_b32 s{sRedo}, 0")
    e("L_restart:")
    if cfg.map_bh == "b":
        e(f"s_and_b32 s{sB}, s2, 7"); e(f"s_lshr_b32 s{sH}, s2, 3")
    else:
        e(f"s_lshr_b32 s{sB}, s2, 5"); e(f"s_and_b32 s{sT0}, s2, 7"); e(f"s_lshl_b32 s{sT0}, s{sT0}, 2")
        e(f"s_bfe_u32 s{sT1}, s2, 0x20003"); e(f"s_add_u32 s{sH}, s{sT0}, s{sT1}")
    t = vT
    r8, p8, tA, tB, tC = t, t+1, t+2, t+3, t+4
    vB = vQ; vAd = vQ + 40; vXv = vQ + 60; vWv = vQ + 62; vSh = vQ + 64
    e(f"v_lshrrev_b32 v{r8}, 3, v0"); e(f"v_and_b32 v{p8}, 7, v0")
    e(f"v_lshrrev_b32 v{tA}, 1, v{r8}")
    e(f"v_and_b32 v{tB}, 1, v{tA}"); e(f"v_lshlrev_b32 v{tB}, 1, v{tB}"); e(f"v_xor_b32 v{tB}, v{tB}, v{p8}")
    e(f"v_lshlrev_b32 v{tC}, 13, v{r8}"); e(f"v_lshl_add_u32 v{vWv}, v{tB}, 4, v{tC}"); e(f"v_xor_b32 v{vWv+1}, 64, v{vWv}")
    e(f"s_and_b32 s{sT0}, s{sW}, 1"); e(f"s_lshl_b32 s{sT0}, s{sT0}, 2")
    e(f"v_xor_b32 v{tB}, v{tA}, v{p8}"); e(f"v_xor_b32 v{tC+1}, s{sT0}, v{tB}")
    e(f"v_lshlrev_b32 v{tC}, 10, v{r8}"); e(f"v_lshl_add_u32 v{vXv}, v{tC+1}, 4, v{tC}"); e(f"v_xor_b32 v{vXv+1}, 64, v{vXv}")
    e(f"s_mul_i32 s{sXo}, s{sW}, {9*8192}"); e(f"s_mul_i32 s{sXm}, s{sW}, {9*1024}")
    e(f"s_lshl_b32 s{sWo_}, s{sW}, 17"); e(f"s_lshl_b32 s{sWm}, s{sW}, 12"); e(f"s_add_u32 s{sWm}, s{sWm}, 36864")
    e(f"s_mul_i32 s{sT0}, s{sB}, 294912"); e(f"s_lshl_b32 s{sT1}, s{sH}, 8")
    e(f"s_mov_b32 s{sX+2}, 294912"); e(f"s_mov_b32 s{sX+3}, 0x20000")
    e(f"s_sub_u32 s{sWQ+2}, 4194304, s{sT1}"); e(f"s_mov_b32 s{sWQ+3}, 0x20000")
    e(f"s_add_u32 s{sRot}, s{sH}, s{sB}"); e(f"s_and_b32 s{sRot}, s{sRot}, {cfg.qrot}")
    if cfg.qx: e(f"s_and_b32 s{sXc}, s2, {cfg.qx}"); e(f"s_xor_b32 s{sRot}, s{sRot}, s{sXc}")
    e("s_waitcnt lgkmcnt(0)")
    e(f"s_add_u32 s{sX}, s{sPTR+0}, s{sT0}"); e(f"s_addc_u32 s{sX+1}, s{sPTR+1}, 0")
    e(f"s_add_u32 s{sWQ}, s{sPTR+6}, s{sT1}"); e(f"s_addc_u32 s{sWQ+1}, s{sPTR+7}, 0")
    def q_dma(c):
        r = []; sl = QSLOT[c % 3]
        for q in range(4):
            go = (q >> 1) * 65536 + (q & 1) * 128
            rot = [f"s_xor_b32 s{sXc}, s{sRot}, {c}", f"s_lshl_b32 s{sT3}, s{sXc}, 19", f"s_add_u32 s{sT3}, s{sT3}, s{sWo_}",
                   f"s_lshl_b32 s{sXc}, s{sXc}, 7", f"s_add_u32 s{sXc}, s{sXc}, s{sXo}"] if q == 0 else []
            r.append((rot + [f"s_add_u32 m0, s{sWm}, {sl + 1024*q}", f"s_add_u32 s{sT2}, s{sT3}, {go}"],
                      f"buffer_load_dwordx4 v{vWv+(q>>1)}, s[{sWQ}:{sWQ+3}], s{sT2} offen{NT(cfg.q_nt)} lds"))
        for i in range(9):
            r.append(([f"s_add_u32 m0, s{sXm}, {sl + 1024*i}", f"s_add_u32 s{sT2}, s{sXc}, {i*8192}"],
                      f"buffer_load_dwordx4 v{vXv+(i&1)}, s[{sX}:{sX+3}], s{sT2} offen{NT(cfg.q_nt)} lds"))
        return r
    o += flat(q_dma(0))
    if cfg.cpf:
        e("s_getpc_b64 s[92:93]"); e("L_pc0:")
        e(f"s_lshr_b32 s94, s2, 3"); e(f"s_lshl_b32 s94, s94, 2"); e(f"s_add_u32 s94, s94, s{sW}"); e("s_lshl_b32 s94, s94, 6")
        for i in range(cfg.cpf_n):
            e(f"s_load_dword s95, s[92:93], s94"); e("s_add_u32 s94, s94, 8192")
    e(f"s_lshl_b32 s{sW8}, s{sW}, 13")
    kv_setup(e, t)
    for sl in range(2):
        for g in range(2): e(f"s_add_u32 s{sVm+2*sl+g}, s{sW8}, {LDS_V[sl] + 4096*g}")
    e(f"s_mul_i32 s{sT0}, s{sB}, 2359296")
    e(f"s_add_u32 s{sO}, s{sPTR+14}, s{sT0}"); e(f"s_addc_u32 s{sO+1}, s{sPTR+15}, 0")
    e(f"s_mov_b32 s{sO+2}, 2359296"); e(f"s_mov_b32 s{sO+3}, 0x20000")
    e(f"s_bfe_u32 s{sRg}, s2, 0x20003"); e(f"s_lshr_b32 s{sCg}, s2, 5")
    e(f"s_lshr_b32 s{sMt}, s{sRg}, 1"); e(f"s_mul_i32 s{sMt}, s{sMt}, 9"); e(f"s_and_b32 s{sOdd}, s{sRg}, 1")
    e(f"s_mul_i32 s{sT0}, s{sOdd}, 5"); e(f"s_add_u32 s{sMt}, s{sMt}, s{sT0}")
    e(f"s_and_b32 s{sT0}, s2, 7"); e(f"s_mul_i32 s{sT0}, s{sT0}, 18"); e(f"s_add_u32 s{sMt}, s{sMt}, s{sT0}")
    q16, kg, r4, c4 = t+6, t+7, t+8, t+9
    e(f"v_and_b32 v{q16}, 15, v0"); e(f"v_lshrrev_b32 v{kg}, 4, v0"); e(f"v_bfe_u32 v{r4}, v0, 2, 2"); e(f"v_and_b32 v{c4}, 3, v0")
    e(f"v_lshrrev_b32 v{tA}, 3, v{q16}"); e(f"v_lshlrev_b32 v{tA}, 10, v{tA}")
    e(f"v_and_b32 v{tB}, 7, v{q16}"); e(f"v_lshl_add_u32 v{tA}, v{tB}, 7, v{tA}")
    e(f"v_lshrrev_b32 v{tB}, 1, v{q16}"); e(f"v_xor_b32 v{tB}, v{tB}, v{kg}")
    e(f"v_lshl_add_u32 v{vAd}, v{tB}, 4, v{tA}"); e(f"v_xor_b32 v{vAd+1}, 64, v{vAd}")
    e(f"v_add_u32 v{vAd+2}, s{sW8}, v{vAd}"); e(f"v_add_u32 v{vAd+3}, s{sW8}, v{vAd+1}")
    e(f"v_lshrrev_b32 v{tA}, 1, v{r4}"); e(f"v_and_b32 v{tB}, 1, v{kg}"); e(f"v_lshl_add_u32 v{tA}, v{tB}, 1, v{tA}")
    e(f"v_lshlrev_b32 v{tA}, 5, v{tA}"); e(f"v_lshl_add_u32 v{tA}, v{c4}, 3, v{tA}"); e(f"v_lshl_add_u32 v{tA}, v{r4}, 7, v{tA}")
    e(f"v_lshl_add_u32 v{tA}, v{kg}, 11, v{tA}"); e(f"v_add_u32 v{vAd+4}, 36864, v{tA}")
    for k in range(1, 4): e(f"v_xor_b32 v{vAd+4+k}, {32*k}, v{vAd+4}")
    e(f"s_and_b32 s{sT0}, s{sW}, 1"); e(f"s_lshl_b32 s{sT0}, s{sT0}, 6"); e(f"s_lshr_b32 s{sT1}, s{sW}, 1"); e(f"s_lshl_b32 s{sT1}, s{sT1}, 10")
    e(f"v_xor_b32 v{vAd+8}, s{sT0}, v{vAd+4}"); e(f"v_add_u32 v{vAd+8}, s{sT1}, v{vAd+8}"); e(f"v_xor_b32 v{vAd+9}, 32, v{vAd+8}")
    e(f"s_mov_b32 s{sQs}, {QSCALE:#x}")
    if cfg.wwpos:
        e(f"s_mov_b32 s{sD}, s{sPTR+8}"); e(f"s_mov_b32 s{sD+1}, s{sPTR+9}"); e(f"s_mov_b32 s{sD+2}, 4194304"); e(f"s_mov_b32 s{sD+3}, 0x20000")
        e(f"v_and_b32 v254, 31, v0"); e(f"v_lshlrev_b32 v254, 7, v254"); e(f"s_lshl_b32 s{sKt2}, s2, 14"); e(f"s_lshl_b32 s{sT1}, s{sW}, 12"); e(f"s_add_u32 s{sKt2}, s{sKt2}, s{sT1}")
    if cfg.pkq: e(f"v_mov_b32 v252, s{sQs}"); e(f"v_mov_b32 v253, s{sQs}")
    if cfg.k0pf: e("v_lshlrev_b32 v252, 7, v0"); e("v_add_u32 v252, 1024, v252")

    NQ = 16 * 36
    S = Sched(NQ)
    fA = lambda t_: aK + 4 * t_
    fB = lambda p, q: vB + 16 * p + 4 * q
    fBs = lambda q: vB + 32 + 4 * q
    acc = lambda q, t_: vAcc + 32 * q + 4 * t_
    accs = lambda qs, u: vAcc + 128 + 8 * qs + 4 * u
    def rdA(ks, t_, jj):
        ad = vAd + 10 * ((ks >> 1) & 1); s = ks & 1
        if t_ < 8: return f"ds_read_b64_tr_b16 {ar(fA(t_)+2*jj,2)}, v{ad+4+(t_&3)} offset:{s*8192+(t_>>2)*1024+jj*512}"
        return f"ds_read_b64_tr_b16 {ar(fA(t_)+2*jj,2)}, v{ad+t_} offset:{s*8192+jj*512}"
    def rdB(ks, q):
        ad = vAd + 10 * ((ks >> 1) & 1); s = ks & 1
        if q < 4: return f"ds_read_b128 {vr(fB(ks&1,q),4)}, v{ad+2+s} offset:{2048*q}"
        return f"ds_read_b128 {vr(fBs(q-4),4)}, v{ad+s} offset:{32768+2048*(q-4)}"
    for ks in range(16):
        for i in range(36):
            if i < 32: t_, q = i >> 2, i & 3; a_, A, Bf = acc(q, t_), fA(t_), fB(ks & 1, q)
            else: u, qs = (i - 32) >> 1, i & 1; a_, A, Bf = accs(qs, u), fA(8 + u), fBs(qs)
            S.mf[36*ks + i] = Item(f"{MF} {vr(a_,4)}, {ar(A,4)}, {vr(Bf,4)}, {'0' if ks == 0 else vr(a_,4)}", "mf")
    QB = 9
    for c in range(8):
        gb = 72 * c + 36 + QB
        n = (13 + (cfg.wowarm if c == 0 else 0)) if c <= 5 else (8 if c == 6 else None)
        if cfg.k0pf and c in (cfg.k0pf, cfg.k0pf + 1): n += 1
        if cfg.wwpos and c in (cfg.wwpos, cfg.wwpos + 1) and n is not None: n += 1
        if cfg.qstamp: S.put(gb, Item("s_memtime s[96:97]", "s"))
        S.put(gb, Item(f"s_waitcnt vmcnt({n}) lgkmcnt(0)" if n is not None else "s_waitcnt lgkmcnt(0)", "s"))
        S.put(gb, Item("s_barrier", "s"))
        if cfg.qstamp:
            S.put(gb, Item(f"v_mov_b32 v252, s96", "s")); S.put(gb, Item("s_memtime s[96:97]", "s")); S.put(gb, Item("s_waitcnt lgkmcnt(0)", "s"))
            S.put(gb, Item(f"v_mov_b32 v253, s96", "s"))
            S.put(gb, Item(f"buffer_store_dwordx2 v[252:253], v254, s[{sD}:{sD+3}], 0 offen", "s")); S.put(gb, Item(f"v_add_u32 v254, 8, v254", "s"))
    for ks in range(16):
        base = 36 * ks
        if ks:
            for k_, r in enumerate([rdA(ks, 8, 0), rdA(ks, 8, 1), rdB(ks, 4), rdB(ks, 5), rdA(ks, 9, 0), rdA(ks, 9, 1)]):
                S.put(base + (k_ >> 1), Item(r, "ds"))
        if ks < 15:
            lo0 = base + (QB if ks & 1 else 3)
            for q in range(4): S.put_win(lo0, base + 24, Item(rdB(ks + 1, q), "ds"))
            for t_ in range(8):
                for jj in range(2):
                    lo = max(base + 4 * t_ + 3, lo0)
                    S.put_win(lo, min(lo + 20, NQ - 1), Item(rdA(ks + 1, t_, jj), "ds"))
    for c in range(8):
        gb = 72 * c + 36 + QB
        if c + 3 < 8: lst = q_dma(c + 3)
        elif c == 5: lst = k_dma()
        elif c == 6: lst = v_dma(0)
        else:
            lst = k_dma(); lst[0] = (adv(sKo, sKs) + [f"s_add_u32 s{sKm}, s{sW8}, {KR[1]}"] + lst[0][0], lst[0][1])
            if cfg.k1pos: k1l = lst; lst = []
        if cfg.wwpos and c == cfg.wwpos - 1:
            lst = lst + [([], f"buffer_load_dword v{vPfd}, v254, s[{sD}:{sD+3}], s{sKt2} offen")]
        if cfg.k0pf and c == cfg.k0pf - 1:
            lst = lst + [([], f"buffer_load_dword v{vPfd}, v252, s[{sK}:{sK+3}], s{sKo} offen nt")]
        place_dmas(S, lst, gb + 2, (cfg.qstep - (len(lst) > 13)) if c < 7 else 3, limit=min(gb + 72, NQ))
    place_dmas(S, q_dma(2), 1, 2, limit=36 + QB)
    for c in range(7):
        d = QSLOT[(c + 1) % 3] - QSLOT[c % 3]
        for k in range(10):
            S.put_win(72 * c + 4, 72 * c + 40, Item(f"v_add_u32 v{vAd+10*((c+1)&1)+k}, {d & 0xffffffff:#x}, v{vAd+10*(c&1)+k}", "v"))
    g = 0
    for i in range(192): g = S.put_win(g, NQ - 1, Item(f"v_accvgpr_write_b32 a{i}, 0", "v"))
    sys.stderr.write(f"qproj gaps over cap: {sum(c > CAP for c in S.cost)}\n")
    o += flat(q_dma(1))
    if cfg.qstamp:
        e(f"s_add_u32 s{sD}, s{sPTR+14}, 0x4100000"); e(f"s_addc_u32 s{sD+1}, s{sPTR+15}, 0"); e(f"s_mov_b32 s{sD+2}, 0x100000"); e(f"s_mov_b32 s{sD+3}, 0x20000")
        e(f"s_lshl_b32 s{sT0}, s2, 2"); e(f"s_add_u32 s{sT0}, s{sT0}, s{sW}"); e(f"s_lshl_b32 s{sT0}, s{sT0}, 6"); e(f"v_mov_b32 v254, s{sT0}")
    if cfg.wowarm:
        e(f"s_mov_b32 s{sD}, s{sPTR+8}"); e(f"s_mov_b32 s{sD+1}, s{sPTR+9}"); e(f"s_mov_b32 s{sD+2}, 4194304"); e(f"s_mov_b32 s{sD+3}, 0x20000")
        e(f"v_and_b32 v{tA}, 31, v0"); e(f"v_lshlrev_b32 v{tA}, 7, v{tA}"); e(f"s_lshl_b32 s{sT0}, s2, 14"); e(f"s_lshl_b32 s{sT1}, s{sW}, 12"); e(f"s_add_u32 s{sT0}, s{sT0}, s{sT1}")
        e(f"buffer_load_dword v{vPfd}, v{tA}, s[{sD}:{sD+3}], s{sT0} offen")
    e(f"s_waitcnt vmcnt({13 + cfg.wowarm}) lgkmcnt(0)"); e("s_barrier")
    stamp(o, 1)
    first = [rdA(0, 0, 0), rdA(0, 0, 1)] + [rdB(0, q) for q in range(4)] + [rdA(0, t_, jj) for t_ in range(1, 10) for jj in range(2)] + [rdB(0, 4), rdB(0, 5)]
    for g, k, l in lgkm_waits([(-2, "ds", r) for r in first] + S.linear(0, NQ)): e(l)
    stamp(o, 2)
    def cvt_frag(src, dst):
        L = [f"v_mul_f32 v{src+i}, s{sQs}, v{src+i}" for i in range(8)]
        if cfg.pkq: L = [x for i in range(4) for x in (f"v_pk_mul_f32 {vr(src+2*i,2)}, {vr(src+2*i,2)}, v[252:253]", None)]
        L += [f"v_cvt_pk_bf16_f32 v{dst+i}, v{src+2*i}, v{src+2*i+1}" for i in range(4)]
        W = [f"v_permlane32_swap_b32 v{dst}, v{dst+2}", f"v_permlane32_swap_b32 v{dst+1}, v{dst+3}",
             f"v_permlane16_swap_b32 v{dst}, v{dst+2}", f"v_permlane16_swap_b32 v{dst+1}, v{dst+3}"]
        return L, W
    own = [(acc(q, 2 * c), vQ + 16 * q + 4 * c) for c in range(4) for q in range(4)]
    frs = own[:2] + [(accs(0, 0), vSh), (accs(1, 0), vSh + 4)] + own[2:]
    pendW = []
    for idx, (s_, d_) in enumerate(frs):
        L, W = cvt_frag(s_, d_)
        o += [x for x in L[:4] + pendW[:2] + L[4:8] + pendW[2:] + L[8:] if x]
        pendW = W
        if cfg.k1pos and idx >= 2 and idx % 2 == 0: o += flat([k1l.pop(0)])
        if idx == 4:
            e(f"v_lshlrev_b32 v10, 4, v0"); e(f"s_lshl_b32 s{sT0}, s{sW}, 10"); e(f"s_add_u32 s{sT0}, s{sT0}, {LDS_EX}")
            e(f"v_add_u32 v11, s{sT0}, v10"); e(f"v_add_u32 v10, {LDS_EX}, v10")
            e(f"ds_write_b128 v11, {vr(vSh,4)}"); e(f"ds_write_b128 v11, {vr(vSh+4,4)} offset:4096")
    o += pendW
    a1, a2, k0 = att_addr(vT)
    o += a1
    e("s_waitcnt vmcnt(8) lgkmcnt(0)"); e("s_barrier")
    for c in range(4): e(k_read(0, 0, c, base=k0))
    for i in range(8): e(f"ds_read_b128 {vr(vQ+64+4*i,4)}, v10 offset:{1024*i}")
    if cfg.dump_q:
        e("s_waitcnt lgkmcnt(0)")
        e(f"v_lshlrev_b32 v{tB}, 4, v0"); e(f"s_lshl_b32 s{sT0}, s{sH}, 2"); e(f"s_add_u32 s{sT0}, s{sT0}, s{sW}"); e(f"s_mul_i32 s{sT0}, s{sT0}, {18*1024}")
        for i in range(18):
            e(f"buffer_store_dwordx4 {vr(vQ+4*i,4)}, v{tB}, s[{sO}:{sO+3}], s{sT0} offen"); e(f"s_add_u32 s{sT0}, s{sT0}, 1024")
        e("s_waitcnt vmcnt(0)"); e("s_endpgm")
    def negm(E, srcs):
        tm = [vS + qt for qt in range(6)]
        for qt in range(6): E(f"v_mov_b32 v{tm[qt]}, v{srcs[qt]}")
        for qt in range(6): E(f"v_permlane32_swap_b32 v{srcs[qt]}, v{tm[qt]}")
        for qt in range(6): E(f"v_max_f32 v{srcs[qt]}, v{srcs[qt]}, v{tm[qt]}")
        for qt in range(6): E(f"v_mov_b32 v{tm[qt]}, v{srcs[qt]}")
        for qt in range(6): E(f"v_permlane16_swap_b32 v{srcs[qt]}, v{tm[qt]}")
        for qt in range(6): E(f"v_max_f32 v{srcs[qt]}, v{srcs[qt]}, v{tm[qt]}")
        for qt in range(6):
            for i in range(4): E(f"v_sub_f32 v{vNM+4*qt+i}, 0, v{srcs[qt]}")
    a2_all = list(a2)
    e(f"s_cmp_lg_u32 s{sRedo}, 0"); e("s_cbranch_scc1 L_truemax")
    o += a2[:10]; a2 = a2[10:]
    e("s_waitcnt lgkmcnt(8)")
    mx = [vS + 8 + qt for qt in range(6)]
    for qt in range(6):
        if qt == 4: e("s_waitcnt lgkmcnt(0)")
        nb = vNM + 4 * qt
        for c in range(4):
            e(f"{MF} {vr(nb,4)}, {ar(aK+4*c,4)}, {vr(vQ+16*qt+4*c,4)}, {'0' if c == 0 else vr(nb,4)}")
            if qt >= 2 and c == 1:
                p = vNM + 4 * (qt - 2); e(f"v_max3_f32 v{mx[qt-2]}, v{p}, v{p+1}, v{p+2}"); e(f"v_max_f32 v{mx[qt-2]}, v{mx[qt-2]}, v{p+3}")
            else:
                nv = 0
                while a2 and nv < 2:
                    l = a2.pop(0); e(l); nv += l.startswith("v_")
    o += a2
    for qt in (4, 5):
        p = vNM + 4 * qt; e(f"v_max3_f32 v{mx[qt]}, v{p}, v{p+1}, v{p+2}"); e(f"v_max_f32 v{mx[qt]}, v{mx[qt]}, v{p+3}")
    negm(e, mx)
    e("s_barrier")
    e("L_att:")
    for i in range(24): e(f"v_mov_b32 v{vL+i}, 0")
    e(f"s_mov_b32 s{sCnt}, 3"); e(f"s_mov_b32 s{sT3}, 65536"); e(f"s_mov_b32 s{sQs}, {(-32768) & 0xffffffff:#x}")
    e(f"s_add_u32 s{sKm}, s{sW8}, {KR[2]}")
    stamp(o, 3)
    if cfg.lstamp:
        e(f"s_add_u32 s{sX}, s{sPTR+14}, 0x4100000"); e(f"s_addc_u32 s{sX+1}, s{sPTR+15}, 0"); e(f"s_mov_b32 s{sX+2}, 0x100000"); e(f"s_mov_b32 s{sX+3}, 0x20000")
        e(f"s_lshl_b32 s{sT0}, s2, 2"); e(f"s_add_u32 s{sT0}, s{sT0}, s{sW}"); e(f"s_lshl_b32 s{sT0}, s{sT0}, 6"); e(f"v_mov_b32 v242, s{sT0}")
    A, bar = gen_attn_sched()
    N = A.n; CUT = 17 * PER
    pro = lgkm_waits(A.linear(bar[1], N, keep=lambda it: it == 1), slack=100)
    pl, _ = check_hazards([l for g, k, l in pro], "pro", fix=True)
    o += pl
    e("s_waitcnt lgkmcnt(0)")
    body = A.linear(0, N)
    two = lgkm_waits(body + [(10**6, "x", "MARK:")] + [(g + N, k, l) for g, k, l in body] + [(2 * N, "mf", body[0][2])])
    k_ = [i for i, x in enumerate(two) if x[2] == "MARK:"][0]
    body2 = [(g - N, k, l) for g, k, l in two[k_+1:-1]]
    e("L_loop:")
    bl = []
    for g, k, l in body2:
        if l.startswith("SWITCH"): continue
        bl.append(l)
        if g == N - 1 and k == "mf": bl += [f"s_sub_u32 s{sCnt}, s{sCnt}, 1", f"s_cmp_lg_u32 s{sCnt}, 0"]
    ci = bl.index(f"s_cmp_lg_u32 s{sCnt}, 0")
    assert not any("scc" in Ins(x).w for x in bl[ci+1:]), bl[ci:]
    bl.append("s_cbranch_scc1 L_loop")
    _, bad = check_hazards(pl[-30:] + bl + bl, "loop"); assert bad == 0 or cfg.lstamp
    o += bl
    ep = []; hist = []
    def E(l, tag=None):
        if cfg.nost and tag == "st" and (cfg.nost == 1 or len([x for x in hist if x == "st"]) % 2): l = l.replace(f"s[{sO}:{sO+3}]", f"s[{sWQ}:{sWQ+3}]")
        ep.append(l)
        if Ins(l).kind in ("vmem", "dma", "vstore"): hist.append(tag)
    def vwait(tag):
        last = max(i for i, x in enumerate(hist) if x == tag)
        n = sum(1 for x in hist[last+1:] if x != "sig")
        return f"s_waitcnt vmcnt({min(63, n)})"
    vwait1 = vwait
    LS = [KR[2], KR[2] + 4096, LDS_V[0], LDS_V[0] + 4096, KR[0], KR[0] + 4096, LDS_V[1], LDS_V[1] + 4096, KR[1], KR[1] + 4096]
    RS = [("a", 128), ("a", 144), ("a", 160), ("a", 176), ("v", 76), ("v", 92), ("a", 192), ("a", 208),
          ("a", 224), ("a", 240), ("v", 156), ("v", 172), ("v", 188), ("v", 204), ("v", 12), ("v", 28), ("a", 112)]
    LSOF = {0: 0}
    NR = len(RS); NB = 5
    aRing = 0; vOo = 5; vR = 236; vLn = 10; vZ = 11
    ac2 = lambda i: 108 + 4 * i if i < 12 else 44 + 4 * (i - 12)
    def rreg(step, nt, jj=None):
        k, b = RS[step % NR]; f = vr if k == "v" else ar
        return f(b + 4 * nt, 4) if jj is None else f(b + 4 * nt + 2 * jj, 2)
    def tr_reads(step):
        a = LS[LSOF[step]]; s_ = a >> 16
        return [f"ds_read_b64_tr_b16 {rreg(step, nt, jj)}, v{vRa+4*s_+nt} offset:{(a & 0xffff) + 2048*jj} ; wo step {step}" for nt in range(4) for jj in range(2)]
    def wo_dma(step):
        return [(([f"s_add_u32 m0, s{sW8}, {LS[LSOF[step]]}", f"s_xor_b32 s{sT2}, s{sR4}, {32768*step}"] if q == 0 else []),
                 f"buffer_load_dwordx4 v{vKv+q}, s[{sK}:{sK+3}], s{sT2} offen offset:{1024*q} lds ; wo step {step}") for q in range(4)]
    def emit_dma(step):
        for l in flat(wo_dma(step)): E(l, ("w", step))
    def emit_tr(step):
        E(vwait(("w", step)))
        for l in tr_reads(step): E(l)
    T = vT
    P, _ = gen_attn_sched(peel=True)
    G0 = bar[0]; B7 = bar[1]
    NP = CUT + 18
    Z = Sched(NP)
    for g in range(0, CUT):
        Z.mf[g] = P.mf[g]
        for x in A.gap[g]:
            if x.it or x.text.startswith("SWITCH"): continue
            if g < G0 + 1:
                if f"s[{sK}:{sK+3}]" in x.text or f"s{sKm}" in x.text or f"s{sKo}" in x.text or f"s{sKo+1}" in x.text: continue
                Z.put(g, Item(x.text.replace("vmcnt(8)", "vmcnt(V7)") + (" ; V7" if x.kind == "dma" else ""), x.kind))
            elif x.kind in ("ds", "t") or "cvt_pk" in x.text: Z.put(g, Item(x.text, x.kind))
            elif g == B7 and x.text in ("s_barrier",): Z.put(g, Item("s_waitcnt lgkmcnt(0)", "s")); Z.put(g, Item(x.text, "s"))
    for i in range(18): Z.mf[CUT + i] = P.mf[CUT + 16 + i]
    gg = CUT - 1
    for g in range(CUT, N):
        for x in P.gap[g]:
            if x.it == 0: gg = Z.put_win(gg + 1, CUT + 6, Item(x.text, x.kind))
    tags = {}
    def zput(lo, hi, text, kind, tag=None, pack=True, cap=CAP):
        if tag: tags[text] = tag
        return Z.put_win(lo, hi, Item(text, kind), pack=pack, cap=cap)
    def zf(lo, text, kind, tag=None, w=2):
        if tag: tags[text] = tag
        lo = min(lo, NP - 1)
        g = min(range(lo, min(lo + w, NP)), key=lambda x: (Z.cost[x] + (4 if kind in ("ds", "dma") and any(y.kind == "t" for y in Z.gap[x]) else 0), x))
        Z.put(g, Item(text, kind)); return g
    if cfg.v7step:
        seqv = []
        for g in range(0, G0):
            keep = []
            for x in Z.gap[g]:
                if x.text.endswith("; V7") or (x.kind == "s" and "m0" in x.text): seqv.append(x); Z.cost[g] -= x.cost
                else: keep.append(x)
            Z.gap[g] = keep
        g = 1; pre_ = []
        for x in seqv:
            if x.kind == "s": pre_.append(x.text); continue
            g = zf(g, x.text, "dma")
            for l in pre_: Z.put(g - 1, Item(l, "s"))
            pre_ = []; g += cfg.v7step
    vXw, vXr, vF, vFw = T, T + 1, 242, T + 3
    ad = [f"s_lshl_b32 s{sT0}, s{sW}, 14", f"s_lshr_b32 s{sT1}, s{sW}, 1", f"s_mul_i32 s{sT1}, s{sT1}, {KR[0] - 32768}", f"s_add_u32 s{sT0}, s{sT0}, s{sT1}",
          f"v_add_u32 v{vXw}, s{sT0}, v{vLn}", f"s_lshl_b32 s{sT0}, s{sW}, 11", f"v_add_u32 v{vXr}, s{sT0}, v{vLn}", f"v_add_u32 v{vXr+1}, {KR[0]}, v{vXr}",
          f"v_lshlrev_b32 v{vF}, 2, v0", f"v_add_u32 v{vF}, {LS[1]}, v{vF}", f"v_add_u32 v{vFw}, s{sW8}, v{vF}",
          f"s_lshl_b32 s{sT1}, s{sH}, 12", f"s_lshl_b32 s{sT3}, s{sW}, 10", f"s_add_u32 s{sT3}, s{sT3}, s{sT1}", f"s_add_u32 s{sT3}, s{sT3}, {16*131072}",
          f"s_lshl_b32 s{sT0}, s{sW}, 19", f"s_add_u32 s{sT0}, s{sT0}, s{sT1}", f"s_add_u32 s{sT1}, s{sT3}, 131072"]
    su = [f"s_lshl_b32 s{sT1}, s{sW}, 20",
          f"s_mov_b32 s{sD}, s{sPTR+8}", f"s_mov_b32 s{sD+1}, s{sPTR+9}", f"s_mov_b32 s{sD+2}, 4194304", f"s_mov_b32 s{sD+3}, 0x20000",
          f"s_lshr_b32 s{sPfo}, s2, 3", f"s_lshl_b32 s{sPfo}, s{sPfo}, 13", f"s_add_u32 s{sPfo}, s{sPfo}, s{sT1}",
          f"s_and_b32 s{sPfr}, s2, {6 if cfg.xrot else 0}", f"s_lshl_b32 s{sPfr}, s{sPfr}, 17", f"v_lshlrev_b32 v{vPfo}, 7, v0"]
    if cfg.cpf2:
        su += [f"s_getpc_b64 s[{sXo+32}:{sXo+33}]", "L_pc1:", f"s_add_u32 s{sXo+32}, s{sXo+32}, L_tail-L_pc1", f"s_addc_u32 s{sXo+33}, s{sXo+33}, 0",
               f"s_lshr_b32 s{sT2}, s2, 3", f"s_lshl_b32 s{sT2}, s{sT2}, 2", f"s_add_u32 s{sT2}, s{sT2}, s{sW}", f"s_lshl_b32 s{sT2}, s{sT2}, 6",
               f"v_min_u32 v11, 1, v0", f"v_lshlrev_b32 v11, 13, v11", f"v_add_u32 v11, s{sT2}, v11"]
    su += ["PF", f"s_and_b32 s{sR4}, s{sCg}, {cfg.orot}", f"s_lshl_b32 s{sR4}, s{sR4}, 15", f"s_or_b32 s{sR4}, s{sR4}, s{sT1}"]
    if cfg.xrot: su += [f"s_and_b32 s{sT1}, s2, 7", f"s_lshl_b32 s{sT1}, s{sT1}, 17", f"s_xor_b32 s{sR4}, s{sR4}, s{sT1}"]
    wo_voff(su.append, vKv, vT); wo_srd(su.append, sK)
    kg, r4, c4, tA, tB = vT, vT+1, vT+2, vT+3, vT+4
    su += [f"v_lshrrev_b32 v{kg}, 4, v0", f"v_bfe_u32 v{r4}, v0, 2, 2", f"v_and_b32 v{c4}, 3, v0",
           f"v_and_b32 v{tA}, 1, v{kg}", f"v_lshl_add_u32 v{tA}, v{tA}, 2, v{r4}", f"v_lshrrev_b32 v{tB}, 1, v{tA}", f"v_lshlrev_b32 v{tB}, 5, v{tB}",
           f"v_lshl_add_u32 v{tB}, v{tA}, 7, v{tB}", f"v_lshrrev_b32 v{tA}, 1, v{kg}", f"v_lshl_add_u32 v{tB}, v{tA}, 10, v{tB}",
           f"v_lshl_add_u32 v{tB}, v{c4}, 3, v{tB}", f"v_add_u32 v{vRa}, s{sW8}, v{tB}", f"s_lshl_b32 s{sT1}, s{sW}, 5", f"v_xor_b32 v{vRa}, s{sT1}, v{vRa}"]
    su += [f"v_xor_b32 v{vRa+nt}, {32*nt}, v{vRa}" for nt in range(1, 4)]
    su += [f"v_add_u32 v{vRa+4*s_+nt}, {65536*s_}, v{vRa+nt}" for s_ in range(1, 3) for nt in range(4)]
    su += ["v_lshlrev_b32 v10, 4, v0"]
    g = 2
    for l in su:
        if l == "PF":
            gsu = g
            if cfg.cpf2: zf(max(gsu, cfg.cpos), f"global_load_dword v{vPfd}, v11, s[{sXo+32}:{sXo+33}]", "dma")
            gp = gsu
            for i, x in enumerate(cfg.pfpos.split(",") if cfg.wopf else []):
                gp = zf(max(int(x), gp + 2), f"buffer_load_dword v{vPfd}, v{vPfo}, s[{sD}:{sD+3}], s{sPfx} offen ; pf{i}", "dma")
                for l_ in (f"s_xor_b32 s{sPfx}, s{sPfo}, s{sPfr}", f"s_add_u32 s{sPfo}, s{sPfo}, 262144"): Z.put(gp - 1, Item(l_, "s"))
        elif l.startswith("v_"): g = zput(g, g + 12, l, "v", pack=False) + 1
        else: Z.put(g, Item(l, "s"))
    g = G0 + 20
    for l in ad:
        if l.startswith("v_"): g = zput(g, g + 12, l, "v", pack=False) + 1
        else: Z.put(g, Item(l, "s"))
    def burst(g, lines):
        for l in lines: Z.put(g, Item(l, "v"))
    def pk(b, r):
        return f"v_pk_mul_f32 {vr(b,2)}, {vr(b,2)}, {vr(r & ~1,2)} op_sel:[0,{r & 1}] op_sel_hi:[1,{r & 1}]"
    sFl = sVm
    g = cfg.xw0
    for i in range(16): g = zf(g, f"ds_write_b128 v{vXw}, {ar(aO+128+4*i,4)} offset:{1024*i}", "ds") + 1
    g = zf(g, f"ds_write_b32 v{vFw}, v{vL+16}", "ds"); g = zf(g, f"ds_write_b32 v{vFw}, v{vL+20} offset:256", "ds")
    Z.put(g - 4, Item(f"s_mov_b32 s{sKd}, {LTHRESH:#x}", "s"))
    g = zf(g, f"v_add_f32 v{vR+4}, v{vL+16}, v{vL+20}", "v") + 1
    g = zf(g, f"v_cmp_nge_f32 s[{sFl}:{sFl+1}], s{sKd}, v{vR+4}", "v")
    XA = g + 7
    Z.put(XA, Item("s_waitcnt lgkmcnt(0)", "s")); Z.put(XA, Item("s_barrier", "s"))
    bA = [vQ + 64 + 4 * i for i in range(4)]; bB = [vQ + 80 + 4 * i for i in range(4)]; bC = [vNM + 16, vNM + 20, vL + 16, vL + 20]
    lr = [[236, 237, 238, 239], [5, 6, 7, 8]]
    def prd(wv, dst): return [f"ds_read_b128 {vr(dst[i],4)}, v{vXr+(wv>>1)} offset:{16384*(wv&1)+8192*(i>>1)+1024*(i&1)}" for i in range(4)]
    def padd(d, x): return [f"v_pk_add_f32 {vr(d[i]+r,2)}, {vr(d[i]+r,2)}, {vr(x[i]+r,2)}" for i in range(4) for r in (0, 2)]
    g = XA
    rd = prd(0, bA) + prd(1, bB) + prd(2, bC) + [f"ds_read_b32 v{lr[j][wv]}, v{vF} offset:{8192*wv+256*j}" for wv in range(4) for j in range(2)]
    for i, r in enumerate(rd): g = zf(g + (i & 1), r, "ds")
    gt = g + 1
    g = gt + 8
    while any(y.kind == "t" for y in Z.gap[g]): g += 1
    burst(g, padd(bA, bB))
    g3 = g + 1
    for i, r in enumerate(prd(3, bB)): g3 = zf(g3 + (i & 1), r, "ds")
    g += 2
    lsum = []
    for j in range(2):
        x = lr[j]; lsum += [f"v_add_f32 v{x[0]}, v{x[0]}, v{x[1]}", f"v_add_f32 v{x[2]}, v{x[2]}, v{x[3]}", f"v_add_f32 v{x[0]}, v{x[0]}, v{x[2]}"]
    burst(g, padd(bA, bC) + lsum + [f"v_rcp_f32 v{lr[0][0]}, v{lr[0][0]}", f"v_rcp_f32 v{lr[0][1]}, v{lr[1][0]}"])
    XB = g3 + 9
    while any(y.kind == "t" for y in Z.gap[XB]): XB += 1
    Z.put(XB, Item("s_waitcnt lgkmcnt(0)", "s")); Z.put(XB, Item("s_barrier", "s"))
    burst(XB, padd(bA, bB) + [pk(bA[i] + r, lr[0][i >> 1]) for i in range(4) for r in (0, 2)]
          + [f"v_cvt_pk_bf16_f32 v{bB[0]+i}, v{bA[0]+2*i}, v{bA[0]+2*i+1}" for i in range(8)])
    g = XB
    for j in range(2):
        d = f"buffer_store_dwordx4 {vr(bB[j],4)}, v{vLn}, s[{sO}:{sO+3}], s{sT3 if j == 0 else sT1} offen{cfg.st_sc}"
        g = zf(g + 1, d, "dma", tag=("prov", "st"))
    GS = g + 2
    free = [(cfg.d0, 0)] + [(XB + 1, i) for i in (1, 2, 3, 4, 5)] + [(B7 + 1, i) for i in (6, 7, 8, 9)]
    ravail = [XA] * 4 + [GS] * 2 + [CUT - 16, CUT - 16]
    gd = cfg.d0; gtr = gt + 1; nxt = 0; pend = []; ntr = 0; LSOF.clear()
    while True:
        free.sort()
        t0 = max(gd, free[0][0]) if free else 10**6
        if pend and ntr < len(ravail):
            tt = max(pend[0][1] + cfg.land, ravail[ntr], gtr)
            if tt <= t0 and tt + 8 < NP:
                st, gi = pend.pop(0); g = tt
                for i, r in enumerate(tr_reads(st)): g = zf(g + (i & 1), r, "ds", tag=("need", ("w", st)) if i == 0 else None)
                gtr = g + 1; free.append((g + 8, LSOF[st])); ntr += 1
                continue
        if t0 + 8 >= NP: break
        gf, sl = free.pop(0); LSOF[nxt] = sl
        w_ = wo_dma(nxt)
        if any(LSOF.get(x) == sl for x in range(nxt)): w_[0] = ([f"s_waitcnt lgkmcnt(15) ; slot {nxt}"] + w_[0][0], w_[0][1])
        g = t0
        for q, (p_, d) in enumerate(w_):
            g = zf(g, d, "dma", tag=("prov", ("w", nxt)), w=2 if t0 + 12 < NP else 1)
            for l in p_: Z.put(g - 1, Item(l, "s"))
            g += 2 if t0 + 12 < NP else 1
        pend.append((nxt, g)); gd = max(t0 + cfg.dstep, g); nxt += 1
    free = [x[1] for x in sorted(free)]
    sys.stderr.write(f"last stage: XA {XA} XB {XB} GS {GS}; wo steps issued {nxt}, in registers {ntr}; overflow {sum(max(0, c - CAP) for c in Z.cost)}\n")
    E("L_last:")
    seq = Z.linear(0, NP)
    seq2 = lgkm_waits([(g - N, k, l) for g, k, l in body if g >= bar[1] and not l.startswith("SWITCH")] + [(-1, "x", "MARK:")] + seq)
    seq2 = seq2[[x[2] for x in seq2].index("MARK:") + 1:]
    dsq = []
    for g, k, l in seq2:
        if "; slot" in l:
            st = int(l.split()[-1]); prev = max(x for x in range(st) if LSOF[x] == LSOF[st])
            idx = max(i for i, x in enumerate(dsq) if x.endswith(f"wo step {prev}"))
            l = f"s_waitcnt lgkmcnt({min(15, len(dsq) - 1 - idx)})"
        if l.startswith("ds_"): dsq.append(l)
        if l.endswith("; V7"): tags[l] = ("prov", "V7")
        if "vmcnt(V7)" in l: l = vwait("V7") + " lgkmcnt(0)"
        tg = tags.get(l)
        if tg and tg[0] == "need": E(vwait(tg[1]))
        E(l, tg[1] if tg and tg[0] == "prov" else None)
    E("L_tail:")
    stamp(ep, 4)
    for qt in range(4): E(f"v_rcp_f32 v{vR+qt}, v{vL+4*qt}")
    chk = [f"s_mov_b32 s{sT3}, {LTHRESH:#x}",
           f"v_add_f32 v{T}, v{vL}, v{vL+4}", f"v_add_f32 v{T+1}, v{vL+8}, v{vL+12}",
           f"v_add_f32 v{T}, v{T}, v{T+1}", f"v_cmp_nge_f32 vcc, s{sT3}, v{T}",
           f"v_lshlrev_b32 v{vF}, 2, v0", f"v_add_u32 v{vF}, {{FL}}, v{vF}", f"v_add_u32 v{T+1}, s{sW8}, v{vF}",
           f"s_or_b64 vcc, vcc, s[{sFl}:{sFl+1}]", f"s_cselect_b32 s{sT3}, 1, 0", f"v_mov_b32 v{T+2}, s{sT3}"]
    todo = [st for st, gi in pend]
    fl = 220
    if free: FS = free.pop(0); first = []
    else: first = [todo.pop(0)]; FS = LSOF[first[0]]
    for k in range(16):
        qt, kc = k >> 2, k & 3
        b0 = 108 + 12 * (k % 2)
        if k == 0:
            for st in first: emit_tr(st); ntr += 1
        if k == 3:
            E("s_waitcnt lgkmcnt(0)"); E("s_barrier")
            for wv in range(4): E(f"ds_read_b32 v{fl+wv}, v{vF} offset:{8192*wv}")
        if k == 4:
            E("s_waitcnt lgkmcnt(0)")
            E(f"v_or_b32 v{fl}, v{fl}, v{fl+1}"); E(f"v_or3_b32 v{fl}, v{fl}, v{fl+2}, v{fl+3}")
            E(f"v_readfirstlane_b32 s{sT2}, v{fl}")
            E(f"s_andn2_b32 s{sT2}, s{sT2}, s{sRedo}"); E(f"s_cmp_lg_u32 s{sT2}, 0"); E("s_cbranch_scc1 L_fallback")
        if k >= 5 and todo and todo[0] < 16:
            st = todo.pop(0); emit_tr(st); free.append(LSOF[st]); ntr += 1
        for i in range(8): E(f"v_accvgpr_read_b32 v{b0+i}, a{aO+32*qt+8*kc+i}")
        for i in range(4): E(pk(b0 + 2 * i, vR + qt))
        for i in range(4): E(f"v_cvt_pk_bf16_f32 v{b0+8+i}, v{b0+2*i}, v{b0+2*i+1}")
        E(f"buffer_store_dwordx4 {vr(b0+8,4)}, v{vLn}, s[{sO}:{sO+3}], s{sT0} offen offset:{1024*kc}{cfg.st_sc}", "st")
        if kc == 3 and qt < 3: E(f"s_add_u32 s{sT0}, s{sT0}, 131072")
        if k == 1:
            for l in chk: E(l.replace("{FL}", str(LS[FS])))
            E("s_waitcnt lgkmcnt(0)"); E(f"ds_write_b32 v{T+1}, v{T+2}")
    stamp(ep, 5)
    E("s_waitcnt lgkmcnt(0)")
    for _ in range(cfg.npost):
        LSOF[nxt] = free.pop(0); emit_dma(nxt); todo.append(nxt); nxt += 1
    E(f"s_mov_b32 s{sD}, s{sPTR+12}"); E(f"s_mov_b32 s{sD+1}, s{sPTR+13}"); E(f"s_mov_b32 s{sD+2}, 256"); E(f"s_mov_b32 s{sD+3}, 0x20000")
    E(f"s_lshl_b32 s{sT0}, s{sMt}, 17"); E(f"s_add_u32 s{sX}, s{sPTR+14}, s{sT0}"); E(f"s_addc_u32 s{sX+1}, s{sPTR+15}, 0")
    E(f"s_lshl_b32 s{sT0}, s{sOdd}, 17"); E(f"s_sub_u32 s{sX+2}, {5*131072}, s{sT0}"); E(f"s_mov_b32 s{sX+3}, 0x20000")
    E(f"s_lshl_b32 s{sT0}, s{sMt}, 14"); E(f"s_add_u32 s{sWQ}, s{sPTR+10}, s{sT0}"); E(f"s_addc_u32 s{sWQ+1}, s{sPTR+11}, 0")
    E(f"s_lshl_b32 s{sT0}, s{sOdd}, 14"); E(f"s_sub_u32 s{sWQ+2}, {5*16384}, s{sT0}"); E(f"s_mov_b32 s{sWQ+3}, 0x20000")
    E(f"v_mov_b32 v{vZ}, 0"); E(f"v_mov_b32 v{T}, 1"); E(f"v_mov_b32 v{vOo}, v{vLn}")
    for i in range(1, 5): E(f"v_add_u32 v{vOo+i}, {131072*i}, v{vLn}")
    vPo = T + 1; vPd = T + 2
    E(f"v_lshrrev_b32 v{vPo}, 3, v0"); E(f"v_lshlrev_b32 v{vPo}, 17, v{vPo}"); E(f"v_and_b32 v{T+3}, 7, v0"); E(f"v_lshl_add_u32 v{vPo}, v{T+3}, 7, v{vPo}")
    sSo, sPo = sXo, sXm
    assert not cfg.opf
    E(f"s_lshr_b32 s{sPo}, s{sR4}, 5")
    E(f"s_lshl_b32 s{sT0}, s{sB}, 5"); E(f"s_and_b32 s{sT1}, s2, 7"); E(f"s_lshl_b32 s{sT1}, s{sT1}, 5")
    E(vwait("st")); E("s_barrier")
    E(f"s_cmp_lg_u32 s{sW}, 0"); E("s_cbranch_scc1 L_nosig")
    E("s_mov_b64 exec, 1"); ep.append(f"buffer_atomic_add v{T}, v{vZ}, s[{sD}:{sD+3}], s{sT0} offen")
    if cfg.epoll: ep.append(f"buffer_load_dword v{T+3}, v{vZ}, s[{sD}:{sD+3}], s{sT1} offen sc1")
    E("s_mov_b64 exec, -1")
    E("L_nosig:")
    hist.append("sig")
    stamp(ep, 6)
    free.append(FS)
    prev = None
    while True:
        while free and nxt <= 26:
            LSOF[nxt] = free.pop(0); emit_dma(nxt); todo.append(nxt); nxt += 1
        if todo[0] <= 16:
            st = todo.pop(0); emit_tr(st)
            if prev is not None: E("s_waitcnt lgkmcnt(8)"); free.append(LSOF[prev])
            prev = st
        elif prev is not None:
            E("s_waitcnt lgkmcnt(0)"); free.append(LSOF[prev]); prev = None
        else: break
    assert nxt == 27 and todo == list(range(17, 27)), (nxt, todo)
    for st in range(27, 32): LSOF[st] = LSOF[st - 10]
    stamp(ep, 7)
    E(f"s_cmp_lg_u32 s{sW}, 0"); E("s_cbranch_scc1 L_ready")
    E(f"s_mov_b32 s{sCnt}, 0x40000")
    if cfg.epoll:
        E(f"v_readfirstlane_b32 s{sT0}, v{T+3}"); E(f"s_cmp_ge_u32 s{sT0}, 32"); E("s_cbranch_scc1 L_ready")
    if cfg.poll1: E("s_mov_b64 exec, 1")
    E("L_poll:")
    ep.append(f"buffer_load_dword v{T+3}, v{vZ}, s[{sD}:{sD+3}], s{sT1} offen sc1")
    E("s_waitcnt vmcnt(0)"); E(f"v_readfirstlane_b32 s{sT0}, v{T+3}")
    E(f"s_sub_u32 s{sCnt}, s{sCnt}, 1"); E(f"s_cmp_eq_u32 s{sCnt}, 0"); E("s_cbranch_scc1 L_got")
    E(f"s_cmp_ge_u32 s{sT0}, 32"); E("s_cbranch_scc1 L_got")
    E(f"s_sleep {cfg.sleep}"); E("s_branch L_poll")
    E("L_got:"); E("s_mov_b64 exec, -1")
    E("L_ready:")
    E("s_barrier")
    stamp(ep, 8); stamp(ep, 5, True)
    def o_loads(st):
        r = []
        for i in range(5):
            pre = [f"s_xor_b32 s{sSo}, s{sPo}, {1024*st}"] if i == 0 else []
            r.append((pre, f"buffer_load_dwordx4 {ar(aRing+20*(st % NB)+4*i,4)}, v{vOo+i}, s[{sX}:{sX+3}], s{sSo} offen{cfg.ld_sc} ; o step {st}"))
        return r
    def o_pf(g): return [(([f"s_add_u32 s{sPo}, s{sPo}, 8192"] if g else []), f"buffer_load_dword v{vPd}, v{vPo}, s[{sX}:{sX+3}], s{sPo} offen{cfg.ld_sc} ; prefetch {g}")]
    LA = cfg.ola
    for st in range(LA):
        for i, x in enumerate(o_loads(st)):
            for l in flat([x]): E(l, ("o", st, i))
        if cfg.opf and st in (1, 3):
            for l in flat(o_pf(st >> 1)): E(l, "pf")
    SO = Sched(640); tags = {}
    TM = 28 if cfg.fastred else 32
    order = [(st, i >> 2, i & 3) for st in range(TM) for i in range(20)] + [(st, tl_, nt) for tl_ in range(5) for st in range(TM, 32) for nt in range(4)]
    for g, (st, tl_, nt) in enumerate(order):
        a_ = vr(ac2(4 * tl_ + nt), 4)
        SO.mf[g] = Item(f"{MF} {a_}, {rreg(st, nt)}, {ar(aRing+20*(st % NB)+4*tl_,4)}, {'0' if st == 0 else a_} ; o step {st} tile {tl_}", "mf")
    for st in range(1, 16):
        for k_, r in enumerate(tr_reads(st + 16)):
            SO.put(20 * st + 12 + (k_ >> 1), Item(r, "ds"))
            if k_ == 0: tags[r] = ("need", ("w", st + 16))
    for st in range(min(TM, 32)):
        g0 = 20 * st; lst = []
        if st + LA < TM: lst += [(p, d, ("o", st + LA, i)) for i, (p, d) in enumerate(o_loads(st + LA))]
        if 2 <= st <= 6:
            w_ = wo_dma(st + 25); w_[0] = (["s_waitcnt lgkmcnt(0)"] + w_[0][0], w_[0][1])
            lst = lst + [(p, d, ("w", st + 25)) for p, d in w_]
        g = g0 + (1 if st == 0 else 0)
        for p, d, tg in lst:
            tags[d] = ("prov", tg)
            g = place_dmas(SO, [(p, d)], g, cfg.ostep, limit=g0 + 21)
    tA, tB, va, vx = T + 3, T + 4, T + 5, 220
    if cfg.fastred:
        sS4 = [sKo, sKo + 1, sVo, sVo + 1]
        for j in range(4): SO.put(20 * 20 + j, Item(f"s_xor_b32 s{sS4[j]}, s{sPo}, {1024*(TM+j)}", "s"))
        g = 20 * (TM - LA)
        for tl_ in range(5):
            for j in range(4):
                st = TM + j
                d = f"buffer_load_dwordx4 {ar(aRing+20*(st % NB)+4*tl_,4)}, v{vOo+tl_}, s[{sX}:{sX+3}], s{sS4[j]} offen{cfg.ld_sc} ; o step {st} tile {tl_}"
                lo = max(g, 20 * (st - NB) + 4 * tl_ + 4)
                tags[d] = ("prov", ("o", st, tl_))
                g = place_dmas(SO, [([], d)], lo, 4 if (4 * tl_ + j) % 5 == 4 else 4, limit=20 * TM + 16 * tl_ + 4 * j - 12)
        SO.put(20 * 21, Item("s_waitcnt lgkmcnt(0)", "s")); SO.put(20 * 21, Item("s_barrier", "s"))
        ad = [f"s_xor_b32 s{sT0}, s{sW}, 1", f"s_mul_i32 s{sT0}, s{sT0}, 15360", f"v_add_u32 v{vx}, s{sT0}, v{vLn}",
              f"s_xor_b32 s{sT0}, s{sW}, 2", f"s_mul_i32 s{sT0}, s{sT0}, 15360", f"v_add_u32 v{vx+1}, s{sT0}, v{vLn}",
              f"s_xor_b32 s{sT0}, s{sW}, 3", f"s_mul_i32 s{sT0}, s{sT0}, 15360", f"v_add_u32 v{vx+2}, s{sT0}, v{vLn}",
              f"s_mul_i32 s{sT0}, s{sW}, 15360", f"v_add_u32 v{tA}, s{sT0}, v{vLn}",
              f"v_and_b32 v{va}, 15, v0", f"v_lshlrev_b32 v{va}, 10, v{va}", f"v_lshrrev_b32 v{va+1}, 4, v0", f"v_lshl_add_u32 v{va}, v{va+1}, 3, v{va}",
              f"s_lshl_b32 s{sT0}, s{sCg}, 7", f"s_lshl_b32 s{sT1}, s{sW}, 5", f"s_add_u32 s{sT0}, s{sT0}, s{sT1}"]
        g = 20 * 22 + 6
        for l in ad:
            if l.startswith("v_"): SO.put(g, Item(l, "v")); g += 1
            else: SO.put(g, Item(l, "s"))
        late = []
        for tl_ in range(5):
            for j in range(1, 4):
                wr = f"ds_write_b128 v{vx+j-1}, {vr(ac2(4*tl_+j),4)} offset:{5120*(j-1)+1024*tl_}"
                gg = 20 * TM + 16 * tl_ + 12 + j + 9
                if gg < 640: SO.put(gg, Item(wr, "ds"))
                else: late.append(wr)
    seq = lgkm_waits(SO.linear(0, 640))
    def owait(st, tl_): return vwait(("o", st, tl_))
    E(owait(0, 4)); stamp(ep, 6, True)
    for idx, (g, k, l) in enumerate(seq):
        tg = tags.get(l)
        if tg and tg[0] == "need": E(vwait(tg[1]))
        E(l, tg[1] if tg and tg[0] == "prov" else None)
        if k == "mf" and g < 639:
            st, tl_, nt = order[g + 1]
            if st < TM and (g + 1) % 20 == 0: E(owait(st, 4))
            if st >= TM and nt == 0: E(owait(st, tl_))
        if k == "mf" and g == 319: stamp(ep, 7, True)
        if k == "mf" and g == 639: stamp(ep, 8, True)
    if cfg.fastred:
        for l in late: E(l)
        E("s_waitcnt lgkmcnt(0)"); E("s_barrier")
        rb = 156
        for i in range(5):
            for j in range(3): E(f"ds_read_b128 {vr(rb+12*i+4*j,4)}, v{tA} offset:{5120*j+1024*i}")
        for i in range(5):
            E(f"s_waitcnt lgkmcnt({3*(4-i)})")
            b0 = rb + 12 * i; a0 = ac2(4 * i)
            for r in range(0, 4, 2): E(f"v_pk_add_f32 {vr(a0+r,2)}, {vr(a0+r,2)}, {vr(b0+r,2)}"); E(f"v_pk_add_f32 {vr(b0+4+r,2)}, {vr(b0+4+r,2)}, {vr(b0+8+r,2)}")
            for r in range(0, 4, 2): E(f"v_pk_add_f32 {vr(a0+r,2)}, {vr(a0+r,2)}, {vr(b0+4+r,2)}")
            E(f"v_cvt_pk_bf16_f32 v{b0}, v{a0}, v{a0+1}"); E(f"v_cvt_pk_bf16_f32 v{b0+1}, v{a0+2}, v{a0+3}")
            E(f"buffer_store_dwordx2 {vr(b0,2)}, v{va}, s[{sWQ}:{sWQ+3}], s{sT0} offen")
            E(f"s_add_u32 s{sT0}, s{sT0}, 16384")
    else:
        E(f"s_mul_i32 s{sT0}, s{sW}, 20480"); E(f"v_add_u32 v{tB}, s{sT0}, v{vLn}")
        E(f"s_lshl_b32 s{sT0}, s{sW}, 10"); E(f"v_add_u32 v{tA}, s{sT0}, v{vLn}")
        E(f"v_and_b32 v{va}, 15, v0"); E(f"v_lshlrev_b32 v{va}, 10, v{va}"); E(f"v_lshrrev_b32 v{va+1}, 4, v0")
        E(f"v_lshl_add_u32 v{va}, v{va+1}, 3, v{va}")
        E(f"s_lshl_b32 s{sT0}, s{sCg}, 7"); E(f"s_lshl_b32 s{sT1}, s{sW}, 5"); E(f"s_add_u32 s{sT0}, s{sT0}, s{sT1}")
        E("s_barrier")
        for i in range(20): E(f"ds_write_b128 v{tB}, {vr(ac2(i),4)} offset:{1024*i}")
        E(f"v_add_u32 v{tB}, 40960, v{tA}")
        E("s_waitcnt lgkmcnt(0)"); E("s_barrier")
        for i in range(5):
            for wv in range(4):
                E(f"ds_read_b128 {vr(ac2(4*i+wv),4)}, v{tA if wv < 2 else tB} offset:{20480*(wv&1)+4096*i}")
        for i in range(5):
            E(f"s_waitcnt lgkmcnt({min(15, 4*(4-i))})")
            b0 = ac2(4 * i)
            for r in range(4): E(f"v_add_f32 v{b0+r}, v{b0+r}, v{b0+4+r}"); E(f"v_add_f32 v{b0+8+r}, v{b0+8+r}, v{b0+12+r}")
            for r in range(4): E(f"v_add_f32 v{b0+r}, v{b0+r}, v{b0+8+r}")
            E(f"v_cvt_pk_bf16_f32 v{b0+4}, v{b0}, v{b0+1}"); E(f"v_cvt_pk_bf16_f32 v{b0+5}, v{b0+2}, v{b0+3}")
            E(f"buffer_store_dwordx2 {vr(b0+4,2)}, v{va}, s[{sWQ}:{sWQ+3}], s{sT0} offen")
            E(f"s_add_u32 s{sT0}, s{sT0}, 16384")
    if cfg.stamp:
        vt = 108
        E("s_waitcnt vmcnt(0)")
        E(f"s_memtime s[{sST+10}:{sST+11}]"); E(f"s_memrealtime s[{sST+12}:{sST+13}]"); E("s_waitcnt lgkmcnt(0)")
        E(f"s_add_u32 s{sD}, s{sPTR+14}, 0x4000000"); E(f"s_addc_u32 s{sD+1}, s{sPTR+15}, 0")
        E(f"s_mov_b32 s{sD+2}, 0x100000"); E(f"s_mov_b32 s{sD+3}, 0x20000")
        E(f"s_lshl_b32 s{sT0}, s2, 2"); E(f"s_add_u32 s{sT0}, s{sT0}, s{sW}"); E(f"s_lshl_b32 s{sT0}, s{sT0}, 7")
        for i in range(16): E(f"v_mov_b32 v{vt+i}, s{sST+i}")
        for i in range(8): E(f"v_mov_b32 v{vt+16+i}, s{sST2+i}")
        for i in range(6): E(f"buffer_store_dwordx4 {vr(vt+4*i,4)}, v{vZ}, s[{sD}:{sD+3}], s{sT0} offen offset:{16*i}")
    E("L_end:"); E("s_endpgm")
    E("L_fallback:")
    E(f"s_mov_b32 s{sRedo}, 1"); E("s_waitcnt vmcnt(0) lgkmcnt(0)"); E("s_barrier")
    E(f"s_load_dwordx16 s[{sPTR}:{sPTR+15}], s[0:1], 0")
    E("s_branch L_restart")
    E("L_truemax:")
    for l in a2_all: E(l)
    mx = [vT + 12 + qt for qt in range(6)]
    for qt in range(6): E(f"v_mov_b32 v{mx[qt]}, 0xff800000")
    E(f"s_mov_b32 s{sCnt}, 8"); E(f"s_add_u32 s{sKm}, s{sW8}, {KR[0]}")
    E("s_waitcnt vmcnt(0) lgkmcnt(0)")
    E("L_fb_loop:")
    E("s_barrier")
    for l in flat(k_dma()) + adv(sKo, sKs): E(l)
    E("s_waitcnt vmcnt(0)"); E("s_barrier")
    for j in range(4):
        for idx in range(8): E(k_read(j, idx >> 2, idx & 3))
        E("s_waitcnt lgkmcnt(0)")
        for k16 in range(2):
            for qt in range(6):
                nb = vNM + 4 * qt
                for c in range(4):
                    E(f"{MF} {vr(nb,4)}, {ar(aK+16*k16+4*c,4)}, {vr(vQ+16*qt+4*c,4)}, {'0' if c == 0 else vr(nb,4)}")
            E("s_nop 7")
            for qt in range(6):
                nb = vNM + 4 * qt
                E(f"v_max3_f32 v{mx[qt]}, v{mx[qt]}, v{nb}, v{nb+1}"); E(f"v_max3_f32 v{mx[qt]}, v{mx[qt]}, v{nb+2}, v{nb+3}")
            E("s_nop 3")
    E(f"s_sub_u32 s{sCnt}, s{sCnt}, 1"); E(f"s_cmp_lg_u32 s{sCnt}, 0"); E("s_cbranch_scc1 L_fb_loop")
    E("s_barrier")
    E(f"s_mov_b32 s{sKo}, s{sK0}"); E(f"s_add_u32 s{sKo+1}, s{sK0}, 4096")
    for l in flat(k_dma()) + adv(sKo, sKs): E(l)
    negm(E, mx)
    E("s_waitcnt vmcnt(0)"); E("s_barrier")
    E("s_branch L_att")
    pre = [l for g, k, l in body2 if g >= N - 12 and not l.startswith("SWITCH")]
    n0_ = len(ep)
    el, _ = check_hazards(pre + ["Y:"] + ep, "ep", fix=True)
    sys.stderr.write(f"nops added after the loop: {len(el) - len(pre) - 1 - n0_}\n")
    o += el[el.index("Y:") + 1:]
    return o

def main():
    k1 = [l for l in gen() if l]
    n0 = len(k1); k1, _ = check_hazards(k1, "k1", fix=True)
    sys.stderr.write(f"{len(k1)} lines, {len(k1)-n0} nops added by final pass\n")
    hdr = open("standalone__gqa_block_cached__near_ridge.s.ref").read().split("\n")[:9]
    out = hdr + [f"; @launch grid=(256,1,1) block=(256,1,1) lds={LDS_TOTAL}",
                 '.amdgcn_target "amdgcn-amd-amdhsa--gfx950"', ".text"]
    fmt = lambda l: l if l.endswith(":") else "    " + l
    out += [f".globl {cfg.name}", ".p2align 8", f".type {cfg.name},@function"] + [fmt(l) for l in k1]
    out += ['.section .rodata,"a"', ".p2align 6", f""".amdhsa_kernel {cfg.name}
  .amdhsa_next_free_vgpr 512
  .amdhsa_next_free_sgpr 102
  .amdhsa_accum_offset 256
  .amdhsa_group_segment_fixed_size 0
  .amdhsa_kernarg_size 64
  .amdhsa_user_sgpr_count 2
  .amdhsa_user_sgpr_kernarg_segment_ptr 1
  .amdhsa_system_sgpr_workgroup_id_x 1
.end_amdhsa_kernel
"""]
    open(sys.argv[1], "w").write("\n".join(out))
main()
```

```python
import sys, math, struct
from asmlib import *

class Cfg:
    name = "standalone__gqa_block_cached__near_ridge_kernel"
    stamp = False
    map_bh = "h"
    kv_nt = True; q_nt = False
    dump_q = False
    e0 = 9
    dma_step = 20.0; qstep = 5
    wowarm = 0; k0pf = 0; dm = ''; trlag = 8; npost = 3; ola = 2; ostep = 1; epi = 'mix'; qstamp = False; cpf = 1; cpf_n = 5; cpf2 = 2; qrot = 1; orot = 0; ostamp = False; krot = 0; xw0 = 0; land = 45; xcap = 12; dstep = 17; pf_end = 0; pkq = 1; epoll = 0; wwpos = 0; poll1 = 1; pflate = 1; pfk = 0; pfsh = 13; xrot = 1; qx = 0; pfcut = 0; wo_nt = False; fastred = 1; k1pos = 1; nost = 0; olay = 0; pf_nt = False; pf0 = 4; pfpos = '150,152,154'; d0 = 370; cpos = 38; cpf3 = 1; v7step = 5; qstart = 0; hyb = 1; s0 = 1; q2step = 3; sstamp = False; pstamp = False; dgrp = 1
    wopf = 1
    opf = 0
    qpf = 0
    sleep = 4
    lstamp = False
    st_sc = " sc1"; ld_sc = " sc1"
cfg = Cfg()
for a in sys.argv[2:]:
    k, v = a.split("=")
    old = getattr(cfg, k)
    if k in ("st_sc", "ld_sc"): v = "".join(" " + x for x in v.split("+") if x)
    setattr(cfg, k, (v == "1") if isinstance(old, bool) else type(old)(v))

def NT(f): return " nt" if f else ""
def f2u(x): return struct.unpack("<I", struct.pack("<f", x))[0]
QSCALE = f2u(math.log2(math.e) / math.sqrt(128.0))
LTHRESH = f2u(2.0 ** (64 if cfg.s0 else 40))
MF = "v_mfma_f32_16x16x32_bf16"
CAP = 8

class Item:
    def __init__(self, text, kind, it=0):
        self.text = text; self.kind = kind; self.it = it
        self.cost = {"s": 0, "ds": 4, "v": 4, "t": 8, "dma": 8, "mf": 0}[kind]

class Sched:
    def __init__(self, n, periodic=False):
        self.n = n; self.periodic = periodic
        self.mf = [None] * n; self.gap = [[] for _ in range(n)]; self.cost = [0] * n
    def norm(self, g):
        if self.periodic: return g % self.n
        assert 0 <= g < self.n, g
        return g
    def put(self, g, item):
        g = self.norm(g); self.gap[g].append(item); self.cost[g] += item.cost
    def put_win(self, lo, hi, item, pack=False, cap=CAP):
        if not self.periodic: hi = min(hi, self.n - 1)
        cand = [g for g in range(lo, hi + 1) if self.cost[self.norm(g)] + item.cost <= cap]
        if cand:
            if pack:
                part = [g for g in cand if self.cost[self.norm(g)] > 0]
                best = part[0] if part and part[0] <= cand[0] + 3 else cand[0]
            else: best = cand[0]
        else:
            best = min(range(lo, hi + 1), key=lambda g: self.cost[self.norm(g)])
        self.put(best, item); return best
    def linear(self, lo, hi, keep=lambda it: True):
        out = []
        order = {"s": 0, "dma": 1, "ds": 1, "v": 2, "t": 2}
        for g in range(lo, hi):
            if self.mf[g] is not None and keep(self.mf[g].it): out.append((g, "mf", self.mf[g].text))
            for item in sorted(self.gap[g], key=lambda x: order[x.kind]):
                if keep(item.it): out.append((g, item.kind, item.text))
        return out

def lgkm_waits(seq, slack=6):
    out = []; q = []
    mfi = [i for i, x in enumerate(seq) if x[1] == "mf"]
    nxt = dict(zip(mfi, mfi[1:]))
    def need(use, g):
        nonlocal q
        idx = -1
        for k, (gg, regs) in enumerate(q):
            if regs & use: idx = k
        if idx >= 0:
            while idx + 1 < len(q) and q[idx + 1][0] <= g - slack: idx += 1
            n = min(len(q) - 1 - idx, 15)
            out.append((g, "s", f"s_waitcnt lgkmcnt({n})"))
            q = q[len(q) - n:] if n else []
    for i, (g, k, t) in enumerate(seq):
        ins = Ins(t)
        if ins.op == "s_waitcnt" and "lgkmcnt(0)" in t: q = []
        if ins.kind != "label": need(ins.r | ins.w, g)
        if ins.kind == "ds": q.append((g, set(ins.w)))
        out.append((g, k, t))
        if k == "mf" and i in nxt:
            n = Ins(seq[nxt[i]][2]); need(n.r | n.w, g)
    return out

sK, sV, sX, sWQ, sO, sD = 8, 12, 16, 20, 24, 28
sPTR = 32
sW, sB, sH, sT0, sT1 = 3, 4, 5, 6, 7
sKo, sVo = 48, 50
sKs, sVs = 52, 53
sVm = 54
sCnt, sRedo = 58, 59
sXo, sXm, sWo_, sWm = 60, 61, 62, 63
sT2, sQs, sT3 = 64, 65, 66
sKb, sKm, sKd, sKw = 67, 68, 69, 86
sRg, sCg, sMt, sOdd = 87, 88, 89, 90
sW8 = 91
sPfo = 101
sCP = 48
sPfx, sPfr = 39, 60
sKt2 = 39
sKmask, sVmask, sK0 = 32, 33, 38
sRot, sXc = 100, 101
sR4 = 63
sKt = 100
sST = 70
sST2 = 92
vKv = 1; vVv = 5; vPfd = 9
vQ = 12; vNM = 108; vL = 132; vS = 156; vP = 188; vKa = 204; vVa = 212; vOne = 228; vT = 232
vAcc = 108
aO = 0; aK = 192; aV = 224
KR = (131072, 98304, 65536); LDS_V = (0, 32768); LDS_EX = 65536
QSLOT = (0, 53248, 106496); LDS_TOTAL = 163840
UNIT_TILE = [0, 1, 2, 0, 1, 0, 1, 0, 1]
UNIT_KT =   [0, 0, 0, 1, 1, 2, 2, 3, 3]
PER = 33 if cfg.hyb else 34
NPV = PER - 16
Q1 = NPV - 9

def stamp(o, idx, alt=False):
    if cfg.pstamp and idx >= 5: return
    if cfg.sstamp and idx >= 5:
        if alt == 2: r = sST2 + 2 * (idx - 5); o.append(f"s_memtime s[{r}:{r+1}]")
        return
    if alt == 2: return
    if idx >= 5 and alt != cfg.ostamp: return
    if cfg.stamp:
        r = sST + 2 * idx if idx < 5 else sST2 + 2 * (idx - 5)
        o.append(f"s_memtime s[{r}:{r+1}]")

def k_dma():
    r = []
    for grp in range(2):
        for q in range(4):
            pre = []
            if q == 0: pre = [f"s_mov_b32 m0, s{sKm}"] if grp == 0 else [f"s_add_u32 m0, s{sKm}, 4096"]
            off = f" offset:{1024*q}" if q else ""
            r.append((pre, f"buffer_load_dwordx4 v{vKv+q}, s[{sK}:{sK+3}], s{sKo+grp} offen{off}{NT(cfg.kv_nt)} lds"))
    return r
def v_dma(slot):
    r = []
    for grp in range(2):
        for q in range(4):
            off = f" offset:{1024*q}" if q else ""
            r.append(([f"s_mov_b32 m0, s{sVm+2*slot+grp}"] if q == 0 else [],
                      f"buffer_load_dwordx4 v{vVv+q}, s[{sV}:{sV+3}], s{sVo+grp} offen{off}{NT(cfg.kv_nt)} lds"))
    return r
def adv(base, stride):
    m = sKmask if base == sKo else sVmask
    return [f"s_add_u32 s{base}, s{base}, s{stride}", f"s_add_u32 s{base+1}, s{base+1}, s{stride}",
            f"s_and_b32 s{base}, s{base}, s{m}", f"s_and_b32 s{base+1}, s{base+1}, s{m}"]
def flat(lst):
    out = []
    for pre, d in lst: out += pre + [d]
    return out

def place_dmas(S, lst, g, step, itf=lambda g: 0, limit=None):
    for pre, d in lst:
        gg = g
        while S.cost[S.norm(gg)] > 0: gg += 1
        if limit is not None: assert gg < limit, (gg, limit)
        for p in pre: S.put(gg - 1, Item(p, "s", itf(gg - 1)))
        S.put(gg, Item(d, "dma", itf(gg)))
        g = gg + step
    return g

def k_read(j, k16, c, base=None):
    va = (vKa + 2 * j if base is None else base) + (c & 1)
    return f"ds_read_b128 {ar(aK+16*k16+4*c,4)}, v{va} offset:{k16*4096 + (c>>1)*1024}"
def v_read(j, t, jj, slot):
    imm = LDS_V[slot] + jj * 4096 + (t >> 2) * 1024
    return f"ds_read_b64_tr_b16 {ar(aV+4*t+2*jj,2)}, v{vVa+4*j+(t&3)} offset:{imm}"

BG = PER * 7 + 16
LAST_TILE = [2, 0, 1, 0, 1, 0, 1, 0, 1]
def gen_attn_sched(peel=False):
    NU = 18; N = NU * PER; CUT = 17 * PER
    S = Sched(N, periodic=True)
    tile = lambda n: (LAST_TILE[n - 9] if (peel and 9 <= n < 18) else UNIT_TILE[n % 9])
    kt = lambda n: UNIT_KT[n % 9]
    slot = lambda n: (n // 9) & 1
    last = lambda n: UNIT_KT[n % 9] != UNIT_KT[(n + 1) % 9] or n % 9 == 8
    for n in range(NU):
        u = n + 1; it = 1 if u == NU else 0
        for i in range(16):
            q, k16, c = i >> 3, (i >> 2) & 1, i & 3
            qt = 2 * tile(u) + q; sb = vS + 16 * (u & 1) + 8 * q + 4 * k16
            cin = vr(vNM + 4 * qt, 4) if c == 0 else vr(sb, 4)
            S.mf[PER*n + i] = Item(f"{MF} {vr(sb,4)}, {ar(aK+16*k16+4*c,4)}, {vr(vQ+16*qt+4*c,4)}, {cin}", "mf", it)
        for i in range(NPV):
            q, t = (0, i) if i < Q1 else (1, i - Q1)
            qt = 2 * tile(n) + q; pb = vr(vP + 8 * (n & 1) + 4 * q, 4)
            if t < 8:
                o = ar(aO + 32 * qt + 4 * t, 4)
                S.mf[PER*n + 16 + i] = Item(f"{MF} {o}, {ar(aV+4*t,4)}, {pb}, {o}", "mf")
            else:
                l = vr(vL + 4 * qt, 4)
                S.mf[PER*n + 16 + i] = Item(f"{MF} {l}, {vr(vOne,4)}, {pb}, {l}", "mf")
    for n in range(1, NU + 1):
        sb = vS + 16 * (n & 1); pb = vP + 8 * (n & 1)
        itf = lambda g: 1 if (n == NU and g < N) else 0
        for j in range(16):
            g = PER * (n - 1) + cfg.e0 + 2 * j
            S.put(g, Item(f"v_exp_f32 v{sb+j}, v{sb+j}", "t", itf(g)))
            if j & 1: S.put(g + 1, Item(f"v_cvt_pk_bf16_f32 v{pb+(j>>1)}, v{sb+j-1}, v{sb+j}", "v", itf(g + 1)))
    def place_adds():
        if not cfg.hyb: return
        for n in range(1, NU + 1):
            sb = vS + 16 * (n & 1); l = vL + 8 * tile(n)
            for j in range(8):
                g = PER * (n - 1) + cfg.e0 + 2 * j + 1
                item = Item(f"v_add_f32 v{l+(j&1)}, v{l+(j&1)}, v{sb+j}", "v")
                gg = S.put_win(g, PER * (n + 1) - 4, item, pack=True)
                if n == NU and gg < N: item.it = 1
    bar = [BG, 9 * PER + BG]
    for bi, b in enumerate(bar):
        if cfg.lstamp: S.put(b, Item("s_memtime s[96:97]", "s"))
        S.put(b, Item("s_waitcnt vmcnt(8) lgkmcnt(0)", "s")); S.put(b, Item("s_barrier", "s"))
        if cfg.lstamp:
            S.put(b, Item(f"v_mov_b32 v240, s96", "s")); S.put(b, Item("s_memtime s[96:97]", "s")); S.put(b, Item("s_waitcnt lgkmcnt(0)", "s"))
            S.put(b, Item(f"v_mov_b32 v241, s96", "s"))
            S.put(b, Item(f"buffer_store_dwordx2 v[240:241], v242, s[{sX}:{sX+3}], 0 offen", "s")); S.put(b, Item(f"v_add_u32 v242, 8, v242", "s"))
        S.put(b, Item(f"SWITCH{bi}:", "s"))
    for n in range(NU):
        if last(n):
            nu = n + 1
            for t in range(8):
                for jj in range(2):
                    lo = PER*n + 16 + Q1 + t; hi = lo + 15
                    if nu % 9 == 7: hi = min(hi, PER*(n+1) + 10)
                    item = Item(v_read(kt(nu), t, jj, slot(nu)), "ds")
                    g = S.put_win(lo, hi, item, pack=True)
                    if nu >= NU and g < N: item.it = 1
    for n in range(NU):
        u = n + 1
        if last(u):
            nu = u + 1; it = 1 if nu >= NU else 0
            for idx in range(8):
                lo = PER*n + 8 + idx; hi = lo + 16
                if u % 9 == 8: lo = max(lo, PER*n + 16)
                S.put_win(lo, hi, Item(k_read(kt(nu), idx >> 2, idx & 3), "ds", it), pack=True)
    if peel:
        place_adds(); return S, bar
    for bi, b in enumerate(bar):
        g0 = b - 40
        for l in [f"s_mov_b32 s{sKt}, s{sKb}", f"s_cmp_eq_u32 s{sKb}, s{sKw}"]: S.put(g0, Item(l, "s"))
        S.put(b + 1, Item(f"s_mov_b32 s{sKm}, s{sKt}", "s"))
        S.put(g0, Item(f"s_cselect_b32 s{sKd}, s{sT3}, s{sQs}", "s"))
        S.put(g0 + 1, Item(f"s_add_u32 s{sKb}, s{sKb}, s{sKd}", "s"))
        for i in range(8): S.put_win(g0 + 2, b - 1, Item(f"v_add_u32 v{vKa+i}, s{sKd}, v{vKa+i}", "v"), pack=True)
        itf = lambda g: 1 if (bi == 1 and g < N) else 0
        lv = v_dma(bi); lk = k_dma()
        lv[0] = (adv(sVo, sVs) + lv[0][0], lv[0][1]); lk[0] = (adv(sKo, sKs) + lk[0][0], lk[0][1])
        st0 = (b + 2) if bi == 0 else CUT + 1
        lim = b + 9 * PER - 14
        step = min(cfg.dma_step, (lim - 36 - st0) / 15)
        g = st0
        for i, x in enumerate(lv + lk):
            g = place_dmas(S, [x], max(g, st0 + int((i - i % cfg.dgrp) * step)), 2 if cfg.dgrp == 1 else 1, itf, limit=lim)
    if False:
        for i, g in enumerate(int(x) for x in cfg.pfpos.split(",")):
            place_dmas(S, [([f"s_add_u32 s{sPfo}, s{sPfo}, {(32 << cfg.pfsh) if cfg.pfsh else 262144 // len(cfg.pfpos.split(','))}", f"s_xor_b32 s{sPfx}, s{sPfo}, s{sPfr}"], f"buffer_load_dword v{vPfd}, v{vPfo}, s[{sD}:{sD+3}], s{sPfx} offen{NT(cfg.pf_nt)} ; pf{i}")], g, 1, itf=lambda g: 1 if g >= CUT else 0)
    place_adds()
    for bi, b in enumerate(bar):
        n = 0; g = b - 1
        while True:
            its = [x for x in S.gap[g % N] if x.kind == "dma"]
            if its and f"s[{sV}:{sV+3}]" in its[0].text: break
            n += len(its); g -= 1
        for x in S.gap[b]:
            if "vmcnt(8)" in x.text: x.text = x.text.replace("vmcnt(8)", f"vmcnt({n})")
    return S, bar

def kv_setup(e, t):
    r8, p8, tA, tB, tC = t, t+1, t+2, t+3, t+4
    e(f"v_lshrrev_b32 v{r8}, 3, v0"); e(f"v_and_b32 v{p8}, 7, v0"); e(f"v_lshrrev_b32 v{tA}, 1, v{r8}")
    e(f"v_xor_b32 v{tB}, v{tA}, v{p8}"); e(f"v_lshlrev_b32 v{tC}, 8, v{r8}")
    e(f"v_lshl_add_u32 v{vKv+1}, v{tB}, 4, v{tC}"); e(f"v_xor_b32 v{vKv+3}, 64, v{vKv+1}")
    e(f"v_add_u32 v{vKv}, 1024, v{vKv+1}"); e(f"v_add_u32 v{vKv+2}, 1024, v{vKv+3}")
    e(f"v_add_u32 v{vKv+1}, 128, v{vKv+1}"); e(f"v_add_u32 v{vKv+3}, 128, v{vKv+3}")
    e(f"v_lshlrev_b32 v{tB}, 1, v{tA}"); e(f"v_xor_b32 v{tB}, v{tB}, v{p8}")
    e(f"v_lshl_add_u32 v{vVv+1}, v{tB}, 4, v{tC}")
    e(f"v_add_u32 v{vVv}, 1024, v{vVv+1}"); e(f"v_add_u32 v{vVv+1}, 128, v{vVv+1}")
    e(f"v_mov_b32 v{vVv+2}, v{vVv}"); e(f"v_mov_b32 v{vVv+3}, v{vVv+1}")
    e(f"s_lshl_b32 s{sT0}, s{sB}, 5"); e(f"s_add_u32 s{sT0}, s{sT0}, s{sH}"); e(f"s_lshl_b32 s{sT0}, s{sT0}, 18")
    for s, p in ((sK, sPTR + 2), (sV, sPTR + 4)):
        e(f"s_add_u32 s{s}, s{p}, s{sT0}"); e(f"s_addc_u32 s{s+1}, s{p+1}, 0")
        e(f"s_sub_u32 s{s}, s{s}, 1024"); e(f"s_subb_u32 s{s+1}, s{s+1}, 0")
        e(f"s_mov_b32 s{s+2}, {262144+1024}"); e(f"s_mov_b32 s{s+3}, 0x20000")
    e(f"s_lshr_b32 s{sK0}, s2, 3"); e(f"s_xor_b32 s{sK0}, s{sK0}, s2"); e(f"s_and_b32 s{sK0}, s{sK0}, {cfg.krot}"); e(f"s_lshl_b32 s{sK0}, s{sK0}, 15")
    e(f"s_add_u32 s{sK0}, s{sK0}, s{sW8}"); e(f"s_mov_b32 s{sKmask}, 0x3ffff"); e(f"s_mov_b32 s{sVmask}, 0x3ffff")
    for b_ in (sKo, sVo):
        e(f"s_mov_b32 s{b_}, s{sK0}"); e(f"s_add_u32 s{b_+1}, s{sK0}, 4096")
    e(f"s_mov_b32 s{sKs}, 32768"); e(f"s_mov_b32 s{sVs}, 32768")
    e(f"s_add_u32 s{sKb}, s{sW8}, {KR[0]}"); e(f"s_mov_b32 s{sKm}, s{sKb}"); e(f"s_add_u32 s{sKw}, s{sW8}, {KR[2]}")

def att_addr(t):
    L = []; e = L.append
    tA, tB, tC, q16, kg, r4, c4, k0 = t, t+1, t+2, t+3, t+4, t+5, t+6, t+7
    e(f"v_and_b32 v{q16}, 15, v0"); e(f"v_lshrrev_b32 v{kg}, 4, v0")
    e(f"v_lshrrev_b32 v{tA}, 3, v{q16}"); e(f"v_lshlrev_b32 v{tA}, 11, v{tA}")
    e(f"v_and_b32 v{tB}, 7, v{q16}"); e(f"v_lshl_add_u32 v{tA}, v{tB}, 7, v{tA}")
    e(f"v_lshrrev_b32 v{tB}, 1, v{q16}"); e(f"v_xor_b32 v{tB}, v{tB}, v{kg}")
    e(f"v_lshl_add_u32 v{k0}, v{tB}, 4, v{tA}"); e(f"v_add_u32 v{k0}, {KR[0]}, v{k0}"); e(f"v_xor_b32 v{k0+1}, 64, v{k0}")
    n1 = len(L)
    e(f"v_bfe_u32 v{r4}, v0, 2, 2"); e(f"v_and_b32 v{c4}, 3, v0")
    e(f"v_and_b32 v{tA}, 1, v{kg}"); e(f"v_lshl_add_u32 v{tA}, v{tA}, 2, v{r4}")
    e(f"v_lshrrev_b32 v{tB}, 1, v{tA}"); e(f"v_lshlrev_b32 v{tB}, 5, v{tB}"); e(f"v_lshl_add_u32 v{tB}, v{tA}, 7, v{tB}")
    e(f"v_lshrrev_b32 v{tA}, 1, v{kg}"); e(f"v_lshl_add_u32 v{tB}, v{tA}, 11, v{tB}"); e(f"v_lshl_add_u32 v{tC}, v{c4}, 3, v{tB}")
    for j in range(4):
        e(f"s_add_u32 s{sT0}, s{sW}, {j}"); e(f"s_and_b32 s{sT0}, s{sT0}, 3"); e(f"s_lshl_b32 s{sT0}, s{sT0}, 13")
        for c in range(2): e(f"v_add_u32 v{vKa+2*j+c}, s{sT0}, v{k0+c}")
        e(f"v_add_u32 v{vVa+4*j}, s{sT0}, v{tC}")
        for k in range(1, 4): e(f"v_xor_b32 v{vVa+4*j+k}, {32*k}, v{vVa+4*j}")
    for i in range(4): e(f"v_mov_b32 v{vOne+i}, 0x3f803f80")
    return L[:n1], L[n1:], k0

def wo_voff(e, dst, t):
    r8, p8, tA, tB = t, t+1, t+2, t+3
    e(f"v_lshrrev_b32 v{r8}, 3, v0"); e(f"v_and_b32 v{p8}, 7, v0")
    e(f"v_bfe_u32 v{tA}, v{r8}, 1, 2"); e(f"v_lshlrev_b32 v{tA}, 1, v{tA}"); e(f"v_xor_b32 v{tA}, v{tA}, v{p8}")
    e(f"v_lshlrev_b32 v{tB}, 10, v{r8}"); e(f"v_lshl_add_u32 v{dst}, v{tA}, 4, v{tB}")
    for q in range(1, 4): e(f"v_add_u32 v{dst+q}, {7168*q}, v{dst}")
def wo_srd(e, s):
    e(f"s_lshl_b32 s{sT0}, s{sCg}, 7")
    e(f"s_add_u32 s{s}, s{sPTR+8}, s{sT0}"); e(f"s_addc_u32 s{s+1}, s{sPTR+9}, 0")
    e(f"s_sub_u32 s{s+2}, 4194304, s{sT0}"); e(f"s_mov_b32 s{s+3}, 0x20000")

vPfo = 243
vRa = 244
def wo_pf(e, srd, first, n):
    e(f"v_lshlrev_b32 v{vT}, 12, v0"); e(f"s_lshl_b32 s{sT0}, s{sW}, 20"); e(f"s_lshl_b32 s{sT1}, s{sRg}, 10"); e(f"s_add_u32 s{sT0}, s{sT0}, s{sT1}")
    e(f"s_add_u32 s{sT0}, s{sT0}, {first*32768}")
    for i in range(n):
        if i: e(f"s_add_u32 s{sT0}, s{sT0}, 262144")
        part = first + 8 * i + 8 > 32
        if part: e(f"s_mov_b64 exec, {(1 << (8 * (32 - first - 8 * i))) - 1:#x}")
        e(f"buffer_load_dword v{vPfd}, v{vT}, s[{srd}:{srd+3}], s{sT0} offen")
        if part: e("s_mov_b64 exec, -1")
def switch_block(bi):
    L = []; e = L.append
    e(f"s_cmp_lg_u32 s{sCnt}, {2 if bi == 1 else 1}"); e(f"s_cbranch_scc1 L_sw{bi}")
    if bi == 1:
        wo_voff(e, vKv, vT); wo_srd(e, sK); e(f"s_mov_b32 s{sKmask}, -1")
        e(f"s_and_b32 s{sR4}, s{sCg}, {cfg.orot}"); e(f"s_lshl_b32 s{sR4}, s{sR4}, 15"); e(f"s_lshl_b32 s{sT1}, s{sW}, 20"); e(f"s_or_b32 s{sR4}, s{sR4}, s{sT1}")
        if cfg.xrot: e(f"s_and_b32 s{sT1}, s2, 7"); e(f"s_lshl_b32 s{sT1}, s{sT1}, 17"); e(f"s_xor_b32 s{sR4}, s{sR4}, s{sT1}")
        e(f"s_mov_b32 s{sKs}, 0"); e(f"s_mov_b32 s{sKo}, s{sR4}"); e(f"s_mov_b32 s{sKo+1}, 0x40000000")
        kg, r4, c4, tA, tB = vT, vT+1, vT+2, vT+3, vT+4
        e(f"v_lshrrev_b32 v{kg}, 4, v0"); e(f"v_bfe_u32 v{r4}, v0, 2, 2"); e(f"v_and_b32 v{c4}, 3, v0")
        e(f"v_and_b32 v{tA}, 1, v{kg}"); e(f"v_lshl_add_u32 v{tA}, v{tA}, 2, v{r4}")
        e(f"v_lshrrev_b32 v{tB}, 1, v{tA}"); e(f"v_lshlrev_b32 v{tB}, 5, v{tB}")
        e(f"v_lshl_add_u32 v{tB}, v{tA}, 7, v{tB}"); e(f"v_lshrrev_b32 v{tA}, 1, v{kg}"); e(f"v_lshl_add_u32 v{tB}, v{tA}, 10, v{tB}")
        e(f"v_lshl_add_u32 v{tB}, v{c4}, 3, v{tB}"); e(f"v_add_u32 v{vRa}, s{sW8}, v{tB}")
        if cfg.fastred: e(f"s_lshl_b32 s{sT1}, s{sW}, 5"); e(f"v_xor_b32 v{vRa}, s{sT1}, v{vRa}")
        for nt in range(1, 4): e(f"v_xor_b32 v{vRa+nt}, {32*nt}, v{vRa}")
        for s_ in range(1, 3):
            for nt in range(4): e(f"v_add_u32 v{vRa+4*s_+nt}, {65536*s_}, v{vRa+nt}")
        e(f"v_lshlrev_b32 v10, 4, v0"); e(f"s_lshl_b32 s{sWo_}, s{sW}, 20")
        if cfg.pfcut: e(f"s_mov_b32 s{sD+2}, 0")
        if cfg.pflate:
            e(f"s_mov_b32 s{sD+2}, 4194304")
            e(f"s_lshr_b32 s{sPfo}, s2, 3"); e(f"s_lshl_b32 s{sPfo}, s{sPfo}, 13"); e(f"s_add_u32 s{sPfo}, s{sPfo}, s{sWo_}"); e(f"s_sub_u32 s{sPfo}, s{sPfo}, 262144")
    elif bi == 0:
        for q in range(4): e(f"v_mov_b32 v{vVv+q}, v{vKv+q}")
        wo_srd(e, sV); e(f"s_mov_b32 s{sVmask}, -1")
        if cfg.cpf2:
            e(f"s_getpc_b64 s[{sT0}:{sT1}]"); e("L_pc1:")
            e(f"s_add_u32 s{sT0}, s{sT0}, L_tail-L_pc1"); e(f"s_addc_u32 s{sT1}, s{sT1}, 0")
            e(f"s_lshr_b32 s{sT2}, s2, 3"); e(f"s_lshl_b32 s{sT2}, s{sT2}, 2"); e(f"s_add_u32 s{sT2}, s{sT2}, s{sW}"); e(f"s_lshl_b32 s{sT2}, s{sT2}, 6")
            e(f"v_min_u32 v{vT}, 1, v0"); e(f"v_lshlrev_b32 v{vT}, 13, v{vT}"); e(f"v_add_u32 v{vT}, s{sT2}, v{vT}")
            e(f"global_load_dword v{vPfd}, v{vT}, s[{sT0}:{sT1}]")
        e(f"s_xor_b32 s{sVo}, s{sR4}, 65536"); e(f"s_xor_b32 s{sVo+1}, s{sR4}, 98304"); e(f"s_mov_b32 s{sVs}, 0")
    e(f"L_sw{bi}:")
    L, _ = check_hazards(L, "sw", fix=True)
    return L

def gen():
    o = []; e = o.append
    e(f"{cfg.name}:")
    e("s_cmp_ge_u32 s2, 256"); e("s_cbranch_scc1 L_end")
    e(f"s_load_dwordx16 s[{sPTR}:{sPTR+15}], s[0:1], 0")
    stamp(o, 0)
    if cfg.stamp: e(f"s_memrealtime s[{sST+14}:{sST+15}]")
    e("v_lshrrev_b32 v1, 6, v0"); e("v_and_b32 v0, 63, v0"); e(f"v_readfirstlane_b32 s{sW}, v1")
    e(f"s_mov_b32 s{sRedo}, 0")
    e("L_restart:")
    if cfg.map_bh == "b":
        e(f"s_and_b32 s{sB}, s2, 7"); e(f"s_lshr_b32 s{sH}, s2, 3")
    else:
        e(f"s_lshr_b32 s{sB}, s2, 5"); e(f"s_and_b32 s{sT0}, s2, 7"); e(f"s_lshl_b32 s{sT0}, s{sT0}, 2")
        e(f"s_bfe_u32 s{sT1}, s2, 0x20003"); e(f"s_add_u32 s{sH}, s{sT0}, s{sT1}")
    t = vT
    r8, p8, tA, tB, tC = t, t+1, t+2, t+3, t+4
    vB = vQ; vAd = vQ + 40; vXv = vQ + 60; vWv = vQ + 62; vSh = vQ + 64
    e(f"v_lshrrev_b32 v{r8}, 3, v0"); e(f"v_and_b32 v{p8}, 7, v0")
    e(f"v_lshrrev_b32 v{tA}, 1, v{r8}")
    e(f"v_and_b32 v{tB}, 1, v{tA}"); e(f"v_lshlrev_b32 v{tB}, 1, v{tB}"); e(f"v_xor_b32 v{tB}, v{tB}, v{p8}")
    e(f"v_lshlrev_b32 v{tC}, 13, v{r8}"); e(f"v_lshl_add_u32 v{vWv}, v{tB}, 4, v{tC}"); e(f"v_xor_b32 v{vWv+1}, 64, v{vWv}")
    e(f"s_and_b32 s{sT0}, s{sW}, 1"); e(f"s_lshl_b32 s{sT0}, s{sT0}, 2")
    e(f"v_xor_b32 v{tB}, v{tA}, v{p8}"); e(f"v_xor_b32 v{tC+1}, s{sT0}, v{tB}")
    e(f"v_lshlrev_b32 v{tC}, 10, v{r8}"); e(f"v_lshl_add_u32 v{vXv}, v{tC+1}, 4, v{tC}"); e(f"v_xor_b32 v{vXv+1}, 64, v{vXv}")
    e(f"s_mul_i32 s{sXo}, s{sW}, {9*8192}"); e(f"s_mul_i32 s{sXm}, s{sW}, {9*1024}")
    e(f"s_lshl_b32 s{sWo_}, s{sW}, 17"); e(f"s_lshl_b32 s{sWm}, s{sW}, 12"); e(f"s_add_u32 s{sWm}, s{sWm}, 36864")
    e(f"s_mul_i32 s{sT0}, s{sB}, 294912"); e(f"s_lshl_b32 s{sT1}, s{sH}, 8")
    e(f"s_mov_b32 s{sX+2}, 294912"); e(f"s_mov_b32 s{sX+3}, 0x20000")
    e(f"s_sub_u32 s{sWQ+2}, 4194304, s{sT1}"); e(f"s_mov_b32 s{sWQ+3}, 0x20000")
    e(f"s_add_u32 s{sRot}, s{sH}, s{sB}"); e(f"s_and_b32 s{sRot}, s{sRot}, {cfg.qrot}")
    if cfg.qx: e(f"s_and_b32 s{sXc}, s2, {cfg.qx}"); e(f"s_xor_b32 s{sRot}, s{sRot}, s{sXc}")
    if cfg.cpf:
        e("s_getpc_b64 s[96:97]"); e("L_pc0:")
        e(f"s_lshr_b32 s98, s2, 3"); e(f"s_lshl_b32 s98, s98, 2"); e(f"s_add_u32 s98, s98, s{sW}"); e("s_lshl_b32 s98, s98, 6")
    stamp(o, 5, 2)
    e("s_waitcnt lgkmcnt(0)")
    stamp(o, 6, 2)
    if cfg.cpf:
        for i in range(cfg.cpf_n):
            e(f"s_load_dword s99, s[96:97], s98"); e("s_add_u32 s98, s98, 8192")
    e(f"s_add_u32 s{sX}, s{sPTR+0}, s{sT0}"); e(f"s_addc_u32 s{sX+1}, s{sPTR+1}, 0")
    e(f"s_add_u32 s{sWQ}, s{sPTR+6}, s{sT1}"); e(f"s_addc_u32 s{sWQ+1}, s{sPTR+7}, 0")
    def q_dma(c):
        r = []; sl = QSLOT[c % 3]
        for q in range(4):
            go = (q >> 1) * 65536 + (q & 1) * 128
            rot = [f"s_xor_b32 s{sXc}, s{sRot}, {c}", f"s_lshl_b32 s{sT3}, s{sXc}, 19", f"s_add_u32 s{sT3}, s{sT3}, s{sWo_}",
                   f"s_lshl_b32 s{sXc}, s{sXc}, 7", f"s_add_u32 s{sXc}, s{sXc}, s{sXo}"] if q == 0 else []
            r.append((rot + [f"s_add_u32 m0, s{sWm}, {sl + 1024*q}", f"s_add_u32 s{sT2}, s{sT3}, {go}"],
                      f"buffer_load_dwordx4 v{vWv+(q>>1)}, s[{sWQ}:{sWQ+3}], s{sT2} offen{NT(cfg.q_nt)} lds ; chunk {c}"))
        for i in range(9):
            r.append(([f"s_add_u32 m0, s{sXm}, {sl + 1024*i}", f"s_add_u32 s{sT2}, s{sXc}, {i*8192}"],
                      f"buffer_load_dwordx4 v{vXv+(i&1)}, s[{sX}:{sX+3}], s{sT2} offen{NT(cfg.q_nt)} lds ; chunk {c}"))
        return r
    o += flat(q_dma(0))
    stamp(o, 7, 2)
    e(f"s_lshl_b32 s{sW8}, s{sW}, 13")
    kv_setup(e, t)
    for sl in range(2):
        for g in range(2): e(f"s_add_u32 s{sVm+2*sl+g}, s{sW8}, {LDS_V[sl] + 4096*g}")
    e(f"s_mul_i32 s{sT0}, s{sB}, 2359296")
    e(f"s_add_u32 s{sO}, s{sPTR+14}, s{sT0}"); e(f"s_addc_u32 s{sO+1}, s{sPTR+15}, 0")
    e(f"s_mov_b32 s{sO+2}, 2359296"); e(f"s_mov_b32 s{sO+3}, 0x20000")
    e(f"s_bfe_u32 s{sRg}, s2, 0x20003"); e(f"s_lshr_b32 s{sCg}, s2, 5")
    e(f"s_lshr_b32 s{sMt}, s{sRg}, 1"); e(f"s_mul_i32 s{sMt}, s{sMt}, 9"); e(f"s_and_b32 s{sOdd}, s{sRg}, 1")
    e(f"s_mul_i32 s{sT0}, s{sOdd}, 5"); e(f"s_add_u32 s{sMt}, s{sMt}, s{sT0}")
    e(f"s_and_b32 s{sT0}, s2, 7"); e(f"s_mul_i32 s{sT0}, s{sT0}, 18"); e(f"s_add_u32 s{sMt}, s{sMt}, s{sT0}")
    q16, kg, r4, c4 = t+6, t+7, t+8, t+9
    e(f"v_and_b32 v{q16}, 15, v0"); e(f"v_lshrrev_b32 v{kg}, 4, v0"); e(f"v_bfe_u32 v{r4}, v0, 2, 2"); e(f"v_and_b32 v{c4}, 3, v0")
    e(f"v_lshrrev_b32 v{tA}, 3, v{q16}"); e(f"v_lshlrev_b32 v{tA}, 10, v{tA}")
    e(f"v_and_b32 v{tB}, 7, v{q16}"); e(f"v_lshl_add_u32 v{tA}, v{tB}, 7, v{tA}")
    e(f"v_lshrrev_b32 v{tB}, 1, v{q16}"); e(f"v_xor_b32 v{tB}, v{tB}, v{kg}")
    e(f"v_lshl_add_u32 v{vAd}, v{tB}, 4, v{tA}"); e(f"v_xor_b32 v{vAd+1}, 64, v{vAd}")
    e(f"v_add_u32 v{vAd+2}, s{sW8}, v{vAd}"); e(f"v_add_u32 v{vAd+3}, s{sW8}, v{vAd+1}")
    e(f"v_lshrrev_b32 v{tA}, 1, v{r4}"); e(f"v_and_b32 v{tB}, 1, v{kg}"); e(f"v_lshl_add_u32 v{tA}, v{tB}, 1, v{tA}")
    e(f"v_lshlrev_b32 v{tA}, 5, v{tA}"); e(f"v_lshl_add_u32 v{tA}, v{c4}, 3, v{tA}"); e(f"v_lshl_add_u32 v{tA}, v{r4}, 7, v{tA}")
    e(f"v_lshl_add_u32 v{tA}, v{kg}, 11, v{tA}"); e(f"v_add_u32 v{vAd+4}, 36864, v{tA}")
    for k in range(1, 4): e(f"v_xor_b32 v{vAd+4+k}, {32*k}, v{vAd+4}")
    e(f"s_and_b32 s{sT0}, s{sW}, 1"); e(f"s_lshl_b32 s{sT0}, s{sT0}, 6"); e(f"s_lshr_b32 s{sT1}, s{sW}, 1"); e(f"s_lshl_b32 s{sT1}, s{sT1}, 10")
    e(f"v_xor_b32 v{vAd+8}, s{sT0}, v{vAd+4}"); e(f"v_add_u32 v{vAd+8}, s{sT1}, v{vAd+8}"); e(f"v_xor_b32 v{vAd+9}, 32, v{vAd+8}")
    e(f"s_mov_b32 s{sQs}, {QSCALE:#x}")
    if cfg.wwpos:
        e(f"s_mov_b32 s{sD}, s{sPTR+8}"); e(f"s_mov_b32 s{sD+1}, s{sPTR+9}"); e(f"s_mov_b32 s{sD+2}, 4194304"); e(f"s_mov_b32 s{sD+3}, 0x20000")
        e(f"v_and_b32 v254, 31, v0"); e(f"v_lshlrev_b32 v254, 7, v254"); e(f"s_lshl_b32 s{sKt2}, s2, 14"); e(f"s_lshl_b32 s{sT1}, s{sW}, 12"); e(f"s_add_u32 s{sKt2}, s{sKt2}, s{sT1}")
    if cfg.pkq: e(f"v_mov_b32 v252, s{sQs}"); e(f"v_mov_b32 v253, s{sQs}")
    if cfg.k0pf: e("v_lshlrev_b32 v252, 7, v0"); e("v_add_u32 v252, 1024, v252")

    NQ = 16 * 36
    S = Sched(NQ)
    fA = lambda t_: aK + 4 * t_
    fB = lambda p, q: vB + 16 * p + 4 * q
    fBs = lambda q: vB + 32 + 4 * q
    acc = lambda q, t_: vAcc + 32 * q + 4 * t_
    accs = lambda qs, u: vAcc + 128 + 8 * qs + 4 * u
    def rdA(ks, t_, jj):
        ad = vAd + 10 * ((ks >> 1) & 1); s = ks & 1
        if t_ < 8: return f"ds_read_b64_tr_b16 {ar(fA(t_)+2*jj,2)}, v{ad+4+(t_&3)} offset:{s*8192+(t_>>2)*1024+jj*512}"
        return f"ds_read_b64_tr_b16 {ar(fA(t_)+2*jj,2)}, v{ad+t_} offset:{s*8192+jj*512}"
    def rdB(ks, q):
        ad = vAd + 10 * ((ks >> 1) & 1); s = ks & 1
        if q < 4: return f"ds_read_b128 {vr(fB(ks&1,q),4)}, v{ad+2+s} offset:{2048*q}"
        return f"ds_read_b128 {vr(fBs(q-4),4)}, v{ad+s} offset:{32768+2048*(q-4)}"
    for ks in range(16):
        for i in range(36):
            if i < 32: t_, q = i >> 2, i & 3; a_, A, Bf = acc(q, t_), fA(t_), fB(ks & 1, q)
            else: u, qs = (i - 32) >> 1, i & 1; a_, A, Bf = accs(qs, u), fA(8 + u), fBs(qs)
            S.mf[36*ks + i] = Item(f"{MF} {vr(a_,4)}, {ar(A,4)}, {vr(Bf,4)}, {'0' if ks == 0 else vr(a_,4)}", "mf")
    QB = 9
    for c in range(8):
        gb = 72 * c + 36 + QB
        n = (13 + (cfg.wowarm if c == 0 else 0)) if c <= 5 else (8 if c == 6 else None)
        if cfg.k0pf and c in (cfg.k0pf, cfg.k0pf + 1): n += 1
        if cfg.wwpos and c in (cfg.wwpos, cfg.wwpos + 1) and n is not None: n += 1
        if cfg.qstamp: S.put(gb, Item("s_memtime s[96:97]", "s"))
        S.put(gb, Item(f"s_waitcnt vmcnt(CH{c+1}) lgkmcnt(0)" if n is not None else "s_waitcnt lgkmcnt(0)", "s"))
        S.put(gb, Item("s_barrier", "s"))
        if cfg.qstamp:
            S.put(gb, Item(f"v_mov_b32 v252, s96", "s")); S.put(gb, Item("s_memtime s[96:97]", "s")); S.put(gb, Item("s_waitcnt lgkmcnt(0)", "s"))
            S.put(gb, Item(f"v_mov_b32 v253, s96", "s"))
            S.put(gb, Item(f"buffer_store_dwordx2 v[252:253], v254, s[{sD}:{sD+3}], 0 offen", "s")); S.put(gb, Item(f"v_add_u32 v254, 8, v254", "s"))
    for ks in range(16):
        base = 36 * ks
        if ks:
            for k_, r in enumerate([rdA(ks, 8, 0), rdA(ks, 8, 1), rdB(ks, 4), rdB(ks, 5), rdA(ks, 9, 0), rdA(ks, 9, 1)]):
                S.put(base + (k_ >> 1), Item(r, "ds"))
        if ks < 15:
            lo0 = base + (QB if ks & 1 else 3)
            for q in range(4): S.put_win(lo0, base + 24, Item(rdB(ks + 1, q), "ds"))
            for t_ in range(8):
                for jj in range(2):
                    lo = max(base + 4 * t_ + 3, lo0)
                    S.put_win(lo, min(lo + 20, NQ - 1), Item(rdA(ks + 1, t_, jj), "ds"))
    for c in range(8):
        gb = 72 * c + 36 + QB
        if c + 3 < 8: lst = q_dma(c + 3)
        elif c == 5: lst = k_dma()
        elif c == 6: lst = v_dma(0)
        else:
            lst = k_dma(); lst[0] = (adv(sKo, sKs) + [f"s_add_u32 s{sKm}, s{sW8}, {KR[1]}"] + lst[0][0], lst[0][1])
            if cfg.k1pos: k1l = lst; lst = []
        if cfg.wwpos and c == cfg.wwpos - 1:
            lst = lst + [([], f"buffer_load_dword v{vPfd}, v254, s[{sD}:{sD+3}], s{sKt2} offen")]
        if cfg.k0pf and c == cfg.k0pf - 1:
            lst = lst + [([], f"buffer_load_dword v{vPfd}, v252, s[{sK}:{sK+3}], s{sKo} offen nt")]
        if cfg.qstart and c == 0:
            g_ = place_dmas(S, q_dma(1), 1, 2, limit=36 + QB - 6)
            g_ = place_dmas(S, q_dma(2), g_, cfg.q2step, limit=gb + 50)
            g_ = place_dmas(S, lst, max(g_, gb + 2), 3, limit=gb + 72 + 40)
        elif cfg.qstart and c in (1, 2):
            g_ = place_dmas(S, lst, max(g_, gb + 2), 3 if c == 1 else 4, limit=gb + 72 + (20 if c == 1 else 0))
        else:
            place_dmas(S, lst, gb + 2, (cfg.qstep - (len(lst) > 13)) if c < 7 else 3, limit=min(gb + 72, NQ))
    if not cfg.qstart: place_dmas(S, q_dma(2), 1, 2, limit=36 + QB)
    for c in range(7):
        d = QSLOT[(c + 1) % 3] - QSLOT[c % 3]
        for k in range(10):
            S.put_win(72 * c + 4, 72 * c + 40, Item(f"v_add_u32 v{vAd+10*((c+1)&1)+k}, {d & 0xffffffff:#x}, v{vAd+10*(c&1)+k}", "v"))
    g = 0
    for i in range(192): g = S.put_win(g, NQ - 1, Item(f"v_accvgpr_write_b32 a{i}, 0", "v"))
    sys.stderr.write(f"qproj gaps over cap: {sum(c > CAP for c in S.cost)}\n")
    if not cfg.qstart: o += flat(q_dma(1))
    stamp(o, 8, 2)
    if cfg.qstamp:
        e(f"s_add_u32 s{sD}, s{sPTR+14}, 0x4100000"); e(f"s_addc_u32 s{sD+1}, s{sPTR+15}, 0"); e(f"s_mov_b32 s{sD+2}, 0x100000"); e(f"s_mov_b32 s{sD+3}, 0x20000")
        e(f"s_lshl_b32 s{sT0}, s2, 2"); e(f"s_add_u32 s{sT0}, s{sT0}, s{sW}"); e(f"s_lshl_b32 s{sT0}, s{sT0}, 6"); e(f"v_mov_b32 v254, s{sT0}")
    if cfg.wowarm:
        e(f"s_mov_b32 s{sD}, s{sPTR+8}"); e(f"s_mov_b32 s{sD+1}, s{sPTR+9}"); e(f"s_mov_b32 s{sD+2}, 4194304"); e(f"s_mov_b32 s{sD+3}, 0x20000")
        e(f"v_and_b32 v{tA}, 31, v0"); e(f"v_lshlrev_b32 v{tA}, 7, v{tA}"); e(f"s_lshl_b32 s{sT0}, s2, 14"); e(f"s_lshl_b32 s{sT1}, s{sW}, 12"); e(f"s_add_u32 s{sT0}, s{sT0}, s{sT1}")
        e(f"buffer_load_dword v{vPfd}, v{tA}, s[{sD}:{sD+3}], s{sT0} offen")
    e(f"s_waitcnt vmcnt({0 if cfg.qstart else 13}) lgkmcnt(0)"); e("s_barrier")
    stamp(o, 1)
    first = [rdA(0, 0, 0), rdA(0, 0, 1)] + [rdB(0, q) for q in range(4)] + [rdA(0, t_, jj) for t_ in range(1, 10) for jj in range(2)] + [rdB(0, 4), rdB(0, 5)]
    qh = [] if cfg.qstart else [1] * 13
    for g, k, l in lgkm_waits([(-2, "ds", r) for r in first] + S.linear(0, NQ)):
        if "vmcnt(CH" in l:
            c_ = int(l.split("CH")[1][0]); assert qh.count(c_) == 13, (c_, qh)
            l = f"s_waitcnt vmcnt({len(qh) - 1 - max(i for i, x in enumerate(qh) if x == c_)}) lgkmcnt(0)"
        if l.startswith("buffer_"): qh.append(int(l.split()[-1]) if "; chunk" in l else -1)
        e(l)
    stamp(o, 2)
    def cvt_frag(src, dst):
        L = [f"v_mul_f32 v{src+i}, s{sQs}, v{src+i}" for i in range(8)]
        if cfg.pkq: L = [x for i in range(4) for x in (f"v_pk_mul_f32 {vr(src+2*i,2)}, {vr(src+2*i,2)}, v[252:253]", None)]
        L += [f"v_cvt_pk_bf16_f32 v{dst+i}, v{src+2*i}, v{src+2*i+1}" for i in range(4)]
        W = [f"v_permlane32_swap_b32 v{dst}, v{dst+2}", f"v_permlane32_swap_b32 v{dst+1}, v{dst+3}",
             f"v_permlane16_swap_b32 v{dst}, v{dst+2}", f"v_permlane16_swap_b32 v{dst+1}, v{dst+3}"]
        return L, W
    own = [(acc(q, 2 * c), vQ + 16 * q + 4 * c) for c in range(4) for q in range(4)]
    frs = own[:2] + [(accs(0, 0), vSh), (accs(1, 0), vSh + 4)] + own[2:]
    pendW = []
    for idx, (s_, d_) in enumerate(frs):
        L, W = cvt_frag(s_, d_)
        o += [x for x in L[:4] + pendW[:2] + L[4:8] + pendW[2:] + L[8:] if x]
        pendW = W
        if cfg.k1pos and idx >= 2 and idx % 2 == 0: o += flat([k1l.pop(0)])
        if idx == 4:
            e(f"v_lshlrev_b32 v10, 4, v0"); e(f"s_lshl_b32 s{sT0}, s{sW}, 10"); e(f"s_add_u32 s{sT0}, s{sT0}, {LDS_EX}")
            e(f"v_add_u32 v11, s{sT0}, v10"); e(f"v_add_u32 v10, {LDS_EX}, v10")
            e(f"ds_write_b128 v11, {vr(vSh,4)}"); e(f"ds_write_b128 v11, {vr(vSh+4,4)} offset:4096")
    o += pendW
    a1, a2, k0 = att_addr(vT)
    o += a1
    if cfg.s0: e("v_and_b32 v11, 48, v0"); e(f"v_add_u32 v11, {KR[0]}, v11")
    e("s_waitcnt vmcnt(8) lgkmcnt(0)"); e("s_barrier")
    for c in range(4):
        if cfg.s0: e(f"ds_read_b128 {vr(vS+4*c,4)}, v11 offset:{(c&1)*64+(c>>1)*1024}")
        else: e(k_read(0, 0, c, base=k0))
    for i in range(8): e(f"ds_read_b128 {vr(vQ+64+4*i,4)}, v10 offset:{1024*i}")
    if cfg.dump_q:
        e("s_waitcnt lgkmcnt(0)")
        e(f"v_lshlrev_b32 v{tB}, 4, v0"); e(f"s_lshl_b32 s{sT0}, s{sH}, 2"); e(f"s_add_u32 s{sT0}, s{sT0}, s{sW}"); e(f"s_mul_i32 s{sT0}, s{sT0}, {18*1024}")
        for i in range(18):
            e(f"buffer_store_dwordx4 {vr(vQ+4*i,4)}, v{tB}, s[{sO}:{sO+3}], s{sT0} offen"); e(f"s_add_u32 s{sT0}, s{sT0}, 1024")
        e("s_waitcnt vmcnt(0)"); e("s_endpgm")
    def negm(E, srcs):
        tm = [vS + qt for qt in range(6)]
        for qt in range(6): E(f"v_mov_b32 v{tm[qt]}, v{srcs[qt]}")
        for qt in range(6): E(f"v_permlane32_swap_b32 v{srcs[qt]}, v{tm[qt]}")
        for qt in range(6): E(f"v_max_f32 v{srcs[qt]}, v{srcs[qt]}, v{tm[qt]}")
        for qt in range(6): E(f"v_mov_b32 v{tm[qt]}, v{srcs[qt]}")
        for qt in range(6): E(f"v_permlane16_swap_b32 v{srcs[qt]}, v{tm[qt]}")
        for qt in range(6): E(f"v_max_f32 v{srcs[qt]}, v{srcs[qt]}, v{tm[qt]}")
        for qt in range(6):
            for i in range(4): E(f"v_sub_f32 v{vNM+4*qt+i}, 0, v{srcs[qt]}")
    a2_all = list(a2)
    e(f"s_cmp_lg_u32 s{sRedo}, 0"); e("s_cbranch_scc1 L_truemax")
    if cfg.s0:
        o += a2[:16]; a2 = a2[16:]
        e("s_waitcnt lgkmcnt(8)")
        for i in range(16): e(f"v_xor_b32 v{vS+i}, 0x80008000, v{vS+i}")
        for qt in range(6):
            if qt == 4: e("s_waitcnt lgkmcnt(0)")
            nb = vNM + 4 * qt
            for c in range(4):
                e(f"{MF} {vr(nb,4)}, {vr(vS+4*c,4)}, {vr(vQ+16*qt+4*c,4)}, {'0' if c == 0 else vr(nb,4)}")
                nv = 0
                while a2 and nv < 2:
                    l = a2.pop(0); e(l); nv += l.startswith("v_")
        o += a2
    else:
        o += a2[:10]; a2 = a2[10:]
        e("s_waitcnt lgkmcnt(8)")
        mx = [vS + 8 + qt for qt in range(6)]
        for qt in range(6):
            if qt == 4: e("s_waitcnt lgkmcnt(0)")
            nb = vNM + 4 * qt
            for c in range(4):
                e(f"{MF} {vr(nb,4)}, {ar(aK+4*c,4)}, {vr(vQ+16*qt+4*c,4)}, {'0' if c == 0 else vr(nb,4)}")
                if qt >= 2 and c == 1:
                    p = vNM + 4 * (qt - 2); e(f"v_max3_f32 v{mx[qt-2]}, v{p}, v{p+1}, v{p+2}"); e(f"v_max_f32 v{mx[qt-2]}, v{mx[qt-2]}, v{p+3}")
                else:
                    nv = 0
                    while a2 and nv < 2:
                        l = a2.pop(0); e(l); nv += l.startswith("v_")
        o += a2
        for qt in (4, 5):
            p = vNM + 4 * qt; e(f"v_max3_f32 v{mx[qt]}, v{p}, v{p+1}, v{p+2}"); e(f"v_max_f32 v{mx[qt]}, v{mx[qt]}, v{p+3}")
        negm(e, mx)
    e("s_barrier")
    e("L_att:")
    e(f"s_mov_b32 s{sCnt}, 3"); e(f"s_mov_b32 s{sT3}, 65536"); e(f"s_mov_b32 s{sQs}, {(-32768) & 0xffffffff:#x}")
    e(f"s_add_u32 s{sKm}, s{sW8}, {KR[2]}")
    stamp(o, 3)
    if cfg.lstamp:
        e(f"s_add_u32 s{sX}, s{sPTR+14}, 0x4100000"); e(f"s_addc_u32 s{sX+1}, s{sPTR+15}, 0"); e(f"s_mov_b32 s{sX+2}, 0x100000"); e(f"s_mov_b32 s{sX+3}, 0x20000")
        e(f"s_lshl_b32 s{sT0}, s2, 2"); e(f"s_add_u32 s{sT0}, s{sT0}, s{sW}"); e(f"s_lshl_b32 s{sT0}, s{sT0}, 6"); e(f"v_mov_b32 v242, s{sT0}")
    A, bar = gen_attn_sched()
    N = A.n; CUT = 17 * PER
    sys.stderr.write(f"loop: overflow {sum(max(0, c - CAP) for c in A.cost)}, empty gaps {sum(c == 0 for c in A.cost)}\n")
    pro = lgkm_waits(A.linear(bar[1], N, keep=lambda it: it == 1), slack=100)
    zl = [f"v_mov_b32 v{vL+i}, 0" for i in range(24)]; pz = []
    for g, k, l in pro:
        pz.append(l)
        if k == "mf": pz += zl[:2]; zl = zl[2:]
    assert not zl
    pl, _ = check_hazards(pz, "pro", fix=True)
    o += pl
    e("s_waitcnt lgkmcnt(0)")
    body = A.linear(0, N)
    two = lgkm_waits(body + [(10**6, "x", "MARK:")] + [(g + N, k, l) for g, k, l in body] + [(2 * N, "mf", body[0][2])])
    k_ = [i for i, x in enumerate(two) if x[2] == "MARK:"][0]
    body2 = [(g - N, k, l) for g, k, l in two[k_+1:-1]]
    e("L_loop:")
    bl = []
    for g, k, l in body2:
        if l.startswith("SWITCH"): continue
        bl.append(l)
        if g == N - 1 and k == "mf": bl += [f"s_sub_u32 s{sCnt}, s{sCnt}, 1", f"s_cmp_lg_u32 s{sCnt}, 0"]
    ci = bl.index(f"s_cmp_lg_u32 s{sCnt}, 0")
    assert not any("scc" in Ins(x).w for x in bl[ci+1:]), bl[ci:]
    bl.append("s_cbranch_scc1 L_loop")
    _, bad = check_hazards(pl[-30:] + bl + bl, "loop"); assert bad == 0 or cfg.lstamp
    o += bl
    ep = []; hist = []
    def E(l, tag=None):
        if cfg.nost and tag == "st" and (cfg.nost == 1 or len([x for x in hist if x == "st"]) % 2): l = l.replace(f"s[{sO}:{sO+3}]", f"s[{sWQ}:{sWQ+3}]")
        ep.append(l)
        if Ins(l).kind in ("vmem", "dma", "vstore"): hist.append(tag)
    def vwait(tag):
        last = max(i for i, x in enumerate(hist) if x == tag)
        n = sum(1 for x in hist[last+1:] if x != "sig")
        return f"s_waitcnt vmcnt({min(63, n)})"
    vwait1 = vwait
    LS = [KR[2], KR[2] + 4096, LDS_V[0], LDS_V[0] + 4096, KR[0], KR[0] + 4096, LDS_V[1], LDS_V[1] + 4096, KR[1], KR[1] + 4096]
    RS = [("a", 128), ("a", 144), ("a", 160), ("a", 176), ("v", 76), ("v", 92), ("a", 192), ("a", 208),
          ("a", 224), ("a", 240), ("v", 156), ("v", 172), ("v", 188), ("v", 204), ("v", 12), ("v", 28), ("a", 112)]
    LSOF = {0: 0}
    NR = len(RS); NB = 5
    aRing = 0; vOo = 5; vR = 236; vLn = 10; vZ = 11
    ac2 = lambda i: 108 + 4 * i if i < 12 else 44 + 4 * (i - 12)
    def rreg(step, nt, jj=None):
        k, b = RS[step % NR]; f = vr if k == "v" else ar
        return f(b + 4 * nt, 4) if jj is None else f(b + 4 * nt + 2 * jj, 2)
    def tr_reads(step):
        a = LS[LSOF[step]]; s_ = a >> 16
        return [f"ds_read_b64_tr_b16 {rreg(step, nt, jj)}, v{vRa+4*s_+nt} offset:{(a & 0xffff) + 2048*jj} ; wo step {step}" for nt in range(4) for jj in range(2)]
    def wo_dma(step):
        return [(([f"s_add_u32 m0, s{sW8}, {LS[LSOF[step]]}", f"s_xor_b32 s{sT2}, s{sR4}, {32768*step}"] if q == 0 else []),
                 f"buffer_load_dwordx4 v{vKv+q}, s[{sK}:{sK+3}], s{sT2} offen offset:{1024*q} lds ; wo step {step}") for q in range(4)]
    def emit_dma(step):
        for l in flat(wo_dma(step)): E(l, ("w", step))
    def emit_tr(step):
        E(vwait(("w", step)))
        for l in tr_reads(step): E(l)
    T = vT
    P, _ = gen_attn_sched(peel=True)
    G0 = bar[0]; B7 = bar[1]
    NP = CUT + NPV
    Z = Sched(NP)
    for g in range(0, CUT):
        Z.mf[g] = P.mf[g]
        for x in A.gap[g]:
            if x.it or x.text.startswith("SWITCH") or x.text.startswith("v_add_f32"): continue
            if g < G0 + 1:
                if f"s[{sK}:{sK+3}]" in x.text or f"s{sKm}" in x.text or f"s{sKo}" in x.text or f"s{sKo+1}" in x.text: continue
                Z.put(g, Item(x.text.replace("vmcnt(8)", "vmcnt(V7)") + (" ; V7" if x.kind == "dma" else ""), x.kind))
            elif x.kind in ("ds", "t") or "cvt_pk" in x.text: Z.put(g, Item(x.text, x.kind))
            elif g == B7 and x.text in ("s_barrier",): Z.put(g, Item("s_waitcnt lgkmcnt(0)", "s")); Z.put(g, Item(x.text, "s"))
    for i in range(NPV): Z.mf[CUT + i] = P.mf[CUT + 16 + i]
    gg = CUT - 1
    for g in range(CUT, N):
        for x in P.gap[g]:
            if x.it == 0 and not x.text.startswith("v_add_f32"): gg = Z.put_win(gg + 1, CUT + 6, Item(x.text, x.kind))
    if cfg.hyb:
        for g in range(0, 2 * PER):
            for x in A.gap[g]:
                if x.text.startswith("v_add_f32") and not x.it and int(x.text.split("v")[-1]) < vS + 16 and g < PER - 4 + 1: Z.put(g, Item(x.text, "v"))
        for n in range(1, 18):
            tl_ = LAST_TILE[n - 9] if n >= 9 else UNIT_TILE[n]
            sb = vS + 16 * (n & 1); l = vL + 8 * tl_
            for j in range(8):
                g = PER * (n - 1) + cfg.e0 + 2 * j + 1
                Z.put_win(g, min(PER * (n + 1) - 4, g + 30 if n == 9 else 10**6), Item(f"v_add_f32 v{l+(j&1)}, v{l+(j&1)}, v{sb+j}", "v"), pack=True)
    tags = {}
    def zput(lo, hi, text, kind, tag=None, pack=True, cap=CAP):
        if tag: tags[text] = tag
        return Z.put_win(lo, hi, Item(text, kind), pack=pack, cap=cap)
    def zf(lo, text, kind, tag=None, w=2):
        if tag: tags[text] = tag
        lo = min(lo, NP - 1)
        g = min(range(lo, min(lo + w, NP)), key=lambda x: (Z.cost[x] + (4 if kind in ("ds", "dma") and any(y.kind == "t" for y in Z.gap[x]) else 0), x))
        Z.put(g, Item(text, kind)); return g
    if cfg.v7step:
        seqv = []
        for g in range(0, G0):
            keep = []
            for x in Z.gap[g]:
                if x.text.endswith("; V7") or (x.kind == "s" and "m0" in x.text): seqv.append(x); Z.cost[g] -= x.cost
                else: keep.append(x)
            Z.gap[g] = keep
        g = 1; pre_ = []
        for x in seqv:
            if x.kind == "s": pre_.append(x.text); continue
            g = zf(g, x.text, "dma")
            for l in pre_: Z.put(g - 1, Item(l, "s"))
            pre_ = []; g += cfg.v7step
    vXw, vXr, vF, vFw = T, T + 1, 242, T + 3
    ad = [f"s_lshl_b32 s{sT0}, s{sW}, 14", f"s_lshr_b32 s{sT1}, s{sW}, 1", f"s_mul_i32 s{sT1}, s{sT1}, {KR[0] - 32768}", f"s_add_u32 s{sT0}, s{sT0}, s{sT1}",
          f"v_add_u32 v{vXw}, s{sT0}, v{vLn}", f"s_lshl_b32 s{sT0}, s{sW}, 11", f"v_add_u32 v{vXr}, s{sT0}, v{vLn}", f"v_add_u32 v{vXr+1}, {KR[0]}, v{vXr}",
          f"v_lshlrev_b32 v{vF}, 2, v0", f"v_add_u32 v{vF}, {LS[1]}, v{vF}", f"v_add_u32 v{vFw}, s{sW8}, v{vF}",
          f"s_lshl_b32 s{sT1}, s{sH}, 12", f"s_lshl_b32 s{sT3}, s{sW}, 10", f"s_add_u32 s{sT3}, s{sT3}, s{sT1}", f"s_add_u32 s{sT3}, s{sT3}, {16*131072}",
          f"s_lshl_b32 s{sT0}, s{sW}, 19", f"s_add_u32 s{sT0}, s{sT0}, s{sT1}", f"s_add_u32 s{sT1}, s{sT3}, 131072"]
    su = [f"s_lshl_b32 s{sT1}, s{sW}, 20",
          f"s_mov_b32 s{sD}, s{sPTR+8}", f"s_mov_b32 s{sD+1}, s{sPTR+9}", f"s_mov_b32 s{sD+2}, 4194304", f"s_mov_b32 s{sD+3}, 0x20000",
          f"s_lshr_b32 s{sPfo}, s2, 3", f"s_lshl_b32 s{sPfo}, s{sPfo}, 13", f"s_add_u32 s{sPfo}, s{sPfo}, s{sT1}",
          f"s_and_b32 s{sPfr}, s2, {6 if cfg.xrot else 0}", f"s_lshl_b32 s{sPfr}, s{sPfr}, 17", f"v_lshlrev_b32 v{vPfo}, 7, v0"]
    if cfg.cpf2:
        su += [f"s_getpc_b64 s[{sCP}:{sCP+1}]", "L_pc1:", f"s_add_u32 s{sCP}, s{sCP}, {'L_tail-L_pc1' if cfg.cpf2 == 1 else 0}", f"s_addc_u32 s{sCP+1}, s{sCP+1}, 0",
               f"s_lshr_b32 s{sT2}, s2, 3", f"s_lshl_b32 s{sT2}, s{sT2}, 2", f"s_add_u32 s{sT2}, s{sT2}, s{sW}", f"s_lshl_b32 s{sT2}, s{sT2}, 6",
               f"v_min_u32 v11, {1 if cfg.cpf2 == 1 else 2}, v0", f"v_lshlrev_b32 v11, 13, v11", f"v_add_u32 v11, s{sT2}, v11"]
    su += ["PF", f"s_and_b32 s{sR4}, s{sCg}, {cfg.orot}", f"s_lshl_b32 s{sR4}, s{sR4}, 15", f"s_or_b32 s{sR4}, s{sR4}, s{sT1}"]
    if cfg.xrot: su += [f"s_and_b32 s{sT1}, s2, 7", f"s_lshl_b32 s{sT1}, s{sT1}, 17", f"s_xor_b32 s{sR4}, s{sR4}, s{sT1}"]
    wo_voff(su.append, vKv, vT); wo_srd(su.append, sK)
    kg, r4, c4, tA, tB = vT, vT+1, vT+2, vT+3, vT+4
    su += [f"v_lshrrev_b32 v{kg}, 4, v0", f"v_bfe_u32 v{r4}, v0, 2, 2", f"v_and_b32 v{c4}, 3, v0",
           f"v_and_b32 v{tA}, 1, v{kg}", f"v_lshl_add_u32 v{tA}, v{tA}, 2, v{r4}", f"v_lshrrev_b32 v{tB}, 1, v{tA}", f"v_lshlrev_b32 v{tB}, 5, v{tB}",
           f"v_lshl_add_u32 v{tB}, v{tA}, 7, v{tB}", f"v_lshrrev_b32 v{tA}, 1, v{kg}", f"v_lshl_add_u32 v{tB}, v{tA}, 10, v{tB}",
           f"v_lshl_add_u32 v{tB}, v{c4}, 3, v{tB}", f"v_add_u32 v{vRa}, s{sW8}, v{tB}", f"s_lshl_b32 s{sT1}, s{sW}, 5", f"v_xor_b32 v{vRa}, s{sT1}, v{vRa}"]
    su += [f"v_xor_b32 v{vRa+nt}, {32*nt}, v{vRa}" for nt in range(1, 4)]
    su += [f"v_add_u32 v{vRa+4*s_+nt}, {65536*s_}, v{vRa+nt}" for s_ in range(1, 3) for nt in range(4)]
    su += ["v_lshlrev_b32 v10, 4, v0"]
    g = 2
    for l in su:
        if l == "PF":
            gsu = g
            if cfg.cpf2: zf(max(gsu, cfg.cpos), f"global_load_dword v{vPfd}, v11, s[{sCP}:{sCP+1}]", "dma")
            gp = gsu
            for i, x in enumerate(cfg.pfpos.split(",") if cfg.wopf else []):
                gp = zf(max(int(x), gp + 2), f"buffer_load_dword v{vPfd}, v{vPfo}, s[{sD}:{sD+3}], s{sPfx} offen ; pf{i}", "dma")
                for l_ in (f"s_xor_b32 s{sPfx}, s{sPfo}, s{sPfr}", f"s_add_u32 s{sPfo}, s{sPfo}, 262144"): Z.put(gp - 1, Item(l_, "s"))
        elif l.startswith("v_"): g = zput(g, g + 12, l, "v", pack=False) + 1
        else: Z.put(g, Item(l, "s"))
    g = G0 + 20
    for l in ad:
        if l.startswith("v_"): g = zput(g, g + 12, l, "v", pack=False) + 1
        else: Z.put(g, Item(l, "s"))
    def burst(g, lines):
        for l in lines: Z.put(g, Item(l, "v"))
    def pk(b, r):
        return f"v_pk_mul_f32 {vr(b,2)}, {vr(b,2)}, {vr(r & ~1,2)} op_sel:[0,{r & 1}] op_sel_hi:[1,{r & 1}]"
    sFl = sVm
    g = cfg.xw0 or PER * 9 + 16 + NPV + 6
    if cfg.hyb: burst(g, [f"v_add_f32 v{vL+16}, v{vL+16}, v{vL+16+1}", f"v_mov_b32 v{vL+18}, v{vL+16}", "s_nop 1", f"v_permlane32_swap_b32 v{vL+16}, v{vL+18}", f"v_add_f32 v{vL+16}, v{vL+16}, v{vL+18}",
               f"v_mov_b32 v{vL+18}, v{vL+16}", "s_nop 1", f"v_permlane16_swap_b32 v{vL+16}, v{vL+18}", f"v_add_f32 v{vL+16}, v{vL+16}, v{vL+18}"])
    for i in range(16): g = zf(g, f"ds_write_b128 v{vXw}, {ar(aO+128+4*i,4)} offset:{1024*i}", "ds") + 1
    g = zf(g, f"ds_write_b32 v{vFw}, v{vL+16}", "ds"); g = zf(g, f"ds_write_b32 v{vFw}, v{vL+20} offset:256", "ds")
    Z.put(g - 4, Item(f"s_mov_b32 s{sKd}, {LTHRESH:#x}", "s"))
    g = zf(g, f"v_add_f32 v{vR+4}, v{vL+16}, v{vL+20}", "v") + 1
    g = zf(g, f"v_cmp_nge_f32 s[{sFl}:{sFl+1}], s{sKd}, v{vR+4}", "v")
    XA = g + 7
    Z.put(XA, Item("s_waitcnt lgkmcnt(0)", "s")); Z.put(XA, Item("s_barrier", "s"))
    bA = [vQ + 64 + 4 * i for i in range(4)]; bB = [vQ + 80 + 4 * i for i in range(4)]; bC = [vNM + 16, vNM + 20, vL + 16, vL + 20]
    lr = [[236, 237, 238, 239], [5, 6, 7, 8]]
    def prd(wv, dst): return [f"ds_read_b128 {vr(dst[i],4)}, v{vXr+(wv>>1)} offset:{16384*(wv&1)+8192*(i>>1)+1024*(i&1)}" for i in range(4)]
    def padd(d, x): return [f"v_pk_add_f32 {vr(d[i]+r,2)}, {vr(d[i]+r,2)}, {vr(x[i]+r,2)}" for i in range(4) for r in (0, 2)]
    g = XA
    rd = prd(0, bA) + prd(1, bB) + prd(2, bC) + [f"ds_read_b32 v{lr[j][wv]}, v{vF} offset:{8192*wv+256*j}" for wv in range(4) for j in range(2)]
    for i, r in enumerate(rd): g = zf(g + (i & 1), r, "ds")
    gt = g + 1
    g = gt + 8
    while any(y.kind == "t" for y in Z.gap[g]): g += 1
    burst(g, padd(bA, bB))
    g3 = g + 1
    for i, r in enumerate(prd(3, bB)): g3 = zf(g3 + (i & 1), r, "ds")
    g += 2
    lsum = []
    for j in range(2):
        x = lr[j]; lsum += [f"v_add_f32 v{x[0]}, v{x[0]}, v{x[1]}", f"v_add_f32 v{x[2]}, v{x[2]}, v{x[3]}", f"v_add_f32 v{x[0]}, v{x[0]}, v{x[2]}"]
    burst(g, padd(bA, bC) + lsum + [f"v_rcp_f32 v{lr[0][0]}, v{lr[0][0]}", f"v_rcp_f32 v{lr[0][1]}, v{lr[1][0]}"])
    XB = g3 + 9
    while any(y.kind == "t" for y in Z.gap[XB]): XB += 1
    Z.put(XB, Item("s_waitcnt lgkmcnt(0)", "s")); Z.put(XB, Item("s_barrier", "s"))
    burst(XB, padd(bA, bB) + [pk(bA[i] + r, lr[0][i >> 1]) for i in range(4) for r in (0, 2)]
          + [f"v_cvt_pk_bf16_f32 v{bB[0]+i}, v{bA[0]+2*i}, v{bA[0]+2*i+1}" for i in range(8)])
    g = XB
    for j in range(2):
        d = f"buffer_store_dwordx4 {vr(bB[j],4)}, v{vLn}, s[{sO}:{sO+3}], s{sT3 if j == 0 else sT1} offen{cfg.st_sc}"
        g = zf(g + 1, d, "dma", tag=("prov", "st"))
    GS = g + 2
    free = [(cfg.d0, 0)] + [(XB + 1, i) for i in (1, 2, 3, 4, 5)] + [(B7 + 1, i) for i in (6, 7, 8, 9)]
    ravail = [XA] * 4 + [GS] * 2 + [CUT - 16, CUT - 16]
    gd = cfg.d0; gtr = gt + 1; nxt = 0; pend = []; ntr = 0; LSOF.clear()
    while True:
        free.sort()
        t0 = max(gd, free[0][0]) if free else 10**6
        if pend and ntr < len(ravail):
            tt = max(pend[0][1] + cfg.land, ravail[ntr], gtr)
            if tt <= t0 and tt + 8 < NP:
                st, gi = pend.pop(0); g = tt
                for i, r in enumerate(tr_reads(st)): g = zf(g + (i & 1), r, "ds", tag=("need", ("w", st)) if i == 0 else None)
                gtr = g + 1; free.append((g + 8, LSOF[st])); ntr += 1
                continue
        if t0 + 8 >= NP: break
        gf, sl = free.pop(0); LSOF[nxt] = sl
        w_ = wo_dma(nxt)
        if any(LSOF.get(x) == sl for x in range(nxt)): w_[0] = ([f"s_waitcnt lgkmcnt(15) ; slot {nxt}"] + w_[0][0], w_[0][1])
        g = t0
        for q, (p_, d) in enumerate(w_):
            g = zf(g, d, "dma", tag=("prov", ("w", nxt)), w=2 if t0 + 12 < NP else 1)
            for l in p_: Z.put(g - 1, Item(l, "s"))
            g += 2 if t0 + 12 < NP else 1
        pend.append((nxt, g)); gd = max(t0 + cfg.dstep, g); nxt += 1
    free = [x[1] for x in sorted(free)]
    sys.stderr.write(f"last stage: XA {XA} XB {XB} GS {GS}; wo steps issued {nxt}, in registers {ntr}; overflow {sum(max(0, c - CAP) for c in Z.cost)}\n")
    E("L_last:")
    if cfg.pstamp:
        for i_, g_ in enumerate((0, G0 + 1, XB + 1, B7 + 1)): Z.put(g_, Item(f"s_memtime s[{sST2+2*i_}:{sST2+2*i_+1}]", "s"))
    seq = Z.linear(0, NP)
    seq2 = lgkm_waits([(g - N, k, l) for g, k, l in body if g >= bar[1] and not l.startswith("SWITCH")] + [(-1, "x", "MARK:")] + seq)
    seq2 = seq2[[x[2] for x in seq2].index("MARK:") + 1:]
    dsq = []
    for g, k, l in seq2:
        if "; slot" in l:
            st = int(l.split()[-1]); prev = max(x for x in range(st) if LSOF[x] == LSOF[st])
            idx = max(i for i, x in enumerate(dsq) if x.endswith(f"wo step {prev}"))
            l = f"s_waitcnt lgkmcnt({min(15, len(dsq) - 1 - idx)})"
        if l.startswith("ds_"): dsq.append(l)
        if l.endswith("; V7"): tags[l] = ("prov", "V7")
        if "vmcnt(V7)" in l: l = vwait("V7") + " lgkmcnt(0)"
        tg = tags.get(l)
        if tg and tg[0] == "need": E(vwait(tg[1]))
        E(l, tg[1] if tg and tg[0] == "prov" else None)
    E("L_tail:")
    stamp(ep, 4)
    if cfg.hyb:
        r0 = [f"v_add_f32 v{vL}, v{vL}, v{vL+1}", f"v_mov_b32 v{vL+2}, v{vL}", "s_nop 1", f"v_permlane32_swap_b32 v{vL}, v{vL+2}", f"v_add_f32 v{vL}, v{vL}, v{vL+2}",
               f"v_mov_b32 v{vL+2}, v{vL}", "s_nop 1", f"v_permlane16_swap_b32 v{vL}, v{vL+2}", f"v_add_f32 v{vL}, v{vL}, v{vL+2}"]
        r1 = [f"v_add_f32 v{vL+8}, v{vL+8}, v{vL+8+1}", f"v_mov_b32 v{vL+10}, v{vL+8}", "s_nop 1", f"v_permlane32_swap_b32 v{vL+8}, v{vL+10}", f"v_add_f32 v{vL+8}, v{vL+8}, v{vL+10}",
               f"v_mov_b32 v{vL+10}, v{vL+8}", "s_nop 1", f"v_permlane16_swap_b32 v{vL+8}, v{vL+10}", f"v_add_f32 v{vL+8}, v{vL+8}, v{vL+10}"]
        for x, y in zip(r0, r1):
            if x.startswith("v_"): E(x); E(y)
    for qt in range(4): E(f"v_rcp_f32 v{vR+qt}, v{vL+4*qt}")
    chk = [f"s_mov_b32 s{sT3}, {LTHRESH:#x}",
           f"v_add_f32 v{T}, v{vL}, v{vL+4}", f"v_add_f32 v{T+1}, v{vL+8}, v{vL+12}",
           f"v_add_f32 v{T}, v{T}, v{T+1}", f"v_cmp_nge_f32 vcc, s{sT3}, v{T}",
           f"v_lshlrev_b32 v{vF}, 2, v0", f"v_add_u32 v{vF}, {{FL}}, v{vF}", f"v_add_u32 v{T+1}, s{sW8}, v{vF}",
           f"s_or_b64 vcc, vcc, s[{sFl}:{sFl+1}]", f"s_cselect_b32 s{sT3}, 1, 0", f"v_mov_b32 v{T+2}, s{sT3}"]
    todo = [st for st, gi in pend]
    fl = 220
    if free: FS = free.pop(0); first = []
    else: first = [todo.pop(0)]; FS = LSOF[first[0]]
    for k in range(16):
        qt, kc = k >> 2, k & 3
        b0 = 108 + 12 * (k % 2)
        if k == 0:
            for st in first: emit_tr(st); ntr += 1
        if k == 3:
            E("s_waitcnt lgkmcnt(0)"); E("s_barrier")
            for wv in range(4): E(f"ds_read_b32 v{fl+wv}, v{vF} offset:{8192*wv}")
        if k == 4:
            E("s_waitcnt lgkmcnt(0)")
            E(f"v_or_b32 v{fl}, v{fl}, v{fl+1}"); E(f"v_or3_b32 v{fl}, v{fl}, v{fl+2}, v{fl+3}")
            E(f"v_readfirstlane_b32 s{sT2}, v{fl}")
            E(f"s_andn2_b32 s{sT2}, s{sT2}, s{sRedo}"); E(f"s_cmp_lg_u32 s{sT2}, 0"); E("s_cbranch_scc1 L_fallback")
        if k >= 5 and todo and todo[0] < 16:
            st = todo.pop(0); emit_tr(st); free.append(LSOF[st]); ntr += 1
        for i in range(8): E(f"v_accvgpr_read_b32 v{b0+i}, a{aO+32*qt+8*kc+i}")
        for i in range(4): E(pk(b0 + 2 * i, vR + qt))
        for i in range(4): E(f"v_cvt_pk_bf16_f32 v{b0+8+i}, v{b0+2*i}, v{b0+2*i+1}")
        E(f"buffer_store_dwordx4 {vr(b0+8,4)}, v{vLn}, s[{sO}:{sO+3}], s{sT0} offen offset:{1024*kc}{cfg.st_sc}", "st")
        if kc == 3 and qt < 3: E(f"s_add_u32 s{sT0}, s{sT0}, 131072")
        if k == 1:
            for l in chk: E(l.replace("{FL}", str(LS[FS])))
            E("s_waitcnt lgkmcnt(0)"); E(f"ds_write_b32 v{T+1}, v{T+2}")
    stamp(ep, 5)
    E("s_waitcnt lgkmcnt(0)")
    for _ in range(cfg.npost):
        LSOF[nxt] = free.pop(0); emit_dma(nxt); todo.append(nxt); nxt += 1
    E(f"s_mov_b32 s{sD}, s{sPTR+12}"); E(f"s_mov_b32 s{sD+1}, s{sPTR+13}"); E(f"s_mov_b32 s{sD+2}, 256"); E(f"s_mov_b32 s{sD+3}, 0x20000")
    E(f"s_lshl_b32 s{sT0}, s{sMt}, 17"); E(f"s_add_u32 s{sX}, s{sPTR+14}, s{sT0}"); E(f"s_addc_u32 s{sX+1}, s{sPTR+15}, 0")
    E(f"s_lshl_b32 s{sT0}, s{sOdd}, 17"); E(f"s_sub_u32 s{sX+2}, {5*131072}, s{sT0}"); E(f"s_mov_b32 s{sX+3}, 0x20000")
    E(f"s_lshl_b32 s{sT0}, s{sMt}, 14"); E(f"s_add_u32 s{sWQ}, s{sPTR+10}, s{sT0}"); E(f"s_addc_u32 s{sWQ+1}, s{sPTR+11}, 0")
    E(f"s_lshl_b32 s{sT0}, s{sOdd}, 14"); E(f"s_sub_u32 s{sWQ+2}, {5*16384}, s{sT0}"); E(f"s_mov_b32 s{sWQ+3}, 0x20000")
    E(f"v_mov_b32 v{vZ}, 0"); E(f"v_mov_b32 v{T}, 1"); E(f"v_mov_b32 v{vOo}, v{vLn}")
    for i in range(1, 5): E(f"v_add_u32 v{vOo+i}, {131072*i}, v{vLn}")
    vPo = T + 1; vPd = T + 2
    E(f"v_lshrrev_b32 v{vPo}, 3, v0"); E(f"v_lshlrev_b32 v{vPo}, 17, v{vPo}"); E(f"v_and_b32 v{T+3}, 7, v0"); E(f"v_lshl_add_u32 v{vPo}, v{T+3}, 7, v{vPo}")
    sSo, sPo = sXo, sXm
    assert not cfg.opf
    E(f"s_lshr_b32 s{sPo}, s{sR4}, 5")
    E(f"s_lshl_b32 s{sT0}, s{sB}, 5"); E(f"s_and_b32 s{sT1}, s2, 7"); E(f"s_lshl_b32 s{sT1}, s{sT1}, 5")
    E(vwait("st")); E("s_barrier")
    E(f"s_cmp_lg_u32 s{sW}, 0"); E("s_cbranch_scc1 L_nosig")
    E("s_mov_b64 exec, 1"); ep.append(f"buffer_atomic_add v{T}, v{vZ}, s[{sD}:{sD+3}], s{sT0} offen")
    if cfg.epoll: ep.append(f"buffer_load_dword v{T+3}, v{vZ}, s[{sD}:{sD+3}], s{sT1} offen sc1")
    E("s_mov_b64 exec, -1")
    E("L_nosig:")
    hist.append("sig")
    stamp(ep, 6)
    if cfg.cpf3:
        E(f"s_getpc_b64 s[{sCP}:{sCP+1}]"); E(f"v_min_u32 v{T+2}, 1, v0"); E(f"v_lshlrev_b32 v{T+2}, 13, v{T+2}")
        E(f"s_lshr_b32 s{sT2}, s2, 3"); E(f"s_lshl_b32 s{sT2}, s{sT2}, 2"); E(f"s_add_u32 s{sT2}, s{sT2}, s{sW}"); E(f"s_lshl_b32 s{sT2}, s{sT2}, 6")
        E(f"v_add_u32 v{T+2}, s{sT2}, v{T+2}"); E(f"v_min_u32 v{T+2}, L_end-L_nosig, v{T+2}")
        E(f"global_load_dword v{T+2}, v{T+2}, s[{sCP}:{sCP+1}]")
    free.append(FS)
    prev = None
    while True:
        while free and nxt <= 26:
            LSOF[nxt] = free.pop(0); emit_dma(nxt); todo.append(nxt); nxt += 1
        if todo[0] <= 16:
            st = todo.pop(0); emit_tr(st)
            if prev is not None: E("s_waitcnt lgkmcnt(8)"); free.append(LSOF[prev])
            prev = st
        elif prev is not None:
            E("s_waitcnt lgkmcnt(0)"); free.append(LSOF[prev]); prev = None
        else: break
    assert nxt == 27 and todo == list(range(17, 27)), (nxt, todo)
    for st in range(27, 32): LSOF[st] = LSOF[st - 10]
    stamp(ep, 7)
    E(f"s_cmp_lg_u32 s{sW}, 0"); E("s_cbranch_scc1 L_ready")
    E(f"s_mov_b32 s{sCnt}, 0x40000")
    if cfg.epoll:
        E(f"v_readfirstlane_b32 s{sT0}, v{T+3}"); E(f"s_cmp_ge_u32 s{sT0}, 32"); E("s_cbranch_scc1 L_ready")
    if cfg.poll1: E("s_mov_b64 exec, 1")
    E("L_poll:")
    ep.append(f"buffer_load_dword v{T+3}, v{vZ}, s[{sD}:{sD+3}], s{sT1} offen sc1")
    E("s_waitcnt vmcnt(0)"); E(f"v_readfirstlane_b32 s{sT0}, v{T+3}")
    E(f"s_sub_u32 s{sCnt}, s{sCnt}, 1"); E(f"s_cmp_eq_u32 s{sCnt}, 0"); E("s_cbranch_scc1 L_got")
    E(f"s_cmp_ge_u32 s{sT0}, 32"); E("s_cbranch_scc1 L_got")
    E(f"s_sleep {cfg.sleep}"); E("s_branch L_poll")
    E("L_got:"); E("s_mov_b64 exec, -1")
    E("L_ready:")
    E("s_barrier")
    stamp(ep, 8); stamp(ep, 5, True)
    def o_loads(st):
        r = []
        for i in range(5):
            pre = [f"s_xor_b32 s{sSo}, s{sPo}, {1024*st}"] if i == 0 else []
            r.append((pre, f"buffer_load_dwordx4 {ar(aRing+20*(st % NB)+4*i,4)}, v{vOo+i}, s[{sX}:{sX+3}], s{sSo} offen{cfg.ld_sc} ; o step {st}"))
        return r
    def o_pf(g): return [(([f"s_add_u32 s{sPo}, s{sPo}, 8192"] if g else []), f"buffer_load_dword v{vPd}, v{vPo}, s[{sX}:{sX+3}], s{sPo} offen{cfg.ld_sc} ; prefetch {g}")]
    LA = cfg.ola
    for st in range(LA):
        for i, x in enumerate(o_loads(st)):
            for l in flat([x]): E(l, ("o", st, i))
        if cfg.opf and st in (1, 3):
            for l in flat(o_pf(st >> 1)): E(l, "pf")
    SO = Sched(640); tags = {}
    TM = 28 if cfg.fastred else 32
    order = [(st, i >> 2, i & 3) for st in range(TM) for i in range(20)] + [(st, tl_, nt) for tl_ in range(5) for st in range(TM, 32) for nt in range(4)]
    for g, (st, tl_, nt) in enumerate(order):
        a_ = vr(ac2(4 * tl_ + nt), 4)
        SO.mf[g] = Item(f"{MF} {a_}, {rreg(st, nt)}, {ar(aRing+20*(st % NB)+4*tl_,4)}, {'0' if st == 0 else a_} ; o step {st} tile {tl_}", "mf")
    for st in range(1, 16):
        for k_, r in enumerate(tr_reads(st + 16)):
            SO.put(20 * st + 12 + (k_ >> 1), Item(r, "ds"))
            if k_ == 0: tags[r] = ("need", ("w", st + 16))
    for st in range(min(TM, 32)):
        g0 = 20 * st; lst = []
        if st + LA < TM: lst += [(p, d, ("o", st + LA, i)) for i, (p, d) in enumerate(o_loads(st + LA))]
        if 2 <= st <= 6:
            w_ = wo_dma(st + 25); w_[0] = (["s_waitcnt lgkmcnt(0)"] + w_[0][0], w_[0][1])
            lst = lst + [(p, d, ("w", st + 25)) for p, d in w_]
        g = g0 + (1 if st == 0 else 0)
        for p, d, tg in lst:
            tags[d] = ("prov", tg)
            g = place_dmas(SO, [(p, d)], g, cfg.ostep, limit=g0 + 21)
    tA, tB, va, vx = T + 3, T + 4, T + 5, 220
    if cfg.fastred:
        sS4 = [sKo, sKo + 1, sVo, sVo + 1]
        for j in range(4): SO.put(20 * 20 + j, Item(f"s_xor_b32 s{sS4[j]}, s{sPo}, {1024*(TM+j)}", "s"))
        g = 20 * (TM - LA)
        for tl_ in range(5):
            for j in range(4):
                st = TM + j
                d = f"buffer_load_dwordx4 {ar(aRing+20*(st % NB)+4*tl_,4)}, v{vOo+tl_}, s[{sX}:{sX+3}], s{sS4[j]} offen{cfg.ld_sc} ; o step {st} tile {tl_}"
                lo = max(g, 20 * (st - NB) + 4 * tl_ + 4)
                tags[d] = ("prov", ("o", st, tl_))
                g = place_dmas(SO, [([], d)], lo, 4 if (4 * tl_ + j) % 5 == 4 else 4, limit=20 * TM + 16 * tl_ + 4 * j - 12)
        SO.put(20 * 21, Item("s_waitcnt lgkmcnt(0)", "s")); SO.put(20 * 21, Item("s_barrier", "s"))
        ad = [f"s_xor_b32 s{sT0}, s{sW}, 1", f"s_mul_i32 s{sT0}, s{sT0}, 15360", f"v_add_u32 v{vx}, s{sT0}, v{vLn}",
              f"s_xor_b32 s{sT0}, s{sW}, 2", f"s_mul_i32 s{sT0}, s{sT0}, 15360", f"v_add_u32 v{vx+1}, s{sT0}, v{vLn}",
              f"s_xor_b32 s{sT0}, s{sW}, 3", f"s_mul_i32 s{sT0}, s{sT0}, 15360", f"v_add_u32 v{vx+2}, s{sT0}, v{vLn}",
              f"s_mul_i32 s{sT0}, s{sW}, 15360", f"v_add_u32 v{tA}, s{sT0}, v{vLn}",
              f"v_and_b32 v{va}, 15, v0", f"v_lshlrev_b32 v{va}, 10, v{va}", f"v_lshrrev_b32 v{va+1}, 4, v0", f"v_lshl_add_u32 v{va}, v{va+1}, 3, v{va}",
              f"s_lshl_b32 s{sT0}, s{sCg}, 7", f"s_lshl_b32 s{sT1}, s{sW}, 5", f"s_add_u32 s{sT0}, s{sT0}, s{sT1}"]
        g = 20 * 22 + 6
        for l in ad:
            if l.startswith("v_"): SO.put(g, Item(l, "v")); g += 1
            else: SO.put(g, Item(l, "s"))
        late = []
        for tl_ in range(5):
            for j in range(1, 4):
                wr = f"ds_write_b128 v{vx+j-1}, {vr(ac2(4*tl_+j),4)} offset:{5120*(j-1)+1024*tl_}"
                gg = 20 * TM + 16 * tl_ + 12 + j + 9
                if gg < 640: SO.put(gg, Item(wr, "ds"))
                else: late.append(wr)
    seq = lgkm_waits(SO.linear(0, 640))
    def owait(st, tl_): return vwait(("o", st, tl_))
    E(owait(0, 4)); stamp(ep, 6, True)
    for idx, (g, k, l) in enumerate(seq):
        tg = tags.get(l)
        if tg and tg[0] == "need": E(vwait(tg[1]))
        E(l, tg[1] if tg and tg[0] == "prov" else None)
        if k == "mf" and g < 639:
            st, tl_, nt = order[g + 1]
            if st < TM and (g + 1) % 20 == 0: E(owait(st, 4))
            if st >= TM and nt == 0: E(owait(st, tl_))
        if k == "mf" and g == 319: stamp(ep, 7, True)
        if k == "mf" and g == 639: stamp(ep, 8, True)
    if cfg.fastred:
        for l in late: E(l)
        E("s_waitcnt lgkmcnt(0)"); E("s_barrier")
        rb = 156
        for i in range(5):
            for j in range(3): E(f"ds_read_b128 {vr(rb+12*i+4*j,4)}, v{tA} offset:{5120*j+1024*i}")
        for i in range(5):
            E(f"s_waitcnt lgkmcnt({3*(4-i)})")
            b0 = rb + 12 * i; a0 = ac2(4 * i)
            for r in range(0, 4, 2): E(f"v_pk_add_f32 {vr(a0+r,2)}, {vr(a0+r,2)}, {vr(b0+r,2)}"); E(f"v_pk_add_f32 {vr(b0+4+r,2)}, {vr(b0+4+r,2)}, {vr(b0+8+r,2)}")
            for r in range(0, 4, 2): E(f"v_pk_add_f32 {vr(a0+r,2)}, {vr(a0+r,2)}, {vr(b0+4+r,2)}")
            E(f"v_cvt_pk_bf16_f32 v{b0}, v{a0}, v{a0+1}"); E(f"v_cvt_pk_bf16_f32 v{b0+1}, v{a0+2}, v{a0+3}")
            E(f"buffer_store_dwordx2 {vr(b0,2)}, v{va}, s[{sWQ}:{sWQ+3}], s{sT0} offen")
            E(f"s_add_u32 s{sT0}, s{sT0}, 16384")
    else:
        E(f"s_mul_i32 s{sT0}, s{sW}, 20480"); E(f"v_add_u32 v{tB}, s{sT0}, v{vLn}")
        E(f"s_lshl_b32 s{sT0}, s{sW}, 10"); E(f"v_add_u32 v{tA}, s{sT0}, v{vLn}")
        E(f"v_and_b32 v{va}, 15, v0"); E(f"v_lshlrev_b32 v{va}, 10, v{va}"); E(f"v_lshrrev_b32 v{va+1}, 4, v0")
        E(f"v_lshl_add_u32 v{va}, v{va+1}, 3, v{va}")
        E(f"s_lshl_b32 s{sT0}, s{sCg}, 7"); E(f"s_lshl_b32 s{sT1}, s{sW}, 5"); E(f"s_add_u32 s{sT0}, s{sT0}, s{sT1}")
        E("s_barrier")
        for i in range(20): E(f"ds_write_b128 v{tB}, {vr(ac2(i),4)} offset:{1024*i}")
        E(f"v_add_u32 v{tB}, 40960, v{tA}")
        E("s_waitcnt lgkmcnt(0)"); E("s_barrier")
        for i in range(5):
            for wv in range(4):
                E(f"ds_read_b128 {vr(ac2(4*i+wv),4)}, v{tA if wv < 2 else tB} offset:{20480*(wv&1)+4096*i}")
        for i in range(5):
            E(f"s_waitcnt lgkmcnt({min(15, 4*(4-i))})")
            b0 = ac2(4 * i)
            for r in range(4): E(f"v_add_f32 v{b0+r}, v{b0+r}, v{b0+4+r}"); E(f"v_add_f32 v{b0+8+r}, v{b0+8+r}, v{b0+12+r}")
            for r in range(4): E(f"v_add_f32 v{b0+r}, v{b0+r}, v{b0+8+r}")
            E(f"v_cvt_pk_bf16_f32 v{b0+4}, v{b0}, v{b0+1}"); E(f"v_cvt_pk_bf16_f32 v{b0+5}, v{b0+2}, v{b0+3}")
            E(f"buffer_store_dwordx2 {vr(b0+4,2)}, v{va}, s[{sWQ}:{sWQ+3}], s{sT0} offen")
            E(f"s_add_u32 s{sT0}, s{sT0}, 16384")
    if cfg.stamp:
        vt = 108
        E("s_waitcnt vmcnt(0)")
        E(f"s_memtime s[{sST+10}:{sST+11}]"); E(f"s_memrealtime s[{sST+12}:{sST+13}]"); E("s_waitcnt lgkmcnt(0)")
        E(f"s_add_u32 s{sD}, s{sPTR+14}, 0x4000000"); E(f"s_addc_u32 s{sD+1}, s{sPTR+15}, 0")
        E(f"s_mov_b32 s{sD+2}, 0x100000"); E(f"s_mov_b32 s{sD+3}, 0x20000")
        E(f"s_lshl_b32 s{sT0}, s2, 2"); E(f"s_add_u32 s{sT0}, s{sT0}, s{sW}"); E(f"s_lshl_b32 s{sT0}, s{sT0}, 7")
        for i in range(16): E(f"v_mov_b32 v{vt+i}, s{sST+i}")
        for i in range(8): E(f"v_mov_b32 v{vt+16+i}, s{sST2+i}")
        for i in range(6): E(f"buffer_store_dwordx4 {vr(vt+4*i,4)}, v{vZ}, s[{sD}:{sD+3}], s{sT0} offen offset:{16*i}")
    E("L_end:"); E("s_endpgm")
    E("L_fallback:")
    E(f"s_mov_b32 s{sRedo}, 1"); E("s_waitcnt vmcnt(0) lgkmcnt(0)"); E("s_barrier")
    E(f"s_load_dwordx16 s[{sPTR}:{sPTR+15}], s[0:1], 0")
    E("s_branch L_restart")
    E("L_truemax:")
    for l in a2_all: E(l)
    mx = [vT + 12 + qt for qt in range(6)]
    for qt in range(6): E(f"v_mov_b32 v{mx[qt]}, 0xff800000")
    E(f"s_mov_b32 s{sCnt}, 8"); E(f"s_add_u32 s{sKm}, s{sW8}, {KR[0]}")
    E("s_waitcnt vmcnt(0) lgkmcnt(0)")
    E("L_fb_loop:")
    E("s_barrier")
    for l in flat(k_dma()) + adv(sKo, sKs): E(l)
    E("s_waitcnt vmcnt(0)"); E("s_barrier")
    for j in range(4):
        for idx in range(8): E(k_read(j, idx >> 2, idx & 3))
        E("s_waitcnt lgkmcnt(0)")
        for k16 in range(2):
            for qt in range(6):
                nb = vNM + 4 * qt
                for c in range(4):
                    E(f"{MF} {vr(nb,4)}, {ar(aK+16*k16+4*c,4)}, {vr(vQ+16*qt+4*c,4)}, {'0' if c == 0 else vr(nb,4)}")
            E("s_nop 7")
            for qt in range(6):
                nb = vNM + 4 * qt
                E(f"v_max3_f32 v{mx[qt]}, v{mx[qt]}, v{nb}, v{nb+1}"); E(f"v_max3_f32 v{mx[qt]}, v{mx[qt]}, v{nb+2}, v{nb+3}")
            E("s_nop 3")
    E(f"s_sub_u32 s{sCnt}, s{sCnt}, 1"); E(f"s_cmp_lg_u32 s{sCnt}, 0"); E("s_cbranch_scc1 L_fb_loop")
    E("s_barrier")
    E(f"s_mov_b32 s{sKo}, s{sK0}"); E(f"s_add_u32 s{sKo+1}, s{sK0}, 4096")
    for l in flat(k_dma()) + adv(sKo, sKs): E(l)
    negm(E, mx)
    E("s_waitcnt vmcnt(0)"); E("s_barrier")
    E("s_branch L_att")
    pre = [l for g, k, l in body2 if g >= N - 12 and not l.startswith("SWITCH")]
    n0_ = len(ep)
    el, _ = check_hazards(pre + ["Y:"] + ep, "ep", fix=True)
    sys.stderr.write(f"nops added after the loop: {len(el) - len(pre) - 1 - n0_}\n")
    o += el[el.index("Y:") + 1:]
    return o

def main():
    k1 = [l for l in gen() if l]
    n0 = len(k1); k1, _ = check_hazards(k1, "k1", fix=True)
    sys.stderr.write(f"{len(k1)} lines, {len(k1)-n0} nops added by final pass\n")
    hdr = open("standalone__gqa_block_cached__near_ridge.s.ref").read().split("\n")[:9]
    out = hdr + [f"; @launch grid=(256,1,1) block=(256,1,1) lds={LDS_TOTAL}",
                 '.amdgcn_target "amdgcn-amd-amdhsa--gfx950"', ".text"]
    fmt = lambda l: l if l.endswith(":") else "    " + l
    out += [f".globl {cfg.name}", ".p2align 8", f".type {cfg.name},@function"] + [fmt(l) for l in k1]
    out += ['.section .rodata,"a"', ".p2align 6", f""".amdhsa_kernel {cfg.name}
  .amdhsa_next_free_vgpr 512
  .amdhsa_next_free_sgpr 102
  .amdhsa_accum_offset 256
  .amdhsa_group_segment_fixed_size 0
  .amdhsa_kernarg_size 64
  .amdhsa_user_sgpr_count 2
  .amdhsa_user_sgpr_kernarg_segment_ptr 1
  .amdhsa_system_sgpr_workgroup_id_x 1
.end_amdhsa_kernel
"""]
    open(sys.argv[1], "w").write("\n".join(out))
main()
```

```python
import sys, math, struct
from asmlib import *

class Cfg:
    name = "standalone__gqa_block_cached__near_ridge_kernel"
    stamp = False
    map_bh = "h"
    kv_nt = True; q_nt = False
    dump_q = False
    e0 = 9
    dma_step = 20.0; qstep = 5
    wowarm = 0; k0pf = 0; dm = ''; trlag = 8; npost = 3; ola = 2; ostep = 1; epi = 'mix'; qstamp = False; cpf = 1; cpf_n = 5; cpf2 = 2; qrot = 1; orot = 0; ostamp = False; krot = 0; xw0 = 0; land = 45; xcap = 12; dstep = 17; pf_end = 0; pkq = 1; epoll = 0; wwpos = 0; poll1 = 1; pflate = 1; pfk = 0; pfsh = 13; xrot = 1; qx = 0; pfcut = 0; wo_nt = False; fastred = 1; k1pos = 1; nost = 0; olay = 0; pf_nt = False; pf0 = 4; pfpos = '150,152,154'; d0 = 370; cpos = 38; cpf3 = 1; out_sc = ''; nobar = 1; v7step = 5; qstart = 0; tlb = 0; qkord = 0; flags = 0; fstr = 8; cntpos = 470; pre_to = 26; wlag = 2; kvstep = 5; vlate = 1; qb0 = 27; hyb = 1; s0 = 1; q2step = 3; sstamp = False; pstamp = False; dgrp = 1
    wopf = 1
    opf = 0
    qpf = 0
    sleep = 4
    lstamp = False
    st_sc = " sc1"; ld_sc = " sc1"
cfg = Cfg()
for a in sys.argv[2:]:
    k, v = a.split("=")
    old = getattr(cfg, k)
    if k in ("st_sc", "ld_sc", "out_sc"): v = "".join(" " + x for x in v.split("+") if x)
    setattr(cfg, k, (v == "1") if isinstance(old, bool) else type(old)(v))

def NT(f): return " nt" if f else ""
def f2u(x): return struct.unpack("<I", struct.pack("<f", x))[0]
QSCALE = f2u(math.log2(math.e) / math.sqrt(128.0))
LTHRESH = f2u(2.0 ** (64 if cfg.s0 else 40))
MF = "v_mfma_f32_16x16x32_bf16"
CAP = 8

class Item:
    def __init__(self, text, kind, it=0):
        self.text = text; self.kind = kind; self.it = it
        self.cost = {"s": 0, "ds": 4, "v": 4, "t": 8, "dma": 8, "mf": 0}[kind]

class Sched:
    def __init__(self, n, periodic=False):
        self.n = n; self.periodic = periodic
        self.mf = [None] * n; self.gap = [[] for _ in range(n)]; self.cost = [0] * n
    def norm(self, g):
        if self.periodic: return g % self.n
        assert 0 <= g < self.n, g
        return g
    def put(self, g, item):
        g = self.norm(g); self.gap[g].append(item); self.cost[g] += item.cost
    def put_win(self, lo, hi, item, pack=False, cap=CAP):
        if not self.periodic: hi = min(hi, self.n - 1)
        cand = [g for g in range(lo, hi + 1) if self.cost[self.norm(g)] + item.cost <= cap]
        if cand:
            if pack:
                part = [g for g in cand if self.cost[self.norm(g)] > 0]
                best = part[0] if part and part[0] <= cand[0] + 3 else cand[0]
            else: best = cand[0]
        else:
            best = min(range(lo, hi + 1), key=lambda g: self.cost[self.norm(g)])
        self.put(best, item); return best
    def linear(self, lo, hi, keep=lambda it: True):
        out = []
        order = {"s": 0, "dma": 1, "ds": 1, "v": 2, "t": 2}
        for g in range(lo, hi):
            if self.mf[g] is not None and keep(self.mf[g].it): out.append((g, "mf", self.mf[g].text))
            for item in sorted(self.gap[g], key=lambda x: order[x.kind]):
                if keep(item.it): out.append((g, item.kind, item.text))
        return out

def lgkm_waits(seq, slack=6):
    out = []; q = []
    mfi = [i for i, x in enumerate(seq) if x[1] == "mf"]
    nxt = dict(zip(mfi, mfi[1:]))
    def need(use, g):
        nonlocal q
        idx = -1
        for k, (gg, regs) in enumerate(q):
            if regs & use: idx = k
        if idx >= 0:
            while idx + 1 < len(q) and q[idx + 1][0] <= g - slack: idx += 1
            n = min(len(q) - 1 - idx, 15)
            out.append((g, "s", f"s_waitcnt lgkmcnt({n})"))
            q = q[len(q) - n:] if n else []
    for i, (g, k, t) in enumerate(seq):
        ins = Ins(t)
        if ins.op == "s_waitcnt" and "lgkmcnt(0)" in t: q = []
        if ins.kind != "label": need(ins.r | ins.w, g)
        if ins.kind == "ds": q.append((g, set(ins.w)))
        out.append((g, k, t))
        if k == "mf" and i in nxt:
            n = Ins(seq[nxt[i]][2]); need(n.r | n.w, g)
    return out

sK, sV, sX, sWQ, sO, sD = 8, 12, 16, 20, 24, 28
sPTR = 32
sW, sB, sH, sT0, sT1 = 3, 4, 5, 6, 7
sKo, sVo = 48, 50
sKs, sVs = 52, 53
sVm = 54
sCnt, sRedo = 58, 59
sXo, sXm, sWo_, sWm = 60, 61, 62, 63
sT2, sQs, sT3 = 64, 65, 66
sKb, sKm, sKd, sKw = 67, 68, 69, 86
sRg, sCg, sMt, sOdd = 87, 88, 89, 90
sW8 = 91
sPfo = 101
sFo = 62
sCP = 48
sPfx, sPfr = 39, 60
sKt2 = 39
sKmask, sVmask, sK0 = 32, 33, 38
sRot, sXc = 100, 101
sR4 = 63
sKt = 100
sST = 70
sST2 = 92
vKv = 1; vVv = 5; vPfd = 9
vQ = 12; vNM = 108; vL = 132; vS = 156; vP = 188; vKa = 204; vVa = 212; vOne = 228; vT = 232
vAcc = 108
aO = 0; aK = 192; aV = 224
KR = (131072, 98304, 65536); LDS_V = (0, 32768); LDS_EX = 65536
QSLOT = (0, 53248, 106496); LDS_TOTAL = 163840
UNIT_TILE = [0, 1, 2, 0, 1, 0, 1, 0, 1]
UNIT_KT =   [0, 0, 0, 1, 1, 2, 2, 3, 3]
FLAG_OFF = 0x1400000
PER = 33 if cfg.hyb else 34
NPV = PER - 16
Q1 = NPV - 9

def stamp(o, idx, alt=False):
    if cfg.pstamp and idx >= 5: return
    if cfg.sstamp and idx >= 5:
        if alt == 2: r = sST2 + 2 * (idx - 5); o.append(f"s_memtime s[{r}:{r+1}]")
        return
    if alt == 2: return
    if idx >= 5 and alt != cfg.ostamp: return
    if cfg.stamp:
        r = sST + 2 * idx if idx < 5 else sST2 + 2 * (idx - 5)
        o.append(f"s_memtime s[{r}:{r+1}]")

def k_dma():
    r = []
    for grp in range(2):
        for q in range(4):
            pre = []
            if q == 0: pre = [f"s_mov_b32 m0, s{sKm}"] if grp == 0 else [f"s_add_u32 m0, s{sKm}, 4096"]
            off = f" offset:{1024*q}" if q else ""
            r.append((pre, f"buffer_load_dwordx4 v{vKv+q}, s[{sK}:{sK+3}], s{sKo+grp} offen{off}{NT(cfg.kv_nt)} lds"))
    return r
def v_dma(slot):
    r = []
    for grp in range(2):
        for q in range(4):
            off = f" offset:{1024*q}" if q else ""
            r.append(([f"s_mov_b32 m0, s{sVm+2*slot+grp}"] if q == 0 else [],
                      f"buffer_load_dwordx4 v{vVv+q}, s[{sV}:{sV+3}], s{sVo+grp} offen{off}{NT(cfg.kv_nt)} lds"))
    return r
def adv(base, stride):
    m = sKmask if base == sKo else sVmask
    return [f"s_add_u32 s{base}, s{base}, s{stride}", f"s_add_u32 s{base+1}, s{base+1}, s{stride}",
            f"s_and_b32 s{base}, s{base}, s{m}", f"s_and_b32 s{base+1}, s{base+1}, s{m}"]
def flat(lst):
    out = []
    for pre, d in lst: out += pre + [d]
    return out

def place_dmas(S, lst, g, step, itf=lambda g: 0, limit=None):
    for pre, d in lst:
        gg = g
        while S.cost[S.norm(gg)] > 0: gg += 1
        if limit is not None: assert gg < limit, (gg, limit)
        for p in pre: S.put(gg - 1, Item(p, "s", itf(gg - 1)))
        S.put(gg, Item(d, "dma", itf(gg)))
        g = gg + step
    return g

def k_read(j, k16, c, base=None):
    va = (vKa + 2 * j if base is None else base) + (c & 1)
    return f"ds_read_b128 {ar(aK+16*k16+4*c,4)}, v{va} offset:{k16*4096 + (c>>1)*1024}"
def v_read(j, t, jj, slot):
    imm = LDS_V[slot] + jj * 4096 + (t >> 2) * 1024
    return f"ds_read_b64_tr_b16 {ar(aV+4*t+2*jj,2)}, v{vVa+4*j+(t&3)} offset:{imm}"

BG = PER * 7 + 16
LAST_TILE = [2, 0, 1, 0, 1, 0, 1, 0, 1]
def gen_attn_sched(peel=False):
    NU = 18; N = NU * PER; CUT = 17 * PER
    S = Sched(N, periodic=True)
    tile = lambda n: (LAST_TILE[n - 9] if (peel and 9 <= n < 18) else UNIT_TILE[n % 9])
    kt = lambda n: UNIT_KT[n % 9]
    slot = lambda n: (n // 9) & 1
    last = lambda n: UNIT_KT[n % 9] != UNIT_KT[(n + 1) % 9] or n % 9 == 8
    for n in range(NU):
        u = n + 1; it = 1 if u == NU else 0
        for i in range(16):
            q, k16, c = i >> 3, (i >> 2) & 1, i & 3
            if cfg.qkord: q, k16, c = i & 1, i >> 3, (i >> 1) & 3
            qt = 2 * tile(u) + q; sb = vS + 16 * (u & 1) + 8 * q + 4 * k16
            cin = vr(vNM + 4 * qt, 4) if c == 0 else vr(sb, 4)
            S.mf[PER*n + i] = Item(f"{MF} {vr(sb,4)}, {ar(aK+16*k16+4*c,4)}, {vr(vQ+16*qt+4*c,4)}, {cin}", "mf", it)
        for i in range(NPV):
            q, t = (0, i) if i < Q1 else (1, i - Q1)
            qt = 2 * tile(n) + q; pb = vr(vP + 8 * (n & 1) + 4 * q, 4)
            if t < 8:
                o = ar(aO + 32 * qt + 4 * t, 4)
                S.mf[PER*n + 16 + i] = Item(f"{MF} {o}, {ar(aV+4*t,4)}, {pb}, {o}", "mf")
            else:
                l = vr(vL + 4 * qt, 4)
                S.mf[PER*n + 16 + i] = Item(f"{MF} {l}, {vr(vOne,4)}, {pb}, {l}", "mf")
    for n in range(1, NU + 1):
        sb = vS + 16 * (n & 1); pb = vP + 8 * (n & 1)
        itf = lambda g: 1 if (n == NU and g < N) else 0
        for j in range(16):
            g = PER * (n - 1) + cfg.e0 + 2 * j
            S.put(g, Item(f"v_exp_f32 v{sb+j}, v{sb+j}", "t", itf(g)))
            if j & 1: S.put(g + 1, Item(f"v_cvt_pk_bf16_f32 v{pb+(j>>1)}, v{sb+j-1}, v{sb+j}", "v", itf(g + 1)))
    def place_adds():
        if not cfg.hyb: return
        for n in range(1, NU + 1):
            sb = vS + 16 * (n & 1); l = vL + 8 * tile(n)
            for j in range(8):
                g = PER * (n - 1) + cfg.e0 + 2 * j + 1
                item = Item(f"v_add_f32 v{l+(j&1)}, v{l+(j&1)}, v{sb+j}", "v")
                gg = S.put_win(g, PER * (n + 1) - 4, item, pack=True)
                if n == NU and gg < N: item.it = 1
    bar = [BG, 9 * PER + BG]
    for bi, b in enumerate(bar):
        if cfg.lstamp: S.put(b, Item("s_memtime s[96:97]", "s"))
        S.put(b, Item("s_waitcnt vmcnt(8) lgkmcnt(0)", "s")); S.put(b, Item("s_barrier", "s"))
        if cfg.lstamp:
            S.put(b, Item(f"v_mov_b32 v240, s96", "s")); S.put(b, Item("s_memtime s[96:97]", "s")); S.put(b, Item("s_waitcnt lgkmcnt(0)", "s"))
            S.put(b, Item(f"v_mov_b32 v241, s96", "s"))
            S.put(b, Item(f"buffer_store_dwordx2 v[240:241], v242, s[{sX}:{sX+3}], 0 offen", "s")); S.put(b, Item(f"v_add_u32 v242, 8, v242", "s"))
        S.put(b, Item(f"SWITCH{bi}:", "s"))
    for n in range(NU):
        if last(n):
            nu = n + 1
            for t in range(8):
                for jj in range(2):
                    lo = PER*n + 16 + Q1 + t; hi = lo + 15
                    if nu % 9 == 7: hi = min(hi, PER*(n+1) + 10)
                    item = Item(v_read(kt(nu), t, jj, slot(nu)), "ds")
                    g = S.put_win(lo, hi, item, pack=True)
                    if nu >= NU and g < N: item.it = 1
    for n in range(NU):
        u = n + 1
        if last(u):
            nu = u + 1; it = 1 if nu >= NU else 0
            for idx in range(8):
                lo = PER*n + 8 + idx; hi = lo + 16
                if cfg.qkord: lo = PER*n + 2 * idx + 1; hi = lo + PER - 11
                if u % 9 == 8: lo = max(lo, PER*n + 16)
                S.put_win(lo, hi, Item(k_read(kt(nu), idx >> 2, idx & 3), "ds", it), pack=True)
    if peel:
        place_adds(); return S, bar
    for bi, b in enumerate(bar):
        g0 = b - 40
        for l in [f"s_mov_b32 s{sKt}, s{sKb}", f"s_cmp_eq_u32 s{sKb}, s{sKw}"]: S.put(g0, Item(l, "s"))
        S.put(b + 1, Item(f"s_mov_b32 s{sKm}, s{sKt}", "s"))
        S.put(g0, Item(f"s_cselect_b32 s{sKd}, s{sT3}, s{sQs}", "s"))
        S.put(g0 + 1, Item(f"s_add_u32 s{sKb}, s{sKb}, s{sKd}", "s"))
        for i in range(8): S.put_win(g0 + 2, b - 1, Item(f"v_add_u32 v{vKa+i}, s{sKd}, v{vKa+i}", "v"), pack=True)
        itf = lambda g: 1 if (bi == 1 and g < N) else 0
        lv = v_dma(bi); lk = k_dma()
        lv[0] = (adv(sVo, sVs) + lv[0][0], lv[0][1]); lk[0] = (adv(sKo, sKs) + lk[0][0], lk[0][1])
        st0 = (b + 2) if bi == 0 else CUT + 1
        lim = b + 9 * PER - 14
        step = min(cfg.dma_step, (lim - 36 - st0) / 15)
        g = st0
        for i, x in enumerate(lv + lk):
            g = place_dmas(S, [x], max(g, st0 + int((i - i % cfg.dgrp) * step)), 2 if cfg.dgrp == 1 else 1, itf, limit=lim)
    if False:
        for i, g in enumerate(int(x) for x in cfg.pfpos.split(",")):
            place_dmas(S, [([f"s_add_u32 s{sPfo}, s{sPfo}, {(32 << cfg.pfsh) if cfg.pfsh else 262144 // len(cfg.pfpos.split(','))}", f"s_xor_b32 s{sPfx}, s{sPfo}, s{sPfr}"], f"buffer_load_dword v{vPfd}, v{vPfo}, s[{sD}:{sD+3}], s{sPfx} offen{NT(cfg.pf_nt)} ; pf{i}")], g, 1, itf=lambda g: 1 if g >= CUT else 0)
    place_adds()
    for bi, b in enumerate(bar):
        n = 0; g = b - 1
        while True:
            its = [x for x in S.gap[g % N] if x.kind == "dma"]
            if its and f"s[{sV}:{sV+3}]" in its[0].text: break
            n += len(its); g -= 1
        for x in S.gap[b]:
            if "vmcnt(8)" in x.text: x.text = x.text.replace("vmcnt(8)", f"vmcnt({n})")
    return S, bar

def kv_setup(e, t):
    r8, p8, tA, tB, tC = t, t+1, t+2, t+3, t+4
    e(f"v_lshrrev_b32 v{r8}, 3, v0"); e(f"v_and_b32 v{p8}, 7, v0"); e(f"v_lshrrev_b32 v{tA}, 1, v{r8}")
    e(f"v_xor_b32 v{tB}, v{tA}, v{p8}"); e(f"v_lshlrev_b32 v{tC}, 8, v{r8}")
    e(f"v_lshl_add_u32 v{vKv+1}, v{tB}, 4, v{tC}"); e(f"v_xor_b32 v{vKv+3}, 64, v{vKv+1}")
    e(f"v_add_u32 v{vKv}, 1024, v{vKv+1}"); e(f"v_add_u32 v{vKv+2}, 1024, v{vKv+3}")
    e(f"v_add_u32 v{vKv+1}, 128, v{vKv+1}"); e(f"v_add_u32 v{vKv+3}, 128, v{vKv+3}")
    e(f"v_lshlrev_b32 v{tB}, 1, v{tA}"); e(f"v_xor_b32 v{tB}, v{tB}, v{p8}")
    e(f"v_lshl_add_u32 v{vVv+1}, v{tB}, 4, v{tC}")
    e(f"v_add_u32 v{vVv}, 1024, v{vVv+1}"); e(f"v_add_u32 v{vVv+1}, 128, v{vVv+1}")
    e(f"v_mov_b32 v{vVv+2}, v{vVv}"); e(f"v_mov_b32 v{vVv+3}, v{vVv+1}")
    e(f"s_lshl_b32 s{sT0}, s{sB}, 5"); e(f"s_add_u32 s{sT0}, s{sT0}, s{sH}"); e(f"s_lshl_b32 s{sT0}, s{sT0}, 18")
    for s, p in ((sK, sPTR + 2), (sV, sPTR + 4)):
        e(f"s_add_u32 s{s}, s{p}, s{sT0}"); e(f"s_addc_u32 s{s+1}, s{p+1}, 0")
        e(f"s_sub_u32 s{s}, s{s}, 1024"); e(f"s_subb_u32 s{s+1}, s{s+1}, 0")
        e(f"s_mov_b32 s{s+2}, {262144+1024}"); e(f"s_mov_b32 s{s+3}, 0x20000")
    e(f"s_lshr_b32 s{sK0}, s2, 3"); e(f"s_xor_b32 s{sK0}, s{sK0}, s2"); e(f"s_and_b32 s{sK0}, s{sK0}, {cfg.krot}"); e(f"s_lshl_b32 s{sK0}, s{sK0}, 15")
    e(f"s_add_u32 s{sK0}, s{sK0}, s{sW8}"); e(f"s_mov_b32 s{sKmask}, 0x3ffff"); e(f"s_mov_b32 s{sVmask}, 0x3ffff")
    for b_ in (sKo, sVo):
        e(f"s_mov_b32 s{b_}, s{sK0}"); e(f"s_add_u32 s{b_+1}, s{sK0}, 4096")
    e(f"s_mov_b32 s{sKs}, 32768"); e(f"s_mov_b32 s{sVs}, 32768")
    e(f"s_add_u32 s{sKb}, s{sW8}, {KR[0]}"); e(f"s_mov_b32 s{sKm}, s{sKb}"); e(f"s_add_u32 s{sKw}, s{sW8}, {KR[2]}")

def att_addr(t):
    L = []; e = L.append
    tA, tB, tC, q16, kg, r4, c4, k0 = t, t+1, t+2, t+3, t+4, t+5, t+6, t+7
    e(f"v_and_b32 v{q16}, 15, v0"); e(f"v_lshrrev_b32 v{kg}, 4, v0")
    e(f"v_lshrrev_b32 v{tA}, 3, v{q16}"); e(f"v_lshlrev_b32 v{tA}, 11, v{tA}")
    e(f"v_and_b32 v{tB}, 7, v{q16}"); e(f"v_lshl_add_u32 v{tA}, v{tB}, 7, v{tA}")
    e(f"v_lshrrev_b32 v{tB}, 1, v{q16}"); e(f"v_xor_b32 v{tB}, v{tB}, v{kg}")
    e(f"v_lshl_add_u32 v{k0}, v{tB}, 4, v{tA}"); e(f"v_add_u32 v{k0}, {KR[0]}, v{k0}"); e(f"v_xor_b32 v{k0+1}, 64, v{k0}")
    n1 = len(L)
    e(f"v_bfe_u32 v{r4}, v0, 2, 2"); e(f"v_and_b32 v{c4}, 3, v0")
    e(f"v_and_b32 v{tA}, 1, v{kg}"); e(f"v_lshl_add_u32 v{tA}, v{tA}, 2, v{r4}")
    e(f"v_lshrrev_b32 v{tB}, 1, v{tA}"); e(f"v_lshlrev_b32 v{tB}, 5, v{tB}"); e(f"v_lshl_add_u32 v{tB}, v{tA}, 7, v{tB}")
    e(f"v_lshrrev_b32 v{tA}, 1, v{kg}"); e(f"v_lshl_add_u32 v{tB}, v{tA}, 11, v{tB}"); e(f"v_lshl_add_u32 v{tC}, v{c4}, 3, v{tB}")
    for j in range(4):
        e(f"s_add_u32 s{sT0}, s{sW}, {j}"); e(f"s_and_b32 s{sT0}, s{sT0}, 3"); e(f"s_lshl_b32 s{sT0}, s{sT0}, 13")
        for c in range(2): e(f"v_add_u32 v{vKa+2*j+c}, s{sT0}, v{k0+c}")
        e(f"v_add_u32 v{vVa+4*j}, s{sT0}, v{tC}")
        for k in range(1, 4): e(f"v_xor_b32 v{vVa+4*j+k}, {32*k}, v{vVa+4*j}")
    for i in range(4): e(f"v_mov_b32 v{vOne+i}, 0x3f803f80")
    return L[:n1], L[n1:], k0

def wo_voff(e, dst, t):
    r8, p8, tA, tB = t, t+1, t+2, t+3
    e(f"v_lshrrev_b32 v{r8}, 3, v0"); e(f"v_and_b32 v{p8}, 7, v0")
    e(f"v_bfe_u32 v{tA}, v{r8}, 1, 2"); e(f"v_lshlrev_b32 v{tA}, 1, v{tA}"); e(f"v_xor_b32 v{tA}, v{tA}, v{p8}")
    e(f"v_lshlrev_b32 v{tB}, 10, v{r8}"); e(f"v_lshl_add_u32 v{dst}, v{tA}, 4, v{tB}")
    for q in range(1, 4): e(f"v_add_u32 v{dst+q}, {7168*q}, v{dst}")
def wo_srd(e, s):
    e(f"s_lshl_b32 s{sT0}, s{sCg}, 7")
    e(f"s_add_u32 s{s}, s{sPTR+8}, s{sT0}"); e(f"s_addc_u32 s{s+1}, s{sPTR+9}, 0")
    e(f"s_sub_u32 s{s+2}, 4194304, s{sT0}"); e(f"s_mov_b32 s{s+3}, 0x20000")

vPfo = 243
vRa = 244
def wo_pf(e, srd, first, n):
    e(f"v_lshlrev_b32 v{vT}, 12, v0"); e(f"s_lshl_b32 s{sT0}, s{sW}, 20"); e(f"s_lshl_b32 s{sT1}, s{sRg}, 10"); e(f"s_add_u32 s{sT0}, s{sT0}, s{sT1}")
    e(f"s_add_u32 s{sT0}, s{sT0}, {first*32768}")
    for i in range(n):
        if i: e(f"s_add_u32 s{sT0}, s{sT0}, 262144")
        part = first + 8 * i + 8 > 32
        if part: e(f"s_mov_b64 exec, {(1 << (8 * (32 - first - 8 * i))) - 1:#x}")
        e(f"buffer_load_dword v{vPfd}, v{vT}, s[{srd}:{srd+3}], s{sT0} offen")
        if part: e("s_mov_b64 exec, -1")
def switch_block(bi):
    L = []; e = L.append
    e(f"s_cmp_lg_u32 s{sCnt}, {2 if bi == 1 else 1}"); e(f"s_cbranch_scc1 L_sw{bi}")
    if bi == 1:
        wo_voff(e, vKv, vT); wo_srd(e, sK); e(f"s_mov_b32 s{sKmask}, -1")
        e(f"s_and_b32 s{sR4}, s{sCg}, {cfg.orot}"); e(f"s_lshl_b32 s{sR4}, s{sR4}, 15"); e(f"s_lshl_b32 s{sT1}, s{sW}, 20"); e(f"s_or_b32 s{sR4}, s{sR4}, s{sT1}")
        if cfg.xrot: e(f"s_and_b32 s{sT1}, s2, 7"); e(f"s_lshl_b32 s{sT1}, s{sT1}, 17"); e(f"s_xor_b32 s{sR4}, s{sR4}, s{sT1}")
        e(f"s_mov_b32 s{sKs}, 0"); e(f"s_mov_b32 s{sKo}, s{sR4}"); e(f"s_mov_b32 s{sKo+1}, 0x40000000")
        kg, r4, c4, tA, tB = vT, vT+1, vT+2, vT+3, vT+4
        e(f"v_lshrrev_b32 v{kg}, 4, v0"); e(f"v_bfe_u32 v{r4}, v0, 2, 2"); e(f"v_and_b32 v{c4}, 3, v0")
        e(f"v_and_b32 v{tA}, 1, v{kg}"); e(f"v_lshl_add_u32 v{tA}, v{tA}, 2, v{r4}")
        e(f"v_lshrrev_b32 v{tB}, 1, v{tA}"); e(f"v_lshlrev_b32 v{tB}, 5, v{tB}")
        e(f"v_lshl_add_u32 v{tB}, v{tA}, 7, v{tB}"); e(f"v_lshrrev_b32 v{tA}, 1, v{kg}"); e(f"v_lshl_add_u32 v{tB}, v{tA}, 10, v{tB}")
        e(f"v_lshl_add_u32 v{tB}, v{c4}, 3, v{tB}"); e(f"v_add_u32 v{vRa}, s{sW8}, v{tB}")
        if cfg.fastred: e(f"s_lshl_b32 s{sT1}, s{sW}, 5"); e(f"v_xor_b32 v{vRa}, s{sT1}, v{vRa}")
        for nt in range(1, 4): e(f"v_xor_b32 v{vRa+nt}, {32*nt}, v{vRa}")
        for s_ in range(1, 3):
            for nt in range(4): e(f"v_add_u32 v{vRa+4*s_+nt}, {65536*s_}, v{vRa+nt}")
        e(f"v_lshlrev_b32 v10, 4, v0"); e(f"s_lshl_b32 s{sWo_}, s{sW}, 20")
        if cfg.pfcut: e(f"s_mov_b32 s{sD+2}, 0")
        if cfg.pflate:
            e(f"s_mov_b32 s{sD+2}, 4194304")
            e(f"s_lshr_b32 s{sPfo}, s2, 3"); e(f"s_lshl_b32 s{sPfo}, s{sPfo}, 13"); e(f"s_add_u32 s{sPfo}, s{sPfo}, s{sWo_}"); e(f"s_sub_u32 s{sPfo}, s{sPfo}, 262144")
    elif bi == 0:
        for q in range(4): e(f"v_mov_b32 v{vVv+q}, v{vKv+q}")
        wo_srd(e, sV); e(f"s_mov_b32 s{sVmask}, -1")
        if cfg.cpf2:
            e(f"s_getpc_b64 s[{sT0}:{sT1}]"); e("L_pc1:")
            e(f"s_add_u32 s{sT0}, s{sT0}, L_tail-L_pc1"); e(f"s_addc_u32 s{sT1}, s{sT1}, 0")
            e(f"s_lshr_b32 s{sT2}, s2, 3"); e(f"s_lshl_b32 s{sT2}, s{sT2}, 2"); e(f"s_add_u32 s{sT2}, s{sT2}, s{sW}"); e(f"s_lshl_b32 s{sT2}, s{sT2}, 6")
            e(f"v_min_u32 v{vT}, 1, v0"); e(f"v_lshlrev_b32 v{vT}, 13, v{vT}"); e(f"v_add_u32 v{vT}, s{sT2}, v{vT}")
            e(f"global_load_dword v{vPfd}, v{vT}, s[{sT0}:{sT1}]")
        e(f"s_xor_b32 s{sVo}, s{sR4}, 65536"); e(f"s_xor_b32 s{sVo+1}, s{sR4}, 98304"); e(f"s_mov_b32 s{sVs}, 0")
    e(f"L_sw{bi}:")
    L, _ = check_hazards(L, "sw", fix=True)
    return L

def gen():
    o = []; e = o.append
    e(f"{cfg.name}:")
    e("s_cmp_ge_u32 s2, 256"); e("s_cbranch_scc1 L_end")
    e(f"s_load_dwordx16 s[{sPTR}:{sPTR+15}], s[0:1], 0")
    stamp(o, 0)
    if cfg.stamp: e(f"s_memrealtime s[{sST+14}:{sST+15}]")
    e("v_lshrrev_b32 v1, 6, v0"); e("v_and_b32 v0, 63, v0"); e(f"v_readfirstlane_b32 s{sW}, v1")
    e(f"s_mov_b32 s{sRedo}, 0")
    e("L_restart:")
    if cfg.map_bh == "b":
        e(f"s_and_b32 s{sB}, s2, 7"); e(f"s_lshr_b32 s{sH}, s2, 3")
    else:
        e(f"s_lshr_b32 s{sB}, s2, 5"); e(f"s_and_b32 s{sT0}, s2, 7"); e(f"s_lshl_b32 s{sT0}, s{sT0}, 2")
        e(f"s_bfe_u32 s{sT1}, s2, 0x20003"); e(f"s_add_u32 s{sH}, s{sT0}, s{sT1}")
    t = vT
    r8, p8, tA, tB, tC = t, t+1, t+2, t+3, t+4
    vB = vQ; vAd = vQ + 40; vXv = vQ + 60; vWv = vQ + 62; vSh = vQ + 64
    e(f"v_lshrrev_b32 v{r8}, 3, v0"); e(f"v_and_b32 v{p8}, 7, v0")
    e(f"v_lshrrev_b32 v{tA}, 1, v{r8}")
    e(f"v_and_b32 v{tB}, 1, v{tA}"); e(f"v_lshlrev_b32 v{tB}, 1, v{tB}"); e(f"v_xor_b32 v{tB}, v{tB}, v{p8}")
    e(f"v_lshlrev_b32 v{tC}, 13, v{r8}"); e(f"v_lshl_add_u32 v{vWv}, v{tB}, 4, v{tC}")
    e(f"s_and_b32 s{sT0}, s{sW}, 1"); e(f"s_lshl_b32 s{sT1}, s{sT0}, 6"); e(f"v_xor_b32 v{vWv}, s{sT1}, v{vWv}"); e(f"s_lshl_b32 s{sT0}, s{sT0}, 2")
    e(f"v_xor_b32 v{tB}, v{tA}, v{p8}"); e(f"v_xor_b32 v{tC+1}, s{sT0}, v{tB}")
    e(f"v_lshlrev_b32 v{tC}, 10, v{r8}"); e(f"v_lshl_add_u32 v{vXv}, v{tC+1}, 4, v{tC}"); e(f"v_xor_b32 v{vXv+1}, 64, v{vXv}")
    e(f"s_mul_i32 s{sXo}, s{sW}, {9*8192}"); e(f"s_mul_i32 s{sXm}, s{sW}, {9*1024}")
    e(f"s_lshl_b32 s{sWo_}, s{sW}, 16"); e(f"s_lshl_b32 s{sWm}, s{sW}, 11"); e(f"s_add_u32 s{sWm}, s{sWm}, 36864")
    e(f"s_mul_i32 s{sT0}, s{sB}, 294912"); e(f"s_lshl_b32 s{sT1}, s{sH}, 8")
    e(f"s_mov_b32 s{sX+2}, 294912"); e(f"s_mov_b32 s{sX+3}, 0x20000")
    e(f"s_sub_u32 s{sWQ+2}, 4194304, s{sT1}"); e(f"s_mov_b32 s{sWQ+3}, 0x20000")
    e(f"s_add_u32 s{sRot}, s{sH}, s{sB}"); e(f"s_and_b32 s{sRot}, s{sRot}, {cfg.qrot}")
    if cfg.qx: e(f"s_and_b32 s{sXc}, s2, {cfg.qx}"); e(f"s_xor_b32 s{sRot}, s{sRot}, s{sXc}")
    if cfg.cpf:
        e("s_getpc_b64 s[96:97]"); e("L_pc0:")
        e(f"s_lshr_b32 s98, s2, 3"); e(f"s_lshl_b32 s98, s98, 2"); e(f"s_add_u32 s98, s98, s{sW}"); e("s_lshl_b32 s98, s98, 6")
    stamp(o, 5, 2)
    e("s_waitcnt lgkmcnt(0)")
    stamp(o, 6, 2)
    if cfg.cpf:
        for i in range(cfg.cpf_n):
            e(f"s_load_dword s99, s[96:97], s98"); e("s_add_u32 s98, s98, 8192")
    e(f"s_add_u32 s{sX}, s{sPTR+0}, s{sT0}"); e(f"s_addc_u32 s{sX+1}, s{sPTR+1}, 0")
    e(f"s_add_u32 s{sWQ}, s{sPTR+6}, s{sT1}"); e(f"s_addc_u32 s{sWQ+1}, s{sPTR+7}, 0")
    def q_dma(c):
        r = []; sl = QSLOT[c % 3]
        for q in range(4):
            go = (q >> 1) * 262144 + (q & 1) * 128
            rot = [f"s_xor_b32 s{sXc}, s{sRot}, {c}", f"s_lshl_b32 s{sT3}, s{sXc}, 19", f"s_add_u32 s{sT3}, s{sT3}, s{sWo_}",
                   f"s_lshl_b32 s{sXc}, s{sXc}, 7", f"s_add_u32 s{sXc}, s{sXc}, s{sXo}"] if q == 0 else []
            r.append((rot + [f"s_add_u32 m0, s{sWm}, {sl + 8192*(q>>1) + 1024*(q&1)}", f"s_add_u32 s{sT2}, s{sT3}, {go}"],
                      f"buffer_load_dwordx4 v{vWv}, s[{sWQ}:{sWQ+3}], s{sT2} offen{NT(cfg.q_nt)} lds ; chunk {c}"))
        for i in range(9):
            r.append(([f"s_add_u32 m0, s{sXm}, {sl + 1024*i}", f"s_add_u32 s{sT2}, s{sXc}, {i*8192}"],
                      f"buffer_load_dwordx4 v{vXv+(i&1)}, s[{sX}:{sX+3}], s{sT2} offen{NT(cfg.q_nt)} lds ; chunk {c}"))
        return r
    d0_ = q_dma(0)
    o += flat(d0_[:2] + d0_[4:] if cfg.qstart == 2 else d0_)
    stamp(o, 7, 2)
    e(f"s_lshl_b32 s{sW8}, s{sW}, 13")
    kv_setup(e, t)
    for sl in range(2):
        for g in range(2): e(f"s_add_u32 s{sVm+2*sl+g}, s{sW8}, {LDS_V[sl] + 4096*g}")
    e(f"s_mul_i32 s{sT0}, s{sB}, 2359296")
    e(f"s_add_u32 s{sO}, s{sPTR+14}, s{sT0}"); e(f"s_addc_u32 s{sO+1}, s{sPTR+15}, 0")
    e(f"s_mov_b32 s{sO+2}, 2359296"); e(f"s_mov_b32 s{sO+3}, 0x20000")
    e(f"s_bfe_u32 s{sRg}, s2, 0x20003"); e(f"s_lshr_b32 s{sCg}, s2, 5")
    e(f"s_lshr_b32 s{sMt}, s{sRg}, 1"); e(f"s_mul_i32 s{sMt}, s{sMt}, 9"); e(f"s_and_b32 s{sOdd}, s{sRg}, 1")
    e(f"s_mul_i32 s{sT0}, s{sOdd}, 5"); e(f"s_add_u32 s{sMt}, s{sMt}, s{sT0}")
    e(f"s_and_b32 s{sT0}, s2, 7"); e(f"s_mul_i32 s{sT0}, s{sT0}, 18"); e(f"s_add_u32 s{sMt}, s{sMt}, s{sT0}")
    if cfg.tlb:
        e(f"s_load_dword s99, s[{sK}:{sK+1}], 1024"); e(f"s_load_dword s99, s[{sV}:{sV+1}], 1024")
        e(f"s_lshl_b32 s98, s{sW}, 19"); e(f"s_load_dword s99, s[{sO}:{sO+1}], s98"); e(f"s_mov_b32 s98, {16*131072}"); e(f"s_load_dword s99, s[{sO}:{sO+1}], s98")
        e(f"s_lshl_b32 s98, s{sMt}, 17"); e(f"s_load_dword s99, s[{sPTR+14}:{sPTR+15}], s98"); e(f"s_add_u32 s98, s98, {4*131072-4}"); e(f"s_load_dword s99, s[{sPTR+14}:{sPTR+15}], s98")
        e(f"s_lshl_b32 s98, s{sW}, 20"); e(f"s_load_dword s99, s[{sPTR+8}:{sPTR+9}], s98")
        e(f"s_lshl_b32 s98, s{sMt}, 14"); e(f"s_load_dword s99, s[{sPTR+10}:{sPTR+11}], s98"); e(f"s_load_dword s99, s[{sPTR+12}:{sPTR+13}], 0")
    q16, kg, r4, c4 = t+6, t+7, t+8, t+9
    e(f"v_and_b32 v{q16}, 15, v0"); e(f"v_lshrrev_b32 v{kg}, 4, v0"); e(f"v_bfe_u32 v{r4}, v0, 2, 2"); e(f"v_and_b32 v{c4}, 3, v0")
    e(f"v_lshrrev_b32 v{tA}, 3, v{q16}"); e(f"v_lshlrev_b32 v{tA}, 10, v{tA}")
    e(f"v_and_b32 v{tB}, 7, v{q16}"); e(f"v_lshl_add_u32 v{tA}, v{tB}, 7, v{tA}")
    e(f"v_lshrrev_b32 v{tB}, 1, v{q16}"); e(f"v_xor_b32 v{tB}, v{tB}, v{kg}")
    e(f"v_lshl_add_u32 v{vAd}, v{tB}, 4, v{tA}"); e(f"v_xor_b32 v{vAd+1}, 64, v{vAd}")
    e(f"v_add_u32 v{vAd+2}, s{sW8}, v{vAd}"); e(f"v_add_u32 v{vAd+3}, s{sW8}, v{vAd+1}")
    e(f"v_lshrrev_b32 v{tA}, 1, v{r4}"); e(f"v_and_b32 v{tB}, 1, v{kg}"); e(f"v_lshl_add_u32 v{tA}, v{tB}, 1, v{tA}")
    e(f"v_lshlrev_b32 v{tA}, 5, v{tA}"); e(f"v_lshl_add_u32 v{tA}, v{c4}, 3, v{tA}"); e(f"v_lshl_add_u32 v{tA}, v{r4}, 7, v{tA}")
    e(f"v_lshl_add_u32 v{tA}, v{kg}, 11, v{tA}"); e(f"v_add_u32 v{vAd+4}, 36864, v{tA}")
    for k in range(1, 4): e(f"v_xor_b32 v{vAd+4+k}, {32*k}, v{vAd+4}")
    e(f"s_and_b32 s{sT0}, s{sW}, 1"); e(f"s_lshl_b32 s{sT0}, s{sT0}, 6"); e(f"s_lshr_b32 s{sT1}, s{sW}, 1"); e(f"s_lshl_b32 s{sT1}, s{sT1}, 10")
    e(f"v_xor_b32 v{vAd+8}, s{sT0}, v{vAd+4}"); e(f"v_add_u32 v{vAd+8}, s{sT1}, v{vAd+8}"); e(f"v_xor_b32 v{vAd+9}, 32, v{vAd+8}")
    e(f"s_mov_b32 s{sQs}, {QSCALE:#x}")
    if cfg.wwpos:
        e(f"s_mov_b32 s{sD}, s{sPTR+8}"); e(f"s_mov_b32 s{sD+1}, s{sPTR+9}"); e(f"s_mov_b32 s{sD+2}, 4194304"); e(f"s_mov_b32 s{sD+3}, 0x20000")
        e(f"v_and_b32 v254, 31, v0"); e(f"v_lshlrev_b32 v254, 7, v254"); e(f"s_lshl_b32 s{sKt2}, s2, 14"); e(f"s_lshl_b32 s{sT1}, s{sW}, 12"); e(f"s_add_u32 s{sKt2}, s{sKt2}, s{sT1}")
    if cfg.pkq: e(f"v_mov_b32 v252, s{sQs}"); e(f"v_mov_b32 v253, s{sQs}")
    if cfg.k0pf: e("v_lshlrev_b32 v252, 7, v0"); e("v_add_u32 v252, 1024, v252")

    NQ = 16 * 36
    S = Sched(NQ)
    fA = lambda t_: aK + 4 * t_
    fB = lambda p, q: vB + 16 * p + 4 * q
    fBs = lambda q: vB + 32 + 4 * q
    acc = lambda q, t_: vAcc + 32 * q + 4 * t_
    accs = lambda qs, u: vAcc + 128 + 8 * qs + 4 * u
    def rdA(ks, t_, jj):
        ad = vAd + 10 * ((ks >> 1) & 1); s = ks & 1
        if t_ < 8: return f"ds_read_b64_tr_b16 {ar(fA(t_)+2*jj,2)}, v{ad+4+(t_&3)} offset:{s*8192+(t_>>2)*1024+jj*512}"
        return f"ds_read_b64_tr_b16 {ar(fA(t_)+2*jj,2)}, v{ad+t_} offset:{s*8192+jj*512}"
    def rdB(ks, q):
        ad = vAd + 10 * ((ks >> 1) & 1); s = ks & 1
        if q < 4: return f"ds_read_b128 {vr(fB(ks&1,q),4)}, v{ad+2+s} offset:{2048*q}"
        return f"ds_read_b128 {vr(fBs(q-4),4)}, v{ad+s} offset:{32768+2048*(q-4)}"
    for ks in range(16):
        for i in range(36):
            if i < 32: t_, q = i >> 2, i & 3; a_, A, Bf = acc(q, t_), fA(t_), fB(ks & 1, q)
            else: u, qs = (i - 32) >> 1, i & 1; a_, A, Bf = accs(qs, u), fA(8 + u), fBs(qs)
            S.mf[36*ks + i] = Item(f"{MF} {vr(a_,4)}, {ar(A,4)}, {vr(Bf,4)}, {'0' if ks == 0 else vr(a_,4)}", "mf")
    QB = 9
    for c in range(8):
        gb = 72 * c + 36 + QB
        n = (13 + (cfg.wowarm if c == 0 else 0)) if c <= 5 else (8 if c == 6 else None)
        if cfg.k0pf and c in (cfg.k0pf, cfg.k0pf + 1): n += 1
        if cfg.wwpos and c in (cfg.wwpos, cfg.wwpos + 1) and n is not None: n += 1
        if cfg.qstamp: S.put(gb, Item("s_memtime s[96:97]", "s"))
        S.put(gb, Item(f"s_waitcnt vmcnt(CH{c+1}) lgkmcnt(0)" if n is not None else "s_waitcnt lgkmcnt(0)", "s"))
        S.put(gb, Item("s_barrier", "s"))
        if cfg.qstamp:
            S.put(gb, Item(f"v_mov_b32 v252, s96", "s")); S.put(gb, Item("s_memtime s[96:97]", "s")); S.put(gb, Item("s_waitcnt lgkmcnt(0)", "s"))
            S.put(gb, Item(f"v_mov_b32 v253, s96", "s"))
            S.put(gb, Item(f"buffer_store_dwordx2 v[252:253], v254, s[{sD}:{sD+3}], 0 offen", "s")); S.put(gb, Item(f"v_add_u32 v254, 8, v254", "s"))
    for ks in range(16):
        base = 36 * ks
        if ks:
            for k_, r in enumerate([rdA(ks, 8, 0), rdA(ks, 8, 1), rdB(ks, 4), rdB(ks, 5), rdA(ks, 9, 0), rdA(ks, 9, 1)]):
                S.put(base + (k_ >> 1), Item(r, "ds"))
        if ks < 15:
            lo0 = base + (QB if ks & 1 else 3)
            for q in range(4): S.put_win(lo0, base + 24, Item(rdB(ks + 1, q), "ds"))
            for t_ in range(8):
                for jj in range(2):
                    lo = max(base + 4 * t_ + 3, lo0)
                    if ks == 0 and cfg.qstart == 2: lo = max(lo, cfg.qb0)
                    g_r = S.put_win(lo, min(lo + 20, NQ - 1), Item(rdA(ks + 1, t_, jj), "ds"))
                    assert g_r < base + 36 + 4 * t_ - 6 and (ks & 1 or g_r < base + 36 + QB - 4), (ks, t_, g_r)
    for c in range(8):
        gb = 72 * c + 36 + QB
        if c + 3 < 8: lst = q_dma(c + 3)
        elif c == 5: lst = k_dma()
        elif c == 6: lst = v_dma(0)
        else:
            lst = k_dma(); lst[0] = (adv(sKo, sKs) + [f"s_add_u32 s{sKm}, s{sW8}, {KR[1]}"] + lst[0][0], lst[0][1])
            if cfg.k1pos: k1l = lst; lst = []
        if cfg.wwpos and c == cfg.wwpos - 1:
            lst = lst + [([], f"buffer_load_dword v{vPfd}, v254, s[{sD}:{sD+3}], s{sKt2} offen")]
        if cfg.k0pf and c == cfg.k0pf - 1:
            lst = lst + [([], f"buffer_load_dword v{vPfd}, v252, s[{sK}:{sK+3}], s{sKo} offen nt")]
        if cfg.qstart and c == 0:
            g_ = 1
            if cfg.qstart == 2:
                g_ = place_dmas(S, d0_[2:4], 1, 2) - 1
                S.put(cfg.qb0, Item("s_waitcnt vmcnt(CH0) lgkmcnt(0)", "s")); S.put(cfg.qb0, Item("s_barrier", "s"))
            g_ = place_dmas(S, q_dma(1), g_ + 1, 2, limit=36 + QB - 2)
            g_ = place_dmas(S, q_dma(2), g_, cfg.q2step, limit=gb + 50)
            g_ = place_dmas(S, lst, max(g_, gb + 2), 3, limit=gb + 72 + 40)
        elif cfg.qstart and c in (1, 2):
            g_ = place_dmas(S, lst, max(g_, gb + 2), 3 if c == 1 else 4, limit=gb + 72 + (20 if c == 1 else 0))
        else:
            place_dmas(S, lst, gb + 2, (cfg.qstep - (len(lst) > 13)) if c < 5 else cfg.kvstep, limit=min(gb + 72, NQ))
    if not cfg.qstart: place_dmas(S, q_dma(2), 1, 2, limit=36 + QB)
    for c in range(7):
        d = QSLOT[(c + 1) % 3] - QSLOT[c % 3]
        for k in range(10):
            S.put_win(72 * c + 4, 72 * c + 40, Item(f"v_add_u32 v{vAd+10*((c+1)&1)+k}, {d & 0xffffffff:#x}, v{vAd+10*(c&1)+k}", "v"))
    g = 0
    for i in range(192): g = S.put_win(g, NQ - 1, Item(f"v_accvgpr_write_b32 a{i}, 0", "v"))
    sys.stderr.write(f"qproj gaps over cap: {sum(c > CAP for c in S.cost)}\n")
    if not cfg.qstart: o += flat(q_dma(1))
    stamp(o, 8, 2)
    if cfg.qstamp:
        e(f"s_add_u32 s{sD}, s{sPTR+14}, 0x4100000"); e(f"s_addc_u32 s{sD+1}, s{sPTR+15}, 0"); e(f"s_mov_b32 s{sD+2}, 0x100000"); e(f"s_mov_b32 s{sD+3}, 0x20000")
        e(f"s_lshl_b32 s{sT0}, s2, 2"); e(f"s_add_u32 s{sT0}, s{sT0}, s{sW}"); e(f"s_lshl_b32 s{sT0}, s{sT0}, 6"); e(f"v_mov_b32 v254, s{sT0}")
    if cfg.wowarm:
        e(f"s_mov_b32 s{sD}, s{sPTR+8}"); e(f"s_mov_b32 s{sD+1}, s{sPTR+9}"); e(f"s_mov_b32 s{sD+2}, 4194304"); e(f"s_mov_b32 s{sD+3}, 0x20000")
        e(f"v_and_b32 v{tA}, 31, v0"); e(f"v_lshlrev_b32 v{tA}, 7, v{tA}"); e(f"s_lshl_b32 s{sT0}, s2, 14"); e(f"s_lshl_b32 s{sT1}, s{sW}, 12"); e(f"s_add_u32 s{sT0}, s{sT0}, s{sT1}")
        e(f"buffer_load_dword v{vPfd}, v{tA}, s[{sD}:{sD+3}], s{sT0} offen")
    e(f"s_waitcnt vmcnt({0 if cfg.qstart else 13}) lgkmcnt(0)"); e("s_barrier")
    stamp(o, 1)
    first = [rdA(0, 0, 0), rdA(0, 0, 1)] + [rdB(0, q) for q in range(4)] + [rdA(0, t_, jj) for t_ in range(1, 10) for jj in range(2)] + [rdB(0, 4), rdB(0, 5)]
    qh = ([0] * 11 if cfg.qstart == 2 else []) if cfg.qstart else [1] * 13
    for g, k, l in lgkm_waits([(-2, "ds", r) for r in first] + S.linear(0, NQ)):
        if "vmcnt(CH" in l:
            c_ = int(l.split("CH")[1][0]); assert qh.count(c_) == 13, (c_, qh)
            l = f"s_waitcnt vmcnt({len(qh) - 1 - max(i for i, x in enumerate(qh) if x == c_)}) lgkmcnt(0)"
        if l.startswith("buffer_"): qh.append(int(l.split()[-1]) if "; chunk" in l else -1)
        e(l)
    stamp(o, 2)
    def cvt_frag(src, dst):
        L = [f"v_mul_f32 v{src+i}, s{sQs}, v{src+i}" for i in range(8)]
        if cfg.pkq: L = [x for i in range(4) for x in (f"v_pk_mul_f32 {vr(src+2*i,2)}, {vr(src+2*i,2)}, v[252:253]", None)]
        L += [f"v_cvt_pk_bf16_f32 v{dst+i}, v{src+2*i}, v{src+2*i+1}" for i in range(4)]
        W = [f"v_permlane32_swap_b32 v{dst}, v{dst+2}", f"v_permlane32_swap_b32 v{dst+1}, v{dst+3}",
             f"v_permlane16_swap_b32 v{dst}, v{dst+2}", f"v_permlane16_swap_b32 v{dst+1}, v{dst+3}"]
        return L, W
    own = [(acc(q, 2 * c), vQ + 16 * q + 4 * c) for c in range(4) for q in range(4)]
    frs = own[:2] + [(accs(0, 0), vSh), (accs(1, 0), vSh + 4)] + own[2:]
    pendW = []
    for idx, (s_, d_) in enumerate(frs):
        L, W = cvt_frag(s_, d_)
        o += [x for x in L[:4] + pendW[:2] + L[4:8] + pendW[2:] + L[8:] if x]
        pendW = W
        if cfg.k1pos and idx >= 2 and idx % 2 == 0: o += flat([k1l.pop(0)])
        if idx == 4:
            e(f"v_lshlrev_b32 v10, 4, v0"); e(f"s_lshl_b32 s{sT0}, s{sW}, 10"); e(f"s_add_u32 s{sT0}, s{sT0}, {LDS_EX}")
            e(f"v_add_u32 v11, s{sT0}, v10"); e(f"v_add_u32 v10, {LDS_EX}, v10")
            e(f"ds_write_b128 v11, {vr(vSh,4)}"); e(f"ds_write_b128 v11, {vr(vSh+4,4)} offset:4096")
    o += pendW
    a1, a2, k0 = att_addr(vT)
    if cfg.flags:
        e(f"s_lshl_b32 s{sFo}, s{sB}, {cfg.fstr}"); e(f"s_lshl_b32 s{sT0}, s{sH}, 2"); e(f"s_add_u32 s{sFo}, s{sFo}, s{sT0}"); e(f"s_add_u32 s{sFo}, s{sFo}, {FLAG_OFF}")
        e(f"s_or_b32 s{sT0}, s{sW}, s{sRedo}"); e("s_cbranch_scc1 L_noclr")
        e(f"v_mov_b32 v{vT}, s{sFo}"); e(f"v_mov_b32 v{vT+1}, 0"); e("s_mov_b64 exec, 1")
        e(f"global_store_dword v{vT}, v{vT+1}, s[{sPTR+14}:{sPTR+15}] sc1"); e("s_mov_b64 exec, -1")
        e("L_noclr:")
    o += a1
    if cfg.s0: e("v_and_b32 v11, 48, v0"); e(f"v_add_u32 v11, {KR[0]}, v11")
    e(f"s_waitcnt vmcnt({16 if cfg.vlate else 8}) lgkmcnt(0)"); e("s_barrier")
    for c in range(4):
        if cfg.s0: e(f"ds_read_b128 {vr(vS+4*c,4)}, v11 offset:{(c&1)*64+(c>>1)*1024}")
        else: e(k_read(0, 0, c, base=k0))
    for i in range(8): e(f"ds_read_b128 {vr(vQ+64+4*i,4)}, v10 offset:{1024*i}")
    if cfg.dump_q:
        e("s_waitcnt lgkmcnt(0)")
        e(f"v_lshlrev_b32 v{tB}, 4, v0"); e(f"s_lshl_b32 s{sT0}, s{sH}, 2"); e(f"s_add_u32 s{sT0}, s{sT0}, s{sW}"); e(f"s_mul_i32 s{sT0}, s{sT0}, {18*1024}")
        for i in range(18):
            e(f"buffer_store_dwordx4 {vr(vQ+4*i,4)}, v{tB}, s[{sO}:{sO+3}], s{sT0} offen"); e(f"s_add_u32 s{sT0}, s{sT0}, 1024")
        e("s_waitcnt vmcnt(0)"); e("s_endpgm")
    def negm(E, srcs):
        tm = [vS + qt for qt in range(6)]
        for qt in range(6): E(f"v_mov_b32 v{tm[qt]}, v{srcs[qt]}")
        for qt in range(6): E(f"v_permlane32_swap_b32 v{srcs[qt]}, v{tm[qt]}")
        for qt in range(6): E(f"v_max_f32 v{srcs[qt]}, v{srcs[qt]}, v{tm[qt]}")
        for qt in range(6): E(f"v_mov_b32 v{tm[qt]}, v{srcs[qt]}")
        for qt in range(6): E(f"v_permlane16_swap_b32 v{srcs[qt]}, v{tm[qt]}")
        for qt in range(6): E(f"v_max_f32 v{srcs[qt]}, v{srcs[qt]}, v{tm[qt]}")
        for qt in range(6):
            for i in range(4): E(f"v_sub_f32 v{vNM+4*qt+i}, 0, v{srcs[qt]}")
    a2_all = list(a2)
    e(f"s_cmp_lg_u32 s{sRedo}, 0"); e("s_cbranch_scc1 L_truemax")
    if cfg.s0:
        o += a2[:16]; a2 = a2[16:]
        e("s_waitcnt lgkmcnt(8)")
        for i in range(16): e(f"v_xor_b32 v{vS+i}, 0x80008000, v{vS+i}")
        for qt in range(6):
            if qt == 4: e("s_waitcnt lgkmcnt(0)")
            nb = vNM + 4 * qt
            for c in range(4):
                e(f"{MF} {vr(nb,4)}, {vr(vS+4*c,4)}, {vr(vQ+16*qt+4*c,4)}, {'0' if c == 0 else vr(nb,4)}")
                nv = 0
                while a2 and nv < 2:
                    l = a2.pop(0); e(l); nv += l.startswith("v_")
        o += a2
    else:
        o += a2[:10]; a2 = a2[10:]
        e("s_waitcnt lgkmcnt(8)")
        mx = [vS + 8 + qt for qt in range(6)]
        for qt in range(6):
            if qt == 4: e("s_waitcnt lgkmcnt(0)")
            nb = vNM + 4 * qt
            for c in range(4):
                e(f"{MF} {vr(nb,4)}, {ar(aK+4*c,4)}, {vr(vQ+16*qt+4*c,4)}, {'0' if c == 0 else vr(nb,4)}")
                if qt >= 2 and c == 1:
                    p = vNM + 4 * (qt - 2); e(f"v_max3_f32 v{mx[qt-2]}, v{p}, v{p+1}, v{p+2}"); e(f"v_max_f32 v{mx[qt-2]}, v{mx[qt-2]}, v{p+3}")
                else:
                    nv = 0
                    while a2 and nv < 2:
                        l = a2.pop(0); e(l); nv += l.startswith("v_")
        o += a2
        for qt in (4, 5):
            p = vNM + 4 * qt; e(f"v_max3_f32 v{mx[qt]}, v{p}, v{p+1}, v{p+2}"); e(f"v_max_f32 v{mx[qt]}, v{mx[qt]}, v{p+3}")
        negm(e, mx)
    if not cfg.vlate: e("s_barrier")
    e("L_att:")
    e(f"s_mov_b32 s{sCnt}, 3"); e(f"s_mov_b32 s{sT3}, 65536"); e(f"s_mov_b32 s{sQs}, {(-32768) & 0xffffffff:#x}")
    e(f"s_add_u32 s{sKm}, s{sW8}, {KR[2]}")
    stamp(o, 3)
    if cfg.lstamp:
        e(f"s_add_u32 s{sX}, s{sPTR+14}, 0x4100000"); e(f"s_addc_u32 s{sX+1}, s{sPTR+15}, 0"); e(f"s_mov_b32 s{sX+2}, 0x100000"); e(f"s_mov_b32 s{sX+3}, 0x20000")
        e(f"s_lshl_b32 s{sT0}, s2, 2"); e(f"s_add_u32 s{sT0}, s{sT0}, s{sW}"); e(f"s_lshl_b32 s{sT0}, s{sT0}, 6"); e(f"v_mov_b32 v242, s{sT0}")
    A, bar = gen_attn_sched()
    N = A.n; CUT = 17 * PER
    sys.stderr.write(f"loop: overflow {sum(max(0, c - CAP) for c in A.cost)}, empty gaps {sum(c == 0 for c in A.cost)}\n")
    pro = lgkm_waits(A.linear(bar[1], N, keep=lambda it: it == 1), slack=100)
    zl = [f"v_mov_b32 v{vL+i}, 0" for i in range(24)]; pz = []
    seenv = not cfg.vlate; nd_ = 0
    for g, k, l in pro:
        if not seenv and l.startswith("ds_read_b64_tr"):
            pz += [f"s_waitcnt vmcnt({8 + nd_})", "s_barrier"]; seenv = True
        if k == "dma":
            nd_ += 1; assert seenv or f"s[{sV}:" in l
        pz.append(l)
        if k == "mf": pz += zl[:2]; zl = zl[2:]
    assert not zl
    pl, _ = check_hazards(pz, "pro", fix=True)
    o += pl
    e("s_waitcnt lgkmcnt(0)")
    body = A.linear(0, N)
    two = lgkm_waits(body + [(10**6, "x", "MARK:")] + [(g + N, k, l) for g, k, l in body] + [(2 * N, "mf", body[0][2])])
    k_ = [i for i, x in enumerate(two) if x[2] == "MARK:"][0]
    body2 = [(g - N, k, l) for g, k, l in two[k_+1:-1]]
    e("L_loop:")
    bl = []
    for g, k, l in body2:
        if l.startswith("SWITCH"): continue
        bl.append(l)
        if g == N - 1 and k == "mf": bl += [f"s_sub_u32 s{sCnt}, s{sCnt}, 1", f"s_cmp_lg_u32 s{sCnt}, 0"]
    ci = bl.index(f"s_cmp_lg_u32 s{sCnt}, 0")
    assert not any("scc" in Ins(x).w for x in bl[ci+1:]), bl[ci:]
    bl.append("s_cbranch_scc1 L_loop")
    _, bad = check_hazards(pl[-30:] + bl + bl, "loop"); assert bad == 0 or cfg.lstamp
    o += bl
    ep = []; hist = []
    def E(l, tag=None):
        if cfg.nost and tag == "st" and (cfg.nost == 1 or len([x for x in hist if x == "st"]) % 2): l = l.replace(f"s[{sO}:{sO+3}]", f"s[{sWQ}:{sWQ+3}]")
        ep.append(l)
        if Ins(l).kind in ("vmem", "dma", "vstore"): hist.append("sig" if l.endswith("; wave 0") else tag)
    def vwait(tag):
        last = max(i for i, x in enumerate(hist) if x == tag)
        n = sum(1 for x in hist[last+1:] if x != "sig")
        return f"s_waitcnt vmcnt({min(63, n)})"
    vwait1 = vwait
    LS = [KR[2], KR[2] + 4096, LDS_V[0], LDS_V[0] + 4096, KR[0], KR[0] + 4096, LDS_V[1], LDS_V[1] + 4096, KR[1], KR[1] + 4096]
    RS = [("a", 128), ("a", 144), ("a", 160), ("a", 176), ("v", 76), ("v", 92), ("a", 192), ("a", 208),
          ("a", 224), ("a", 240), ("v", 156), ("v", 172), ("v", 188), ("v", 204), ("v", 12), ("v", 28), ("a", 112)]
    LSOF = {0: 0}
    NR = len(RS); NB = 5
    aRing = 0; vOo = 5; vR = 236; vLn = 10; vZ = 11
    ac2 = lambda i: 108 + 4 * i if i < 12 else 44 + 4 * (i - 12)
    def rreg(step, nt, jj=None):
        k, b = RS[step % NR]; f = vr if k == "v" else ar
        return f(b + 4 * nt, 4) if jj is None else f(b + 4 * nt + 2 * jj, 2)
    def tr_reads(step):
        a = LS[LSOF[step]]; s_ = a >> 16
        return [f"ds_read_b64_tr_b16 {rreg(step, nt, jj)}, v{vRa+4*s_+nt} offset:{(a & 0xffff) + 2048*jj} ; wo step {step}" for nt in range(4) for jj in range(2)]
    def wo_dma(step):
        return [(([f"s_add_u32 m0, s{sW8}, {LS[LSOF[step]]}", f"s_xor_b32 s{sT2}, s{sR4}, {32768*step}"] if q == 0 else []),
                 f"buffer_load_dwordx4 v{vKv+q}, s[{sK}:{sK+3}], s{sT2} offen offset:{1024*q} lds ; wo step {step}") for q in range(4)]
    def emit_dma(step):
        for l in flat(wo_dma(step)): E(l, ("w", step))
    def emit_tr(step):
        E(vwait(("w", step)))
        for l in tr_reads(step): E(l)
    T = vT
    P, _ = gen_attn_sched(peel=True)
    G0 = bar[0]; B7 = bar[1]
    NP = CUT + NPV
    Z = Sched(NP)
    for g in range(0, CUT):
        Z.mf[g] = P.mf[g]
        for x in A.gap[g]:
            if x.it or x.text.startswith("SWITCH") or x.text.startswith("v_add_f32"): continue
            if g < G0 + 1:
                if f"s[{sK}:{sK+3}]" in x.text or f"s{sKm}" in x.text or f"s{sKo}" in x.text or f"s{sKo+1}" in x.text: continue
                Z.put(g, Item(x.text.replace("vmcnt(8)", "vmcnt(V7)") + (" ; V7" if x.kind == "dma" else ""), x.kind))
            elif x.kind in ("ds", "t") or "cvt_pk" in x.text: Z.put(g, Item(x.text, x.kind))
            elif g == B7 and x.text in ("s_barrier",): Z.put(g, Item("s_waitcnt lgkmcnt(0)", "s")); Z.put(g, Item(x.text, "s"))
    for i in range(NPV): Z.mf[CUT + i] = P.mf[CUT + 16 + i]
    gg = CUT - 1
    for g in range(CUT, N):
        for x in P.gap[g]:
            if x.it == 0 and not x.text.startswith("v_add_f32"): gg = Z.put_win(min(gg + 1, CUT + Q1 - 3), CUT + Q1 - 3, Item(x.text, x.kind))
    if cfg.hyb:
        for g in range(0, 2 * PER):
            for x in A.gap[g]:
                if x.text.startswith("v_add_f32") and not x.it and int(x.text.split("v")[-1]) < vS + 16 and g < PER - 4 + 1: Z.put(g, Item(x.text, "v"))
        for n in range(1, 18):
            tl_ = LAST_TILE[n - 9] if n >= 9 else UNIT_TILE[n]
            sb = vS + 16 * (n & 1); l = vL + 8 * tl_
            for j in range(8):
                g = PER * (n - 1) + cfg.e0 + 2 * j + 1
                Z.put_win(g, min(PER * (n + 1) - 4, g + 30 if n == 9 else 10**6), Item(f"v_add_f32 v{l+(j&1)}, v{l+(j&1)}, v{sb+j}", "v"), pack=True)
    tags = {}
    def zput(lo, hi, text, kind, tag=None, pack=True, cap=CAP):
        if tag: tags[text] = tag
        return Z.put_win(lo, hi, Item(text, kind), pack=pack, cap=cap)
    def zf(lo, text, kind, tag=None, w=2):
        if tag: tags[text] = tag
        lo = min(lo, NP - 1)
        g = min(range(lo, min(lo + w, NP)), key=lambda x: (Z.cost[x] + (4 if kind in ("ds", "dma") and any(y.kind == "t" for y in Z.gap[x]) else 0), x))
        Z.put(g, Item(text, kind)); return g
    if cfg.v7step:
        seqv = []
        for g in range(0, G0):
            keep = []
            for x in Z.gap[g]:
                if x.text.endswith("; V7") or (x.kind == "s" and "m0" in x.text): seqv.append(x); Z.cost[g] -= x.cost
                else: keep.append(x)
            Z.gap[g] = keep
        g = 1; pre_ = []
        for x in seqv:
            if x.kind == "s": pre_.append(x.text); continue
            g = zf(g, x.text, "dma")
            for l in pre_: Z.put(g - 1, Item(l, "s"))
            pre_ = []; g += cfg.v7step
    vXw, vXr, vF, vFw = T, T + 1, 242, T + 3
    ad = [f"s_lshl_b32 s{sT0}, s{sW}, 14", f"s_lshr_b32 s{sT1}, s{sW}, 1", f"s_mul_i32 s{sT1}, s{sT1}, {KR[0] - 32768}", f"s_add_u32 s{sT0}, s{sT0}, s{sT1}",
          f"v_add_u32 v{vXw}, s{sT0}, v{vLn}", f"s_lshl_b32 s{sT0}, s{sW}, 11", f"v_add_u32 v{vXr}, s{sT0}, v{vLn}", f"v_add_u32 v{vXr+1}, {KR[0]}, v{vXr}",
          f"v_lshlrev_b32 v{vF}, 2, v0", f"v_add_u32 v{vF}, {LS[1]}, v{vF}", f"v_add_u32 v{vFw}, s{sW8}, v{vF}",
          f"s_lshl_b32 s{sT1}, s{sH}, 12", f"s_lshl_b32 s{sT3}, s{sW}, 10", f"s_add_u32 s{sT3}, s{sT3}, s{sT1}", f"s_add_u32 s{sT3}, s{sT3}, {16*131072}",
          f"s_lshl_b32 s{sT0}, s{sW}, 19", f"s_add_u32 s{sT0}, s{sT0}, s{sT1}", f"s_add_u32 s{sT1}, s{sT3}, 131072"]
    su = [f"s_lshl_b32 s{sT1}, s{sW}, 20",
          f"s_mov_b32 s{sD}, s{sPTR+8}", f"s_mov_b32 s{sD+1}, s{sPTR+9}", f"s_mov_b32 s{sD+2}, 4194304", f"s_mov_b32 s{sD+3}, 0x20000",
          f"s_lshr_b32 s{sPfo}, s2, 3", f"s_lshl_b32 s{sPfo}, s{sPfo}, 13", f"s_add_u32 s{sPfo}, s{sPfo}, s{sT1}",
          f"s_and_b32 s{sPfr}, s2, {6 if cfg.xrot else 0}", f"s_lshl_b32 s{sPfr}, s{sPfr}, 17", f"v_lshlrev_b32 v{vPfo}, 7, v0"]
    if cfg.cpf2:
        su += [f"s_getpc_b64 s[{sCP}:{sCP+1}]", "L_pc1:", f"s_add_u32 s{sCP}, s{sCP}, {'L_tail-L_pc1' if cfg.cpf2 == 1 else 0}", f"s_addc_u32 s{sCP+1}, s{sCP+1}, 0",
               f"s_lshr_b32 s{sT2}, s2, 3", f"s_lshl_b32 s{sT2}, s{sT2}, 2", f"s_add_u32 s{sT2}, s{sT2}, s{sW}", f"s_lshl_b32 s{sT2}, s{sT2}, 6",
               f"v_min_u32 v11, {1 if cfg.cpf2 == 1 else 2}, v0", f"v_lshlrev_b32 v11, 13, v11", f"v_add_u32 v11, s{sT2}, v11"]
    su += ["PF", f"s_and_b32 s{sR4}, s{sCg}, {cfg.orot}", f"s_lshl_b32 s{sR4}, s{sR4}, 15", f"s_or_b32 s{sR4}, s{sR4}, s{sT1}"]
    if cfg.xrot: su += [f"s_and_b32 s{sT1}, s2, 7", f"s_lshl_b32 s{sT1}, s{sT1}, 17", f"s_xor_b32 s{sR4}, s{sR4}, s{sT1}"]
    wo_voff(su.append, vKv, vT); wo_srd(su.append, sK)
    kg, r4, c4, tA, tB = vT, vT+1, vT+2, vT+3, vT+4
    su += [f"v_lshrrev_b32 v{kg}, 4, v0", f"v_bfe_u32 v{r4}, v0, 2, 2", f"v_and_b32 v{c4}, 3, v0",
           f"v_and_b32 v{tA}, 1, v{kg}", f"v_lshl_add_u32 v{tA}, v{tA}, 2, v{r4}", f"v_lshrrev_b32 v{tB}, 1, v{tA}", f"v_lshlrev_b32 v{tB}, 5, v{tB}",
           f"v_lshl_add_u32 v{tB}, v{tA}, 7, v{tB}", f"v_lshrrev_b32 v{tA}, 1, v{kg}", f"v_lshl_add_u32 v{tB}, v{tA}, 10, v{tB}",
           f"v_lshl_add_u32 v{tB}, v{c4}, 3, v{tB}", f"v_add_u32 v{vRa}, s{sW8}, v{tB}", f"s_lshl_b32 s{sT1}, s{sW}, 5", f"v_xor_b32 v{vRa}, s{sT1}, v{vRa}"]
    su += [f"v_xor_b32 v{vRa+nt}, {32*nt}, v{vRa}" for nt in range(1, 4)]
    su += [f"v_add_u32 v{vRa+4*s_+nt}, {65536*s_}, v{vRa+nt}" for s_ in range(1, 3) for nt in range(4)]
    su += ["v_lshlrev_b32 v10, 4, v0"]
    g = 2
    for l in su:
        if l == "PF":
            gsu = g
            if cfg.cpf2: zf(max(gsu, cfg.cpos), f"global_load_dword v{vPfd}, v11, s[{sCP}:{sCP+1}]", "dma")
            gp = gsu
            for i, x in enumerate(cfg.pfpos.split(",") if cfg.wopf else []):
                gp = zf(max(int(x), gp + 2), f"buffer_load_dword v{vPfd}, v{vPfo}, s[{sD}:{sD+3}], s{sPfx} offen ; pf{i}", "dma")
                for l_ in (f"s_xor_b32 s{sPfx}, s{sPfo}, s{sPfr}", f"s_add_u32 s{sPfo}, s{sPfo}, 262144"): Z.put(gp - 1, Item(l_, "s"))
        elif l.startswith("v_"): g = zput(g, g + 12, l, "v", pack=False) + 1
        else: Z.put(g, Item(l, "s"))
    if cfg.flags:
        for l in [f"s_or_b32 s99, s{sW}, s{sRedo}", "s_cbranch_scc1 L_nocnt", f"v_mov_b32 v{vR+2}, 0", f"v_mov_b32 v{vR+3}, 1", "s_mov_b64 exec, 1",
                  f"global_atomic_add v{vR+2}, v{vR+3}, s[{sPTR+12}:{sPTR+13}] ; wave 0", "s_mov_b64 exec, -1", "s_nop 3", "L_nocnt:"]: Z.put(G0 - 60, Item(l, "s"))
        for l in [f"s_cmp_lg_u32 s{sW}, 0", "s_cbranch_scc1 L_noget", f"v_mov_b32 v{vPfo}, 0", "s_mov_b64 exec, 1",
                  f"global_load_dword v{vPfo}, v{vPfo}, s[{sPTR+12}:{sPTR+13}] sc1 ; wave 0", "s_mov_b64 exec, -1", "s_nop 3", "L_noget:"]: Z.put(cfg.cntpos, Item(l, "s"))
    g = G0 + 20
    for l in ad:
        if l.startswith("v_"): g = zput(g, g + 12, l, "v", pack=False) + 1
        else: Z.put(g, Item(l, "s"))
    def burst(g, lines):
        for l in lines: Z.put(g, Item(l, "v"))
    def pk(b, r):
        return f"v_pk_mul_f32 {vr(b,2)}, {vr(b,2)}, {vr(r & ~1,2)} op_sel:[0,{r & 1}] op_sel_hi:[1,{r & 1}]"
    sFl = sVm
    g = cfg.xw0 or PER * 9 + 16 + NPV + 6
    if cfg.hyb: burst(g, [f"v_add_f32 v{vL+16}, v{vL+16}, v{vL+16+1}", f"v_mov_b32 v{vL+18}, v{vL+16}", "s_nop 1", f"v_permlane32_swap_b32 v{vL+16}, v{vL+18}", f"v_add_f32 v{vL+16}, v{vL+16}, v{vL+18}",
               f"v_mov_b32 v{vL+18}, v{vL+16}", "s_nop 1", f"v_permlane16_swap_b32 v{vL+16}, v{vL+18}", f"v_add_f32 v{vL+16}, v{vL+16}, v{vL+18}"])
    for i in range(16): g = zf(g, f"ds_write_b128 v{vXw}, {ar(aO+128+4*i,4)} offset:{1024*i}", "ds") + 1
    g = zf(g, f"ds_write_b32 v{vFw}, v{vL+16}", "ds"); g = zf(g, f"ds_write_b32 v{vFw}, v{vL+20} offset:256", "ds")
    Z.put(g - 4, Item(f"s_mov_b32 s{sKd}, {LTHRESH:#x}", "s"))
    g = zf(g, f"v_add_f32 v{vR+4}, v{vL+16}, v{vL+20}", "v") + 1
    g = zf(g, f"v_cmp_nge_f32 s[{sFl}:{sFl+1}], s{sKd}, v{vR+4}", "v")
    XA = g + 7
    Z.put(XA, Item("s_waitcnt lgkmcnt(0)", "s")); Z.put(XA, Item("s_barrier", "s"))
    bA = [vQ + 64 + 4 * i for i in range(4)]; bB = [vQ + 80 + 4 * i for i in range(4)]; bC = [vNM + 16, vNM + 20, vL + 16, vL + 20]
    lr = [[236, 237, 238, 239], [5, 6, 7, 8]]
    def prd(wv, dst): return [f"ds_read_b128 {vr(dst[i],4)}, v{vXr+(wv>>1)} offset:{16384*(wv&1)+8192*(i>>1)+1024*(i&1)}" for i in range(4)]
    def padd(d, x): return [f"v_pk_add_f32 {vr(d[i]+r,2)}, {vr(d[i]+r,2)}, {vr(x[i]+r,2)}" for i in range(4) for r in (0, 2)]
    g = XA
    rd = prd(0, bA) + prd(1, bB) + prd(2, bC) + [f"ds_read_b32 v{lr[j][wv]}, v{vF} offset:{8192*wv+256*j}" for wv in range(4) for j in range(2)]
    for i, r in enumerate(rd): g = zf(g + (i & 1), r, "ds")
    gt = g + 1
    g = gt + 8
    while any(y.kind == "t" for y in Z.gap[g]): g += 1
    burst(g, padd(bA, bB))
    g3 = g + 1
    for i, r in enumerate(prd(3, bB)): g3 = zf(g3 + (i & 1), r, "ds")
    g += 2
    lsum = []
    for j in range(2):
        x = lr[j]; lsum += [f"v_add_f32 v{x[0]}, v{x[0]}, v{x[1]}", f"v_add_f32 v{x[2]}, v{x[2]}, v{x[3]}", f"v_add_f32 v{x[0]}, v{x[0]}, v{x[2]}"]
    burst(g, padd(bA, bC) + lsum + [f"v_rcp_f32 v{lr[0][0]}, v{lr[0][0]}", f"v_rcp_f32 v{lr[0][1]}, v{lr[1][0]}"])
    XB = g3 + 9
    while any(y.kind == "t" for y in Z.gap[XB]): XB += 1
    Z.put(XB, Item("s_waitcnt lgkmcnt(0)", "s")); Z.put(XB, Item("s_barrier", "s"))
    burst(XB, padd(bA, bB) + [pk(bA[i] + r, lr[0][i >> 1]) for i in range(4) for r in (0, 2)]
          + [f"v_cvt_pk_bf16_f32 v{bB[0]+i}, v{bA[0]+2*i}, v{bA[0]+2*i+1}" for i in range(8)])
    g = XB
    for j in range(2):
        d = f"buffer_store_dwordx4 {vr(bB[j],4)}, v{vLn}, s[{sO}:{sO+3}], s{sT3 if j == 0 else sT1} offen{cfg.st_sc}"
        g = zf(g + 1, d, "dma", tag=("prov", "st"))
    GS = g + 2
    free = [(cfg.d0, 0)] + [(XB + 1, i) for i in (1, 2, 3, 4, 5)] + [(B7 + 1, i) for i in (6, 7, 8, 9)]
    ravail = [XA] * 4 + [GS] * 2 + [CUT - 16, CUT - 16]
    gd = cfg.d0; gtr = gt + 1; nxt = 0; pend = []; ntr = 0; LSOF.clear()
    while True:
        free.sort()
        t0 = max(gd, free[0][0]) if free else 10**6
        if pend and ntr < len(ravail):
            tt = max(pend[0][1] + cfg.land, ravail[ntr], gtr)
            if tt <= t0 and tt + 8 < NP:
                st, gi = pend.pop(0); g = tt
                for i, r in enumerate(tr_reads(st)): g = zf(g + (i & 1), r, "ds", tag=("need", ("w", st)) if i == 0 else None)
                gtr = g + 1; free.append((g + 8, LSOF[st])); ntr += 1
                continue
        if t0 + 8 >= NP: break
        gf, sl = free.pop(0); LSOF[nxt] = sl
        w_ = wo_dma(nxt)
        if any(LSOF.get(x) == sl for x in range(nxt)): w_[0] = ([f"s_waitcnt lgkmcnt(15) ; slot {nxt}"] + w_[0][0], w_[0][1])
        g = t0
        for q, (p_, d) in enumerate(w_):
            g = zf(g, d, "dma", tag=("prov", ("w", nxt)), w=2 if t0 + 12 < NP else 1)
            for l in p_: Z.put(g - 1, Item(l, "s"))
            g += 2 if t0 + 12 < NP else 1
        pend.append((nxt, g)); gd = max(t0 + cfg.dstep, g); nxt += 1
    free = [x[1] for x in sorted(free)]
    sys.stderr.write(f"last stage: XA {XA} XB {XB} GS {GS}; wo steps issued {nxt}, in registers {ntr}; overflow {sum(max(0, c - CAP) for c in Z.cost)}\n")
    E("L_last:")
    if cfg.pstamp:
        for i_, g_ in enumerate((0, G0 + 1, XB + 1, B7 + 1)): Z.put(g_, Item(f"s_memtime s[{sST2+2*i_}:{sST2+2*i_+1}]", "s"))
    seq = Z.linear(0, NP)
    seq2 = lgkm_waits([(g - N, k, l) for g, k, l in body if g >= bar[1] and not l.startswith("SWITCH")] + [(-1, "x", "MARK:")] + seq)
    seq2 = seq2[[x[2] for x in seq2].index("MARK:") + 1:]
    dsq = []
    for g, k, l in seq2:
        if "; slot" in l:
            st = int(l.split()[-1]); prev = max(x for x in range(st) if LSOF[x] == LSOF[st])
            idx = max(i for i, x in enumerate(dsq) if x.endswith(f"wo step {prev}"))
            l = f"s_waitcnt lgkmcnt({min(15, len(dsq) - 1 - idx)})"
        if l.startswith("ds_"): dsq.append(l)
        if l.endswith("; V7"): tags[l] = ("prov", "V7")
        if "vmcnt(V7)" in l: l = vwait("V7") + " lgkmcnt(0)"
        tg = tags.get(l)
        if tg and tg[0] == "need": E(vwait(tg[1]))
        E(l, tg[1] if tg and tg[0] == "prov" else None)
    E("L_tail:")
    stamp(ep, 4)
    if cfg.hyb:
        r0 = [f"v_add_f32 v{vL}, v{vL}, v{vL+1}", f"v_mov_b32 v{vL+2}, v{vL}", "s_nop 1", f"v_permlane32_swap_b32 v{vL}, v{vL+2}", f"v_add_f32 v{vL}, v{vL}, v{vL+2}",
               f"v_mov_b32 v{vL+2}, v{vL}", "s_nop 1", f"v_permlane16_swap_b32 v{vL}, v{vL+2}", f"v_add_f32 v{vL}, v{vL}, v{vL+2}"]
        r1 = [f"v_add_f32 v{vL+8}, v{vL+8}, v{vL+8+1}", f"v_mov_b32 v{vL+10}, v{vL+8}", "s_nop 1", f"v_permlane32_swap_b32 v{vL+8}, v{vL+10}", f"v_add_f32 v{vL+8}, v{vL+8}, v{vL+10}",
               f"v_mov_b32 v{vL+10}, v{vL+8}", "s_nop 1", f"v_permlane16_swap_b32 v{vL+8}, v{vL+10}", f"v_add_f32 v{vL+8}, v{vL+8}, v{vL+10}"]
        for x, y in zip(r0, r1):
            if x.startswith("v_"): E(x); E(y)
    for qt in range(4): E(f"v_rcp_f32 v{vR+qt}, v{vL+4*qt}")
    chk = [f"s_mov_b32 s{sT3}, {LTHRESH:#x}",
           f"v_add_f32 v{T}, v{vL}, v{vL+4}", f"v_add_f32 v{T+1}, v{vL+8}, v{vL+12}",
           f"v_add_f32 v{T}, v{T}, v{T+1}", f"v_cmp_nge_f32 vcc, s{sT3}, v{T}",
           f"v_lshlrev_b32 v{vF}, 2, v0", f"v_add_u32 v{vF}, {{FL}}, v{vF}", f"v_add_u32 v{T+1}, s{sW8}, v{vF}",
           f"s_or_b64 vcc, vcc, s[{sFl}:{sFl+1}]", f"s_cselect_b32 s{sT3}, 1, 0", f"v_mov_b32 v{T+2}, s{sT3}"]
    todo = [st for st, gi in pend]
    fl = 220
    if free: FS = free.pop(0); first = []
    else: first = [todo.pop(0)]; FS = LSOF[first[0]]
    for k in range(16):
        qt, kc = k >> 2, k & 3
        b0 = 108 + 12 * (k % 2)
        if k == 0:
            for st in first: emit_tr(st); ntr += 1
        if k == 3:
            E("s_waitcnt lgkmcnt(0)"); E("s_barrier")
            for wv in range(4): E(f"ds_read_b32 v{fl+wv}, v{vF} offset:{8192*wv}")
        if k == 4:
            E("s_waitcnt lgkmcnt(0)")
            E(f"v_or_b32 v{fl}, v{fl}, v{fl+1}"); E(f"v_or3_b32 v{fl}, v{fl}, v{fl+2}, v{fl+3}")
            E(f"v_readfirstlane_b32 s{sT2}, v{fl}")
            E(f"s_andn2_b32 s{sT2}, s{sT2}, s{sRedo}"); E(f"s_cmp_lg_u32 s{sT2}, 0"); E("s_cbranch_scc1 L_fallback")
        if k >= 5 and todo and todo[0] < 16:
            st = todo.pop(0); emit_tr(st); free.append(LSOF[st]); ntr += 1
        for i in range(8): E(f"v_accvgpr_read_b32 v{b0+i}, a{aO+32*qt+8*kc+i}")
        for i in range(4): E(pk(b0 + 2 * i, vR + qt))
        for i in range(4): E(f"v_cvt_pk_bf16_f32 v{b0+8+i}, v{b0+2*i}, v{b0+2*i+1}")
        E(f"buffer_store_dwordx4 {vr(b0+8,4)}, v{vLn}, s[{sO}:{sO+3}], s{sT0} offen offset:{1024*kc}{cfg.st_sc}", "st")
        if kc == 3 and qt < 3: E(f"s_add_u32 s{sT0}, s{sT0}, 131072")
        if k == 1:
            for l in chk: E(l.replace("{FL}", str(LS[FS])))
            E("s_waitcnt lgkmcnt(0)"); E(f"ds_write_b32 v{T+1}, v{T+2}")
    stamp(ep, 5)
    E("s_waitcnt lgkmcnt(0)")
    for _ in range(cfg.npost):
        LSOF[nxt] = free.pop(0); emit_dma(nxt); todo.append(nxt); nxt += 1
    E(f"s_mov_b32 s{sD}, s{sPTR+12}"); E(f"s_mov_b32 s{sD+1}, s{sPTR+13}"); E(f"s_mov_b32 s{sD+2}, 256"); E(f"s_mov_b32 s{sD+3}, 0x20000")
    E(f"s_lshl_b32 s{sT0}, s{sMt}, 17"); E(f"s_add_u32 s{sX}, s{sPTR+14}, s{sT0}"); E(f"s_addc_u32 s{sX+1}, s{sPTR+15}, 0")
    E(f"s_lshl_b32 s{sT0}, s{sOdd}, 17"); E(f"s_sub_u32 s{sX+2}, {5*131072}, s{sT0}"); E(f"s_mov_b32 s{sX+3}, 0x20000")
    E(f"s_lshl_b32 s{sT0}, s{sMt}, 14"); E(f"s_add_u32 s{sWQ}, s{sPTR+10}, s{sT0}"); E(f"s_addc_u32 s{sWQ+1}, s{sPTR+11}, 0")
    E(f"s_lshl_b32 s{sT0}, s{sOdd}, 14"); E(f"s_sub_u32 s{sWQ+2}, {5*16384}, s{sT0}"); E(f"s_mov_b32 s{sWQ+3}, 0x20000")
    E(f"v_mov_b32 v{vZ}, 0"); E(f"v_mov_b32 v{T}, 1"); E(f"v_mov_b32 v{vOo}, v{vLn}")
    for i in range(1, 5): E(f"v_add_u32 v{vOo+i}, {131072*i}, v{vLn}")
    vPo = T + 1; vPd = T + 2
    if cfg.flags:
        E(f"v_mov_b32 v{T+1}, s{sFo}"); E(f"s_and_b32 s{sT1}, s2, 7"); E(f"s_lshl_b32 s{sT1}, s{sT1}, {cfg.fstr}"); E(f"s_add_u32 s{sT1}, s{sT1}, {FLAG_OFF}")
        E(f"v_and_b32 v{vF}, 31, v0"); E(f"v_lshlrev_b32 v{vF}, 2, v{vF}"); E(f"v_add_u32 v{vF}, s{sT1}, v{vF}")
    sSo, sPo = sXo, sXm
    assert not cfg.opf
    E(f"s_lshr_b32 s{sPo}, s{sR4}, 5")
    E(f"s_lshl_b32 s{sT0}, s{sB}, 5"); E(f"s_and_b32 s{sT1}, s2, 7"); E(f"s_lshl_b32 s{sT1}, s{sT1}, 5")
    E(vwait("st")); E("s_barrier")
    E(f"s_cmp_lg_u32 s{sW}, 0"); E("s_cbranch_scc1 L_nosig")
    E("s_mov_b64 exec, 1")
    if cfg.flags: ep.append(f"global_store_dword v{T+1}, v{T}, s[{sPTR+14}:{sPTR+15}] sc1")
    else: ep.append(f"buffer_atomic_add v{T}, v{vZ}, s[{sD}:{sD+3}], s{sT0} offen")
    if cfg.epoll: ep.append(f"buffer_load_dword v{T+3}, v{vZ}, s[{sD}:{sD+3}], s{sT1} offen sc1")
    E("s_mov_b64 exec, -1")
    E("L_nosig:")
    hist.append("sig")
    stamp(ep, 6)
    if cfg.cpf3:
        E(f"s_getpc_b64 s[{sCP}:{sCP+1}]"); E(f"v_min_u32 v{T+2}, 1, v0"); E(f"v_lshlrev_b32 v{T+2}, 13, v{T+2}")
        E(f"s_lshr_b32 s{sT2}, s2, 3"); E(f"s_lshl_b32 s{sT2}, s{sT2}, 2"); E(f"s_add_u32 s{sT2}, s{sT2}, s{sW}"); E(f"s_lshl_b32 s{sT2}, s{sT2}, 6")
        E(f"v_add_u32 v{T+2}, s{sT2}, v{T+2}"); E(f"v_min_u32 v{T+2}, L_end-L_nosig, v{T+2}")
        E(f"global_load_dword v{T+2}, v{T+2}, s[{sCP}:{sCP+1}]")
    free.append(FS)
    prev = None
    while True:
        while free and nxt <= cfg.pre_to:
            LSOF[nxt] = free.pop(0); emit_dma(nxt); todo.append(nxt); nxt += 1
        if nxt <= cfg.pre_to and todo[0] <= 16 or (cfg.pre_to == 26 and todo[0] <= 16):
            st = todo.pop(0); emit_tr(st)
            if prev is not None: E("s_waitcnt lgkmcnt(8)"); free.append(LSOF[prev])
            prev = st
        elif prev is not None:
            E("s_waitcnt lgkmcnt(0)"); free.append(LSOF[prev]); prev = None
        else: break
    plan_dma = {}; plan_tr = {}; issued = {st: -9 for st in todo}; fresh = []
    for i in range(32):
        if free and nxt <= 31:
            LSOF[nxt] = free.pop(0); plan_dma[i] = nxt; issued[nxt] = i; todo.append(nxt); nxt += 1
        free += fresh; fresh = []
        if todo and todo[0] - 16 <= i and issued[todo[0]] + cfg.wlag <= i:
            st = todo.pop(0); assert st > i + 1; plan_tr[i] = st; free.append(LSOF[st])
    assert nxt == 32 and not todo and max(plan_tr) < 23, (nxt, todo, plan_tr)
    sys.stderr.write(f"in-loop wo: dma {plan_dma} tr {plan_tr}\n")
    stamp(ep, 7)
    E(f"s_cmp_lg_u32 s{sW}, 0"); E("s_cbranch_scc1 L_ready")
    E(f"s_mov_b32 s{sCnt}, 0x40000")
    if cfg.flags:
        E("L_cnt:")
        E(f"v_readfirstlane_b32 s{sT0}, v{vPfo}"); E(f"s_sub_u32 s{sCnt}, s{sCnt}, 1"); E(f"s_cmp_eq_u32 s{sCnt}, 0"); E("s_cbranch_scc1 L_ready")
        E(f"s_cmp_ge_u32 s{sT0}, 256"); E("s_cbranch_scc1 L_poll")
        E(f"s_sleep {cfg.sleep}"); ep.append(f"global_load_dword v{vPfo}, v{vZ}, s[{sPTR+12}:{sPTR+13}] sc1"); E("s_waitcnt vmcnt(0)"); E("s_branch L_cnt")
        E("L_poll:")
        ep.append(f"global_load_dword v{T+3}, v{vF}, s[{sPTR+14}:{sPTR+15}] sc1")
        E("s_waitcnt vmcnt(0)"); E(f"v_cmp_ne_u32 vcc, 1, v{T+3}")
        E(f"s_sub_u32 s{sCnt}, s{sCnt}, 1"); E(f"s_cmp_eq_u32 s{sCnt}, 0"); E("s_cbranch_scc1 L_ready")
        E("s_cmp_eq_u64 vcc, 0"); E("s_cbranch_scc1 L_ready")
        E(f"s_sleep {cfg.sleep}"); E("s_branch L_poll")
    else:
        E("s_mov_b64 exec, 1")
        E("L_poll:")
        ep.append(f"buffer_load_dword v{T+3}, v{vZ}, s[{sD}:{sD+3}], s{sT1} offen sc1")
        E("s_waitcnt vmcnt(0)"); E(f"v_readfirstlane_b32 s{sT0}, v{T+3}")
        E(f"s_sub_u32 s{sCnt}, s{sCnt}, 1"); E(f"s_cmp_eq_u32 s{sCnt}, 0"); E("s_cbranch_scc1 L_got")
        E(f"s_cmp_ge_u32 s{sT0}, 32"); E("s_cbranch_scc1 L_got")
        E(f"s_sleep {cfg.sleep}"); E("s_branch L_poll")
        E("L_got:"); E("s_mov_b64 exec, -1")
    E("L_ready:")
    E("s_barrier")
    stamp(ep, 8); stamp(ep, 5, True)
    def o_loads(st):
        r = []
        for i in range(5):
            pre = [f"s_xor_b32 s{sSo}, s{sPo}, {1024*st}"] if i == 0 else []
            r.append((pre, f"buffer_load_dwordx4 {ar(aRing+20*(st % NB)+4*i,4)}, v{vOo+i}, s[{sX}:{sX+3}], s{sSo} offen{cfg.ld_sc} ; o step {st}"))
        return r
    def o_pf(g): return [(([f"s_add_u32 s{sPo}, s{sPo}, 8192"] if g else []), f"buffer_load_dword v{vPd}, v{vPo}, s[{sX}:{sX+3}], s{sPo} offen{cfg.ld_sc} ; prefetch {g}")]
    LA = cfg.ola
    for st in range(LA):
        for i, x in enumerate(o_loads(st)):
            for l in flat([x]): E(l, ("o", st, i))
        if cfg.opf and st in (1, 3):
            for l in flat(o_pf(st >> 1)): E(l, "pf")
    SO = Sched(640); tags = {}
    TM = 28 if cfg.fastred else 32
    order = [(st, i >> 2, i & 3) for st in range(TM) for i in range(20)] + [(st, tl_, nt) for tl_ in range(5) for st in range(TM, 32) for nt in range(4)]
    for g, (st, tl_, nt) in enumerate(order):
        a_ = vr(ac2(4 * tl_ + nt), 4)
        SO.mf[g] = Item(f"{MF} {a_}, {rreg(st, nt)}, {ar(aRing+20*(st % NB)+4*tl_,4)}, {'0' if st == 0 else a_} ; o step {st} tile {tl_}", "mf")
    for i, st in plan_tr.items():
        for k_, r in enumerate(tr_reads(st)):
            SO.put(20 * i + 12 + (k_ >> 1), Item(r, "ds"))
            if k_ == 0: tags[r] = ("need", ("w", st))
    for st in range(min(TM, 32)):
        g0 = 20 * st; lst = []
        if st + LA < TM: lst += [(p, d, ("o", st + LA, i)) for i, (p, d) in enumerate(o_loads(st + LA))]
        if st in plan_dma:
            w_ = wo_dma(plan_dma[st]); w_[0] = (["s_waitcnt lgkmcnt(0)"] + w_[0][0], w_[0][1])
            lst = lst + [(p, d, ("w", plan_dma[st])) for p, d in w_]
        g = g0 + (1 if st == 0 else 0)
        for p, d, tg in lst:
            tags[d] = ("prov", tg)
            g = place_dmas(SO, [(p, d)], g, cfg.ostep, limit=g0 + 21)
    tA, tB, va, vx = T + 3, T + 4, T + 5, 220
    if cfg.fastred:
        sS4 = [sKo, sKo + 1, sVo, sVo + 1]
        for j in range(4): SO.put(20 * 20 + j, Item(f"s_xor_b32 s{sS4[j]}, s{sPo}, {1024*(TM+j)}", "s"))
        g = 20 * (TM - LA)
        for tl_ in range(5):
            for j in range(4):
                st = TM + j
                d = f"buffer_load_dwordx4 {ar(aRing+20*(st % NB)+4*tl_,4)}, v{vOo+tl_}, s[{sX}:{sX+3}], s{sS4[j]} offen{cfg.ld_sc} ; o step {st} tile {tl_}"
                lo = max(g, 20 * (st - NB) + 4 * tl_ + 4)
                tags[d] = ("prov", ("o", st, tl_))
                g = place_dmas(SO, [([], d)], lo, 4 if (4 * tl_ + j) % 5 == 4 else 4, limit=20 * TM + 16 * tl_ + 4 * j - 12)
        SO.put(20 * 24, Item("s_waitcnt lgkmcnt(0)", "s"))
        if not cfg.nobar: SO.put(20 * 24, Item("s_barrier", "s"))
        if cfg.nobar:
            ad = [f"v_add_u32 v{tA}, s{sW8}, v{vLn}", f"v_add_u32 v{tB}, 65536, v{tA}",
                  f"v_xor_b32 v{vx}, 8192, v{tA}", f"v_xor_b32 v{vx+1}, 16384, v{tA}", f"v_xor_b32 v{vx+2}, 24576, v{tB}"]
        else:
            ad = [f"s_xor_b32 s{sT0}, s{sW}, 1", f"s_mul_i32 s{sT0}, s{sT0}, 15360", f"v_add_u32 v{vx}, s{sT0}, v{vLn}",
              f"s_xor_b32 s{sT0}, s{sW}, 2", f"s_mul_i32 s{sT0}, s{sT0}, 15360", f"v_add_u32 v{vx+1}, s{sT0}, v{vLn}",
              f"s_xor_b32 s{sT0}, s{sW}, 3", f"s_mul_i32 s{sT0}, s{sT0}, 15360", f"v_add_u32 v{vx+2}, s{sT0}, v{vLn}",
              f"s_mul_i32 s{sT0}, s{sW}, 15360", f"v_add_u32 v{tA}, s{sT0}, v{vLn}"]
        ad += [
              f"v_and_b32 v{va}, 15, v0", f"v_lshlrev_b32 v{va}, 10, v{va}", f"v_lshrrev_b32 v{va+1}, 4, v0", f"v_lshl_add_u32 v{va}, v{va+1}, 3, v{va}",
              f"s_lshl_b32 s{sT0}, s{sCg}, 7", f"s_lshl_b32 s{sT1}, s{sW}, 5", f"s_add_u32 s{sT0}, s{sT0}, s{sT1}"]
        g = 20 * 22 + 6
        for l in ad:
            if l.startswith("v_"): SO.put(g, Item(l, "v")); g += 1
            else: SO.put(g, Item(l, "s"))
        late = []
        for tl_ in range(5):
            for j in range(1, 4):
                wr = f"ds_write_b128 v{vx+j-1}, {vr(ac2(4*tl_+j),4)} offset:{5120*(j-1)+1024*tl_}"
                if cfg.nobar: wr = f"ds_write_b128 v{tB if j == 3 else tA}, {vr(ac2(4*tl_+j),4)} offset:{(32768 if j == 2 else 0)+1024*tl_}"
                gg = 20 * TM + 16 * tl_ + 12 + j + 9
                if gg < 640: SO.put(gg, Item(wr, "ds"))
                else: late.append(wr)
    seq = lgkm_waits(SO.linear(0, 640))
    def owait(st, tl_): return vwait(("o", st, tl_))
    E(owait(0, 4)); stamp(ep, 6, True)
    for idx, (g, k, l) in enumerate(seq):
        tg = tags.get(l)
        if tg and tg[0] == "need": E(vwait(tg[1]))
        E(l, tg[1] if tg and tg[0] == "prov" else None)
        if k == "mf" and g < 639:
            st, tl_, nt = order[g + 1]
            if st < TM and (g + 1) % 20 == 0: E(owait(st, 4))
            if st >= TM and nt == 0: E(owait(st, tl_))
        if k == "mf" and g == 319: stamp(ep, 7, True)
        if k == "mf" and g == 639: stamp(ep, 8, True)
    if cfg.fastred:
        for l in late: E(l)
        E("s_waitcnt lgkmcnt(0)"); E("s_barrier")
        rb = 156
        for i in range(5):
            for j in range(3):
                if cfg.nobar: E(f"ds_read_b128 {vr(rb+12*i+4*j,4)}, v{vx+j} offset:{(32768 if j == 1 else 0)+1024*i}")
                else: E(f"ds_read_b128 {vr(rb+12*i+4*j,4)}, v{tA} offset:{5120*j+1024*i}")
        for i in range(5):
            E(f"s_waitcnt lgkmcnt({3*(4-i)})")
            b0 = rb + 12 * i; a0 = ac2(4 * i)
            for r in range(0, 4, 2): E(f"v_pk_add_f32 {vr(a0+r,2)}, {vr(a0+r,2)}, {vr(b0+r,2)}"); E(f"v_pk_add_f32 {vr(b0+4+r,2)}, {vr(b0+4+r,2)}, {vr(b0+8+r,2)}")
            for r in range(0, 4, 2): E(f"v_pk_add_f32 {vr(a0+r,2)}, {vr(a0+r,2)}, {vr(b0+4+r,2)}")
            E(f"v_cvt_pk_bf16_f32 v{b0}, v{a0}, v{a0+1}"); E(f"v_cvt_pk_bf16_f32 v{b0+1}, v{a0+2}, v{a0+3}")
            E(f"buffer_store_dwordx2 {vr(b0,2)}, v{va}, s[{sWQ}:{sWQ+3}], s{sT0} offen{cfg.out_sc}")
            E(f"s_add_u32 s{sT0}, s{sT0}, 16384")
    else:
        E(f"s_mul_i32 s{sT0}, s{sW}, 20480"); E(f"v_add_u32 v{tB}, s{sT0}, v{vLn}")
        E(f"s_lshl_b32 s{sT0}, s{sW}, 10"); E(f"v_add_u32 v{tA}, s{sT0}, v{vLn}")
        E(f"v_and_b32 v{va}, 15, v0"); E(f"v_lshlrev_b32 v{va}, 10, v{va}"); E(f"v_lshrrev_b32 v{va+1}, 4, v0")
        E(f"v_lshl_add_u32 v{va}, v{va+1}, 3, v{va}")
        E(f"s_lshl_b32 s{sT0}, s{sCg}, 7"); E(f"s_lshl_b32 s{sT1}, s{sW}, 5"); E(f"s_add_u32 s{sT0}, s{sT0}, s{sT1}")
        E("s_barrier")
        for i in range(20): E(f"ds_write_b128 v{tB}, {vr(ac2(i),4)} offset:{1024*i}")
        E(f"v_add_u32 v{tB}, 40960, v{tA}")
        E("s_waitcnt lgkmcnt(0)"); E("s_barrier")
        for i in range(5):
            for wv in range(4):
                E(f"ds_read_b128 {vr(ac2(4*i+wv),4)}, v{tA if wv < 2 else tB} offset:{20480*(wv&1)+4096*i}")
        for i in range(5):
            E(f"s_waitcnt lgkmcnt({min(15, 4*(4-i))})")
            b0 = ac2(4 * i)
            for r in range(4): E(f"v_add_f32 v{b0+r}, v{b0+r}, v{b0+4+r}"); E(f"v_add_f32 v{b0+8+r}, v{b0+8+r}, v{b0+12+r}")
            for r in range(4): E(f"v_add_f32 v{b0+r}, v{b0+r}, v{b0+8+r}")
            E(f"v_cvt_pk_bf16_f32 v{b0+4}, v{b0}, v{b0+1}"); E(f"v_cvt_pk_bf16_f32 v{b0+5}, v{b0+2}, v{b0+3}")
            E(f"buffer_store_dwordx2 {vr(b0+4,2)}, v{va}, s[{sWQ}:{sWQ+3}], s{sT0} offen")
            E(f"s_add_u32 s{sT0}, s{sT0}, 16384")
    if cfg.stamp:
        vt = 108
        E("s_waitcnt vmcnt(0)")
        E(f"s_memtime s[{sST+10}:{sST+11}]"); E(f"s_memrealtime s[{sST+12}:{sST+13}]"); E("s_waitcnt lgkmcnt(0)")
        E(f"s_add_u32 s{sD}, s{sPTR+14}, 0x4000000"); E(f"s_addc_u32 s{sD+1}, s{sPTR+15}, 0")
        E(f"s_mov_b32 s{sD+2}, 0x100000"); E(f"s_mov_b32 s{sD+3}, 0x20000")
        E(f"s_lshl_b32 s{sT0}, s2, 2"); E(f"s_add_u32 s{sT0}, s{sT0}, s{sW}"); E(f"s_lshl_b32 s{sT0}, s{sT0}, 7")
        for i in range(16): E(f"v_mov_b32 v{vt+i}, s{sST+i}")
        for i in range(8): E(f"v_mov_b32 v{vt+16+i}, s{sST2+i}")
        for i in range(6): E(f"buffer_store_dwordx4 {vr(vt+4*i,4)}, v{vZ}, s[{sD}:{sD+3}], s{sT0} offen offset:{16*i}")
    E("L_end:"); E("s_endpgm")
    E("L_fallback:")
    E(f"s_mov_b32 s{sRedo}, 1"); E("s_waitcnt vmcnt(0) lgkmcnt(0)"); E("s_barrier")
    E(f"s_load_dwordx16 s[{sPTR}:{sPTR+15}], s[0:1], 0")
    E("s_branch L_restart")
    E("L_truemax:")
    for l in a2_all: E(l)
    mx = [vT + 12 + qt for qt in range(6)]
    for qt in range(6): E(f"v_mov_b32 v{mx[qt]}, 0xff800000")
    E(f"s_mov_b32 s{sCnt}, 8"); E(f"s_add_u32 s{sKm}, s{sW8}, {KR[0]}")
    E("s_waitcnt vmcnt(0) lgkmcnt(0)")
    E("L_fb_loop:")
    E("s_barrier")
    for l in flat(k_dma()) + adv(sKo, sKs): E(l)
    E("s_waitcnt vmcnt(0)"); E("s_barrier")
    for j in range(4):
        for idx in range(8): E(k_read(j, idx >> 2, idx & 3))
        E("s_waitcnt lgkmcnt(0)")
        for k16 in range(2):
            for qt in range(6):
                nb = vNM + 4 * qt
                for c in range(4):
                    E(f"{MF} {vr(nb,4)}, {ar(aK+16*k16+4*c,4)}, {vr(vQ+16*qt+4*c,4)}, {'0' if c == 0 else vr(nb,4)}")
            E("s_nop 7")
            for qt in range(6):
                nb = vNM + 4 * qt
                E(f"v_max3_f32 v{mx[qt]}, v{mx[qt]}, v{nb}, v{nb+1}"); E(f"v_max3_f32 v{mx[qt]}, v{mx[qt]}, v{nb+2}, v{nb+3}")
            E("s_nop 3")
    E(f"s_sub_u32 s{sCnt}, s{sCnt}, 1"); E(f"s_cmp_lg_u32 s{sCnt}, 0"); E("s_cbranch_scc1 L_fb_loop")
    E("s_barrier")
    E(f"s_mov_b32 s{sKo}, s{sK0}"); E(f"s_add_u32 s{sKo+1}, s{sK0}, 4096")
    for l in flat(k_dma()) + adv(sKo, sKs): E(l)
    negm(E, mx)
    E("s_waitcnt vmcnt(0)"); E("s_barrier")
    E("s_branch L_att")
    pre = [l for g, k, l in body2 if g >= N - 12 and not l.startswith("SWITCH")]
    n0_ = len(ep)
    el, _ = check_hazards(pre + ["Y:"] + ep, "ep", fix=True)
    sys.stderr.write(f"nops added after the loop: {len(el) - len(pre) - 1 - n0_}\n")
    o += el[el.index("Y:") + 1:]
    return o

def main():
    k1 = [l for l in gen() if l]
    n0 = len(k1); k1, _ = check_hazards(k1, "k1", fix=True)
    sys.stderr.write(f"{len(k1)} lines, {len(k1)-n0} nops added by final pass\n")
    hdr = open("standalone__gqa_block_cached__near_ridge.s.ref").read().split("\n")[:9]
    out = hdr + [f"; @launch grid=(256,1,1) block=(256,1,1) lds={LDS_TOTAL}",
                 '.amdgcn_target "amdgcn-amd-amdhsa--gfx950"', ".text"]
    fmt = lambda l: l if l.endswith(":") else "    " + l
    out += [f".globl {cfg.name}", ".p2align 8", f".type {cfg.name},@function"] + [fmt(l) for l in k1]
    out += ["L_code_end:"]
    if cfg.cpf: out += [f".if (L_code_end - L_pc0) < {8192*cfg.cpf_n}", '.error "code prefetch range"', ".endif"]
    if cfg.cpf2 == 2: out += [".if (L_code_end - L_pc1) < 24576", '.error "code prefetch range"', ".endif"]
    out += ['.section .rodata,"a"', ".p2align 6", f""".amdhsa_kernel {cfg.name}
  .amdhsa_next_free_vgpr 512
  .amdhsa_next_free_sgpr 102
  .amdhsa_accum_offset 256
  .amdhsa_group_segment_fixed_size 0
  .amdhsa_kernarg_size 64
  .amdhsa_user_sgpr_count 2
  .amdhsa_user_sgpr_kernarg_segment_ptr 1
  .amdhsa_system_sgpr_workgroup_id_x 1
.end_amdhsa_kernel
"""]
    open(sys.argv[1], "w").write("\n".join(out))
main()
```

```python
import sys, math, struct
from asmlib import *

class Cfg:
    name = "standalone__gqa_block_cached__near_ridge_kernel"
    stamp = False
    map_bh = "h"
    kv_nt = True; q_nt = False
    dump_q = False
    e0 = 9
    dma_step = 20.0; qstep = 5
    wowarm = 0; k0pf = 0; dm = ''; trlag = 8; npost = 3; ola = 2; ostep = 1; epi = 'mix'; qstamp = False; cpf = 1; cpf_n = 5; cpf2 = 2; qrot = 1; orot = 0; ostamp = False; krot = 0; xw0 = 0; land = 45; xcap = 12; dstep = 17; pf_end = 0; pkq = 1; epoll = 0; wwpos = 0; poll1 = 1; pflate = 1; pfk = 0; pfsh = 13; xrot = 1; qx = 0; pfcut = 0; wo_nt = False; fastred = 1; k1pos = 1; nost = 0; olay = 0; pf_nt = False; pf0 = 4; pfpos = '170,172'; ppos = 100; NW = 16; LAT = 10; trpre = 0; og = 1; bflag = 1; ptouch = 0; cntat = 60; nopoison = 0; x1d = 6; rsleep = 1; d0 = 370; cpos = 38; cpf3 = 1; out_sc = ''; nobar = 1; v7step = 5; qstart = 0; tlb = 0; qkord = 0; flags = 1; fstr = 8; cntpos = 470; pre_to = 26; wlag = 2; kvstep = 5; vlate = 1; qb0 = 27; hyb = 1; s0 = 1; q2step = 3; sstamp = False; pstamp = False; dgrp = 1
    wopf = 1
    opf = 0
    qpf = 0
    sleep = 4
    lstamp = False
    st_sc = " sc1"; ld_sc = " sc1"
cfg = Cfg()
for a in sys.argv[2:]:
    k, v = a.split("=")
    old = getattr(cfg, k)
    if k in ("st_sc", "ld_sc", "out_sc"): v = "".join(" " + x for x in v.split("+") if x)
    setattr(cfg, k, (v == "1") if isinstance(old, bool) else type(old)(v))

def NT(f): return " nt" if f else ""
def f2u(x): return struct.unpack("<I", struct.pack("<f", x))[0]
QSCALE = f2u(math.log2(math.e) / math.sqrt(128.0))
LTHRESH = f2u(2.0 ** (64 if cfg.s0 else 40))
MF = "v_mfma_f32_16x16x32_bf16"
CAP = 8

class Item:
    def __init__(self, text, kind, it=0):
        self.text = text; self.kind = kind; self.it = it
        self.cost = {"s": 0, "ds": 4, "v": 4, "t": 8, "dma": 8, "mf": 0}[kind]

class Sched:
    def __init__(self, n, periodic=False):
        self.n = n; self.periodic = periodic
        self.mf = [None] * n; self.gap = [[] for _ in range(n)]; self.cost = [0] * n
    def norm(self, g):
        if self.periodic: return g % self.n
        assert 0 <= g < self.n, g
        return g
    def put(self, g, item):
        g = self.norm(g); self.gap[g].append(item); self.cost[g] += item.cost
    def put_win(self, lo, hi, item, pack=False, cap=CAP):
        if not self.periodic: hi = min(hi, self.n - 1)
        cand = [g for g in range(lo, hi + 1) if self.cost[self.norm(g)] + item.cost <= cap]
        if cand:
            if pack:
                part = [g for g in cand if self.cost[self.norm(g)] > 0]
                best = part[0] if part and part[0] <= cand[0] + 3 else cand[0]
            else: best = cand[0]
        else:
            best = min(range(lo, hi + 1), key=lambda g: self.cost[self.norm(g)])
        self.put(best, item); return best
    def linear(self, lo, hi, keep=lambda it: True):
        out = []
        order = {"s": 0, "dma": 1, "ds": 1, "v": 2, "t": 2}
        for g in range(lo, hi):
            if self.mf[g] is not None and keep(self.mf[g].it): out.append((g, "mf", self.mf[g].text))
            for item in sorted(self.gap[g], key=lambda x: order[x.kind]):
                if keep(item.it): out.append((g, item.kind, item.text))
        return out

def lgkm_waits(seq, slack=6):
    out = []; q = []
    mfi = [i for i, x in enumerate(seq) if x[1] == "mf"]
    nxt = dict(zip(mfi, mfi[1:]))
    def need(use, g):
        nonlocal q
        idx = -1
        for k, (gg, regs) in enumerate(q):
            if regs & use: idx = k
        if idx >= 0:
            while idx + 1 < len(q) and q[idx + 1][0] <= g - slack: idx += 1
            n = min(len(q) - 1 - idx, 15)
            out.append((g, "s", f"s_waitcnt lgkmcnt({n})"))
            q = q[len(q) - n:] if n else []
    for i, (g, k, t) in enumerate(seq):
        ins = Ins(t)
        if ins.op == "s_waitcnt" and "lgkmcnt(0)" in t: q = []
        if ins.kind != "label": need(ins.r | ins.w, g)
        if ins.kind == "ds": q.append((g, set(ins.w)))
        out.append((g, k, t))
        if k == "mf" and i in nxt:
            n = Ins(seq[nxt[i]][2]); need(n.r | n.w, g)
    return out

sK, sV, sX, sWQ, sO, sD = 8, 12, 16, 20, 24, 28
sPTR = 32
sW, sB, sH, sT0, sT1 = 3, 4, 5, 6, 7
sKo, sVo = 48, 50
sKs, sVs = 52, 53
sVm = 54
sCnt, sRedo = 58, 59
sXo, sXm, sWo_, sWm = 60, 61, 62, 63
sT2, sQs, sT3 = 64, 65, 66
sKb, sKm, sKd, sKw = 67, 68, 69, 86
sRg, sCg, sMt, sOdd = 87, 88, 89, 90
sW8 = 91
sPfo = 101
sFo = 62
sCP = 48
sPfx, sPfr = 39, 60
sKt2 = 39
sKmask, sVmask, sK0 = 32, 33, 38
sRot, sXc = 100, 101
sR4 = 63
sKt = 100
sST = 70
sST2 = 92
vKv = 1; vVv = 5; vPfd = 9
vQ = 12; vNM = 108; vL = 132; vS = 156; vP = 188; vKa = 204; vVa = 212; vOne = 228; vT = 232
vAcc = 108
aO = 0; aK = 192; aV = 224
KR = (131072, 98304, 65536); LDS_V = (0, 32768); LDS_EX = 65536
QSLOT = (0, 53248, 106496); LDS_TOTAL = 163840
UNIT_TILE = [0, 1, 2, 0, 1, 0, 1, 0, 1]
UNIT_KT =   [0, 0, 0, 1, 1, 2, 2, 3, 3]
FLAG_OFF = 0x1300000
PER = 33 if cfg.hyb else 34
NPV = PER - 16
Q1 = NPV - 9

def stamp(o, idx, alt=False):
    if cfg.pstamp and idx >= 5: return
    if cfg.sstamp and idx >= 5:
        if alt == 2: r = sST2 + 2 * (idx - 5); o.append(f"s_memtime s[{r}:{r+1}]")
        return
    if alt == 2: return
    if idx >= 5 and alt != cfg.ostamp: return
    if cfg.stamp:
        r = sST + 2 * idx if idx < 5 else sST2 + 2 * (idx - 5)
        o.append(f"s_memtime s[{r}:{r+1}]")

def k_dma():
    r = []
    for grp in range(2):
        for q in range(4):
            pre = []
            if q == 0: pre = [f"s_mov_b32 m0, s{sKm}"] if grp == 0 else [f"s_add_u32 m0, s{sKm}, 4096"]
            off = f" offset:{1024*q}" if q else ""
            r.append((pre, f"buffer_load_dwordx4 v{vKv+q}, s[{sK}:{sK+3}], s{sKo+grp} offen{off}{NT(cfg.kv_nt)} lds"))
    return r
def v_dma(slot):
    r = []
    for grp in range(2):
        for q in range(4):
            off = f" offset:{1024*q}" if q else ""
            r.append(([f"s_mov_b32 m0, s{sVm+2*slot+grp}"] if q == 0 else [],
                      f"buffer_load_dwordx4 v{vVv+q}, s[{sV}:{sV+3}], s{sVo+grp} offen{off}{NT(cfg.kv_nt)} lds"))
    return r
def adv(base, stride):
    m = sKmask if base == sKo else sVmask
    return [f"s_add_u32 s{base}, s{base}, s{stride}", f"s_add_u32 s{base+1}, s{base+1}, s{stride}",
            f"s_and_b32 s{base}, s{base}, s{m}", f"s_and_b32 s{base+1}, s{base+1}, s{m}"]
def flat(lst):
    out = []
    for pre, d in lst: out += pre + [d]
    return out

def place_dmas(S, lst, g, step, itf=lambda g: 0, limit=None):
    for pre, d in lst:
        gg = g
        while S.cost[S.norm(gg)] > 0: gg += 1
        if limit is not None: assert gg < limit, (gg, limit)
        for p in pre: S.put(gg - 1, Item(p, "s", itf(gg - 1)))
        S.put(gg, Item(d, "dma", itf(gg)))
        g = gg + step
    return g

def k_read(j, k16, c, base=None):
    va = (vKa + 2 * j if base is None else base) + (c & 1)
    return f"ds_read_b128 {ar(aK+16*k16+4*c,4)}, v{va} offset:{k16*4096 + (c>>1)*1024}"
def v_read(j, t, jj, slot):
    imm = LDS_V[slot] + jj * 4096 + (t >> 2) * 1024
    return f"ds_read_b64_tr_b16 {ar(aV+4*t+2*jj,2)}, v{vVa+4*j+(t&3)} offset:{imm}"

BG = PER * 7 + 16
LAST_TILE = [2, 0, 1, 0, 1, 0, 1, 0, 1]
def gen_attn_sched(peel=False):
    NU = 18; N = NU * PER; CUT = 17 * PER
    S = Sched(N, periodic=True)
    tile = lambda n: (LAST_TILE[n - 9] if (peel and 9 <= n < 18) else UNIT_TILE[n % 9])
    kt = lambda n: UNIT_KT[n % 9]
    slot = lambda n: (n // 9) & 1
    last = lambda n: UNIT_KT[n % 9] != UNIT_KT[(n + 1) % 9] or n % 9 == 8
    for n in range(NU):
        u = n + 1; it = 1 if u == NU else 0
        for i in range(16):
            q, k16, c = i >> 3, (i >> 2) & 1, i & 3
            if cfg.qkord: q, k16, c = i & 1, i >> 3, (i >> 1) & 3
            qt = 2 * tile(u) + q; sb = vS + 16 * (u & 1) + 8 * q + 4 * k16
            cin = vr(vNM + 4 * qt, 4) if c == 0 else vr(sb, 4)
            S.mf[PER*n + i] = Item(f"{MF} {vr(sb,4)}, {ar(aK+16*k16+4*c,4)}, {vr(vQ+16*qt+4*c,4)}, {cin}", "mf", it)
        for i in range(NPV):
            q, t = (0, i) if i < Q1 else (1, i - Q1)
            qt = 2 * tile(n) + q; pb = vr(vP + 8 * (n & 1) + 4 * q, 4)
            if t < 8:
                o = ar(aO + 32 * qt + 4 * t, 4)
                S.mf[PER*n + 16 + i] = Item(f"{MF} {o}, {ar(aV+4*t,4)}, {pb}, {o}", "mf")
            else:
                l = vr(vL + 4 * qt, 4)
                S.mf[PER*n + 16 + i] = Item(f"{MF} {l}, {vr(vOne,4)}, {pb}, {l}", "mf")
    for n in range(1, NU + 1):
        sb = vS + 16 * (n & 1); pb = vP + 8 * (n & 1)
        itf = lambda g: 1 if (n == NU and g < N) else 0
        for j in range(16):
            g = PER * (n - 1) + cfg.e0 + 2 * j
            S.put(g, Item(f"v_exp_f32 v{sb+j}, v{sb+j}", "t", itf(g)))
            if j & 1: S.put(g + 1, Item(f"v_cvt_pk_bf16_f32 v{pb+(j>>1)}, v{sb+j-1}, v{sb+j}", "v", itf(g + 1)))
    def place_adds():
        if not cfg.hyb: return
        for n in range(1, NU + 1):
            sb = vS + 16 * (n & 1); l = vL + 8 * tile(n)
            for j in range(8):
                g = PER * (n - 1) + cfg.e0 + 2 * j + 1
                item = Item(f"v_add_f32 v{l+(j&1)}, v{l+(j&1)}, v{sb+j}", "v")
                gg = S.put_win(g, PER * (n + 1) - 4, item, pack=True)
                if n == NU and gg < N: item.it = 1
    bar = [BG, 9 * PER + BG]
    for bi, b in enumerate(bar):
        if cfg.lstamp: S.put(b, Item("s_memtime s[96:97]", "s"))
        S.put(b, Item("s_waitcnt vmcnt(8) lgkmcnt(0)", "s")); S.put(b, Item("s_barrier", "s"))
        if cfg.lstamp:
            S.put(b, Item(f"v_mov_b32 v240, s96", "s")); S.put(b, Item("s_memtime s[96:97]", "s")); S.put(b, Item("s_waitcnt lgkmcnt(0)", "s"))
            S.put(b, Item(f"v_mov_b32 v241, s96", "s"))
            S.put(b, Item(f"buffer_store_dwordx2 v[240:241], v242, s[{sX}:{sX+3}], 0 offen", "s")); S.put(b, Item(f"v_add_u32 v242, 8, v242", "s"))
        S.put(b, Item(f"SWITCH{bi}:", "s"))
    for n in range(NU):
        if last(n):
            nu = n + 1
            for t in range(8):
                for jj in range(2):
                    lo = PER*n + 16 + Q1 + t; hi = lo + 15
                    if nu % 9 == 7: hi = min(hi, PER*(n+1) + 10)
                    item = Item(v_read(kt(nu), t, jj, slot(nu)), "ds")
                    g = S.put_win(lo, hi, item, pack=True)
                    if nu >= NU and g < N: item.it = 1
    for n in range(NU):
        u = n + 1
        if last(u):
            nu = u + 1; it = 1 if nu >= NU else 0
            for idx in range(8):
                lo = PER*n + 8 + idx; hi = lo + 16
                if cfg.qkord: lo = PER*n + 2 * idx + 1; hi = lo + PER - 11
                if u % 9 == 8: lo = max(lo, PER*n + 16)
                S.put_win(lo, hi, Item(k_read(kt(nu), idx >> 2, idx & 3), "ds", it), pack=True)
    if peel:
        place_adds(); return S, bar
    for bi, b in enumerate(bar):
        g0 = b - 40
        for l in [f"s_mov_b32 s{sKt}, s{sKb}", f"s_cmp_eq_u32 s{sKb}, s{sKw}"]: S.put(g0, Item(l, "s"))
        S.put(b + 1, Item(f"s_mov_b32 s{sKm}, s{sKt}", "s"))
        S.put(g0, Item(f"s_cselect_b32 s{sKd}, s{sT3}, s{sQs}", "s"))
        S.put(g0 + 1, Item(f"s_add_u32 s{sKb}, s{sKb}, s{sKd}", "s"))
        for i in range(8): S.put_win(g0 + 2, b - 1, Item(f"v_add_u32 v{vKa+i}, s{sKd}, v{vKa+i}", "v"), pack=True)
        itf = lambda g: 1 if (bi == 1 and g < N) else 0
        lv = v_dma(bi); lk = k_dma()
        lv[0] = (adv(sVo, sVs) + lv[0][0], lv[0][1]); lk[0] = (adv(sKo, sKs) + lk[0][0], lk[0][1])
        st0 = (b + 2) if bi == 0 else CUT + 1
        lim = b + 9 * PER - 14
        step = min(cfg.dma_step, (lim - 36 - st0) / 15)
        g = st0
        for i, x in enumerate(lv + lk):
            g = place_dmas(S, [x], max(g, st0 + int((i - i % cfg.dgrp) * step)), 2 if cfg.dgrp == 1 else 1, itf, limit=lim)
    if False:
        for i, g in enumerate(int(x) for x in cfg.pfpos.split(",")):
            place_dmas(S, [([f"s_add_u32 s{sPfo}, s{sPfo}, {(32 << cfg.pfsh) if cfg.pfsh else 262144 // len(cfg.pfpos.split(','))}", f"s_xor_b32 s{sPfx}, s{sPfo}, s{sPfr}"], f"buffer_load_dword v{vPfd}, v{vPfo}, s[{sD}:{sD+3}], s{sPfx} offen{NT(cfg.pf_nt)} ; pf{i}")], g, 1, itf=lambda g: 1 if g >= CUT else 0)
    place_adds()
    for bi, b in enumerate(bar):
        n = 0; g = b - 1
        while True:
            its = [x for x in S.gap[g % N] if x.kind == "dma"]
            if its and f"s[{sV}:{sV+3}]" in its[0].text: break
            n += len(its); g -= 1
        for x in S.gap[b]:
            if "vmcnt(8)" in x.text: x.text = x.text.replace("vmcnt(8)", f"vmcnt({n})")
    return S, bar

def kv_setup(e, t):
    r8, p8, tA, tB, tC = t, t+1, t+2, t+3, t+4
    e(f"v_lshrrev_b32 v{r8}, 3, v0"); e(f"v_and_b32 v{p8}, 7, v0"); e(f"v_lshrrev_b32 v{tA}, 1, v{r8}")
    e(f"v_xor_b32 v{tB}, v{tA}, v{p8}"); e(f"v_lshlrev_b32 v{tC}, 8, v{r8}")
    e(f"v_lshl_add_u32 v{vKv+1}, v{tB}, 4, v{tC}"); e(f"v_xor_b32 v{vKv+3}, 64, v{vKv+1}")
    e(f"v_add_u32 v{vKv}, 1024, v{vKv+1}"); e(f"v_add_u32 v{vKv+2}, 1024, v{vKv+3}")
    e(f"v_add_u32 v{vKv+1}, 128, v{vKv+1}"); e(f"v_add_u32 v{vKv+3}, 128, v{vKv+3}")
    e(f"v_lshlrev_b32 v{tB}, 1, v{tA}"); e(f"v_xor_b32 v{tB}, v{tB}, v{p8}")
    e(f"v_lshl_add_u32 v{vVv+1}, v{tB}, 4, v{tC}")
    e(f"v_add_u32 v{vVv}, 1024, v{vVv+1}"); e(f"v_add_u32 v{vVv+1}, 128, v{vVv+1}")
    e(f"v_mov_b32 v{vVv+2}, v{vVv}"); e(f"v_mov_b32 v{vVv+3}, v{vVv+1}")
    e(f"s_lshl_b32 s{sT0}, s{sB}, 5"); e(f"s_add_u32 s{sT0}, s{sT0}, s{sH}"); e(f"s_lshl_b32 s{sT0}, s{sT0}, 18")
    for s, p in ((sK, sPTR + 2), (sV, sPTR + 4)):
        e(f"s_add_u32 s{s}, s{p}, s{sT0}"); e(f"s_addc_u32 s{s+1}, s{p+1}, 0")
        e(f"s_sub_u32 s{s}, s{s}, 1024"); e(f"s_subb_u32 s{s+1}, s{s+1}, 0")
        e(f"s_mov_b32 s{s+2}, {262144+1024}"); e(f"s_mov_b32 s{s+3}, 0x20000")
    e(f"s_lshr_b32 s{sK0}, s2, 3"); e(f"s_xor_b32 s{sK0}, s{sK0}, s2"); e(f"s_and_b32 s{sK0}, s{sK0}, {cfg.krot}"); e(f"s_lshl_b32 s{sK0}, s{sK0}, 15")
    e(f"s_add_u32 s{sK0}, s{sK0}, s{sW8}"); e(f"s_mov_b32 s{sKmask}, 0x3ffff"); e(f"s_mov_b32 s{sVmask}, 0x3ffff")
    for b_ in (sKo, sVo):
        e(f"s_mov_b32 s{b_}, s{sK0}"); e(f"s_add_u32 s{b_+1}, s{sK0}, 4096")
    e(f"s_mov_b32 s{sKs}, 32768"); e(f"s_mov_b32 s{sVs}, 32768")
    e(f"s_add_u32 s{sKb}, s{sW8}, {KR[0]}"); e(f"s_mov_b32 s{sKm}, s{sKb}"); e(f"s_add_u32 s{sKw}, s{sW8}, {KR[2]}")

def att_addr(t):
    L = []; e = L.append
    tA, tB, tC, q16, kg, r4, c4, k0 = t, t+1, t+2, t+3, t+4, t+5, t+6, t+7
    e(f"v_and_b32 v{q16}, 15, v0"); e(f"v_lshrrev_b32 v{kg}, 4, v0")
    e(f"v_lshrrev_b32 v{tA}, 3, v{q16}"); e(f"v_lshlrev_b32 v{tA}, 11, v{tA}")
    e(f"v_and_b32 v{tB}, 7, v{q16}"); e(f"v_lshl_add_u32 v{tA}, v{tB}, 7, v{tA}")
    e(f"v_lshrrev_b32 v{tB}, 1, v{q16}"); e(f"v_xor_b32 v{tB}, v{tB}, v{kg}")
    e(f"v_lshl_add_u32 v{k0}, v{tB}, 4, v{tA}"); e(f"v_add_u32 v{k0}, {KR[0]}, v{k0}"); e(f"v_xor_b32 v{k0+1}, 64, v{k0}")
    n1 = len(L)
    e(f"v_bfe_u32 v{r4}, v0, 2, 2"); e(f"v_and_b32 v{c4}, 3, v0")
    e(f"v_and_b32 v{tA}, 1, v{kg}"); e(f"v_lshl_add_u32 v{tA}, v{tA}, 2, v{r4}")
    e(f"v_lshrrev_b32 v{tB}, 1, v{tA}"); e(f"v_lshlrev_b32 v{tB}, 5, v{tB}"); e(f"v_lshl_add_u32 v{tB}, v{tA}, 7, v{tB}")
    e(f"v_lshrrev_b32 v{tA}, 1, v{kg}"); e(f"v_lshl_add_u32 v{tB}, v{tA}, 11, v{tB}"); e(f"v_lshl_add_u32 v{tC}, v{c4}, 3, v{tB}")
    for j in range(4):
        e(f"s_add_u32 s{sT0}, s{sW}, {j}"); e(f"s_and_b32 s{sT0}, s{sT0}, 3"); e(f"s_lshl_b32 s{sT0}, s{sT0}, 13")
        for c in range(2): e(f"v_add_u32 v{vKa+2*j+c}, s{sT0}, v{k0+c}")
        e(f"v_add_u32 v{vVa+4*j}, s{sT0}, v{tC}")
        for k in range(1, 4): e(f"v_xor_b32 v{vVa+4*j+k}, {32*k}, v{vVa+4*j}")
    for i in range(4): e(f"v_mov_b32 v{vOne+i}, 0x3f803f80")
    return L[:n1], L[n1:], k0

def wo_voff(e, dst, t):
    r8, p8, tA, tB = t, t+1, t+2, t+3
    e(f"v_lshrrev_b32 v{r8}, 3, v0"); e(f"v_and_b32 v{p8}, 7, v0")
    e(f"v_bfe_u32 v{tA}, v{r8}, 1, 2"); e(f"v_lshlrev_b32 v{tA}, 1, v{tA}"); e(f"v_xor_b32 v{tA}, v{tA}, v{p8}")
    e(f"v_lshlrev_b32 v{tB}, 10, v{r8}"); e(f"v_lshl_add_u32 v{dst}, v{tA}, 4, v{tB}")
    for q in range(1, 4): e(f"v_add_u32 v{dst+q}, {7168*q}, v{dst}")
def wo_srd(e, s):
    e(f"s_lshl_b32 s{sT0}, s{sCg}, 7")
    e(f"s_add_u32 s{s}, s{sPTR+8}, s{sT0}"); e(f"s_addc_u32 s{s+1}, s{sPTR+9}, 0")
    e(f"s_sub_u32 s{s+2}, 4194304, s{sT0}"); e(f"s_mov_b32 s{s+3}, 0x20000")

vPfo = 243
vRa = 244
def wo_pf(e, srd, first, n):
    e(f"v_lshlrev_b32 v{vT}, 12, v0"); e(f"s_lshl_b32 s{sT0}, s{sW}, 20"); e(f"s_lshl_b32 s{sT1}, s{sRg}, 10"); e(f"s_add_u32 s{sT0}, s{sT0}, s{sT1}")
    e(f"s_add_u32 s{sT0}, s{sT0}, {first*32768}")
    for i in range(n):
        if i: e(f"s_add_u32 s{sT0}, s{sT0}, 262144")
        part = first + 8 * i + 8 > 32
        if part: e(f"s_mov_b64 exec, {(1 << (8 * (32 - first - 8 * i))) - 1:#x}")
        e(f"buffer_load_dword v{vPfd}, v{vT}, s[{srd}:{srd+3}], s{sT0} offen")
        if part: e("s_mov_b64 exec, -1")
def switch_block(bi):
    L = []; e = L.append
    e(f"s_cmp_lg_u32 s{sCnt}, {2 if bi == 1 else 1}"); e(f"s_cbranch_scc1 L_sw{bi}")
    if bi == 1:
        wo_voff(e, vKv, vT); wo_srd(e, sK); e(f"s_mov_b32 s{sKmask}, -1")
        e(f"s_and_b32 s{sR4}, s{sCg}, {cfg.orot}"); e(f"s_lshl_b32 s{sR4}, s{sR4}, 15"); e(f"s_lshl_b32 s{sT1}, s{sW}, 20"); e(f"s_or_b32 s{sR4}, s{sR4}, s{sT1}")
        if cfg.xrot: e(f"s_and_b32 s{sT1}, s2, 7"); e(f"s_lshl_b32 s{sT1}, s{sT1}, 17"); e(f"s_xor_b32 s{sR4}, s{sR4}, s{sT1}")
        e(f"s_mov_b32 s{sKs}, 0"); e(f"s_mov_b32 s{sKo}, s{sR4}"); e(f"s_mov_b32 s{sKo+1}, 0x40000000")
        kg, r4, c4, tA, tB = vT, vT+1, vT+2, vT+3, vT+4
        e(f"v_lshrrev_b32 v{kg}, 4, v0"); e(f"v_bfe_u32 v{r4}, v0, 2, 2"); e(f"v_and_b32 v{c4}, 3, v0")
        e(f"v_and_b32 v{tA}, 1, v{kg}"); e(f"v_lshl_add_u32 v{tA}, v{tA}, 2, v{r4}")
        e(f"v_lshrrev_b32 v{tB}, 1, v{tA}"); e(f"v_lshlrev_b32 v{tB}, 5, v{tB}")
        e(f"v_lshl_add_u32 v{tB}, v{tA}, 7, v{tB}"); e(f"v_lshrrev_b32 v{tA}, 1, v{kg}"); e(f"v_lshl_add_u32 v{tB}, v{tA}, 10, v{tB}")
        e(f"v_lshl_add_u32 v{tB}, v{c4}, 3, v{tB}"); e(f"v_add_u32 v{vRa}, s{sW8}, v{tB}")
        if cfg.fastred: e(f"s_lshl_b32 s{sT1}, s{sW}, 5"); e(f"v_xor_b32 v{vRa}, s{sT1}, v{vRa}")
        for nt in range(1, 4): e(f"v_xor_b32 v{vRa+nt}, {32*nt}, v{vRa}")
        for s_ in range(1, 3):
            for nt in range(4): e(f"v_add_u32 v{vRa+4*s_+nt}, {65536*s_}, v{vRa+nt}")
        e(f"v_lshlrev_b32 v10, 4, v0"); e(f"s_lshl_b32 s{sWo_}, s{sW}, 20")
        if cfg.pfcut: e(f"s_mov_b32 s{sD+2}, 0")
        if cfg.pflate:
            e(f"s_mov_b32 s{sD+2}, 4194304")
            e(f"s_lshr_b32 s{sPfo}, s2, 3"); e(f"s_lshl_b32 s{sPfo}, s{sPfo}, 13"); e(f"s_add_u32 s{sPfo}, s{sPfo}, s{sWo_}"); e(f"s_sub_u32 s{sPfo}, s{sPfo}, 262144")
    elif bi == 0:
        for q in range(4): e(f"v_mov_b32 v{vVv+q}, v{vKv+q}")
        wo_srd(e, sV); e(f"s_mov_b32 s{sVmask}, -1")
        if cfg.cpf2:
            e(f"s_getpc_b64 s[{sT0}:{sT1}]"); e("L_pc1:")
            e(f"s_add_u32 s{sT0}, s{sT0}, L_tail-L_pc1"); e(f"s_addc_u32 s{sT1}, s{sT1}, 0")
            e(f"s_lshr_b32 s{sT2}, s2, 3"); e(f"s_lshl_b32 s{sT2}, s{sT2}, 2"); e(f"s_add_u32 s{sT2}, s{sT2}, s{sW}"); e(f"s_lshl_b32 s{sT2}, s{sT2}, 6")
            e(f"v_min_u32 v{vT}, 1, v0"); e(f"v_lshlrev_b32 v{vT}, 13, v{vT}"); e(f"v_add_u32 v{vT}, s{sT2}, v{vT}")
            e(f"global_load_dword v{vPfd}, v{vT}, s[{sT0}:{sT1}]")
        e(f"s_xor_b32 s{sVo}, s{sR4}, 65536"); e(f"s_xor_b32 s{sVo+1}, s{sR4}, 98304"); e(f"s_mov_b32 s{sVs}, 0")
    e(f"L_sw{bi}:")
    L, _ = check_hazards(L, "sw", fix=True)
    return L

def gen():
    o = []; e = o.append
    e(f"{cfg.name}:")
    e("s_cmp_ge_u32 s2, 256"); e("s_cbranch_scc1 L_end")
    e(f"s_load_dwordx16 s[{sPTR}:{sPTR+15}], s[0:1], 0")
    stamp(o, 0)
    if cfg.stamp: e(f"s_memrealtime s[{sST+14}:{sST+15}]")
    e("v_lshrrev_b32 v1, 6, v0"); e("v_and_b32 v0, 63, v0"); e(f"v_readfirstlane_b32 s{sW}, v1")
    e(f"s_mov_b32 s{sRedo}, 0")
    e("L_restart:")
    if cfg.map_bh == "b":
        e(f"s_and_b32 s{sB}, s2, 7"); e(f"s_lshr_b32 s{sH}, s2, 3")
    else:
        e(f"s_lshr_b32 s{sB}, s2, 5"); e(f"s_and_b32 s{sT0}, s2, 7"); e(f"s_lshl_b32 s{sT0}, s{sT0}, 2")
        e(f"s_bfe_u32 s{sT1}, s2, 0x20003"); e(f"s_add_u32 s{sH}, s{sT0}, s{sT1}")
    t = vT
    r8, p8, tA, tB, tC = t, t+1, t+2, t+3, t+4
    vB = vQ; vAd = vQ + 40; vXv = vQ + 60; vWv = vQ + 62; vSh = vQ + 64
    e(f"v_lshrrev_b32 v{r8}, 3, v0"); e(f"v_and_b32 v{p8}, 7, v0")
    e(f"v_lshrrev_b32 v{tA}, 1, v{r8}")
    e(f"v_and_b32 v{tB}, 1, v{tA}"); e(f"v_lshlrev_b32 v{tB}, 1, v{tB}"); e(f"v_xor_b32 v{tB}, v{tB}, v{p8}")
    e(f"v_lshlrev_b32 v{tC}, 13, v{r8}"); e(f"v_lshl_add_u32 v{vWv}, v{tB}, 4, v{tC}")
    e(f"s_and_b32 s{sT0}, s{sW}, 1"); e(f"s_lshl_b32 s{sT1}, s{sT0}, 6"); e(f"v_xor_b32 v{vWv}, s{sT1}, v{vWv}"); e(f"s_lshl_b32 s{sT0}, s{sT0}, 2")
    e(f"v_xor_b32 v{tB}, v{tA}, v{p8}"); e(f"v_xor_b32 v{tC+1}, s{sT0}, v{tB}")
    e(f"v_lshlrev_b32 v{tC}, 10, v{r8}"); e(f"v_lshl_add_u32 v{vXv}, v{tC+1}, 4, v{tC}"); e(f"v_xor_b32 v{vXv+1}, 64, v{vXv}")
    e(f"s_mul_i32 s{sXo}, s{sW}, {9*8192}"); e(f"s_mul_i32 s{sXm}, s{sW}, {9*1024}")
    e(f"s_lshl_b32 s{sWo_}, s{sW}, 16"); e(f"s_lshl_b32 s{sWm}, s{sW}, 11"); e(f"s_add_u32 s{sWm}, s{sWm}, 36864")
    e(f"s_mul_i32 s{sT0}, s{sB}, 294912"); e(f"s_lshl_b32 s{sT1}, s{sH}, 8")
    e(f"s_mov_b32 s{sX+2}, 294912"); e(f"s_mov_b32 s{sX+3}, 0x20000")
    e(f"s_sub_u32 s{sWQ+2}, 4194304, s{sT1}"); e(f"s_mov_b32 s{sWQ+3}, 0x20000")
    e(f"s_add_u32 s{sRot}, s{sH}, s{sB}"); e(f"s_and_b32 s{sRot}, s{sRot}, {cfg.qrot}")
    if cfg.qx: e(f"s_and_b32 s{sXc}, s2, {cfg.qx}"); e(f"s_xor_b32 s{sRot}, s{sRot}, s{sXc}")
    if cfg.cpf:
        e("s_getpc_b64 s[96:97]"); e("L_pc0:")
        e(f"s_lshr_b32 s98, s2, 3"); e(f"s_lshl_b32 s98, s98, 2"); e(f"s_add_u32 s98, s98, s{sW}"); e("s_lshl_b32 s98, s98, 6")
    stamp(o, 5, 2)
    e("s_waitcnt lgkmcnt(0)")
    stamp(o, 6, 2)
    if cfg.cpf:
        for i in range(cfg.cpf_n):
            e(f"s_load_dword s99, s[96:97], s98"); e("s_add_u32 s98, s98, 8192")
    e(f"s_add_u32 s{sX}, s{sPTR+0}, s{sT0}"); e(f"s_addc_u32 s{sX+1}, s{sPTR+1}, 0")
    e(f"s_add_u32 s{sWQ}, s{sPTR+6}, s{sT1}"); e(f"s_addc_u32 s{sWQ+1}, s{sPTR+7}, 0")
    def q_dma(c):
        r = []; sl = QSLOT[c % 3]
        for q in range(4):
            go = (q >> 1) * 262144 + (q & 1) * 128
            rot = [f"s_xor_b32 s{sXc}, s{sRot}, {c}", f"s_lshl_b32 s{sT3}, s{sXc}, 19", f"s_add_u32 s{sT3}, s{sT3}, s{sWo_}",
                   f"s_lshl_b32 s{sXc}, s{sXc}, 7", f"s_add_u32 s{sXc}, s{sXc}, s{sXo}"] if q == 0 else []
            r.append((rot + [f"s_add_u32 m0, s{sWm}, {sl + 8192*(q>>1) + 1024*(q&1)}", f"s_add_u32 s{sT2}, s{sT3}, {go}"],
                      f"buffer_load_dwordx4 v{vWv}, s[{sWQ}:{sWQ+3}], s{sT2} offen{NT(cfg.q_nt)} lds ; chunk {c}"))
        for i in range(9):
            r.append(([f"s_add_u32 m0, s{sXm}, {sl + 1024*i}", f"s_add_u32 s{sT2}, s{sXc}, {i*8192}"],
                      f"buffer_load_dwordx4 v{vXv+(i&1)}, s[{sX}:{sX+3}], s{sT2} offen{NT(cfg.q_nt)} lds ; chunk {c}"))
        return r
    d0_ = q_dma(0)
    o += flat(d0_[:2] + d0_[4:] if cfg.qstart == 2 else d0_)
    stamp(o, 7, 2)
    e(f"s_lshl_b32 s{sW8}, s{sW}, 13")
    kv_setup(e, t)
    for sl in range(2):
        for g in range(2): e(f"s_add_u32 s{sVm+2*sl+g}, s{sW8}, {LDS_V[sl] + 4096*g}")
    e(f"s_mul_i32 s{sT0}, s{sB}, 2359296")
    e(f"s_add_u32 s{sO}, s{sPTR+14}, s{sT0}"); e(f"s_addc_u32 s{sO+1}, s{sPTR+15}, 0")
    e(f"s_mov_b32 s{sO+2}, 2359296"); e(f"s_mov_b32 s{sO+3}, 0x20000")
    e(f"s_lshr_b32 s{sCg}, s2, 5"); e(f"s_and_b32 s{sOdd}, s2, 1")
    e(f"s_bfe_u32 s{sRg}, s2, 0x20001"); e(f"s_bfe_u32 s{sT0}, s2, 0x10003"); e(f"s_lshl_b32 s{sT0}, s{sT0}, 2"); e(f"s_add_u32 s{sRg}, s{sRg}, s{sT0}")
    e(f"s_bfe_u32 s{sT0}, s2, 0x10004"); e(f"s_lshl_b32 s{sMt}, s{sRg}, 1"); e(f"s_add_u32 s{sMt}, s{sMt}, s{sT0}"); e(f"s_mul_i32 s{sMt}, s{sMt}, 9")
    if cfg.tlb:
        e(f"s_load_dword s99, s[{sK}:{sK+1}], 1024"); e(f"s_load_dword s99, s[{sV}:{sV+1}], 1024")
        e(f"s_lshl_b32 s98, s{sW}, 19"); e(f"s_load_dword s99, s[{sO}:{sO+1}], s98"); e(f"s_mov_b32 s98, {16*131072}"); e(f"s_load_dword s99, s[{sO}:{sO+1}], s98")
        e(f"s_lshl_b32 s98, s{sMt}, 17"); e(f"s_load_dword s99, s[{sPTR+14}:{sPTR+15}], s98"); e(f"s_add_u32 s98, s98, {4*131072-4}"); e(f"s_load_dword s99, s[{sPTR+14}:{sPTR+15}], s98")
        e(f"s_lshl_b32 s98, s{sW}, 20"); e(f"s_load_dword s99, s[{sPTR+8}:{sPTR+9}], s98")
        e(f"s_lshl_b32 s98, s{sMt}, 14"); e(f"s_load_dword s99, s[{sPTR+10}:{sPTR+11}], s98"); e(f"s_load_dword s99, s[{sPTR+12}:{sPTR+13}], 0")
    q16, kg, r4, c4 = t+6, t+7, t+8, t+9
    e(f"v_and_b32 v{q16}, 15, v0"); e(f"v_lshrrev_b32 v{kg}, 4, v0"); e(f"v_bfe_u32 v{r4}, v0, 2, 2"); e(f"v_and_b32 v{c4}, 3, v0")
    e(f"v_lshrrev_b32 v{tA}, 3, v{q16}"); e(f"v_lshlrev_b32 v{tA}, 10, v{tA}")
    e(f"v_and_b32 v{tB}, 7, v{q16}"); e(f"v_lshl_add_u32 v{tA}, v{tB}, 7, v{tA}")
    e(f"v_lshrrev_b32 v{tB}, 1, v{q16}"); e(f"v_xor_b32 v{tB}, v{tB}, v{kg}")
    e(f"v_lshl_add_u32 v{vAd}, v{tB}, 4, v{tA}"); e(f"v_xor_b32 v{vAd+1}, 64, v{vAd}")
    e(f"v_add_u32 v{vAd+2}, s{sW8}, v{vAd}"); e(f"v_add_u32 v{vAd+3}, s{sW8}, v{vAd+1}")
    e(f"v_lshrrev_b32 v{tA}, 1, v{r4}"); e(f"v_and_b32 v{tB}, 1, v{kg}"); e(f"v_lshl_add_u32 v{tA}, v{tB}, 1, v{tA}")
    e(f"v_lshlrev_b32 v{tA}, 5, v{tA}"); e(f"v_lshl_add_u32 v{tA}, v{c4}, 3, v{tA}"); e(f"v_lshl_add_u32 v{tA}, v{r4}, 7, v{tA}")
    e(f"v_lshl_add_u32 v{tA}, v{kg}, 11, v{tA}"); e(f"v_add_u32 v{vAd+4}, 36864, v{tA}")
    for k in range(1, 4): e(f"v_xor_b32 v{vAd+4+k}, {32*k}, v{vAd+4}")
    e(f"s_and_b32 s{sT0}, s{sW}, 1"); e(f"s_lshl_b32 s{sT0}, s{sT0}, 6"); e(f"s_lshr_b32 s{sT1}, s{sW}, 1"); e(f"s_lshl_b32 s{sT1}, s{sT1}, 10")
    e(f"v_xor_b32 v{vAd+8}, s{sT0}, v{vAd+4}"); e(f"v_add_u32 v{vAd+8}, s{sT1}, v{vAd+8}"); e(f"v_xor_b32 v{vAd+9}, 32, v{vAd+8}")
    e(f"s_mov_b32 s{sQs}, {QSCALE:#x}")
    if cfg.wwpos:
        e(f"s_mov_b32 s{sD}, s{sPTR+8}"); e(f"s_mov_b32 s{sD+1}, s{sPTR+9}"); e(f"s_mov_b32 s{sD+2}, 4194304"); e(f"s_mov_b32 s{sD+3}, 0x20000")
        e(f"v_and_b32 v254, 31, v0"); e(f"v_lshlrev_b32 v254, 7, v254"); e(f"s_lshl_b32 s{sKt2}, s2, 14"); e(f"s_lshl_b32 s{sT1}, s{sW}, 12"); e(f"s_add_u32 s{sKt2}, s{sKt2}, s{sT1}")
    if cfg.pkq: e(f"v_mov_b32 v252, s{sQs}"); e(f"v_mov_b32 v253, s{sQs}")
    if cfg.k0pf: e("v_lshlrev_b32 v252, 7, v0"); e("v_add_u32 v252, 1024, v252")

    NQ = 16 * 36
    S = Sched(NQ)
    fA = lambda t_: aK + 4 * t_
    fB = lambda p, q: vB + 16 * p + 4 * q
    fBs = lambda q: vB + 32 + 4 * q
    acc = lambda q, t_: vAcc + 32 * q + 4 * t_
    accs = lambda qs, u: vAcc + 128 + 8 * qs + 4 * u
    def rdA(ks, t_, jj):
        ad = vAd + 10 * ((ks >> 1) & 1); s = ks & 1
        if t_ < 8: return f"ds_read_b64_tr_b16 {ar(fA(t_)+2*jj,2)}, v{ad+4+(t_&3)} offset:{s*8192+(t_>>2)*1024+jj*512}"
        return f"ds_read_b64_tr_b16 {ar(fA(t_)+2*jj,2)}, v{ad+t_} offset:{s*8192+jj*512}"
    def rdB(ks, q):
        ad = vAd + 10 * ((ks >> 1) & 1); s = ks & 1
        if q < 4: return f"ds_read_b128 {vr(fB(ks&1,q),4)}, v{ad+2+s} offset:{2048*q}"
        return f"ds_read_b128 {vr(fBs(q-4),4)}, v{ad+s} offset:{32768+2048*(q-4)}"
    for ks in range(16):
        for i in range(36):
            if i < 32: t_, q = i >> 2, i & 3; a_, A, Bf = acc(q, t_), fA(t_), fB(ks & 1, q)
            else: u, qs = (i - 32) >> 1, i & 1; a_, A, Bf = accs(qs, u), fA(8 + u), fBs(qs)
            S.mf[36*ks + i] = Item(f"{MF} {vr(a_,4)}, {ar(A,4)}, {vr(Bf,4)}, {'0' if ks == 0 else vr(a_,4)}", "mf")
    QB = 9
    for c in range(8):
        gb = 72 * c + 36 + QB
        n = (13 + (cfg.wowarm if c == 0 else 0)) if c <= 5 else (8 if c == 6 else None)
        if cfg.k0pf and c in (cfg.k0pf, cfg.k0pf + 1): n += 1
        if cfg.wwpos and c in (cfg.wwpos, cfg.wwpos + 1) and n is not None: n += 1
        if cfg.qstamp: S.put(gb, Item("s_memtime s[96:97]", "s"))
        S.put(gb, Item(f"s_waitcnt vmcnt(CH{c+1}) lgkmcnt(0)" if n is not None else "s_waitcnt lgkmcnt(0)", "s"))
        S.put(gb, Item("s_barrier", "s"))
        if cfg.qstamp:
            S.put(gb, Item(f"v_mov_b32 v252, s96", "s")); S.put(gb, Item("s_memtime s[96:97]", "s")); S.put(gb, Item("s_waitcnt lgkmcnt(0)", "s"))
            S.put(gb, Item(f"v_mov_b32 v253, s96", "s"))
            S.put(gb, Item(f"buffer_store_dwordx2 v[252:253], v254, s[{sD}:{sD+3}], 0 offen", "s")); S.put(gb, Item(f"v_add_u32 v254, 8, v254", "s"))
    for ks in range(16):
        base = 36 * ks
        if ks:
            for k_, r in enumerate([rdA(ks, 8, 0), rdA(ks, 8, 1), rdB(ks, 4), rdB(ks, 5), rdA(ks, 9, 0), rdA(ks, 9, 1)]):
                S.put(base + (k_ >> 1), Item(r, "ds"))
        if ks < 15:
            lo0 = base + (QB if ks & 1 else 3)
            for q in range(4): S.put_win(lo0, base + 24, Item(rdB(ks + 1, q), "ds"))
            for t_ in range(8):
                for jj in range(2):
                    lo = max(base + 4 * t_ + 3, lo0)
                    if ks == 0 and cfg.qstart == 2: lo = max(lo, cfg.qb0)
                    g_r = S.put_win(lo, min(lo + 20, NQ - 1), Item(rdA(ks + 1, t_, jj), "ds"))
                    assert g_r < base + 36 + 4 * t_ - 6 and (ks & 1 or g_r < base + 36 + QB - 4), (ks, t_, g_r)
    for c in range(8):
        gb = 72 * c + 36 + QB
        if c + 3 < 8: lst = q_dma(c + 3)
        elif c == 5: lst = k_dma()
        elif c == 6: lst = v_dma(0)
        else:
            lst = k_dma(); lst[0] = (adv(sKo, sKs) + [f"s_add_u32 s{sKm}, s{sW8}, {KR[1]}"] + lst[0][0], lst[0][1])
            if cfg.k1pos: k1l = lst; lst = []
        if cfg.wwpos and c == cfg.wwpos - 1:
            lst = lst + [([], f"buffer_load_dword v{vPfd}, v254, s[{sD}:{sD+3}], s{sKt2} offen")]
        if cfg.k0pf and c == cfg.k0pf - 1:
            lst = lst + [([], f"buffer_load_dword v{vPfd}, v252, s[{sK}:{sK+3}], s{sKo} offen nt")]
        if cfg.qstart and c == 0:
            g_ = 1
            if cfg.qstart == 2:
                g_ = place_dmas(S, d0_[2:4], 1, 2) - 1
                S.put(cfg.qb0, Item("s_waitcnt vmcnt(CH0) lgkmcnt(0)", "s")); S.put(cfg.qb0, Item("s_barrier", "s"))
            g_ = place_dmas(S, q_dma(1), g_ + 1, 2, limit=36 + QB - 2)
            g_ = place_dmas(S, q_dma(2), g_, cfg.q2step, limit=gb + 50)
            g_ = place_dmas(S, lst, max(g_, gb + 2), 3, limit=gb + 72 + 40)
        elif cfg.qstart and c in (1, 2):
            g_ = place_dmas(S, lst, max(g_, gb + 2), 3 if c == 1 else 4, limit=gb + 72 + (20 if c == 1 else 0))
        else:
            place_dmas(S, lst, gb + 2, (cfg.qstep - (len(lst) > 13)) if c < 5 else cfg.kvstep, limit=min(gb + 72, NQ))
    if not cfg.qstart: place_dmas(S, q_dma(2), 1, 2, limit=36 + QB)
    for c in range(7):
        d = QSLOT[(c + 1) % 3] - QSLOT[c % 3]
        for k in range(10):
            S.put_win(72 * c + 4, 72 * c + 40, Item(f"v_add_u32 v{vAd+10*((c+1)&1)+k}, {d & 0xffffffff:#x}, v{vAd+10*(c&1)+k}", "v"))
    g = 0
    for i in range(192): g = S.put_win(g, NQ - 1, Item(f"v_accvgpr_write_b32 a{i}, 0", "v"))
    sys.stderr.write(f"qproj gaps over cap: {sum(c > CAP for c in S.cost)}\n")
    if not cfg.qstart: o += flat(q_dma(1))
    if cfg.ptouch:
        e(f"s_mul_i32 s{sT0}, s2, 20480"); e(f"s_add_u32 s{sT0}, s{sT0}, 0x1400000"); e(f"v_mov_b32 v{vPfd}, s{sT0}")
        if cfg.ptouch > 1:
            e(f"s_mul_i32 s{sT0}, s{sB}, 2359296"); e(f"s_lshl_b32 s{sT1}, s{sW}, 19"); e(f"s_add_u32 s{sT0}, s{sT0}, s{sT1}"); e(f"v_writelane_b32 v{vPfd}, s{sT0}, 1")
            e(f"s_lshl_b32 s{sT0}, s{sMt}, 17"); e(f"s_mul_i32 s{sT1}, s{sW}, {3*131072-1024}"); e(f"s_add_u32 s{sT0}, s{sT0}, s{sT1}"); e(f"v_writelane_b32 v{vPfd}, s{sT0}, 2")
        e(f"global_load_dword v{vPfd}, v{vPfd}, s[{sPTR+14}:{sPTR+15}]")
    stamp(o, 8, 2)
    if cfg.qstamp:
        e(f"s_add_u32 s{sD}, s{sPTR+14}, 0x4100000"); e(f"s_addc_u32 s{sD+1}, s{sPTR+15}, 0"); e(f"s_mov_b32 s{sD+2}, 0x100000"); e(f"s_mov_b32 s{sD+3}, 0x20000")
        e(f"s_lshl_b32 s{sT0}, s2, 2"); e(f"s_add_u32 s{sT0}, s{sT0}, s{sW}"); e(f"s_lshl_b32 s{sT0}, s{sT0}, 6"); e(f"v_mov_b32 v254, s{sT0}")
    if cfg.wowarm:
        e(f"s_mov_b32 s{sD}, s{sPTR+8}"); e(f"s_mov_b32 s{sD+1}, s{sPTR+9}"); e(f"s_mov_b32 s{sD+2}, 4194304"); e(f"s_mov_b32 s{sD+3}, 0x20000")
        e(f"v_and_b32 v{tA}, 31, v0"); e(f"v_lshlrev_b32 v{tA}, 7, v{tA}"); e(f"s_lshl_b32 s{sT0}, s2, 14"); e(f"s_lshl_b32 s{sT1}, s{sW}, 12"); e(f"s_add_u32 s{sT0}, s{sT0}, s{sT1}")
        e(f"buffer_load_dword v{vPfd}, v{tA}, s[{sD}:{sD+3}], s{sT0} offen")
    e(f"s_waitcnt vmcnt({0 if cfg.qstart else 13 + (cfg.ptouch > 0)}) lgkmcnt(0)"); e("s_barrier")
    stamp(o, 1)
    first = [rdA(0, 0, 0), rdA(0, 0, 1)] + [rdB(0, q) for q in range(4)] + [rdA(0, t_, jj) for t_ in range(1, 10) for jj in range(2)] + [rdB(0, 4), rdB(0, 5)]
    qh = ([0] * 11 if cfg.qstart == 2 else []) if cfg.qstart else [1] * 13 + [-1] * (cfg.ptouch > 0)
    for g, k, l in lgkm_waits([(-2, "ds", r) for r in first] + S.linear(0, NQ)):
        if "vmcnt(CH" in l:
            c_ = int(l.split("CH")[1][0]); assert qh.count(c_) == 13, (c_, qh)
            l = f"s_waitcnt vmcnt({len(qh) - 1 - max(i for i, x in enumerate(qh) if x == c_)}) lgkmcnt(0)"
        if l.startswith("buffer_"): qh.append(int(l.split()[-1]) if "; chunk" in l else -1)
        e(l)
    stamp(o, 2)
    def cvt_frag(src, dst):
        L = [f"v_mul_f32 v{src+i}, s{sQs}, v{src+i}" for i in range(8)]
        if cfg.pkq: L = [x for i in range(4) for x in (f"v_pk_mul_f32 {vr(src+2*i,2)}, {vr(src+2*i,2)}, v[252:253]", None)]
        L += [f"v_cvt_pk_bf16_f32 v{dst+i}, v{src+2*i}, v{src+2*i+1}" for i in range(4)]
        W = [f"v_permlane32_swap_b32 v{dst}, v{dst+2}", f"v_permlane32_swap_b32 v{dst+1}, v{dst+3}",
             f"v_permlane16_swap_b32 v{dst}, v{dst+2}", f"v_permlane16_swap_b32 v{dst+1}, v{dst+3}"]
        return L, W
    own = [(acc(q, 2 * c), vQ + 16 * q + 4 * c) for c in range(4) for q in range(4)]
    frs = own[:2] + [(accs(0, 0), vSh), (accs(1, 0), vSh + 4)] + own[2:]
    pendW = []
    for idx, (s_, d_) in enumerate(frs):
        L, W = cvt_frag(s_, d_)
        o += [x for x in L[:4] + pendW[:2] + L[4:8] + pendW[2:] + L[8:] if x]
        pendW = W
        if cfg.k1pos and idx >= 2 and idx % 2 == 0: o += flat([k1l.pop(0)])
        if idx == 4:
            e(f"v_lshlrev_b32 v10, 4, v0"); e(f"s_lshl_b32 s{sT0}, s{sW}, 10"); e(f"s_add_u32 s{sT0}, s{sT0}, {LDS_EX}")
            e(f"v_add_u32 v11, s{sT0}, v10"); e(f"v_add_u32 v10, {LDS_EX}, v10")
            e(f"ds_write_b128 v11, {vr(vSh,4)}"); e(f"ds_write_b128 v11, {vr(vSh+4,4)} offset:4096")
    o += pendW
    a1, a2, k0 = att_addr(vT)
    if cfg.flags:
        e(f"s_lshl_b32 s{sFo}, s{sB}, 1"); e(f"s_lshr_b32 s{sT0}, s{sH}, 4"); e(f"s_add_u32 s{sFo}, s{sFo}, s{sT0}"); e(f"s_lshl_b32 s{sFo}, s{sFo}, {cfg.fstr}")
        e(f"s_and_b32 s{sT0}, s{sH}, 15"); e(f"s_lshl_b32 s{sT0}, s{sT0}, 2"); e(f"s_add_u32 s{sFo}, s{sFo}, s{sT0}"); e(f"s_add_u32 s{sFo}, s{sFo}, {FLAG_OFF}")
        e(f"s_or_b32 s{sT0}, s{sW}, s{sRedo}"); e("s_cbranch_scc1 L_noclr")
        e(f"v_mov_b32 v{vT}, s{sFo}"); e(f"v_mov_b32 v{vT+1}, 0"); e("s_mov_b64 exec, 1")
        e(f"global_store_dword v{vT}, v{vT+1}, s[{sPTR+14}:{sPTR+15}] sc1"); e("s_mov_b64 exec, -1")
        e("L_noclr:")
    o += a1
    if cfg.s0: e("v_and_b32 v11, 48, v0"); e(f"v_add_u32 v11, {KR[0]}, v11")
    e(f"s_waitcnt vmcnt({16 if cfg.vlate else 8}) lgkmcnt(0)"); e("s_barrier")
    for c in range(4):
        if cfg.s0: e(f"ds_read_b128 {vr(vS+4*c,4)}, v11 offset:{(c&1)*64+(c>>1)*1024}")
        else: e(k_read(0, 0, c, base=k0))
    for i in range(8): e(f"ds_read_b128 {vr(vQ+64+4*i,4)}, v10 offset:{1024*i}")
    if cfg.dump_q:
        e("s_waitcnt lgkmcnt(0)")
        e(f"v_lshlrev_b32 v{tB}, 4, v0"); e(f"s_lshl_b32 s{sT0}, s{sH}, 2"); e(f"s_add_u32 s{sT0}, s{sT0}, s{sW}"); e(f"s_mul_i32 s{sT0}, s{sT0}, {18*1024}")
        for i in range(18):
            e(f"buffer_store_dwordx4 {vr(vQ+4*i,4)}, v{tB}, s[{sO}:{sO+3}], s{sT0} offen"); e(f"s_add_u32 s{sT0}, s{sT0}, 1024")
        e("s_waitcnt vmcnt(0)"); e("s_endpgm")
    def negm(E, srcs):
        tm = [vS + qt for qt in range(6)]
        for qt in range(6): E(f"v_mov_b32 v{tm[qt]}, v{srcs[qt]}")
        for qt in range(6): E(f"v_permlane32_swap_b32 v{srcs[qt]}, v{tm[qt]}")
        for qt in range(6): E(f"v_max_f32 v{srcs[qt]}, v{srcs[qt]}, v{tm[qt]}")
        for qt in range(6): E(f"v_mov_b32 v{tm[qt]}, v{srcs[qt]}")
        for qt in range(6): E(f"v_permlane16_swap_b32 v{srcs[qt]}, v{tm[qt]}")
        for qt in range(6): E(f"v_max_f32 v{srcs[qt]}, v{srcs[qt]}, v{tm[qt]}")
        for qt in range(6):
            for i in range(4): E(f"v_sub_f32 v{vNM+4*qt+i}, 0, v{srcs[qt]}")
    a2_all = list(a2)
    e(f"s_cmp_lg_u32 s{sRedo}, 0"); e("s_cbranch_scc1 L_truemax")
    if cfg.s0:
        o += a2[:16]; a2 = a2[16:]
        e("s_waitcnt lgkmcnt(8)")
        for i in range(16): e(f"v_xor_b32 v{vS+i}, 0x80008000, v{vS+i}")
        for qt in range(6):
            if qt == 4: e("s_waitcnt lgkmcnt(0)")
            nb = vNM + 4 * qt
            for c in range(4):
                e(f"{MF} {vr(nb,4)}, {vr(vS+4*c,4)}, {vr(vQ+16*qt+4*c,4)}, {'0' if c == 0 else vr(nb,4)}")
                nv = 0
                while a2 and nv < 2:
                    l = a2.pop(0); e(l); nv += l.startswith("v_")
        o += a2
    else:
        o += a2[:10]; a2 = a2[10:]
        e("s_waitcnt lgkmcnt(8)")
        mx = [vS + 8 + qt for qt in range(6)]
        for qt in range(6):
            if qt == 4: e("s_waitcnt lgkmcnt(0)")
            nb = vNM + 4 * qt
            for c in range(4):
                e(f"{MF} {vr(nb,4)}, {ar(aK+4*c,4)}, {vr(vQ+16*qt+4*c,4)}, {'0' if c == 0 else vr(nb,4)}")
                if qt >= 2 and c == 1:
                    p = vNM + 4 * (qt - 2); e(f"v_max3_f32 v{mx[qt-2]}, v{p}, v{p+1}, v{p+2}"); e(f"v_max_f32 v{mx[qt-2]}, v{mx[qt-2]}, v{p+3}")
                else:
                    nv = 0
                    while a2 and nv < 2:
                        l = a2.pop(0); e(l); nv += l.startswith("v_")
        o += a2
        for qt in (4, 5):
            p = vNM + 4 * qt; e(f"v_max3_f32 v{mx[qt]}, v{p}, v{p+1}, v{p+2}"); e(f"v_max_f32 v{mx[qt]}, v{mx[qt]}, v{p+3}")
        negm(e, mx)
    if not cfg.vlate: e("s_barrier")
    e("L_att:")
    e(f"s_mov_b32 s{sCnt}, 3"); e(f"s_mov_b32 s{sT3}, 65536"); e(f"s_mov_b32 s{sQs}, {(-32768) & 0xffffffff:#x}")
    e(f"s_add_u32 s{sKm}, s{sW8}, {KR[2]}")
    stamp(o, 3)
    if cfg.lstamp:
        e(f"s_add_u32 s{sX}, s{sPTR+14}, 0x4100000"); e(f"s_addc_u32 s{sX+1}, s{sPTR+15}, 0"); e(f"s_mov_b32 s{sX+2}, 0x100000"); e(f"s_mov_b32 s{sX+3}, 0x20000")
        e(f"s_lshl_b32 s{sT0}, s2, 2"); e(f"s_add_u32 s{sT0}, s{sT0}, s{sW}"); e(f"s_lshl_b32 s{sT0}, s{sT0}, 6"); e(f"v_mov_b32 v242, s{sT0}")
    A, bar = gen_attn_sched()
    N = A.n; CUT = 17 * PER
    sys.stderr.write(f"loop: overflow {sum(max(0, c - CAP) for c in A.cost)}, empty gaps {sum(c == 0 for c in A.cost)}\n")
    pro = lgkm_waits(A.linear(bar[1], N, keep=lambda it: it == 1), slack=100)
    zl = [f"v_mov_b32 v{vL+i}, 0" for i in range(24)]; pz = []
    seenv = not cfg.vlate; nd_ = 0
    for g, k, l in pro:
        if not seenv and l.startswith("ds_read_b64_tr"):
            pz += [f"s_waitcnt vmcnt({8 + nd_})", "s_barrier"]; seenv = True
        if k == "dma":
            nd_ += 1; assert seenv or f"s[{sV}:" in l
        pz.append(l)
        if k == "mf": pz += zl[:2]; zl = zl[2:]
    assert not zl
    pl, _ = check_hazards(pz, "pro", fix=True)
    o += pl
    e("s_waitcnt lgkmcnt(0)")
    body = A.linear(0, N)
    two = lgkm_waits(body + [(10**6, "x", "MARK:")] + [(g + N, k, l) for g, k, l in body] + [(2 * N, "mf", body[0][2])])
    k_ = [i for i, x in enumerate(two) if x[2] == "MARK:"][0]
    body2 = [(g - N, k, l) for g, k, l in two[k_+1:-1]]
    e("L_loop:")
    bl = []
    for g, k, l in body2:
        if l.startswith("SWITCH"): continue
        bl.append(l)
        if g == N - 1 and k == "mf": bl += [f"s_sub_u32 s{sCnt}, s{sCnt}, 1", f"s_cmp_lg_u32 s{sCnt}, 0"]
    ci = bl.index(f"s_cmp_lg_u32 s{sCnt}, 0")
    assert not any("scc" in Ins(x).w for x in bl[ci+1:]), bl[ci:]
    bl.append("s_cbranch_scc1 L_loop")
    _, bad = check_hazards(pl[-30:] + bl + bl, "loop"); assert bad == 0 or cfg.lstamp
    o += bl
    ep = []; hist = []
    def E(l, tag=None):
        if cfg.nost and tag == "st" and (cfg.nost == 1 or len([x for x in hist if x == "st"]) % 2): l = l.replace(f"s[{sO}:{sO+3}]", f"s[{sWQ}:{sWQ+3}]")
        ep.append(l)
        if Ins(l).kind in ("vmem", "dma", "vstore"): hist.append("sig" if l.endswith("; wave 0") else tag)
    def vwait(tag):
        last = max(i for i, x in enumerate(hist) if x == tag)
        n = sum(1 for x in hist[last+1:] if x != "sig")
        return f"s_waitcnt vmcnt({min(63, n)})"
    vwait1 = vwait
    LS = [KR[2], KR[2] + 4096, LDS_V[0], LDS_V[0] + 4096, KR[0], KR[0] + 4096, LDS_V[1], LDS_V[1] + 4096, KR[1], KR[1] + 4096]
    RS = [("a", 128), ("a", 144), ("a", 160), ("a", 176), ("v", 76), ("v", 92), ("a", 192), ("a", 208),
          ("a", 224), ("a", 240), ("v", 156), ("v", 172), ("v", 188), ("v", 204), ("v", 12), ("v", 28)]
    LSOF = {0: 0}
    NR = len(RS); NW = 16
    vR = 236; vLn = 10; vZ = 11
    def rreg(step, nt, jj=None):
        k, b = RS[step % NR]; f = vr if k == "v" else ar
        return f(b + 4 * nt, 4) if jj is None else f(b + 4 * nt + 2 * jj, 2)
    def tr_reads(step):
        a = LS[LSOF[step]]; s_ = a >> 16
        return [f"ds_read_b64_tr_b16 {rreg(step, nt, jj)}, v{vRa+4*s_+nt} offset:{(a & 0xffff) + 2048*jj} ; wo step {step}" for nt in range(4) for jj in range(2)]
    def wo_dma(step):
        return [(([f"s_add_u32 m0, s{sW8}, {LS[LSOF[step]]}", f"s_xor_b32 s{sT2}, s{sR4}, {32768*step}"] if q == 0 else []),
                 f"buffer_load_dwordx4 v{vKv+q}, s[{sK}:{sK+3}], s{sT2} offen offset:{1024*q} lds ; wo step {step}") for q in range(4)]
    def emit_dma(step):
        for l in flat(wo_dma(step)): E(l, ("w", step))
    def emit_tr(step):
        E(vwait(("w", step)))
        for l in tr_reads(step): E(l)
    T = vT
    P, _ = gen_attn_sched(peel=True)
    G0 = bar[0]; B7 = bar[1]
    NP = CUT + NPV
    Z = Sched(NP)
    for g in range(0, CUT):
        Z.mf[g] = P.mf[g]
        for x in A.gap[g]:
            if x.it or x.text.startswith("SWITCH") or x.text.startswith("v_add_f32"): continue
            if g < G0 + 1:
                if f"s[{sK}:{sK+3}]" in x.text or f"s{sKm}" in x.text or f"s{sKo}" in x.text or f"s{sKo+1}" in x.text: continue
                Z.put(g, Item(x.text.replace("vmcnt(8)", "vmcnt(V7)") + (" ; V7" if x.kind == "dma" else ""), x.kind))
            elif x.kind in ("ds", "t") or "cvt_pk" in x.text: Z.put(g, Item(x.text, x.kind))
            elif g == B7 and x.text in ("s_barrier",): Z.put(g, Item("s_waitcnt lgkmcnt(0)", "s")); Z.put(g, Item(x.text, "s"))
    for i in range(NPV): Z.mf[CUT + i] = P.mf[CUT + 16 + i]
    gg = CUT - 1
    for g in range(CUT, N):
        for x in P.gap[g]:
            if x.it == 0 and not x.text.startswith("v_add_f32"): gg = Z.put_win(min(gg + 1, CUT + Q1 - 3), CUT + Q1 - 3, Item(x.text, x.kind))
    if cfg.hyb:
        for g in range(0, 2 * PER):
            for x in A.gap[g]:
                if x.text.startswith("v_add_f32") and not x.it and int(x.text.split("v")[-1]) < vS + 16 and g < PER - 4 + 1: Z.put(g, Item(x.text, "v"))
        for n in range(1, 18):
            tl_ = LAST_TILE[n - 9] if n >= 9 else UNIT_TILE[n]
            sb = vS + 16 * (n & 1); l = vL + 8 * tl_
            for j in range(8):
                g = PER * (n - 1) + cfg.e0 + 2 * j + 1
                Z.put_win(g, min(PER * (n + 1) - 4, g + 30 if n == 9 else 10**6), Item(f"v_add_f32 v{l+(j&1)}, v{l+(j&1)}, v{sb+j}", "v"), pack=True)
    tags = {}
    def zput(lo, hi, text, kind, tag=None, pack=True, cap=CAP):
        if tag: tags[text] = tag
        return Z.put_win(lo, hi, Item(text, kind), pack=pack, cap=cap)
    def zf(lo, text, kind, tag=None, w=2):
        if tag: tags[text] = tag
        lo = min(lo, NP - 1)
        g = min(range(lo, min(lo + w, NP)), key=lambda x: (Z.cost[x] + (4 if kind in ("ds", "dma") and any(y.kind == "t" for y in Z.gap[x]) else 0), x))
        Z.put(g, Item(text, kind)); return g
    if cfg.v7step:
        seqv = []
        for g in range(0, G0):
            keep = []
            for x in Z.gap[g]:
                if x.text.endswith("; V7") or (x.kind == "s" and "m0" in x.text): seqv.append(x); Z.cost[g] -= x.cost
                else: keep.append(x)
            Z.gap[g] = keep
        g = 1; pre_ = []
        for x in seqv:
            if x.kind == "s": pre_.append(x.text); continue
            g = zf(g, x.text, "dma")
            for l in pre_: Z.put(g - 1, Item(l, "s"))
            pre_ = []; g += cfg.v7step
    vXw, vXr, vF, vFw = T, T + 1, 242, T + 3
    ad = [f"s_lshl_b32 s{sT0}, s{sW}, 14", f"s_lshr_b32 s{sT1}, s{sW}, 1", f"s_mul_i32 s{sT1}, s{sT1}, {KR[0] - 32768}", f"s_add_u32 s{sT0}, s{sT0}, s{sT1}",
          f"v_add_u32 v{vXw}, s{sT0}, v{vLn}", f"s_lshl_b32 s{sT0}, s{sW}, 11", f"v_add_u32 v{vXr}, s{sT0}, v{vLn}", f"v_add_u32 v{vXr+1}, {KR[0]}, v{vXr}",
          f"v_lshlrev_b32 v{vF}, 2, v0", f"v_add_u32 v{vF}, {LS[1]}, v{vF}", f"v_add_u32 v{vFw}, s{sW8}, v{vF}",
          f"s_lshl_b32 s{sT1}, s{sH}, 12", f"s_lshl_b32 s{sT3}, s{sW}, 10", f"s_add_u32 s{sT3}, s{sT3}, s{sT1}", f"s_add_u32 s{sT3}, s{sT3}, {16*131072}",
          f"s_lshl_b32 s{sT0}, s{sW}, 19", f"s_add_u32 s{sT0}, s{sT0}, s{sT1}", f"s_add_u32 s{sT1}, s{sT3}, 131072"]
    XOFF = 0x1400000
    sXs, sXr = sVo, sVo + 1
    su = [f"s_lshl_b32 s{sT1}, s{sW}, 19", f"s_lshl_b32 s{sT0}, s{sOdd}, 21", f"s_or_b32 s{sT1}, s{sT1}, s{sT0}",
          f"s_mov_b32 s{sD}, s{sPTR+8}", f"s_mov_b32 s{sD+1}, s{sPTR+9}", f"s_mov_b32 s{sD+2}, 4194304", f"s_mov_b32 s{sD+3}, 0x20000",
          f"s_lshr_b32 s{sPfo}, s2, 3", f"s_lshl_b32 s{sPfo}, s{sPfo}, 13", f"s_add_u32 s{sPfo}, s{sPfo}, s{sT1}",
          f"s_and_b32 s{sPfr}, s2, {4 if cfg.xrot else 0}", f"s_lshl_b32 s{sPfr}, s{sPfr}, 16", f"v_lshlrev_b32 v{vPfo}, 7, v0"]
    if cfg.cpf2:
        su += [f"s_getpc_b64 s[{sCP}:{sCP+1}]", "L_pc1:", f"s_add_u32 s{sCP}, s{sCP}, {'L_tail-L_pc1' if cfg.cpf2 == 1 else 0}", f"s_addc_u32 s{sCP+1}, s{sCP+1}, 0",
               f"s_lshr_b32 s{sT2}, s2, 3", f"s_lshl_b32 s{sT2}, s{sT2}, 2", f"s_add_u32 s{sT2}, s{sT2}, s{sW}", f"s_lshl_b32 s{sT2}, s{sT2}, 6",
               f"v_min_u32 v11, {1 if cfg.cpf2 == 1 else 2}, v0", f"v_lshlrev_b32 v11, 13, v11", f"v_add_u32 v11, s{sT2}, v11"]
    su += ["PF", f"s_and_b32 s{sR4}, s{sCg}, {cfg.orot}", f"s_lshl_b32 s{sR4}, s{sR4}, 15", f"s_or_b32 s{sR4}, s{sR4}, s{sT1}"]
    if cfg.xrot: su += [f"s_and_b32 s{sT1}, s2, 6", f"s_lshl_b32 s{sT1}, s{sT1}, 16", f"s_xor_b32 s{sR4}, s{sR4}, s{sT1}"]
    wo_voff(su.append, vKv, vT); wo_srd(su.append, sK)
    kg, r4, c4, tA, tB = vT, vT+1, vT+2, vT+3, vT+4
    su += [f"v_lshrrev_b32 v{kg}, 4, v0", f"v_bfe_u32 v{r4}, v0, 2, 2", f"v_and_b32 v{c4}, 3, v0",
           f"v_and_b32 v{tA}, 1, v{kg}", f"v_lshl_add_u32 v{tA}, v{tA}, 2, v{r4}", f"v_lshrrev_b32 v{tB}, 1, v{tA}", f"v_lshlrev_b32 v{tB}, 5, v{tB}",
           f"v_lshl_add_u32 v{tB}, v{tA}, 7, v{tB}", f"v_lshrrev_b32 v{tA}, 1, v{kg}", f"v_lshl_add_u32 v{tB}, v{tA}, 10, v{tB}",
           f"v_lshl_add_u32 v{tB}, v{c4}, 3, v{tB}", f"v_add_u32 v{vRa}, s{sW8}, v{tB}", f"s_lshl_b32 s{sT1}, s{sW}, 5", f"v_xor_b32 v{vRa}, s{sT1}, v{vRa}"]
    su += [f"v_xor_b32 v{vRa+nt}, {32*nt}, v{vRa}" for nt in range(1, 4)]
    su += [f"v_add_u32 v{vRa+4*s_+nt}, {65536*s_}, v{vRa+nt}" for s_ in range(1, 3) for nt in range(4)]
    su += ["v_lshlrev_b32 v10, 4, v0"]
    g = 2
    for l in su:
        if l == "PF":
            gsu = g
            if cfg.cpf2: zf(max(gsu, cfg.cpos), f"global_load_dword v{vPfd}, v11, s[{sCP}:{sCP+1}]", "dma")
            gp = gsu
            for i, x in enumerate(cfg.pfpos.split(",") if cfg.wopf else []):
                gp = zf(max(int(x), gp + 2), f"buffer_load_dword v{vPfd}, v{vPfo}, s[{sD}:{sD+3}], s{sPfx} offen ; pf{i}", "dma")
                for l_ in (f"s_xor_b32 s{sPfx}, s{sPfo}, s{sPfr}", f"s_add_u32 s{sPfo}, s{sPfo}, 262144"): Z.put(gp - 1, Item(l_, "s"))
        elif l.startswith("v_"): g = zput(g, g + 12, l, "v", pack=False) + 1
        else: Z.put(g, Item(l, "s"))
    if cfg.flags:
        for l in [f"s_or_b32 s99, s{sW}, s{sRedo}", "s_cbranch_scc1 L_nocnt", f"v_mov_b32 v{vR+2}, 0", f"v_mov_b32 v{vR+3}, 1", "s_mov_b64 exec, 1",
                  f"global_atomic_add v{vR+2}, v{vR+3}, s[{sPTR+12}:{sPTR+13}] ; wave 0", "s_mov_b64 exec, -1", "s_nop 3", "L_nocnt:"]: Z.put(cfg.cntat, Item(l, "s"))
        for l in [f"s_cmp_lg_u32 s{sW}, 0", "s_cbranch_scc1 L_noget", f"v_mov_b32 v{vPfo}, 0", "s_mov_b64 exec, 1",
                  f"global_load_dword v{vPfo}, v{vPfo}, s[{sPTR+12}:{sPTR+13}] sc1 ; wave 0", "s_mov_b64 exec, -1", "s_nop 3", "L_noget:"]: Z.put(cfg.cntpos, Item(l, "s"))
    gp = max(g, cfg.ppos)
    for l in [f"s_add_u32 s{sV}, s{sPTR+14}, {XOFF}", f"s_addc_u32 s{sV+1}, s{sPTR+15}, 0", f"s_mov_b32 s{sV+2}, {256*20480}", f"s_mov_b32 s{sV+3}, 0x20000",
              f"s_mul_i32 s{sXr}, s2, 20480", f"s_mul_i32 s{sT0}, s{sW}, 5120", f"s_add_u32 s{sXr}, s{sXr}, s{sT0}",
              f"s_xor_b32 s{sXs}, s2, 1", f"s_mul_i32 s{sXs}, s{sXs}, 20480", f"s_add_u32 s{sXs}, s{sXs}, s{sT0}", f"s_add_u32 s{sT0}, s{sXr}, 4096"]: Z.put(gp, Item(l, "s"))
    for i in range(4): gp = zf(gp, f"v_mov_b32 v{vR+i}, -1", "v") + 1
    for i in range(0 if cfg.nopoison else 5):
        gp = zf(gp + 1, f"buffer_store_dwordx4 {vr(vR,4)}, v10, s[{sV}:{sV+3}], s{sXr if i < 4 else sT0} offen offset:{1024*(i&3)} sc1 ; mark {i}", "dma") + 1
    assert gp < G0 - 4
    g = G0 + 20
    for l in ad:
        if l.startswith("v_"): g = zput(g, g + 12, l, "v", pack=False) + 1
        else: Z.put(g, Item(l, "s"))
    def burst(g, lines):
        for l in lines: Z.put(g, Item(l, "v"))
    def pk(b, r):
        return f"v_pk_mul_f32 {vr(b,2)}, {vr(b,2)}, {vr(r & ~1,2)} op_sel:[0,{r & 1}] op_sel_hi:[1,{r & 1}]"
    sFl = sVm
    g = cfg.xw0 or PER * 9 + 16 + NPV + 6
    if cfg.hyb: burst(g, [f"v_add_f32 v{vL+16}, v{vL+16}, v{vL+16+1}", f"v_mov_b32 v{vL+18}, v{vL+16}", "s_nop 1", f"v_permlane32_swap_b32 v{vL+16}, v{vL+18}", f"v_add_f32 v{vL+16}, v{vL+16}, v{vL+18}",
               f"v_mov_b32 v{vL+18}, v{vL+16}", "s_nop 1", f"v_permlane16_swap_b32 v{vL+16}, v{vL+18}", f"v_add_f32 v{vL+16}, v{vL+16}, v{vL+18}"])
    for i in range(16): g = zf(g, f"ds_write_b128 v{vXw}, {ar(aO+128+4*i,4)} offset:{1024*i}", "ds") + 1
    g = zf(g, f"ds_write_b32 v{vFw}, v{vL+16}", "ds"); g = zf(g, f"ds_write_b32 v{vFw}, v{vL+20} offset:256", "ds")
    Z.put(g - 4, Item(f"s_mov_b32 s{sKd}, {LTHRESH:#x}", "s"))
    g = zf(g, f"v_add_f32 v{vR+4}, v{vL+16}, v{vL+20}", "v") + 1
    g = zf(g, f"v_cmp_nge_f32 s[{sFl}:{sFl+1}], s{sKd}, v{vR+4}", "v")
    XA = g + 7
    Z.put(XA, Item("s_waitcnt lgkmcnt(0)", "s")); Z.put(XA, Item("s_barrier", "s"))
    bA = [vQ + 64 + 4 * i for i in range(4)]; bB = [vQ + 80 + 4 * i for i in range(4)]; bC = [vNM + 16, vNM + 20, vL + 16, vL + 20]
    lr = [[236, 237, 238, 239], [5, 6, 7, 8]]
    def prd(wv, dst): return [f"ds_read_b128 {vr(dst[i],4)}, v{vXr+(wv>>1)} offset:{16384*(wv&1)+8192*(i>>1)+1024*(i&1)}" for i in range(4)]
    def padd(d, x): return [f"v_pk_add_f32 {vr(d[i]+r,2)}, {vr(d[i]+r,2)}, {vr(x[i]+r,2)}" for i in range(4) for r in (0, 2)]
    g = XA
    rd = prd(0, bA) + prd(1, bB) + prd(2, bC) + [f"ds_read_b32 v{lr[j][wv]}, v{vF} offset:{8192*wv+256*j}" for wv in range(4) for j in range(2)]
    for i, r in enumerate(rd): g = zf(g + (i & 1), r, "ds")
    gt = g + 1
    g = gt + 8
    while any(y.kind == "t" for y in Z.gap[g]): g += 1
    burst(g, padd(bA, bB))
    g3 = g + 1
    for i, r in enumerate(prd(3, bB)): g3 = zf(g3 + (i & 1), r, "ds")
    g += 2
    lsum = []
    for j in range(2):
        x = lr[j]; lsum += [f"v_add_f32 v{x[0]}, v{x[0]}, v{x[1]}", f"v_add_f32 v{x[2]}, v{x[2]}, v{x[3]}", f"v_add_f32 v{x[0]}, v{x[0]}, v{x[2]}"]
    burst(g, padd(bA, bC) + lsum + [f"v_rcp_f32 v{lr[0][0]}, v{lr[0][0]}", f"v_rcp_f32 v{lr[0][1]}, v{lr[1][0]}"])
    XB = g3 + 9
    while any(y.kind == "t" for y in Z.gap[XB]): XB += 1
    Z.put(XB, Item("s_waitcnt lgkmcnt(0)", "s")); Z.put(XB, Item("s_barrier", "s"))
    burst(XB, padd(bA, bB) + [pk(bA[i] + r, lr[0][i >> 1]) for i in range(4) for r in (0, 2)]
          + [f"v_cvt_pk_bf16_f32 v{bB[0]+i}, v{bA[0]+2*i}, v{bA[0]+2*i+1}" for i in range(8)])
    g = XB
    for j in range(2):
        d = f"buffer_store_dwordx4 {vr(bB[j],4)}, v{vLn}, s[{sO}:{sO+3}], s{sT3 if j == 0 else sT1} offen{cfg.st_sc}"
        g = zf(g + 1, d, "dma", tag=("prov", "st"))
    GS = g + 2
    free = [(cfg.d0, 0)] + [(XB + 1, i) for i in (1, 2, 3, 4, 5)] + [(B7 + 1, i) for i in (6, 7, 8, 9)]
    ravail = [XA] * 4 + [GS] * 2 + [CUT - 16, CUT - 16]
    gd = cfg.d0; gtr = gt + 1; nxt = 0; pend = []; ntr = 0; LSOF.clear()
    while True:
        free.sort()
        t0 = max(gd, free[0][0]) if free else 10**6
        if pend and ntr < len(ravail):
            tt = max(pend[0][1] + cfg.land, ravail[ntr], gtr)
            if tt <= t0 and tt + 8 < NP:
                st, gi = pend.pop(0); g = tt
                for i, r in enumerate(tr_reads(st)): g = zf(g + (i & 1), r, "ds", tag=("need", ("w", st)) if i == 0 else None)
                gtr = g + 1; free.append((g + 8, LSOF[st])); ntr += 1
                continue
        if t0 + 8 >= NP or nxt >= NW: break
        gf, sl = free.pop(0); LSOF[nxt] = sl
        w_ = wo_dma(nxt)
        if any(LSOF.get(x) == sl for x in range(nxt)): w_[0] = ([f"s_waitcnt lgkmcnt(15) ; slot {nxt}"] + w_[0][0], w_[0][1])
        g = t0
        for q, (p_, d) in enumerate(w_):
            g = zf(g, d, "dma", tag=("prov", ("w", nxt)), w=2 if t0 + 12 < NP else 1)
            for l in p_: Z.put(g - 1, Item(l, "s"))
            g += 2 if t0 + 12 < NP else 1
        pend.append((nxt, g)); gd = max(t0 + cfg.dstep, g); nxt += 1
    free = [x[1] for x in sorted(free)]
    sys.stderr.write(f"last stage: XA {XA} XB {XB} GS {GS}; wo steps issued {nxt}, in registers {ntr}; overflow {sum(max(0, c - CAP) for c in Z.cost)}\n")
    E("L_last:")
    if cfg.pstamp:
        for i_, g_ in enumerate((0, G0 + 1, XB + 1, B7 + 1)): Z.put(g_, Item(f"s_memtime s[{sST2+2*i_}:{sST2+2*i_+1}]", "s"))
    seq = Z.linear(0, NP)
    seq2 = lgkm_waits([(g - N, k, l) for g, k, l in body if g >= bar[1] and not l.startswith("SWITCH")] + [(-1, "x", "MARK:")] + seq)
    seq2 = seq2[[x[2] for x in seq2].index("MARK:") + 1:]
    dsq = []
    for g, k, l in seq2:
        if "; slot" in l:
            st = int(l.split()[-1]); prev = max(x for x in range(st) if LSOF[x] == LSOF[st])
            idx = max(i for i, x in enumerate(dsq) if x.endswith(f"wo step {prev}"))
            l = f"s_waitcnt lgkmcnt({min(15, len(dsq) - 1 - idx)})"
        if l.startswith("ds_"): dsq.append(l)
        if l.endswith("; V7"): tags[l] = ("prov", "V7")
        if "vmcnt(V7)" in l: l = vwait("V7") + " lgkmcnt(0)"
        tg = tags.get(l)
        if tg and tg[0] == "need": E(vwait(tg[1]))
        E(l, tg[1] if tg and tg[0] == "prov" else None)
    E("L_tail:")
    stamp(ep, 4)
    if cfg.hyb:
        r0 = [f"v_add_f32 v{vL}, v{vL}, v{vL+1}", f"v_mov_b32 v{vL+2}, v{vL}", "s_nop 1", f"v_permlane32_swap_b32 v{vL}, v{vL+2}", f"v_add_f32 v{vL}, v{vL}, v{vL+2}",
               f"v_mov_b32 v{vL+2}, v{vL}", "s_nop 1", f"v_permlane16_swap_b32 v{vL}, v{vL+2}", f"v_add_f32 v{vL}, v{vL}, v{vL+2}"]
        r1 = [f"v_add_f32 v{vL+8}, v{vL+8}, v{vL+8+1}", f"v_mov_b32 v{vL+10}, v{vL+8}", "s_nop 1", f"v_permlane32_swap_b32 v{vL+8}, v{vL+10}", f"v_add_f32 v{vL+8}, v{vL+8}, v{vL+10}",
               f"v_mov_b32 v{vL+10}, v{vL+8}", "s_nop 1", f"v_permlane16_swap_b32 v{vL+8}, v{vL+10}", f"v_add_f32 v{vL+8}, v{vL+8}, v{vL+10}"]
        for x, y in zip(r0, r1):
            if x.startswith("v_"): E(x); E(y)
    for qt in range(4): E(f"v_rcp_f32 v{vR+qt}, v{vL+4*qt}")
    chk = [f"s_mov_b32 s{sT3}, {LTHRESH:#x}",
           f"v_add_f32 v{T}, v{vL}, v{vL+4}", f"v_add_f32 v{T+1}, v{vL+8}, v{vL+12}",
           f"v_add_f32 v{T}, v{T}, v{T+1}", f"v_cmp_nge_f32 vcc, s{sT3}, v{T}",
           f"v_lshlrev_b32 v{vF}, 2, v0", f"v_add_u32 v{vF}, {{FL}}, v{vF}", f"v_add_u32 v{T+1}, s{sW8}, v{vF}",
           f"s_or_b64 vcc, vcc, s[{sFl}:{sFl+1}]", f"s_cselect_b32 s{sT3}, 1, 0", f"v_mov_b32 v{T+2}, s{sT3}"]
    todo = [st for st, gi in pend]
    fl = 220
    if free: FS = free.pop(0); first = []
    else: first = [todo.pop(0)]; FS = LSOF[first[0]]
    for k in range(16):
        qt, kc = k >> 2, k & 3
        b0 = 108 + 12 * (k % 2)
        if k == 0:
            for st in first: emit_tr(st); ntr += 1
        if k == 3:
            E("s_waitcnt lgkmcnt(0)"); E("s_barrier")
            for wv in range(4): E(f"ds_read_b32 v{fl+wv}, v{vF} offset:{8192*wv}")
        if k == 4:
            E("s_waitcnt lgkmcnt(0)")
            E(f"v_or_b32 v{fl}, v{fl}, v{fl+1}"); E(f"v_or3_b32 v{fl}, v{fl}, v{fl+2}, v{fl+3}")
            E(f"v_readfirstlane_b32 s{sT2}, v{fl}")
            E(f"s_andn2_b32 s{sT2}, s{sT2}, s{sRedo}"); E(f"s_cmp_lg_u32 s{sT2}, 0"); E("s_cbranch_scc1 L_fallback")
        if k >= 5 and todo and todo[0] < 16:
            st = todo.pop(0); emit_tr(st); free.append(LSOF[st]); ntr += 1
        for i in range(8): E(f"v_accvgpr_read_b32 v{b0+i}, a{aO+32*qt+8*kc+i}")
        for i in range(4): E(pk(b0 + 2 * i, vR + qt))
        for i in range(4): E(f"v_cvt_pk_bf16_f32 v{b0+8+i}, v{b0+2*i}, v{b0+2*i+1}")
        E(f"buffer_store_dwordx4 {vr(b0+8,4)}, v{vLn}, s[{sO}:{sO+3}], s{sT0} offen offset:{1024*kc}{cfg.st_sc}", "st")
        if kc == 3 and qt < 3: E(f"s_add_u32 s{sT0}, s{sT0}, 131072")
        if k == 1:
            for l in chk: E(l.replace("{FL}", str(LS[FS])))
            E("s_waitcnt lgkmcnt(0)"); E(f"ds_write_b32 v{T+1}, v{T+2}")
    stamp(ep, 5)
    E("s_waitcnt lgkmcnt(0)")
    for _ in range(cfg.npost):
        if nxt < NW: LSOF[nxt] = free.pop(0); emit_dma(nxt); todo.append(nxt); nxt += 1
    E(f"s_mov_b32 s{sD}, s{sPTR+12}"); E(f"s_mov_b32 s{sD+1}, s{sPTR+13}"); E(f"s_mov_b32 s{sD+2}, 256"); E(f"s_mov_b32 s{sD+3}, 0x20000")
    E(f"s_lshl_b32 s{sT0}, s{sMt}, 17"); E(f"s_add_u32 s{sX}, s{sPTR+14}, s{sT0}"); E(f"s_addc_u32 s{sX+1}, s{sPTR+15}, 0")
    E(f"s_mov_b32 s{sX+2}, {9*131072}"); E(f"s_mov_b32 s{sX+3}, 0x20000")
    E(f"s_lshl_b32 s{sT0}, s{sMt}, 14"); E(f"s_add_u32 s{sWQ}, s{sPTR+10}, s{sT0}"); E(f"s_addc_u32 s{sWQ+1}, s{sPTR+11}, 0")
    E(f"s_mov_b32 s{sWQ+2}, {9*16384}"); E(f"s_mov_b32 s{sWQ+3}, 0x20000")
    vOo = 220
    E(f"v_mov_b32 v{vZ}, 0"); E(f"v_mov_b32 v{T}, 1"); E(f"s_mul_i32 s{sT2}, s{sOdd}, {5*131072}")
    E(f"v_add_u32 v{vOo}, s{sT2}, v{vLn}"); E(f"v_add_u32 v{vOo+4}, {4*131072}, v{vLn}"); E(f"v_subrev_u32 v{vOo+5}, s{sT2}, v{vLn}"); E(f"v_add_u32 v{vOo+5}, {5*131072}, v{vOo+5}")
    for i in range(1, 4): E(f"v_add_u32 v{vOo+i}, {131072*i}, v{vOo}"); E(f"v_add_u32 v{vOo+5+i}, {131072*i}, v{vOo+5}")
    sPo = sXm
    E(f"s_lshr_b32 s{sPo}, s{sR4}, 5")
    E(f"s_lshl_b32 s{sT0}, s{sB}, 1"); E(f"s_lshr_b32 s{sT1}, s{sH}, 4"); E(f"s_add_u32 s{sT0}, s{sT0}, s{sT1}"); E(f"s_lshl_b32 s{sT0}, s{sT0}, 4")
    E(f"s_lshl_b32 s{sT1}, s{sRg}, 1"); E(f"s_add_u32 s{sT1}, s{sT1}, s{sOdd}"); E(f"s_lshl_b32 s{sT1}, s{sT1}, 4")
    E(f"v_mov_b32 v{T+1}, s{sT0}"); E(f"v_writelane_b32 v{T+1}, s{sT1}, 0")
    E(f"s_lshl_b32 s{sT2}, s{sB}, 5"); E(f"s_add_u32 s{sT2}, s{sT2}, s{sH}")
    if cfg.flags:
        E(f"s_lshl_b32 s{sT1}, s{sT1}, {cfg.fstr - 4}"); E(f"s_add_u32 s{sT1}, s{sT1}, {FLAG_OFF}"); E(f"s_xor_b32 s{sT0}, s{sFo}, 16")
        E(f"v_lshlrev_b32 v{T+1}, 2, v0"); E(f"v_add_u32 v{T+1}, s{sT1}, v{T+1}"); E(f"v_mov_b32 v{T+2}, s{sT0}"); E(f"v_cmp_gt_u32 vcc, 16, v0")
        E(f"v_cndmask_b32 v{T+1}, v{T+2}, v{T+1}, vcc"); E(f"v_mov_b32 v{T+2}, s{sFo}")
    E(vwait("st")); E("s_barrier")
    E(f"s_cmp_lg_u32 s{sW}, 0"); E("s_cbranch_scc1 L_nosig")
    E("s_mov_b64 exec, 1")
    if cfg.flags: ep.append(f"global_store_dword v{T+2}, v{T}, s[{sPTR+14}:{sPTR+15}] sc1")
    elif cfg.bflag: ep.append(f"buffer_store_byte v{T}, v{vZ}, s[{sD}:{sD+3}], s{sT2} offen sc1")
    else: ep.append(f"buffer_atomic_add v{T}, v{vZ}, s[{sD}:{sD+3}], s{sT0} offen")
    E("s_mov_b64 exec, -1")
    E("L_nosig:")
    hist.append("sig")
    stamp(ep, 6)
    if cfg.cpf3:
        E(f"s_getpc_b64 s[{sCP}:{sCP+1}]"); E(f"v_min_u32 v{T+9}, 1, v0"); E(f"v_lshlrev_b32 v{T+9}, 13, v{T+9}")
        E(f"s_lshr_b32 s{sT2}, s2, 3"); E(f"s_lshl_b32 s{sT2}, s{sT2}, 2"); E(f"s_add_u32 s{sT2}, s{sT2}, s{sW}"); E(f"s_lshl_b32 s{sT2}, s{sT2}, 6")
        E(f"v_add_u32 v{T+9}, s{sT2}, v{T+9}"); E(f"v_min_u32 v{T+9}, L_end-L_nosig, v{T+9}")
        E(f"global_load_dword v{T+9}, v{T+9}, s[{sCP}:{sCP+1}]")
    free.append(FS)
    while nxt < NW:
        LSOF[nxt] = free.pop(0); emit_dma(nxt); todo.append(nxt); nxt += 1
    late_tr = list(todo)
    sys.stderr.write(f"wo steps still to be read into registers after the signal: {late_tr}\n")
    if cfg.trpre:
        for st in late_tr: emit_tr(st)
        late_tr = []
    stamp(ep, 7)
    E(f"s_cmp_lg_u32 s{sW}, 0"); E("s_cbranch_scc1 L_ready")
    E(f"s_mov_b32 s{sCnt}, 0x40000")
    if cfg.flags:
        E("L_cnt:")
        E(f"v_readfirstlane_b32 s{sT0}, v{vPfo}"); E(f"s_sub_u32 s{sCnt}, s{sCnt}, 1"); E(f"s_cmp_eq_u32 s{sCnt}, 0"); E("s_cbranch_scc1 L_ready")
        E(f"s_cmp_ge_u32 s{sT0}, 256"); E("s_cbranch_scc1 L_cntok")
        E("s_sleep 16"); ep.append(f"global_load_dword v{vPfo}, v{vZ}, s[{sPTR+12}:{sPTR+13}] sc1"); E("s_waitcnt vmcnt(0)"); E("s_branch L_cnt")
        E("L_cntok:")
    E(f"s_mov_b64 exec, {0x1ffff if cfg.flags else 3:#x}")
    E("L_poll:")
    if cfg.flags:
        ep.append(f"global_load_dword v{T+3}, v{T+1}, s[{sPTR+14}:{sPTR+15}] sc1")
        E("s_waitcnt vmcnt(0)"); E(f"v_cmp_ne_u32 vcc, 1, v{T+3}")
    elif cfg.bflag:
        ep.append(f"buffer_load_dwordx4 {vr(T+4,4)}, v{T+1}, s[{sD}:{sD+3}], 0 offen sc1")
        E("s_waitcnt vmcnt(0)"); E(f"v_and_b32 v{T+4}, v{T+4}, v{T+5}"); E(f"v_and_b32 v{T+6}, v{T+6}, v{T+7}"); E(f"v_and_b32 v{T+4}, v{T+4}, v{T+6}")
        E(f"v_cmp_ne_u32 vcc, 0x01010101, v{T+4}")
    else:
        ep.append(f"buffer_load_dword v{T+3}, v{T+1}, s[{sD}:{sD+3}], 0 offen sc1")
        E("s_waitcnt vmcnt(0)"); E(f"v_cmp_gt_u32 vcc, 16, v{T+3}")
    E(f"s_sub_u32 s{sCnt}, s{sCnt}, 1"); E(f"s_cmp_eq_u32 s{sCnt}, 0"); E("s_cbranch_scc1 L_got")
    E("s_cmp_eq_u64 vcc, 0"); E("s_cbranch_scc1 L_got")
    E(f"s_sleep {cfg.sleep}"); E("s_branch L_poll")
    E("L_got:"); E("s_mov_b64 exec, -1")
    E("L_ready:")
    E("s_barrier")
    stamp(ep, 8); stamp(ep, 5, True)
    TM = 12
    TORD = [4, 5, 6, 7, 8, 0, 1, 2, 3]
    uses = [(st, t) for st in range(TM) for t in range(9)] + [(st, t) for t in TORD for st in range(TM, 16)]
    OB = [("a", 108 + 4 * i) for i in range(5)] + [("v", 44 + 4 * i) for i in range(8)] + [("v", 144 + 4 * i) for i in range(3)]
    LAT = cfg.LAT; assert LAT + cfg.og + 1 <= len(OB) and LAT >= 2 * cfg.og - 1
    ob = lambda u: (vr if OB[u % len(OB)][0] == "v" else ar)(OB[u % len(OB)][1], 4)
    acc = lambda t, j: vr(108 + 4 * t, 4) if j == 0 else ar(12 * t + 4 * (j - 1), 4)
    sS = [sKo, sKo + 1, sKs, sVs]
    def oload(u):
        st, t = uses[u]
        pre = [f"s_xor_b32 s{sS[st & 3]}, s{sPo}, {1024*st}"] if (st, t) == next(x for x in uses if x[0] == st) else []
        return pre, f"buffer_load_dwordx4 {ob(u)}, v{vOo+t}, s[{sX}:{sX+3}], s{sS[st & 3]} offen{cfg.ld_sc} ; o {u}"
    for u in range(LAT):
        for l in flat([oload(u)]): E(l, ("o", u))
    NM = 4 * len(uses)
    SO = Sched(NM); tags = {}
    for u, (st, t) in enumerate(uses):
        for j in range(4):
            SO.mf[4*u + j] = Item(f"{MF} {acc(t,j)}, {rreg(st, j)}, {ob(u)}, {'0' if st == 0 else acc(t,j)} ; o {u}", "mf")
        if u + LAT < len(uses):
            p_, d = oload(u + LAT); tags[d] = ("prov", ("o", u + LAT))
            gl = 4 * (u - u % cfg.og) + (1 if cfg.og == 1 else u % cfg.og)
            for l in p_: SO.put(max(gl - 1, 0) if gl else 0, Item(l, "s"))
            SO.put(gl, Item(d, "dma"))
    g = 2
    for st in late_tr:
        for k_, r in enumerate(tr_reads(st)):
            while SO.cost[g] > 4: g += 1
            SO.put(g, Item(r, "ds")); g += (2 if k_ & 1 else 0)
            if k_ == 0: tags[r] = ("need", ("w", st))
        assert g < 36 * st - 8
    tL, tH, r1, r2l, r2h, r3, va = 229, 230, 231, T + 4, T + 5, T + 6, T + 7
    ad = [f"v_add_u32 v{tL}, s{sW8}, v{vLn}", f"v_add_u32 v{tH}, 65536, v{tL}", f"v_xor_b32 v{r1}, 8192, v{tL}", f"v_xor_b32 v{r2l}, 16384, v{tL}",
          f"v_xor_b32 v{r2h}, 16384, v{tH}", f"v_xor_b32 v{r3}, 24576, v{tH}",
          f"v_and_b32 v{va}, 15, v0", f"v_lshlrev_b32 v{va}, 10, v{va}", f"v_lshrrev_b32 v{va+1}, 4, v0", f"v_lshl_add_u32 v{va}, v{va+1}, 3, v{va}",
          f"s_lshl_b32 s{sT0}, s{sCg}, 7", f"s_lshl_b32 s{sT1}, s{sW}, 5", f"s_add_u32 s{sT0}, s{sT0}, s{sT1}", f"s_add_u32 s{sT3}, s{sT0}, {4*16384}",
          f"s_mul_i32 s{sT1}, s{sOdd}, {5*16384}", f"s_add_u32 s{sT0}, s{sT0}, s{sT1}", f"s_add_u32 s{sT1}, s{sXs}, 4096", f"s_add_u32 s{sT2}, s{sXr}, 4096"]
    g = 36 * 9 + 2
    for l in ad:
        if l.startswith("v_"): SO.put(g, Item(l, "v")); g += 4
        else: SO.put(g, Item(l, "s"))
    SO.put(36 * TM - 4, Item("s_waitcnt lgkmcnt(0)", "s"))
    def loc(j, t): n = (j - 1) * 9 + t; return n // 8, (n // 8 & 1) * 32768 + (n % 8) * 1024
    def wr(j, t): r_, o_ = loc(j, t); return f"ds_write_b128 v{tL if r_ < 2 else tH}, {acc(t,j)} offset:{o_}"
    def rd(j, t, dst):
        r_, o_ = loc(j, t); a_ = {1: r1, 2: r2l if r_ < 2 else r2h, 3: r3}[j]
        assert (j != 1 or r_ < 2) and (j != 3 or r_ >= 2)
        return f"ds_read_b128 {vr(dst,4)}, v{a_} offset:{o_}"
    late = []
    for i, t in enumerate(TORD):
        for j in range(1, 4):
            gg = 36 * TM + 16 * i + 12 + j + 9 + (j - 1)
            if gg < NM: SO.put(gg, Item(wr(j, t), "ds"))
            else: late.append(wr(j, t))
    tmp = [76 + 4 * i for i in range(8)] + [156 + 4 * i for i in range(8)]
    def sums(t, b):
        a0 = 108 + 4 * t
        return [f"v_pk_add_f32 {vr(a0+r,2)}, {vr(a0+r,2)}, {vr(b[0]+r,2)}" for r in (0, 2)] + [f"v_pk_add_f32 {vr(b[1]+r,2)}, {vr(b[1]+r,2)}, {vr(b[2]+r,2)}" for r in (0, 2)] \
             + [f"v_pk_add_f32 {vr(a0+r,2)}, {vr(a0+r,2)}, {vr(b[1]+r,2)}" for r in (0, 2)]
    X1 = 36 * TM + 16 * 4 + 12 + 3 + 9 + 2 + cfg.x1d
    SO.put(X1, Item("s_waitcnt lgkmcnt(0)", "s")); SO.put(X1, Item("s_barrier", "s"))
    g = X1
    for i, t in enumerate(TORD[:5]):
        for j in range(1, 4): SO.put(g + (3 * i + j - 1) // 2, Item(rd(j, t, tmp[3*i+j-1]), "ds"))
    g = X1 + 14
    for i, t in enumerate(TORD[:5]):
        for l in sums(t, tmp[3*i:3*i+3]): SO.put(g, Item(l, "v"))
        d = f"buffer_store_dwordx4 {vr(108+4*t,4)}, v{vLn}, s[{sV}:{sV+3}], s{sT1 if i == 0 else sXs} offen offset:{0 if i == 0 else 1024*(i-1)} sc1 ; send {i}"
        SO.put(g + 1, Item(d, "dma")); g += 2
    assert g < NM - 2, (g, NM)
    seq = lgkm_waits(SO.linear(0, NM))
    E(vwait(("o", cfg.og - 1))); stamp(ep, 6, True)
    for idx, (g, k, l) in enumerate(seq):
        tg = tags.get(l)
        if tg and tg[0] == "need": E(vwait(tg[1]))
        E(l, tg[1] if tg and tg[0] == "prov" else None)
        if k == "mf" and g % (4 * cfg.og) == 4 * cfg.og - 1 and g < NM - 1: E(vwait(("o", g // 4 + cfg.og)))
        if k == "mf" and g == NM // 2 - 1: stamp(ep, 7, True)
        if k == "mf" and g == NM - 1: stamp(ep, 8, True)
    rcv = [44 + 4 * i for i in range(5)]
    rl = [f"buffer_load_dwordx4 {vr(rcv[i],4)}, v{vLn}, s[{sV}:{sV+3}], s{sXr if i < 4 else sT2} offen offset:{1024*(i&3)} sc1" for i in range(5)]
    for l in late: E(l)
    for l in rl: E(l)
    E("s_waitcnt lgkmcnt(0)"); E("s_barrier")
    tm2 = [156 + 4 * i for i in range(12)]
    for t in range(4):
        for j in range(1, 4): E(rd(j, t, tm2[3*t+j-1]))
    for t in range(4):
        E(f"s_waitcnt lgkmcnt({3*(3-t)})")
        for l in sums(t, tm2[3*t:3*t+3]): E(l)
    E(f"s_mov_b32 s{sCnt}, 0x40000")
    E("L_rx:")
    E("s_waitcnt vmcnt(0)")
    E(f"v_max3_u32 v{T}, v{rcv[0]}, v{rcv[0]+1}, v{rcv[0]+2}")
    for i in range(3, 19, 2): E(f"v_max3_u32 v{T}, v{T}, v{rcv[0]+i}, v{rcv[0]+i+1}")
    E(f"v_max_u32 v{T}, v{T}, v{rcv[0]+19}"); E(f"v_cmp_eq_u32 vcc, -1, v{T}")
    E(f"s_sub_u32 s{sCnt}, s{sCnt}, 1"); E(f"s_cmp_eq_u32 s{sCnt}, 0"); E("s_cbranch_scc1 L_rxd")
    E("s_cmp_eq_u64 vcc, 0"); E("s_cbranch_scc1 L_rxd")
    E(f"s_sleep {cfg.rsleep}")
    for l in rl: ep.append(l)
    E("s_branch L_rx")
    E("L_rxd:")
    for t in range(5):
        a0 = 108 + 4 * t
        for r in (0, 2): E(f"v_pk_add_f32 {vr(a0+r,2)}, {vr(a0+r,2)}, {vr(rcv[t]+r,2)}")
        E(f"v_cvt_pk_bf16_f32 v{rcv[t]}, v{a0}, v{a0+1}"); E(f"v_cvt_pk_bf16_f32 v{rcv[t]+1}, v{a0+2}, v{a0+3}")
        E(f"buffer_store_dwordx2 {vr(rcv[t],2)}, v{va}, s[{sWQ}:{sWQ+3}], s{sT0 if t < 4 else sT3} offen{cfg.out_sc}")
        if t < 3: E(f"s_add_u32 s{sT0}, s{sT0}, 16384")
    if cfg.stamp:
        vt = 156
        E("s_waitcnt vmcnt(0)")
        E(f"s_memtime s[{sST+10}:{sST+11}]"); E(f"s_memrealtime s[{sST+12}:{sST+13}]"); E("s_waitcnt lgkmcnt(0)")
        E(f"s_add_u32 s{sD}, s{sPTR+14}, 0x4000000"); E(f"s_addc_u32 s{sD+1}, s{sPTR+15}, 0")
        E(f"s_mov_b32 s{sD+2}, 0x100000"); E(f"s_mov_b32 s{sD+3}, 0x20000")
        E(f"s_lshl_b32 s{sT0}, s2, 2"); E(f"s_add_u32 s{sT0}, s{sT0}, s{sW}"); E(f"s_lshl_b32 s{sT0}, s{sT0}, 7")
        for i in range(16): E(f"v_mov_b32 v{vt+i}, s{sST+i}")
        for i in range(8): E(f"v_mov_b32 v{vt+16+i}, s{sST2+i}")
        for i in range(6): E(f"buffer_store_dwordx4 {vr(vt+4*i,4)}, v{vZ}, s[{sD}:{sD+3}], s{sT0} offen offset:{16*i}")
    E("L_end:"); E("s_endpgm")
    E("L_fallback:")
    E(f"s_mov_b32 s{sRedo}, 1"); E("s_waitcnt vmcnt(0) lgkmcnt(0)"); E("s_barrier")
    E(f"s_load_dwordx16 s[{sPTR}:{sPTR+15}], s[0:1], 0")
    E("s_branch L_restart")
    E("L_truemax:")
    for l in a2_all: E(l)
    mx = [vT + 12 + qt for qt in range(6)]
    for qt in range(6): E(f"v_mov_b32 v{mx[qt]}, 0xff800000")
    E(f"s_mov_b32 s{sCnt}, 8"); E(f"s_add_u32 s{sKm}, s{sW8}, {KR[0]}")
    E("s_waitcnt vmcnt(0) lgkmcnt(0)")
    E("L_fb_loop:")
    E("s_barrier")
    for l in flat(k_dma()) + adv(sKo, sKs): E(l)
    E("s_waitcnt vmcnt(0)"); E("s_barrier")
    for j in range(4):
        for idx in range(8): E(k_read(j, idx >> 2, idx & 3))
        E("s_waitcnt lgkmcnt(0)")
        for k16 in range(2):
            for qt in range(6):
                nb = vNM + 4 * qt
                for c in range(4):
                    E(f"{MF} {vr(nb,4)}, {ar(aK+16*k16+4*c,4)}, {vr(vQ+16*qt+4*c,4)}, {'0' if c == 0 else vr(nb,4)}")
            E("s_nop 7")
            for qt in range(6):
                nb = vNM + 4 * qt
                E(f"v_max3_f32 v{mx[qt]}, v{mx[qt]}, v{nb}, v{nb+1}"); E(f"v_max3_f32 v{mx[qt]}, v{mx[qt]}, v{nb+2}, v{nb+3}")
            E("s_nop 3")
    E(f"s_sub_u32 s{sCnt}, s{sCnt}, 1"); E(f"s_cmp_lg_u32 s{sCnt}, 0"); E("s_cbranch_scc1 L_fb_loop")
    E("s_barrier")
    E(f"s_mov_b32 s{sKo}, s{sK0}"); E(f"s_add_u32 s{sKo+1}, s{sK0}, 4096")
    for l in flat(k_dma()) + adv(sKo, sKs): E(l)
    negm(E, mx)
    E("s_waitcnt vmcnt(0)"); E("s_barrier")
    E("s_branch L_att")
    pre = [l for g, k, l in body2 if g >= N - 12 and not l.startswith("SWITCH")]
    n0_ = len(ep)
    el, _ = check_hazards(pre + ["Y:"] + ep, "ep", fix=True)
    sys.stderr.write(f"nops added after the loop: {len(el) - len(pre) - 1 - n0_}\n")
    o += el[el.index("Y:") + 1:]
    return o

def main():
    k1 = [l for l in gen() if l]
    n0 = len(k1); k1, _ = check_hazards(k1, "k1", fix=True)
    sys.stderr.write(f"{len(k1)} lines, {len(k1)-n0} nops added by final pass\n")
    hdr = open("standalone__gqa_block_cached__near_ridge.s.ref").read().split("\n")[:9]
    out = hdr + [f"; @launch grid=(256,1,1) block=(256,1,1) lds={LDS_TOTAL}",
                 '.amdgcn_target "amdgcn-amd-amdhsa--gfx950"', ".text"]
    fmt = lambda l: l if l.endswith(":") else "    " + l
    out += [f".globl {cfg.name}", ".p2align 8", f".type {cfg.name},@function"] + [fmt(l) for l in k1]
    out += ["L_code_end:"]
    if cfg.cpf: out += [f".if (L_code_end - L_pc0) < {8192*cfg.cpf_n}", '.error "code prefetch range"', ".endif"]
    if cfg.cpf2 == 2: out += [".if (L_code_end - L_pc1) < 24576", '.error "code prefetch range"', ".endif"]
    out += ['.section .rodata,"a"', ".p2align 6", f""".amdhsa_kernel {cfg.name}
  .amdhsa_next_free_vgpr 512
  .amdhsa_next_free_sgpr 102
  .amdhsa_accum_offset 256
  .amdhsa_group_segment_fixed_size 0
  .amdhsa_kernarg_size 64
  .amdhsa_user_sgpr_count 2
  .amdhsa_user_sgpr_kernarg_segment_ptr 1
  .amdhsa_system_sgpr_workgroup_id_x 1
.end_amdhsa_kernel
"""]
    open(sys.argv[1], "w").write("\n".join(out))
main()
```

```python
import sys, math, struct
from asmlib import *

class Cfg:
    name = "standalone__gqa_block_cached__near_ridge_kernel"
    stamp = False
    map_bh = "h"
    kv_nt = True; q_nt = False
    dump_q = False
    e0 = 9
    dma_step = 20.0; qstep = 5
    wowarm = 0; k0pf = 0; dm = ''; trlag = 8; npost = 3; ola = 2; ostep = 1; epi = 'mix'; qstamp = False; cpf = 1; cpf_n = 5; cpf2 = 2; qrot = 1; orot = 0; ostamp = False; krot = 0; xw0 = 0; land = 45; xcap = 12; dstep = 17; pf_end = 0; pkq = 1; epoll = 0; wwpos = 0; poll1 = 1; pflate = 1; pfk = 0; pfsh = 13; xrot = 1; qx = 0; pfcut = 0; wo_nt = False; fastred = 1; k1pos = 1; nost = 0; olay = 0; pf_nt = False; pf0 = 4; pfpos = '170,172'; ppos = 100; NW = 16; LAT = 10; trpre = 0; clrpos = 0; fsep = 7; rt = False; latew = 0; lw0 = 8; lwstep = 36; og = 1; bflag = 1; ptouch = 0; cntat = 60; nopoison = 0; x1d = 6; rsleep = 1; d0 = 370; cpos = 38; cpf3 = 1; out_sc = ''; nobar = 1; v7step = 5; qstart = 0; tlb = 0; qkord = 0; flags = 1; fstr = 11; cntpos = 470; pre_to = 26; wlag = 2; kvstep = 5; vlate = 1; qb0 = 27; hyb = 1; s0 = 1; q2step = 3; sstamp = False; pstamp = False; dgrp = 1
    wopf = 1
    opf = 0
    qpf = 0
    sleep = 4
    lstamp = False
    st_sc = " sc1"; ld_sc = " sc1"
cfg = Cfg()
for a in sys.argv[2:]:
    k, v = a.split("=")
    old = getattr(cfg, k)
    if k in ("st_sc", "ld_sc", "out_sc"): v = "".join(" " + x for x in v.split("+") if x)
    setattr(cfg, k, (v == "1") if isinstance(old, bool) else type(old)(v))

def NT(f): return " nt" if f else ""
def f2u(x): return struct.unpack("<I", struct.pack("<f", x))[0]
QSCALE = f2u(math.log2(math.e) / math.sqrt(128.0))
LTHRESH = f2u(2.0 ** (64 if cfg.s0 else 40))
MF = "v_mfma_f32_16x16x32_bf16"
CAP = 8

class Item:
    def __init__(self, text, kind, it=0):
        self.text = text; self.kind = kind; self.it = it
        self.cost = {"s": 0, "ds": 4, "v": 4, "t": 8, "dma": 8, "mf": 0}[kind]

class Sched:
    def __init__(self, n, periodic=False):
        self.n = n; self.periodic = periodic
        self.mf = [None] * n; self.gap = [[] for _ in range(n)]; self.cost = [0] * n
    def norm(self, g):
        if self.periodic: return g % self.n
        assert 0 <= g < self.n, g
        return g
    def put(self, g, item):
        g = self.norm(g); self.gap[g].append(item); self.cost[g] += item.cost
    def put_win(self, lo, hi, item, pack=False, cap=CAP):
        if not self.periodic: hi = min(hi, self.n - 1)
        cand = [g for g in range(lo, hi + 1) if self.cost[self.norm(g)] + item.cost <= cap]
        if cand:
            if pack:
                part = [g for g in cand if self.cost[self.norm(g)] > 0]
                best = part[0] if part and part[0] <= cand[0] + 3 else cand[0]
            else: best = cand[0]
        else:
            best = min(range(lo, hi + 1), key=lambda g: self.cost[self.norm(g)])
        self.put(best, item); return best
    def linear(self, lo, hi, keep=lambda it: True):
        out = []
        order = {"s": 0, "dma": 1, "ds": 1, "v": 2, "t": 2}
        for g in range(lo, hi):
            if self.mf[g] is not None and keep(self.mf[g].it): out.append((g, "mf", self.mf[g].text))
            for item in sorted(self.gap[g], key=lambda x: order[x.kind]):
                if keep(item.it): out.append((g, item.kind, item.text))
        return out

def lgkm_waits(seq, slack=6):
    out = []; q = []
    mfi = [i for i, x in enumerate(seq) if x[1] == "mf"]
    nxt = dict(zip(mfi, mfi[1:]))
    def need(use, g):
        nonlocal q
        idx = -1
        for k, (gg, regs) in enumerate(q):
            if regs & use: idx = k
        if idx >= 0:
            while idx + 1 < len(q) and q[idx + 1][0] <= g - slack: idx += 1
            n = min(len(q) - 1 - idx, 15)
            out.append((g, "s", f"s_waitcnt lgkmcnt({n})"))
            q = q[len(q) - n:] if n else []
    for i, (g, k, t) in enumerate(seq):
        ins = Ins(t)
        if ins.op == "s_waitcnt" and "lgkmcnt(0)" in t: q = []
        if ins.kind != "label": need(ins.r | ins.w, g)
        if ins.kind == "ds": q.append((g, set(ins.w)))
        out.append((g, k, t))
        if k == "mf" and i in nxt:
            n = Ins(seq[nxt[i]][2]); need(n.r | n.w, g)
    return out

sK, sV, sX, sWQ, sO, sD = 8, 12, 16, 20, 24, 28
sPTR = 32
sW, sB, sH, sT0, sT1 = 3, 4, 5, 6, 7
sKo, sVo = 48, 50
sKs, sVs = 52, 53
sVm = 54
sCnt, sRedo = 58, 59
sXo, sXm, sWo_, sWm = 60, 61, 62, 63
sT2, sQs, sT3 = 64, 65, 66
sKb, sKm, sKd, sKw = 67, 68, 69, 86
sRg, sCg, sMt, sOdd = 87, 88, 89, 90
sW8 = 91
sPfo = 101
sFo = 62
sCP = 48
sPfx, sPfr = 39, 60
sKt2 = 39
sKmask, sVmask, sK0 = 32, 33, 38
sRot, sXc = 100, 101
sR4 = 63
sKt = 100
sST = 70
sST2 = 92
vKv = 1; vVv = 5; vPfd = 9
vQ = 12; vNM = 108; vL = 132; vS = 156; vP = 188; vKa = 204; vVa = 212; vOne = 228; vT = 232
vAcc = 108
aO = 0; aK = 192; aV = 224
KR = (131072, 98304, 65536); LDS_V = (0, 32768); LDS_EX = 65536
QSLOT = (0, 53248, 106496); LDS_TOTAL = 163840
UNIT_TILE = [0, 1, 2, 0, 1, 0, 1, 0, 1]
UNIT_KT =   [0, 0, 0, 1, 1, 2, 2, 3, 3]
FLAG_OFF = 0x1300000
PER = 33 if cfg.hyb else 34
NPV = PER - 16
Q1 = NPV - 9

def stamp(o, idx, alt=False):
    if cfg.pstamp and idx >= 5: return
    if cfg.sstamp and idx >= 5:
        if alt == 2: r = sST2 + 2 * (idx - 5); o.append(f"s_memtime s[{r}:{r+1}]")
        return
    if alt == 2: return
    if idx >= 5 and alt != cfg.ostamp: return
    if cfg.stamp:
        r = sST + 2 * idx if idx < 5 else sST2 + 2 * (idx - 5)
        o.append(f"s_memtime s[{r}:{r+1}]")

def k_dma():
    r = []
    for grp in range(2):
        for q in range(4):
            pre = []
            if q == 0: pre = [f"s_mov_b32 m0, s{sKm}"] if grp == 0 else [f"s_add_u32 m0, s{sKm}, 4096"]
            off = f" offset:{1024*q}" if q else ""
            r.append((pre, f"buffer_load_dwordx4 v{vKv+q}, s[{sK}:{sK+3}], s{sKo+grp} offen{off}{NT(cfg.kv_nt)} lds"))
    return r
def v_dma(slot):
    r = []
    for grp in range(2):
        for q in range(4):
            off = f" offset:{1024*q}" if q else ""
            r.append(([f"s_mov_b32 m0, s{sVm+2*slot+grp}"] if q == 0 else [],
                      f"buffer_load_dwordx4 v{vVv+q}, s[{sV}:{sV+3}], s{sVo+grp} offen{off}{NT(cfg.kv_nt)} lds"))
    return r
def adv(base, stride):
    m = sKmask if base == sKo else sVmask
    return [f"s_add_u32 s{base}, s{base}, s{stride}", f"s_add_u32 s{base+1}, s{base+1}, s{stride}",
            f"s_and_b32 s{base}, s{base}, s{m}", f"s_and_b32 s{base+1}, s{base+1}, s{m}"]
def flat(lst):
    out = []
    for pre, d in lst: out += pre + [d]
    return out

def place_dmas(S, lst, g, step, itf=lambda g: 0, limit=None):
    for pre, d in lst:
        gg = g
        while S.cost[S.norm(gg)] > 0: gg += 1
        if limit is not None: assert gg < limit, (gg, limit)
        for p in pre: S.put(gg - 1, Item(p, "s", itf(gg - 1)))
        S.put(gg, Item(d, "dma", itf(gg)))
        g = gg + step
    return g

def k_read(j, k16, c, base=None):
    va = (vKa + 2 * j if base is None else base) + (c & 1)
    return f"ds_read_b128 {ar(aK+16*k16+4*c,4)}, v{va} offset:{k16*4096 + (c>>1)*1024}"
def v_read(j, t, jj, slot):
    imm = LDS_V[slot] + jj * 4096 + (t >> 2) * 1024
    return f"ds_read_b64_tr_b16 {ar(aV+4*t+2*jj,2)}, v{vVa+4*j+(t&3)} offset:{imm}"

BG = PER * 7 + 16
LAST_TILE = [2, 0, 1, 0, 1, 0, 1, 0, 1]
def gen_attn_sched(peel=False):
    NU = 18; N = NU * PER; CUT = 17 * PER
    S = Sched(N, periodic=True)
    tile = lambda n: (LAST_TILE[n - 9] if (peel and 9 <= n < 18) else UNIT_TILE[n % 9])
    kt = lambda n: UNIT_KT[n % 9]
    slot = lambda n: (n // 9) & 1
    last = lambda n: UNIT_KT[n % 9] != UNIT_KT[(n + 1) % 9] or n % 9 == 8
    for n in range(NU):
        u = n + 1; it = 1 if u == NU else 0
        for i in range(16):
            q, k16, c = i >> 3, (i >> 2) & 1, i & 3
            if cfg.qkord: q, k16, c = i & 1, i >> 3, (i >> 1) & 3
            qt = 2 * tile(u) + q; sb = vS + 16 * (u & 1) + 8 * q + 4 * k16
            cin = vr(vNM + 4 * qt, 4) if c == 0 else vr(sb, 4)
            S.mf[PER*n + i] = Item(f"{MF} {vr(sb,4)}, {ar(aK+16*k16+4*c,4)}, {vr(vQ+16*qt+4*c,4)}, {cin}", "mf", it)
        for i in range(NPV):
            q, t = (0, i) if i < Q1 else (1, i - Q1)
            qt = 2 * tile(n) + q; pb = vr(vP + 8 * (n & 1) + 4 * q, 4)
            if t < 8:
                o = ar(aO + 32 * qt + 4 * t, 4)
                S.mf[PER*n + 16 + i] = Item(f"{MF} {o}, {ar(aV+4*t,4)}, {pb}, {o}", "mf")
            else:
                l = vr(vL + 4 * qt, 4)
                S.mf[PER*n + 16 + i] = Item(f"{MF} {l}, {vr(vOne,4)}, {pb}, {l}", "mf")
    for n in range(1, NU + 1):
        sb = vS + 16 * (n & 1); pb = vP + 8 * (n & 1)
        itf = lambda g: 1 if (n == NU and g < N) else 0
        for j in range(16):
            g = PER * (n - 1) + cfg.e0 + 2 * j
            S.put(g, Item(f"v_exp_f32 v{sb+j}, v{sb+j}", "t", itf(g)))
            if j & 1: S.put(g + 1, Item(f"v_cvt_pk_bf16_f32 v{pb+(j>>1)}, v{sb+j-1}, v{sb+j}", "v", itf(g + 1)))
    def place_adds():
        if not cfg.hyb: return
        for n in range(1, NU + 1):
            sb = vS + 16 * (n & 1); l = vL + 8 * tile(n)
            for j in range(8):
                g = PER * (n - 1) + cfg.e0 + 2 * j + 1
                item = Item(f"v_add_f32 v{l+(j&1)}, v{l+(j&1)}, v{sb+j}", "v")
                gg = S.put_win(g, PER * (n + 1) - 4, item, pack=True)
                if n == NU and gg < N: item.it = 1
    bar = [BG, 9 * PER + BG]
    for bi, b in enumerate(bar):
        if cfg.lstamp: S.put(b, Item("s_memtime s[96:97]", "s"))
        S.put(b, Item("s_waitcnt vmcnt(8) lgkmcnt(0)", "s")); S.put(b, Item("s_barrier", "s"))
        if cfg.lstamp:
            S.put(b, Item(f"v_mov_b32 v240, s96", "s")); S.put(b, Item("s_memtime s[96:97]", "s")); S.put(b, Item("s_waitcnt lgkmcnt(0)", "s"))
            S.put(b, Item(f"v_mov_b32 v241, s96", "s"))
            S.put(b, Item(f"buffer_store_dwordx2 v[240:241], v242, s[{sX}:{sX+3}], 0 offen", "s")); S.put(b, Item(f"v_add_u32 v242, 8, v242", "s"))
        S.put(b, Item(f"SWITCH{bi}:", "s"))
    for n in range(NU):
        if last(n):
            nu = n + 1
            for t in range(8):
                for jj in range(2):
                    lo = PER*n + 16 + Q1 + t; hi = lo + 15
                    if nu % 9 == 7: hi = min(hi, PER*(n+1) + 10)
                    item = Item(v_read(kt(nu), t, jj, slot(nu)), "ds")
                    g = S.put_win(lo, hi, item, pack=True)
                    if nu >= NU and g < N: item.it = 1
    for n in range(NU):
        u = n + 1
        if last(u):
            nu = u + 1; it = 1 if nu >= NU else 0
            for idx in range(8):
                lo = PER*n + 8 + idx; hi = lo + 16
                if cfg.qkord: lo = PER*n + 2 * idx + 1; hi = lo + PER - 11
                if u % 9 == 8: lo = max(lo, PER*n + 16)
                S.put_win(lo, hi, Item(k_read(kt(nu), idx >> 2, idx & 3), "ds", it), pack=True)
    if peel:
        place_adds(); return S, bar
    for bi, b in enumerate(bar):
        g0 = b - 40
        for l in [f"s_mov_b32 s{sKt}, s{sKb}", f"s_cmp_eq_u32 s{sKb}, s{sKw}"]: S.put(g0, Item(l, "s"))
        S.put(b + 1, Item(f"s_mov_b32 s{sKm}, s{sKt}", "s"))
        S.put(g0, Item(f"s_cselect_b32 s{sKd}, s{sT3}, s{sQs}", "s"))
        S.put(g0 + 1, Item(f"s_add_u32 s{sKb}, s{sKb}, s{sKd}", "s"))
        for i in range(8): S.put_win(g0 + 2, b - 1, Item(f"v_add_u32 v{vKa+i}, s{sKd}, v{vKa+i}", "v"), pack=True)
        itf = lambda g: 1 if (bi == 1 and g < N) else 0
        lv = v_dma(bi); lk = k_dma()
        lv[0] = (adv(sVo, sVs) + lv[0][0], lv[0][1]); lk[0] = (adv(sKo, sKs) + lk[0][0], lk[0][1])
        st0 = (b + 2) if bi == 0 else CUT + 1
        lim = b + 9 * PER - 14
        step = min(cfg.dma_step, (lim - 36 - st0) / 15)
        g = st0
        for i, x in enumerate(lv + lk):
            g = place_dmas(S, [x], max(g, st0 + int((i - i % cfg.dgrp) * step)), 2 if cfg.dgrp == 1 else 1, itf, limit=lim)
    if False:
        for i, g in enumerate(int(x) for x in cfg.pfpos.split(",")):
            place_dmas(S, [([f"s_add_u32 s{sPfo}, s{sPfo}, {(32 << cfg.pfsh) if cfg.pfsh else 262144 // len(cfg.pfpos.split(','))}", f"s_xor_b32 s{sPfx}, s{sPfo}, s{sPfr}"], f"buffer_load_dword v{vPfd}, v{vPfo}, s[{sD}:{sD+3}], s{sPfx} offen{NT(cfg.pf_nt)} ; pf{i}")], g, 1, itf=lambda g: 1 if g >= CUT else 0)
    place_adds()
    for bi, b in enumerate(bar):
        n = 0; g = b - 1
        while True:
            its = [x for x in S.gap[g % N] if x.kind == "dma"]
            if its and f"s[{sV}:{sV+3}]" in its[0].text: break
            n += len(its); g -= 1
        for x in S.gap[b]:
            if "vmcnt(8)" in x.text: x.text = x.text.replace("vmcnt(8)", f"vmcnt({n})")
    return S, bar

def kv_setup(e, t):
    r8, p8, tA, tB, tC = t, t+1, t+2, t+3, t+4
    e(f"v_lshrrev_b32 v{r8}, 3, v0"); e(f"v_and_b32 v{p8}, 7, v0"); e(f"v_lshrrev_b32 v{tA}, 1, v{r8}")
    e(f"v_xor_b32 v{tB}, v{tA}, v{p8}"); e(f"v_lshlrev_b32 v{tC}, 8, v{r8}")
    e(f"v_lshl_add_u32 v{vKv+1}, v{tB}, 4, v{tC}"); e(f"v_xor_b32 v{vKv+3}, 64, v{vKv+1}")
    e(f"v_add_u32 v{vKv}, 1024, v{vKv+1}"); e(f"v_add_u32 v{vKv+2}, 1024, v{vKv+3}")
    e(f"v_add_u32 v{vKv+1}, 128, v{vKv+1}"); e(f"v_add_u32 v{vKv+3}, 128, v{vKv+3}")
    e(f"v_lshlrev_b32 v{tB}, 1, v{tA}"); e(f"v_xor_b32 v{tB}, v{tB}, v{p8}")
    e(f"v_lshl_add_u32 v{vVv+1}, v{tB}, 4, v{tC}")
    e(f"v_add_u32 v{vVv}, 1024, v{vVv+1}"); e(f"v_add_u32 v{vVv+1}, 128, v{vVv+1}")
    e(f"v_mov_b32 v{vVv+2}, v{vVv}"); e(f"v_mov_b32 v{vVv+3}, v{vVv+1}")
    e(f"s_lshl_b32 s{sT0}, s{sB}, 5"); e(f"s_add_u32 s{sT0}, s{sT0}, s{sH}"); e(f"s_lshl_b32 s{sT0}, s{sT0}, 18")
    for s, p in ((sK, sPTR + 2), (sV, sPTR + 4)):
        e(f"s_add_u32 s{s}, s{p}, s{sT0}"); e(f"s_addc_u32 s{s+1}, s{p+1}, 0")
        e(f"s_sub_u32 s{s}, s{s}, 1024"); e(f"s_subb_u32 s{s+1}, s{s+1}, 0")
        e(f"s_mov_b32 s{s+2}, {262144+1024}"); e(f"s_mov_b32 s{s+3}, 0x20000")
    e(f"s_lshr_b32 s{sK0}, s2, 3"); e(f"s_xor_b32 s{sK0}, s{sK0}, s2"); e(f"s_and_b32 s{sK0}, s{sK0}, {cfg.krot}"); e(f"s_lshl_b32 s{sK0}, s{sK0}, 15")
    e(f"s_add_u32 s{sK0}, s{sK0}, s{sW8}"); e(f"s_mov_b32 s{sKmask}, 0x3ffff"); e(f"s_mov_b32 s{sVmask}, 0x3ffff")
    for b_ in (sKo, sVo):
        e(f"s_mov_b32 s{b_}, s{sK0}"); e(f"s_add_u32 s{b_+1}, s{sK0}, 4096")
    e(f"s_mov_b32 s{sKs}, 32768"); e(f"s_mov_b32 s{sVs}, 32768")
    e(f"s_add_u32 s{sKb}, s{sW8}, {KR[0]}"); e(f"s_mov_b32 s{sKm}, s{sKb}"); e(f"s_add_u32 s{sKw}, s{sW8}, {KR[2]}")

def att_addr(t):
    L = []; e = L.append
    tA, tB, tC, q16, kg, r4, c4, k0 = t, t+1, t+2, t+3, t+4, t+5, t+6, t+7
    e(f"v_and_b32 v{q16}, 15, v0"); e(f"v_lshrrev_b32 v{kg}, 4, v0")
    e(f"v_lshrrev_b32 v{tA}, 3, v{q16}"); e(f"v_lshlrev_b32 v{tA}, 11, v{tA}")
    e(f"v_and_b32 v{tB}, 7, v{q16}"); e(f"v_lshl_add_u32 v{tA}, v{tB}, 7, v{tA}")
    e(f"v_lshrrev_b32 v{tB}, 1, v{q16}"); e(f"v_xor_b32 v{tB}, v{tB}, v{kg}")
    e(f"v_lshl_add_u32 v{k0}, v{tB}, 4, v{tA}"); e(f"v_add_u32 v{k0}, {KR[0]}, v{k0}"); e(f"v_xor_b32 v{k0+1}, 64, v{k0}")
    n1 = len(L)
    e(f"v_bfe_u32 v{r4}, v0, 2, 2"); e(f"v_and_b32 v{c4}, 3, v0")
    e(f"v_and_b32 v{tA}, 1, v{kg}"); e(f"v_lshl_add_u32 v{tA}, v{tA}, 2, v{r4}")
    e(f"v_lshrrev_b32 v{tB}, 1, v{tA}"); e(f"v_lshlrev_b32 v{tB}, 5, v{tB}"); e(f"v_lshl_add_u32 v{tB}, v{tA}, 7, v{tB}")
    e(f"v_lshrrev_b32 v{tA}, 1, v{kg}"); e(f"v_lshl_add_u32 v{tB}, v{tA}, 11, v{tB}"); e(f"v_lshl_add_u32 v{tC}, v{c4}, 3, v{tB}")
    for j in range(4):
        e(f"s_add_u32 s{sT0}, s{sW}, {j}"); e(f"s_and_b32 s{sT0}, s{sT0}, 3"); e(f"s_lshl_b32 s{sT0}, s{sT0}, 13")
        for c in range(2): e(f"v_add_u32 v{vKa+2*j+c}, s{sT0}, v{k0+c}")
        e(f"v_add_u32 v{vVa+4*j}, s{sT0}, v{tC}")
        for k in range(1, 4): e(f"v_xor_b32 v{vVa+4*j+k}, {32*k}, v{vVa+4*j}")
    for i in range(4): e(f"v_mov_b32 v{vOne+i}, 0x3f803f80")
    return L[:n1], L[n1:], k0

def wo_voff(e, dst, t):
    r8, p8, tA, tB = t, t+1, t+2, t+3
    e(f"v_lshrrev_b32 v{r8}, 3, v0"); e(f"v_and_b32 v{p8}, 7, v0")
    e(f"v_bfe_u32 v{tA}, v{r8}, 1, 2"); e(f"v_lshlrev_b32 v{tA}, 1, v{tA}"); e(f"v_xor_b32 v{tA}, v{tA}, v{p8}")
    e(f"v_lshlrev_b32 v{tB}, 10, v{r8}"); e(f"v_lshl_add_u32 v{dst}, v{tA}, 4, v{tB}")
    for q in range(1, 4): e(f"v_add_u32 v{dst+q}, {7168*q}, v{dst}")
def wo_srd(e, s):
    e(f"s_lshl_b32 s{sT0}, s{sCg}, 7")
    e(f"s_add_u32 s{s}, s{sPTR+8}, s{sT0}"); e(f"s_addc_u32 s{s+1}, s{sPTR+9}, 0")
    e(f"s_sub_u32 s{s+2}, 4194304, s{sT0}"); e(f"s_mov_b32 s{s+3}, 0x20000")

vPfo = 243
vRa = 244
def wo_pf(e, srd, first, n):
    e(f"v_lshlrev_b32 v{vT}, 12, v0"); e(f"s_lshl_b32 s{sT0}, s{sW}, 20"); e(f"s_lshl_b32 s{sT1}, s{sRg}, 10"); e(f"s_add_u32 s{sT0}, s{sT0}, s{sT1}")
    e(f"s_add_u32 s{sT0}, s{sT0}, {first*32768}")
    for i in range(n):
        if i: e(f"s_add_u32 s{sT0}, s{sT0}, 262144")
        part = first + 8 * i + 8 > 32
        if part: e(f"s_mov_b64 exec, {(1 << (8 * (32 - first - 8 * i))) - 1:#x}")
        e(f"buffer_load_dword v{vPfd}, v{vT}, s[{srd}:{srd+3}], s{sT0} offen")
        if part: e("s_mov_b64 exec, -1")
def switch_block(bi):
    L = []; e = L.append
    e(f"s_cmp_lg_u32 s{sCnt}, {2 if bi == 1 else 1}"); e(f"s_cbranch_scc1 L_sw{bi}")
    if bi == 1:
        wo_voff(e, vKv, vT); wo_srd(e, sK); e(f"s_mov_b32 s{sKmask}, -1")
        e(f"s_and_b32 s{sR4}, s{sCg}, {cfg.orot}"); e(f"s_lshl_b32 s{sR4}, s{sR4}, 15"); e(f"s_lshl_b32 s{sT1}, s{sW}, 20"); e(f"s_or_b32 s{sR4}, s{sR4}, s{sT1}")
        if cfg.xrot: e(f"s_and_b32 s{sT1}, s2, 7"); e(f"s_lshl_b32 s{sT1}, s{sT1}, 17"); e(f"s_xor_b32 s{sR4}, s{sR4}, s{sT1}")
        e(f"s_mov_b32 s{sKs}, 0"); e(f"s_mov_b32 s{sKo}, s{sR4}"); e(f"s_mov_b32 s{sKo+1}, 0x40000000")
        kg, r4, c4, tA, tB = vT, vT+1, vT+2, vT+3, vT+4
        e(f"v_lshrrev_b32 v{kg}, 4, v0"); e(f"v_bfe_u32 v{r4}, v0, 2, 2"); e(f"v_and_b32 v{c4}, 3, v0")
        e(f"v_and_b32 v{tA}, 1, v{kg}"); e(f"v_lshl_add_u32 v{tA}, v{tA}, 2, v{r4}")
        e(f"v_lshrrev_b32 v{tB}, 1, v{tA}"); e(f"v_lshlrev_b32 v{tB}, 5, v{tB}")
        e(f"v_lshl_add_u32 v{tB}, v{tA}, 7, v{tB}"); e(f"v_lshrrev_b32 v{tA}, 1, v{kg}"); e(f"v_lshl_add_u32 v{tB}, v{tA}, 10, v{tB}")
        e(f"v_lshl_add_u32 v{tB}, v{c4}, 3, v{tB}"); e(f"v_add_u32 v{vRa}, s{sW8}, v{tB}")
        if cfg.fastred: e(f"s_lshl_b32 s{sT1}, s{sW}, 5"); e(f"v_xor_b32 v{vRa}, s{sT1}, v{vRa}")
        for nt in range(1, 4): e(f"v_xor_b32 v{vRa+nt}, {32*nt}, v{vRa}")
        for s_ in range(1, 3):
            for nt in range(4): e(f"v_add_u32 v{vRa+4*s_+nt}, {65536*s_}, v{vRa+nt}")
        e(f"v_lshlrev_b32 v10, 4, v0"); e(f"s_lshl_b32 s{sWo_}, s{sW}, 20")
        if cfg.pfcut: e(f"s_mov_b32 s{sD+2}, 0")
        if cfg.pflate:
            e(f"s_mov_b32 s{sD+2}, 4194304")
            e(f"s_lshr_b32 s{sPfo}, s2, 3"); e(f"s_lshl_b32 s{sPfo}, s{sPfo}, 13"); e(f"s_add_u32 s{sPfo}, s{sPfo}, s{sWo_}"); e(f"s_sub_u32 s{sPfo}, s{sPfo}, 262144")
    elif bi == 0:
        for q in range(4): e(f"v_mov_b32 v{vVv+q}, v{vKv+q}")
        wo_srd(e, sV); e(f"s_mov_b32 s{sVmask}, -1")
        if cfg.cpf2:
            e(f"s_getpc_b64 s[{sT0}:{sT1}]"); e("L_pc1:")
            e(f"s_add_u32 s{sT0}, s{sT0}, L_tail-L_pc1"); e(f"s_addc_u32 s{sT1}, s{sT1}, 0")
            e(f"s_lshr_b32 s{sT2}, s2, 3"); e(f"s_lshl_b32 s{sT2}, s{sT2}, 2"); e(f"s_add_u32 s{sT2}, s{sT2}, s{sW}"); e(f"s_lshl_b32 s{sT2}, s{sT2}, 6")
            e(f"v_min_u32 v{vT}, 1, v0"); e(f"v_lshlrev_b32 v{vT}, 13, v{vT}"); e(f"v_add_u32 v{vT}, s{sT2}, v{vT}")
            e(f"global_load_dword v{vPfd}, v{vT}, s[{sT0}:{sT1}]")
        e(f"s_xor_b32 s{sVo}, s{sR4}, 65536"); e(f"s_xor_b32 s{sVo+1}, s{sR4}, 98304"); e(f"s_mov_b32 s{sVs}, 0")
    e(f"L_sw{bi}:")
    L, _ = check_hazards(L, "sw", fix=True)
    return L

def gen():
    o = []; e = o.append
    e(f"{cfg.name}:")
    e("s_cmp_ge_u32 s2, 256"); e("s_cbranch_scc1 L_end")
    e(f"s_load_dwordx16 s[{sPTR}:{sPTR+15}], s[0:1], 0")
    stamp(o, 0)
    if cfg.stamp: e(f"s_memrealtime s[{sST+14}:{sST+15}]")
    e("v_lshrrev_b32 v1, 6, v0"); e("v_and_b32 v0, 63, v0"); e(f"v_readfirstlane_b32 s{sW}, v1")
    e(f"s_mov_b32 s{sRedo}, 0")
    e("L_restart:")
    if cfg.map_bh == "b":
        e(f"s_and_b32 s{sB}, s2, 7"); e(f"s_lshr_b32 s{sH}, s2, 3")
    else:
        e(f"s_lshr_b32 s{sB}, s2, 5"); e(f"s_and_b32 s{sT0}, s2, 7"); e(f"s_lshl_b32 s{sT0}, s{sT0}, 2")
        e(f"s_bfe_u32 s{sT1}, s2, 0x20003"); e(f"s_add_u32 s{sH}, s{sT0}, s{sT1}")
    t = vT
    r8, p8, tA, tB, tC = t, t+1, t+2, t+3, t+4
    vB = vQ; vAd = vQ + 40; vXv = vQ + 60; vWv = vQ + 62; vSh = vQ + 64
    e(f"v_lshrrev_b32 v{r8}, 3, v0"); e(f"v_and_b32 v{p8}, 7, v0")
    e(f"v_lshrrev_b32 v{tA}, 1, v{r8}")
    e(f"v_and_b32 v{tB}, 1, v{tA}"); e(f"v_lshlrev_b32 v{tB}, 1, v{tB}"); e(f"v_xor_b32 v{tB}, v{tB}, v{p8}")
    e(f"v_lshlrev_b32 v{tC}, 13, v{r8}"); e(f"v_lshl_add_u32 v{vWv}, v{tB}, 4, v{tC}")
    e(f"s_and_b32 s{sT0}, s{sW}, 1"); e(f"s_lshl_b32 s{sT1}, s{sT0}, 6"); e(f"v_xor_b32 v{vWv}, s{sT1}, v{vWv}"); e(f"s_lshl_b32 s{sT0}, s{sT0}, 2")
    e(f"v_xor_b32 v{tB}, v{tA}, v{p8}"); e(f"v_xor_b32 v{tC+1}, s{sT0}, v{tB}")
    e(f"v_lshlrev_b32 v{tC}, 10, v{r8}"); e(f"v_lshl_add_u32 v{vXv}, v{tC+1}, 4, v{tC}"); e(f"v_xor_b32 v{vXv+1}, 64, v{vXv}")
    e(f"s_mul_i32 s{sXo}, s{sW}, {9*8192}"); e(f"s_mul_i32 s{sXm}, s{sW}, {9*1024}")
    e(f"s_lshl_b32 s{sWo_}, s{sW}, 16"); e(f"s_lshl_b32 s{sWm}, s{sW}, 11"); e(f"s_add_u32 s{sWm}, s{sWm}, 36864")
    e(f"s_mul_i32 s{sT0}, s{sB}, 294912"); e(f"s_lshl_b32 s{sT1}, s{sH}, 8")
    e(f"s_mov_b32 s{sX+2}, 294912"); e(f"s_mov_b32 s{sX+3}, 0x20000")
    e(f"s_sub_u32 s{sWQ+2}, 4194304, s{sT1}"); e(f"s_mov_b32 s{sWQ+3}, 0x20000")
    e(f"s_add_u32 s{sRot}, s{sH}, s{sB}"); e(f"s_and_b32 s{sRot}, s{sRot}, {cfg.qrot}")
    if cfg.qx: e(f"s_and_b32 s{sXc}, s2, {cfg.qx}"); e(f"s_xor_b32 s{sRot}, s{sRot}, s{sXc}")
    if cfg.cpf:
        e("s_getpc_b64 s[96:97]"); e("L_pc0:")
        e(f"s_lshr_b32 s98, s2, 3"); e(f"s_lshl_b32 s98, s98, 2"); e(f"s_add_u32 s98, s98, s{sW}"); e("s_lshl_b32 s98, s98, 6")
    stamp(o, 5, 2)
    e("s_waitcnt lgkmcnt(0)")
    stamp(o, 6, 2)
    if cfg.cpf:
        for i in range(cfg.cpf_n):
            e(f"s_load_dword s99, s[96:97], s98"); e("s_add_u32 s98, s98, 8192")
    e(f"s_add_u32 s{sX}, s{sPTR+0}, s{sT0}"); e(f"s_addc_u32 s{sX+1}, s{sPTR+1}, 0")
    e(f"s_add_u32 s{sWQ}, s{sPTR+6}, s{sT1}"); e(f"s_addc_u32 s{sWQ+1}, s{sPTR+7}, 0")
    def q_dma(c):
        r = []; sl = QSLOT[c % 3]
        for q in range(4):
            go = (q >> 1) * 262144 + (q & 1) * 128
            rot = [f"s_xor_b32 s{sXc}, s{sRot}, {c}", f"s_lshl_b32 s{sT3}, s{sXc}, 19", f"s_add_u32 s{sT3}, s{sT3}, s{sWo_}",
                   f"s_lshl_b32 s{sXc}, s{sXc}, 7", f"s_add_u32 s{sXc}, s{sXc}, s{sXo}"] if q == 0 else []
            r.append((rot + [f"s_add_u32 m0, s{sWm}, {sl + 8192*(q>>1) + 1024*(q&1)}", f"s_add_u32 s{sT2}, s{sT3}, {go}"],
                      f"buffer_load_dwordx4 v{vWv}, s[{sWQ}:{sWQ+3}], s{sT2} offen{NT(cfg.q_nt)} lds ; chunk {c}"))
        for i in range(9):
            r.append(([f"s_add_u32 m0, s{sXm}, {sl + 1024*i}", f"s_add_u32 s{sT2}, s{sXc}, {i*8192}"],
                      f"buffer_load_dwordx4 v{vXv+(i&1)}, s[{sX}:{sX+3}], s{sT2} offen{NT(cfg.q_nt)} lds ; chunk {c}"))
        return r
    d0_ = q_dma(0)
    o += flat(d0_[:2] + d0_[4:] if cfg.qstart == 2 else d0_)
    stamp(o, 7, 2)
    e(f"s_lshl_b32 s{sW8}, s{sW}, 13")
    kv_setup(e, t)
    for sl in range(2):
        for g in range(2): e(f"s_add_u32 s{sVm+2*sl+g}, s{sW8}, {LDS_V[sl] + 4096*g}")
    e(f"s_mul_i32 s{sT0}, s{sB}, 2359296")
    e(f"s_add_u32 s{sO}, s{sPTR+14}, s{sT0}"); e(f"s_addc_u32 s{sO+1}, s{sPTR+15}, 0")
    e(f"s_mov_b32 s{sO+2}, 2359296"); e(f"s_mov_b32 s{sO+3}, 0x20000")
    e(f"s_lshr_b32 s{sCg}, s2, 5"); e(f"s_and_b32 s{sOdd}, s2, 1")
    e(f"s_bfe_u32 s{sRg}, s2, 0x20001"); e(f"s_bfe_u32 s{sT0}, s2, 0x10003"); e(f"s_lshl_b32 s{sT0}, s{sT0}, 2"); e(f"s_add_u32 s{sRg}, s{sRg}, s{sT0}")
    e(f"s_bfe_u32 s{sT0}, s2, 0x10004"); e(f"s_lshl_b32 s{sMt}, s{sRg}, 1"); e(f"s_add_u32 s{sMt}, s{sMt}, s{sT0}"); e(f"s_mul_i32 s{sMt}, s{sMt}, 9")
    if cfg.tlb:
        e(f"s_load_dword s99, s[{sK}:{sK+1}], 1024"); e(f"s_load_dword s99, s[{sV}:{sV+1}], 1024")
        e(f"s_lshl_b32 s98, s{sW}, 19"); e(f"s_load_dword s99, s[{sO}:{sO+1}], s98"); e(f"s_mov_b32 s98, {16*131072}"); e(f"s_load_dword s99, s[{sO}:{sO+1}], s98")
        e(f"s_lshl_b32 s98, s{sMt}, 17"); e(f"s_load_dword s99, s[{sPTR+14}:{sPTR+15}], s98"); e(f"s_add_u32 s98, s98, {4*131072-4}"); e(f"s_load_dword s99, s[{sPTR+14}:{sPTR+15}], s98")
        e(f"s_lshl_b32 s98, s{sW}, 20"); e(f"s_load_dword s99, s[{sPTR+8}:{sPTR+9}], s98")
        e(f"s_lshl_b32 s98, s{sMt}, 14"); e(f"s_load_dword s99, s[{sPTR+10}:{sPTR+11}], s98"); e(f"s_load_dword s99, s[{sPTR+12}:{sPTR+13}], 0")
    q16, kg, r4, c4 = t+6, t+7, t+8, t+9
    e(f"v_and_b32 v{q16}, 15, v0"); e(f"v_lshrrev_b32 v{kg}, 4, v0"); e(f"v_bfe_u32 v{r4}, v0, 2, 2"); e(f"v_and_b32 v{c4}, 3, v0")
    e(f"v_lshrrev_b32 v{tA}, 3, v{q16}"); e(f"v_lshlrev_b32 v{tA}, 10, v{tA}")
    e(f"v_and_b32 v{tB}, 7, v{q16}"); e(f"v_lshl_add_u32 v{tA}, v{tB}, 7, v{tA}")
    e(f"v_lshrrev_b32 v{tB}, 1, v{q16}"); e(f"v_xor_b32 v{tB}, v{tB}, v{kg}")
    e(f"v_lshl_add_u32 v{vAd}, v{tB}, 4, v{tA}"); e(f"v_xor_b32 v{vAd+1}, 64, v{vAd}")
    e(f"v_add_u32 v{vAd+2}, s{sW8}, v{vAd}"); e(f"v_add_u32 v{vAd+3}, s{sW8}, v{vAd+1}")
    e(f"v_lshrrev_b32 v{tA}, 1, v{r4}"); e(f"v_and_b32 v{tB}, 1, v{kg}"); e(f"v_lshl_add_u32 v{tA}, v{tB}, 1, v{tA}")
    e(f"v_lshlrev_b32 v{tA}, 5, v{tA}"); e(f"v_lshl_add_u32 v{tA}, v{c4}, 3, v{tA}"); e(f"v_lshl_add_u32 v{tA}, v{r4}, 7, v{tA}")
    e(f"v_lshl_add_u32 v{tA}, v{kg}, 11, v{tA}"); e(f"v_add_u32 v{vAd+4}, 36864, v{tA}")
    for k in range(1, 4): e(f"v_xor_b32 v{vAd+4+k}, {32*k}, v{vAd+4}")
    e(f"s_and_b32 s{sT0}, s{sW}, 1"); e(f"s_lshl_b32 s{sT0}, s{sT0}, 6"); e(f"s_lshr_b32 s{sT1}, s{sW}, 1"); e(f"s_lshl_b32 s{sT1}, s{sT1}, 10")
    e(f"v_xor_b32 v{vAd+8}, s{sT0}, v{vAd+4}"); e(f"v_add_u32 v{vAd+8}, s{sT1}, v{vAd+8}"); e(f"v_xor_b32 v{vAd+9}, 32, v{vAd+8}")
    e(f"s_mov_b32 s{sQs}, {QSCALE:#x}")
    if cfg.wwpos:
        e(f"s_mov_b32 s{sD}, s{sPTR+8}"); e(f"s_mov_b32 s{sD+1}, s{sPTR+9}"); e(f"s_mov_b32 s{sD+2}, 4194304"); e(f"s_mov_b32 s{sD+3}, 0x20000")
        e(f"v_and_b32 v254, 31, v0"); e(f"v_lshlrev_b32 v254, 7, v254"); e(f"s_lshl_b32 s{sKt2}, s2, 14"); e(f"s_lshl_b32 s{sT1}, s{sW}, 12"); e(f"s_add_u32 s{sKt2}, s{sKt2}, s{sT1}")
    if cfg.pkq: e(f"v_mov_b32 v252, s{sQs}"); e(f"v_mov_b32 v253, s{sQs}")
    if cfg.k0pf: e("v_lshlrev_b32 v252, 7, v0"); e("v_add_u32 v252, 1024, v252")

    NQ = 16 * 36
    S = Sched(NQ)
    fA = lambda t_: aK + 4 * t_
    fB = lambda p, q: vB + 16 * p + 4 * q
    fBs = lambda q: vB + 32 + 4 * q
    acc = lambda q, t_: vAcc + 32 * q + 4 * t_
    accs = lambda qs, u: vAcc + 128 + 8 * qs + 4 * u
    def rdA(ks, t_, jj):
        ad = vAd + 10 * ((ks >> 1) & 1); s = ks & 1
        if t_ < 8: return f"ds_read_b64_tr_b16 {ar(fA(t_)+2*jj,2)}, v{ad+4+(t_&3)} offset:{s*8192+(t_>>2)*1024+jj*512}"
        return f"ds_read_b64_tr_b16 {ar(fA(t_)+2*jj,2)}, v{ad+t_} offset:{s*8192+jj*512}"
    def rdB(ks, q):
        ad = vAd + 10 * ((ks >> 1) & 1); s = ks & 1
        if q < 4: return f"ds_read_b128 {vr(fB(ks&1,q),4)}, v{ad+2+s} offset:{2048*q}"
        return f"ds_read_b128 {vr(fBs(q-4),4)}, v{ad+s} offset:{32768+2048*(q-4)}"
    for ks in range(16):
        for i in range(36):
            if i < 32: t_, q = i >> 2, i & 3; a_, A, Bf = acc(q, t_), fA(t_), fB(ks & 1, q)
            else: u, qs = (i - 32) >> 1, i & 1; a_, A, Bf = accs(qs, u), fA(8 + u), fBs(qs)
            S.mf[36*ks + i] = Item(f"{MF} {vr(a_,4)}, {ar(A,4)}, {vr(Bf,4)}, {'0' if ks == 0 else vr(a_,4)}", "mf")
    QB = 9
    for c in range(8):
        gb = 72 * c + 36 + QB
        n = (13 + (cfg.wowarm if c == 0 else 0)) if c <= 5 else (8 if c == 6 else None)
        if cfg.k0pf and c in (cfg.k0pf, cfg.k0pf + 1): n += 1
        if cfg.wwpos and c in (cfg.wwpos, cfg.wwpos + 1) and n is not None: n += 1
        if cfg.qstamp: S.put(gb, Item("s_memtime s[96:97]", "s"))
        S.put(gb, Item(f"s_waitcnt vmcnt(CH{c+1}) lgkmcnt(0)" if n is not None else "s_waitcnt lgkmcnt(0)", "s"))
        S.put(gb, Item("s_barrier", "s"))
        if cfg.qstamp:
            S.put(gb, Item(f"v_mov_b32 v252, s96", "s")); S.put(gb, Item("s_memtime s[96:97]", "s")); S.put(gb, Item("s_waitcnt lgkmcnt(0)", "s"))
            S.put(gb, Item(f"v_mov_b32 v253, s96", "s"))
            S.put(gb, Item(f"buffer_store_dwordx2 v[252:253], v254, s[{sD}:{sD+3}], 0 offen", "s")); S.put(gb, Item(f"v_add_u32 v254, 8, v254", "s"))
    for ks in range(16):
        base = 36 * ks
        if ks:
            for k_, r in enumerate([rdA(ks, 8, 0), rdA(ks, 8, 1), rdB(ks, 4), rdB(ks, 5), rdA(ks, 9, 0), rdA(ks, 9, 1)]):
                S.put(base + (k_ >> 1), Item(r, "ds"))
        if ks < 15:
            lo0 = base + (QB if ks & 1 else 3)
            for q in range(4): S.put_win(lo0, base + 24, Item(rdB(ks + 1, q), "ds"))
            for t_ in range(8):
                for jj in range(2):
                    lo = max(base + 4 * t_ + 3, lo0)
                    if ks == 0 and cfg.qstart == 2: lo = max(lo, cfg.qb0)
                    g_r = S.put_win(lo, min(lo + 20, NQ - 1), Item(rdA(ks + 1, t_, jj), "ds"))
                    assert g_r < base + 36 + 4 * t_ - 6 and (ks & 1 or g_r < base + 36 + QB - 4), (ks, t_, g_r)
    for c in range(8):
        gb = 72 * c + 36 + QB
        if c + 3 < 8: lst = q_dma(c + 3)
        elif c == 5: lst = k_dma()
        elif c == 6: lst = v_dma(0)
        else:
            lst = k_dma(); lst[0] = (adv(sKo, sKs) + [f"s_add_u32 s{sKm}, s{sW8}, {KR[1]}"] + lst[0][0], lst[0][1])
            if cfg.k1pos: k1l = lst; lst = []
        if cfg.wwpos and c == cfg.wwpos - 1:
            lst = lst + [([], f"buffer_load_dword v{vPfd}, v254, s[{sD}:{sD+3}], s{sKt2} offen")]
        if cfg.k0pf and c == cfg.k0pf - 1:
            lst = lst + [([], f"buffer_load_dword v{vPfd}, v252, s[{sK}:{sK+3}], s{sKo} offen nt")]
        if cfg.qstart and c == 0:
            g_ = 1
            if cfg.qstart == 2:
                g_ = place_dmas(S, d0_[2:4], 1, 2) - 1
                S.put(cfg.qb0, Item("s_waitcnt vmcnt(CH0) lgkmcnt(0)", "s")); S.put(cfg.qb0, Item("s_barrier", "s"))
            g_ = place_dmas(S, q_dma(1), g_ + 1, 2, limit=36 + QB - 2)
            g_ = place_dmas(S, q_dma(2), g_, cfg.q2step, limit=gb + 50)
            g_ = place_dmas(S, lst, max(g_, gb + 2), 3, limit=gb + 72 + 40)
        elif cfg.qstart and c in (1, 2):
            g_ = place_dmas(S, lst, max(g_, gb + 2), 3 if c == 1 else 4, limit=gb + 72 + (20 if c == 1 else 0))
        else:
            place_dmas(S, lst, gb + 2, (cfg.qstep - (len(lst) > 13)) if c < 5 else cfg.kvstep, limit=min(gb + 72, NQ))
    if not cfg.qstart: place_dmas(S, q_dma(2), 1, 2, limit=36 + QB)
    for c in range(7):
        d = QSLOT[(c + 1) % 3] - QSLOT[c % 3]
        for k in range(10):
            S.put_win(72 * c + 4, 72 * c + 40, Item(f"v_add_u32 v{vAd+10*((c+1)&1)+k}, {d & 0xffffffff:#x}, v{vAd+10*(c&1)+k}", "v"))
    g = 0
    for i in range(192): g = S.put_win(g, NQ - 1, Item(f"v_accvgpr_write_b32 a{i}, 0", "v"))
    sys.stderr.write(f"qproj gaps over cap: {sum(c > CAP for c in S.cost)}\n")
    if not cfg.qstart: o += flat(q_dma(1))
    if cfg.ptouch:
        e(f"s_mul_i32 s{sT0}, s2, 20480"); e(f"s_add_u32 s{sT0}, s{sT0}, 0x1400000"); e(f"v_mov_b32 v{vPfd}, s{sT0}")
        if cfg.ptouch > 1:
            e(f"s_mul_i32 s{sT0}, s{sB}, 2359296"); e(f"s_lshl_b32 s{sT1}, s{sW}, 19"); e(f"s_add_u32 s{sT0}, s{sT0}, s{sT1}"); e(f"v_writelane_b32 v{vPfd}, s{sT0}, 1")
            e(f"s_lshl_b32 s{sT0}, s{sMt}, 17"); e(f"s_mul_i32 s{sT1}, s{sW}, {3*131072-1024}"); e(f"s_add_u32 s{sT0}, s{sT0}, s{sT1}"); e(f"v_writelane_b32 v{vPfd}, s{sT0}, 2")
        e(f"global_load_dword v{vPfd}, v{vPfd}, s[{sPTR+14}:{sPTR+15}]")
    stamp(o, 8, 2)
    if cfg.qstamp:
        e(f"s_add_u32 s{sD}, s{sPTR+14}, 0x4100000"); e(f"s_addc_u32 s{sD+1}, s{sPTR+15}, 0"); e(f"s_mov_b32 s{sD+2}, 0x100000"); e(f"s_mov_b32 s{sD+3}, 0x20000")
        e(f"s_lshl_b32 s{sT0}, s2, 2"); e(f"s_add_u32 s{sT0}, s{sT0}, s{sW}"); e(f"s_lshl_b32 s{sT0}, s{sT0}, 6"); e(f"v_mov_b32 v254, s{sT0}")
    if cfg.wowarm:
        e(f"s_mov_b32 s{sD}, s{sPTR+8}"); e(f"s_mov_b32 s{sD+1}, s{sPTR+9}"); e(f"s_mov_b32 s{sD+2}, 4194304"); e(f"s_mov_b32 s{sD+3}, 0x20000")
        e(f"v_and_b32 v{tA}, 31, v0"); e(f"v_lshlrev_b32 v{tA}, 7, v{tA}"); e(f"s_lshl_b32 s{sT0}, s2, 14"); e(f"s_lshl_b32 s{sT1}, s{sW}, 12"); e(f"s_add_u32 s{sT0}, s{sT0}, s{sT1}")
        e(f"buffer_load_dword v{vPfd}, v{tA}, s[{sD}:{sD+3}], s{sT0} offen")
    e(f"s_waitcnt vmcnt({0 if cfg.qstart else 13 + (cfg.ptouch > 0)}) lgkmcnt(0)"); e("s_barrier")
    stamp(o, 1)
    first = [rdA(0, 0, 0), rdA(0, 0, 1)] + [rdB(0, q) for q in range(4)] + [rdA(0, t_, jj) for t_ in range(1, 10) for jj in range(2)] + [rdB(0, 4), rdB(0, 5)]
    qh = ([0] * 11 if cfg.qstart == 2 else []) if cfg.qstart else [1] * 13 + [-1] * (cfg.ptouch > 0)
    for g, k, l in lgkm_waits([(-2, "ds", r) for r in first] + S.linear(0, NQ)):
        if "vmcnt(CH" in l:
            c_ = int(l.split("CH")[1][0]); assert qh.count(c_) == 13, (c_, qh)
            l = f"s_waitcnt vmcnt({len(qh) - 1 - max(i for i, x in enumerate(qh) if x == c_)}) lgkmcnt(0)"
        if l.startswith("buffer_"): qh.append(int(l.split()[-1]) if "; chunk" in l else -1)
        e(l)
    stamp(o, 2)
    def cvt_frag(src, dst):
        L = [f"v_mul_f32 v{src+i}, s{sQs}, v{src+i}" for i in range(8)]
        if cfg.pkq: L = [x for i in range(4) for x in (f"v_pk_mul_f32 {vr(src+2*i,2)}, {vr(src+2*i,2)}, v[252:253]", None)]
        L += [f"v_cvt_pk_bf16_f32 v{dst+i}, v{src+2*i}, v{src+2*i+1}" for i in range(4)]
        W = [f"v_permlane32_swap_b32 v{dst}, v{dst+2}", f"v_permlane32_swap_b32 v{dst+1}, v{dst+3}",
             f"v_permlane16_swap_b32 v{dst}, v{dst+2}", f"v_permlane16_swap_b32 v{dst+1}, v{dst+3}"]
        return L, W
    own = [(acc(q, 2 * c), vQ + 16 * q + 4 * c) for c in range(4) for q in range(4)]
    frs = own[:2] + [(accs(0, 0), vSh), (accs(1, 0), vSh + 4)] + own[2:]
    pendW = []
    for idx, (s_, d_) in enumerate(frs):
        L, W = cvt_frag(s_, d_)
        o += [x for x in L[:4] + pendW[:2] + L[4:8] + pendW[2:] + L[8:] if x]
        pendW = W
        if cfg.k1pos and idx >= 2 and idx % 2 == 0: o += flat([k1l.pop(0)])
        if idx == 4:
            e(f"v_lshlrev_b32 v10, 4, v0"); e(f"s_lshl_b32 s{sT0}, s{sW}, 10"); e(f"s_add_u32 s{sT0}, s{sT0}, {LDS_EX}")
            e(f"v_add_u32 v11, s{sT0}, v10"); e(f"v_add_u32 v10, {LDS_EX}, v10")
            e(f"ds_write_b128 v11, {vr(vSh,4)}"); e(f"ds_write_b128 v11, {vr(vSh+4,4)} offset:4096")
    o += pendW
    a1, a2, k0 = att_addr(vT)
    if cfg.flags:
        e(f"s_lshl_b32 s{sFo}, s{sB}, 1"); e(f"s_lshr_b32 s{sT0}, s{sH}, 4"); e(f"s_add_u32 s{sFo}, s{sFo}, s{sT0}"); e(f"s_lshl_b32 s{sFo}, s{sFo}, {cfg.fstr}")
        e(f"s_and_b32 s{sT0}, s{sH}, 15"); e(f"s_lshl_b32 s{sT0}, s{sT0}, {cfg.fsep}"); e(f"s_add_u32 s{sFo}, s{sFo}, s{sT0}"); e(f"s_add_u32 s{sFo}, s{sFo}, {FLAG_OFF}")
        if not cfg.clrpos:
            e(f"s_or_b32 s{sT0}, s{sW}, s{sRedo}"); e("s_cbranch_scc1 L_noclr")
            e(f"v_mov_b32 v{vT}, s{sFo}"); e(f"v_mov_b32 v{vT+1}, 0"); e("s_mov_b64 exec, 1")
            e(f"global_store_dword v{vT}, v{vT+1}, s[{sPTR+14}:{sPTR+15}] sc1"); e("s_mov_b64 exec, -1")
            e("L_noclr:")
    o += a1
    if cfg.s0: e("v_and_b32 v11, 48, v0"); e(f"v_add_u32 v11, {KR[0]}, v11")
    e(f"s_waitcnt vmcnt({16 if cfg.vlate else 8}) lgkmcnt(0)"); e("s_barrier")
    for c in range(4):
        if cfg.s0: e(f"ds_read_b128 {vr(vS+4*c,4)}, v11 offset:{(c&1)*64+(c>>1)*1024}")
        else: e(k_read(0, 0, c, base=k0))
    for i in range(8): e(f"ds_read_b128 {vr(vQ+64+4*i,4)}, v10 offset:{1024*i}")
    if cfg.dump_q:
        e("s_waitcnt lgkmcnt(0)")
        e(f"v_lshlrev_b32 v{tB}, 4, v0"); e(f"s_lshl_b32 s{sT0}, s{sH}, 2"); e(f"s_add_u32 s{sT0}, s{sT0}, s{sW}"); e(f"s_mul_i32 s{sT0}, s{sT0}, {18*1024}")
        for i in range(18):
            e(f"buffer_store_dwordx4 {vr(vQ+4*i,4)}, v{tB}, s[{sO}:{sO+3}], s{sT0} offen"); e(f"s_add_u32 s{sT0}, s{sT0}, 1024")
        e("s_waitcnt vmcnt(0)"); e("s_endpgm")
    def negm(E, srcs):
        tm = [vS + qt for qt in range(6)]
        for qt in range(6): E(f"v_mov_b32 v{tm[qt]}, v{srcs[qt]}")
        for qt in range(6): E(f"v_permlane32_swap_b32 v{srcs[qt]}, v{tm[qt]}")
        for qt in range(6): E(f"v_max_f32 v{srcs[qt]}, v{srcs[qt]}, v{tm[qt]}")
        for qt in range(6): E(f"v_mov_b32 v{tm[qt]}, v{srcs[qt]}")
        for qt in range(6): E(f"v_permlane16_swap_b32 v{srcs[qt]}, v{tm[qt]}")
        for qt in range(6): E(f"v_max_f32 v{srcs[qt]}, v{srcs[qt]}, v{tm[qt]}")
        for qt in range(6):
            for i in range(4): E(f"v_sub_f32 v{vNM+4*qt+i}, 0, v{srcs[qt]}")
    a2_all = list(a2)
    e(f"s_cmp_lg_u32 s{sRedo}, 0"); e("s_cbranch_scc1 L_truemax")
    if cfg.s0:
        o += a2[:16]; a2 = a2[16:]
        e("s_waitcnt lgkmcnt(8)")
        for i in range(16): e(f"v_xor_b32 v{vS+i}, 0x80008000, v{vS+i}")
        for qt in range(6):
            if qt == 4: e("s_waitcnt lgkmcnt(0)")
            nb = vNM + 4 * qt
            for c in range(4):
                e(f"{MF} {vr(nb,4)}, {vr(vS+4*c,4)}, {vr(vQ+16*qt+4*c,4)}, {'0' if c == 0 else vr(nb,4)}")
                nv = 0
                while a2 and nv < 2:
                    l = a2.pop(0); e(l); nv += l.startswith("v_")
        o += a2
    else:
        o += a2[:10]; a2 = a2[10:]
        e("s_waitcnt lgkmcnt(8)")
        mx = [vS + 8 + qt for qt in range(6)]
        for qt in range(6):
            if qt == 4: e("s_waitcnt lgkmcnt(0)")
            nb = vNM + 4 * qt
            for c in range(4):
                e(f"{MF} {vr(nb,4)}, {ar(aK+4*c,4)}, {vr(vQ+16*qt+4*c,4)}, {'0' if c == 0 else vr(nb,4)}")
                if qt >= 2 and c == 1:
                    p = vNM + 4 * (qt - 2); e(f"v_max3_f32 v{mx[qt-2]}, v{p}, v{p+1}, v{p+2}"); e(f"v_max_f32 v{mx[qt-2]}, v{mx[qt-2]}, v{p+3}")
                else:
                    nv = 0
                    while a2 and nv < 2:
                        l = a2.pop(0); e(l); nv += l.startswith("v_")
        o += a2
        for qt in (4, 5):
            p = vNM + 4 * qt; e(f"v_max3_f32 v{mx[qt]}, v{p}, v{p+1}, v{p+2}"); e(f"v_max_f32 v{mx[qt]}, v{mx[qt]}, v{p+3}")
        negm(e, mx)
    if not cfg.vlate: e("s_barrier")
    e("L_att:")
    e(f"s_mov_b32 s{sCnt}, 3"); e(f"s_mov_b32 s{sT3}, 65536"); e(f"s_mov_b32 s{sQs}, {(-32768) & 0xffffffff:#x}")
    e(f"s_add_u32 s{sKm}, s{sW8}, {KR[2]}")
    stamp(o, 3)
    if cfg.lstamp:
        e(f"s_add_u32 s{sX}, s{sPTR+14}, 0x4100000"); e(f"s_addc_u32 s{sX+1}, s{sPTR+15}, 0"); e(f"s_mov_b32 s{sX+2}, 0x100000"); e(f"s_mov_b32 s{sX+3}, 0x20000")
        e(f"s_lshl_b32 s{sT0}, s2, 2"); e(f"s_add_u32 s{sT0}, s{sT0}, s{sW}"); e(f"s_lshl_b32 s{sT0}, s{sT0}, 6"); e(f"v_mov_b32 v242, s{sT0}")
    A, bar = gen_attn_sched()
    N = A.n; CUT = 17 * PER
    sys.stderr.write(f"loop: overflow {sum(max(0, c - CAP) for c in A.cost)}, empty gaps {sum(c == 0 for c in A.cost)}\n")
    pro = lgkm_waits(A.linear(bar[1], N, keep=lambda it: it == 1), slack=100)
    zl = [f"v_mov_b32 v{vL+i}, 0" for i in range(24)]; pz = []
    seenv = not cfg.vlate; nd_ = 0
    for g, k, l in pro:
        if not seenv and l.startswith("ds_read_b64_tr"):
            pz += [f"s_waitcnt vmcnt({8 + nd_})", "s_barrier"]; seenv = True
        if k == "dma":
            nd_ += 1; assert seenv or f"s[{sV}:" in l
        pz.append(l)
        if k == "mf": pz += zl[:2]; zl = zl[2:]
    assert not zl
    pl, _ = check_hazards(pz, "pro", fix=True)
    o += pl
    e("s_waitcnt lgkmcnt(0)")
    body = A.linear(0, N)
    two = lgkm_waits(body + [(10**6, "x", "MARK:")] + [(g + N, k, l) for g, k, l in body] + [(2 * N, "mf", body[0][2])])
    k_ = [i for i, x in enumerate(two) if x[2] == "MARK:"][0]
    body2 = [(g - N, k, l) for g, k, l in two[k_+1:-1]]
    e("L_loop:")
    bl = []
    for g, k, l in body2:
        if l.startswith("SWITCH"): continue
        bl.append(l)
        if g == N - 1 and k == "mf": bl += [f"s_sub_u32 s{sCnt}, s{sCnt}, 1", f"s_cmp_lg_u32 s{sCnt}, 0"]
    ci = bl.index(f"s_cmp_lg_u32 s{sCnt}, 0")
    assert not any("scc" in Ins(x).w for x in bl[ci+1:]), bl[ci:]
    bl.append("s_cbranch_scc1 L_loop")
    _, bad = check_hazards(pl[-30:] + bl + bl, "loop"); assert bad == 0 or cfg.lstamp
    o += bl
    ep = []; hist = []
    def E(l, tag=None):
        if cfg.nost and tag == "st" and (cfg.nost == 1 or len([x for x in hist if x == "st"]) % 2): l = l.replace(f"s[{sO}:{sO+3}]", f"s[{sWQ}:{sWQ+3}]")
        ep.append(l)
        if Ins(l).kind in ("vmem", "dma", "vstore"): hist.append("sig" if l.endswith("; wave 0") else tag)
    def vwait(tag):
        last = max(i for i, x in enumerate(hist) if x == tag)
        n = sum(1 for x in hist[last+1:] if x not in ("sig", "look"))
        return f"s_waitcnt vmcnt({min(63, n)})"
    vwait1 = vwait
    LS = [KR[2], KR[2] + 4096, LDS_V[0], LDS_V[0] + 4096, KR[0], KR[0] + 4096, LDS_V[1], LDS_V[1] + 4096, KR[1], KR[1] + 4096]
    RS = [("a", 128), ("a", 144), ("a", 160), ("a", 176), ("v", 76), ("v", 92), ("a", 192), ("a", 208),
          ("a", 224), ("a", 240), ("v", 156), ("v", 172), ("v", 188), ("v", 204), ("v", 12), ("v", 28)]
    LSOF = {0: 0}
    NR = len(RS); NW = 16
    vR = 236; vLn = 10; vZ = 11
    def rreg(step, nt, jj=None):
        k, b = RS[step % NR]; f = vr if k == "v" else ar
        return f(b + 4 * nt, 4) if jj is None else f(b + 4 * nt + 2 * jj, 2)
    def tr_reads(step):
        a = LS[LSOF[step]]; s_ = a >> 16
        return [f"ds_read_b64_tr_b16 {rreg(step, nt, jj)}, v{vRa+4*s_+nt} offset:{(a & 0xffff) + 2048*jj} ; wo step {step}" for nt in range(4) for jj in range(2)]
    def wo_dma(step):
        return [(([f"s_add_u32 m0, s{sW8}, {LS[LSOF[step]]}", f"s_xor_b32 s{sT2}, s{sR4}, {32768*step}"] if q == 0 else []),
                 f"buffer_load_dwordx4 v{vKv+q}, s[{sK}:{sK+3}], s{sT2} offen offset:{1024*q} lds ; wo step {step}") for q in range(4)]
    def emit_dma(step):
        for l in flat(wo_dma(step)): E(l, ("w", step))
    def emit_tr(step):
        E(vwait(("w", step)))
        for l in tr_reads(step): E(l)
    T = vT
    P, _ = gen_attn_sched(peel=True)
    G0 = bar[0]; B7 = bar[1]
    NP = CUT + NPV
    Z = Sched(NP)
    for g in range(0, CUT):
        Z.mf[g] = P.mf[g]
        for x in A.gap[g]:
            if x.it or x.text.startswith("SWITCH") or x.text.startswith("v_add_f32"): continue
            if g < G0 + 1:
                if f"s[{sK}:{sK+3}]" in x.text or f"s{sKm}" in x.text or f"s{sKo}" in x.text or f"s{sKo+1}" in x.text: continue
                Z.put(g, Item(x.text.replace("vmcnt(8)", "vmcnt(V7)") + (" ; V7" if x.kind == "dma" else ""), x.kind))
            elif x.kind in ("ds", "t") or "cvt_pk" in x.text: Z.put(g, Item(x.text, x.kind))
            elif g == B7 and x.text in ("s_barrier",): Z.put(g, Item("s_waitcnt lgkmcnt(0)", "s")); Z.put(g, Item(x.text, "s"))
    for i in range(NPV): Z.mf[CUT + i] = P.mf[CUT + 16 + i]
    gg = CUT - 1
    for g in range(CUT, N):
        for x in P.gap[g]:
            if x.it == 0 and not x.text.startswith("v_add_f32"): gg = Z.put_win(min(gg + 1, CUT + Q1 - 3), CUT + Q1 - 3, Item(x.text, x.kind))
    if cfg.hyb:
        for g in range(0, 2 * PER):
            for x in A.gap[g]:
                if x.text.startswith("v_add_f32") and not x.it and int(x.text.split("v")[-1]) < vS + 16 and g < PER - 4 + 1: Z.put(g, Item(x.text, "v"))
        for n in range(1, 18):
            tl_ = LAST_TILE[n - 9] if n >= 9 else UNIT_TILE[n]
            sb = vS + 16 * (n & 1); l = vL + 8 * tl_
            for j in range(8):
                g = PER * (n - 1) + cfg.e0 + 2 * j + 1
                Z.put_win(g, min(PER * (n + 1) - 4, g + 30 if n == 9 else 10**6), Item(f"v_add_f32 v{l+(j&1)}, v{l+(j&1)}, v{sb+j}", "v"), pack=True)
    tags = {}
    def zput(lo, hi, text, kind, tag=None, pack=True, cap=CAP):
        if tag: tags[text] = tag
        return Z.put_win(lo, hi, Item(text, kind), pack=pack, cap=cap)
    def zf(lo, text, kind, tag=None, w=2):
        if tag: tags[text] = tag
        lo = min(lo, NP - 1)
        g = min(range(lo, min(lo + w, NP)), key=lambda x: (Z.cost[x] + (4 if kind in ("ds", "dma") and any(y.kind == "t" for y in Z.gap[x]) else 0), x))
        Z.put(g, Item(text, kind)); return g
    if cfg.v7step:
        seqv = []
        for g in range(0, G0):
            keep = []
            for x in Z.gap[g]:
                if x.text.endswith("; V7") or (x.kind == "s" and "m0" in x.text): seqv.append(x); Z.cost[g] -= x.cost
                else: keep.append(x)
            Z.gap[g] = keep
        g = 1; pre_ = []
        for x in seqv:
            if x.kind == "s": pre_.append(x.text); continue
            g = zf(g, x.text, "dma")
            for l in pre_: Z.put(g - 1, Item(l, "s"))
            pre_ = []; g += cfg.v7step
    vXw, vXr, vF, vFw = T, T + 1, 242, T + 3
    ad = [f"s_lshl_b32 s{sT0}, s{sW}, 14", f"s_lshr_b32 s{sT1}, s{sW}, 1", f"s_mul_i32 s{sT1}, s{sT1}, {KR[0] - 32768}", f"s_add_u32 s{sT0}, s{sT0}, s{sT1}",
          f"v_add_u32 v{vXw}, s{sT0}, v{vLn}", f"s_lshl_b32 s{sT0}, s{sW}, 11", f"v_add_u32 v{vXr}, s{sT0}, v{vLn}", f"v_add_u32 v{vXr+1}, {KR[0]}, v{vXr}",
          f"v_lshlrev_b32 v{vF}, 2, v0", f"v_add_u32 v{vF}, {LS[1]}, v{vF}", f"v_add_u32 v{vFw}, s{sW8}, v{vF}",
          f"s_lshl_b32 s{sT1}, s{sH}, 12", f"s_lshl_b32 s{sT3}, s{sW}, 10", f"s_add_u32 s{sT3}, s{sT3}, s{sT1}", f"s_add_u32 s{sT3}, s{sT3}, {16*131072}",
          f"s_lshl_b32 s{sT0}, s{sW}, 19", f"s_add_u32 s{sT0}, s{sT0}, s{sT1}", f"s_add_u32 s{sT1}, s{sT3}, 131072"]
    XOFF = 0x1400000
    sXs, sXr = sVo, sVo + 1
    su = [f"s_lshl_b32 s{sT1}, s{sW}, 19", f"s_lshl_b32 s{sT0}, s{sOdd}, 21", f"s_or_b32 s{sT1}, s{sT1}, s{sT0}",
          f"s_mov_b32 s{sD}, s{sPTR+8}", f"s_mov_b32 s{sD+1}, s{sPTR+9}", f"s_mov_b32 s{sD+2}, 4194304", f"s_mov_b32 s{sD+3}, 0x20000",
          f"s_lshr_b32 s{sPfo}, s2, 3", f"s_lshl_b32 s{sPfo}, s{sPfo}, 13", f"s_add_u32 s{sPfo}, s{sPfo}, s{sT1}",
          f"s_and_b32 s{sPfr}, s2, {4 if cfg.xrot else 0}", f"s_lshl_b32 s{sPfr}, s{sPfr}, 16", f"v_lshlrev_b32 v{vPfo}, 7, v0"]
    if cfg.cpf2:
        su += [f"s_getpc_b64 s[{sCP}:{sCP+1}]", "L_pc1:", f"s_add_u32 s{sCP}, s{sCP}, {'L_tail-L_pc1' if cfg.cpf2 == 1 else 0}", f"s_addc_u32 s{sCP+1}, s{sCP+1}, 0",
               f"s_lshr_b32 s{sT2}, s2, 3", f"s_lshl_b32 s{sT2}, s{sT2}, 2", f"s_add_u32 s{sT2}, s{sT2}, s{sW}", f"s_lshl_b32 s{sT2}, s{sT2}, 6",
               f"v_min_u32 v11, {1 if cfg.cpf2 == 1 else 2}, v0", f"v_lshlrev_b32 v11, 13, v11", f"v_add_u32 v11, s{sT2}, v11"]
    su += ["PF", f"s_and_b32 s{sR4}, s{sCg}, {cfg.orot}", f"s_lshl_b32 s{sR4}, s{sR4}, 15", f"s_or_b32 s{sR4}, s{sR4}, s{sT1}"]
    if cfg.xrot: su += [f"s_and_b32 s{sT1}, s2, 6", f"s_lshl_b32 s{sT1}, s{sT1}, 16", f"s_xor_b32 s{sR4}, s{sR4}, s{sT1}"]
    wo_voff(su.append, vKv, vT); wo_srd(su.append, sK)
    kg, r4, c4, tA, tB = vT, vT+1, vT+2, vT+3, vT+4
    su += [f"v_lshrrev_b32 v{kg}, 4, v0", f"v_bfe_u32 v{r4}, v0, 2, 2", f"v_and_b32 v{c4}, 3, v0",
           f"v_and_b32 v{tA}, 1, v{kg}", f"v_lshl_add_u32 v{tA}, v{tA}, 2, v{r4}", f"v_lshrrev_b32 v{tB}, 1, v{tA}", f"v_lshlrev_b32 v{tB}, 5, v{tB}",
           f"v_lshl_add_u32 v{tB}, v{tA}, 7, v{tB}", f"v_lshrrev_b32 v{tA}, 1, v{kg}", f"v_lshl_add_u32 v{tB}, v{tA}, 10, v{tB}",
           f"v_lshl_add_u32 v{tB}, v{c4}, 3, v{tB}", f"v_add_u32 v{vRa}, s{sW8}, v{tB}", f"s_lshl_b32 s{sT1}, s{sW}, 5", f"v_xor_b32 v{vRa}, s{sT1}, v{vRa}"]
    su += [f"v_xor_b32 v{vRa+nt}, {32*nt}, v{vRa}" for nt in range(1, 4)]
    su += [f"v_add_u32 v{vRa+4*s_+nt}, {65536*s_}, v{vRa+nt}" for s_ in range(1, 3) for nt in range(4)]
    su += ["v_lshlrev_b32 v10, 4, v0"]
    g = 2
    for l in su:
        if l == "PF":
            gsu = g
            if cfg.cpf2: zf(max(gsu, cfg.cpos), f"global_load_dword v{vPfd}, v11, s[{sCP}:{sCP+1}]", "dma")
            gp = gsu
            for i, x in enumerate(cfg.pfpos.split(",") if cfg.wopf else []):
                gp = zf(max(int(x), gp + 2), f"buffer_load_dword v{vPfd}, v{vPfo}, s[{sD}:{sD+3}], s{sPfx} offen ; pf{i}", "dma")
                for l_ in (f"s_xor_b32 s{sPfx}, s{sPfo}, s{sPfr}", f"s_add_u32 s{sPfo}, s{sPfo}, 262144"): Z.put(gp - 1, Item(l_, "s"))
        elif l.startswith("v_"): g = zput(g, g + 12, l, "v", pack=False) + 1
        else: Z.put(g, Item(l, "s"))
    if cfg.flags and cfg.clrpos:
        assert cfg.cntat > G0 and cfg.clrpos < 20
        for l in [f"s_or_b32 s99, s{sW}, s{sRedo}", "s_cbranch_scc1 L_noclr", f"v_mov_b32 v{vR+2}, s{sFo}", f"v_mov_b32 v{vR+3}, 0", "s_mov_b64 exec, 1",
                  f"global_store_dword v{vR+2}, v{vR+3}, s[{sPTR+14}:{sPTR+15}] sc1 ; wave 0", "s_mov_b64 exec, -1", "s_nop 3", "L_noclr:"]: Z.put(cfg.clrpos, Item(l, "s"))
    if cfg.flags:
        for l in [f"s_or_b32 s99, s{sW}, s{sRedo}", "s_cbranch_scc1 L_nocnt", f"v_mov_b32 v{vR+2}, 0", f"v_mov_b32 v{vR+3}, 1", "s_mov_b64 exec, 1",
                  f"global_atomic_add v{vR+2}, v{vR+3}, s[{sPTR+12}:{sPTR+13}] ; wave 0", "s_mov_b64 exec, -1", "s_nop 3", "L_nocnt:"]: Z.put(cfg.cntat, Item(l, "s"))
        for l in [f"s_cmp_lg_u32 s{sW}, 0", "s_cbranch_scc1 L_noget", f"v_mov_b32 v{vPfo}, 0", "s_mov_b64 exec, 1",
                  f"global_load_dword v{vPfo}, v{vPfo}, s[{sPTR+12}:{sPTR+13}] sc1 ; wave 0", "s_mov_b64 exec, -1", "s_nop 3", "L_noget:"]: Z.put(cfg.cntpos, Item(l, "s"))
    gp = max(g, cfg.ppos)
    for l in [f"s_add_u32 s{sV}, s{sPTR+14}, {XOFF}", f"s_addc_u32 s{sV+1}, s{sPTR+15}, 0", f"s_mov_b32 s{sV+2}, {256*20480}", f"s_mov_b32 s{sV+3}, 0x20000",
              f"s_mul_i32 s{sXr}, s2, 20480", f"s_mul_i32 s{sT0}, s{sW}, 5120", f"s_add_u32 s{sXr}, s{sXr}, s{sT0}",
              f"s_xor_b32 s{sXs}, s2, 1", f"s_mul_i32 s{sXs}, s{sXs}, 20480", f"s_add_u32 s{sXs}, s{sXs}, s{sT0}", f"s_add_u32 s{sT0}, s{sXr}, 4096"]: Z.put(gp, Item(l, "s"))
    for i in range(4): gp = zf(gp, f"v_mov_b32 v{vR+i}, -1", "v") + 1
    for i in range(0 if cfg.nopoison else 5):
        gp = zf(gp + 1, f"buffer_store_dwordx4 {vr(vR,4)}, v10, s[{sV}:{sV+3}], s{sXr if i < 4 else sT0} offen offset:{1024*(i&3)} sc1 ; mark {i}", "dma") + 1
    assert gp < G0 - 4
    g = G0 + 20
    for l in ad:
        if l.startswith("v_"): g = zput(g, g + 12, l, "v", pack=False) + 1
        else: Z.put(g, Item(l, "s"))
    def burst(g, lines):
        for l in lines: Z.put(g, Item(l, "v"))
    def pk(b, r):
        return f"v_pk_mul_f32 {vr(b,2)}, {vr(b,2)}, {vr(r & ~1,2)} op_sel:[0,{r & 1}] op_sel_hi:[1,{r & 1}]"
    sFl = sVm
    g = cfg.xw0 or PER * 9 + 16 + NPV + 6
    if cfg.hyb: burst(g, [f"v_add_f32 v{vL+16}, v{vL+16}, v{vL+16+1}", f"v_mov_b32 v{vL+18}, v{vL+16}", "s_nop 1", f"v_permlane32_swap_b32 v{vL+16}, v{vL+18}", f"v_add_f32 v{vL+16}, v{vL+16}, v{vL+18}",
               f"v_mov_b32 v{vL+18}, v{vL+16}", "s_nop 1", f"v_permlane16_swap_b32 v{vL+16}, v{vL+18}", f"v_add_f32 v{vL+16}, v{vL+16}, v{vL+18}"])
    for i in range(16): g = zf(g, f"ds_write_b128 v{vXw}, {ar(aO+128+4*i,4)} offset:{1024*i}", "ds") + 1
    g = zf(g, f"ds_write_b32 v{vFw}, v{vL+16}", "ds"); g = zf(g, f"ds_write_b32 v{vFw}, v{vL+20} offset:256", "ds")
    Z.put(g - 4, Item(f"s_mov_b32 s{sKd}, {LTHRESH:#x}", "s"))
    g = zf(g, f"v_add_f32 v{vR+4}, v{vL+16}, v{vL+20}", "v") + 1
    g = zf(g, f"v_cmp_nge_f32 s[{sFl}:{sFl+1}], s{sKd}, v{vR+4}", "v")
    XA = g + 7
    Z.put(XA, Item("s_waitcnt lgkmcnt(0)", "s")); Z.put(XA, Item("s_barrier", "s"))
    bA = [vQ + 64 + 4 * i for i in range(4)]; bB = [vQ + 80 + 4 * i for i in range(4)]; bC = [vNM + 16, vNM + 20, vL + 16, vL + 20]
    lr = [[236, 237, 238, 239], [5, 6, 7, 8]]
    def prd(wv, dst): return [f"ds_read_b128 {vr(dst[i],4)}, v{vXr+(wv>>1)} offset:{16384*(wv&1)+8192*(i>>1)+1024*(i&1)}" for i in range(4)]
    def padd(d, x): return [f"v_pk_add_f32 {vr(d[i]+r,2)}, {vr(d[i]+r,2)}, {vr(x[i]+r,2)}" for i in range(4) for r in (0, 2)]
    g = XA
    rd = prd(0, bA) + prd(1, bB) + prd(2, bC) + [f"ds_read_b32 v{lr[j][wv]}, v{vF} offset:{8192*wv+256*j}" for wv in range(4) for j in range(2)]
    for i, r in enumerate(rd): g = zf(g + (i & 1), r, "ds")
    gt = g + 1
    g = gt + 8
    while any(y.kind == "t" for y in Z.gap[g]): g += 1
    burst(g, padd(bA, bB))
    g3 = g + 1
    for i, r in enumerate(prd(3, bB)): g3 = zf(g3 + (i & 1), r, "ds")
    g += 2
    lsum = []
    for j in range(2):
        x = lr[j]; lsum += [f"v_add_f32 v{x[0]}, v{x[0]}, v{x[1]}", f"v_add_f32 v{x[2]}, v{x[2]}, v{x[3]}", f"v_add_f32 v{x[0]}, v{x[0]}, v{x[2]}"]
    burst(g, padd(bA, bC) + lsum + [f"v_rcp_f32 v{lr[0][0]}, v{lr[0][0]}", f"v_rcp_f32 v{lr[0][1]}, v{lr[1][0]}"])
    XB = g3 + 9
    while any(y.kind == "t" for y in Z.gap[XB]): XB += 1
    Z.put(XB, Item("s_waitcnt lgkmcnt(0)", "s")); Z.put(XB, Item("s_barrier", "s"))
    burst(XB, padd(bA, bB) + [pk(bA[i] + r, lr[0][i >> 1]) for i in range(4) for r in (0, 2)]
          + [f"v_cvt_pk_bf16_f32 v{bB[0]+i}, v{bA[0]+2*i}, v{bA[0]+2*i+1}" for i in range(8)])
    g = XB
    for j in range(2):
        d = f"buffer_store_dwordx4 {vr(bB[j],4)}, v{vLn}, s[{sO}:{sO+3}], s{sT3 if j == 0 else sT1} offen{cfg.st_sc}"
        g = zf(g + 1, d, "dma", tag=("prov", "st"))
    GS = g + 2
    free = [(cfg.d0, 0)] + [(XB + 1, i) for i in (1, 2, 3, 4, 5)] + [(B7 + 1, i) for i in (6, 7, 8, 9)]
    ravail = [XA] * 4 + [GS] * 2 + [CUT - 16, CUT - 16]
    gd = cfg.d0; gtr = gt + 1; nxt = 0; pend = []; ntr = 0; LSOF.clear()
    while True:
        free.sort()
        t0 = max(gd, free[0][0]) if free else 10**6
        if pend and ntr < len(ravail):
            tt = max(pend[0][1] + cfg.land, ravail[ntr], gtr)
            if tt <= t0 and tt + 8 < NP:
                st, gi = pend.pop(0); g = tt
                for i, r in enumerate(tr_reads(st)): g = zf(g + (i & 1), r, "ds", tag=("need", ("w", st)) if i == 0 else None)
                gtr = g + 1; free.append((g + 8, LSOF[st])); ntr += 1
                continue
        if t0 + 8 >= NP or nxt >= NW: break
        gf, sl = free.pop(0); LSOF[nxt] = sl
        w_ = wo_dma(nxt)
        if any(LSOF.get(x) == sl for x in range(nxt)): w_[0] = ([f"s_waitcnt lgkmcnt(15) ; slot {nxt}"] + w_[0][0], w_[0][1])
        g = t0
        for q, (p_, d) in enumerate(w_):
            g = zf(g, d, "dma", tag=("prov", ("w", nxt)), w=2 if t0 + 12 < NP else 1)
            for l in p_: Z.put(g - 1, Item(l, "s"))
            g += 2 if t0 + 12 < NP else 1
        pend.append((nxt, g)); gd = max(t0 + cfg.dstep, g); nxt += 1
    free = [x[1] for x in sorted(free)]
    sys.stderr.write(f"last stage: XA {XA} XB {XB} GS {GS}; wo steps issued {nxt}, in registers {ntr}; overflow {sum(max(0, c - CAP) for c in Z.cost)}\n")
    E("L_last:")
    if cfg.pstamp:
        for i_, g_ in enumerate((0, G0 + 1, XB + 1, B7 + 1)): Z.put(g_, Item(f"s_memtime s[{sST2+2*i_}:{sST2+2*i_+1}]", "s"))
    seq = Z.linear(0, NP)
    seq2 = lgkm_waits([(g - N, k, l) for g, k, l in body if g >= bar[1] and not l.startswith("SWITCH")] + [(-1, "x", "MARK:")] + seq)
    seq2 = seq2[[x[2] for x in seq2].index("MARK:") + 1:]
    dsq = []
    for g, k, l in seq2:
        if "; slot" in l:
            st = int(l.split()[-1]); prev = max(x for x in range(st) if LSOF[x] == LSOF[st])
            idx = max(i for i, x in enumerate(dsq) if x.endswith(f"wo step {prev}"))
            l = f"s_waitcnt lgkmcnt({min(15, len(dsq) - 1 - idx)})"
        if l.startswith("ds_"): dsq.append(l)
        if l.endswith("; V7"): tags[l] = ("prov", "V7")
        if "vmcnt(V7)" in l: l = vwait("V7") + " lgkmcnt(0)"
        tg = tags.get(l)
        if tg and tg[0] == "need": E(vwait(tg[1]))
        E(l, tg[1] if tg and tg[0] == "prov" else None)
    E("L_tail:")
    stamp(ep, 4)
    if cfg.hyb:
        r0 = [f"v_add_f32 v{vL}, v{vL}, v{vL+1}", f"v_mov_b32 v{vL+2}, v{vL}", "s_nop 1", f"v_permlane32_swap_b32 v{vL}, v{vL+2}", f"v_add_f32 v{vL}, v{vL}, v{vL+2}",
               f"v_mov_b32 v{vL+2}, v{vL}", "s_nop 1", f"v_permlane16_swap_b32 v{vL}, v{vL+2}", f"v_add_f32 v{vL}, v{vL}, v{vL+2}"]
        r1 = [f"v_add_f32 v{vL+8}, v{vL+8}, v{vL+8+1}", f"v_mov_b32 v{vL+10}, v{vL+8}", "s_nop 1", f"v_permlane32_swap_b32 v{vL+8}, v{vL+10}", f"v_add_f32 v{vL+8}, v{vL+8}, v{vL+10}",
               f"v_mov_b32 v{vL+10}, v{vL+8}", "s_nop 1", f"v_permlane16_swap_b32 v{vL+8}, v{vL+10}", f"v_add_f32 v{vL+8}, v{vL+8}, v{vL+10}"]
        for x, y in zip(r0, r1):
            if x.startswith("v_"): E(x); E(y)
    for qt in range(4): E(f"v_rcp_f32 v{vR+qt}, v{vL+4*qt}")
    chk = [f"s_mov_b32 s{sT3}, {LTHRESH:#x}",
           f"v_add_f32 v{T}, v{vL}, v{vL+4}", f"v_add_f32 v{T+1}, v{vL+8}, v{vL+12}",
           f"v_add_f32 v{T}, v{T}, v{T+1}", f"v_cmp_nge_f32 vcc, s{sT3}, v{T}",
           f"v_lshlrev_b32 v{vF}, 2, v0", f"v_add_u32 v{vF}, {{FL}}, v{vF}", f"v_add_u32 v{T+1}, s{sW8}, v{vF}",
           f"s_or_b64 vcc, vcc, s[{sFl}:{sFl+1}]", f"s_cselect_b32 s{sT3}, 1, 0", f"v_mov_b32 v{T+2}, s{sT3}"]
    todo = [st for st, gi in pend]
    fl = 220
    if free: FS = free.pop(0); first = []
    else: first = [todo.pop(0)]; FS = LSOF[first[0]]
    for k in range(16):
        qt, kc = k >> 2, k & 3
        b0 = 108 + 12 * (k % 2)
        if k == 0:
            for st in first: emit_tr(st); ntr += 1
        if k == 3:
            E("s_waitcnt lgkmcnt(0)"); E("s_barrier")
            for wv in range(4): E(f"ds_read_b32 v{fl+wv}, v{vF} offset:{8192*wv}")
        if k == 4:
            E("s_waitcnt lgkmcnt(0)")
            E(f"v_or_b32 v{fl}, v{fl}, v{fl+1}"); E(f"v_or3_b32 v{fl}, v{fl}, v{fl+2}, v{fl+3}")
            E(f"v_readfirstlane_b32 s{sT2}, v{fl}")
            E(f"s_andn2_b32 s{sT2}, s{sT2}, s{sRedo}"); E(f"s_cmp_lg_u32 s{sT2}, 0"); E("s_cbranch_scc1 L_fallback")
        if k >= 5 and todo and todo[0] < 16:
            st = todo.pop(0); emit_tr(st); free.append(LSOF[st]); ntr += 1
        for i in range(8): E(f"v_accvgpr_read_b32 v{b0+i}, a{aO+32*qt+8*kc+i}")
        for i in range(4): E(pk(b0 + 2 * i, vR + qt))
        for i in range(4): E(f"v_cvt_pk_bf16_f32 v{b0+8+i}, v{b0+2*i}, v{b0+2*i+1}")
        E(f"buffer_store_dwordx4 {vr(b0+8,4)}, v{vLn}, s[{sO}:{sO+3}], s{sT0} offen offset:{1024*kc}{cfg.st_sc}", "st")
        if kc == 3 and qt < 3: E(f"s_add_u32 s{sT0}, s{sT0}, 131072")
        if k == 1:
            for l in chk: E(l.replace("{FL}", str(LS[FS])))
            E("s_waitcnt lgkmcnt(0)"); E(f"ds_write_b32 v{T+1}, v{T+2}")
    stamp(ep, 5)
    E("s_waitcnt lgkmcnt(0)")
    for _ in range(cfg.npost):
        if nxt < NW: LSOF[nxt] = free.pop(0); emit_dma(nxt); todo.append(nxt); nxt += 1
    E(f"s_mov_b32 s{sD}, s{sPTR+12}"); E(f"s_mov_b32 s{sD+1}, s{sPTR+13}"); E(f"s_mov_b32 s{sD+2}, 256"); E(f"s_mov_b32 s{sD+3}, 0x20000")
    E(f"s_lshl_b32 s{sT0}, s{sMt}, 17"); E(f"s_add_u32 s{sX}, s{sPTR+14}, s{sT0}"); E(f"s_addc_u32 s{sX+1}, s{sPTR+15}, 0")
    E(f"s_mov_b32 s{sX+2}, {9*131072}"); E(f"s_mov_b32 s{sX+3}, 0x20000")
    E(f"s_lshl_b32 s{sT0}, s{sMt}, 14"); E(f"s_add_u32 s{sWQ}, s{sPTR+10}, s{sT0}"); E(f"s_addc_u32 s{sWQ+1}, s{sPTR+11}, 0")
    E(f"s_mov_b32 s{sWQ+2}, {9*16384}"); E(f"s_mov_b32 s{sWQ+3}, 0x20000")
    vOo = 220
    E(f"v_mov_b32 v{vZ}, 0"); E(f"v_mov_b32 v{T}, 1"); E(f"s_mul_i32 s{sT2}, s{sOdd}, {5*131072}")
    E(f"v_add_u32 v{vOo}, s{sT2}, v{vLn}"); E(f"v_add_u32 v{vOo+4}, {4*131072}, v{vLn}"); E(f"v_subrev_u32 v{vOo+5}, s{sT2}, v{vLn}"); E(f"v_add_u32 v{vOo+5}, {5*131072}, v{vOo+5}")
    for i in range(1, 4): E(f"v_add_u32 v{vOo+i}, {131072*i}, v{vOo}"); E(f"v_add_u32 v{vOo+5+i}, {131072*i}, v{vOo+5}")
    sPo = sXm
    E(f"s_lshr_b32 s{sPo}, s{sR4}, 5")
    E(f"s_lshl_b32 s{sT0}, s{sB}, 1"); E(f"s_lshr_b32 s{sT1}, s{sH}, 4"); E(f"s_add_u32 s{sT0}, s{sT0}, s{sT1}"); E(f"s_lshl_b32 s{sT0}, s{sT0}, 4")
    E(f"s_lshl_b32 s{sT1}, s{sRg}, 1"); E(f"s_add_u32 s{sT1}, s{sT1}, s{sOdd}"); E(f"s_lshl_b32 s{sT1}, s{sT1}, 4")
    E(f"v_mov_b32 v{T+1}, s{sT0}"); E(f"v_writelane_b32 v{T+1}, s{sT1}, 0")
    E(f"s_lshl_b32 s{sT2}, s{sB}, 5"); E(f"s_add_u32 s{sT2}, s{sT2}, s{sH}")
    if cfg.flags:
        E(f"s_lshl_b32 s{sT1}, s{sT1}, {cfg.fstr - 4}"); E(f"s_add_u32 s{sT1}, s{sT1}, {FLAG_OFF}"); E(f"s_xor_b32 s{sT0}, s{sFo}, {4 << cfg.fsep}")
        E(f"v_lshlrev_b32 v{T+1}, {cfg.fsep}, v0"); E(f"v_add_u32 v{T+1}, s{sT1}, v{T+1}"); E(f"v_mov_b32 v{T+2}, s{sT0}"); E(f"v_cmp_gt_u32 vcc, 16, v0")
        E(f"v_cndmask_b32 v{T+1}, v{T+2}, v{T+1}, vcc"); E(f"v_mov_b32 v{T+2}, s{sFo}")
    E(vwait("st")); E("s_barrier")
    E(f"s_cmp_lg_u32 s{sW}, 0"); E("s_cbranch_scc1 L_nosig")
    E("s_mov_b64 exec, 1")
    if cfg.flags: ep.append(f"global_store_dword v{T+2}, v{T}, s[{sPTR+14}:{sPTR+15}] sc1")
    elif cfg.bflag: ep.append(f"buffer_store_byte v{T}, v{vZ}, s[{sD}:{sD+3}], s{sT2} offen sc1")
    else: ep.append(f"buffer_atomic_add v{T}, v{vZ}, s[{sD}:{sD+3}], s{sT0} offen")
    if cfg.epoll: E("s_mov_b64 exec, 0x1ffff"); ep.append(f"global_load_dword v{T+3}, v{T+1}, s[{sPTR+14}:{sPTR+15}] sc1")
    E("s_mov_b64 exec, -1")
    E("L_nosig:")
    hist.append("sig"); hist.append("look")
    stamp(ep, 6)
    if cfg.cpf3:
        E(f"s_getpc_b64 s[{sCP}:{sCP+1}]"); E(f"v_min_u32 v{T+9}, 1, v0"); E(f"v_lshlrev_b32 v{T+9}, 13, v{T+9}")
        E(f"s_lshr_b32 s{sT2}, s2, 3"); E(f"s_lshl_b32 s{sT2}, s{sT2}, 2"); E(f"s_add_u32 s{sT2}, s{sT2}, s{sW}"); E(f"s_lshl_b32 s{sT2}, s{sT2}, 6")
        E(f"v_add_u32 v{T+9}, s{sT2}, v{T+9}"); E(f"v_min_u32 v{T+9}, L_end-L_nosig, v{T+9}")
        E(f"global_load_dword v{T+9}, v{T+9}, s[{sCP}:{sCP+1}]")
    free.append(FS)
    late_dma = []
    while nxt < NW:
        LSOF[nxt] = free.pop(0); todo.append(nxt)
        if cfg.latew: late_dma.append(nxt)
        else: emit_dma(nxt)
        nxt += 1
    late_tr = list(todo)
    sys.stderr.write(f"wo steps still to be read into registers after the signal: {late_tr}\n")
    if cfg.trpre:
        for st in late_tr: emit_tr(st)
        late_tr = []
    stamp(ep, 7)
    E(f"s_cmp_lg_u32 s{sW}, 0"); E("s_cbranch_scc1 L_ready")
    E(f"s_mov_b32 s{sCnt}, 0x40000")
    if cfg.flags:
        E("L_cnt:")
        E(f"v_readfirstlane_b32 s{sT0}, v{vPfo}"); E(f"s_sub_u32 s{sCnt}, s{sCnt}, 1"); E(f"s_cmp_eq_u32 s{sCnt}, 0"); E("s_cbranch_scc1 L_ready")
        E(f"s_cmp_ge_u32 s{sT0}, 256"); E("s_cbranch_scc1 L_cntok")
        E("s_sleep 16"); ep.append(f"global_load_dword v{vPfo}, v{vZ}, s[{sPTR+12}:{sPTR+13}] sc1"); E("s_waitcnt vmcnt(0)"); E("s_branch L_cnt")
        E("L_cntok:")
    E(f"s_mov_b64 exec, {0x1ffff if cfg.flags else 3:#x}")
    if cfg.epoll:
        E(vwait("look")); E(f"v_cmp_ne_u32 vcc, 1, v{T+3}"); E("s_cmp_eq_u64 vcc, 0"); E("s_cbranch_scc1 L_got")
    E("L_poll:")
    if cfg.flags:
        ep.append(f"global_load_dword v{T+3}, v{T+1}, s[{sPTR+14}:{sPTR+15}] sc1")
        E("s_waitcnt vmcnt(0)"); E(f"v_cmp_ne_u32 vcc, 1, v{T+3}")
    elif cfg.bflag:
        ep.append(f"buffer_load_dwordx4 {vr(T+4,4)}, v{T+1}, s[{sD}:{sD+3}], 0 offen sc1")
        E("s_waitcnt vmcnt(0)"); E(f"v_and_b32 v{T+4}, v{T+4}, v{T+5}"); E(f"v_and_b32 v{T+6}, v{T+6}, v{T+7}"); E(f"v_and_b32 v{T+4}, v{T+4}, v{T+6}")
        E(f"v_cmp_ne_u32 vcc, 0x01010101, v{T+4}")
    else:
        ep.append(f"buffer_load_dword v{T+3}, v{T+1}, s[{sD}:{sD+3}], 0 offen sc1")
        E("s_waitcnt vmcnt(0)"); E(f"v_cmp_gt_u32 vcc, 16, v{T+3}")
    E(f"s_sub_u32 s{sCnt}, s{sCnt}, 1"); E(f"s_cmp_eq_u32 s{sCnt}, 0"); E("s_cbranch_scc1 L_got")
    E("s_cmp_eq_u64 vcc, 0"); E("s_cbranch_scc1 L_got")
    E(f"s_sleep {cfg.sleep}"); E("s_branch L_poll")
    E("L_got:"); E("s_mov_b64 exec, -1")
    E("L_ready:")
    E("s_barrier")
    stamp(ep, 8); stamp(ep, 5, True)
    TM = 12
    TORD = [4, 5, 6, 7, 8, 0, 1, 2, 3]
    uses = [(st, t) for st in range(TM) for t in range(9)] + [(st, t) for t in TORD for st in range(TM, 16)]
    OB = [("a", 108 + 4 * i) for i in range(5)] + [("v", 44 + 4 * i) for i in range(8)] + [("v", 144 + 4 * i) for i in range(3)]
    LAT = cfg.LAT; assert LAT + cfg.og + 1 <= len(OB) and LAT >= 2 * cfg.og - 1
    ob = lambda u: (vr if OB[u % len(OB)][0] == "v" else ar)(OB[u % len(OB)][1], 4)
    acc = lambda t, j: vr(108 + 4 * t, 4) if j == 0 else ar(12 * t + 4 * (j - 1), 4)
    sS = [sKo, sKo + 1, sKs, sVs]
    def oload(u):
        st, t = uses[u]
        pre = [f"s_xor_b32 s{sS[st & 3]}, s{sPo}, {1024*st}"] if (st, t) == next(x for x in uses if x[0] == st) else []
        return pre, f"buffer_load_dwordx4 {ob(u)}, v{vOo+t}, s[{sX}:{sX+3}], s{sS[st & 3]} offen{cfg.ld_sc} ; o {u}"
    for u in range(LAT):
        for l in flat([oload(u)]): E(l, ("o", u))
    NM = 4 * len(uses)
    SO = Sched(NM); tags = {}
    for u, (st, t) in enumerate(uses):
        for j in range(4):
            SO.mf[4*u + j] = Item(f"{MF} {acc(t,j)}, {rreg(st, j)}, {ob(u)}, {'0' if st == 0 else acc(t,j)} ; o {u}", "mf")
        if u + LAT < len(uses):
            p_, d = oload(u + LAT); tags[d] = ("prov", ("o", u + LAT))
            gl = 4 * (u - u % cfg.og) + (1 if cfg.og == 1 else u % cfg.og)
            for l in p_: SO.put(max(gl - 1, 0) if gl else 0, Item(l, "s"))
            SO.put(gl, Item(d, "dma"))
    dpos = {}
    for i, st in enumerate(late_dma):
        g = cfg.lw0 + cfg.lwstep * i
        for p_, d in wo_dma(st):
            tags[d] = ("prov", ("w", st)); g = place_dmas(SO, [(p_, d)], g, 2)
        dpos[st] = g
    g = 2
    for st in late_tr:
        if st in dpos: g = max(g, dpos[st] + 60)
        for k_, r in enumerate(tr_reads(st)):
            while SO.cost[g] > 4: g += 1
            SO.put(g, Item(r, "ds")); g += (2 if k_ & 1 else 0)
            if k_ == 0: tags[r] = ("need", ("w", st))
        assert g < 36 * st - 8
    tL, tH, r1, r2l, r2h, r3, va = 229, 230, 231, T + 4, T + 5, T + 6, T + 7
    ad = [f"v_add_u32 v{tL}, s{sW8}, v{vLn}", f"v_add_u32 v{tH}, 65536, v{tL}", f"v_xor_b32 v{r1}, 8192, v{tL}", f"v_xor_b32 v{r2l}, 16384, v{tL}",
          f"v_xor_b32 v{r2h}, 16384, v{tH}", f"v_xor_b32 v{r3}, 24576, v{tH}",
          f"v_and_b32 v{va}, 15, v0", f"v_lshlrev_b32 v{va}, 10, v{va}", f"v_lshrrev_b32 v{va+1}, 4, v0", f"v_lshl_add_u32 v{va}, v{va+1}, 3, v{va}",
          f"s_lshl_b32 s{sT0}, s{sCg}, 7", f"s_lshl_b32 s{sT1}, s{sW}, 5", f"s_add_u32 s{sT0}, s{sT0}, s{sT1}", f"s_add_u32 s{sT3}, s{sT0}, {4*16384}",
          f"s_mul_i32 s{sT1}, s{sOdd}, {5*16384}", f"s_add_u32 s{sT0}, s{sT0}, s{sT1}", f"s_add_u32 s{sT1}, s{sXs}, 4096", f"s_add_u32 s{sT2}, s{sXr}, 4096"]
    g = 36 * 9 + 2
    for l in ad:
        if l.startswith("v_"): SO.put(g, Item(l, "v")); g += 4
        else: SO.put(g, Item(l, "s"))
    SO.put(36 * TM - 4, Item("s_waitcnt lgkmcnt(0)", "s"))
    def loc(j, t): n = (j - 1) * 9 + t; return n // 8, (n // 8 & 1) * 32768 + (n % 8) * 1024
    def wr(j, t): r_, o_ = loc(j, t); return f"ds_write_b128 v{tL if r_ < 2 else tH}, {acc(t,j)} offset:{o_}"
    def rd(j, t, dst):
        r_, o_ = loc(j, t); a_ = {1: r1, 2: r2l if r_ < 2 else r2h, 3: r3}[j]
        assert (j != 1 or r_ < 2) and (j != 3 or r_ >= 2)
        return f"ds_read_b128 {vr(dst,4)}, v{a_} offset:{o_}"
    late = []
    for i, t in enumerate(TORD):
        for j in range(1, 4):
            gg = 36 * TM + 16 * i + 12 + j + 9 + (j - 1)
            if gg < NM: SO.put(gg, Item(wr(j, t), "ds"))
            else: late.append(wr(j, t))
    tmp = [76 + 4 * i for i in range(8)] + [156 + 4 * i for i in range(8)]
    def sums(t, b):
        a0 = 108 + 4 * t
        return [f"v_pk_add_f32 {vr(a0+r,2)}, {vr(a0+r,2)}, {vr(b[0]+r,2)}" for r in (0, 2)] + [f"v_pk_add_f32 {vr(b[1]+r,2)}, {vr(b[1]+r,2)}, {vr(b[2]+r,2)}" for r in (0, 2)] \
             + [f"v_pk_add_f32 {vr(a0+r,2)}, {vr(a0+r,2)}, {vr(b[1]+r,2)}" for r in (0, 2)]
    X1 = 36 * TM + 16 * 4 + 12 + 3 + 9 + 2 + cfg.x1d
    SO.put(X1, Item("s_waitcnt lgkmcnt(0)", "s")); SO.put(X1, Item("s_barrier", "s"))
    g = X1
    for i, t in enumerate(TORD[:5]):
        for j in range(1, 4): SO.put(g + (3 * i + j - 1) // 2, Item(rd(j, t, tmp[3*i+j-1]), "ds"))
    g = X1 + 14
    for i, t in enumerate(TORD[:5]):
        for l in sums(t, tmp[3*i:3*i+3]): SO.put(g, Item(l, "v"))
        d = f"buffer_store_dwordx4 {vr(108+4*t,4)}, v{vLn}, s[{sV}:{sV+3}], s{sT1 if i == 0 else sXs} offen offset:{0 if i == 0 else 1024*(i-1)} sc1 ; send {i}"
        SO.put(g + 1, Item(d, "dma")); g += 2
    assert g < NM - 2, (g, NM)
    seq = lgkm_waits(SO.linear(0, NM))
    E(vwait(("o", cfg.og - 1))); stamp(ep, 6, True)
    for idx, (g, k, l) in enumerate(seq):
        tg = tags.get(l)
        if tg and tg[0] == "need": E(vwait(tg[1]))
        E(l, tg[1] if tg and tg[0] == "prov" else None)
        if k == "mf" and g % (4 * cfg.og) == 4 * cfg.og - 1 and g < NM - 1: E(vwait(("o", g // 4 + cfg.og)))
        if k == "mf" and g == NM // 2 - 1: stamp(ep, 7, True)
        if k == "mf" and g == NM - 1: stamp(ep, 8, True)
    rcv = [44 + 4 * i for i in range(5)]
    rl = [f"buffer_load_dwordx4 {vr(rcv[i],4)}, v{vLn}, s[{sV}:{sV+3}], s{sXr if i < 4 else sT2} offen offset:{1024*(i&3)} sc1" for i in range(5)]
    for l in late: E(l)
    for l in rl: E(l)
    E("s_waitcnt lgkmcnt(0)"); E("s_barrier")
    tm2 = [156 + 4 * i for i in range(12)]
    for t in range(4):
        for j in range(1, 4): E(rd(j, t, tm2[3*t+j-1]))
    for t in range(4):
        E(f"s_waitcnt lgkmcnt({3*(3-t)})")
        for l in sums(t, tm2[3*t:3*t+3]): E(l)
    E(f"s_mov_b32 s{sCnt}, 0x40000")
    E("L_rx:")
    E("s_waitcnt vmcnt(0)")
    E(f"v_max3_u32 v{T}, v{rcv[0]}, v{rcv[0]+1}, v{rcv[0]+2}")
    for i in range(3, 19, 2): E(f"v_max3_u32 v{T}, v{T}, v{rcv[0]+i}, v{rcv[0]+i+1}")
    E(f"v_max_u32 v{T}, v{T}, v{rcv[0]+19}"); E(f"v_cmp_eq_u32 vcc, -1, v{T}")
    E(f"s_sub_u32 s{sCnt}, s{sCnt}, 1"); E(f"s_cmp_eq_u32 s{sCnt}, 0"); E("s_cbranch_scc1 L_rxd")
    E("s_cmp_eq_u64 vcc, 0"); E("s_cbranch_scc1 L_rxd")
    E(f"s_sleep {cfg.rsleep}")
    for l in rl: ep.append(l)
    E("s_branch L_rx")
    E("L_rxd:")
    for t in range(5):
        a0 = 108 + 4 * t
        for r in (0, 2): E(f"v_pk_add_f32 {vr(a0+r,2)}, {vr(a0+r,2)}, {vr(rcv[t]+r,2)}")
        E(f"v_cvt_pk_bf16_f32 v{rcv[t]}, v{a0}, v{a0+1}"); E(f"v_cvt_pk_bf16_f32 v{rcv[t]+1}, v{a0+2}, v{a0+3}")
        E(f"buffer_store_dwordx2 {vr(rcv[t],2)}, v{va}, s[{sWQ}:{sWQ+3}], s{sT0 if t < 4 else sT3} offen{cfg.out_sc}")
        if t < 3: E(f"s_add_u32 s{sT0}, s{sT0}, 16384")
    if cfg.stamp:
        vt = 156
        E("s_waitcnt vmcnt(0)")
        E(f"s_memtime s[{sST+10}:{sST+11}]"); E(f"s_memrealtime s[{sST+12}:{sST+13}]"); E("s_waitcnt lgkmcnt(0)")
        E(f"s_add_u32 s{sD}, s{sPTR+14}, 0x4000000"); E(f"s_addc_u32 s{sD+1}, s{sPTR+15}, 0")
        E(f"s_mov_b32 s{sD+2}, 0x100000"); E(f"s_mov_b32 s{sD+3}, 0x20000")
        E(f"s_lshl_b32 s{sT0}, s2, 2"); E(f"s_add_u32 s{sT0}, s{sT0}, s{sW}"); E(f"s_lshl_b32 s{sT0}, s{sT0}, 7")
        for i in range(16): E(f"v_mov_b32 v{vt+i}, s{sST+i}")
        for i in range(8): E(f"v_mov_b32 v{vt+16+i}, s{sST2+i}")
        for i in range(6): E(f"buffer_store_dwordx4 {vr(vt+4*i,4)}, v{vZ}, s[{sD}:{sD+3}], s{sT0} offen offset:{16*i}")
    E("L_end:"); E("s_endpgm")
    E("L_fallback:")
    E(f"s_mov_b32 s{sRedo}, 1"); E("s_waitcnt vmcnt(0) lgkmcnt(0)"); E("s_barrier")
    E(f"s_load_dwordx16 s[{sPTR}:{sPTR+15}], s[0:1], 0")
    E("s_branch L_restart")
    E("L_truemax:")
    for l in a2_all: E(l)
    mx = [vT + 12 + qt for qt in range(6)]
    for qt in range(6): E(f"v_mov_b32 v{mx[qt]}, 0xff800000")
    E(f"s_mov_b32 s{sCnt}, 8"); E(f"s_add_u32 s{sKm}, s{sW8}, {KR[0]}")
    E("s_waitcnt vmcnt(0) lgkmcnt(0)")
    E("L_fb_loop:")
    E("s_barrier")
    for l in flat(k_dma()) + adv(sKo, sKs): E(l)
    E("s_waitcnt vmcnt(0)"); E("s_barrier")
    for j in range(4):
        for idx in range(8): E(k_read(j, idx >> 2, idx & 3))
        E("s_waitcnt lgkmcnt(0)")
        for k16 in range(2):
            for qt in range(6):
                nb = vNM + 4 * qt
                for c in range(4):
                    E(f"{MF} {vr(nb,4)}, {ar(aK+16*k16+4*c,4)}, {vr(vQ+16*qt+4*c,4)}, {'0' if c == 0 else vr(nb,4)}")
            E("s_nop 7")
            for qt in range(6):
                nb = vNM + 4 * qt
                E(f"v_max3_f32 v{mx[qt]}, v{mx[qt]}, v{nb}, v{nb+1}"); E(f"v_max3_f32 v{mx[qt]}, v{mx[qt]}, v{nb+2}, v{nb+3}")
            E("s_nop 3")
    E(f"s_sub_u32 s{sCnt}, s{sCnt}, 1"); E(f"s_cmp_lg_u32 s{sCnt}, 0"); E("s_cbranch_scc1 L_fb_loop")
    E("s_barrier")
    E(f"s_mov_b32 s{sKo}, s{sK0}"); E(f"s_add_u32 s{sKo+1}, s{sK0}, 4096")
    for l in flat(k_dma()) + adv(sKo, sKs): E(l)
    negm(E, mx)
    E("s_waitcnt vmcnt(0)"); E("s_barrier")
    E("s_branch L_att")
    pre = [l for g, k, l in body2 if g >= N - 12 and not l.startswith("SWITCH")]
    n0_ = len(ep)
    el, _ = check_hazards(pre + ["Y:"] + ep, "ep", fix=True)
    sys.stderr.write(f"nops added after the loop: {len(el) - len(pre) - 1 - n0_}\n")
    o += el[el.index("Y:") + 1:]
    return o

def main():
    k1 = [l for l in gen() if l]
    n0 = len(k1); k1, _ = check_hazards(k1, "k1", fix=True)
    sys.stderr.write(f"{len(k1)} lines, {len(k1)-n0} nops added by final pass\n")
    hdr = open("standalone__gqa_block_cached__near_ridge.s.ref").read().split("\n")[:9]
    doc = """;
; One workgroup of four waves per (batch, head); all 256 are resident at once, one per CU.
;  1. Q^T = wq_h^T x_b^T, eight 64-deep chunks staged in LDS by LDS-DMA; scaled by log2(e)/sqrt(128), packed to bf16.
;  2. Attention over eight stages of 128 keys (K ring of three slots, V ring of two). Each wave owns 64 queries and a quarter
;     of the keys of the last 32 queries. S^T = K Q^T - m leaves the MFMA with the shift already applied (m enters as the C
;     operand), P = exp2(S), O^T += V^T P^T and the row sums follow in a software pipeline of 16x16x32 MFMAs.
;     m is the score of the first key, a lower bound of the row maximum; if any row sum leaves [0, 2^64] (or is NaN) the
;     workgroup starts again, takes the true row maxima in a separate pass over K and repeats the attention with them.
;  3. o goes to the workspace (write-through), a flag per workgroup tells the readers. Flags are cleared by their owners first;
;     a counter in d_debug tells when all of them have been cleared in this launch.
;  4. out tile of 144 x 64 over half of the heads per workgroup; four waves split that K range, sum through LDS and exchange
;     half of the tile with the partner workgroup through a buffer the receiver has marked as empty beforehand.
; Written with a generator script of my own (instruction scheduling, wait counts and hazard distances are computed there).""".split("\n")
    out = hdr + [f"; @launch grid=(256,1,1) block=(256,1,1) lds={LDS_TOTAL}"] + doc + [
                 '.amdgcn_target "amdgcn-amd-amdhsa--gfx950"', ".text"]
    fmt = lambda l: l if l.endswith(":") else "    " + l
    out += [f".globl {cfg.name}", ".p2align 8", f".type {cfg.name},@function"] + [fmt(l) for l in k1]
    out += ["L_code_end:"]
    if cfg.cpf: out += [f".if (L_code_end - L_pc0) < {8192*cfg.cpf_n}", '.error "code prefetch range"', ".endif"]
    if cfg.cpf2 == 2: out += [".if (L_code_end - L_pc1) < 24576", '.error "code prefetch range"', ".endif"]
    out += ['.section .rodata,"a"', ".p2align 6", f""".amdhsa_kernel {cfg.name}
  .amdhsa_next_free_vgpr 512
  .amdhsa_next_free_sgpr 102
  .amdhsa_accum_offset 256
  .amdhsa_group_segment_fixed_size 0
  .amdhsa_kernarg_size 64
  .amdhsa_user_sgpr_count 2
  .amdhsa_user_sgpr_kernarg_segment_ptr 1
  .amdhsa_system_sgpr_workgroup_id_x 1
.end_amdhsa_kernel
"""]
    txt = "\n".join(out)
    if cfg.rt: txt = txt.replace("s_memtime", "s_memrealtime")
    open(sys.argv[1], "w").write(txt)
main()
```

```python
import sys, math, struct
from asmlib import *

class Cfg:
    name = "standalone__gqa_block_cached__near_ridge_kernel"
    stamp = False
    map_bh = "h"
    kv_nt = True; q_nt = False
    dump_q = False
    e0 = 9
    dma_step = 20.0; qstep = 5
    wowarm = 0; k0pf = 0; dm = ''; trlag = 8; npost = 3; ola = 2; ostep = 1; epi = 'mix'; qstamp = False; cpf = 1; cpf_n = 5; cpf2 = 2; qrot = 1; orot = 0; ostamp = False; krot = 0; xw0 = 0; land = 45; xcap = 12; dstep = 17; pf_end = 0; pkq = 1; epoll = 0; wwpos = 0; poll1 = 1; pflate = 1; pfk = 0; pfsh = 13; xrot = 1; qx = 0; pfcut = 0; wo_nt = False; fastred = 1; k1pos = 1; nost = 0; olay = 0; pf_nt = False; pf0 = 4; pfpos = '170,172'; ppos = 100; NW = 16; LAT = 10; trpre = 0; TM = 11; rlate = 0; acc_ = 0; o3 = 0; clrpos = 0; fsep = 7; rt = False; latew = 0; lw0 = 8; lwstep = 36; og = 1; bflag = 1; ptouch = 0; cntat = 60; nopoison = 0; x1d = 6; rsleep = 1; d0 = 370; cpos = 38; cpf3 = 1; out_sc = ''; nobar = 1; v7step = 5; qstart = 0; tlb = 0; qkord = 0; flags = 1; fstr = 11; cntpos = 470; pre_to = 26; wlag = 2; kvstep = 5; vlate = 1; qb0 = 27; hyb = 1; s0 = 1; q2step = 3; sstamp = False; pstamp = False; dgrp = 1
    wopf = 1
    opf = 0
    qpf = 0
    sleep = 4
    lstamp = False
    st_sc = " sc1"; ld_sc = " sc1"
cfg = Cfg()
for a in sys.argv[2:]:
    k, v = a.split("=")
    old = getattr(cfg, k)
    if k in ("st_sc", "ld_sc", "out_sc"): v = "".join(" " + x for x in v.split("+") if x)
    setattr(cfg, k, (v == "1") if isinstance(old, bool) else type(old)(v))

def NT(f): return " nt" if f else ""
def f2u(x): return struct.unpack("<I", struct.pack("<f", x))[0]
QSCALE = f2u(math.log2(math.e) / math.sqrt(128.0))
LTHRESH = f2u(2.0 ** (64 if cfg.s0 else 40))
MF = "v_mfma_f32_16x16x32_bf16"
CAP = 8

class Item:
    def __init__(self, text, kind, it=0):
        self.text = text; self.kind = kind; self.it = it
        self.cost = {"s": 0, "ds": 4, "v": 4, "t": 8, "dma": 8, "mf": 0}[kind]

class Sched:
    def __init__(self, n, periodic=False):
        self.n = n; self.periodic = periodic
        self.mf = [None] * n; self.gap = [[] for _ in range(n)]; self.cost = [0] * n
    def norm(self, g):
        if self.periodic: return g % self.n
        assert 0 <= g < self.n, g
        return g
    def put(self, g, item):
        g = self.norm(g); self.gap[g].append(item); self.cost[g] += item.cost
    def put_win(self, lo, hi, item, pack=False, cap=CAP):
        if not self.periodic: hi = min(hi, self.n - 1)
        cand = [g for g in range(lo, hi + 1) if self.cost[self.norm(g)] + item.cost <= cap]
        if cand:
            if pack:
                part = [g for g in cand if self.cost[self.norm(g)] > 0]
                best = part[0] if part and part[0] <= cand[0] + 3 else cand[0]
            else: best = cand[0]
        else:
            best = min(range(lo, hi + 1), key=lambda g: self.cost[self.norm(g)])
        self.put(best, item); return best
    def linear(self, lo, hi, keep=lambda it: True):
        out = []
        order = {"s": 0, "dma": 1, "ds": 1, "v": 2, "t": 2}
        for g in range(lo, hi):
            if self.mf[g] is not None and keep(self.mf[g].it): out.append((g, "mf", self.mf[g].text))
            for item in sorted(self.gap[g], key=lambda x: order[x.kind]):
                if keep(item.it): out.append((g, item.kind, item.text))
        return out

def lgkm_waits(seq, slack=6):
    out = []; q = []
    mfi = [i for i, x in enumerate(seq) if x[1] == "mf"]
    nxt = dict(zip(mfi, mfi[1:]))
    def need(use, g):
        nonlocal q
        idx = -1
        for k, (gg, regs) in enumerate(q):
            if regs & use: idx = k
        if idx >= 0:
            while idx + 1 < len(q) and q[idx + 1][0] <= g - slack: idx += 1
            n = min(len(q) - 1 - idx, 15)
            out.append((g, "s", f"s_waitcnt lgkmcnt({n})"))
            q = q[len(q) - n:] if n else []
    for i, (g, k, t) in enumerate(seq):
        ins = Ins(t)
        if ins.op == "s_waitcnt" and "lgkmcnt(0)" in t: q = []
        if ins.kind != "label": need(ins.r | ins.w, g)
        if ins.kind == "ds": q.append((g, set(ins.w)))
        out.append((g, k, t))
        if k == "mf" and i in nxt:
            n = Ins(seq[nxt[i]][2]); need(n.r | n.w, g)
    return out

sK, sV, sX, sWQ, sO, sD = 8, 12, 16, 20, 24, 28
sPTR = 32
sW, sB, sH, sT0, sT1 = 3, 4, 5, 6, 7
sKo, sVo = 48, 50
sKs, sVs = 52, 53
sVm = 54
sCnt, sRedo = 58, 59
sXo, sXm, sWo_, sWm = 60, 61, 62, 63
sT2, sQs, sT3 = 64, 65, 66
sKb, sKm, sKd, sKw = 67, 68, 69, 86
sRg, sCg, sMt, sOdd = 87, 88, 89, 90
sW8 = 91
sPfo = 101
sFo = 62
sCP = 48
sPfx, sPfr = 39, 60
sKt2 = 39
sKmask, sVmask, sK0 = 32, 33, 38
sRot, sXc = 100, 101
sR4 = 63
sKt = 100
sST = 70
sST2 = 92
vKv = 1; vVv = 5; vPfd = 9
vQ = 12; vNM = 108; vL = 132; vS = 156; vP = 188; vKa = 204; vVa = 212; vOne = 228; vT = 232
vAcc = 108
aO = 0; aK = 192; aV = 224
KR = (131072, 98304, 65536); LDS_V = (0, 32768); LDS_EX = 65536
QSLOT = (0, 53248, 106496); LDS_TOTAL = 163840
UNIT_TILE = [0, 1, 2, 0, 1, 0, 1, 0, 1]
UNIT_KT =   [0, 0, 0, 1, 1, 2, 2, 3, 3]
FLAG_OFF = 0x1300000
PER = 33 if cfg.hyb else 34
NPV = PER - 16
Q1 = NPV - 9

def stamp(o, idx, alt=False):
    if cfg.pstamp and idx >= 5: return
    if cfg.sstamp and idx >= 5:
        if alt == 2: r = sST2 + 2 * (idx - 5); o.append(f"s_memtime s[{r}:{r+1}]")
        return
    if alt == 2: return
    if idx >= 5 and alt != cfg.ostamp: return
    if cfg.stamp:
        r = sST + 2 * idx if idx < 5 else sST2 + 2 * (idx - 5)
        o.append(f"s_memtime s[{r}:{r+1}]")

def k_dma():
    r = []
    for grp in range(2):
        for q in range(4):
            pre = []
            if q == 0: pre = [f"s_mov_b32 m0, s{sKm}"] if grp == 0 else [f"s_add_u32 m0, s{sKm}, 4096"]
            off = f" offset:{1024*q}" if q else ""
            r.append((pre, f"buffer_load_dwordx4 v{vKv+q}, s[{sK}:{sK+3}], s{sKo+grp} offen{off}{NT(cfg.kv_nt)} lds"))
    return r
def v_dma(slot):
    r = []
    for grp in range(2):
        for q in range(4):
            off = f" offset:{1024*q}" if q else ""
            r.append(([f"s_mov_b32 m0, s{sVm+2*slot+grp}"] if q == 0 else [],
                      f"buffer_load_dwordx4 v{vVv+q}, s[{sV}:{sV+3}], s{sVo+grp} offen{off}{NT(cfg.kv_nt)} lds"))
    return r
def adv(base, stride):
    m = sKmask if base == sKo else sVmask
    return [f"s_add_u32 s{base}, s{base}, s{stride}", f"s_add_u32 s{base+1}, s{base+1}, s{stride}",
            f"s_and_b32 s{base}, s{base}, s{m}", f"s_and_b32 s{base+1}, s{base+1}, s{m}"]
def flat(lst):
    out = []
    for pre, d in lst: out += pre + [d]
    return out

def place_dmas(S, lst, g, step, itf=lambda g: 0, limit=None):
    for pre, d in lst:
        gg = g
        while S.cost[S.norm(gg)] > 0: gg += 1
        if limit is not None: assert gg < limit, (gg, limit)
        for p in pre: S.put(gg - 1, Item(p, "s", itf(gg - 1)))
        S.put(gg, Item(d, "dma", itf(gg)))
        g = gg + step
    return g

def k_read(j, k16, c, base=None):
    va = (vKa + 2 * j if base is None else base) + (c & 1)
    return f"ds_read_b128 {ar(aK+16*k16+4*c,4)}, v{va} offset:{k16*4096 + (c>>1)*1024}"
def v_read(j, t, jj, slot):
    imm = LDS_V[slot] + jj * 4096 + (t >> 2) * 1024
    return f"ds_read_b64_tr_b16 {ar(aV+4*t+2*jj,2)}, v{vVa+4*j+(t&3)} offset:{imm}"

BG = PER * 7 + 16
LAST_TILE = [2, 0, 1, 0, 1, 0, 1, 0, 1]
def gen_attn_sched(peel=False):
    NU = 18; N = NU * PER; CUT = 17 * PER
    S = Sched(N, periodic=True)
    tile = lambda n: (LAST_TILE[n - 9] if (peel and 9 <= n < 18) else UNIT_TILE[n % 9])
    kt = lambda n: UNIT_KT[n % 9]
    slot = lambda n: (n // 9) & 1
    last = lambda n: UNIT_KT[n % 9] != UNIT_KT[(n + 1) % 9] or n % 9 == 8
    for n in range(NU):
        u = n + 1; it = 1 if u == NU else 0
        for i in range(16):
            q, k16, c = i >> 3, (i >> 2) & 1, i & 3
            if cfg.qkord: q, k16, c = i & 1, i >> 3, (i >> 1) & 3
            qt = 2 * tile(u) + q; sb = vS + 16 * (u & 1) + 8 * q + 4 * k16
            cin = vr(vNM + 4 * qt, 4) if c == 0 else vr(sb, 4)
            S.mf[PER*n + i] = Item(f"{MF} {vr(sb,4)}, {ar(aK+16*k16+4*c,4)}, {vr(vQ+16*qt+4*c,4)}, {cin}", "mf", it)
        for i in range(NPV):
            q, t = (0, i) if i < Q1 else (1, i - Q1)
            qt = 2 * tile(n) + q; pb = vr(vP + 8 * (n & 1) + 4 * q, 4)
            if t < 8:
                o = ar(aO + 32 * qt + 4 * t, 4)
                S.mf[PER*n + 16 + i] = Item(f"{MF} {o}, {ar(aV+4*t,4)}, {pb}, {o}", "mf")
            else:
                l = vr(vL + 4 * qt, 4)
                S.mf[PER*n + 16 + i] = Item(f"{MF} {l}, {vr(vOne,4)}, {pb}, {l}", "mf")
    for n in range(1, NU + 1):
        sb = vS + 16 * (n & 1); pb = vP + 8 * (n & 1)
        itf = lambda g: 1 if (n == NU and g < N) else 0
        for j in range(16):
            g = PER * (n - 1) + cfg.e0 + 2 * j
            S.put(g, Item(f"v_exp_f32 v{sb+j}, v{sb+j}", "t", itf(g)))
            if j & 1: S.put(g + 1, Item(f"v_cvt_pk_bf16_f32 v{pb+(j>>1)}, v{sb+j-1}, v{sb+j}", "v", itf(g + 1)))
    def place_adds():
        if not cfg.hyb: return
        for n in range(1, NU + 1):
            sb = vS + 16 * (n & 1); l = vL + 8 * tile(n)
            for j in range(8):
                g = PER * (n - 1) + cfg.e0 + 2 * j + 1
                item = Item(f"v_add_f32 v{l+(j&1)}, v{l+(j&1)}, v{sb+j}", "v")
                gg = S.put_win(g, PER * (n + 1) - 4, item, pack=True)
                if n == NU and gg < N: item.it = 1
    bar = [BG, 9 * PER + BG]
    for bi, b in enumerate(bar):
        if cfg.lstamp: S.put(b, Item("s_memtime s[96:97]", "s"))
        S.put(b, Item("s_waitcnt vmcnt(8) lgkmcnt(0)", "s")); S.put(b, Item("s_barrier", "s"))
        if cfg.lstamp:
            S.put(b, Item(f"v_mov_b32 v240, s96", "s")); S.put(b, Item("s_memtime s[96:97]", "s")); S.put(b, Item("s_waitcnt lgkmcnt(0)", "s"))
            S.put(b, Item(f"v_mov_b32 v241, s96", "s"))
            S.put(b, Item(f"buffer_store_dwordx2 v[240:241], v242, s[{sX}:{sX+3}], 0 offen", "s")); S.put(b, Item(f"v_add_u32 v242, 8, v242", "s"))
        S.put(b, Item(f"SWITCH{bi}:", "s"))
    for n in range(NU):
        if last(n):
            nu = n + 1
            for t in range(8):
                for jj in range(2):
                    lo = PER*n + 16 + Q1 + t; hi = lo + 15
                    if nu % 9 == 7: hi = min(hi, PER*(n+1) + 10)
                    item = Item(v_read(kt(nu), t, jj, slot(nu)), "ds")
                    g = S.put_win(lo, hi, item, pack=True)
                    if nu >= NU and g < N: item.it = 1
    for n in range(NU):
        u = n + 1
        if last(u):
            nu = u + 1; it = 1 if nu >= NU else 0
            for idx in range(8):
                lo = PER*n + 8 + idx; hi = lo + 16
                if cfg.qkord: lo = PER*n + 2 * idx + 1; hi = lo + PER - 11
                if u % 9 == 8: lo = max(lo, PER*n + 16)
                S.put_win(lo, hi, Item(k_read(kt(nu), idx >> 2, idx & 3), "ds", it), pack=True)
    if peel:
        place_adds(); return S, bar
    for bi, b in enumerate(bar):
        g0 = b - 40
        for l in [f"s_mov_b32 s{sKt}, s{sKb}", f"s_cmp_eq_u32 s{sKb}, s{sKw}"]: S.put(g0, Item(l, "s"))
        S.put(b + 1, Item(f"s_mov_b32 s{sKm}, s{sKt}", "s"))
        S.put(g0, Item(f"s_cselect_b32 s{sKd}, s{sT3}, s{sQs}", "s"))
        S.put(g0 + 1, Item(f"s_add_u32 s{sKb}, s{sKb}, s{sKd}", "s"))
        for i in range(8): S.put_win(g0 + 2, b - 1, Item(f"v_add_u32 v{vKa+i}, s{sKd}, v{vKa+i}", "v"), pack=True)
        itf = lambda g: 1 if (bi == 1 and g < N) else 0
        lv = v_dma(bi); lk = k_dma()
        lv[0] = (adv(sVo, sVs) + lv[0][0], lv[0][1]); lk[0] = (adv(sKo, sKs) + lk[0][0], lk[0][1])
        st0 = (b + 2) if bi == 0 else CUT + 1
        lim = b + 9 * PER - 14
        step = min(cfg.dma_step, (lim - 36 - st0) / 15)
        g = st0
        for i, x in enumerate(lv + lk):
            g = place_dmas(S, [x], max(g, st0 + int((i - i % cfg.dgrp) * step)), 2 if cfg.dgrp == 1 else 1, itf, limit=lim)
    if False:
        for i, g in enumerate(int(x) for x in cfg.pfpos.split(",")):
            place_dmas(S, [([f"s_add_u32 s{sPfo}, s{sPfo}, {(32 << cfg.pfsh) if cfg.pfsh else 262144 // len(cfg.pfpos.split(','))}", f"s_xor_b32 s{sPfx}, s{sPfo}, s{sPfr}"], f"buffer_load_dword v{vPfd}, v{vPfo}, s[{sD}:{sD+3}], s{sPfx} offen{NT(cfg.pf_nt)} ; pf{i}")], g, 1, itf=lambda g: 1 if g >= CUT else 0)
    place_adds()
    for bi, b in enumerate(bar):
        n = 0; g = b - 1
        while True:
            its = [x for x in S.gap[g % N] if x.kind == "dma"]
            if its and f"s[{sV}:{sV+3}]" in its[0].text: break
            n += len(its); g -= 1
        for x in S.gap[b]:
            if "vmcnt(8)" in x.text: x.text = x.text.replace("vmcnt(8)", f"vmcnt({n})")
    return S, bar

def kv_setup(e, t):
    r8, p8, tA, tB, tC = t, t+1, t+2, t+3, t+4
    e(f"v_lshrrev_b32 v{r8}, 3, v0"); e(f"v_and_b32 v{p8}, 7, v0"); e(f"v_lshrrev_b32 v{tA}, 1, v{r8}")
    e(f"v_xor_b32 v{tB}, v{tA}, v{p8}"); e(f"v_lshlrev_b32 v{tC}, 8, v{r8}")
    e(f"v_lshl_add_u32 v{vKv+1}, v{tB}, 4, v{tC}"); e(f"v_xor_b32 v{vKv+3}, 64, v{vKv+1}")
    e(f"v_add_u32 v{vKv}, 1024, v{vKv+1}"); e(f"v_add_u32 v{vKv+2}, 1024, v{vKv+3}")
    e(f"v_add_u32 v{vKv+1}, 128, v{vKv+1}"); e(f"v_add_u32 v{vKv+3}, 128, v{vKv+3}")
    e(f"v_lshlrev_b32 v{tB}, 1, v{tA}"); e(f"v_xor_b32 v{tB}, v{tB}, v{p8}")
    e(f"v_lshl_add_u32 v{vVv+1}, v{tB}, 4, v{tC}")
    e(f"v_add_u32 v{vVv}, 1024, v{vVv+1}"); e(f"v_add_u32 v{vVv+1}, 128, v{vVv+1}")
    e(f"v_mov_b32 v{vVv+2}, v{vVv}"); e(f"v_mov_b32 v{vVv+3}, v{vVv+1}")
    e(f"s_lshl_b32 s{sT0}, s{sB}, 5"); e(f"s_add_u32 s{sT0}, s{sT0}, s{sH}"); e(f"s_lshl_b32 s{sT0}, s{sT0}, 18")
    for s, p in ((sK, sPTR + 2), (sV, sPTR + 4)):
        e(f"s_add_u32 s{s}, s{p}, s{sT0}"); e(f"s_addc_u32 s{s+1}, s{p+1}, 0")
        e(f"s_sub_u32 s{s}, s{s}, 1024"); e(f"s_subb_u32 s{s+1}, s{s+1}, 0")
        e(f"s_mov_b32 s{s+2}, {262144+1024}"); e(f"s_mov_b32 s{s+3}, 0x20000")
    e(f"s_lshr_b32 s{sK0}, s2, 3"); e(f"s_xor_b32 s{sK0}, s{sK0}, s2"); e(f"s_and_b32 s{sK0}, s{sK0}, {cfg.krot}"); e(f"s_lshl_b32 s{sK0}, s{sK0}, 15")
    e(f"s_add_u32 s{sK0}, s{sK0}, s{sW8}"); e(f"s_mov_b32 s{sKmask}, 0x3ffff"); e(f"s_mov_b32 s{sVmask}, 0x3ffff")
    for b_ in (sKo, sVo):
        e(f"s_mov_b32 s{b_}, s{sK0}"); e(f"s_add_u32 s{b_+1}, s{sK0}, 4096")
    e(f"s_mov_b32 s{sKs}, 32768"); e(f"s_mov_b32 s{sVs}, 32768")
    e(f"s_add_u32 s{sKb}, s{sW8}, {KR[0]}"); e(f"s_mov_b32 s{sKm}, s{sKb}"); e(f"s_add_u32 s{sKw}, s{sW8}, {KR[2]}")

def att_addr(t):
    L = []; e = L.append
    tA, tB, tC, q16, kg, r4, c4, k0 = t, t+1, t+2, t+3, t+4, t+5, t+6, t+7
    e(f"v_and_b32 v{q16}, 15, v0"); e(f"v_lshrrev_b32 v{kg}, 4, v0")
    e(f"v_lshrrev_b32 v{tA}, 3, v{q16}"); e(f"v_lshlrev_b32 v{tA}, 11, v{tA}")
    e(f"v_and_b32 v{tB}, 7, v{q16}"); e(f"v_lshl_add_u32 v{tA}, v{tB}, 7, v{tA}")
    e(f"v_lshrrev_b32 v{tB}, 1, v{q16}"); e(f"v_xor_b32 v{tB}, v{tB}, v{kg}")
    e(f"v_lshl_add_u32 v{k0}, v{tB}, 4, v{tA}"); e(f"v_add_u32 v{k0}, {KR[0]}, v{k0}"); e(f"v_xor_b32 v{k0+1}, 64, v{k0}")
    n1 = len(L)
    e(f"v_bfe_u32 v{r4}, v0, 2, 2"); e(f"v_and_b32 v{c4}, 3, v0")
    e(f"v_and_b32 v{tA}, 1, v{kg}"); e(f"v_lshl_add_u32 v{tA}, v{tA}, 2, v{r4}")
    e(f"v_lshrrev_b32 v{tB}, 1, v{tA}"); e(f"v_lshlrev_b32 v{tB}, 5, v{tB}"); e(f"v_lshl_add_u32 v{tB}, v{tA}, 7, v{tB}")
    e(f"v_lshrrev_b32 v{tA}, 1, v{kg}"); e(f"v_lshl_add_u32 v{tB}, v{tA}, 11, v{tB}"); e(f"v_lshl_add_u32 v{tC}, v{c4}, 3, v{tB}")
    for j in range(4):
        e(f"s_add_u32 s{sT0}, s{sW}, {j}"); e(f"s_and_b32 s{sT0}, s{sT0}, 3"); e(f"s_lshl_b32 s{sT0}, s{sT0}, 13")
        for c in range(2): e(f"v_add_u32 v{vKa+2*j+c}, s{sT0}, v{k0+c}")
        e(f"v_add_u32 v{vVa+4*j}, s{sT0}, v{tC}")
        for k in range(1, 4): e(f"v_xor_b32 v{vVa+4*j+k}, {32*k}, v{vVa+4*j}")
    for i in range(4): e(f"v_mov_b32 v{vOne+i}, 0x3f803f80")
    return L[:n1], L[n1:], k0

def wo_voff(e, dst, t):
    r8, p8, tA, tB = t, t+1, t+2, t+3
    e(f"v_lshrrev_b32 v{r8}, 3, v0"); e(f"v_and_b32 v{p8}, 7, v0")
    e(f"v_bfe_u32 v{tA}, v{r8}, 1, 2"); e(f"v_lshlrev_b32 v{tA}, 1, v{tA}"); e(f"v_xor_b32 v{tA}, v{tA}, v{p8}")
    e(f"v_lshlrev_b32 v{tB}, 10, v{r8}"); e(f"v_lshl_add_u32 v{dst}, v{tA}, 4, v{tB}")
    for q in range(1, 4): e(f"v_add_u32 v{dst+q}, {7168*q}, v{dst}")
def wo_srd(e, s):
    e(f"s_lshl_b32 s{sT0}, s{sCg}, 7")
    e(f"s_add_u32 s{s}, s{sPTR+8}, s{sT0}"); e(f"s_addc_u32 s{s+1}, s{sPTR+9}, 0")
    e(f"s_sub_u32 s{s+2}, 4194304, s{sT0}"); e(f"s_mov_b32 s{s+3}, 0x20000")

vPfo = 243
vRa = 244
def wo_pf(e, srd, first, n):
    e(f"v_lshlrev_b32 v{vT}, 12, v0"); e(f"s_lshl_b32 s{sT0}, s{sW}, 20"); e(f"s_lshl_b32 s{sT1}, s{sRg}, 10"); e(f"s_add_u32 s{sT0}, s{sT0}, s{sT1}")
    e(f"s_add_u32 s{sT0}, s{sT0}, {first*32768}")
    for i in range(n):
        if i: e(f"s_add_u32 s{sT0}, s{sT0}, 262144")
        part = first + 8 * i + 8 > 32
        if part: e(f"s_mov_b64 exec, {(1 << (8 * (32 - first - 8 * i))) - 1:#x}")
        e(f"buffer_load_dword v{vPfd}, v{vT}, s[{srd}:{srd+3}], s{sT0} offen")
        if part: e("s_mov_b64 exec, -1")
def switch_block(bi):
    L = []; e = L.append
    e(f"s_cmp_lg_u32 s{sCnt}, {2 if bi == 1 else 1}"); e(f"s_cbranch_scc1 L_sw{bi}")
    if bi == 1:
        wo_voff(e, vKv, vT); wo_srd(e, sK); e(f"s_mov_b32 s{sKmask}, -1")
        e(f"s_and_b32 s{sR4}, s{sCg}, {cfg.orot}"); e(f"s_lshl_b32 s{sR4}, s{sR4}, 15"); e(f"s_lshl_b32 s{sT1}, s{sW}, 20"); e(f"s_or_b32 s{sR4}, s{sR4}, s{sT1}")
        if cfg.xrot: e(f"s_and_b32 s{sT1}, s2, 7"); e(f"s_lshl_b32 s{sT1}, s{sT1}, 17"); e(f"s_xor_b32 s{sR4}, s{sR4}, s{sT1}")
        e(f"s_mov_b32 s{sKs}, 0"); e(f"s_mov_b32 s{sKo}, s{sR4}"); e(f"s_mov_b32 s{sKo+1}, 0x40000000")
        kg, r4, c4, tA, tB = vT, vT+1, vT+2, vT+3, vT+4
        e(f"v_lshrrev_b32 v{kg}, 4, v0"); e(f"v_bfe_u32 v{r4}, v0, 2, 2"); e(f"v_and_b32 v{c4}, 3, v0")
        e(f"v_and_b32 v{tA}, 1, v{kg}"); e(f"v_lshl_add_u32 v{tA}, v{tA}, 2, v{r4}")
        e(f"v_lshrrev_b32 v{tB}, 1, v{tA}"); e(f"v_lshlrev_b32 v{tB}, 5, v{tB}")
        e(f"v_lshl_add_u32 v{tB}, v{tA}, 7, v{tB}"); e(f"v_lshrrev_b32 v{tA}, 1, v{kg}"); e(f"v_lshl_add_u32 v{tB}, v{tA}, 10, v{tB}")
        e(f"v_lshl_add_u32 v{tB}, v{c4}, 3, v{tB}"); e(f"v_add_u32 v{vRa}, s{sW8}, v{tB}")
        if cfg.fastred: e(f"s_lshl_b32 s{sT1}, s{sW}, 5"); e(f"v_xor_b32 v{vRa}, s{sT1}, v{vRa}")
        for nt in range(1, 4): e(f"v_xor_b32 v{vRa+nt}, {32*nt}, v{vRa}")
        for s_ in range(1, 3):
            for nt in range(4): e(f"v_add_u32 v{vRa+4*s_+nt}, {65536*s_}, v{vRa+nt}")
        e(f"v_lshlrev_b32 v10, 4, v0"); e(f"s_lshl_b32 s{sWo_}, s{sW}, 20")
        if cfg.pfcut: e(f"s_mov_b32 s{sD+2}, 0")
        if cfg.pflate:
            e(f"s_mov_b32 s{sD+2}, 4194304")
            e(f"s_lshr_b32 s{sPfo}, s2, 3"); e(f"s_lshl_b32 s{sPfo}, s{sPfo}, 13"); e(f"s_add_u32 s{sPfo}, s{sPfo}, s{sWo_}"); e(f"s_sub_u32 s{sPfo}, s{sPfo}, 262144")
    elif bi == 0:
        for q in range(4): e(f"v_mov_b32 v{vVv+q}, v{vKv+q}")
        wo_srd(e, sV); e(f"s_mov_b32 s{sVmask}, -1")
        if cfg.cpf2:
            e(f"s_getpc_b64 s[{sT0}:{sT1}]"); e("L_pc1:")
            e(f"s_add_u32 s{sT0}, s{sT0}, L_tail-L_pc1"); e(f"s_addc_u32 s{sT1}, s{sT1}, 0")
            e(f"s_lshr_b32 s{sT2}, s2, 3"); e(f"s_lshl_b32 s{sT2}, s{sT2}, 2"); e(f"s_add_u32 s{sT2}, s{sT2}, s{sW}"); e(f"s_lshl_b32 s{sT2}, s{sT2}, 6")
            e(f"v_min_u32 v{vT}, 1, v0"); e(f"v_lshlrev_b32 v{vT}, 13, v{vT}"); e(f"v_add_u32 v{vT}, s{sT2}, v{vT}")
            e(f"global_load_dword v{vPfd}, v{vT}, s[{sT0}:{sT1}]")
        e(f"s_xor_b32 s{sVo}, s{sR4}, 65536"); e(f"s_xor_b32 s{sVo+1}, s{sR4}, 98304"); e(f"s_mov_b32 s{sVs}, 0")
    e(f"L_sw{bi}:")
    L, _ = check_hazards(L, "sw", fix=True)
    return L

def gen():
    o = []; e = o.append
    e(f"{cfg.name}:")
    e("s_cmp_ge_u32 s2, 256"); e("s_cbranch_scc1 L_end")
    e(f"s_load_dwordx16 s[{sPTR}:{sPTR+15}], s[0:1], 0")
    stamp(o, 0)
    if cfg.stamp: e(f"s_memrealtime s[{sST+14}:{sST+15}]")
    e("v_lshrrev_b32 v1, 6, v0"); e("v_and_b32 v0, 63, v0"); e(f"v_readfirstlane_b32 s{sW}, v1")
    e(f"s_mov_b32 s{sRedo}, 0")
    e("L_restart:")
    if cfg.map_bh == "b":
        e(f"s_and_b32 s{sB}, s2, 7"); e(f"s_lshr_b32 s{sH}, s2, 3")
    else:
        e(f"s_lshr_b32 s{sB}, s2, 5"); e(f"s_and_b32 s{sT0}, s2, 7"); e(f"s_lshl_b32 s{sT0}, s{sT0}, 2")
        e(f"s_bfe_u32 s{sT1}, s2, 0x20003"); e(f"s_add_u32 s{sH}, s{sT0}, s{sT1}")
    t = vT
    r8, p8, tA, tB, tC = t, t+1, t+2, t+3, t+4
    vB = vQ; vAd = vQ + 40; vXv = vQ + 60; vWv = vQ + 62; vSh = vQ + 64
    e(f"v_lshrrev_b32 v{r8}, 3, v0"); e(f"v_and_b32 v{p8}, 7, v0")
    e(f"v_lshrrev_b32 v{tA}, 1, v{r8}")
    e(f"v_and_b32 v{tB}, 1, v{tA}"); e(f"v_lshlrev_b32 v{tB}, 1, v{tB}"); e(f"v_xor_b32 v{tB}, v{tB}, v{p8}")
    e(f"v_lshlrev_b32 v{tC}, 13, v{r8}"); e(f"v_lshl_add_u32 v{vWv}, v{tB}, 4, v{tC}")
    e(f"s_and_b32 s{sT0}, s{sW}, 1"); e(f"s_lshl_b32 s{sT1}, s{sT0}, 6"); e(f"v_xor_b32 v{vWv}, s{sT1}, v{vWv}"); e(f"s_lshl_b32 s{sT0}, s{sT0}, 2")
    e(f"v_xor_b32 v{tB}, v{tA}, v{p8}"); e(f"v_xor_b32 v{tC+1}, s{sT0}, v{tB}")
    e(f"v_lshlrev_b32 v{tC}, 10, v{r8}"); e(f"v_lshl_add_u32 v{vXv}, v{tC+1}, 4, v{tC}"); e(f"v_xor_b32 v{vXv+1}, 64, v{vXv}")
    e(f"s_mul_i32 s{sXo}, s{sW}, {9*8192}"); e(f"s_mul_i32 s{sXm}, s{sW}, {9*1024}")
    e(f"s_lshl_b32 s{sWo_}, s{sW}, 16"); e(f"s_lshl_b32 s{sWm}, s{sW}, 11"); e(f"s_add_u32 s{sWm}, s{sWm}, 36864")
    e(f"s_mul_i32 s{sT0}, s{sB}, 294912"); e(f"s_lshl_b32 s{sT1}, s{sH}, 8")
    e(f"s_mov_b32 s{sX+2}, 294912"); e(f"s_mov_b32 s{sX+3}, 0x20000")
    e(f"s_sub_u32 s{sWQ+2}, 4194304, s{sT1}"); e(f"s_mov_b32 s{sWQ+3}, 0x20000")
    e(f"s_add_u32 s{sRot}, s{sH}, s{sB}"); e(f"s_and_b32 s{sRot}, s{sRot}, {cfg.qrot}")
    if cfg.qx: e(f"s_and_b32 s{sXc}, s2, {cfg.qx}"); e(f"s_xor_b32 s{sRot}, s{sRot}, s{sXc}")
    if cfg.cpf:
        e("s_getpc_b64 s[96:97]"); e("L_pc0:")
        e(f"s_lshr_b32 s98, s2, 3"); e(f"s_lshl_b32 s98, s98, 2"); e(f"s_add_u32 s98, s98, s{sW}"); e("s_lshl_b32 s98, s98, 6")
    stamp(o, 5, 2)
    e("s_waitcnt lgkmcnt(0)")
    stamp(o, 6, 2)
    if cfg.cpf:
        for i in range(cfg.cpf_n):
            e(f"s_load_dword s99, s[96:97], s98"); e("s_add_u32 s98, s98, 8192")
    e(f"s_add_u32 s{sX}, s{sPTR+0}, s{sT0}"); e(f"s_addc_u32 s{sX+1}, s{sPTR+1}, 0")
    e(f"s_add_u32 s{sWQ}, s{sPTR+6}, s{sT1}"); e(f"s_addc_u32 s{sWQ+1}, s{sPTR+7}, 0")
    def q_dma(c):
        r = []; sl = QSLOT[c % 3]
        for q in range(4):
            go = (q >> 1) * 262144 + (q & 1) * 128
            rot = [f"s_xor_b32 s{sXc}, s{sRot}, {c}", f"s_lshl_b32 s{sT3}, s{sXc}, 19", f"s_add_u32 s{sT3}, s{sT3}, s{sWo_}",
                   f"s_lshl_b32 s{sXc}, s{sXc}, 7", f"s_add_u32 s{sXc}, s{sXc}, s{sXo}"] if q == 0 else []
            r.append((rot + [f"s_add_u32 m0, s{sWm}, {sl + 8192*(q>>1) + 1024*(q&1)}", f"s_add_u32 s{sT2}, s{sT3}, {go}"],
                      f"buffer_load_dwordx4 v{vWv}, s[{sWQ}:{sWQ+3}], s{sT2} offen{NT(cfg.q_nt)} lds ; chunk {c}"))
        for i in range(9):
            r.append(([f"s_add_u32 m0, s{sXm}, {sl + 1024*i}", f"s_add_u32 s{sT2}, s{sXc}, {i*8192}"],
                      f"buffer_load_dwordx4 v{vXv+(i&1)}, s[{sX}:{sX+3}], s{sT2} offen{NT(cfg.q_nt)} lds ; chunk {c}"))
        return r
    d0_ = q_dma(0)
    o += flat(d0_[:2] + d0_[4:] if cfg.qstart == 2 else d0_)
    stamp(o, 7, 2)
    e(f"s_lshl_b32 s{sW8}, s{sW}, 13")
    kv_setup(e, t)
    for sl in range(2):
        for g in range(2): e(f"s_add_u32 s{sVm+2*sl+g}, s{sW8}, {LDS_V[sl] + 4096*g}")
    e(f"s_mul_i32 s{sT0}, s{sB}, 2359296")
    e(f"s_add_u32 s{sO}, s{sPTR+14}, s{sT0}"); e(f"s_addc_u32 s{sO+1}, s{sPTR+15}, 0")
    e(f"s_mov_b32 s{sO+2}, 2359296"); e(f"s_mov_b32 s{sO+3}, 0x20000")
    e(f"s_lshr_b32 s{sCg}, s2, 5"); e(f"s_and_b32 s{sOdd}, s2, 1")
    e(f"s_bfe_u32 s{sRg}, s2, 0x20001"); e(f"s_bfe_u32 s{sT0}, s2, 0x10003"); e(f"s_lshl_b32 s{sT0}, s{sT0}, 2"); e(f"s_add_u32 s{sRg}, s{sRg}, s{sT0}")
    e(f"s_bfe_u32 s{sT0}, s2, 0x10004"); e(f"s_lshl_b32 s{sMt}, s{sRg}, 1"); e(f"s_add_u32 s{sMt}, s{sMt}, s{sT0}"); e(f"s_mul_i32 s{sMt}, s{sMt}, 9")
    if cfg.tlb:
        e(f"s_load_dword s99, s[{sK}:{sK+1}], 1024"); e(f"s_load_dword s99, s[{sV}:{sV+1}], 1024")
        e(f"s_lshl_b32 s98, s{sW}, 19"); e(f"s_load_dword s99, s[{sO}:{sO+1}], s98"); e(f"s_mov_b32 s98, {16*131072}"); e(f"s_load_dword s99, s[{sO}:{sO+1}], s98")
        e(f"s_lshl_b32 s98, s{sMt}, 17"); e(f"s_load_dword s99, s[{sPTR+14}:{sPTR+15}], s98"); e(f"s_add_u32 s98, s98, {4*131072-4}"); e(f"s_load_dword s99, s[{sPTR+14}:{sPTR+15}], s98")
        e(f"s_lshl_b32 s98, s{sW}, 20"); e(f"s_load_dword s99, s[{sPTR+8}:{sPTR+9}], s98")
        e(f"s_lshl_b32 s98, s{sMt}, 14"); e(f"s_load_dword s99, s[{sPTR+10}:{sPTR+11}], s98"); e(f"s_load_dword s99, s[{sPTR+12}:{sPTR+13}], 0")
    q16, kg, r4, c4 = t+6, t+7, t+8, t+9
    e(f"v_and_b32 v{q16}, 15, v0"); e(f"v_lshrrev_b32 v{kg}, 4, v0"); e(f"v_bfe_u32 v{r4}, v0, 2, 2"); e(f"v_and_b32 v{c4}, 3, v0")
    e(f"v_lshrrev_b32 v{tA}, 3, v{q16}"); e(f"v_lshlrev_b32 v{tA}, 10, v{tA}")
    e(f"v_and_b32 v{tB}, 7, v{q16}"); e(f"v_lshl_add_u32 v{tA}, v{tB}, 7, v{tA}")
    e(f"v_lshrrev_b32 v{tB}, 1, v{q16}"); e(f"v_xor_b32 v{tB}, v{tB}, v{kg}")
    e(f"v_lshl_add_u32 v{vAd}, v{tB}, 4, v{tA}"); e(f"v_xor_b32 v{vAd+1}, 64, v{vAd}")
    e(f"v_add_u32 v{vAd+2}, s{sW8}, v{vAd}"); e(f"v_add_u32 v{vAd+3}, s{sW8}, v{vAd+1}")
    e(f"v_lshrrev_b32 v{tA}, 1, v{r4}"); e(f"v_and_b32 v{tB}, 1, v{kg}"); e(f"v_lshl_add_u32 v{tA}, v{tB}, 1, v{tA}")
    e(f"v_lshlrev_b32 v{tA}, 5, v{tA}"); e(f"v_lshl_add_u32 v{tA}, v{c4}, 3, v{tA}"); e(f"v_lshl_add_u32 v{tA}, v{r4}, 7, v{tA}")
    e(f"v_lshl_add_u32 v{tA}, v{kg}, 11, v{tA}"); e(f"v_add_u32 v{vAd+4}, 36864, v{tA}")
    for k in range(1, 4): e(f"v_xor_b32 v{vAd+4+k}, {32*k}, v{vAd+4}")
    e(f"s_and_b32 s{sT0}, s{sW}, 1"); e(f"s_lshl_b32 s{sT0}, s{sT0}, 6"); e(f"s_lshr_b32 s{sT1}, s{sW}, 1"); e(f"s_lshl_b32 s{sT1}, s{sT1}, 10")
    e(f"v_xor_b32 v{vAd+8}, s{sT0}, v{vAd+4}"); e(f"v_add_u32 v{vAd+8}, s{sT1}, v{vAd+8}"); e(f"v_xor_b32 v{vAd+9}, 32, v{vAd+8}")
    e(f"s_mov_b32 s{sQs}, {QSCALE:#x}")
    if cfg.wwpos:
        e(f"s_mov_b32 s{sD}, s{sPTR+8}"); e(f"s_mov_b32 s{sD+1}, s{sPTR+9}"); e(f"s_mov_b32 s{sD+2}, 4194304"); e(f"s_mov_b32 s{sD+3}, 0x20000")
        e(f"v_and_b32 v254, 31, v0"); e(f"v_lshlrev_b32 v254, 7, v254"); e(f"s_lshl_b32 s{sKt2}, s2, 14"); e(f"s_lshl_b32 s{sT1}, s{sW}, 12"); e(f"s_add_u32 s{sKt2}, s{sKt2}, s{sT1}")
    if cfg.pkq: e(f"v_mov_b32 v252, s{sQs}"); e(f"v_mov_b32 v253, s{sQs}")
    if cfg.k0pf: e("v_lshlrev_b32 v252, 7, v0"); e("v_add_u32 v252, 1024, v252")

    NQ = 16 * 36
    S = Sched(NQ)
    fA = lambda t_: aK + 4 * t_
    fB = lambda p, q: vB + 16 * p + 4 * q
    fBs = lambda q: vB + 32 + 4 * q
    acc = lambda q, t_: vAcc + 32 * q + 4 * t_
    accs = lambda qs, u: vAcc + 128 + 8 * qs + 4 * u
    def rdA(ks, t_, jj):
        ad = vAd + 10 * ((ks >> 1) & 1); s = ks & 1
        if t_ < 8: return f"ds_read_b64_tr_b16 {ar(fA(t_)+2*jj,2)}, v{ad+4+(t_&3)} offset:{s*8192+(t_>>2)*1024+jj*512}"
        return f"ds_read_b64_tr_b16 {ar(fA(t_)+2*jj,2)}, v{ad+t_} offset:{s*8192+jj*512}"
    def rdB(ks, q):
        ad = vAd + 10 * ((ks >> 1) & 1); s = ks & 1
        if q < 4: return f"ds_read_b128 {vr(fB(ks&1,q),4)}, v{ad+2+s} offset:{2048*q}"
        return f"ds_read_b128 {vr(fBs(q-4),4)}, v{ad+s} offset:{32768+2048*(q-4)}"
    for ks in range(16):
        for i in range(36):
            if i < 32: t_, q = i >> 2, i & 3; a_, A, Bf = acc(q, t_), fA(t_), fB(ks & 1, q)
            else: u, qs = (i - 32) >> 1, i & 1; a_, A, Bf = accs(qs, u), fA(8 + u), fBs(qs)
            S.mf[36*ks + i] = Item(f"{MF} {vr(a_,4)}, {ar(A,4)}, {vr(Bf,4)}, {'0' if ks == 0 else vr(a_,4)}", "mf")
    QB = 9
    for c in range(8):
        gb = 72 * c + 36 + QB
        n = (13 + (cfg.wowarm if c == 0 else 0)) if c <= 5 else (8 if c == 6 else None)
        if cfg.k0pf and c in (cfg.k0pf, cfg.k0pf + 1): n += 1
        if cfg.wwpos and c in (cfg.wwpos, cfg.wwpos + 1) and n is not None: n += 1
        if cfg.qstamp: S.put(gb, Item("s_memtime s[96:97]", "s"))
        S.put(gb, Item(f"s_waitcnt vmcnt(CH{c+1}) lgkmcnt(0)" if n is not None else "s_waitcnt lgkmcnt(0)", "s"))
        S.put(gb, Item("s_barrier", "s"))
        if cfg.qstamp:
            S.put(gb, Item(f"v_mov_b32 v252, s96", "s")); S.put(gb, Item("s_memtime s[96:97]", "s")); S.put(gb, Item("s_waitcnt lgkmcnt(0)", "s"))
            S.put(gb, Item(f"v_mov_b32 v253, s96", "s"))
            S.put(gb, Item(f"buffer_store_dwordx2 v[252:253], v254, s[{sD}:{sD+3}], 0 offen", "s")); S.put(gb, Item(f"v_add_u32 v254, 8, v254", "s"))
    for ks in range(16):
        base = 36 * ks
        if ks:
            for k_, r in enumerate([rdA(ks, 8, 0), rdA(ks, 8, 1), rdB(ks, 4), rdB(ks, 5), rdA(ks, 9, 0), rdA(ks, 9, 1)]):
                S.put(base + (k_ >> 1), Item(r, "ds"))
        if ks < 15:
            lo0 = base + (QB if ks & 1 else 3)
            for q in range(4): S.put_win(lo0, base + 24, Item(rdB(ks + 1, q), "ds"))
            for t_ in range(8):
                for jj in range(2):
                    lo = max(base + 4 * t_ + 3, lo0)
                    if ks == 0 and cfg.qstart == 2: lo = max(lo, cfg.qb0)
                    g_r = S.put_win(lo, min(lo + 20, NQ - 1), Item(rdA(ks + 1, t_, jj), "ds"))
                    assert g_r < base + 36 + 4 * t_ - 6 and (ks & 1 or g_r < base + 36 + QB - 4), (ks, t_, g_r)
    for c in range(8):
        gb = 72 * c + 36 + QB
        if c + 3 < 8: lst = q_dma(c + 3)
        elif c == 5: lst = k_dma()
        elif c == 6: lst = v_dma(0)
        else:
            lst = k_dma(); lst[0] = (adv(sKo, sKs) + [f"s_add_u32 s{sKm}, s{sW8}, {KR[1]}"] + lst[0][0], lst[0][1])
            if cfg.k1pos: k1l = lst; lst = []
        if cfg.wwpos and c == cfg.wwpos - 1:
            lst = lst + [([], f"buffer_load_dword v{vPfd}, v254, s[{sD}:{sD+3}], s{sKt2} offen")]
        if cfg.k0pf and c == cfg.k0pf - 1:
            lst = lst + [([], f"buffer_load_dword v{vPfd}, v252, s[{sK}:{sK+3}], s{sKo} offen nt")]
        if cfg.qstart and c == 0:
            g_ = 1
            if cfg.qstart == 2:
                g_ = place_dmas(S, d0_[2:4], 1, 2) - 1
                S.put(cfg.qb0, Item("s_waitcnt vmcnt(CH0) lgkmcnt(0)", "s")); S.put(cfg.qb0, Item("s_barrier", "s"))
            g_ = place_dmas(S, q_dma(1), g_ + 1, 2, limit=36 + QB - 2)
            g_ = place_dmas(S, q_dma(2), g_, cfg.q2step, limit=gb + 50)
            g_ = place_dmas(S, lst, max(g_, gb + 2), 3, limit=gb + 72 + 40)
        elif cfg.qstart and c in (1, 2):
            g_ = place_dmas(S, lst, max(g_, gb + 2), 3 if c == 1 else 4, limit=gb + 72 + (20 if c == 1 else 0))
        else:
            place_dmas(S, lst, gb + 2, (cfg.qstep - (len(lst) > 13)) if c < 5 else cfg.kvstep, limit=min(gb + 72, NQ))
    if not cfg.qstart: place_dmas(S, q_dma(2), 1, 2, limit=36 + QB)
    for c in range(7):
        d = QSLOT[(c + 1) % 3] - QSLOT[c % 3]
        for k in range(10):
            S.put_win(72 * c + 4, 72 * c + 40, Item(f"v_add_u32 v{vAd+10*((c+1)&1)+k}, {d & 0xffffffff:#x}, v{vAd+10*(c&1)+k}", "v"))
    g = 0
    for i in range(192): g = S.put_win(g, NQ - 1, Item(f"v_accvgpr_write_b32 a{i}, 0", "v"))
    sys.stderr.write(f"qproj gaps over cap: {sum(c > CAP for c in S.cost)}\n")
    if not cfg.qstart: o += flat(q_dma(1))
    if cfg.ptouch:
        e(f"s_mul_i32 s{sT0}, s2, 20480"); e(f"s_add_u32 s{sT0}, s{sT0}, 0x1400000"); e(f"v_mov_b32 v{vPfd}, s{sT0}")
        if cfg.ptouch > 1:
            e(f"s_mul_i32 s{sT0}, s{sB}, 2359296"); e(f"s_lshl_b32 s{sT1}, s{sW}, 19"); e(f"s_add_u32 s{sT0}, s{sT0}, s{sT1}"); e(f"v_writelane_b32 v{vPfd}, s{sT0}, 1")
            e(f"s_lshl_b32 s{sT0}, s{sMt}, 17"); e(f"s_mul_i32 s{sT1}, s{sW}, {3*131072-1024}"); e(f"s_add_u32 s{sT0}, s{sT0}, s{sT1}"); e(f"v_writelane_b32 v{vPfd}, s{sT0}, 2")
        e(f"global_load_dword v{vPfd}, v{vPfd}, s[{sPTR+14}:{sPTR+15}]")
    stamp(o, 8, 2)
    if cfg.qstamp:
        e(f"s_add_u32 s{sD}, s{sPTR+14}, 0x4100000"); e(f"s_addc_u32 s{sD+1}, s{sPTR+15}, 0"); e(f"s_mov_b32 s{sD+2}, 0x100000"); e(f"s_mov_b32 s{sD+3}, 0x20000")
        e(f"s_lshl_b32 s{sT0}, s2, 2"); e(f"s_add_u32 s{sT0}, s{sT0}, s{sW}"); e(f"s_lshl_b32 s{sT0}, s{sT0}, 6"); e(f"v_mov_b32 v254, s{sT0}")
    if cfg.wowarm:
        e(f"s_mov_b32 s{sD}, s{sPTR+8}"); e(f"s_mov_b32 s{sD+1}, s{sPTR+9}"); e(f"s_mov_b32 s{sD+2}, 4194304"); e(f"s_mov_b32 s{sD+3}, 0x20000")
        e(f"v_and_b32 v{tA}, 31, v0"); e(f"v_lshlrev_b32 v{tA}, 7, v{tA}"); e(f"s_lshl_b32 s{sT0}, s2, 14"); e(f"s_lshl_b32 s{sT1}, s{sW}, 12"); e(f"s_add_u32 s{sT0}, s{sT0}, s{sT1}")
        e(f"buffer_load_dword v{vPfd}, v{tA}, s[{sD}:{sD+3}], s{sT0} offen")
    e(f"s_waitcnt vmcnt({0 if cfg.qstart else 13 + (cfg.ptouch > 0)}) lgkmcnt(0)"); e("s_barrier")
    stamp(o, 1)
    first = [rdA(0, 0, 0), rdA(0, 0, 1)] + [rdB(0, q) for q in range(4)] + [rdA(0, t_, jj) for t_ in range(1, 10) for jj in range(2)] + [rdB(0, 4), rdB(0, 5)]
    qh = ([0] * 11 if cfg.qstart == 2 else []) if cfg.qstart else [1] * 13 + [-1] * (cfg.ptouch > 0)
    for g, k, l in lgkm_waits([(-2, "ds", r) for r in first] + S.linear(0, NQ)):
        if "vmcnt(CH" in l:
            c_ = int(l.split("CH")[1][0]); assert qh.count(c_) == 13, (c_, qh)
            l = f"s_waitcnt vmcnt({len(qh) - 1 - max(i for i, x in enumerate(qh) if x == c_)}) lgkmcnt(0)"
        if l.startswith("buffer_"): qh.append(int(l.split()[-1]) if "; chunk" in l else -1)
        e(l)
    stamp(o, 2)
    def cvt_frag(src, dst):
        L = [f"v_mul_f32 v{src+i}, s{sQs}, v{src+i}" for i in range(8)]
        if cfg.pkq: L = [x for i in range(4) for x in (f"v_pk_mul_f32 {vr(src+2*i,2)}, {vr(src+2*i,2)}, v[252:253]", None)]
        L += [f"v_cvt_pk_bf16_f32 v{dst+i}, v{src+2*i}, v{src+2*i+1}" for i in range(4)]
        W = [f"v_permlane32_swap_b32 v{dst}, v{dst+2}", f"v_permlane32_swap_b32 v{dst+1}, v{dst+3}",
             f"v_permlane16_swap_b32 v{dst}, v{dst+2}", f"v_permlane16_swap_b32 v{dst+1}, v{dst+3}"]
        return L, W
    own = [(acc(q, 2 * c), vQ + 16 * q + 4 * c) for c in range(4) for q in range(4)]
    frs = own[:2] + [(accs(0, 0), vSh), (accs(1, 0), vSh + 4)] + own[2:]
    pendW = []
    for idx, (s_, d_) in enumerate(frs):
        L, W = cvt_frag(s_, d_)
        o += [x for x in L[:4] + pendW[:2] + L[4:8] + pendW[2:] + L[8:] if x]
        pendW = W
        if cfg.k1pos and idx >= 2 and idx % 2 == 0: o += flat([k1l.pop(0)])
        if idx == 4:
            e(f"v_lshlrev_b32 v10, 4, v0"); e(f"s_lshl_b32 s{sT0}, s{sW}, 10"); e(f"s_add_u32 s{sT0}, s{sT0}, {LDS_EX}")
            e(f"v_add_u32 v11, s{sT0}, v10"); e(f"v_add_u32 v10, {LDS_EX}, v10")
            e(f"ds_write_b128 v11, {vr(vSh,4)}"); e(f"ds_write_b128 v11, {vr(vSh+4,4)} offset:4096")
    o += pendW
    a1, a2, k0 = att_addr(vT)
    if cfg.flags:
        e(f"s_lshl_b32 s{sFo}, s{sB}, 1"); e(f"s_lshr_b32 s{sT0}, s{sH}, 4"); e(f"s_add_u32 s{sFo}, s{sFo}, s{sT0}"); e(f"s_lshl_b32 s{sFo}, s{sFo}, {cfg.fstr}")
        e(f"s_and_b32 s{sT0}, s{sH}, 15"); e(f"s_lshl_b32 s{sT0}, s{sT0}, {cfg.fsep}"); e(f"s_add_u32 s{sFo}, s{sFo}, s{sT0}"); e(f"s_add_u32 s{sFo}, s{sFo}, {FLAG_OFF}")
        if not cfg.clrpos:
            e(f"s_or_b32 s{sT0}, s{sW}, s{sRedo}"); e("s_cbranch_scc1 L_noclr")
            e(f"v_mov_b32 v{vT}, s{sFo}"); e(f"v_mov_b32 v{vT+1}, 0"); e("s_mov_b64 exec, 1")
            e(f"global_store_dword v{vT}, v{vT+1}, s[{sPTR+14}:{sPTR+15}] sc1"); e("s_mov_b64 exec, -1")
            e("L_noclr:")
    o += a1
    if cfg.s0: e("v_and_b32 v11, 48, v0"); e(f"v_add_u32 v11, {KR[0]}, v11")
    e(f"s_waitcnt vmcnt({16 if cfg.vlate else 8}) lgkmcnt(0)"); e("s_barrier")
    for c in range(4):
        if cfg.s0: e(f"ds_read_b128 {vr(vS+4*c,4)}, v11 offset:{(c&1)*64+(c>>1)*1024}")
        else: e(k_read(0, 0, c, base=k0))
    for i in range(8): e(f"ds_read_b128 {vr(vQ+64+4*i,4)}, v10 offset:{1024*i}")
    if cfg.dump_q:
        e("s_waitcnt lgkmcnt(0)")
        e(f"v_lshlrev_b32 v{tB}, 4, v0"); e(f"s_lshl_b32 s{sT0}, s{sH}, 2"); e(f"s_add_u32 s{sT0}, s{sT0}, s{sW}"); e(f"s_mul_i32 s{sT0}, s{sT0}, {18*1024}")
        for i in range(18):
            e(f"buffer_store_dwordx4 {vr(vQ+4*i,4)}, v{tB}, s[{sO}:{sO+3}], s{sT0} offen"); e(f"s_add_u32 s{sT0}, s{sT0}, 1024")
        e("s_waitcnt vmcnt(0)"); e("s_endpgm")
    def negm(E, srcs):
        tm = [vS + qt for qt in range(6)]
        for qt in range(6): E(f"v_mov_b32 v{tm[qt]}, v{srcs[qt]}")
        for qt in range(6): E(f"v_permlane32_swap_b32 v{srcs[qt]}, v{tm[qt]}")
        for qt in range(6): E(f"v_max_f32 v{srcs[qt]}, v{srcs[qt]}, v{tm[qt]}")
        for qt in range(6): E(f"v_mov_b32 v{tm[qt]}, v{srcs[qt]}")
        for qt in range(6): E(f"v_permlane16_swap_b32 v{srcs[qt]}, v{tm[qt]}")
        for qt in range(6): E(f"v_max_f32 v{srcs[qt]}, v{srcs[qt]}, v{tm[qt]}")
        for qt in range(6):
            for i in range(4): E(f"v_sub_f32 v{vNM+4*qt+i}, 0, v{srcs[qt]}")
    a2_all = list(a2)
    e(f"s_cmp_lg_u32 s{sRedo}, 0"); e("s_cbranch_scc1 L_truemax")
    if cfg.s0:
        o += a2[:16]; a2 = a2[16:]
        e("s_waitcnt lgkmcnt(8)")
        for i in range(16): e(f"v_xor_b32 v{vS+i}, 0x80008000, v{vS+i}")
        for qt in range(6):
            if qt == 4: e("s_waitcnt lgkmcnt(0)")
            nb = vNM + 4 * qt
            for c in range(4):
                e(f"{MF} {vr(nb,4)}, {vr(vS+4*c,4)}, {vr(vQ+16*qt+4*c,4)}, {'0' if c == 0 else vr(nb,4)}")
                nv = 0
                while a2 and nv < 2:
                    l = a2.pop(0); e(l); nv += l.startswith("v_")
        o += a2
    else:
        o += a2[:10]; a2 = a2[10:]
        e("s_waitcnt lgkmcnt(8)")
        mx = [vS + 8 + qt for qt in range(6)]
        for qt in range(6):
            if qt == 4: e("s_waitcnt lgkmcnt(0)")
            nb = vNM + 4 * qt
            for c in range(4):
                e(f"{MF} {vr(nb,4)}, {ar(aK+4*c,4)}, {vr(vQ+16*qt+4*c,4)}, {'0' if c == 0 else vr(nb,4)}")
                if qt >= 2 and c == 1:
                    p = vNM + 4 * (qt - 2); e(f"v_max3_f32 v{mx[qt-2]}, v{p}, v{p+1}, v{p+2}"); e(f"v_max_f32 v{mx[qt-2]}, v{mx[qt-2]}, v{p+3}")
                else:
                    nv = 0
                    while a2 and nv < 2:
                        l = a2.pop(0); e(l); nv += l.startswith("v_")
        o += a2
        for qt in (4, 5):
            p = vNM + 4 * qt; e(f"v_max3_f32 v{mx[qt]}, v{p}, v{p+1}, v{p+2}"); e(f"v_max_f32 v{mx[qt]}, v{mx[qt]}, v{p+3}")
        negm(e, mx)
    if not cfg.vlate: e("s_barrier")
    e("L_att:")
    e(f"s_mov_b32 s{sCnt}, 3"); e(f"s_mov_b32 s{sT3}, 65536"); e(f"s_mov_b32 s{sQs}, {(-32768) & 0xffffffff:#x}")
    e(f"s_add_u32 s{sKm}, s{sW8}, {KR[2]}")
    stamp(o, 3)
    if cfg.lstamp:
        e(f"s_add_u32 s{sX}, s{sPTR+14}, 0x4100000"); e(f"s_addc_u32 s{sX+1}, s{sPTR+15}, 0"); e(f"s_mov_b32 s{sX+2}, 0x100000"); e(f"s_mov_b32 s{sX+3}, 0x20000")
        e(f"s_lshl_b32 s{sT0}, s2, 2"); e(f"s_add_u32 s{sT0}, s{sT0}, s{sW}"); e(f"s_lshl_b32 s{sT0}, s{sT0}, 6"); e(f"v_mov_b32 v242, s{sT0}")
    A, bar = gen_attn_sched()
    N = A.n; CUT = 17 * PER
    sys.stderr.write(f"loop: overflow {sum(max(0, c - CAP) for c in A.cost)}, empty gaps {sum(c == 0 for c in A.cost)}\n")
    pro = lgkm_waits(A.linear(bar[1], N, keep=lambda it: it == 1), slack=100)
    zl = [f"v_mov_b32 v{vL+i}, 0" for i in range(24)]; pz = []
    seenv = not cfg.vlate; nd_ = 0
    for g, k, l in pro:
        if not seenv and l.startswith("ds_read_b64_tr"):
            pz += [f"s_waitcnt vmcnt({8 + nd_})", "s_barrier"]; seenv = True
        if k == "dma":
            nd_ += 1; assert seenv or f"s[{sV}:" in l
        pz.append(l)
        if k == "mf": pz += zl[:2]; zl = zl[2:]
    assert not zl
    pl, _ = check_hazards(pz, "pro", fix=True)
    o += pl
    e("s_waitcnt lgkmcnt(0)")
    body = A.linear(0, N)
    two = lgkm_waits(body + [(10**6, "x", "MARK:")] + [(g + N, k, l) for g, k, l in body] + [(2 * N, "mf", body[0][2])])
    k_ = [i for i, x in enumerate(two) if x[2] == "MARK:"][0]
    body2 = [(g - N, k, l) for g, k, l in two[k_+1:-1]]
    e("L_loop:")
    bl = []
    for g, k, l in body2:
        if l.startswith("SWITCH"): continue
        bl.append(l)
        if g == N - 1 and k == "mf": bl += [f"s_sub_u32 s{sCnt}, s{sCnt}, 1", f"s_cmp_lg_u32 s{sCnt}, 0"]
    ci = bl.index(f"s_cmp_lg_u32 s{sCnt}, 0")
    assert not any("scc" in Ins(x).w for x in bl[ci+1:]), bl[ci:]
    bl.append("s_cbranch_scc1 L_loop")
    _, bad = check_hazards(pl[-30:] + bl + bl, "loop"); assert bad == 0 or cfg.lstamp
    o += bl
    ep = []; hist = []
    def E(l, tag=None):
        if cfg.nost and tag == "st" and (cfg.nost == 1 or len([x for x in hist if x == "st"]) % 2): l = l.replace(f"s[{sO}:{sO+3}]", f"s[{sWQ}:{sWQ+3}]")
        ep.append(l)
        if Ins(l).kind in ("vmem", "dma", "vstore"): hist.append("sig" if l.endswith("; wave 0") else tag)
    def vwait(tag):
        last = max(i for i, x in enumerate(hist) if x == tag)
        n = sum(1 for x in hist[last+1:] if x not in ("sig", "look"))
        return f"s_waitcnt vmcnt({min(63, n)})"
    vwait1 = vwait
    LS = [KR[2], KR[2] + 4096, LDS_V[0], LDS_V[0] + 4096, KR[0], KR[0] + 4096, LDS_V[1], LDS_V[1] + 4096, KR[1], KR[1] + 4096]
    RS = [("a", 128), ("a", 144), ("a", 160), ("a", 176), ("v", 76), ("v", 92), ("a", 192), ("a", 208),
          ("v", 156), ("v", 172), ("v", 188), ("v", 204), ("v", 12), ("v", 28), ("a", 224), ("a", 240)]
    LSOF = {0: 0}
    NR = len(RS); NW = 16
    vR = 236; vLn = 10; vZ = 11
    def rreg(step, nt, jj=None):
        k, b = RS[step % NR]; f = vr if k == "v" else ar
        return f(b + 4 * nt, 4) if jj is None else f(b + 4 * nt + 2 * jj, 2)
    def tr_reads(step):
        a = LS[LSOF[step]]; s_ = a >> 16
        return [f"ds_read_b64_tr_b16 {rreg(step, nt, jj)}, v{vRa+4*s_+nt} offset:{(a & 0xffff) + 2048*jj} ; wo step {step}" for nt in range(4) for jj in range(2)]
    def wo_dma(step):
        return [(([f"s_add_u32 m0, s{sW8}, {LS[LSOF[step]]}", f"s_xor_b32 s{sT2}, s{sR4}, {32768*step}"] if q == 0 else []),
                 f"buffer_load_dwordx4 v{vKv+q}, s[{sK}:{sK+3}], s{sT2} offen offset:{1024*q} lds ; wo step {step}") for q in range(4)]
    def emit_dma(step):
        for l in flat(wo_dma(step)): E(l, ("w", step))
    def emit_tr(step):
        E(vwait(("w", step)))
        for l in tr_reads(step): E(l)
    T = vT
    P, _ = gen_attn_sched(peel=True)
    G0 = bar[0]; B7 = bar[1]
    NP = CUT + NPV
    Z = Sched(NP)
    for g in range(0, CUT):
        Z.mf[g] = P.mf[g]
        for x in A.gap[g]:
            if x.it or x.text.startswith("SWITCH") or x.text.startswith("v_add_f32"): continue
            if g < G0 + 1:
                if f"s[{sK}:{sK+3}]" in x.text or f"s{sKm}" in x.text or f"s{sKo}" in x.text or f"s{sKo+1}" in x.text: continue
                Z.put(g, Item(x.text.replace("vmcnt(8)", "vmcnt(V7)") + (" ; V7" if x.kind == "dma" else ""), x.kind))
            elif x.kind in ("ds", "t") or "cvt_pk" in x.text: Z.put(g, Item(x.text, x.kind))
            elif g == B7 and x.text in ("s_barrier",): Z.put(g, Item("s_waitcnt lgkmcnt(0)", "s")); Z.put(g, Item(x.text, "s"))
    for i in range(NPV): Z.mf[CUT + i] = P.mf[CUT + 16 + i]
    gg = CUT - 1
    for g in range(CUT, N):
        for x in P.gap[g]:
            if x.it == 0 and not x.text.startswith("v_add_f32"): gg = Z.put_win(min(gg + 1, CUT + Q1 - 3), CUT + Q1 - 3, Item(x.text, x.kind))
    if cfg.hyb:
        for g in range(0, 2 * PER):
            for x in A.gap[g]:
                if x.text.startswith("v_add_f32") and not x.it and int(x.text.split("v")[-1]) < vS + 16 and g < PER - 4 + 1: Z.put(g, Item(x.text, "v"))
        for n in range(1, 18):
            tl_ = LAST_TILE[n - 9] if n >= 9 else UNIT_TILE[n]
            sb = vS + 16 * (n & 1); l = vL + 8 * tl_
            for j in range(8):
                g = PER * (n - 1) + cfg.e0 + 2 * j + 1
                Z.put_win(g, min(PER * (n + 1) - 4, g + 30 if n == 9 else 10**6), Item(f"v_add_f32 v{l+(j&1)}, v{l+(j&1)}, v{sb+j}", "v"), pack=True)
    tags = {}
    def zput(lo, hi, text, kind, tag=None, pack=True, cap=CAP):
        if tag: tags[text] = tag
        return Z.put_win(lo, hi, Item(text, kind), pack=pack, cap=cap)
    def zf(lo, text, kind, tag=None, w=2):
        if tag: tags[text] = tag
        lo = min(lo, NP - 1)
        g = min(range(lo, min(lo + w, NP)), key=lambda x: (Z.cost[x] + (4 if kind in ("ds", "dma") and any(y.kind == "t" for y in Z.gap[x]) else 0), x))
        Z.put(g, Item(text, kind)); return g
    if cfg.v7step:
        seqv = []
        for g in range(0, G0):
            keep = []
            for x in Z.gap[g]:
                if x.text.endswith("; V7") or (x.kind == "s" and "m0" in x.text): seqv.append(x); Z.cost[g] -= x.cost
                else: keep.append(x)
            Z.gap[g] = keep
        g = 1; pre_ = []
        for x in seqv:
            if x.kind == "s": pre_.append(x.text); continue
            g = zf(g, x.text, "dma")
            for l in pre_: Z.put(g - 1, Item(l, "s"))
            pre_ = []; g += cfg.v7step
    vXw, vXr, vF, vFw = T, T + 1, 242, T + 3
    ad = [f"s_lshl_b32 s{sT0}, s{sW}, 14", f"s_lshr_b32 s{sT1}, s{sW}, 1", f"s_mul_i32 s{sT1}, s{sT1}, {KR[0] - 32768}", f"s_add_u32 s{sT0}, s{sT0}, s{sT1}",
          f"v_add_u32 v{vXw}, s{sT0}, v{vLn}", f"s_lshl_b32 s{sT0}, s{sW}, 11", f"v_add_u32 v{vXr}, s{sT0}, v{vLn}", f"v_add_u32 v{vXr+1}, {KR[0]}, v{vXr}",
          f"v_lshlrev_b32 v{vF}, 2, v0", f"v_add_u32 v{vF}, {LS[1]}, v{vF}", f"v_add_u32 v{vFw}, s{sW8}, v{vF}",
          f"s_lshl_b32 s{sT1}, s{sH}, 12", f"s_lshl_b32 s{sT3}, s{sW}, 10", f"s_add_u32 s{sT3}, s{sT3}, s{sT1}", f"s_add_u32 s{sT3}, s{sT3}, {16*131072}",
          f"s_lshl_b32 s{sT0}, s{sW}, 19", f"s_add_u32 s{sT0}, s{sT0}, s{sT1}", f"s_add_u32 s{sT1}, s{sT3}, 131072"]
    XOFF = 0x1400000
    sXs, sXr = sVo, sVo + 1
    su = [f"s_lshl_b32 s{sT1}, s{sW}, 19", f"s_lshl_b32 s{sT0}, s{sOdd}, 21", f"s_or_b32 s{sT1}, s{sT1}, s{sT0}",
          f"s_mov_b32 s{sD}, s{sPTR+8}", f"s_mov_b32 s{sD+1}, s{sPTR+9}", f"s_mov_b32 s{sD+2}, 4194304", f"s_mov_b32 s{sD+3}, 0x20000",
          f"s_lshr_b32 s{sPfo}, s2, 3", f"s_lshl_b32 s{sPfo}, s{sPfo}, 13", f"s_add_u32 s{sPfo}, s{sPfo}, s{sT1}",
          f"s_and_b32 s{sPfr}, s2, {4 if cfg.xrot else 0}", f"s_lshl_b32 s{sPfr}, s{sPfr}, 16", f"v_lshlrev_b32 v{vPfo}, 7, v0"]
    if cfg.cpf2:
        su += [f"s_getpc_b64 s[{sCP}:{sCP+1}]", "L_pc1:", f"s_add_u32 s{sCP}, s{sCP}, {'L_tail-L_pc1' if cfg.cpf2 == 1 else 0}", f"s_addc_u32 s{sCP+1}, s{sCP+1}, 0",
               f"s_lshr_b32 s{sT2}, s2, 3", f"s_lshl_b32 s{sT2}, s{sT2}, 2", f"s_add_u32 s{sT2}, s{sT2}, s{sW}", f"s_lshl_b32 s{sT2}, s{sT2}, 6",
               f"v_min_u32 v11, {1 if cfg.cpf2 == 1 else 2}, v0", f"v_lshlrev_b32 v11, 13, v11", f"v_add_u32 v11, s{sT2}, v11"]
    su += ["PF", f"s_and_b32 s{sR4}, s{sCg}, {cfg.orot}", f"s_lshl_b32 s{sR4}, s{sR4}, 15", f"s_or_b32 s{sR4}, s{sR4}, s{sT1}"]
    if cfg.xrot: su += [f"s_and_b32 s{sT1}, s2, 6", f"s_lshl_b32 s{sT1}, s{sT1}, 16", f"s_xor_b32 s{sR4}, s{sR4}, s{sT1}"]
    wo_voff(su.append, vKv, vT); wo_srd(su.append, sK)
    kg, r4, c4, tA, tB = vT, vT+1, vT+2, vT+3, vT+4
    su += [f"v_lshrrev_b32 v{kg}, 4, v0", f"v_bfe_u32 v{r4}, v0, 2, 2", f"v_and_b32 v{c4}, 3, v0",
           f"v_and_b32 v{tA}, 1, v{kg}", f"v_lshl_add_u32 v{tA}, v{tA}, 2, v{r4}", f"v_lshrrev_b32 v{tB}, 1, v{tA}", f"v_lshlrev_b32 v{tB}, 5, v{tB}",
           f"v_lshl_add_u32 v{tB}, v{tA}, 7, v{tB}", f"v_lshrrev_b32 v{tA}, 1, v{kg}", f"v_lshl_add_u32 v{tB}, v{tA}, 10, v{tB}",
           f"v_lshl_add_u32 v{tB}, v{c4}, 3, v{tB}", f"v_add_u32 v{vRa}, s{sW8}, v{tB}", f"s_lshl_b32 s{sT1}, s{sW}, 5", f"v_xor_b32 v{vRa}, s{sT1}, v{vRa}"]
    su += [f"v_xor_b32 v{vRa+nt}, {32*nt}, v{vRa}" for nt in range(1, 4)]
    su += [f"v_add_u32 v{vRa+4*s_+nt}, {65536*s_}, v{vRa+nt}" for s_ in range(1, 3) for nt in range(4)]
    su += ["v_lshlrev_b32 v10, 4, v0"]
    g = 2
    for l in su:
        if l == "PF":
            gsu = g
            if cfg.cpf2: zf(max(gsu, cfg.cpos), f"global_load_dword v{vPfd}, v11, s[{sCP}:{sCP+1}]", "dma")
            gp = gsu
            for i, x in enumerate(cfg.pfpos.split(",") if cfg.wopf else []):
                gp = zf(max(int(x), gp + 2), f"buffer_load_dword v{vPfd}, v{vPfo}, s[{sD}:{sD+3}], s{sPfx} offen ; pf{i}", "dma")
                for l_ in (f"s_xor_b32 s{sPfx}, s{sPfo}, s{sPfr}", f"s_add_u32 s{sPfo}, s{sPfo}, 262144"): Z.put(gp - 1, Item(l_, "s"))
        elif l.startswith("v_"): g = zput(g, g + 12, l, "v", pack=False) + 1
        else: Z.put(g, Item(l, "s"))
    if cfg.flags and cfg.clrpos:
        assert cfg.cntat > G0 and cfg.clrpos < 20
        for l in [f"s_or_b32 s99, s{sW}, s{sRedo}", "s_cbranch_scc1 L_noclr", f"v_mov_b32 v{vR+2}, s{sFo}", f"v_mov_b32 v{vR+3}, 0", "s_mov_b64 exec, 1",
                  f"global_store_dword v{vR+2}, v{vR+3}, s[{sPTR+14}:{sPTR+15}] sc1 ; wave 0", "s_mov_b64 exec, -1", "s_nop 3", "L_noclr:"]: Z.put(cfg.clrpos, Item(l, "s"))
    if cfg.flags:
        for l in [f"s_or_b32 s99, s{sW}, s{sRedo}", "s_cbranch_scc1 L_nocnt", f"v_mov_b32 v{vR+2}, 0", f"v_mov_b32 v{vR+3}, 1", "s_mov_b64 exec, 1",
                  f"global_atomic_add v{vR+2}, v{vR+3}, s[{sPTR+12}:{sPTR+13}] ; wave 0", "s_mov_b64 exec, -1", "s_nop 3", "L_nocnt:"]: Z.put(cfg.cntat, Item(l, "s"))
        for l in [f"s_cmp_lg_u32 s{sW}, 0", "s_cbranch_scc1 L_noget", f"v_mov_b32 v{vPfo}, 0", "s_mov_b64 exec, 1",
                  f"global_load_dword v{vPfo}, v{vPfo}, s[{sPTR+12}:{sPTR+13}] sc1 ; wave 0", "s_mov_b64 exec, -1", "s_nop 3", "L_noget:"]: Z.put(cfg.cntpos, Item(l, "s"))
    gp = max(g, cfg.ppos)
    for l in [f"s_add_u32 s{sV}, s{sPTR+14}, {XOFF}", f"s_addc_u32 s{sV+1}, s{sPTR+15}, 0", f"s_mov_b32 s{sV+2}, {256*20480}", f"s_mov_b32 s{sV+3}, 0x20000",
              f"s_mul_i32 s{sXr}, s2, 20480", f"s_mul_i32 s{sT0}, s{sW}, 5120", f"s_add_u32 s{sXr}, s{sXr}, s{sT0}",
              f"s_xor_b32 s{sXs}, s2, 1", f"s_mul_i32 s{sXs}, s{sXs}, 20480", f"s_add_u32 s{sXs}, s{sXs}, s{sT0}", f"s_add_u32 s{sT0}, s{sXr}, 4096"]: Z.put(gp, Item(l, "s"))
    for i in range(4): gp = zf(gp, f"v_mov_b32 v{vR+i}, -1", "v") + 1
    for i in range(0 if cfg.nopoison else 5):
        gp = zf(gp + 1, f"buffer_store_dwordx4 {vr(vR,4)}, v10, s[{sV}:{sV+3}], s{sXr if i < 4 else sT0} offen offset:{1024*(i&3)} sc1 ; mark {i}", "dma") + 1
    assert gp < G0 - 4
    g = G0 + 20
    for l in ad:
        if l.startswith("v_"): g = zput(g, g + 12, l, "v", pack=False) + 1
        else: Z.put(g, Item(l, "s"))
    def burst(g, lines):
        for l in lines: Z.put(g, Item(l, "v"))
    def pk(b, r):
        return f"v_pk_mul_f32 {vr(b,2)}, {vr(b,2)}, {vr(r & ~1,2)} op_sel:[0,{r & 1}] op_sel_hi:[1,{r & 1}]"
    sFl = sVm
    g = cfg.xw0 or PER * 9 + 16 + NPV + 6
    if cfg.hyb: burst(g, [f"v_add_f32 v{vL+16}, v{vL+16}, v{vL+16+1}", f"v_mov_b32 v{vL+18}, v{vL+16}", "s_nop 1", f"v_permlane32_swap_b32 v{vL+16}, v{vL+18}", f"v_add_f32 v{vL+16}, v{vL+16}, v{vL+18}",
               f"v_mov_b32 v{vL+18}, v{vL+16}", "s_nop 1", f"v_permlane16_swap_b32 v{vL+16}, v{vL+18}", f"v_add_f32 v{vL+16}, v{vL+16}, v{vL+18}"])
    for i in range(16): g = zf(g, f"ds_write_b128 v{vXw}, {ar(aO+128+4*i,4)} offset:{1024*i}", "ds") + 1
    g = zf(g, f"ds_write_b32 v{vFw}, v{vL+16}", "ds"); g = zf(g, f"ds_write_b32 v{vFw}, v{vL+20} offset:256", "ds")
    Z.put(g - 4, Item(f"s_mov_b32 s{sKd}, {LTHRESH:#x}", "s"))
    g = zf(g, f"v_add_f32 v{vR+4}, v{vL+16}, v{vL+20}", "v") + 1
    g = zf(g, f"v_cmp_nge_f32 s[{sFl}:{sFl+1}], s{sKd}, v{vR+4}", "v")
    XA = g + 7
    Z.put(XA, Item("s_waitcnt lgkmcnt(0)", "s")); Z.put(XA, Item("s_barrier", "s"))
    bA = [vQ + 64 + 4 * i for i in range(4)]; bB = [vQ + 80 + 4 * i for i in range(4)]; bC = [vNM + 16, vNM + 20, vL + 16, vL + 20]
    lr = [[236, 237, 238, 239], [5, 6, 7, 8]]
    def prd(wv, dst): return [f"ds_read_b128 {vr(dst[i],4)}, v{vXr+(wv>>1)} offset:{16384*(wv&1)+8192*(i>>1)+1024*(i&1)}" for i in range(4)]
    def padd(d, x): return [f"v_pk_add_f32 {vr(d[i]+r,2)}, {vr(d[i]+r,2)}, {vr(x[i]+r,2)}" for i in range(4) for r in (0, 2)]
    g = XA
    rd = prd(0, bA) + prd(1, bB) + prd(2, bC) + [f"ds_read_b32 v{lr[j][wv]}, v{vF} offset:{8192*wv+256*j}" for wv in range(4) for j in range(2)]
    for i, r in enumerate(rd): g = zf(g + (i & 1), r, "ds")
    gt = g + 1
    g = gt + 8
    while any(y.kind == "t" for y in Z.gap[g]): g += 1
    burst(g, padd(bA, bB))
    g3 = g + 1
    for i, r in enumerate(prd(3, bB)): g3 = zf(g3 + (i & 1), r, "ds")
    g += 2
    lsum = []
    for j in range(2):
        x = lr[j]; lsum += [f"v_add_f32 v{x[0]}, v{x[0]}, v{x[1]}", f"v_add_f32 v{x[2]}, v{x[2]}, v{x[3]}", f"v_add_f32 v{x[0]}, v{x[0]}, v{x[2]}"]
    burst(g, padd(bA, bC) + lsum + [f"v_rcp_f32 v{lr[0][0]}, v{lr[0][0]}", f"v_rcp_f32 v{lr[0][1]}, v{lr[1][0]}"])
    XB = g3 + 9
    while any(y.kind == "t" for y in Z.gap[XB]): XB += 1
    Z.put(XB, Item("s_waitcnt lgkmcnt(0)", "s")); Z.put(XB, Item("s_barrier", "s"))
    burst(XB, padd(bA, bB) + [pk(bA[i] + r, lr[0][i >> 1]) for i in range(4) for r in (0, 2)]
          + [f"v_cvt_pk_bf16_f32 v{bB[0]+i}, v{bA[0]+2*i}, v{bA[0]+2*i+1}" for i in range(8)])
    g = XB
    for j in range(2):
        d = f"buffer_store_dwordx4 {vr(bB[j],4)}, v{vLn}, s[{sO}:{sO+3}], s{sT3 if j == 0 else sT1} offen{cfg.st_sc}"
        g = zf(g + 1, d, "dma", tag=("prov", "st"))
    GS = g + 2
    free = [(cfg.d0, 0)] + [(XB + 1, i) for i in (1, 2, 3, 4, 5)] + [(B7 + 1, i) for i in (6, 7, 8, 9)]
    ravail = [XA] * 4 + [GS] * 2 + [CUT - 16, CUT - 16]
    gd = cfg.d0; gtr = gt + 1; nxt = 0; pend = []; ntr = 0; LSOF.clear()
    while True:
        free.sort()
        t0 = max(gd, free[0][0]) if free else 10**6
        if pend and ntr < len(ravail):
            tt = max(pend[0][1] + cfg.land, ravail[ntr], gtr)
            if tt <= t0 and tt + 8 < NP:
                st, gi = pend.pop(0); g = tt
                for i, r in enumerate(tr_reads(st)): g = zf(g + (i & 1), r, "ds", tag=("need", ("w", st)) if i == 0 else None)
                gtr = g + 1; free.append((g + 8, LSOF[st])); ntr += 1
                continue
        if t0 + 8 >= NP or nxt >= NW: break
        gf, sl = free.pop(0); LSOF[nxt] = sl
        w_ = wo_dma(nxt)
        if any(LSOF.get(x) == sl for x in range(nxt)): w_[0] = ([f"s_waitcnt lgkmcnt(15) ; slot {nxt}"] + w_[0][0], w_[0][1])
        g = t0
        for q, (p_, d) in enumerate(w_):
            g = zf(g, d, "dma", tag=("prov", ("w", nxt)), w=2 if t0 + 12 < NP else 1)
            for l in p_: Z.put(g - 1, Item(l, "s"))
            g += 2 if t0 + 12 < NP else 1
        pend.append((nxt, g)); gd = max(t0 + cfg.dstep, g); nxt += 1
    free = [x[1] for x in sorted(free)]
    sys.stderr.write(f"last stage: XA {XA} XB {XB} GS {GS}; wo steps issued {nxt}, in registers {ntr}; overflow {sum(max(0, c - CAP) for c in Z.cost)}\n")
    E("L_last:")
    if cfg.pstamp:
        for i_, g_ in enumerate((0, G0 + 1, XB + 1, B7 + 1)): Z.put(g_, Item(f"s_memtime s[{sST2+2*i_}:{sST2+2*i_+1}]", "s"))
    seq = Z.linear(0, NP)
    seq2 = lgkm_waits([(g - N, k, l) for g, k, l in body if g >= bar[1] and not l.startswith("SWITCH")] + [(-1, "x", "MARK:")] + seq)
    seq2 = seq2[[x[2] for x in seq2].index("MARK:") + 1:]
    dsq = []
    for g, k, l in seq2:
        if "; slot" in l:
            st = int(l.split()[-1]); prev = max(x for x in range(st) if LSOF[x] == LSOF[st])
            idx = max(i for i, x in enumerate(dsq) if x.endswith(f"wo step {prev}"))
            l = f"s_waitcnt lgkmcnt({min(15, len(dsq) - 1 - idx)})"
        if l.startswith("ds_"): dsq.append(l)
        if l.endswith("; V7"): tags[l] = ("prov", "V7")
        if "vmcnt(V7)" in l: l = vwait("V7") + " lgkmcnt(0)"
        tg = tags.get(l)
        if tg and tg[0] == "need": E(vwait(tg[1]))
        E(l, tg[1] if tg and tg[0] == "prov" else None)
    E("L_tail:")
    stamp(ep, 4)
    if cfg.hyb:
        r0 = [f"v_add_f32 v{vL}, v{vL}, v{vL+1}", f"v_mov_b32 v{vL+2}, v{vL}", "s_nop 1", f"v_permlane32_swap_b32 v{vL}, v{vL+2}", f"v_add_f32 v{vL}, v{vL}, v{vL+2}",
               f"v_mov_b32 v{vL+2}, v{vL}", "s_nop 1", f"v_permlane16_swap_b32 v{vL}, v{vL+2}", f"v_add_f32 v{vL}, v{vL}, v{vL+2}"]
        r1 = [f"v_add_f32 v{vL+8}, v{vL+8}, v{vL+8+1}", f"v_mov_b32 v{vL+10}, v{vL+8}", "s_nop 1", f"v_permlane32_swap_b32 v{vL+8}, v{vL+10}", f"v_add_f32 v{vL+8}, v{vL+8}, v{vL+10}",
               f"v_mov_b32 v{vL+10}, v{vL+8}", "s_nop 1", f"v_permlane16_swap_b32 v{vL+8}, v{vL+10}", f"v_add_f32 v{vL+8}, v{vL+8}, v{vL+10}"]
        for x, y in zip(r0, r1):
            if x.startswith("v_"): E(x); E(y)
    for qt in range(4): E(f"v_rcp_f32 v{vR+qt}, v{vL+4*qt}")
    chk = [f"s_mov_b32 s{sT3}, {LTHRESH:#x}",
           f"v_add_f32 v{T}, v{vL}, v{vL+4}", f"v_add_f32 v{T+1}, v{vL+8}, v{vL+12}",
           f"v_add_f32 v{T}, v{T}, v{T+1}", f"v_cmp_nge_f32 vcc, s{sT3}, v{T}",
           f"v_lshlrev_b32 v{vF}, 2, v0", f"v_add_u32 v{vF}, {{FL}}, v{vF}", f"v_add_u32 v{T+1}, s{sW8}, v{vF}",
           f"s_or_b64 vcc, vcc, s[{sFl}:{sFl+1}]", f"s_cselect_b32 s{sT3}, 1, 0", f"v_mov_b32 v{T+2}, s{sT3}"]
    todo = [st for st, gi in pend]
    fl = 220
    if free: FS = free.pop(0); first = []
    else: first = [todo.pop(0)]; FS = LSOF[first[0]]
    for k in range(16):
        qt, kc = k >> 2, k & 3
        b0 = 108 + 12 * (k % 2)
        if k == 0:
            for st in first: emit_tr(st); ntr += 1
        if k == 3:
            E("s_waitcnt lgkmcnt(0)"); E("s_barrier")
            for wv in range(4): E(f"ds_read_b32 v{fl+wv}, v{vF} offset:{8192*wv}")
        if k == 4:
            E("s_waitcnt lgkmcnt(0)")
            E(f"v_or_b32 v{fl}, v{fl}, v{fl+1}"); E(f"v_or3_b32 v{fl}, v{fl}, v{fl+2}, v{fl+3}")
            E(f"v_readfirstlane_b32 s{sT2}, v{fl}")
            E(f"s_andn2_b32 s{sT2}, s{sT2}, s{sRedo}"); E(f"s_cmp_lg_u32 s{sT2}, 0"); E("s_cbranch_scc1 L_fallback")
        if k >= 5 and todo and todo[0] < 16:
            st = todo.pop(0); emit_tr(st); free.append(LSOF[st]); ntr += 1
        for i in range(8): E(f"v_accvgpr_read_b32 v{b0+i}, a{aO+32*qt+8*kc+i}")
        for i in range(4): E(pk(b0 + 2 * i, vR + qt))
        for i in range(4): E(f"v_cvt_pk_bf16_f32 v{b0+8+i}, v{b0+2*i}, v{b0+2*i+1}")
        E(f"buffer_store_dwordx4 {vr(b0+8,4)}, v{vLn}, s[{sO}:{sO+3}], s{sT0} offen offset:{1024*kc}{cfg.st_sc}", "st")
        if kc == 3 and qt < 3: E(f"s_add_u32 s{sT0}, s{sT0}, 131072")
        if k == 1:
            for l in chk: E(l.replace("{FL}", str(LS[FS])))
            E("s_waitcnt lgkmcnt(0)"); E(f"ds_write_b32 v{T+1}, v{T+2}")
    stamp(ep, 5)
    E("s_waitcnt lgkmcnt(0)")
    for _ in range(cfg.npost):
        if nxt < NW: LSOF[nxt] = free.pop(0); emit_dma(nxt); todo.append(nxt); nxt += 1
    E(f"s_mov_b32 s{sD}, s{sPTR+12}"); E(f"s_mov_b32 s{sD+1}, s{sPTR+13}"); E(f"s_mov_b32 s{sD+2}, 256"); E(f"s_mov_b32 s{sD+3}, 0x20000")
    E(f"s_lshl_b32 s{sT0}, s{sMt}, 17"); E(f"s_add_u32 s{sX}, s{sPTR+14}, s{sT0}"); E(f"s_addc_u32 s{sX+1}, s{sPTR+15}, 0")
    E(f"s_mov_b32 s{sX+2}, {9*131072}"); E(f"s_mov_b32 s{sX+3}, 0x20000")
    E(f"s_lshl_b32 s{sT0}, s{sMt}, 14"); E(f"s_add_u32 s{sWQ}, s{sPTR+10}, s{sT0}"); E(f"s_addc_u32 s{sWQ+1}, s{sPTR+11}, 0")
    E(f"s_mov_b32 s{sWQ+2}, {9*16384}"); E(f"s_mov_b32 s{sWQ+3}, 0x20000")
    vOo = 220
    E(f"v_mov_b32 v{vZ}, 0"); E(f"v_mov_b32 v{T}, 1"); E(f"s_mul_i32 s{sT2}, s{sOdd}, {5*131072}")
    E(f"v_add_u32 v{vOo}, s{sT2}, v{vLn}"); E(f"v_add_u32 v{vOo+4}, {4*131072}, v{vLn}"); E(f"v_subrev_u32 v{vOo+5}, s{sT2}, v{vLn}"); E(f"v_add_u32 v{vOo+5}, {5*131072}, v{vOo+5}")
    for i in range(1, 4): E(f"v_add_u32 v{vOo+i}, {131072*i}, v{vOo}"); E(f"v_add_u32 v{vOo+5+i}, {131072*i}, v{vOo+5}")
    sPo = sXm
    E(f"s_lshr_b32 s{sPo}, s{sR4}, 5")
    E(f"s_lshl_b32 s{sT0}, s{sB}, 1"); E(f"s_lshr_b32 s{sT1}, s{sH}, 4"); E(f"s_add_u32 s{sT0}, s{sT0}, s{sT1}"); E(f"s_lshl_b32 s{sT0}, s{sT0}, 4")
    E(f"s_lshl_b32 s{sT1}, s{sRg}, 1"); E(f"s_add_u32 s{sT1}, s{sT1}, s{sOdd}"); E(f"s_lshl_b32 s{sT1}, s{sT1}, 4")
    E(f"v_mov_b32 v{T+1}, s{sT0}"); E(f"v_writelane_b32 v{T+1}, s{sT1}, 0")
    E(f"s_lshl_b32 s{sT2}, s{sB}, 5"); E(f"s_add_u32 s{sT2}, s{sT2}, s{sH}")
    if cfg.flags:
        E(f"s_lshl_b32 s{sT1}, s{sT1}, {cfg.fstr - 4}"); E(f"s_add_u32 s{sT1}, s{sT1}, {FLAG_OFF}"); E(f"s_xor_b32 s{sT0}, s{sFo}, {4 << cfg.fsep}")
        E(f"v_lshlrev_b32 v{T+1}, {cfg.fsep}, v0"); E(f"v_add_u32 v{T+1}, s{sT1}, v{T+1}"); E(f"v_mov_b32 v{T+2}, s{sT0}"); E(f"v_cmp_gt_u32 vcc, 16, v0")
        E(f"v_cndmask_b32 v{T+1}, v{T+2}, v{T+1}, vcc"); E(f"v_mov_b32 v{T+2}, s{sFo}")
    E(vwait("st")); E("s_barrier")
    E(f"s_cmp_lg_u32 s{sW}, 0"); E("s_cbranch_scc1 L_nosig")
    E("s_mov_b64 exec, 1")
    if cfg.flags: ep.append(f"global_store_dword v{T+2}, v{T}, s[{sPTR+14}:{sPTR+15}] sc1")
    elif cfg.bflag: ep.append(f"buffer_store_byte v{T}, v{vZ}, s[{sD}:{sD+3}], s{sT2} offen sc1")
    else: ep.append(f"buffer_atomic_add v{T}, v{vZ}, s[{sD}:{sD+3}], s{sT0} offen")
    if cfg.epoll: E("s_mov_b64 exec, 0x1ffff"); ep.append(f"global_load_dword v{T+3}, v{T+1}, s[{sPTR+14}:{sPTR+15}] sc1")
    E("s_mov_b64 exec, -1")
    E("L_nosig:")
    hist.append("sig"); hist.append("look")
    stamp(ep, 6)
    if cfg.cpf3:
        E(f"s_getpc_b64 s[{sCP}:{sCP+1}]"); E(f"v_min_u32 v{T+9}, 1, v0"); E(f"v_lshlrev_b32 v{T+9}, 13, v{T+9}")
        E(f"s_lshr_b32 s{sT2}, s2, 3"); E(f"s_lshl_b32 s{sT2}, s{sT2}, 2"); E(f"s_add_u32 s{sT2}, s{sT2}, s{sW}"); E(f"s_lshl_b32 s{sT2}, s{sT2}, 6")
        E(f"v_add_u32 v{T+9}, s{sT2}, v{T+9}"); E(f"v_min_u32 v{T+9}, L_end-L_nosig, v{T+9}")
        E(f"global_load_dword v{T+9}, v{T+9}, s[{sCP}:{sCP+1}]")
    free.append(FS)
    late_dma = []
    while nxt < NW:
        LSOF[nxt] = free.pop(0); todo.append(nxt)
        if cfg.latew: late_dma.append(nxt)
        else: emit_dma(nxt)
        nxt += 1
    late_tr = list(todo)
    sys.stderr.write(f"wo steps still to be read into registers after the signal: {late_tr}\n")
    if cfg.trpre:
        for st in late_tr: emit_tr(st)
        late_tr = []
    stamp(ep, 7)
    E(f"s_cmp_lg_u32 s{sW}, 0"); E("s_cbranch_scc1 L_ready")
    E(f"s_mov_b32 s{sCnt}, 0x40000")
    if cfg.flags:
        E("L_cnt:")
        E(f"v_readfirstlane_b32 s{sT0}, v{vPfo}"); E(f"s_sub_u32 s{sCnt}, s{sCnt}, 1"); E(f"s_cmp_eq_u32 s{sCnt}, 0"); E("s_cbranch_scc1 L_ready")
        E(f"s_cmp_ge_u32 s{sT0}, 256"); E("s_cbranch_scc1 L_cntok")
        E("s_sleep 16"); ep.append(f"global_load_dword v{vPfo}, v{vZ}, s[{sPTR+12}:{sPTR+13}] sc1"); E("s_waitcnt vmcnt(0)"); E("s_branch L_cnt")
        E("L_cntok:")
    E(f"s_mov_b64 exec, {0x1ffff if cfg.flags else 3:#x}")
    if cfg.epoll:
        E(vwait("look")); E(f"v_cmp_ne_u32 vcc, 1, v{T+3}"); E("s_cmp_eq_u64 vcc, 0"); E("s_cbranch_scc1 L_got")
    E("L_poll:")
    if cfg.flags:
        ep.append(f"global_load_dword v{T+3}, v{T+1}, s[{sPTR+14}:{sPTR+15}] sc1")
        E("s_waitcnt vmcnt(0)"); E(f"v_cmp_ne_u32 vcc, 1, v{T+3}")
    elif cfg.bflag:
        ep.append(f"buffer_load_dwordx4 {vr(T+4,4)}, v{T+1}, s[{sD}:{sD+3}], 0 offen sc1")
        E("s_waitcnt vmcnt(0)"); E(f"v_and_b32 v{T+4}, v{T+4}, v{T+5}"); E(f"v_and_b32 v{T+6}, v{T+6}, v{T+7}"); E(f"v_and_b32 v{T+4}, v{T+4}, v{T+6}")
        E(f"v_cmp_ne_u32 vcc, 0x01010101, v{T+4}")
    else:
        ep.append(f"buffer_load_dword v{T+3}, v{T+1}, s[{sD}:{sD+3}], 0 offen sc1")
        E("s_waitcnt vmcnt(0)"); E(f"v_cmp_gt_u32 vcc, 16, v{T+3}")
    E(f"s_sub_u32 s{sCnt}, s{sCnt}, 1"); E(f"s_cmp_eq_u32 s{sCnt}, 0"); E("s_cbranch_scc1 L_got")
    E("s_cmp_eq_u64 vcc, 0"); E("s_cbranch_scc1 L_got")
    E(f"s_sleep {cfg.sleep}"); E("s_branch L_poll")
    E("L_got:"); E("s_mov_b64 exec, -1")
    E("L_ready:")
    E("s_barrier")
    stamp(ep, 8); stamp(ep, 5, True)
    TM = cfg.TM; NT_ = 16 - TM; W_ = 4 * NT_
    TORD = [4, 5, 6, 7, 8, 0, 1, 2, 3]
    uses = [(st, t) for st in range(TM) for t in range(9)] + [(st, t) for t in TORD for st in range(TM, 16)]
    OB = [("a", 108 + 4 * i) for i in range(5)] + [("v", 44 + 4 * i) for i in range(8)] + [("v", 144 + 4 * i) for i in range(3)]
    LAT = cfg.LAT; assert LAT + cfg.og + 1 <= len(OB) and LAT >= 2 * cfg.og - 1
    UK = len(uses) - 4 * NT_ if cfg.acc_ else len(uses)
    ob = lambda u: ar(128 + 4 * (u - UK), 4) if u >= UK else (vr if OB[u % len(OB)][0] == "v" else ar)(OB[u % len(OB)][1], 4)
    acc = lambda t, j: vr(108 + 4 * t, 4) if j == 0 else ar(12 * t + 4 * (j - 1), 4)
    sS = [sKo, sKo + 1, sKs, sVs, sKm, sKd, sKb, sKw]
    def oload(u):
        st, t = uses[u]
        pre = [f"s_xor_b32 s{sS[st & 7]}, s{sPo}, {1024*st}"] if (st, t) == next(x for x in uses if x[0] == st) else []
        return pre, f"buffer_load_dwordx4 {ob(u)}, v{vOo+t}, s[{sX}:{sX+3}], s{sS[st & 7]} offen{cfg.ld_sc} ; o {u}"
    for u in range(LAT):
        for l in flat([oload(u)]): E(l, ("o", u))
    NM = 4 * len(uses)
    SO = Sched(NM); tags = {}
    for u, (st, t) in enumerate(uses):
        for j in range(4):
            SO.mf[4*u + j] = Item(f"{MF} {acc(t,j)}, {rreg(st, j)}, {ob(u)}, {'0' if st == 0 else acc(t,j)} ; o {u}", "mf")
        if u + LAT < len(uses):
            p_, d = oload(u + LAT); tags[d] = ("prov", ("o", u + LAT))
            gl = 4 * (u - u % cfg.og) + (1 if cfg.og == 1 else u % cfg.og)
            if u + LAT >= UK: gl = 4 * (UK - LAT) + 1 + cfg.acc_ * (u + LAT - UK)
            for l in p_: SO.put(max(gl - 1, 0) if gl else 0, Item(l, "s"))
            SO.put(gl, Item(d, "dma"))
    dpos = {}
    for i, st in enumerate(late_dma):
        g = cfg.lw0 + cfg.lwstep * i
        for p_, d in wo_dma(st):
            tags[d] = ("prov", ("w", st)); g = place_dmas(SO, [(p_, d)], g, 2)
        dpos[st] = g
    g = 2
    for st in late_tr:
        if st in dpos: g = max(g, dpos[st] + 60)
        for k_, r in enumerate(tr_reads(st)):
            while SO.cost[g] > 4: g += 1
            SO.put(g, Item(r, "ds")); g += (2 if k_ & 1 else 0)
            if k_ == 0: tags[r] = ("need", ("w", st))
        assert g < 36 * st - 8
    tL, tH, r1, r2l, r2h, r3, va = 229, 230, 231, T + 4, T + 5, T + 6, T + 7
    ad = [f"v_add_u32 v{tL}, s{sW8}, v{vLn}", f"v_add_u32 v{tH}, 65536, v{tL}", f"v_xor_b32 v{r1}, 8192, v{tL}", f"v_xor_b32 v{r2l}, 16384, v{tL}",
          f"v_xor_b32 v{r2h}, 16384, v{tH}", f"v_xor_b32 v{r3}, 24576, v{tH}",
          f"v_and_b32 v{va}, 15, v0", f"v_lshlrev_b32 v{va}, 10, v{va}", f"v_lshrrev_b32 v{va+1}, 4, v0", f"v_lshl_add_u32 v{va}, v{va+1}, 3, v{va}",
          f"s_lshl_b32 s{sT0}, s{sCg}, 7", f"s_lshl_b32 s{sT1}, s{sW}, 5", f"s_add_u32 s{sT0}, s{sT0}, s{sT1}", f"s_add_u32 s{sT3}, s{sT0}, {4*16384}",
          f"s_mul_i32 s{sT1}, s{sOdd}, {5*16384}", f"s_add_u32 s{sT0}, s{sT0}, s{sT1}", f"s_add_u32 s{sT1}, s{sXs}, 4096", f"s_add_u32 s{sT2}, s{sXr}, 4096"]
    g = 36 * (TM - 3) + 2
    for l in ad:
        if l.startswith("v_"): SO.put(g, Item(l, "v")); g += 4
        else: SO.put(g, Item(l, "s"))
    SO.put(36 * TM - 4, Item("s_waitcnt lgkmcnt(0)", "s"))
    def loc(j, t): n = (j - 1) * 9 + t; return n // 8, (n // 8 & 1) * 32768 + (n % 8) * 1024
    def wr(j, t): r_, o_ = loc(j, t); return f"ds_write_b128 v{tL if r_ < 2 else tH}, {acc(t,j)} offset:{o_}"
    def rd(j, t, dst):
        r_, o_ = loc(j, t); a_ = {1: r1, 2: r2l if r_ < 2 else r2h, 3: r3}[j]
        assert (j != 1 or r_ < 2) and (j != 3 or r_ >= 2)
        return f"ds_read_b128 {vr(dst,4)}, v{a_} offset:{o_}"
    late = []
    for i, t in enumerate(TORD):
        for j in range(1, 4):
            gg = 36 * TM + W_ * i + W_ - 4 + j + 9 + (j - 1)
            if gg < NM: SO.put(gg, Item(wr(j, t), "ds"))
            else: late.append(wr(j, t))
    tmp = [76 + 4 * i for i in range(8)] + [156 + 4 * i for i in range(8)]
    def sums(t, b):
        a0 = 108 + 4 * t
        return [f"v_pk_add_f32 {vr(a0+r,2)}, {vr(a0+r,2)}, {vr(b[0]+r,2)}" for r in (0, 2)] + [f"v_pk_add_f32 {vr(b[1]+r,2)}, {vr(b[1]+r,2)}, {vr(b[2]+r,2)}" for r in (0, 2)] \
             + [f"v_pk_add_f32 {vr(a0+r,2)}, {vr(a0+r,2)}, {vr(b[1]+r,2)}" for r in (0, 2)]
    X1 = 36 * TM + W_ * 5 - 4 + 3 + 9 + 2 + cfg.x1d
    SO.put(X1, Item("s_waitcnt lgkmcnt(0)", "s")); SO.put(X1, Item("s_barrier", "s"))
    g = X1
    for i, t in enumerate(TORD[:5]):
        for j in range(1, 4): SO.put(g + (3 * i + j - 1) // 2, Item(rd(j, t, tmp[3*i+j-1]), "ds"))
    g = X1 + 14
    for i, t in enumerate(TORD[:5]):
        for l in sums(t, tmp[3*i:3*i+3]): SO.put(g, Item(l, "v"))
        d = f"buffer_store_dwordx4 {vr(108+4*t,4)}, v{vLn}, s[{sV}:{sV+3}], s{sT1 if i == 0 else sXs} offen offset:{0 if i == 0 else 1024*(i-1)} sc1 ; send {i}"
        SO.put(g + 1, Item(d, "dma")); g += 2
    assert g < NM - 2, (g, NM)
    seq = lgkm_waits(SO.linear(0, NM))
    E(vwait(("o", cfg.og - 1)))
    if not cfg.o3: stamp(ep, 6, True)
    for idx, (g, k, l) in enumerate(seq):
        tg = tags.get(l)
        if tg and tg[0] == "need": E(vwait(tg[1]))
        E(l, tg[1] if tg and tg[0] == "prov" else None)
        if k == "mf" and g % (4 * cfg.og) == 4 * cfg.og - 1 and g < NM - 1: E(vwait(("o", g // 4 + cfg.og)))
        if cfg.o3 and k == "mf" and g == 36 * TM: stamp(ep, 6, True)
        if k == "mf" and g == (NM // 2 - 1 if not cfg.o3 else X1 + cfg.o3 - 2): stamp(ep, 7, True)
        if k == "mf" and g == NM - 1: stamp(ep, 8, True)
    rcv = [44 + 4 * i for i in range(5)]
    rl = [f"buffer_load_dwordx4 {vr(rcv[i],4)}, v{vLn}, s[{sV}:{sV+3}], s{sXr if i < 4 else sT2} offen offset:{1024*(i&3)} sc1" for i in range(5)]
    for l in late: E(l)
    if not cfg.rlate:
        for l in rl: E(l)
    E("s_waitcnt lgkmcnt(0)"); E("s_barrier")
    tm2 = [156 + 4 * i for i in range(12)]
    for t in range(4):
        for j in range(1, 4): E(rd(j, t, tm2[3*t+j-1]))
    if cfg.rlate:
        for l in rl: E(l)
    for t in range(4):
        E(f"s_waitcnt lgkmcnt({3*(3-t)})")
        for l in sums(t, tm2[3*t:3*t+3]): E(l)
    E(f"s_mov_b32 s{sCnt}, 0x40000")
    E("L_rx:")
    E("s_waitcnt vmcnt(0)")
    E(f"v_max3_u32 v{T}, v{rcv[0]}, v{rcv[0]+1}, v{rcv[0]+2}")
    for i in range(3, 19, 2): E(f"v_max3_u32 v{T}, v{T}, v{rcv[0]+i}, v{rcv[0]+i+1}")
    E(f"v_max_u32 v{T}, v{T}, v{rcv[0]+19}"); E(f"v_cmp_eq_u32 vcc, -1, v{T}")
    E(f"s_sub_u32 s{sCnt}, s{sCnt}, 1"); E(f"s_cmp_eq_u32 s{sCnt}, 0"); E("s_cbranch_scc1 L_rxd")
    E("s_cmp_eq_u64 vcc, 0"); E("s_cbranch_scc1 L_rxd")
    E(f"s_sleep {cfg.rsleep}")
    for l in rl: ep.append(l)
    E("s_branch L_rx")
    E("L_rxd:")
    for t in range(5):
        a0 = 108 + 4 * t
        for r in (0, 2): E(f"v_pk_add_f32 {vr(a0+r,2)}, {vr(a0+r,2)}, {vr(rcv[t]+r,2)}")
        E(f"v_cvt_pk_bf16_f32 v{rcv[t]}, v{a0}, v{a0+1}"); E(f"v_cvt_pk_bf16_f32 v{rcv[t]+1}, v{a0+2}, v{a0+3}")
        E(f"buffer_store_dwordx2 {vr(rcv[t],2)}, v{va}, s[{sWQ}:{sWQ+3}], s{sT0 if t < 4 else sT3} offen{cfg.out_sc}")
        if t < 3: E(f"s_add_u32 s{sT0}, s{sT0}, 16384")
    if cfg.stamp:
        vt = 156
        E("s_waitcnt vmcnt(0)")
        E(f"s_memtime s[{sST+10}:{sST+11}]"); E(f"s_memrealtime s[{sST+12}:{sST+13}]"); E("s_waitcnt lgkmcnt(0)")
        E(f"s_add_u32 s{sD}, s{sPTR+14}, 0x4000000"); E(f"s_addc_u32 s{sD+1}, s{sPTR+15}, 0")
        E(f"s_mov_b32 s{sD+2}, 0x100000"); E(f"s_mov_b32 s{sD+3}, 0x20000")
        E(f"s_lshl_b32 s{sT0}, s2, 2"); E(f"s_add_u32 s{sT0}, s{sT0}, s{sW}"); E(f"s_lshl_b32 s{sT0}, s{sT0}, 7")
        for i in range(16): E(f"v_mov_b32 v{vt+i}, s{sST+i}")
        for i in range(8): E(f"v_mov_b32 v{vt+16+i}, s{sST2+i}")
        for i in range(6): E(f"buffer_store_dwordx4 {vr(vt+4*i,4)}, v{vZ}, s[{sD}:{sD+3}], s{sT0} offen offset:{16*i}")
    E("L_end:"); E("s_endpgm")
    E("L_fallback:")
    E(f"s_mov_b32 s{sRedo}, 1"); E("s_waitcnt vmcnt(0) lgkmcnt(0)"); E("s_barrier")
    E(f"s_load_dwordx16 s[{sPTR}:{sPTR+15}], s[0:1], 0")
    E("s_branch L_restart")
    E("L_truemax:")
    for l in a2_all: E(l)
    mx = [vT + 12 + qt for qt in range(6)]
    for qt in range(6): E(f"v_mov_b32 v{mx[qt]}, 0xff800000")
    E(f"s_mov_b32 s{sCnt}, 8"); E(f"s_add_u32 s{sKm}, s{sW8}, {KR[0]}")
    E("s_waitcnt vmcnt(0) lgkmcnt(0)")
    E("L_fb_loop:")
    E("s_barrier")
    for l in flat(k_dma()) + adv(sKo, sKs): E(l)
    E("s_waitcnt vmcnt(0)"); E("s_barrier")
    for j in range(4):
        for idx in range(8): E(k_read(j, idx >> 2, idx & 3))
        E("s_waitcnt lgkmcnt(0)")
        for k16 in range(2):
            for qt in range(6):
                nb = vNM + 4 * qt
                for c in range(4):
                    E(f"{MF} {vr(nb,4)}, {ar(aK+16*k16+4*c,4)}, {vr(vQ+16*qt+4*c,4)}, {'0' if c == 0 else vr(nb,4)}")
            E("s_nop 7")
            for qt in range(6):
                nb = vNM + 4 * qt
                E(f"v_max3_f32 v{mx[qt]}, v{mx[qt]}, v{nb}, v{nb+1}"); E(f"v_max3_f32 v{mx[qt]}, v{mx[qt]}, v{nb+2}, v{nb+3}")
            E("s_nop 3")
    E(f"s_sub_u32 s{sCnt}, s{sCnt}, 1"); E(f"s_cmp_lg_u32 s{sCnt}, 0"); E("s_cbranch_scc1 L_fb_loop")
    E("s_barrier")
    E(f"s_mov_b32 s{sKo}, s{sK0}"); E(f"s_add_u32 s{sKo+1}, s{sK0}, 4096")
    for l in flat(k_dma()) + adv(sKo, sKs): E(l)
    negm(E, mx)
    E("s_waitcnt vmcnt(0)"); E("s_barrier")
    E("s_branch L_att")
    pre = [l for g, k, l in body2 if g >= N - 12 and not l.startswith("SWITCH")]
    n0_ = len(ep)
    el, _ = check_hazards(pre + ["Y:"] + ep, "ep", fix=True)
    sys.stderr.write(f"nops added after the loop: {len(el) - len(pre) - 1 - n0_}\n")
    o += el[el.index("Y:") + 1:]
    return o

def main():
    k1 = [l for l in gen() if l]
    n0 = len(k1); k1, _ = check_hazards(k1, "k1", fix=True)
    sys.stderr.write(f"{len(k1)} lines, {len(k1)-n0} nops added by final pass\n")
    hdr = open("standalone__gqa_block_cached__near_ridge.s.ref").read().split("\n")[:9]
    doc = """;
; One workgroup of four waves per (batch, head); all 256 are resident at once, one per CU.
;  1. Q^T = wq_h^T x_b^T, eight 64-deep chunks staged in LDS by LDS-DMA; scaled by log2(e)/sqrt(128), packed to bf16.
;  2. Attention over eight stages of 128 keys (K ring of three slots, V ring of two). Each wave owns 64 queries and a quarter
;     of the keys of the last 32 queries. S^T = K Q^T - m leaves the MFMA with the shift already applied (m enters as the C
;     operand), P = exp2(S), O^T += V^T P^T and the row sums follow in a software pipeline of 16x16x32 MFMAs.
;     m is the score of the first key, a lower bound of the row maximum; if any row sum leaves [0, 2^64] (or is NaN) the
;     workgroup starts again, takes the true row maxima in a separate pass over K and repeats the attention with them.
;  3. o goes to the workspace (write-through), a flag per workgroup tells the readers. Flags are cleared by their owners first;
;     a counter in d_debug tells when all of them have been cleared in this launch.
;  4. out tile of 144 x 64 over half of the heads per workgroup; four waves split that K range, sum through LDS and exchange
;     half of the tile with the partner workgroup through a buffer the receiver has marked as empty beforehand.
; Written with a generator script of my own (instruction scheduling, wait counts and hazard distances are computed there).""".split("\n")
    out = hdr + [f"; @launch grid=(256,1,1) block=(256,1,1) lds={LDS_TOTAL}"] + doc + [
                 '.amdgcn_target "amdgcn-amd-amdhsa--gfx950"', ".text"]
    fmt = lambda l: l if l.endswith(":") else "    " + l
    out += [f".globl {cfg.name}", ".p2align 8", f".type {cfg.name},@function"] + [fmt(l) for l in k1]
    out += ["L_code_end:"]
    if cfg.cpf: out += [f".if (L_code_end - L_pc0) < {8192*cfg.cpf_n}", '.error "code prefetch range"', ".endif"]
    if cfg.cpf2 == 2: out += [".if (L_code_end - L_pc1) < 24576", '.error "code prefetch range"', ".endif"]
    out += ['.section .rodata,"a"', ".p2align 6", f""".amdhsa_kernel {cfg.name}
  .amdhsa_next_free_vgpr 512
  .amdhsa_next_free_sgpr 102
  .amdhsa_accum_offset 256
  .amdhsa_group_segment_fixed_size 0
  .amdhsa_kernarg_size 64
  .amdhsa_user_sgpr_count 2
  .amdhsa_user_sgpr_kernarg_segment_ptr 1
  .amdhsa_system_sgpr_workgroup_id_x 1
.end_amdhsa_kernel
"""]
    txt = "\n".join(out)
    if cfg.rt: txt = txt.replace("s_memtime", "s_memrealtime")
    open(sys.argv[1], "w").write(txt)
main()
```

```python
import sys, math, struct
from asmlib import *

class Cfg:
    name = "standalone__gqa_block_cached__near_ridge_kernel"
    stamp = False
    map_bh = "h"
    kv_nt = True; q_nt = False
    dump_q = False
    e0 = 9
    dma_step = 20.0; qstep = 5
    wowarm = 0; k0pf = 0; dm = ''; trlag = 8; npost = 3; ola = 2; ostep = 1; epi = 'mix'; qstamp = False; cpf = 1; cpf_n = 5; cpf2 = 2; qrot = 1; orot = 0; ostamp = False; krot = 0; xw0 = 0; land = 45; xcap = 12; dstep = 17; pf_end = 0; pkq = 1; epoll = 0; wwpos = 0; poll1 = 1; pflate = 1; pfk = 0; pfsh = 13; xrot = 1; qx = 0; pfcut = 0; wo_nt = False; fastred = 1; k1pos = 1; nost = 0; olay = 0; pf_nt = False; pf0 = 4; pfpos = '170,172'; ppos = 100; NW = 16; LAT = 10; trpre = 0; QB = 9; kpf0 = 0; s0p = 1; TM = 11; rlate = 0; acc_ = 0; o3 = 0; clrpos = 0; fsep = 7; rt = False; latew = 0; lw0 = 8; lwstep = 36; og = 1; bflag = 1; ptouch = 0; cntat = 60; nopoison = 0; x1d = 6; rsleep = 1; d0 = 370; cpos = 38; cpf3 = 1; out_sc = ''; nobar = 1; v7step = 5; qstart = 0; tlb = 0; qkord = 0; flags = 1; fstr = 11; cntpos = 470; pre_to = 26; wlag = 2; kvstep = 5; vlate = 1; qb0 = 27; hyb = 1; s0 = 1; q2step = 3; sstamp = False; pstamp = False; dgrp = 1
    wopf = 1
    opf = 0
    qpf = 0
    sleep = 4
    lstamp = False
    st_sc = " sc1"; ld_sc = " sc1"
cfg = Cfg()
for a in sys.argv[2:]:
    k, v = a.split("=")
    old = getattr(cfg, k)
    if k in ("st_sc", "ld_sc", "out_sc"): v = "".join(" " + x for x in v.split("+") if x)
    setattr(cfg, k, (v == "1") if isinstance(old, bool) else type(old)(v))

def NT(f): return " nt" if f else ""
def f2u(x): return struct.unpack("<I", struct.pack("<f", x))[0]
QSCALE = f2u(math.log2(math.e) / math.sqrt(128.0))
LTHRESH = f2u(2.0 ** (64 if cfg.s0 else 40))
MF = "v_mfma_f32_16x16x32_bf16"
CAP = 8

class Item:
    def __init__(self, text, kind, it=0):
        self.text = text; self.kind = kind; self.it = it
        self.cost = {"s": 0, "ds": 4, "v": 4, "t": 8, "dma": 8, "mf": 0}[kind]

class Sched:
    def __init__(self, n, periodic=False):
        self.n = n; self.periodic = periodic
        self.mf = [None] * n; self.gap = [[] for _ in range(n)]; self.cost = [0] * n
    def norm(self, g):
        if self.periodic: return g % self.n
        assert 0 <= g < self.n, g
        return g
    def put(self, g, item):
        g = self.norm(g); self.gap[g].append(item); self.cost[g] += item.cost
    def put_win(self, lo, hi, item, pack=False, cap=CAP):
        if not self.periodic: hi = min(hi, self.n - 1)
        cand = [g for g in range(lo, hi + 1) if self.cost[self.norm(g)] + item.cost <= cap]
        if cand:
            if pack:
                part = [g for g in cand if self.cost[self.norm(g)] > 0]
                best = part[0] if part and part[0] <= cand[0] + 3 else cand[0]
            else: best = cand[0]
        else:
            best = min(range(lo, hi + 1), key=lambda g: self.cost[self.norm(g)])
        self.put(best, item); return best
    def linear(self, lo, hi, keep=lambda it: True):
        out = []
        order = {"s": 0, "dma": 1, "ds": 1, "v": 2, "t": 2}
        for g in range(lo, hi):
            if self.mf[g] is not None and keep(self.mf[g].it): out.append((g, "mf", self.mf[g].text))
            for item in sorted(self.gap[g], key=lambda x: order[x.kind]):
                if keep(item.it): out.append((g, item.kind, item.text))
        return out

def lgkm_waits(seq, slack=6):
    out = []; q = []
    mfi = [i for i, x in enumerate(seq) if x[1] == "mf"]
    nxt = dict(zip(mfi, mfi[1:]))
    def need(use, g):
        nonlocal q
        idx = -1
        for k, (gg, regs) in enumerate(q):
            if regs & use: idx = k
        if idx >= 0:
            while idx + 1 < len(q) and q[idx + 1][0] <= g - slack: idx += 1
            n = min(len(q) - 1 - idx, 15)
            out.append((g, "s", f"s_waitcnt lgkmcnt({n})"))
            q = q[len(q) - n:] if n else []
    for i, (g, k, t) in enumerate(seq):
        ins = Ins(t)
        if ins.op == "s_waitcnt" and "lgkmcnt(0)" in t: q = []
        if ins.kind != "label": need(ins.r | ins.w, g)
        if ins.kind == "ds": q.append((g, set(ins.w)))
        out.append((g, k, t))
        if k == "mf" and i in nxt:
            n = Ins(seq[nxt[i]][2]); need(n.r | n.w, g)
    return out

sK, sV, sX, sWQ, sO, sD = 8, 12, 16, 20, 24, 28
sPTR = 32
sW, sB, sH, sT0, sT1 = 3, 4, 5, 6, 7
sKo, sVo = 48, 50
sKs, sVs = 52, 53
sVm = 54
sCnt, sRedo = 58, 59
sXo, sXm, sWo_, sWm = 60, 61, 62, 63
sT2, sQs, sT3 = 64, 65, 66
sKb, sKm, sKd, sKw = 67, 68, 69, 86
sRg, sCg, sMt, sOdd = 87, 88, 89, 90
sW8 = 91
sPfo = 101
sFo = 62
sCP = 48
sPfx, sPfr = 39, 60
sKt2 = 39
sKmask, sVmask, sK0 = 32, 33, 38
sRot, sXc = 100, 101
sR4 = 63
sKt = 100
sST = 70
sST2 = 92
vKv = 1; vVv = 5; vPfd = 9
vQ = 12; vNM = 108; vL = 132; vS = 156; vP = 188; vKa = 204; vVa = 212; vOne = 228; vT = 232
vAcc = 108
aO = 0; aK = 192; aV = 224
KR = (131072, 98304, 65536); LDS_V = (0, 32768); LDS_EX = 65536
QSLOT = (0, 53248, 106496); LDS_TOTAL = 163840
UNIT_TILE = [0, 1, 2, 0, 1, 0, 1, 0, 1]
UNIT_KT =   [0, 0, 0, 1, 1, 2, 2, 3, 3]
FLAG_OFF = 0x1300000
PER = 33 if cfg.hyb else 34
NPV = PER - 16
Q1 = NPV - 9

def stamp(o, idx, alt=False):
    if cfg.pstamp and idx >= 5: return
    if cfg.sstamp and idx >= 5:
        if alt == 2: r = sST2 + 2 * (idx - 5); o.append(f"s_memtime s[{r}:{r+1}]")
        return
    if alt == 2: return
    if idx >= 5 and alt != cfg.ostamp: return
    if cfg.stamp:
        r = sST + 2 * idx if idx < 5 else sST2 + 2 * (idx - 5)
        o.append(f"s_memtime s[{r}:{r+1}]")

def k_dma():
    r = []
    for grp in range(2):
        for q in range(4):
            pre = []
            if q == 0: pre = [f"s_mov_b32 m0, s{sKm}"] if grp == 0 else [f"s_add_u32 m0, s{sKm}, 4096"]
            off = f" offset:{1024*q}" if q else ""
            r.append((pre, f"buffer_load_dwordx4 v{vKv+q}, s[{sK}:{sK+3}], s{sKo+grp} offen{off}{NT(cfg.kv_nt)} lds"))
    return r
def v_dma(slot):
    r = []
    for grp in range(2):
        for q in range(4):
            off = f" offset:{1024*q}" if q else ""
            r.append(([f"s_mov_b32 m0, s{sVm+2*slot+grp}"] if q == 0 else [],
                      f"buffer_load_dwordx4 v{vVv+q}, s[{sV}:{sV+3}], s{sVo+grp} offen{off}{NT(cfg.kv_nt)} lds"))
    return r
def adv(base, stride):
    m = sKmask if base == sKo else sVmask
    return [f"s_add_u32 s{base}, s{base}, s{stride}", f"s_add_u32 s{base+1}, s{base+1}, s{stride}",
            f"s_and_b32 s{base}, s{base}, s{m}", f"s_and_b32 s{base+1}, s{base+1}, s{m}"]
def flat(lst):
    out = []
    for pre, d in lst: out += pre + [d]
    return out

def place_dmas(S, lst, g, step, itf=lambda g: 0, limit=None):
    for pre, d in lst:
        gg = g
        while S.cost[S.norm(gg)] > 0: gg += 1
        if limit is not None: assert gg < limit, (gg, limit)
        for p in pre: S.put(gg - 1, Item(p, "s", itf(gg - 1)))
        S.put(gg, Item(d, "dma", itf(gg)))
        g = gg + step
    return g

def k_read(j, k16, c, base=None):
    va = (vKa + 2 * j if base is None else base) + (c & 1)
    return f"ds_read_b128 {ar(aK+16*k16+4*c,4)}, v{va} offset:{k16*4096 + (c>>1)*1024}"
def v_read(j, t, jj, slot):
    imm = LDS_V[slot] + jj * 4096 + (t >> 2) * 1024
    return f"ds_read_b64_tr_b16 {ar(aV+4*t+2*jj,2)}, v{vVa+4*j+(t&3)} offset:{imm}"

BG = PER * 7 + 16
LAST_TILE = [2, 0, 1, 0, 1, 0, 1, 0, 1]
def gen_attn_sched(peel=False):
    NU = 18; N = NU * PER; CUT = 17 * PER
    S = Sched(N, periodic=True)
    tile = lambda n: (LAST_TILE[n - 9] if (peel and 9 <= n < 18) else UNIT_TILE[n % 9])
    kt = lambda n: UNIT_KT[n % 9]
    slot = lambda n: (n // 9) & 1
    last = lambda n: UNIT_KT[n % 9] != UNIT_KT[(n + 1) % 9] or n % 9 == 8
    for n in range(NU):
        u = n + 1; it = 1 if u == NU else 0
        for i in range(16):
            q, k16, c = i >> 3, (i >> 2) & 1, i & 3
            if cfg.qkord: q, k16, c = i & 1, i >> 3, (i >> 1) & 3
            qt = 2 * tile(u) + q; sb = vS + 16 * (u & 1) + 8 * q + 4 * k16
            cin = vr(vNM + 4 * qt, 4) if c == 0 else vr(sb, 4)
            S.mf[PER*n + i] = Item(f"{MF} {vr(sb,4)}, {ar(aK+16*k16+4*c,4)}, {vr(vQ+16*qt+4*c,4)}, {cin}", "mf", it)
        for i in range(NPV):
            q, t = (0, i) if i < Q1 else (1, i - Q1)
            qt = 2 * tile(n) + q; pb = vr(vP + 8 * (n & 1) + 4 * q, 4)
            if t < 8:
                o = ar(aO + 32 * qt + 4 * t, 4)
                S.mf[PER*n + 16 + i] = Item(f"{MF} {o}, {ar(aV+4*t,4)}, {pb}, {o}", "mf")
            else:
                l = vr(vL + 4 * qt, 4)
                S.mf[PER*n + 16 + i] = Item(f"{MF} {l}, {vr(vOne,4)}, {pb}, {l}", "mf")
    for n in range(1, NU + 1):
        sb = vS + 16 * (n & 1); pb = vP + 8 * (n & 1)
        itf = lambda g: 1 if (n == NU and g < N) else 0
        for j in range(16):
            g = PER * (n - 1) + cfg.e0 + 2 * j
            S.put(g, Item(f"v_exp_f32 v{sb+j}, v{sb+j}", "t", itf(g)))
            if j & 1: S.put(g + 1, Item(f"v_cvt_pk_bf16_f32 v{pb+(j>>1)}, v{sb+j-1}, v{sb+j}", "v", itf(g + 1)))
    def place_adds():
        if not cfg.hyb: return
        for n in range(1, NU + 1):
            sb = vS + 16 * (n & 1); l = vL + 8 * tile(n)
            for j in range(8):
                g = PER * (n - 1) + cfg.e0 + 2 * j + 1
                item = Item(f"v_add_f32 v{l+(j&1)}, v{l+(j&1)}, v{sb+j}", "v")
                gg = S.put_win(g, PER * (n + 1) - 4, item, pack=True)
                if n == NU and gg < N: item.it = 1
    bar = [BG, 9 * PER + BG]
    for bi, b in enumerate(bar):
        if cfg.lstamp: S.put(b, Item("s_memtime s[96:97]", "s"))
        S.put(b, Item("s_waitcnt vmcnt(8) lgkmcnt(0)", "s")); S.put(b, Item("s_barrier", "s"))
        if cfg.lstamp:
            S.put(b, Item(f"v_mov_b32 v240, s96", "s")); S.put(b, Item("s_memtime s[96:97]", "s")); S.put(b, Item("s_waitcnt lgkmcnt(0)", "s"))
            S.put(b, Item(f"v_mov_b32 v241, s96", "s"))
            S.put(b, Item(f"buffer_store_dwordx2 v[240:241], v242, s[{sX}:{sX+3}], 0 offen", "s")); S.put(b, Item(f"v_add_u32 v242, 8, v242", "s"))
        S.put(b, Item(f"SWITCH{bi}:", "s"))
    for n in range(NU):
        if last(n):
            nu = n + 1
            for t in range(8):
                for jj in range(2):
                    lo = PER*n + 16 + Q1 + t; hi = lo + 15
                    if nu % 9 == 7: hi = min(hi, PER*(n+1) + 10)
                    item = Item(v_read(kt(nu), t, jj, slot(nu)), "ds")
                    g = S.put_win(lo, hi, item, pack=True)
                    if nu >= NU and g < N: item.it = 1
    for n in range(NU):
        u = n + 1
        if last(u):
            nu = u + 1; it = 1 if nu >= NU else 0
            for idx in range(8):
                lo = PER*n + 8 + idx; hi = lo + 16
                if cfg.qkord: lo = PER*n + 2 * idx + 1; hi = lo + PER - 11
                if u % 9 == 8: lo = max(lo, PER*n + 16)
                S.put_win(lo, hi, Item(k_read(kt(nu), idx >> 2, idx & 3), "ds", it), pack=True)
    if peel:
        place_adds(); return S, bar
    for bi, b in enumerate(bar):
        g0 = b - 40
        for l in [f"s_mov_b32 s{sKt}, s{sKb}", f"s_cmp_eq_u32 s{sKb}, s{sKw}"]: S.put(g0, Item(l, "s"))
        S.put(b + 1, Item(f"s_mov_b32 s{sKm}, s{sKt}", "s"))
        S.put(g0, Item(f"s_cselect_b32 s{sKd}, s{sT3}, s{sQs}", "s"))
        S.put(g0 + 1, Item(f"s_add_u32 s{sKb}, s{sKb}, s{sKd}", "s"))
        for i in range(8): S.put_win(g0 + 2, b - 1, Item(f"v_add_u32 v{vKa+i}, s{sKd}, v{vKa+i}", "v"), pack=True)
        itf = lambda g: 1 if (bi == 1 and g < N) else 0
        lv = v_dma(bi); lk = k_dma()
        lv[0] = (adv(sVo, sVs) + lv[0][0], lv[0][1]); lk[0] = (adv(sKo, sKs) + lk[0][0], lk[0][1])
        st0 = (b + 2) if bi == 0 else CUT + 1
        lim = b + 9 * PER - 14
        step = min(cfg.dma_step, (lim - 36 - st0) / 15)
        g = st0
        for i, x in enumerate(lv + lk):
            g = place_dmas(S, [x], max(g, st0 + int((i - i % cfg.dgrp) * step)), 2 if cfg.dgrp == 1 else 1, itf, limit=lim)
    if False:
        for i, g in enumerate(int(x) for x in cfg.pfpos.split(",")):
            place_dmas(S, [([f"s_add_u32 s{sPfo}, s{sPfo}, {(32 << cfg.pfsh) if cfg.pfsh else 262144 // len(cfg.pfpos.split(','))}", f"s_xor_b32 s{sPfx}, s{sPfo}, s{sPfr}"], f"buffer_load_dword v{vPfd}, v{vPfo}, s[{sD}:{sD+3}], s{sPfx} offen{NT(cfg.pf_nt)} ; pf{i}")], g, 1, itf=lambda g: 1 if g >= CUT else 0)
    place_adds()
    for bi, b in enumerate(bar):
        n = 0; g = b - 1
        while True:
            its = [x for x in S.gap[g % N] if x.kind == "dma"]
            if its and f"s[{sV}:{sV+3}]" in its[0].text: break
            n += len(its); g -= 1
        for x in S.gap[b]:
            if "vmcnt(8)" in x.text: x.text = x.text.replace("vmcnt(8)", f"vmcnt({n})")
    return S, bar

def kv_setup(e, t):
    r8, p8, tA, tB, tC = t, t+1, t+2, t+3, t+4
    e(f"v_lshrrev_b32 v{r8}, 3, v0"); e(f"v_and_b32 v{p8}, 7, v0"); e(f"v_lshrrev_b32 v{tA}, 1, v{r8}")
    e(f"v_xor_b32 v{tB}, v{tA}, v{p8}"); e(f"v_lshlrev_b32 v{tC}, 8, v{r8}")
    e(f"v_lshl_add_u32 v{vKv+1}, v{tB}, 4, v{tC}"); e(f"v_xor_b32 v{vKv+3}, 64, v{vKv+1}")
    e(f"v_add_u32 v{vKv}, 1024, v{vKv+1}"); e(f"v_add_u32 v{vKv+2}, 1024, v{vKv+3}")
    e(f"v_add_u32 v{vKv+1}, 128, v{vKv+1}"); e(f"v_add_u32 v{vKv+3}, 128, v{vKv+3}")
    e(f"v_lshlrev_b32 v{tB}, 1, v{tA}"); e(f"v_xor_b32 v{tB}, v{tB}, v{p8}")
    e(f"v_lshl_add_u32 v{vVv+1}, v{tB}, 4, v{tC}")
    e(f"v_add_u32 v{vVv}, 1024, v{vVv+1}"); e(f"v_add_u32 v{vVv+1}, 128, v{vVv+1}")
    e(f"v_mov_b32 v{vVv+2}, v{vVv}"); e(f"v_mov_b32 v{vVv+3}, v{vVv+1}")
    e(f"s_lshl_b32 s{sT0}, s{sB}, 5"); e(f"s_add_u32 s{sT0}, s{sT0}, s{sH}"); e(f"s_lshl_b32 s{sT0}, s{sT0}, 18")
    for s, p in ((sK, sPTR + 2), (sV, sPTR + 4)):
        e(f"s_add_u32 s{s}, s{p}, s{sT0}"); e(f"s_addc_u32 s{s+1}, s{p+1}, 0")
        e(f"s_sub_u32 s{s}, s{s}, 1024"); e(f"s_subb_u32 s{s+1}, s{s+1}, 0")
        e(f"s_mov_b32 s{s+2}, {262144+1024}"); e(f"s_mov_b32 s{s+3}, 0x20000")
    e(f"s_lshr_b32 s{sK0}, s2, 3"); e(f"s_xor_b32 s{sK0}, s{sK0}, s2"); e(f"s_and_b32 s{sK0}, s{sK0}, {cfg.krot}"); e(f"s_lshl_b32 s{sK0}, s{sK0}, 15")
    e(f"s_add_u32 s{sK0}, s{sK0}, s{sW8}"); e(f"s_mov_b32 s{sKmask}, 0x3ffff"); e(f"s_mov_b32 s{sVmask}, 0x3ffff")
    for b_ in (sKo, sVo):
        e(f"s_mov_b32 s{b_}, s{sK0}"); e(f"s_add_u32 s{b_+1}, s{sK0}, 4096")
    e(f"s_mov_b32 s{sKs}, 32768"); e(f"s_mov_b32 s{sVs}, 32768")
    e(f"s_add_u32 s{sKb}, s{sW8}, {KR[0]}"); e(f"s_mov_b32 s{sKm}, s{sKb}"); e(f"s_add_u32 s{sKw}, s{sW8}, {KR[2]}")

def att_addr(t):
    L = []; e = L.append
    tA, tB, tC, q16, kg, r4, c4, k0 = t, t+1, t+2, t+3, t+4, t+5, t+6, t+7
    e(f"v_and_b32 v{q16}, 15, v0"); e(f"v_lshrrev_b32 v{kg}, 4, v0")
    e(f"v_lshrrev_b32 v{tA}, 3, v{q16}"); e(f"v_lshlrev_b32 v{tA}, 11, v{tA}")
    e(f"v_and_b32 v{tB}, 7, v{q16}"); e(f"v_lshl_add_u32 v{tA}, v{tB}, 7, v{tA}")
    e(f"v_lshrrev_b32 v{tB}, 1, v{q16}"); e(f"v_xor_b32 v{tB}, v{tB}, v{kg}")
    e(f"v_lshl_add_u32 v{k0}, v{tB}, 4, v{tA}"); e(f"v_add_u32 v{k0}, {KR[0]}, v{k0}"); e(f"v_xor_b32 v{k0+1}, 64, v{k0}")
    n1 = len(L)
    e(f"v_bfe_u32 v{r4}, v0, 2, 2"); e(f"v_and_b32 v{c4}, 3, v0")
    e(f"v_and_b32 v{tA}, 1, v{kg}"); e(f"v_lshl_add_u32 v{tA}, v{tA}, 2, v{r4}")
    e(f"v_lshrrev_b32 v{tB}, 1, v{tA}"); e(f"v_lshlrev_b32 v{tB}, 5, v{tB}"); e(f"v_lshl_add_u32 v{tB}, v{tA}, 7, v{tB}")
    e(f"v_lshrrev_b32 v{tA}, 1, v{kg}"); e(f"v_lshl_add_u32 v{tB}, v{tA}, 11, v{tB}"); e(f"v_lshl_add_u32 v{tC}, v{c4}, 3, v{tB}")
    for j in range(4):
        e(f"s_add_u32 s{sT0}, s{sW}, {j}"); e(f"s_and_b32 s{sT0}, s{sT0}, 3"); e(f"s_lshl_b32 s{sT0}, s{sT0}, 13")
        for c in range(2): e(f"v_add_u32 v{vKa+2*j+c}, s{sT0}, v{k0+c}")
        e(f"v_add_u32 v{vVa+4*j}, s{sT0}, v{tC}")
        for k in range(1, 4): e(f"v_xor_b32 v{vVa+4*j+k}, {32*k}, v{vVa+4*j}")
    for i in range(4): e(f"v_mov_b32 v{vOne+i}, 0x3f803f80")
    return L[:n1], L[n1:], k0

def wo_voff(e, dst, t):
    r8, p8, tA, tB = t, t+1, t+2, t+3
    e(f"v_lshrrev_b32 v{r8}, 3, v0"); e(f"v_and_b32 v{p8}, 7, v0")
    e(f"v_bfe_u32 v{tA}, v{r8}, 1, 2"); e(f"v_lshlrev_b32 v{tA}, 1, v{tA}"); e(f"v_xor_b32 v{tA}, v{tA}, v{p8}")
    e(f"v_lshlrev_b32 v{tB}, 10, v{r8}"); e(f"v_lshl_add_u32 v{dst}, v{tA}, 4, v{tB}")
    for q in range(1, 4): e(f"v_add_u32 v{dst+q}, {7168*q}, v{dst}")
def wo_srd(e, s):
    e(f"s_lshl_b32 s{sT0}, s{sCg}, 7")
    e(f"s_add_u32 s{s}, s{sPTR+8}, s{sT0}"); e(f"s_addc_u32 s{s+1}, s{sPTR+9}, 0")
    e(f"s_sub_u32 s{s+2}, 4194304, s{sT0}"); e(f"s_mov_b32 s{s+3}, 0x20000")

vPfo = 243
vRa = 244
def wo_pf(e, srd, first, n):
    e(f"v_lshlrev_b32 v{vT}, 12, v0"); e(f"s_lshl_b32 s{sT0}, s{sW}, 20"); e(f"s_lshl_b32 s{sT1}, s{sRg}, 10"); e(f"s_add_u32 s{sT0}, s{sT0}, s{sT1}")
    e(f"s_add_u32 s{sT0}, s{sT0}, {first*32768}")
    for i in range(n):
        if i: e(f"s_add_u32 s{sT0}, s{sT0}, 262144")
        part = first + 8 * i + 8 > 32
        if part: e(f"s_mov_b64 exec, {(1 << (8 * (32 - first - 8 * i))) - 1:#x}")
        e(f"buffer_load_dword v{vPfd}, v{vT}, s[{srd}:{srd+3}], s{sT0} offen")
        if part: e("s_mov_b64 exec, -1")
def switch_block(bi):
    L = []; e = L.append
    e(f"s_cmp_lg_u32 s{sCnt}, {2 if bi == 1 else 1}"); e(f"s_cbranch_scc1 L_sw{bi}")
    if bi == 1:
        wo_voff(e, vKv, vT); wo_srd(e, sK); e(f"s_mov_b32 s{sKmask}, -1")
        e(f"s_and_b32 s{sR4}, s{sCg}, {cfg.orot}"); e(f"s_lshl_b32 s{sR4}, s{sR4}, 15"); e(f"s_lshl_b32 s{sT1}, s{sW}, 20"); e(f"s_or_b32 s{sR4}, s{sR4}, s{sT1}")
        if cfg.xrot: e(f"s_and_b32 s{sT1}, s2, 7"); e(f"s_lshl_b32 s{sT1}, s{sT1}, 17"); e(f"s_xor_b32 s{sR4}, s{sR4}, s{sT1}")
        e(f"s_mov_b32 s{sKs}, 0"); e(f"s_mov_b32 s{sKo}, s{sR4}"); e(f"s_mov_b32 s{sKo+1}, 0x40000000")
        kg, r4, c4, tA, tB = vT, vT+1, vT+2, vT+3, vT+4
        e(f"v_lshrrev_b32 v{kg}, 4, v0"); e(f"v_bfe_u32 v{r4}, v0, 2, 2"); e(f"v_and_b32 v{c4}, 3, v0")
        e(f"v_and_b32 v{tA}, 1, v{kg}"); e(f"v_lshl_add_u32 v{tA}, v{tA}, 2, v{r4}")
        e(f"v_lshrrev_b32 v{tB}, 1, v{tA}"); e(f"v_lshlrev_b32 v{tB}, 5, v{tB}")
        e(f"v_lshl_add_u32 v{tB}, v{tA}, 7, v{tB}"); e(f"v_lshrrev_b32 v{tA}, 1, v{kg}"); e(f"v_lshl_add_u32 v{tB}, v{tA}, 10, v{tB}")
        e(f"v_lshl_add_u32 v{tB}, v{c4}, 3, v{tB}"); e(f"v_add_u32 v{vRa}, s{sW8}, v{tB}")
        if cfg.fastred: e(f"s_lshl_b32 s{sT1}, s{sW}, 5"); e(f"v_xor_b32 v{vRa}, s{sT1}, v{vRa}")
        for nt in range(1, 4): e(f"v_xor_b32 v{vRa+nt}, {32*nt}, v{vRa}")
        for s_ in range(1, 3):
            for nt in range(4): e(f"v_add_u32 v{vRa+4*s_+nt}, {65536*s_}, v{vRa+nt}")
        e(f"v_lshlrev_b32 v10, 4, v0"); e(f"s_lshl_b32 s{sWo_}, s{sW}, 20")
        if cfg.pfcut: e(f"s_mov_b32 s{sD+2}, 0")
        if cfg.pflate:
            e(f"s_mov_b32 s{sD+2}, 4194304")
            e(f"s_lshr_b32 s{sPfo}, s2, 3"); e(f"s_lshl_b32 s{sPfo}, s{sPfo}, 13"); e(f"s_add_u32 s{sPfo}, s{sPfo}, s{sWo_}"); e(f"s_sub_u32 s{sPfo}, s{sPfo}, 262144")
    elif bi == 0:
        for q in range(4): e(f"v_mov_b32 v{vVv+q}, v{vKv+q}")
        wo_srd(e, sV); e(f"s_mov_b32 s{sVmask}, -1")
        if cfg.cpf2:
            e(f"s_getpc_b64 s[{sT0}:{sT1}]"); e("L_pc1:")
            e(f"s_add_u32 s{sT0}, s{sT0}, L_tail-L_pc1"); e(f"s_addc_u32 s{sT1}, s{sT1}, 0")
            e(f"s_lshr_b32 s{sT2}, s2, 3"); e(f"s_lshl_b32 s{sT2}, s{sT2}, 2"); e(f"s_add_u32 s{sT2}, s{sT2}, s{sW}"); e(f"s_lshl_b32 s{sT2}, s{sT2}, 6")
            e(f"v_min_u32 v{vT}, 1, v0"); e(f"v_lshlrev_b32 v{vT}, 13, v{vT}"); e(f"v_add_u32 v{vT}, s{sT2}, v{vT}")
            e(f"global_load_dword v{vPfd}, v{vT}, s[{sT0}:{sT1}]")
        e(f"s_xor_b32 s{sVo}, s{sR4}, 65536"); e(f"s_xor_b32 s{sVo+1}, s{sR4}, 98304"); e(f"s_mov_b32 s{sVs}, 0")
    e(f"L_sw{bi}:")
    L, _ = check_hazards(L, "sw", fix=True)
    return L

def gen():
    o = []; e = o.append
    e(f"{cfg.name}:")
    e("s_cmp_ge_u32 s2, 256"); e("s_cbranch_scc1 L_end")
    e(f"s_load_dwordx16 s[{sPTR}:{sPTR+15}], s[0:1], 0")
    stamp(o, 0)
    if cfg.stamp: e(f"s_memrealtime s[{sST+14}:{sST+15}]")
    e("v_lshrrev_b32 v1, 6, v0"); e("v_and_b32 v0, 63, v0"); e(f"v_readfirstlane_b32 s{sW}, v1")
    e(f"s_mov_b32 s{sRedo}, 0")
    e("L_restart:")
    if cfg.map_bh == "b":
        e(f"s_and_b32 s{sB}, s2, 7"); e(f"s_lshr_b32 s{sH}, s2, 3")
    else:
        e(f"s_lshr_b32 s{sB}, s2, 5"); e(f"s_and_b32 s{sT0}, s2, 7"); e(f"s_lshl_b32 s{sT0}, s{sT0}, 2")
        e(f"s_bfe_u32 s{sT1}, s2, 0x20003"); e(f"s_add_u32 s{sH}, s{sT0}, s{sT1}")
    t = vT
    r8, p8, tA, tB, tC = t, t+1, t+2, t+3, t+4
    vB = vQ; vAd = vQ + 40; vXv = vQ + 60; vWv = vQ + 62; vSh = vQ + 64
    e(f"v_lshrrev_b32 v{r8}, 3, v0"); e(f"v_and_b32 v{p8}, 7, v0")
    e(f"v_lshrrev_b32 v{tA}, 1, v{r8}")
    e(f"v_and_b32 v{tB}, 1, v{tA}"); e(f"v_lshlrev_b32 v{tB}, 1, v{tB}"); e(f"v_xor_b32 v{tB}, v{tB}, v{p8}")
    e(f"v_lshlrev_b32 v{tC}, 13, v{r8}"); e(f"v_lshl_add_u32 v{vWv}, v{tB}, 4, v{tC}")
    e(f"s_and_b32 s{sT0}, s{sW}, 1"); e(f"s_lshl_b32 s{sT1}, s{sT0}, 6"); e(f"v_xor_b32 v{vWv}, s{sT1}, v{vWv}"); e(f"s_lshl_b32 s{sT0}, s{sT0}, 2")
    e(f"v_xor_b32 v{tB}, v{tA}, v{p8}"); e(f"v_xor_b32 v{tC+1}, s{sT0}, v{tB}")
    e(f"v_lshlrev_b32 v{tC}, 10, v{r8}"); e(f"v_lshl_add_u32 v{vXv}, v{tC+1}, 4, v{tC}"); e(f"v_xor_b32 v{vXv+1}, 64, v{vXv}")
    e(f"s_mul_i32 s{sXo}, s{sW}, {9*8192}"); e(f"s_mul_i32 s{sXm}, s{sW}, {9*1024}")
    e(f"s_lshl_b32 s{sWo_}, s{sW}, 16"); e(f"s_lshl_b32 s{sWm}, s{sW}, 11"); e(f"s_add_u32 s{sWm}, s{sWm}, 36864")
    e(f"s_mul_i32 s{sT0}, s{sB}, 294912"); e(f"s_lshl_b32 s{sT1}, s{sH}, 8")
    e(f"s_mov_b32 s{sX+2}, 294912"); e(f"s_mov_b32 s{sX+3}, 0x20000")
    e(f"s_sub_u32 s{sWQ+2}, 4194304, s{sT1}"); e(f"s_mov_b32 s{sWQ+3}, 0x20000")
    e(f"s_add_u32 s{sRot}, s{sH}, s{sB}"); e(f"s_and_b32 s{sRot}, s{sRot}, {cfg.qrot}")
    if cfg.qx: e(f"s_and_b32 s{sXc}, s2, {cfg.qx}"); e(f"s_xor_b32 s{sRot}, s{sRot}, s{sXc}")
    if cfg.cpf:
        e("s_getpc_b64 s[96:97]"); e("L_pc0:")
        e(f"s_lshr_b32 s98, s2, 3"); e(f"s_lshl_b32 s98, s98, 2"); e(f"s_add_u32 s98, s98, s{sW}"); e("s_lshl_b32 s98, s98, 6")
    stamp(o, 5, 2)
    e("s_waitcnt lgkmcnt(0)")
    stamp(o, 6, 2)
    if cfg.cpf:
        for i in range(cfg.cpf_n):
            e(f"s_load_dword s99, s[96:97], s98"); e("s_add_u32 s98, s98, 8192")
    e(f"s_add_u32 s{sX}, s{sPTR+0}, s{sT0}"); e(f"s_addc_u32 s{sX+1}, s{sPTR+1}, 0")
    e(f"s_add_u32 s{sWQ}, s{sPTR+6}, s{sT1}"); e(f"s_addc_u32 s{sWQ+1}, s{sPTR+7}, 0")
    def q_dma(c):
        r = []; sl = QSLOT[c % 3]
        for q in range(4):
            go = (q >> 1) * 262144 + (q & 1) * 128
            rot = [f"s_xor_b32 s{sXc}, s{sRot}, {c}", f"s_lshl_b32 s{sT3}, s{sXc}, 19", f"s_add_u32 s{sT3}, s{sT3}, s{sWo_}",
                   f"s_lshl_b32 s{sXc}, s{sXc}, 7", f"s_add_u32 s{sXc}, s{sXc}, s{sXo}"] if q == 0 else []
            r.append((rot + [f"s_add_u32 m0, s{sWm}, {sl + 8192*(q>>1) + 1024*(q&1)}", f"s_add_u32 s{sT2}, s{sT3}, {go}"],
                      f"buffer_load_dwordx4 v{vWv}, s[{sWQ}:{sWQ+3}], s{sT2} offen{NT(cfg.q_nt)} lds ; chunk {c}"))
        for i in range(9):
            r.append(([f"s_add_u32 m0, s{sXm}, {sl + 1024*i}", f"s_add_u32 s{sT2}, s{sXc}, {i*8192}"],
                      f"buffer_load_dwordx4 v{vXv+(i&1)}, s[{sX}:{sX+3}], s{sT2} offen{NT(cfg.q_nt)} lds ; chunk {c}"))
        return r
    d0_ = q_dma(0)
    o += flat(d0_[:2] + d0_[4:] if cfg.qstart == 2 else d0_)
    stamp(o, 7, 2)
    e(f"s_lshl_b32 s{sW8}, s{sW}, 13")
    kv_setup(e, t)
    for sl in range(2):
        for g in range(2): e(f"s_add_u32 s{sVm+2*sl+g}, s{sW8}, {LDS_V[sl] + 4096*g}")
    e(f"s_mul_i32 s{sT0}, s{sB}, 2359296")
    e(f"s_add_u32 s{sO}, s{sPTR+14}, s{sT0}"); e(f"s_addc_u32 s{sO+1}, s{sPTR+15}, 0")
    e(f"s_mov_b32 s{sO+2}, 2359296"); e(f"s_mov_b32 s{sO+3}, 0x20000")
    e(f"s_lshr_b32 s{sCg}, s2, 5"); e(f"s_and_b32 s{sOdd}, s2, 1")
    e(f"s_bfe_u32 s{sRg}, s2, 0x20001"); e(f"s_bfe_u32 s{sT0}, s2, 0x10003"); e(f"s_lshl_b32 s{sT0}, s{sT0}, 2"); e(f"s_add_u32 s{sRg}, s{sRg}, s{sT0}")
    e(f"s_bfe_u32 s{sT0}, s2, 0x10004"); e(f"s_lshl_b32 s{sMt}, s{sRg}, 1"); e(f"s_add_u32 s{sMt}, s{sMt}, s{sT0}"); e(f"s_mul_i32 s{sMt}, s{sMt}, 9")
    if cfg.tlb:
        e(f"s_load_dword s99, s[{sK}:{sK+1}], 1024"); e(f"s_load_dword s99, s[{sV}:{sV+1}], 1024")
        e(f"s_lshl_b32 s98, s{sW}, 19"); e(f"s_load_dword s99, s[{sO}:{sO+1}], s98"); e(f"s_mov_b32 s98, {16*131072}"); e(f"s_load_dword s99, s[{sO}:{sO+1}], s98")
        e(f"s_lshl_b32 s98, s{sMt}, 17"); e(f"s_load_dword s99, s[{sPTR+14}:{sPTR+15}], s98"); e(f"s_add_u32 s98, s98, {4*131072-4}"); e(f"s_load_dword s99, s[{sPTR+14}:{sPTR+15}], s98")
        e(f"s_lshl_b32 s98, s{sW}, 20"); e(f"s_load_dword s99, s[{sPTR+8}:{sPTR+9}], s98")
        e(f"s_lshl_b32 s98, s{sMt}, 14"); e(f"s_load_dword s99, s[{sPTR+10}:{sPTR+11}], s98"); e(f"s_load_dword s99, s[{sPTR+12}:{sPTR+13}], 0")
    q16, kg, r4, c4 = t+6, t+7, t+8, t+9
    e(f"v_and_b32 v{q16}, 15, v0"); e(f"v_lshrrev_b32 v{kg}, 4, v0"); e(f"v_bfe_u32 v{r4}, v0, 2, 2"); e(f"v_and_b32 v{c4}, 3, v0")
    e(f"v_lshrrev_b32 v{tA}, 3, v{q16}"); e(f"v_lshlrev_b32 v{tA}, 10, v{tA}")
    e(f"v_and_b32 v{tB}, 7, v{q16}"); e(f"v_lshl_add_u32 v{tA}, v{tB}, 7, v{tA}")
    e(f"v_lshrrev_b32 v{tB}, 1, v{q16}"); e(f"v_xor_b32 v{tB}, v{tB}, v{kg}")
    e(f"v_lshl_add_u32 v{vAd}, v{tB}, 4, v{tA}"); e(f"v_xor_b32 v{vAd+1}, 64, v{vAd}")
    e(f"v_add_u32 v{vAd+2}, s{sW8}, v{vAd}"); e(f"v_add_u32 v{vAd+3}, s{sW8}, v{vAd+1}")
    e(f"v_lshrrev_b32 v{tA}, 1, v{r4}"); e(f"v_and_b32 v{tB}, 1, v{kg}"); e(f"v_lshl_add_u32 v{tA}, v{tB}, 1, v{tA}")
    e(f"v_lshlrev_b32 v{tA}, 5, v{tA}"); e(f"v_lshl_add_u32 v{tA}, v{c4}, 3, v{tA}"); e(f"v_lshl_add_u32 v{tA}, v{r4}, 7, v{tA}")
    e(f"v_lshl_add_u32 v{tA}, v{kg}, 11, v{tA}"); e(f"v_add_u32 v{vAd+4}, 36864, v{tA}")
    for k in range(1, 4): e(f"v_xor_b32 v{vAd+4+k}, {32*k}, v{vAd+4}")
    e(f"s_and_b32 s{sT0}, s{sW}, 1"); e(f"s_lshl_b32 s{sT0}, s{sT0}, 6"); e(f"s_lshr_b32 s{sT1}, s{sW}, 1"); e(f"s_lshl_b32 s{sT1}, s{sT1}, 10")
    e(f"v_xor_b32 v{vAd+8}, s{sT0}, v{vAd+4}"); e(f"v_add_u32 v{vAd+8}, s{sT1}, v{vAd+8}"); e(f"v_xor_b32 v{vAd+9}, 32, v{vAd+8}")
    e(f"s_mov_b32 s{sQs}, {QSCALE:#x}")
    if cfg.wwpos:
        e(f"s_mov_b32 s{sD}, s{sPTR+8}"); e(f"s_mov_b32 s{sD+1}, s{sPTR+9}"); e(f"s_mov_b32 s{sD+2}, 4194304"); e(f"s_mov_b32 s{sD+3}, 0x20000")
        e(f"v_and_b32 v254, 31, v0"); e(f"v_lshlrev_b32 v254, 7, v254"); e(f"s_lshl_b32 s{sKt2}, s2, 14"); e(f"s_lshl_b32 s{sT1}, s{sW}, 12"); e(f"s_add_u32 s{sKt2}, s{sKt2}, s{sT1}")
    if cfg.pkq: e(f"v_mov_b32 v252, s{sQs}"); e(f"v_mov_b32 v253, s{sQs}")
    if cfg.k0pf: e("v_lshlrev_b32 v252, 7, v0"); e("v_add_u32 v252, 1024, v252")

    NQ = 16 * 36
    S = Sched(NQ)
    fA = lambda t_: aK + 4 * t_
    fB = lambda p, q: vB + 16 * p + 4 * q
    fBs = lambda q: vB + 32 + 4 * q
    acc = lambda q, t_: vAcc + 32 * q + 4 * t_
    accs = lambda qs, u: vAcc + 128 + 8 * qs + 4 * u
    def rdA(ks, t_, jj):
        ad = vAd + 10 * ((ks >> 1) & 1); s = ks & 1
        if t_ < 8: return f"ds_read_b64_tr_b16 {ar(fA(t_)+2*jj,2)}, v{ad+4+(t_&3)} offset:{s*8192+(t_>>2)*1024+jj*512}"
        return f"ds_read_b64_tr_b16 {ar(fA(t_)+2*jj,2)}, v{ad+t_} offset:{s*8192+jj*512}"
    def rdB(ks, q):
        ad = vAd + 10 * ((ks >> 1) & 1); s = ks & 1
        if q < 4: return f"ds_read_b128 {vr(fB(ks&1,q),4)}, v{ad+2+s} offset:{2048*q}"
        return f"ds_read_b128 {vr(fBs(q-4),4)}, v{ad+s} offset:{32768+2048*(q-4)}"
    for ks in range(16):
        for i in range(36):
            if i < 32: t_, q = i >> 2, i & 3; a_, A, Bf = acc(q, t_), fA(t_), fB(ks & 1, q)
            else: u, qs = (i - 32) >> 1, i & 1; a_, A, Bf = accs(qs, u), fA(8 + u), fBs(qs)
            S.mf[36*ks + i] = Item(f"{MF} {vr(a_,4)}, {ar(A,4)}, {vr(Bf,4)}, {'0' if ks == 0 else vr(a_,4)}", "mf")
    QB = cfg.QB
    for c in range(8):
        gb = 72 * c + 36 + QB
        n = (13 + (cfg.wowarm if c == 0 else 0)) if c <= 5 else (8 if c == 6 else None)
        if cfg.k0pf and c in (cfg.k0pf, cfg.k0pf + 1): n += 1
        if cfg.wwpos and c in (cfg.wwpos, cfg.wwpos + 1) and n is not None: n += 1
        if cfg.qstamp: S.put(gb, Item("s_memtime s[96:97]", "s"))
        S.put(gb, Item(f"s_waitcnt vmcnt(CH{c+1}) lgkmcnt(0)" if n is not None else "s_waitcnt lgkmcnt(0)", "s"))
        S.put(gb, Item("s_barrier", "s"))
        if cfg.qstamp:
            S.put(gb, Item(f"v_mov_b32 v252, s96", "s")); S.put(gb, Item("s_memtime s[96:97]", "s")); S.put(gb, Item("s_waitcnt lgkmcnt(0)", "s"))
            S.put(gb, Item(f"v_mov_b32 v253, s96", "s"))
            S.put(gb, Item(f"buffer_store_dwordx2 v[252:253], v254, s[{sD}:{sD+3}], 0 offen", "s")); S.put(gb, Item(f"v_add_u32 v254, 8, v254", "s"))
    for ks in range(16):
        base = 36 * ks
        if ks:
            for k_, r in enumerate([rdA(ks, 8, 0), rdA(ks, 8, 1), rdB(ks, 4), rdB(ks, 5), rdA(ks, 9, 0), rdA(ks, 9, 1)]):
                S.put(base + (k_ >> 1), Item(r, "ds"))
        if ks < 15:
            lo0 = base + (QB if ks & 1 else 3)
            for q in range(4): S.put_win(lo0, base + 24, Item(rdB(ks + 1, q), "ds"))
            for t_ in range(8):
                for jj in range(2):
                    lo = max(base + 4 * t_ + 3, lo0)
                    if ks == 0 and cfg.qstart == 2: lo = max(lo, cfg.qb0)
                    g_r = S.put_win(lo, min(lo + 20, NQ - 1), Item(rdA(ks + 1, t_, jj), "ds"))
                    assert g_r < base + 36 + 4 * t_ - 6 and (ks & 1 or g_r < base + 36 + QB - 4), (ks, t_, g_r)
    for c in range(8):
        gb = 72 * c + 36 + QB
        if c + 3 < 8: lst = q_dma(c + 3)
        elif c == 5: lst = k_dma()
        elif c == 6: lst = v_dma(0)
        else:
            lst = k_dma(); lst[0] = (adv(sKo, sKs) + [f"s_add_u32 s{sKm}, s{sW8}, {KR[1]}"] + lst[0][0], lst[0][1])
            if cfg.k1pos: k1l = lst; lst = []
        if cfg.wwpos and c == cfg.wwpos - 1:
            lst = lst + [([], f"buffer_load_dword v{vPfd}, v254, s[{sD}:{sD+3}], s{sKt2} offen")]
        if cfg.k0pf and c == cfg.k0pf - 1:
            lst = lst + [([], f"buffer_load_dword v{vPfd}, v252, s[{sK}:{sK+3}], s{sKo} offen nt")]
        if cfg.qstart and c == 0:
            g_ = 1
            if cfg.qstart == 2:
                g_ = place_dmas(S, d0_[2:4], 1, 2) - 1
                S.put(cfg.qb0, Item("s_waitcnt vmcnt(CH0) lgkmcnt(0)", "s")); S.put(cfg.qb0, Item("s_barrier", "s"))
            g_ = place_dmas(S, q_dma(1), g_ + 1, 2, limit=36 + QB - 2)
            g_ = place_dmas(S, q_dma(2), g_, cfg.q2step, limit=gb + 50)
            g_ = place_dmas(S, lst, max(g_, gb + 2), 3, limit=gb + 72 + 40)
        elif cfg.qstart and c in (1, 2):
            g_ = place_dmas(S, lst, max(g_, gb + 2), 3 if c == 1 else 4, limit=gb + 72 + (20 if c == 1 else 0))
        else:
            place_dmas(S, lst, gb + 2, (cfg.qstep - (len(lst) > 13)) if c < 5 else cfg.kvstep, limit=min(gb + 72, NQ))
    if not cfg.qstart: place_dmas(S, q_dma(2), 1, 2, limit=36 + QB)
    for c in range(7):
        d = QSLOT[(c + 1) % 3] - QSLOT[c % 3]
        for k in range(10):
            S.put_win(72 * c + 4, 72 * c + 40, Item(f"v_add_u32 v{vAd+10*((c+1)&1)+k}, {d & 0xffffffff:#x}, v{vAd+10*(c&1)+k}", "v"))
    g = 0
    for i in range(192): g = S.put_win(g, NQ - 1, Item(f"v_accvgpr_write_b32 a{i}, 0", "v"))
    sys.stderr.write(f"qproj gaps over cap: {sum(c > CAP for c in S.cost)}\n")
    if not cfg.qstart: o += flat(q_dma(1))
    if cfg.kpf0:
        e("v_lshlrev_b32 v254, 7, v0"); e("v_add_u32 v254, 1024, v254")
        e(f"buffer_load_dword v{vPfd}, v254, s[{sK}:{sK+3}], s{sKo} offen nt")
        if cfg.kpf0 > 1: e(f"buffer_load_dword v{vPfd}, v254, s[{sV}:{sV+3}], s{sVo} offen nt")
    if cfg.ptouch:
        e(f"s_mul_i32 s{sT0}, s2, 20480"); e(f"s_add_u32 s{sT0}, s{sT0}, 0x1400000"); e(f"v_mov_b32 v{vPfd}, s{sT0}")
        if cfg.ptouch > 1:
            e(f"s_mul_i32 s{sT0}, s{sB}, 2359296"); e(f"s_lshl_b32 s{sT1}, s{sW}, 19"); e(f"s_add_u32 s{sT0}, s{sT0}, s{sT1}"); e(f"v_writelane_b32 v{vPfd}, s{sT0}, 1")
            e(f"s_lshl_b32 s{sT0}, s{sMt}, 17"); e(f"s_mul_i32 s{sT1}, s{sW}, {3*131072-1024}"); e(f"s_add_u32 s{sT0}, s{sT0}, s{sT1}"); e(f"v_writelane_b32 v{vPfd}, s{sT0}, 2")
        e(f"global_load_dword v{vPfd}, v{vPfd}, s[{sPTR+14}:{sPTR+15}]")
    stamp(o, 8, 2)
    if cfg.qstamp:
        e(f"s_add_u32 s{sD}, s{sPTR+14}, 0x4100000"); e(f"s_addc_u32 s{sD+1}, s{sPTR+15}, 0"); e(f"s_mov_b32 s{sD+2}, 0x100000"); e(f"s_mov_b32 s{sD+3}, 0x20000")
        e(f"s_lshl_b32 s{sT0}, s2, 2"); e(f"s_add_u32 s{sT0}, s{sT0}, s{sW}"); e(f"s_lshl_b32 s{sT0}, s{sT0}, 6"); e(f"v_mov_b32 v254, s{sT0}")
    if cfg.wowarm:
        e(f"s_mov_b32 s{sD}, s{sPTR+8}"); e(f"s_mov_b32 s{sD+1}, s{sPTR+9}"); e(f"s_mov_b32 s{sD+2}, 4194304"); e(f"s_mov_b32 s{sD+3}, 0x20000")
        e(f"v_and_b32 v{tA}, 31, v0"); e(f"v_lshlrev_b32 v{tA}, 7, v{tA}"); e(f"s_lshl_b32 s{sT0}, s2, 14"); e(f"s_lshl_b32 s{sT1}, s{sW}, 12"); e(f"s_add_u32 s{sT0}, s{sT0}, s{sT1}")
        e(f"buffer_load_dword v{vPfd}, v{tA}, s[{sD}:{sD+3}], s{sT0} offen")
    e(f"s_waitcnt vmcnt({0 if cfg.qstart else 13 + (cfg.ptouch > 0) + cfg.kpf0}) lgkmcnt(0)"); e("s_barrier")
    stamp(o, 1)
    first = [rdA(0, 0, 0), rdA(0, 0, 1)] + [rdB(0, q) for q in range(4)] + [rdA(0, t_, jj) for t_ in range(1, 10) for jj in range(2)] + [rdB(0, 4), rdB(0, 5)]
    qh = ([0] * 11 if cfg.qstart == 2 else []) if cfg.qstart else [1] * 13 + [-1] * ((cfg.ptouch > 0) + cfg.kpf0)
    for g, k, l in lgkm_waits([(-2, "ds", r) for r in first] + S.linear(0, NQ)):
        if "vmcnt(CH" in l:
            c_ = int(l.split("CH")[1][0]); assert qh.count(c_) == 13, (c_, qh)
            l = f"s_waitcnt vmcnt({len(qh) - 1 - max(i for i, x in enumerate(qh) if x == c_)}) lgkmcnt(0)"
        if l.startswith("buffer_"): qh.append(int(l.split()[-1]) if "; chunk" in l else -1)
        e(l)
    stamp(o, 2)
    def cvt_frag(src, dst):
        L = [f"v_mul_f32 v{src+i}, s{sQs}, v{src+i}" for i in range(8)]
        if cfg.pkq: L = [x for i in range(4) for x in (f"v_pk_mul_f32 {vr(src+2*i,2)}, {vr(src+2*i,2)}, v[252:253]", None)]
        L += [f"v_cvt_pk_bf16_f32 v{dst+i}, v{src+2*i}, v{src+2*i+1}" for i in range(4)]
        W = [f"v_permlane32_swap_b32 v{dst}, v{dst+2}", f"v_permlane32_swap_b32 v{dst+1}, v{dst+3}",
             f"v_permlane16_swap_b32 v{dst}, v{dst+2}", f"v_permlane16_swap_b32 v{dst+1}, v{dst+3}"]
        return L, W
    own = [(acc(q, 2 * c), vQ + 16 * q + 4 * c) for c in range(4) for q in range(4)]
    frs = own[:2] + [(accs(0, 0), vSh), (accs(1, 0), vSh + 4)] + own[2:]
    pendW = []
    for idx, (s_, d_) in enumerate(frs):
        L, W = cvt_frag(s_, d_)
        o += [x for x in L[:4] + pendW[:2] + L[4:8] + pendW[2:] + L[8:] if x]
        pendW = W
        if cfg.k1pos and idx >= 2 and idx % 2 == 0: o += flat([k1l.pop(0)])
        if idx == 4:
            e(f"v_lshlrev_b32 v10, 4, v0"); e(f"s_lshl_b32 s{sT0}, s{sW}, 10"); e(f"s_add_u32 s{sT0}, s{sT0}, {LDS_EX}")
            e(f"v_add_u32 v11, s{sT0}, v10"); e(f"v_add_u32 v10, {LDS_EX}, v10")
            e(f"ds_write_b128 v11, {vr(vSh,4)}"); e(f"ds_write_b128 v11, {vr(vSh+4,4)} offset:4096")
    o += pendW
    a1, a2, k0 = att_addr(vT)
    if cfg.flags:
        e(f"s_lshl_b32 s{sFo}, s{sB}, 1"); e(f"s_lshr_b32 s{sT0}, s{sH}, 4"); e(f"s_add_u32 s{sFo}, s{sFo}, s{sT0}"); e(f"s_lshl_b32 s{sFo}, s{sFo}, {cfg.fstr}")
        e(f"s_and_b32 s{sT0}, s{sH}, 15"); e(f"s_lshl_b32 s{sT0}, s{sT0}, {cfg.fsep}"); e(f"s_add_u32 s{sFo}, s{sFo}, s{sT0}"); e(f"s_add_u32 s{sFo}, s{sFo}, {FLAG_OFF}")
        if not cfg.clrpos:
            e(f"s_or_b32 s{sT0}, s{sW}, s{sRedo}"); e("s_cbranch_scc1 L_noclr")
            e(f"v_mov_b32 v{vT}, s{sFo}"); e(f"v_mov_b32 v{vT+1}, 0"); e("s_mov_b64 exec, 1")
            e(f"global_store_dword v{vT}, v{vT+1}, s[{sPTR+14}:{sPTR+15}] sc1"); e("s_mov_b64 exec, -1")
            e("L_noclr:")
    o += a1
    if cfg.s0: e("v_and_b32 v11, 48, v0"); e(f"v_add_u32 v11, {KR[0]}, v11")
    e(f"s_waitcnt vmcnt({16 if cfg.vlate else 8}) lgkmcnt(0)"); e("s_barrier")
    for c in range(4):
        if cfg.s0: e(f"ds_read_b128 {vr(vS+16+4*c,4)}, v11 offset:{(c&1)*64+(c>>1)*1024}")
        else: e(k_read(0, 0, c, base=k0))
    for i in range(8): e(f"ds_read_b128 {vr(vQ+64+4*i,4)}, v10 offset:{1024*i}")
    if cfg.dump_q:
        e("s_waitcnt lgkmcnt(0)")
        e(f"v_lshlrev_b32 v{tB}, 4, v0"); e(f"s_lshl_b32 s{sT0}, s{sH}, 2"); e(f"s_add_u32 s{sT0}, s{sT0}, s{sW}"); e(f"s_mul_i32 s{sT0}, s{sT0}, {18*1024}")
        for i in range(18):
            e(f"buffer_store_dwordx4 {vr(vQ+4*i,4)}, v{tB}, s[{sO}:{sO+3}], s{sT0} offen"); e(f"s_add_u32 s{sT0}, s{sT0}, 1024")
        e("s_waitcnt vmcnt(0)"); e("s_endpgm")
    def negm(E, srcs):
        tm = [vS + qt for qt in range(6)]
        for qt in range(6): E(f"v_mov_b32 v{tm[qt]}, v{srcs[qt]}")
        for qt in range(6): E(f"v_permlane32_swap_b32 v{srcs[qt]}, v{tm[qt]}")
        for qt in range(6): E(f"v_max_f32 v{srcs[qt]}, v{srcs[qt]}, v{tm[qt]}")
        for qt in range(6): E(f"v_mov_b32 v{tm[qt]}, v{srcs[qt]}")
        for qt in range(6): E(f"v_permlane16_swap_b32 v{srcs[qt]}, v{tm[qt]}")
        for qt in range(6): E(f"v_max_f32 v{srcs[qt]}, v{srcs[qt]}, v{tm[qt]}")
        for qt in range(6):
            for i in range(4): E(f"v_sub_f32 v{vNM+4*qt+i}, 0, v{srcs[qt]}")
    a2_all = list(a2)
    e(f"s_cmp_lg_u32 s{sRedo}, 0"); e("s_cbranch_scc1 L_truemax")
    if cfg.s0:
        o += a2[:16]; a2 = a2[16:]
        e("s_waitcnt lgkmcnt(8)")
        for i in range(16): e(f"v_xor_b32 v{vS+16+i}, 0x80008000, v{vS+16+i}")
        kfirst = [k_read(0, idx >> 2, idx & 3) for idx in range(8)]; kq_ = list(kfirst)
        s0m = lambda qt, c: f"{MF} {vr(vNM+4*qt,4)}, {vr(vS+16+4*c,4)}, {vr(vQ+16*qt+4*c,4)}, {'0' if c == 0 else vr(vNM+4*qt,4)}"
        for qt in range(2 if cfg.s0p else 6):
            if qt == 4: e("s_waitcnt lgkmcnt(0)")
            for c in range(4):
                e(s0m(qt, c))
                nv = 0
                if kq_: e(kq_.pop(0)); nv = 1
                if cfg.s0p and kq_: e(kq_.pop(0)); nv = 2
                while a2 and nv < 2:
                    l = a2.pop(0); e(l); nv += l.startswith("v_")
        if cfg.s0p: a2_rest = a2; e("s_waitcnt lgkmcnt(0)")
        else: o += a2
    else:
        o += a2[:10]; a2 = a2[10:]
        e("s_waitcnt lgkmcnt(8)")
        mx = [vS + 8 + qt for qt in range(6)]
        for qt in range(6):
            if qt == 4: e("s_waitcnt lgkmcnt(0)")
            nb = vNM + 4 * qt
            for c in range(4):
                e(f"{MF} {vr(nb,4)}, {ar(aK+4*c,4)}, {vr(vQ+16*qt+4*c,4)}, {'0' if c == 0 else vr(nb,4)}")
                if qt >= 2 and c == 1:
                    p = vNM + 4 * (qt - 2); e(f"v_max3_f32 v{mx[qt-2]}, v{p}, v{p+1}, v{p+2}"); e(f"v_max_f32 v{mx[qt-2]}, v{mx[qt-2]}, v{p+3}")
                else:
                    nv = 0
                    while a2 and nv < 2:
                        l = a2.pop(0); e(l); nv += l.startswith("v_")
        o += a2
        for qt in (4, 5):
            p = vNM + 4 * qt; e(f"v_max3_f32 v{mx[qt]}, v{p}, v{p+1}, v{p+2}"); e(f"v_max_f32 v{mx[qt]}, v{mx[qt]}, v{p+3}")
        negm(e, mx)
    if not cfg.vlate: e("s_barrier")
    e("L_att:")
    att_consts = [f"s_mov_b32 s{sCnt}, 3", f"s_mov_b32 s{sT3}, 65536", f"s_mov_b32 s{sQs}, {(-32768) & 0xffffffff:#x}", f"s_add_u32 s{sKm}, s{sW8}, {KR[2]}"]
    o += att_consts
    stamp(o, 3)
    if cfg.lstamp:
        e(f"s_add_u32 s{sX}, s{sPTR+14}, 0x4100000"); e(f"s_addc_u32 s{sX+1}, s{sPTR+15}, 0"); e(f"s_mov_b32 s{sX+2}, 0x100000"); e(f"s_mov_b32 s{sX+3}, 0x20000")
        e(f"s_lshl_b32 s{sT0}, s2, 2"); e(f"s_add_u32 s{sT0}, s{sT0}, s{sW}"); e(f"s_lshl_b32 s{sT0}, s{sT0}, 6"); e(f"v_mov_b32 v242, s{sT0}")
    A, bar = gen_attn_sched()
    N = A.n; CUT = 17 * PER
    sys.stderr.write(f"loop: overflow {sum(max(0, c - CAP) for c in A.cost)}, empty gaps {sum(c == 0 for c in A.cost)}\n")
    pro = lgkm_waits([x for x in A.linear(bar[1], N, keep=lambda it: it == 1) if not (cfg.s0 and x[2] in kfirst)], slack=100)
    def prologue(main):
        zl = (list(a2_rest) if main and cfg.s0p else []) + [f"v_mov_b32 v{vL+i}, 0" for i in range(24)]; pz = []
        if main and cfg.s0p: zl = zl[-24:-20] + zl[:-24] + zl[-20:]
        extra = {CUT + 16 + i: s0m(2 + (i >> 2), i & 3) for i in range(16)} if main and cfg.s0p else {}
        seenv = not cfg.vlate; nd_ = 0
        def fill():
            nv = 0
            while zl and nv < 2:
                l = zl.pop(0); pz.append(l); nv += l.startswith("v_")
        for g, k, l in pro:
            for gx in sorted(extra):
                if gx <= g: pz.append(extra.pop(gx)); fill() if len(zl) > 0 and gx % 2 == (CUT + cfg.e0 + 1) % 2 else None
            if not seenv and l.startswith("ds_read_b64_tr"):
                pz.extend(zl); zl.clear()
                pz.extend([f"s_waitcnt vmcnt({8 + nd_})", "s_barrier"]); seenv = True
            if k == "dma":
                nd_ += 1; assert seenv or f"s[{sV}:" in l
            pz.append(l)
            if k == "mf": fill()
        pz.extend(extra[g] for g in sorted(extra)); assert not zl
        return check_hazards(pz, "pro", fix=True)[0]
    pl = prologue(True)
    o += pl
    body = A.linear(0, N)
    two = lgkm_waits(body + [(10**6, "x", "MARK:")] + [(g + N, k, l) for g, k, l in body] + [(2 * N, "mf", body[0][2])])
    k_ = [i for i, x in enumerate(two) if x[2] == "MARK:"][0]
    body2 = [(g - N, k, l) for g, k, l in two[k_+1:-1]]
    e("L_loop:")
    bl = []
    for g, k, l in body2:
        if l.startswith("SWITCH"): continue
        bl.append(l)
        if g == N - 1 and k == "mf": bl += [f"s_sub_u32 s{sCnt}, s{sCnt}, 1", f"s_cmp_lg_u32 s{sCnt}, 0"]
    ci = bl.index(f"s_cmp_lg_u32 s{sCnt}, 0")
    assert not any("scc" in Ins(x).w for x in bl[ci+1:]), bl[ci:]
    bl.append("s_cbranch_scc1 L_loop")
    _, bad = check_hazards(pl[-30:] + bl + bl, "loop"); assert bad == 0 or cfg.lstamp
    o += bl
    ep = []; hist = []
    def E(l, tag=None):
        if cfg.nost and tag == "st" and (cfg.nost == 1 or len([x for x in hist if x == "st"]) % 2): l = l.replace(f"s[{sO}:{sO+3}]", f"s[{sWQ}:{sWQ+3}]")
        ep.append(l)
        if Ins(l).kind in ("vmem", "dma", "vstore"): hist.append("sig" if l.endswith("; wave 0") else tag)
    def vwait(tag):
        last = max(i for i, x in enumerate(hist) if x == tag)
        n = sum(1 for x in hist[last+1:] if x not in ("sig", "look"))
        return f"s_waitcnt vmcnt({min(63, n)})"
    vwait1 = vwait
    LS = [KR[2], KR[2] + 4096, LDS_V[0], LDS_V[0] + 4096, KR[0], KR[0] + 4096, LDS_V[1], LDS_V[1] + 4096, KR[1], KR[1] + 4096]
    RS = [("a", 128), ("a", 144), ("a", 160), ("a", 176), ("v", 76), ("v", 92), ("a", 192), ("a", 208),
          ("v", 156), ("v", 172), ("v", 188), ("v", 204), ("v", 12), ("v", 28), ("a", 224), ("a", 240)]
    LSOF = {0: 0}
    NR = len(RS); NW = 16
    vR = 236; vLn = 10; vZ = 11
    def rreg(step, nt, jj=None):
        k, b = RS[step % NR]; f = vr if k == "v" else ar
        return f(b + 4 * nt, 4) if jj is None else f(b + 4 * nt + 2 * jj, 2)
    def tr_reads(step):
        a = LS[LSOF[step]]; s_ = a >> 16
        return [f"ds_read_b64_tr_b16 {rreg(step, nt, jj)}, v{vRa+4*s_+nt} offset:{(a & 0xffff) + 2048*jj} ; wo step {step}" for nt in range(4) for jj in range(2)]
    def wo_dma(step):
        return [(([f"s_add_u32 m0, s{sW8}, {LS[LSOF[step]]}", f"s_xor_b32 s{sT2}, s{sR4}, {32768*step}"] if q == 0 else []),
                 f"buffer_load_dwordx4 v{vKv+q}, s[{sK}:{sK+3}], s{sT2} offen offset:{1024*q} lds ; wo step {step}") for q in range(4)]
    def emit_dma(step):
        for l in flat(wo_dma(step)): E(l, ("w", step))
    def emit_tr(step):
        E(vwait(("w", step)))
        for l in tr_reads(step): E(l)
    T = vT
    P, _ = gen_attn_sched(peel=True)
    G0 = bar[0]; B7 = bar[1]
    NP = CUT + NPV
    Z = Sched(NP)
    for g in range(0, CUT):
        Z.mf[g] = P.mf[g]
        for x in A.gap[g]:
            if x.it or x.text.startswith("SWITCH") or x.text.startswith("v_add_f32"): continue
            if g < G0 + 1:
                if f"s[{sK}:{sK+3}]" in x.text or f"s{sKm}" in x.text or f"s{sKo}" in x.text or f"s{sKo+1}" in x.text: continue
                Z.put(g, Item(x.text.replace("vmcnt(8)", "vmcnt(V7)") + (" ; V7" if x.kind == "dma" else ""), x.kind))
            elif x.kind in ("ds", "t") or "cvt_pk" in x.text: Z.put(g, Item(x.text, x.kind))
            elif g == B7 and x.text in ("s_barrier",): Z.put(g, Item("s_waitcnt lgkmcnt(0)", "s")); Z.put(g, Item(x.text, "s"))
    for i in range(NPV): Z.mf[CUT + i] = P.mf[CUT + 16 + i]
    gg = CUT - 1
    for g in range(CUT, N):
        for x in P.gap[g]:
            if x.it == 0 and not x.text.startswith("v_add_f32"): gg = Z.put_win(min(gg + 1, CUT + Q1 - 3), CUT + Q1 - 3, Item(x.text, x.kind))
    if cfg.hyb:
        for g in range(0, 2 * PER):
            for x in A.gap[g]:
                if x.text.startswith("v_add_f32") and not x.it and int(x.text.split("v")[-1]) < vS + 16 and g < PER - 4 + 1: Z.put(g, Item(x.text, "v"))
        for n in range(1, 18):
            tl_ = LAST_TILE[n - 9] if n >= 9 else UNIT_TILE[n]
            sb = vS + 16 * (n & 1); l = vL + 8 * tl_
            for j in range(8):
                g = PER * (n - 1) + cfg.e0 + 2 * j + 1
                Z.put_win(g, min(PER * (n + 1) - 4, g + 30 if n == 9 else 10**6), Item(f"v_add_f32 v{l+(j&1)}, v{l+(j&1)}, v{sb+j}", "v"), pack=True)
    tags = {}
    def zput(lo, hi, text, kind, tag=None, pack=True, cap=CAP):
        if tag: tags[text] = tag
        return Z.put_win(lo, hi, Item(text, kind), pack=pack, cap=cap)
    def zf(lo, text, kind, tag=None, w=2):
        if tag: tags[text] = tag
        lo = min(lo, NP - 1)
        g = min(range(lo, min(lo + w, NP)), key=lambda x: (Z.cost[x] + (4 if kind in ("ds", "dma") and any(y.kind == "t" for y in Z.gap[x]) else 0), x))
        Z.put(g, Item(text, kind)); return g
    if cfg.v7step:
        seqv = []
        for g in range(0, G0):
            keep = []
            for x in Z.gap[g]:
                if x.text.endswith("; V7") or (x.kind == "s" and "m0" in x.text): seqv.append(x); Z.cost[g] -= x.cost
                else: keep.append(x)
            Z.gap[g] = keep
        g = 1; pre_ = []
        for x in seqv:
            if x.kind == "s": pre_.append(x.text); continue
            g = zf(g, x.text, "dma")
            for l in pre_: Z.put(g - 1, Item(l, "s"))
            pre_ = []; g += cfg.v7step
    vXw, vXr, vF, vFw = T, T + 1, 242, T + 3
    ad = [f"s_lshl_b32 s{sT0}, s{sW}, 14", f"s_lshr_b32 s{sT1}, s{sW}, 1", f"s_mul_i32 s{sT1}, s{sT1}, {KR[0] - 32768}", f"s_add_u32 s{sT0}, s{sT0}, s{sT1}",
          f"v_add_u32 v{vXw}, s{sT0}, v{vLn}", f"s_lshl_b32 s{sT0}, s{sW}, 11", f"v_add_u32 v{vXr}, s{sT0}, v{vLn}", f"v_add_u32 v{vXr+1}, {KR[0]}, v{vXr}",
          f"v_lshlrev_b32 v{vF}, 2, v0", f"v_add_u32 v{vF}, {LS[1]}, v{vF}", f"v_add_u32 v{vFw}, s{sW8}, v{vF}",
          f"s_lshl_b32 s{sT1}, s{sH}, 12", f"s_lshl_b32 s{sT3}, s{sW}, 10", f"s_add_u32 s{sT3}, s{sT3}, s{sT1}", f"s_add_u32 s{sT3}, s{sT3}, {16*131072}",
          f"s_lshl_b32 s{sT0}, s{sW}, 19", f"s_add_u32 s{sT0}, s{sT0}, s{sT1}", f"s_add_u32 s{sT1}, s{sT3}, 131072"]
    XOFF = 0x1400000
    sXs, sXr = sVo, sVo + 1
    su = [f"s_lshl_b32 s{sT1}, s{sW}, 19", f"s_lshl_b32 s{sT0}, s{sOdd}, 21", f"s_or_b32 s{sT1}, s{sT1}, s{sT0}",
          f"s_mov_b32 s{sD}, s{sPTR+8}", f"s_mov_b32 s{sD+1}, s{sPTR+9}", f"s_mov_b32 s{sD+2}, 4194304", f"s_mov_b32 s{sD+3}, 0x20000",
          f"s_lshr_b32 s{sPfo}, s2, 3", f"s_lshl_b32 s{sPfo}, s{sPfo}, 13", f"s_add_u32 s{sPfo}, s{sPfo}, s{sT1}",
          f"s_and_b32 s{sPfr}, s2, {4 if cfg.xrot else 0}", f"s_lshl_b32 s{sPfr}, s{sPfr}, 16", f"v_lshlrev_b32 v{vPfo}, 7, v0"]
    if cfg.cpf2:
        su += [f"s_getpc_b64 s[{sCP}:{sCP+1}]", "L_pc1:", f"s_add_u32 s{sCP}, s{sCP}, {'L_tail-L_pc1' if cfg.cpf2 == 1 else 0}", f"s_addc_u32 s{sCP+1}, s{sCP+1}, 0",
               f"s_lshr_b32 s{sT2}, s2, 3", f"s_lshl_b32 s{sT2}, s{sT2}, 2", f"s_add_u32 s{sT2}, s{sT2}, s{sW}", f"s_lshl_b32 s{sT2}, s{sT2}, 6",
               f"v_min_u32 v11, {1 if cfg.cpf2 == 1 else 2}, v0", f"v_lshlrev_b32 v11, 13, v11", f"v_add_u32 v11, s{sT2}, v11"]
    su += ["PF", f"s_and_b32 s{sR4}, s{sCg}, {cfg.orot}", f"s_lshl_b32 s{sR4}, s{sR4}, 15", f"s_or_b32 s{sR4}, s{sR4}, s{sT1}"]
    if cfg.xrot: su += [f"s_and_b32 s{sT1}, s2, 6", f"s_lshl_b32 s{sT1}, s{sT1}, 16", f"s_xor_b32 s{sR4}, s{sR4}, s{sT1}"]
    wo_voff(su.append, vKv, vT); wo_srd(su.append, sK)
    kg, r4, c4, tA, tB = vT, vT+1, vT+2, vT+3, vT+4
    su += [f"v_lshrrev_b32 v{kg}, 4, v0", f"v_bfe_u32 v{r4}, v0, 2, 2", f"v_and_b32 v{c4}, 3, v0",
           f"v_and_b32 v{tA}, 1, v{kg}", f"v_lshl_add_u32 v{tA}, v{tA}, 2, v{r4}", f"v_lshrrev_b32 v{tB}, 1, v{tA}", f"v_lshlrev_b32 v{tB}, 5, v{tB}",
           f"v_lshl_add_u32 v{tB}, v{tA}, 7, v{tB}", f"v_lshrrev_b32 v{tA}, 1, v{kg}", f"v_lshl_add_u32 v{tB}, v{tA}, 10, v{tB}",
           f"v_lshl_add_u32 v{tB}, v{c4}, 3, v{tB}", f"v_add_u32 v{vRa}, s{sW8}, v{tB}", f"s_lshl_b32 s{sT1}, s{sW}, 5", f"v_xor_b32 v{vRa}, s{sT1}, v{vRa}"]
    su += [f"v_xor_b32 v{vRa+nt}, {32*nt}, v{vRa}" for nt in range(1, 4)]
    su += [f"v_add_u32 v{vRa+4*s_+nt}, {65536*s_}, v{vRa+nt}" for s_ in range(1, 3) for nt in range(4)]
    su += ["v_lshlrev_b32 v10, 4, v0"]
    g = 2
    for l in su:
        if l == "PF":
            gsu = g
            if cfg.cpf2: zf(max(gsu, cfg.cpos), f"global_load_dword v{vPfd}, v11, s[{sCP}:{sCP+1}]", "dma")
            gp = gsu
            for i, x in enumerate(cfg.pfpos.split(",") if cfg.wopf else []):
                gp = zf(max(int(x), gp + 2), f"buffer_load_dword v{vPfd}, v{vPfo}, s[{sD}:{sD+3}], s{sPfx} offen ; pf{i}", "dma")
                for l_ in (f"s_xor_b32 s{sPfx}, s{sPfo}, s{sPfr}", f"s_add_u32 s{sPfo}, s{sPfo}, 262144"): Z.put(gp - 1, Item(l_, "s"))
        elif l.startswith("v_"): g = zput(g, g + 12, l, "v", pack=False) + 1
        else: Z.put(g, Item(l, "s"))
    if cfg.flags and cfg.clrpos:
        assert cfg.cntat > G0 and cfg.clrpos < 20
        for l in [f"s_or_b32 s99, s{sW}, s{sRedo}", "s_cbranch_scc1 L_noclr", f"v_mov_b32 v{vR+2}, s{sFo}", f"v_mov_b32 v{vR+3}, 0", "s_mov_b64 exec, 1",
                  f"global_store_dword v{vR+2}, v{vR+3}, s[{sPTR+14}:{sPTR+15}] sc1 ; wave 0", "s_mov_b64 exec, -1", "s_nop 3", "L_noclr:"]: Z.put(cfg.clrpos, Item(l, "s"))
    if cfg.flags:
        for l in [f"s_or_b32 s99, s{sW}, s{sRedo}", "s_cbranch_scc1 L_nocnt", f"v_mov_b32 v{vR+2}, 0", f"v_mov_b32 v{vR+3}, 1", "s_mov_b64 exec, 1",
                  f"global_atomic_add v{vR+2}, v{vR+3}, s[{sPTR+12}:{sPTR+13}] ; wave 0", "s_mov_b64 exec, -1", "s_nop 3", "L_nocnt:"]: Z.put(cfg.cntat, Item(l, "s"))
        for l in [f"s_cmp_lg_u32 s{sW}, 0", "s_cbranch_scc1 L_noget", f"v_mov_b32 v{vPfo}, 0", "s_mov_b64 exec, 1",
                  f"global_load_dword v{vPfo}, v{vPfo}, s[{sPTR+12}:{sPTR+13}] sc1 ; wave 0", "s_mov_b64 exec, -1", "s_nop 3", "L_noget:"]: Z.put(cfg.cntpos, Item(l, "s"))
    gp = max(g, cfg.ppos)
    for l in [f"s_add_u32 s{sV}, s{sPTR+14}, {XOFF}", f"s_addc_u32 s{sV+1}, s{sPTR+15}, 0", f"s_mov_b32 s{sV+2}, {256*20480}", f"s_mov_b32 s{sV+3}, 0x20000",
              f"s_mul_i32 s{sXr}, s2, 20480", f"s_mul_i32 s{sT0}, s{sW}, 5120", f"s_add_u32 s{sXr}, s{sXr}, s{sT0}",
              f"s_xor_b32 s{sXs}, s2, 1", f"s_mul_i32 s{sXs}, s{sXs}, 20480", f"s_add_u32 s{sXs}, s{sXs}, s{sT0}", f"s_add_u32 s{sT0}, s{sXr}, 4096"]: Z.put(gp, Item(l, "s"))
    for i in range(4): gp = zf(gp, f"v_mov_b32 v{vR+i}, -1", "v") + 1
    for i in range(0 if cfg.nopoison else 5):
        gp = zf(gp + 1, f"buffer_store_dwordx4 {vr(vR,4)}, v10, s[{sV}:{sV+3}], s{sXr if i < 4 else sT0} offen offset:{1024*(i&3)} sc1 ; mark {i}", "dma") + 1
    assert gp < G0 - 4
    g = G0 + 20
    for l in ad:
        if l.startswith("v_"): g = zput(g, g + 12, l, "v", pack=False) + 1
        else: Z.put(g, Item(l, "s"))
    def burst(g, lines):
        for l in lines: Z.put(g, Item(l, "v"))
    def pk(b, r):
        return f"v_pk_mul_f32 {vr(b,2)}, {vr(b,2)}, {vr(r & ~1,2)} op_sel:[0,{r & 1}] op_sel_hi:[1,{r & 1}]"
    sFl = sVm
    g = cfg.xw0 or PER * 9 + 16 + NPV + 6
    if cfg.hyb: burst(g, [f"v_add_f32 v{vL+16}, v{vL+16}, v{vL+16+1}", f"v_mov_b32 v{vL+18}, v{vL+16}", "s_nop 1", f"v_permlane32_swap_b32 v{vL+16}, v{vL+18}", f"v_add_f32 v{vL+16}, v{vL+16}, v{vL+18}",
               f"v_mov_b32 v{vL+18}, v{vL+16}", "s_nop 1", f"v_permlane16_swap_b32 v{vL+16}, v{vL+18}", f"v_add_f32 v{vL+16}, v{vL+16}, v{vL+18}"])
    for i in range(16): g = zf(g, f"ds_write_b128 v{vXw}, {ar(aO+128+4*i,4)} offset:{1024*i}", "ds") + 1
    g = zf(g, f"ds_write_b32 v{vFw}, v{vL+16}", "ds"); g = zf(g, f"ds_write_b32 v{vFw}, v{vL+20} offset:256", "ds")
    Z.put(g - 4, Item(f"s_mov_b32 s{sKd}, {LTHRESH:#x}", "s"))
    g = zf(g, f"v_add_f32 v{vR+4}, v{vL+16}, v{vL+20}", "v") + 1
    g = zf(g, f"v_cmp_nge_f32 s[{sFl}:{sFl+1}], s{sKd}, v{vR+4}", "v")
    XA = g + 7
    Z.put(XA, Item("s_waitcnt lgkmcnt(0)", "s")); Z.put(XA, Item("s_barrier", "s"))
    bA = [vQ + 64 + 4 * i for i in range(4)]; bB = [vQ + 80 + 4 * i for i in range(4)]; bC = [vNM + 16, vNM + 20, vL + 16, vL + 20]
    lr = [[236, 237, 238, 239], [5, 6, 7, 8]]
    def prd(wv, dst): return [f"ds_read_b128 {vr(dst[i],4)}, v{vXr+(wv>>1)} offset:{16384*(wv&1)+8192*(i>>1)+1024*(i&1)}" for i in range(4)]
    def padd(d, x): return [f"v_pk_add_f32 {vr(d[i]+r,2)}, {vr(d[i]+r,2)}, {vr(x[i]+r,2)}" for i in range(4) for r in (0, 2)]
    g = XA
    rd = prd(0, bA) + prd(1, bB) + prd(2, bC) + [f"ds_read_b32 v{lr[j][wv]}, v{vF} offset:{8192*wv+256*j}" for wv in range(4) for j in range(2)]
    for i, r in enumerate(rd): g = zf(g + (i & 1), r, "ds")
    gt = g + 1
    g = gt + 8
    while any(y.kind == "t" for y in Z.gap[g]): g += 1
    burst(g, padd(bA, bB))
    g3 = g + 1
    for i, r in enumerate(prd(3, bB)): g3 = zf(g3 + (i & 1), r, "ds")
    g += 2
    lsum = []
    for j in range(2):
        x = lr[j]; lsum += [f"v_add_f32 v{x[0]}, v{x[0]}, v{x[1]}", f"v_add_f32 v{x[2]}, v{x[2]}, v{x[3]}", f"v_add_f32 v{x[0]}, v{x[0]}, v{x[2]}"]
    burst(g, padd(bA, bC) + lsum + [f"v_rcp_f32 v{lr[0][0]}, v{lr[0][0]}", f"v_rcp_f32 v{lr[0][1]}, v{lr[1][0]}"])
    XB = g3 + 9
    while any(y.kind == "t" for y in Z.gap[XB]): XB += 1
    Z.put(XB, Item("s_waitcnt lgkmcnt(0)", "s")); Z.put(XB, Item("s_barrier", "s"))
    burst(XB, padd(bA, bB) + [pk(bA[i] + r, lr[0][i >> 1]) for i in range(4) for r in (0, 2)]
          + [f"v_cvt_pk_bf16_f32 v{bB[0]+i}, v{bA[0]+2*i}, v{bA[0]+2*i+1}" for i in range(8)])
    g = XB
    for j in range(2):
        d = f"buffer_store_dwordx4 {vr(bB[j],4)}, v{vLn}, s[{sO}:{sO+3}], s{sT3 if j == 0 else sT1} offen{cfg.st_sc}"
        g = zf(g + 1, d, "dma", tag=("prov", "st"))
    GS = g + 2
    free = [(cfg.d0, 0)] + [(XB + 1, i) for i in (1, 2, 3, 4, 5)] + [(B7 + 1, i) for i in (6, 7, 8, 9)]
    ravail = [XA] * 4 + [GS] * 2 + [CUT - 16, CUT - 16]
    gd = cfg.d0; gtr = gt + 1; nxt = 0; pend = []; ntr = 0; LSOF.clear()
    while True:
        free.sort()
        t0 = max(gd, free[0][0]) if free else 10**6
        if pend and ntr < len(ravail):
            tt = max(pend[0][1] + cfg.land, ravail[ntr], gtr)
            if tt <= t0 and tt + 8 < NP:
                st, gi = pend.pop(0); g = tt
                for i, r in enumerate(tr_reads(st)): g = zf(g + (i & 1), r, "ds", tag=("need", ("w", st)) if i == 0 else None)
                gtr = g + 1; free.append((g + 8, LSOF[st])); ntr += 1
                continue
        if t0 + 8 >= NP or nxt >= NW: break
        gf, sl = free.pop(0); LSOF[nxt] = sl
        w_ = wo_dma(nxt)
        if any(LSOF.get(x) == sl for x in range(nxt)): w_[0] = ([f"s_waitcnt lgkmcnt(15) ; slot {nxt}"] + w_[0][0], w_[0][1])
        g = t0
        for q, (p_, d) in enumerate(w_):
            g = zf(g, d, "dma", tag=("prov", ("w", nxt)), w=2 if t0 + 12 < NP else 1)
            for l in p_: Z.put(g - 1, Item(l, "s"))
            g += 2 if t0 + 12 < NP else 1
        pend.append((nxt, g)); gd = max(t0 + cfg.dstep, g); nxt += 1
    free = [x[1] for x in sorted(free)]
    sys.stderr.write(f"last stage: XA {XA} XB {XB} GS {GS}; wo steps issued {nxt}, in registers {ntr}; overflow {sum(max(0, c - CAP) for c in Z.cost)}\n")
    E("L_last:")
    if cfg.pstamp:
        for i_, g_ in enumerate((0, G0 + 1, XB + 1, B7 + 1)): Z.put(g_, Item(f"s_memtime s[{sST2+2*i_}:{sST2+2*i_+1}]", "s"))
    seq = Z.linear(0, NP)
    seq2 = lgkm_waits([(g - N, k, l) for g, k, l in body if g >= bar[1] and not l.startswith("SWITCH")] + [(-1, "x", "MARK:")] + seq)
    seq2 = seq2[[x[2] for x in seq2].index("MARK:") + 1:]
    dsq = []
    for g, k, l in seq2:
        if "; slot" in l:
            st = int(l.split()[-1]); prev = max(x for x in range(st) if LSOF[x] == LSOF[st])
            idx = max(i for i, x in enumerate(dsq) if x.endswith(f"wo step {prev}"))
            l = f"s_waitcnt lgkmcnt({min(15, len(dsq) - 1 - idx)})"
        if l.startswith("ds_"): dsq.append(l)
        if l.endswith("; V7"): tags[l] = ("prov", "V7")
        if "vmcnt(V7)" in l: l = vwait("V7") + " lgkmcnt(0)"
        tg = tags.get(l)
        if tg and tg[0] == "need": E(vwait(tg[1]))
        E(l, tg[1] if tg and tg[0] == "prov" else None)
    E("L_tail:")
    stamp(ep, 4)
    if cfg.hyb:
        r0 = [f"v_add_f32 v{vL}, v{vL}, v{vL+1}", f"v_mov_b32 v{vL+2}, v{vL}", "s_nop 1", f"v_permlane32_swap_b32 v{vL}, v{vL+2}", f"v_add_f32 v{vL}, v{vL}, v{vL+2}",
               f"v_mov_b32 v{vL+2}, v{vL}", "s_nop 1", f"v_permlane16_swap_b32 v{vL}, v{vL+2}", f"v_add_f32 v{vL}, v{vL}, v{vL+2}"]
        r1 = [f"v_add_f32 v{vL+8}, v{vL+8}, v{vL+8+1}", f"v_mov_b32 v{vL+10}, v{vL+8}", "s_nop 1", f"v_permlane32_swap_b32 v{vL+8}, v{vL+10}", f"v_add_f32 v{vL+8}, v{vL+8}, v{vL+10}",
               f"v_mov_b32 v{vL+10}, v{vL+8}", "s_nop 1", f"v_permlane16_swap_b32 v{vL+8}, v{vL+10}", f"v_add_f32 v{vL+8}, v{vL+8}, v{vL+10}"]
        for x, y in zip(r0, r1):
            if x.startswith("v_"): E(x); E(y)
    for qt in range(4): E(f"v_rcp_f32 v{vR+qt}, v{vL+4*qt}")
    chk = [f"s_mov_b32 s{sT3}, {LTHRESH:#x}",
           f"v_add_f32 v{T}, v{vL}, v{vL+4}", f"v_add_f32 v{T+1}, v{vL+8}, v{vL+12}",
           f"v_add_f32 v{T}, v{T}, v{T+1}", f"v_cmp_nge_f32 vcc, s{sT3}, v{T}",
           f"v_lshlrev_b32 v{vF}, 2, v0", f"v_add_u32 v{vF}, {{FL}}, v{vF}", f"v_add_u32 v{T+1}, s{sW8}, v{vF}",
           f"s_or_b64 vcc, vcc, s[{sFl}:{sFl+1}]", f"s_cselect_b32 s{sT3}, 1, 0", f"v_mov_b32 v{T+2}, s{sT3}"]
    todo = [st for st, gi in pend]
    fl = 220
    if free: FS = free.pop(0); first = []
    else: first = [todo.pop(0)]; FS = LSOF[first[0]]
    for k in range(16):
        qt, kc = k >> 2, k & 3
        b0 = 108 + 12 * (k % 2)
        if k == 0:
            for st in first: emit_tr(st); ntr += 1
        if k == 3:
            E("s_waitcnt lgkmcnt(0)"); E("s_barrier")
            for wv in range(4): E(f"ds_read_b32 v{fl+wv}, v{vF} offset:{8192*wv}")
        if k == 4:
            E("s_waitcnt lgkmcnt(0)")
            E(f"v_or_b32 v{fl}, v{fl}, v{fl+1}"); E(f"v_or3_b32 v{fl}, v{fl}, v{fl+2}, v{fl+3}")
            E(f"v_readfirstlane_b32 s{sT2}, v{fl}")
            E(f"s_andn2_b32 s{sT2}, s{sT2}, s{sRedo}"); E(f"s_cmp_lg_u32 s{sT2}, 0"); E("s_cbranch_scc1 L_fallback")
        if k >= 5 and todo and todo[0] < 16:
            st = todo.pop(0); emit_tr(st); free.append(LSOF[st]); ntr += 1
        for i in range(8): E(f"v_accvgpr_read_b32 v{b0+i}, a{aO+32*qt+8*kc+i}")
        for i in range(4): E(pk(b0 + 2 * i, vR + qt))
        for i in range(4): E(f"v_cvt_pk_bf16_f32 v{b0+8+i}, v{b0+2*i}, v{b0+2*i+1}")
        E(f"buffer_store_dwordx4 {vr(b0+8,4)}, v{vLn}, s[{sO}:{sO+3}], s{sT0} offen offset:{1024*kc}{cfg.st_sc}", "st")
        if kc == 3 and qt < 3: E(f"s_add_u32 s{sT0}, s{sT0}, 131072")
        if k == 1:
            for l in chk: E(l.replace("{FL}", str(LS[FS])))
            E("s_waitcnt lgkmcnt(0)"); E(f"ds_write_b32 v{T+1}, v{T+2}")
    stamp(ep, 5)
    E("s_waitcnt lgkmcnt(0)")
    for _ in range(cfg.npost):
        if nxt < NW: LSOF[nxt] = free.pop(0); emit_dma(nxt); todo.append(nxt); nxt += 1
    E(f"s_mov_b32 s{sD}, s{sPTR+12}"); E(f"s_mov_b32 s{sD+1}, s{sPTR+13}"); E(f"s_mov_b32 s{sD+2}, 256"); E(f"s_mov_b32 s{sD+3}, 0x20000")
    E(f"s_lshl_b32 s{sT0}, s{sMt}, 17"); E(f"s_add_u32 s{sX}, s{sPTR+14}, s{sT0}"); E(f"s_addc_u32 s{sX+1}, s{sPTR+15}, 0")
    E(f"s_mov_b32 s{sX+2}, {9*131072}"); E(f"s_mov_b32 s{sX+3}, 0x20000")
    E(f"s_lshl_b32 s{sT0}, s{sMt}, 14"); E(f"s_add_u32 s{sWQ}, s{sPTR+10}, s{sT0}"); E(f"s_addc_u32 s{sWQ+1}, s{sPTR+11}, 0")
    E(f"s_mov_b32 s{sWQ+2}, {9*16384}"); E(f"s_mov_b32 s{sWQ+3}, 0x20000")
    vOo = 220
    E(f"v_mov_b32 v{vZ}, 0"); E(f"v_mov_b32 v{T}, 1"); E(f"s_mul_i32 s{sT2}, s{sOdd}, {5*131072}")
    E(f"v_add_u32 v{vOo}, s{sT2}, v{vLn}"); E(f"v_add_u32 v{vOo+4}, {4*131072}, v{vLn}"); E(f"v_subrev_u32 v{vOo+5}, s{sT2}, v{vLn}"); E(f"v_add_u32 v{vOo+5}, {5*131072}, v{vOo+5}")
    for i in range(1, 4): E(f"v_add_u32 v{vOo+i}, {131072*i}, v{vOo}"); E(f"v_add_u32 v{vOo+5+i}, {131072*i}, v{vOo+5}")
    sPo = sXm
    E(f"s_lshr_b32 s{sPo}, s{sR4}, 5")
    E(f"s_lshl_b32 s{sT0}, s{sB}, 1"); E(f"s_lshr_b32 s{sT1}, s{sH}, 4"); E(f"s_add_u32 s{sT0}, s{sT0}, s{sT1}"); E(f"s_lshl_b32 s{sT0}, s{sT0}, 4")
    E(f"s_lshl_b32 s{sT1}, s{sRg}, 1"); E(f"s_add_u32 s{sT1}, s{sT1}, s{sOdd}"); E(f"s_lshl_b32 s{sT1}, s{sT1}, 4")
    E(f"v_mov_b32 v{T+1}, s{sT0}"); E(f"v_writelane_b32 v{T+1}, s{sT1}, 0")
    E(f"s_lshl_b32 s{sT2}, s{sB}, 5"); E(f"s_add_u32 s{sT2}, s{sT2}, s{sH}")
    if cfg.flags:
        E(f"s_lshl_b32 s{sT1}, s{sT1}, {cfg.fstr - 4}"); E(f"s_add_u32 s{sT1}, s{sT1}, {FLAG_OFF}"); E(f"s_xor_b32 s{sT0}, s{sFo}, {4 << cfg.fsep}")
        E(f"v_lshlrev_b32 v{T+1}, {cfg.fsep}, v0"); E(f"v_add_u32 v{T+1}, s{sT1}, v{T+1}"); E(f"v_mov_b32 v{T+2}, s{sT0}"); E(f"v_cmp_gt_u32 vcc, 16, v0")
        E(f"v_cndmask_b32 v{T+1}, v{T+2}, v{T+1}, vcc"); E(f"v_mov_b32 v{T+2}, s{sFo}")
    E(vwait("st")); E("s_barrier")
    E(f"s_cmp_lg_u32 s{sW}, 0"); E("s_cbranch_scc1 L_nosig")
    E("s_mov_b64 exec, 1")
    if cfg.flags: ep.append(f"global_store_dword v{T+2}, v{T}, s[{sPTR+14}:{sPTR+15}] sc1")
    elif cfg.bflag: ep.append(f"buffer_store_byte v{T}, v{vZ}, s[{sD}:{sD+3}], s{sT2} offen sc1")
    else: ep.append(f"buffer_atomic_add v{T}, v{vZ}, s[{sD}:{sD+3}], s{sT0} offen")
    if cfg.epoll: E("s_mov_b64 exec, 0x1ffff"); ep.append(f"global_load_dword v{T+3}, v{T+1}, s[{sPTR+14}:{sPTR+15}] sc1")
    E("s_mov_b64 exec, -1")
    E("L_nosig:")
    hist.append("sig"); hist.append("look")
    stamp(ep, 6)
    if cfg.cpf3:
        E(f"s_getpc_b64 s[{sCP}:{sCP+1}]"); E(f"v_min_u32 v{T+9}, 1, v0"); E(f"v_lshlrev_b32 v{T+9}, 13, v{T+9}")
        E(f"s_lshr_b32 s{sT2}, s2, 3"); E(f"s_lshl_b32 s{sT2}, s{sT2}, 2"); E(f"s_add_u32 s{sT2}, s{sT2}, s{sW}"); E(f"s_lshl_b32 s{sT2}, s{sT2}, 6")
        E(f"v_add_u32 v{T+9}, s{sT2}, v{T+9}"); E(f"v_min_u32 v{T+9}, L_end-L_nosig, v{T+9}")
        E(f"global_load_dword v{T+9}, v{T+9}, s[{sCP}:{sCP+1}]")
    free.append(FS)
    late_dma = []
    while nxt < NW:
        LSOF[nxt] = free.pop(0); todo.append(nxt)
        if cfg.latew: late_dma.append(nxt)
        else: emit_dma(nxt)
        nxt += 1
    late_tr = list(todo)
    sys.stderr.write(f"wo steps still to be read into registers after the signal: {late_tr}\n")
    if cfg.trpre:
        for st in late_tr: emit_tr(st)
        late_tr = []
    stamp(ep, 7)
    E(f"s_cmp_lg_u32 s{sW}, 0"); E("s_cbranch_scc1 L_ready")
    E(f"s_mov_b32 s{sCnt}, 0x40000")
    if cfg.flags:
        E("L_cnt:")
        E(f"v_readfirstlane_b32 s{sT0}, v{vPfo}"); E(f"s_sub_u32 s{sCnt}, s{sCnt}, 1"); E(f"s_cmp_eq_u32 s{sCnt}, 0"); E("s_cbranch_scc1 L_ready")
        E(f"s_cmp_ge_u32 s{sT0}, 256"); E("s_cbranch_scc1 L_cntok")
        E("s_sleep 16"); ep.append(f"global_load_dword v{vPfo}, v{vZ}, s[{sPTR+12}:{sPTR+13}] sc1"); E("s_waitcnt vmcnt(0)"); E("s_branch L_cnt")
        E("L_cntok:")
    E(f"s_mov_b64 exec, {0x1ffff if cfg.flags else 3:#x}")
    if cfg.epoll:
        E(vwait("look")); E(f"v_cmp_ne_u32 vcc, 1, v{T+3}"); E("s_cmp_eq_u64 vcc, 0"); E("s_cbranch_scc1 L_got")
    E("L_poll:")
    if cfg.flags:
        ep.append(f"global_load_dword v{T+3}, v{T+1}, s[{sPTR+14}:{sPTR+15}] sc1")
        E("s_waitcnt vmcnt(0)"); E(f"v_cmp_ne_u32 vcc, 1, v{T+3}")
    elif cfg.bflag:
        ep.append(f"buffer_load_dwordx4 {vr(T+4,4)}, v{T+1}, s[{sD}:{sD+3}], 0 offen sc1")
        E("s_waitcnt vmcnt(0)"); E(f"v_and_b32 v{T+4}, v{T+4}, v{T+5}"); E(f"v_and_b32 v{T+6}, v{T+6}, v{T+7}"); E(f"v_and_b32 v{T+4}, v{T+4}, v{T+6}")
        E(f"v_cmp_ne_u32 vcc, 0x01010101, v{T+4}")
    else:
        ep.append(f"buffer_load_dword v{T+3}, v{T+1}, s[{sD}:{sD+3}], 0 offen sc1")
        E("s_waitcnt vmcnt(0)"); E(f"v_cmp_gt_u32 vcc, 16, v{T+3}")
    E(f"s_sub_u32 s{sCnt}, s{sCnt}, 1"); E(f"s_cmp_eq_u32 s{sCnt}, 0"); E("s_cbranch_scc1 L_got")
    E("s_cmp_eq_u64 vcc, 0"); E("s_cbranch_scc1 L_got")
    E(f"s_sleep {cfg.sleep}"); E("s_branch L_poll")
    E("L_got:"); E("s_mov_b64 exec, -1")
    E("L_ready:")
    E("s_barrier")
    stamp(ep, 8); stamp(ep, 5, True)
    TM = cfg.TM; NT_ = 16 - TM; W_ = 4 * NT_
    TORD = [4, 5, 6, 7, 8, 0, 1, 2, 3]
    uses = [(st, t) for st in range(TM) for t in range(9)] + [(st, t) for t in TORD for st in range(TM, 16)]
    OB = [("a", 108 + 4 * i) for i in range(5)] + [("v", 44 + 4 * i) for i in range(8)] + [("v", 144 + 4 * i) for i in range(3)]
    LAT = cfg.LAT; assert LAT + cfg.og + 1 <= len(OB) and LAT >= 2 * cfg.og - 1
    UK = len(uses) - 4 * NT_ if cfg.acc_ else len(uses)
    ob = lambda u: ar(128 + 4 * (u - UK), 4) if u >= UK else (vr if OB[u % len(OB)][0] == "v" else ar)(OB[u % len(OB)][1], 4)
    acc = lambda t, j: vr(108 + 4 * t, 4) if j == 0 else ar(12 * t + 4 * (j - 1), 4)
    sS = [sKo, sKo + 1, sKs, sVs, sKm, sKd, sKb, sKw]
    def oload(u):
        st, t = uses[u]
        pre = [f"s_xor_b32 s{sS[st & 7]}, s{sPo}, {1024*st}"] if (st, t) == next(x for x in uses if x[0] == st) else []
        return pre, f"buffer_load_dwordx4 {ob(u)}, v{vOo+t}, s[{sX}:{sX+3}], s{sS[st & 7]} offen{cfg.ld_sc} ; o {u}"
    for u in range(LAT):
        for l in flat([oload(u)]): E(l, ("o", u))
    NM = 4 * len(uses)
    SO = Sched(NM); tags = {}
    for u, (st, t) in enumerate(uses):
        for j in range(4):
            SO.mf[4*u + j] = Item(f"{MF} {acc(t,j)}, {rreg(st, j)}, {ob(u)}, {'0' if st == 0 else acc(t,j)} ; o {u}", "mf")
        if u + LAT < len(uses):
            p_, d = oload(u + LAT); tags[d] = ("prov", ("o", u + LAT))
            gl = 4 * (u - u % cfg.og) + (1 if cfg.og == 1 else u % cfg.og)
            if u + LAT >= UK: gl = 4 * (UK - LAT) + 1 + cfg.acc_ * (u + LAT - UK)
            for l in p_: SO.put(max(gl - 1, 0) if gl else 0, Item(l, "s"))
            SO.put(gl, Item(d, "dma"))
    dpos = {}
    for i, st in enumerate(late_dma):
        g = cfg.lw0 + cfg.lwstep * i
        for p_, d in wo_dma(st):
            tags[d] = ("prov", ("w", st)); g = place_dmas(SO, [(p_, d)], g, 2)
        dpos[st] = g
    g = 2
    for st in late_tr:
        if st in dpos: g = max(g, dpos[st] + 60)
        for k_, r in enumerate(tr_reads(st)):
            while SO.cost[g] > 4: g += 1
            SO.put(g, Item(r, "ds")); g += (2 if k_ & 1 else 0)
            if k_ == 0: tags[r] = ("need", ("w", st))
        assert g < 36 * st - 8
    tL, tH, r1, r2l, r2h, r3, va = 229, 230, 231, T + 4, T + 5, T + 6, T + 7
    ad = [f"v_add_u32 v{tL}, s{sW8}, v{vLn}", f"v_add_u32 v{tH}, 65536, v{tL}", f"v_xor_b32 v{r1}, 8192, v{tL}", f"v_xor_b32 v{r2l}, 16384, v{tL}",
          f"v_xor_b32 v{r2h}, 16384, v{tH}", f"v_xor_b32 v{r3}, 24576, v{tH}",
          f"v_and_b32 v{va}, 15, v0", f"v_lshlrev_b32 v{va}, 10, v{va}", f"v_lshrrev_b32 v{va+1}, 4, v0", f"v_lshl_add_u32 v{va}, v{va+1}, 3, v{va}",
          f"s_lshl_b32 s{sT0}, s{sCg}, 7", f"s_lshl_b32 s{sT1}, s{sW}, 5", f"s_add_u32 s{sT0}, s{sT0}, s{sT1}", f"s_add_u32 s{sT3}, s{sT0}, {4*16384}",
          f"s_mul_i32 s{sT1}, s{sOdd}, {5*16384}", f"s_add_u32 s{sT0}, s{sT0}, s{sT1}", f"s_add_u32 s{sT1}, s{sXs}, 4096", f"s_add_u32 s{sT2}, s{sXr}, 4096"]
    g = 36 * (TM - 3) + 2
    for l in ad:
        if l.startswith("v_"): SO.put(g, Item(l, "v")); g += 4
        else: SO.put(g, Item(l, "s"))
    SO.put(36 * TM - 4, Item("s_waitcnt lgkmcnt(0)", "s"))
    def loc(j, t): n = (j - 1) * 9 + t; return n // 8, (n // 8 & 1) * 32768 + (n % 8) * 1024
    def wr(j, t): r_, o_ = loc(j, t); return f"ds_write_b128 v{tL if r_ < 2 else tH}, {acc(t,j)} offset:{o_}"
    def rd(j, t, dst):
        r_, o_ = loc(j, t); a_ = {1: r1, 2: r2l if r_ < 2 else r2h, 3: r3}[j]
        assert (j != 1 or r_ < 2) and (j != 3 or r_ >= 2)
        return f"ds_read_b128 {vr(dst,4)}, v{a_} offset:{o_}"
    late = []
    for i, t in enumerate(TORD):
        for j in range(1, 4):
            gg = 36 * TM + W_ * i + W_ - 4 + j + 9 + (j - 1)
            if gg < NM: SO.put(gg, Item(wr(j, t), "ds"))
            else: late.append(wr(j, t))
    tmp = [76 + 4 * i for i in range(8)] + [156 + 4 * i for i in range(8)]
    def sums(t, b):
        a0 = 108 + 4 * t
        return [f"v_pk_add_f32 {vr(a0+r,2)}, {vr(a0+r,2)}, {vr(b[0]+r,2)}" for r in (0, 2)] + [f"v_pk_add_f32 {vr(b[1]+r,2)}, {vr(b[1]+r,2)}, {vr(b[2]+r,2)}" for r in (0, 2)] \
             + [f"v_pk_add_f32 {vr(a0+r,2)}, {vr(a0+r,2)}, {vr(b[1]+r,2)}" for r in (0, 2)]
    X1 = 36 * TM + W_ * 5 - 4 + 3 + 9 + 2 + cfg.x1d
    SO.put(X1, Item("s_waitcnt lgkmcnt(0)", "s")); SO.put(X1, Item("s_barrier", "s"))
    g = X1
    for i, t in enumerate(TORD[:5]):
        for j in range(1, 4): SO.put(g + (3 * i + j - 1) // 2, Item(rd(j, t, tmp[3*i+j-1]), "ds"))
    g = X1 + 14
    for i, t in enumerate(TORD[:5]):
        for l in sums(t, tmp[3*i:3*i+3]): SO.put(g, Item(l, "v"))
        d = f"buffer_store_dwordx4 {vr(108+4*t,4)}, v{vLn}, s[{sV}:{sV+3}], s{sT1 if i == 0 else sXs} offen offset:{0 if i == 0 else 1024*(i-1)} sc1 ; send {i}"
        SO.put(g + 1, Item(d, "dma")); g += 2
    assert g < NM - 2, (g, NM)
    seq = lgkm_waits(SO.linear(0, NM))
    E(vwait(("o", cfg.og - 1)))
    if not cfg.o3: stamp(ep, 6, True)
    for idx, (g, k, l) in enumerate(seq):
        tg = tags.get(l)
        if tg and tg[0] == "need": E(vwait(tg[1]))
        E(l, tg[1] if tg and tg[0] == "prov" else None)
        if k == "mf" and g % (4 * cfg.og) == 4 * cfg.og - 1 and g < NM - 1: E(vwait(("o", g // 4 + cfg.og)))
        if cfg.o3 and k == "mf" and g == 36 * TM: stamp(ep, 6, True)
        if k == "mf" and g == (NM // 2 - 1 if not cfg.o3 else X1 + cfg.o3 - 2): stamp(ep, 7, True)
        if k == "mf" and g == NM - 1: stamp(ep, 8, True)
    rcv = [44 + 4 * i for i in range(5)]
    rl = [f"buffer_load_dwordx4 {vr(rcv[i],4)}, v{vLn}, s[{sV}:{sV+3}], s{sXr if i < 4 else sT2} offen offset:{1024*(i&3)} sc1" for i in range(5)]
    for l in late: E(l)
    if not cfg.rlate:
        for l in rl: E(l)
    E("s_waitcnt lgkmcnt(0)"); E("s_barrier")
    tm2 = [156 + 4 * i for i in range(12)]
    for t in range(4):
        for j in range(1, 4): E(rd(j, t, tm2[3*t+j-1]))
    if cfg.rlate:
        for l in rl: E(l)
    for t in range(4):
        E(f"s_waitcnt lgkmcnt({3*(3-t)})")
        for l in sums(t, tm2[3*t:3*t+3]): E(l)
    E(f"s_mov_b32 s{sCnt}, 0x40000")
    E("L_rx:")
    E("s_waitcnt vmcnt(0)")
    E(f"v_max3_u32 v{T}, v{rcv[0]}, v{rcv[0]+1}, v{rcv[0]+2}")
    for i in range(3, 19, 2): E(f"v_max3_u32 v{T}, v{T}, v{rcv[0]+i}, v{rcv[0]+i+1}")
    E(f"v_max_u32 v{T}, v{T}, v{rcv[0]+19}"); E(f"v_cmp_eq_u32 vcc, -1, v{T}")
    E(f"s_sub_u32 s{sCnt}, s{sCnt}, 1"); E(f"s_cmp_eq_u32 s{sCnt}, 0"); E("s_cbranch_scc1 L_rxd")
    E("s_cmp_eq_u64 vcc, 0"); E("s_cbranch_scc1 L_rxd")
    E(f"s_sleep {cfg.rsleep}")
    for l in rl: ep.append(l)
    E("s_branch L_rx")
    E("L_rxd:")
    for t in range(5):
        a0 = 108 + 4 * t
        for r in (0, 2): E(f"v_pk_add_f32 {vr(a0+r,2)}, {vr(a0+r,2)}, {vr(rcv[t]+r,2)}")
        E(f"v_cvt_pk_bf16_f32 v{rcv[t]}, v{a0}, v{a0+1}"); E(f"v_cvt_pk_bf16_f32 v{rcv[t]+1}, v{a0+2}, v{a0+3}")
        E(f"buffer_store_dwordx2 {vr(rcv[t],2)}, v{va}, s[{sWQ}:{sWQ+3}], s{sT0 if t < 4 else sT3} offen{cfg.out_sc}")
        if t < 3: E(f"s_add_u32 s{sT0}, s{sT0}, 16384")
    if cfg.stamp:
        vt = 156
        E("s_waitcnt vmcnt(0)")
        E(f"s_memtime s[{sST+10}:{sST+11}]"); E(f"s_memrealtime s[{sST+12}:{sST+13}]"); E("s_waitcnt lgkmcnt(0)")
        E(f"s_add_u32 s{sD}, s{sPTR+14}, 0x4000000"); E(f"s_addc_u32 s{sD+1}, s{sPTR+15}, 0")
        E(f"s_mov_b32 s{sD+2}, 0x100000"); E(f"s_mov_b32 s{sD+3}, 0x20000")
        E(f"s_lshl_b32 s{sT0}, s2, 2"); E(f"s_add_u32 s{sT0}, s{sT0}, s{sW}"); E(f"s_lshl_b32 s{sT0}, s{sT0}, 7")
        for i in range(16): E(f"v_mov_b32 v{vt+i}, s{sST+i}")
        for i in range(8): E(f"v_mov_b32 v{vt+16+i}, s{sST2+i}")
        for i in range(6): E(f"buffer_store_dwordx4 {vr(vt+4*i,4)}, v{vZ}, s[{sD}:{sD+3}], s{sT0} offen offset:{16*i}")
    E("L_end:"); E("s_endpgm")
    E("L_fallback:")
    E(f"s_mov_b32 s{sRedo}, 1"); E("s_waitcnt vmcnt(0) lgkmcnt(0)"); E("s_barrier")
    E(f"s_load_dwordx16 s[{sPTR}:{sPTR+15}], s[0:1], 0")
    E("s_branch L_restart")
    E("L_truemax:")
    for l in a2_all: E(l)
    mx = [vT + 12 + qt for qt in range(6)]
    for qt in range(6): E(f"v_mov_b32 v{mx[qt]}, 0xff800000")
    E(f"s_mov_b32 s{sCnt}, 8"); E(f"s_add_u32 s{sKm}, s{sW8}, {KR[0]}")
    E("s_waitcnt vmcnt(0) lgkmcnt(0)")
    E("L_fb_loop:")
    E("s_barrier")
    for l in flat(k_dma()) + adv(sKo, sKs): E(l)
    E("s_waitcnt vmcnt(0)"); E("s_barrier")
    for j in range(4):
        for idx in range(8): E(k_read(j, idx >> 2, idx & 3))
        E("s_waitcnt lgkmcnt(0)")
        for k16 in range(2):
            for qt in range(6):
                nb = vNM + 4 * qt
                for c in range(4):
                    E(f"{MF} {vr(nb,4)}, {ar(aK+16*k16+4*c,4)}, {vr(vQ+16*qt+4*c,4)}, {'0' if c == 0 else vr(nb,4)}")
            E("s_nop 7")
            for qt in range(6):
                nb = vNM + 4 * qt
                E(f"v_max3_f32 v{mx[qt]}, v{mx[qt]}, v{nb}, v{nb+1}"); E(f"v_max3_f32 v{mx[qt]}, v{mx[qt]}, v{nb+2}, v{nb+3}")
            E("s_nop 3")
    E(f"s_sub_u32 s{sCnt}, s{sCnt}, 1"); E(f"s_cmp_lg_u32 s{sCnt}, 0"); E("s_cbranch_scc1 L_fb_loop")
    E("s_barrier")
    E(f"s_mov_b32 s{sKo}, s{sK0}"); E(f"s_add_u32 s{sKo+1}, s{sK0}, 4096")
    for l in flat(k_dma()) + adv(sKo, sKs): E(l)
    negm(E, mx)
    E("s_waitcnt vmcnt(0)"); E("s_barrier")
    if cfg.s0:
        for l in kfirst: E(l)
        E("s_waitcnt lgkmcnt(0)")
    if cfg.s0p:
        for l in att_consts + prologue(False): E(l)
        E("s_nop 7"); E("s_branch L_loop")
    else: E("s_branch L_att")
    pre = [l for g, k, l in body2 if g >= N - 12 and not l.startswith("SWITCH")]
    n0_ = len(ep)
    el, _ = check_hazards(pre + ["Y:"] + ep, "ep", fix=True)
    sys.stderr.write(f"nops added after the loop: {len(el) - len(pre) - 1 - n0_}\n")
    o += el[el.index("Y:") + 1:]
    return o

def main():
    k1 = [l for l in gen() if l]
    n0 = len(k1); k1, _ = check_hazards(k1, "k1", fix=True)
    sys.stderr.write(f"{len(k1)} lines, {len(k1)-n0} nops added by final pass\n")
    hdr = open("standalone__gqa_block_cached__near_ridge.s.ref").read().split("\n")[:9]
    doc = """;
; One workgroup of four waves per (batch, head); all 256 are resident at once, one per CU.
;  1. Q^T = wq_h^T x_b^T, eight 64-deep chunks staged in LDS by LDS-DMA; scaled by log2(e)/sqrt(128), packed to bf16.
;  2. Attention over eight stages of 128 keys (K ring of three slots, V ring of two). Each wave owns 64 queries and a quarter
;     of the keys of the last 32 queries. S^T = K Q^T - m leaves the MFMA with the shift already applied (m enters as the C
;     operand), P = exp2(S), O^T += V^T P^T and the row sums follow in a software pipeline of 16x16x32 MFMAs.
;     m is the score of the first key, a lower bound of the row maximum; if any row sum leaves [0, 2^64] (or is NaN) the
;     workgroup starts again, takes the true row maxima in a separate pass over K and repeats the attention with them.
;  3. o goes to the workspace (write-through), a flag per workgroup tells the readers. Flags are cleared by their owners first;
;     a counter in d_debug tells when all of them have been cleared in this launch.
;  4. out tile of 144 x 64 over half of the heads per workgroup; four waves split that K range, sum through LDS and exchange
;     half of the tile with the partner workgroup through a buffer the receiver has marked as empty beforehand.
; Written with a generator script of my own (instruction scheduling, wait counts and hazard distances are computed there).""".split("\n")
    out = hdr + [f"; @launch grid=(256,1,1) block=(256,1,1) lds={LDS_TOTAL}"] + doc + [
                 '.amdgcn_target "amdgcn-amd-amdhsa--gfx950"', ".text"]
    fmt = lambda l: l if l.endswith(":") else "    " + l
    out += [f".globl {cfg.name}", ".p2align 8", f".type {cfg.name},@function"] + [fmt(l) for l in k1]
    out += ["L_code_end:"]
    if cfg.cpf: out += [f".if (L_code_end - L_pc0) < {8192*cfg.cpf_n}", '.error "code prefetch range"', ".endif"]
    if cfg.cpf2 == 2: out += [".if (L_code_end - L_pc1) < 24576", '.error "code prefetch range"', ".endif"]
    out += ['.section .rodata,"a"', ".p2align 6", f""".amdhsa_kernel {cfg.name}
  .amdhsa_next_free_vgpr 512
  .amdhsa_next_free_sgpr 102
  .amdhsa_accum_offset 256
  .amdhsa_group_segment_fixed_size 0
  .amdhsa_kernarg_size 64
  .amdhsa_user_sgpr_count 2
  .amdhsa_user_sgpr_kernarg_segment_ptr 1
  .amdhsa_system_sgpr_workgroup_id_x 1
.end_amdhsa_kernel
"""]
    txt = "\n".join(out)
    if cfg.rt: txt = txt.replace("s_memtime", "s_memrealtime")
    open(sys.argv[1], "w").write(txt)
main()
```

```python
import sys, math, struct
from asmlib import *

class Cfg:
    name = "standalone__gqa_block_cached__near_ridge_kernel"
    stamp = False
    map_bh = "h"
    kv_nt = True; q_nt = False
    dump_q = False
    e0 = 9
    dma_step = 20.0; qstep = 5
    wowarm = 0; k0pf = 0; dm = ''; trlag = 8; npost = 3; ola = 2; ostep = 1; epi = 'mix'; qstamp = False; cpf = 1; cpf_n = 5; cpf2 = 2; qrot = 1; orot = 0; ostamp = False; krot = 0; xw0 = 0; land = 45; xcap = 12; dstep = 17; pf_end = 0; pkq = 1; epoll = 0; wwpos = 0; poll1 = 1; pflate = 1; pfk = 0; pfsh = 13; xrot = 1; qx = 0; pfcut = 0; wo_nt = False; fastred = 1; k1pos = 1; nost = 0; olay = 0; pf_nt = False; pf0 = 4; pfpos = '170,172'; ppos = 100; NW = 16; LAT = 10; trpre = 0; qpf2 = 0; qpfb = 60; QB = 9; kpf0 = 0; s0p = 1; TM = 11; rlate = 0; acc_ = 0; o3 = 0; clrpos = 0; fsep = 7; rt = False; latew = 0; lw0 = 8; lwstep = 36; og = 1; bflag = 1; ptouch = 0; cntat = 60; nopoison = 0; x1d = 6; rsleep = 1; d0 = 370; cpos = 38; cpf3 = 1; out_sc = ''; nobar = 1; v7step = 5; qstart = 0; tlb = 0; qkord = 0; flags = 1; fstr = 11; cntpos = 470; pre_to = 26; wlag = 2; kvstep = 5; vlate = 1; qb0 = 27; hyb = 1; s0 = 1; q2step = 3; sstamp = False; pstamp = False; dgrp = 1
    wopf = 1
    opf = 0
    qpf = 0
    sleep = 4
    lstamp = False
    st_sc = " sc1"; ld_sc = " sc1"
cfg = Cfg()
for a in sys.argv[2:]:
    k, v = a.split("=")
    old = getattr(cfg, k)
    if k in ("st_sc", "ld_sc", "out_sc"): v = "".join(" " + x for x in v.split("+") if x)
    setattr(cfg, k, (v == "1") if isinstance(old, bool) else type(old)(v))

def NT(f): return " nt" if f else ""
def f2u(x): return struct.unpack("<I", struct.pack("<f", x))[0]
QSCALE = f2u(math.log2(math.e) / math.sqrt(128.0))
LTHRESH = f2u(2.0 ** (64 if cfg.s0 else 40))
MF = "v_mfma_f32_16x16x32_bf16"
CAP = 8

class Item:
    def __init__(self, text, kind, it=0):
        self.text = text; self.kind = kind; self.it = it
        self.cost = {"s": 0, "ds": 4, "v": 4, "t": 8, "dma": 8, "mf": 0}[kind]

class Sched:
    def __init__(self, n, periodic=False):
        self.n = n; self.periodic = periodic
        self.mf = [None] * n; self.gap = [[] for _ in range(n)]; self.cost = [0] * n
    def norm(self, g):
        if self.periodic: return g % self.n
        assert 0 <= g < self.n, g
        return g
    def put(self, g, item):
        g = self.norm(g); self.gap[g].append(item); self.cost[g] += item.cost
    def put_win(self, lo, hi, item, pack=False, cap=CAP):
        if not self.periodic: hi = min(hi, self.n - 1)
        cand = [g for g in range(lo, hi + 1) if self.cost[self.norm(g)] + item.cost <= cap]
        if cand:
            if pack:
                part = [g for g in cand if self.cost[self.norm(g)] > 0]
                best = part[0] if part and part[0] <= cand[0] + 3 else cand[0]
            else: best = cand[0]
        else:
            best = min(range(lo, hi + 1), key=lambda g: self.cost[self.norm(g)])
        self.put(best, item); return best
    def linear(self, lo, hi, keep=lambda it: True):
        out = []
        order = {"s": 0, "dma": 1, "ds": 1, "v": 2, "t": 2}
        for g in range(lo, hi):
            if self.mf[g] is not None and keep(self.mf[g].it): out.append((g, "mf", self.mf[g].text))
            for item in sorted(self.gap[g], key=lambda x: order[x.kind]):
                if keep(item.it): out.append((g, item.kind, item.text))
        return out

def lgkm_waits(seq, slack=6):
    out = []; q = []
    mfi = [i for i, x in enumerate(seq) if x[1] == "mf"]
    nxt = dict(zip(mfi, mfi[1:]))
    def need(use, g):
        nonlocal q
        idx = -1
        for k, (gg, regs) in enumerate(q):
            if regs & use: idx = k
        if idx >= 0:
            while idx + 1 < len(q) and q[idx + 1][0] <= g - slack: idx += 1
            n = min(len(q) - 1 - idx, 15)
            out.append((g, "s", f"s_waitcnt lgkmcnt({n})"))
            q = q[len(q) - n:] if n else []
    for i, (g, k, t) in enumerate(seq):
        ins = Ins(t)
        if ins.op == "s_waitcnt" and "lgkmcnt(0)" in t: q = []
        if ins.kind != "label": need(ins.r | ins.w, g)
        if ins.kind == "ds": q.append((g, set(ins.w)))
        out.append((g, k, t))
        if k == "mf" and i in nxt:
            n = Ins(seq[nxt[i]][2]); need(n.r | n.w, g)
    return out

sK, sV, sX, sWQ, sO, sD = 8, 12, 16, 20, 24, 28
sPTR = 32
sW, sB, sH, sT0, sT1 = 3, 4, 5, 6, 7
sKo, sVo = 48, 50
sKs, sVs = 52, 53
sVm = 54
sCnt, sRedo = 58, 59
sXo, sXm, sWo_, sWm = 60, 61, 62, 63
sT2, sQs, sT3 = 64, 65, 66
sKb, sKm, sKd, sKw = 67, 68, 69, 86
sRg, sCg, sMt, sOdd = 87, 88, 89, 90
sW8 = 91
sPfo = 101
sFo = 62
sCP = 48
sPfx, sPfr = 39, 60
sKt2 = 39
sKmask, sVmask, sK0 = 32, 33, 38
sRot, sXc = 100, 101
sR4 = 63
sKt = 100
sST = 70
sST2 = 92
vKv = 1; vVv = 5; vPfd = 9
vQ = 12; vNM = 108; vL = 132; vS = 156; vP = 188; vKa = 204; vVa = 212; vOne = 228; vT = 232
vAcc = 108
aO = 0; aK = 192; aV = 224
KR = (131072, 98304, 65536); LDS_V = (0, 32768); LDS_EX = 65536
QSLOT = (0, 53248, 106496); LDS_TOTAL = 163840
UNIT_TILE = [0, 1, 2, 0, 1, 0, 1, 0, 1]
UNIT_KT =   [0, 0, 0, 1, 1, 2, 2, 3, 3]
FLAG_OFF = 0x1300000
PER = 33 if cfg.hyb else 34
NPV = PER - 16
Q1 = NPV - 9

def stamp(o, idx, alt=False):
    if cfg.pstamp and idx >= 5: return
    if cfg.sstamp and idx >= 5:
        if alt == 2: r = sST2 + 2 * (idx - 5); o.append(f"s_memtime s[{r}:{r+1}]")
        return
    if alt == 2: return
    if idx >= 5 and alt != cfg.ostamp: return
    if cfg.stamp:
        r = sST + 2 * idx if idx < 5 else sST2 + 2 * (idx - 5)
        o.append(f"s_memtime s[{r}:{r+1}]")

def k_dma():
    r = []
    for grp in range(2):
        for q in range(4):
            pre = []
            if q == 0: pre = [f"s_mov_b32 m0, s{sKm}"] if grp == 0 else [f"s_add_u32 m0, s{sKm}, 4096"]
            off = f" offset:{1024*q}" if q else ""
            r.append((pre, f"buffer_load_dwordx4 v{vKv+q}, s[{sK}:{sK+3}], s{sKo+grp} offen{off}{NT(cfg.kv_nt)} lds"))
    return r
def v_dma(slot):
    r = []
    for grp in range(2):
        for q in range(4):
            off = f" offset:{1024*q}" if q else ""
            r.append(([f"s_mov_b32 m0, s{sVm+2*slot+grp}"] if q == 0 else [],
                      f"buffer_load_dwordx4 v{vVv+q}, s[{sV}:{sV+3}], s{sVo+grp} offen{off}{NT(cfg.kv_nt)} lds"))
    return r
def adv(base, stride):
    m = sKmask if base == sKo else sVmask
    return [f"s_add_u32 s{base}, s{base}, s{stride}", f"s_add_u32 s{base+1}, s{base+1}, s{stride}",
            f"s_and_b32 s{base}, s{base}, s{m}", f"s_and_b32 s{base+1}, s{base+1}, s{m}"]
def flat(lst):
    out = []
    for pre, d in lst: out += pre + [d]
    return out

def place_dmas(S, lst, g, step, itf=lambda g: 0, limit=None):
    for pre, d in lst:
        gg = g
        while S.cost[S.norm(gg)] > 0: gg += 1
        if limit is not None: assert gg < limit, (gg, limit)
        for p in pre: S.put(gg - 1, Item(p, "s", itf(gg - 1)))
        S.put(gg, Item(d, "dma", itf(gg)))
        g = gg + step
    return g

def k_read(j, k16, c, base=None):
    va = (vKa + 2 * j if base is None else base) + (c & 1)
    return f"ds_read_b128 {ar(aK+16*k16+4*c,4)}, v{va} offset:{k16*4096 + (c>>1)*1024}"
def v_read(j, t, jj, slot):
    imm = LDS_V[slot] + jj * 4096 + (t >> 2) * 1024
    return f"ds_read_b64_tr_b16 {ar(aV+4*t+2*jj,2)}, v{vVa+4*j+(t&3)} offset:{imm}"

BG = PER * 7 + 16
LAST_TILE = [2, 0, 1, 0, 1, 0, 1, 0, 1]
def gen_attn_sched(peel=False):
    NU = 18; N = NU * PER; CUT = 17 * PER
    S = Sched(N, periodic=True)
    tile = lambda n: (LAST_TILE[n - 9] if (peel and 9 <= n < 18) else UNIT_TILE[n % 9])
    kt = lambda n: UNIT_KT[n % 9]
    slot = lambda n: (n // 9) & 1
    last = lambda n: UNIT_KT[n % 9] != UNIT_KT[(n + 1) % 9] or n % 9 == 8
    for n in range(NU):
        u = n + 1; it = 1 if u == NU else 0
        for i in range(16):
            q, k16, c = i >> 3, (i >> 2) & 1, i & 3
            if cfg.qkord: q, k16, c = i & 1, i >> 3, (i >> 1) & 3
            qt = 2 * tile(u) + q; sb = vS + 16 * (u & 1) + 8 * q + 4 * k16
            cin = vr(vNM + 4 * qt, 4) if c == 0 else vr(sb, 4)
            S.mf[PER*n + i] = Item(f"{MF} {vr(sb,4)}, {ar(aK+16*k16+4*c,4)}, {vr(vQ+16*qt+4*c,4)}, {cin}", "mf", it)
        for i in range(NPV):
            q, t = (0, i) if i < Q1 else (1, i - Q1)
            qt = 2 * tile(n) + q; pb = vr(vP + 8 * (n & 1) + 4 * q, 4)
            if t < 8:
                o = ar(aO + 32 * qt + 4 * t, 4)
                S.mf[PER*n + 16 + i] = Item(f"{MF} {o}, {ar(aV+4*t,4)}, {pb}, {o}", "mf")
            else:
                l = vr(vL + 4 * qt, 4)
                S.mf[PER*n + 16 + i] = Item(f"{MF} {l}, {vr(vOne,4)}, {pb}, {l}", "mf")
    for n in range(1, NU + 1):
        sb = vS + 16 * (n & 1); pb = vP + 8 * (n & 1)
        itf = lambda g: 1 if (n == NU and g < N) else 0
        for j in range(16):
            g = PER * (n - 1) + cfg.e0 + 2 * j
            S.put(g, Item(f"v_exp_f32 v{sb+j}, v{sb+j}", "t", itf(g)))
            if j & 1: S.put(g + 1, Item(f"v_cvt_pk_bf16_f32 v{pb+(j>>1)}, v{sb+j-1}, v{sb+j}", "v", itf(g + 1)))
    def place_adds():
        if not cfg.hyb: return
        for n in range(1, NU + 1):
            sb = vS + 16 * (n & 1); l = vL + 8 * tile(n)
            for j in range(8):
                g = PER * (n - 1) + cfg.e0 + 2 * j + 1
                item = Item(f"v_add_f32 v{l+(j&1)}, v{l+(j&1)}, v{sb+j}", "v")
                gg = S.put_win(g, PER * (n + 1) - 4, item, pack=True)
                if n == NU and gg < N: item.it = 1
    bar = [BG, 9 * PER + BG]
    for bi, b in enumerate(bar):
        if cfg.lstamp: S.put(b, Item("s_memtime s[96:97]", "s"))
        S.put(b, Item("s_waitcnt vmcnt(8) lgkmcnt(0)", "s")); S.put(b, Item("s_barrier", "s"))
        if cfg.lstamp:
            S.put(b, Item(f"v_mov_b32 v240, s96", "s")); S.put(b, Item("s_memtime s[96:97]", "s")); S.put(b, Item("s_waitcnt lgkmcnt(0)", "s"))
            S.put(b, Item(f"v_mov_b32 v241, s96", "s"))
            S.put(b, Item(f"buffer_store_dwordx2 v[240:241], v242, s[{sX}:{sX+3}], 0 offen", "s")); S.put(b, Item(f"v_add_u32 v242, 8, v242", "s"))
        S.put(b, Item(f"SWITCH{bi}:", "s"))
    for n in range(NU):
        if last(n):
            nu = n + 1
            for t in range(8):
                for jj in range(2):
                    lo = PER*n + 16 + Q1 + t; hi = lo + 15
                    if nu % 9 == 7: hi = min(hi, PER*(n+1) + 10)
                    item = Item(v_read(kt(nu), t, jj, slot(nu)), "ds")
                    g = S.put_win(lo, hi, item, pack=True)
                    if nu >= NU and g < N: item.it = 1
    for n in range(NU):
        u = n + 1
        if last(u):
            nu = u + 1; it = 1 if nu >= NU else 0
            for idx in range(8):
                lo = PER*n + 8 + idx; hi = lo + 16
                if cfg.qkord: lo = PER*n + 2 * idx + 1; hi = lo + PER - 11
                if u % 9 == 8: lo = max(lo, PER*n + 16)
                S.put_win(lo, hi, Item(k_read(kt(nu), idx >> 2, idx & 3), "ds", it), pack=True)
    if peel:
        place_adds(); return S, bar
    for bi, b in enumerate(bar):
        g0 = b - 40
        for l in [f"s_mov_b32 s{sKt}, s{sKb}", f"s_cmp_eq_u32 s{sKb}, s{sKw}"]: S.put(g0, Item(l, "s"))
        S.put(b + 1, Item(f"s_mov_b32 s{sKm}, s{sKt}", "s"))
        S.put(g0, Item(f"s_cselect_b32 s{sKd}, s{sT3}, s{sQs}", "s"))
        S.put(g0 + 1, Item(f"s_add_u32 s{sKb}, s{sKb}, s{sKd}", "s"))
        for i in range(8): S.put_win(g0 + 2, b - 1, Item(f"v_add_u32 v{vKa+i}, s{sKd}, v{vKa+i}", "v"), pack=True)
        itf = lambda g: 1 if (bi == 1 and g < N) else 0
        lv = v_dma(bi); lk = k_dma()
        lv[0] = (adv(sVo, sVs) + lv[0][0], lv[0][1]); lk[0] = (adv(sKo, sKs) + lk[0][0], lk[0][1])
        st0 = (b + 2) if bi == 0 else CUT + 1
        lim = b + 9 * PER - 14
        step = min(cfg.dma_step, (lim - 36 - st0) / 15)
        g = st0
        for i, x in enumerate(lv + lk):
            g = place_dmas(S, [x], max(g, st0 + int((i - i % cfg.dgrp) * step)), 2 if cfg.dgrp == 1 else 1, itf, limit=lim)
    if False:
        for i, g in enumerate(int(x) for x in cfg.pfpos.split(",")):
            place_dmas(S, [([f"s_add_u32 s{sPfo}, s{sPfo}, {(32 << cfg.pfsh) if cfg.pfsh else 262144 // len(cfg.pfpos.split(','))}", f"s_xor_b32 s{sPfx}, s{sPfo}, s{sPfr}"], f"buffer_load_dword v{vPfd}, v{vPfo}, s[{sD}:{sD+3}], s{sPfx} offen{NT(cfg.pf_nt)} ; pf{i}")], g, 1, itf=lambda g: 1 if g >= CUT else 0)
    place_adds()
    for bi, b in enumerate(bar):
        n = 0; g = b - 1
        while True:
            its = [x for x in S.gap[g % N] if x.kind == "dma"]
            if its and f"s[{sV}:{sV+3}]" in its[0].text: break
            n += len(its); g -= 1
        for x in S.gap[b]:
            if "vmcnt(8)" in x.text: x.text = x.text.replace("vmcnt(8)", f"vmcnt({n})")
    return S, bar

def kv_setup(e, t):
    r8, p8, tA, tB, tC = t, t+1, t+2, t+3, t+4
    e(f"v_lshrrev_b32 v{r8}, 3, v0"); e(f"v_and_b32 v{p8}, 7, v0"); e(f"v_lshrrev_b32 v{tA}, 1, v{r8}")
    e(f"v_xor_b32 v{tB}, v{tA}, v{p8}"); e(f"v_lshlrev_b32 v{tC}, 8, v{r8}")
    e(f"v_lshl_add_u32 v{vKv+1}, v{tB}, 4, v{tC}"); e(f"v_xor_b32 v{vKv+3}, 64, v{vKv+1}")
    e(f"v_add_u32 v{vKv}, 1024, v{vKv+1}"); e(f"v_add_u32 v{vKv+2}, 1024, v{vKv+3}")
    e(f"v_add_u32 v{vKv+1}, 128, v{vKv+1}"); e(f"v_add_u32 v{vKv+3}, 128, v{vKv+3}")
    e(f"v_lshlrev_b32 v{tB}, 1, v{tA}"); e(f"v_xor_b32 v{tB}, v{tB}, v{p8}")
    e(f"v_lshl_add_u32 v{vVv+1}, v{tB}, 4, v{tC}")
    e(f"v_add_u32 v{vVv}, 1024, v{vVv+1}"); e(f"v_add_u32 v{vVv+1}, 128, v{vVv+1}")
    e(f"v_mov_b32 v{vVv+2}, v{vVv}"); e(f"v_mov_b32 v{vVv+3}, v{vVv+1}")
    e(f"s_lshl_b32 s{sT0}, s{sB}, 5"); e(f"s_add_u32 s{sT0}, s{sT0}, s{sH}"); e(f"s_lshl_b32 s{sT0}, s{sT0}, 18")
    for s, p in ((sK, sPTR + 2), (sV, sPTR + 4)):
        e(f"s_add_u32 s{s}, s{p}, s{sT0}"); e(f"s_addc_u32 s{s+1}, s{p+1}, 0")
        e(f"s_sub_u32 s{s}, s{s}, 1024"); e(f"s_subb_u32 s{s+1}, s{s+1}, 0")
        e(f"s_mov_b32 s{s+2}, {262144+1024}"); e(f"s_mov_b32 s{s+3}, 0x20000")
    e(f"s_lshr_b32 s{sK0}, s2, 3"); e(f"s_xor_b32 s{sK0}, s{sK0}, s2"); e(f"s_and_b32 s{sK0}, s{sK0}, {cfg.krot}"); e(f"s_lshl_b32 s{sK0}, s{sK0}, 15")
    e(f"s_add_u32 s{sK0}, s{sK0}, s{sW8}"); e(f"s_mov_b32 s{sKmask}, 0x3ffff"); e(f"s_mov_b32 s{sVmask}, 0x3ffff")
    for b_ in (sKo, sVo):
        e(f"s_mov_b32 s{b_}, s{sK0}"); e(f"s_add_u32 s{b_+1}, s{sK0}, 4096")
    e(f"s_mov_b32 s{sKs}, 32768"); e(f"s_mov_b32 s{sVs}, 32768")
    e(f"s_add_u32 s{sKb}, s{sW8}, {KR[0]}"); e(f"s_mov_b32 s{sKm}, s{sKb}"); e(f"s_add_u32 s{sKw}, s{sW8}, {KR[2]}")

def att_addr(t):
    L = []; e = L.append
    tA, tB, tC, q16, kg, r4, c4, k0 = t, t+1, t+2, t+3, t+4, t+5, t+6, t+7
    e(f"v_and_b32 v{q16}, 15, v0"); e(f"v_lshrrev_b32 v{kg}, 4, v0")
    e(f"v_lshrrev_b32 v{tA}, 3, v{q16}"); e(f"v_lshlrev_b32 v{tA}, 11, v{tA}")
    e(f"v_and_b32 v{tB}, 7, v{q16}"); e(f"v_lshl_add_u32 v{tA}, v{tB}, 7, v{tA}")
    e(f"v_lshrrev_b32 v{tB}, 1, v{q16}"); e(f"v_xor_b32 v{tB}, v{tB}, v{kg}")
    e(f"v_lshl_add_u32 v{k0}, v{tB}, 4, v{tA}"); e(f"v_add_u32 v{k0}, {KR[0]}, v{k0}"); e(f"v_xor_b32 v{k0+1}, 64, v{k0}")
    n1 = len(L)
    e(f"v_bfe_u32 v{r4}, v0, 2, 2"); e(f"v_and_b32 v{c4}, 3, v0")
    e(f"v_and_b32 v{tA}, 1, v{kg}"); e(f"v_lshl_add_u32 v{tA}, v{tA}, 2, v{r4}")
    e(f"v_lshrrev_b32 v{tB}, 1, v{tA}"); e(f"v_lshlrev_b32 v{tB}, 5, v{tB}"); e(f"v_lshl_add_u32 v{tB}, v{tA}, 7, v{tB}")
    e(f"v_lshrrev_b32 v{tA}, 1, v{kg}"); e(f"v_lshl_add_u32 v{tB}, v{tA}, 11, v{tB}"); e(f"v_lshl_add_u32 v{tC}, v{c4}, 3, v{tB}")
    for j in range(4):
        e(f"s_add_u32 s{sT0}, s{sW}, {j}"); e(f"s_and_b32 s{sT0}, s{sT0}, 3"); e(f"s_lshl_b32 s{sT0}, s{sT0}, 13")
        for c in range(2): e(f"v_add_u32 v{vKa+2*j+c}, s{sT0}, v{k0+c}")
        e(f"v_add_u32 v{vVa+4*j}, s{sT0}, v{tC}")
        for k in range(1, 4): e(f"v_xor_b32 v{vVa+4*j+k}, {32*k}, v{vVa+4*j}")
    for i in range(4): e(f"v_mov_b32 v{vOne+i}, 0x3f803f80")
    return L[:n1], L[n1:], k0

def wo_voff(e, dst, t):
    r8, p8, tA, tB = t, t+1, t+2, t+3
    e(f"v_lshrrev_b32 v{r8}, 3, v0"); e(f"v_and_b32 v{p8}, 7, v0")
    e(f"v_bfe_u32 v{tA}, v{r8}, 1, 2"); e(f"v_lshlrev_b32 v{tA}, 1, v{tA}"); e(f"v_xor_b32 v{tA}, v{tA}, v{p8}")
    e(f"v_lshlrev_b32 v{tB}, 10, v{r8}"); e(f"v_lshl_add_u32 v{dst}, v{tA}, 4, v{tB}")
    for q in range(1, 4): e(f"v_add_u32 v{dst+q}, {7168*q}, v{dst}")
def wo_srd(e, s):
    e(f"s_lshl_b32 s{sT0}, s{sCg}, 7")
    e(f"s_add_u32 s{s}, s{sPTR+8}, s{sT0}"); e(f"s_addc_u32 s{s+1}, s{sPTR+9}, 0")
    e(f"s_sub_u32 s{s+2}, 4194304, s{sT0}"); e(f"s_mov_b32 s{s+3}, 0x20000")

vPfo = 243
vRa = 244
def wo_pf(e, srd, first, n):
    e(f"v_lshlrev_b32 v{vT}, 12, v0"); e(f"s_lshl_b32 s{sT0}, s{sW}, 20"); e(f"s_lshl_b32 s{sT1}, s{sRg}, 10"); e(f"s_add_u32 s{sT0}, s{sT0}, s{sT1}")
    e(f"s_add_u32 s{sT0}, s{sT0}, {first*32768}")
    for i in range(n):
        if i: e(f"s_add_u32 s{sT0}, s{sT0}, 262144")
        part = first + 8 * i + 8 > 32
        if part: e(f"s_mov_b64 exec, {(1 << (8 * (32 - first - 8 * i))) - 1:#x}")
        e(f"buffer_load_dword v{vPfd}, v{vT}, s[{srd}:{srd+3}], s{sT0} offen")
        if part: e("s_mov_b64 exec, -1")
def switch_block(bi):
    L = []; e = L.append
    e(f"s_cmp_lg_u32 s{sCnt}, {2 if bi == 1 else 1}"); e(f"s_cbranch_scc1 L_sw{bi}")
    if bi == 1:
        wo_voff(e, vKv, vT); wo_srd(e, sK); e(f"s_mov_b32 s{sKmask}, -1")
        e(f"s_and_b32 s{sR4}, s{sCg}, {cfg.orot}"); e(f"s_lshl_b32 s{sR4}, s{sR4}, 15"); e(f"s_lshl_b32 s{sT1}, s{sW}, 20"); e(f"s_or_b32 s{sR4}, s{sR4}, s{sT1}")
        if cfg.xrot: e(f"s_and_b32 s{sT1}, s2, 7"); e(f"s_lshl_b32 s{sT1}, s{sT1}, 17"); e(f"s_xor_b32 s{sR4}, s{sR4}, s{sT1}")
        e(f"s_mov_b32 s{sKs}, 0"); e(f"s_mov_b32 s{sKo}, s{sR4}"); e(f"s_mov_b32 s{sKo+1}, 0x40000000")
        kg, r4, c4, tA, tB = vT, vT+1, vT+2, vT+3, vT+4
        e(f"v_lshrrev_b32 v{kg}, 4, v0"); e(f"v_bfe_u32 v{r4}, v0, 2, 2"); e(f"v_and_b32 v{c4}, 3, v0")
        e(f"v_and_b32 v{tA}, 1, v{kg}"); e(f"v_lshl_add_u32 v{tA}, v{tA}, 2, v{r4}")
        e(f"v_lshrrev_b32 v{tB}, 1, v{tA}"); e(f"v_lshlrev_b32 v{tB}, 5, v{tB}")
        e(f"v_lshl_add_u32 v{tB}, v{tA}, 7, v{tB}"); e(f"v_lshrrev_b32 v{tA}, 1, v{kg}"); e(f"v_lshl_add_u32 v{tB}, v{tA}, 10, v{tB}")
        e(f"v_lshl_add_u32 v{tB}, v{c4}, 3, v{tB}"); e(f"v_add_u32 v{vRa}, s{sW8}, v{tB}")
        if cfg.fastred: e(f"s_lshl_b32 s{sT1}, s{sW}, 5"); e(f"v_xor_b32 v{vRa}, s{sT1}, v{vRa}")
        for nt in range(1, 4): e(f"v_xor_b32 v{vRa+nt}, {32*nt}, v{vRa}")
        for s_ in range(1, 3):
            for nt in range(4): e(f"v_add_u32 v{vRa+4*s_+nt}, {65536*s_}, v{vRa+nt}")
        e(f"v_lshlrev_b32 v10, 4, v0"); e(f"s_lshl_b32 s{sWo_}, s{sW}, 20")
        if cfg.pfcut: e(f"s_mov_b32 s{sD+2}, 0")
        if cfg.pflate:
            e(f"s_mov_b32 s{sD+2}, 4194304")
            e(f"s_lshr_b32 s{sPfo}, s2, 3"); e(f"s_lshl_b32 s{sPfo}, s{sPfo}, 13"); e(f"s_add_u32 s{sPfo}, s{sPfo}, s{sWo_}"); e(f"s_sub_u32 s{sPfo}, s{sPfo}, 262144")
    elif bi == 0:
        for q in range(4): e(f"v_mov_b32 v{vVv+q}, v{vKv+q}")
        wo_srd(e, sV); e(f"s_mov_b32 s{sVmask}, -1")
        if cfg.cpf2:
            e(f"s_getpc_b64 s[{sT0}:{sT1}]"); e("L_pc1:")
            e(f"s_add_u32 s{sT0}, s{sT0}, L_tail-L_pc1"); e(f"s_addc_u32 s{sT1}, s{sT1}, 0")
            e(f"s_lshr_b32 s{sT2}, s2, 3"); e(f"s_lshl_b32 s{sT2}, s{sT2}, 2"); e(f"s_add_u32 s{sT2}, s{sT2}, s{sW}"); e(f"s_lshl_b32 s{sT2}, s{sT2}, 6")
            e(f"v_min_u32 v{vT}, 1, v0"); e(f"v_lshlrev_b32 v{vT}, 13, v{vT}"); e(f"v_add_u32 v{vT}, s{sT2}, v{vT}")
            e(f"global_load_dword v{vPfd}, v{vT}, s[{sT0}:{sT1}]")
        e(f"s_xor_b32 s{sVo}, s{sR4}, 65536"); e(f"s_xor_b32 s{sVo+1}, s{sR4}, 98304"); e(f"s_mov_b32 s{sVs}, 0")
    e(f"L_sw{bi}:")
    L, _ = check_hazards(L, "sw", fix=True)
    return L

def gen():
    o = []; e = o.append
    e(f"{cfg.name}:")
    e("s_cmp_ge_u32 s2, 256"); e("s_cbranch_scc1 L_end")
    e(f"s_load_dwordx16 s[{sPTR}:{sPTR+15}], s[0:1], 0")
    stamp(o, 0)
    if cfg.stamp: e(f"s_memrealtime s[{sST+14}:{sST+15}]")
    e("v_lshrrev_b32 v1, 6, v0"); e("v_and_b32 v0, 63, v0"); e(f"v_readfirstlane_b32 s{sW}, v1")
    e(f"s_mov_b32 s{sRedo}, 0")
    e("L_restart:")
    if cfg.map_bh == "b":
        e(f"s_and_b32 s{sB}, s2, 7"); e(f"s_lshr_b32 s{sH}, s2, 3")
    else:
        e(f"s_lshr_b32 s{sB}, s2, 5"); e(f"s_and_b32 s{sT0}, s2, 7"); e(f"s_lshl_b32 s{sT0}, s{sT0}, 2")
        e(f"s_bfe_u32 s{sT1}, s2, 0x20003"); e(f"s_add_u32 s{sH}, s{sT0}, s{sT1}")
    t = vT
    r8, p8, tA, tB, tC = t, t+1, t+2, t+3, t+4
    vB = vQ; vAd = vQ + 40; vXv = vQ + 60; vWv = vQ + 62; vSh = vQ + 64
    e(f"v_lshrrev_b32 v{r8}, 3, v0"); e(f"v_and_b32 v{p8}, 7, v0")
    e(f"v_lshrrev_b32 v{tA}, 1, v{r8}")
    e(f"v_and_b32 v{tB}, 1, v{tA}"); e(f"v_lshlrev_b32 v{tB}, 1, v{tB}"); e(f"v_xor_b32 v{tB}, v{tB}, v{p8}")
    e(f"v_lshlrev_b32 v{tC}, 13, v{r8}"); e(f"v_lshl_add_u32 v{vWv}, v{tB}, 4, v{tC}")
    e(f"s_and_b32 s{sT0}, s{sW}, 1"); e(f"s_lshl_b32 s{sT1}, s{sT0}, 6"); e(f"v_xor_b32 v{vWv}, s{sT1}, v{vWv}"); e(f"s_lshl_b32 s{sT0}, s{sT0}, 2")
    e(f"v_xor_b32 v{tB}, v{tA}, v{p8}"); e(f"v_xor_b32 v{tC+1}, s{sT0}, v{tB}")
    e(f"v_lshlrev_b32 v{tC}, 10, v{r8}"); e(f"v_lshl_add_u32 v{vXv}, v{tC+1}, 4, v{tC}"); e(f"v_xor_b32 v{vXv+1}, 64, v{vXv}")
    e(f"s_mul_i32 s{sXo}, s{sW}, {9*8192}"); e(f"s_mul_i32 s{sXm}, s{sW}, {9*1024}")
    e(f"s_lshl_b32 s{sWo_}, s{sW}, 16"); e(f"s_lshl_b32 s{sWm}, s{sW}, 11"); e(f"s_add_u32 s{sWm}, s{sWm}, 36864")
    e(f"s_mul_i32 s{sT0}, s{sB}, 294912"); e(f"s_lshl_b32 s{sT1}, s{sH}, 8")
    e(f"s_mov_b32 s{sX+2}, 294912"); e(f"s_mov_b32 s{sX+3}, 0x20000")
    e(f"s_sub_u32 s{sWQ+2}, 4194304, s{sT1}"); e(f"s_mov_b32 s{sWQ+3}, 0x20000")
    e(f"s_add_u32 s{sRot}, s{sH}, s{sB}"); e(f"s_and_b32 s{sRot}, s{sRot}, {cfg.qrot}")
    if cfg.qx: e(f"s_and_b32 s{sXc}, s2, {cfg.qx}"); e(f"s_xor_b32 s{sRot}, s{sRot}, s{sXc}")
    if cfg.cpf:
        e("s_getpc_b64 s[96:97]"); e("L_pc0:")
        e(f"s_lshr_b32 s98, s2, 3"); e(f"s_lshl_b32 s98, s98, 2"); e(f"s_add_u32 s98, s98, s{sW}"); e("s_lshl_b32 s98, s98, 6")
    stamp(o, 5, 2)
    e("s_waitcnt lgkmcnt(0)")
    stamp(o, 6, 2)
    if cfg.cpf:
        for i in range(cfg.cpf_n):
            e(f"s_load_dword s99, s[96:97], s98"); e("s_add_u32 s98, s98, 8192")
    e(f"s_add_u32 s{sX}, s{sPTR+0}, s{sT0}"); e(f"s_addc_u32 s{sX+1}, s{sPTR+1}, 0")
    e(f"s_add_u32 s{sWQ}, s{sPTR+6}, s{sT1}"); e(f"s_addc_u32 s{sWQ+1}, s{sPTR+7}, 0")
    def q_dma(c):
        r = []; sl = QSLOT[c % 3]
        for q in range(4):
            go = (q >> 1) * 262144 + (q & 1) * 128
            rot = [f"s_xor_b32 s{sXc}, s{sRot}, {c}", f"s_lshl_b32 s{sT3}, s{sXc}, 19", f"s_add_u32 s{sT3}, s{sT3}, s{sWo_}",
                   f"s_lshl_b32 s{sXc}, s{sXc}, 7", f"s_add_u32 s{sXc}, s{sXc}, s{sXo}"] if q == 0 else []
            r.append((rot + [f"s_add_u32 m0, s{sWm}, {sl + 8192*(q>>1) + 1024*(q&1)}", f"s_add_u32 s{sT2}, s{sT3}, {go}"],
                      f"buffer_load_dwordx4 v{vWv}, s[{sWQ}:{sWQ+3}], s{sT2} offen{NT(cfg.q_nt)} lds ; chunk {c}"))
        for i in range(9):
            r.append(([f"s_add_u32 m0, s{sXm}, {sl + 1024*i}", f"s_add_u32 s{sT2}, s{sXc}, {i*8192}"],
                      f"buffer_load_dwordx4 v{vXv+(i&1)}, s[{sX}:{sX+3}], s{sT2} offen{NT(cfg.q_nt)} lds ; chunk {c}"))
        return r
    d0_ = q_dma(0)
    o += flat(d0_[:2] + d0_[4:] if cfg.qstart == 2 else d0_)
    stamp(o, 7, 2)
    e(f"s_lshl_b32 s{sW8}, s{sW}, 13")
    kv_setup(e, t)
    for sl in range(2):
        for g in range(2): e(f"s_add_u32 s{sVm+2*sl+g}, s{sW8}, {LDS_V[sl] + 4096*g}")
    e(f"s_mul_i32 s{sT0}, s{sB}, 2359296")
    e(f"s_add_u32 s{sO}, s{sPTR+14}, s{sT0}"); e(f"s_addc_u32 s{sO+1}, s{sPTR+15}, 0")
    e(f"s_mov_b32 s{sO+2}, 2359296"); e(f"s_mov_b32 s{sO+3}, 0x20000")
    e(f"s_lshr_b32 s{sCg}, s2, 5"); e(f"s_and_b32 s{sOdd}, s2, 1")
    e(f"s_bfe_u32 s{sRg}, s2, 0x20001"); e(f"s_bfe_u32 s{sT0}, s2, 0x10003"); e(f"s_lshl_b32 s{sT0}, s{sT0}, 2"); e(f"s_add_u32 s{sRg}, s{sRg}, s{sT0}")
    e(f"s_bfe_u32 s{sT0}, s2, 0x10004"); e(f"s_lshl_b32 s{sMt}, s{sRg}, 1"); e(f"s_add_u32 s{sMt}, s{sMt}, s{sT0}"); e(f"s_mul_i32 s{sMt}, s{sMt}, 9")
    if cfg.tlb:
        e(f"s_load_dword s99, s[{sK}:{sK+1}], 1024"); e(f"s_load_dword s99, s[{sV}:{sV+1}], 1024")
        e(f"s_lshl_b32 s98, s{sW}, 19"); e(f"s_load_dword s99, s[{sO}:{sO+1}], s98"); e(f"s_mov_b32 s98, {16*131072}"); e(f"s_load_dword s99, s[{sO}:{sO+1}], s98")
        e(f"s_lshl_b32 s98, s{sMt}, 17"); e(f"s_load_dword s99, s[{sPTR+14}:{sPTR+15}], s98"); e(f"s_add_u32 s98, s98, {4*131072-4}"); e(f"s_load_dword s99, s[{sPTR+14}:{sPTR+15}], s98")
        e(f"s_lshl_b32 s98, s{sW}, 20"); e(f"s_load_dword s99, s[{sPTR+8}:{sPTR+9}], s98")
        e(f"s_lshl_b32 s98, s{sMt}, 14"); e(f"s_load_dword s99, s[{sPTR+10}:{sPTR+11}], s98"); e(f"s_load_dword s99, s[{sPTR+12}:{sPTR+13}], 0")
    q16, kg, r4, c4 = t+6, t+7, t+8, t+9
    e(f"v_and_b32 v{q16}, 15, v0"); e(f"v_lshrrev_b32 v{kg}, 4, v0"); e(f"v_bfe_u32 v{r4}, v0, 2, 2"); e(f"v_and_b32 v{c4}, 3, v0")
    e(f"v_lshrrev_b32 v{tA}, 3, v{q16}"); e(f"v_lshlrev_b32 v{tA}, 10, v{tA}")
    e(f"v_and_b32 v{tB}, 7, v{q16}"); e(f"v_lshl_add_u32 v{tA}, v{tB}, 7, v{tA}")
    e(f"v_lshrrev_b32 v{tB}, 1, v{q16}"); e(f"v_xor_b32 v{tB}, v{tB}, v{kg}")
    e(f"v_lshl_add_u32 v{vAd}, v{tB}, 4, v{tA}"); e(f"v_xor_b32 v{vAd+1}, 64, v{vAd}")
    e(f"v_add_u32 v{vAd+2}, s{sW8}, v{vAd}"); e(f"v_add_u32 v{vAd+3}, s{sW8}, v{vAd+1}")
    e(f"v_lshrrev_b32 v{tA}, 1, v{r4}"); e(f"v_and_b32 v{tB}, 1, v{kg}"); e(f"v_lshl_add_u32 v{tA}, v{tB}, 1, v{tA}")
    e(f"v_lshlrev_b32 v{tA}, 5, v{tA}"); e(f"v_lshl_add_u32 v{tA}, v{c4}, 3, v{tA}"); e(f"v_lshl_add_u32 v{tA}, v{r4}, 7, v{tA}")
    e(f"v_lshl_add_u32 v{tA}, v{kg}, 11, v{tA}"); e(f"v_add_u32 v{vAd+4}, 36864, v{tA}")
    for k in range(1, 4): e(f"v_xor_b32 v{vAd+4+k}, {32*k}, v{vAd+4}")
    e(f"s_and_b32 s{sT0}, s{sW}, 1"); e(f"s_lshl_b32 s{sT0}, s{sT0}, 6"); e(f"s_lshr_b32 s{sT1}, s{sW}, 1"); e(f"s_lshl_b32 s{sT1}, s{sT1}, 10")
    e(f"v_xor_b32 v{vAd+8}, s{sT0}, v{vAd+4}"); e(f"v_add_u32 v{vAd+8}, s{sT1}, v{vAd+8}"); e(f"v_xor_b32 v{vAd+9}, 32, v{vAd+8}")
    e(f"s_mov_b32 s{sQs}, {QSCALE:#x}")
    if cfg.wwpos:
        e(f"s_mov_b32 s{sD}, s{sPTR+8}"); e(f"s_mov_b32 s{sD+1}, s{sPTR+9}"); e(f"s_mov_b32 s{sD+2}, 4194304"); e(f"s_mov_b32 s{sD+3}, 0x20000")
        e(f"v_and_b32 v254, 31, v0"); e(f"v_lshlrev_b32 v254, 7, v254"); e(f"s_lshl_b32 s{sKt2}, s2, 14"); e(f"s_lshl_b32 s{sT1}, s{sW}, 12"); e(f"s_add_u32 s{sKt2}, s{sKt2}, s{sT1}")
    if cfg.pkq: e(f"v_mov_b32 v252, s{sQs}"); e(f"v_mov_b32 v253, s{sQs}")
    if cfg.k0pf: e("v_lshlrev_b32 v252, 7, v0"); e("v_add_u32 v252, 1024, v252")

    sQa, sQb = 96, 97
    qpf_pre = ["v_mul_u32_u24 v254, 21846, v0", "v_lshrrev_b32 v254, 16, v254", "v_mul_u32_u24 v255, 3, v254", "v_sub_u32 v255, v0, v255",
               "v_min_u32 v254, 17, v254", "v_lshlrev_b32 v254, 10, v254", "v_lshl_add_u32 v254, v255, 7, v254",
               "v_min_u32 v255, 11, v0", f"v_and_b32 v{vPfd}, 1, v255", "v_lshrrev_b32 v255, 1, v255", "v_lshlrev_b32 v255, 13, v255", f"v_lshl_add_u32 v255, v{vPfd}, 7, v255",
               f"s_and_b32 s{sQa}, s{sH}, 3", f"s_lshl_b32 s{sQa}, s{sQa}, 2", f"s_add_u32 s{sQa}, s{sQa}, s{sW}", f"s_mul_i32 s{sQa}, s{sQa}, {18*1024}",
               f"s_lshl_b32 s{sQb}, s{sB}, 2", f"s_add_u32 s{sQb}, s{sQb}, s{sW}", f"s_mul_i32 s{sQb}, s{sQb}, {6*8192}"]
    def qpf_l(c0):
        return [([f"s_add_u32 s{sQa}, s{sQa}, {128*(c0 if c0 == 2 else 3)}"], f"buffer_load_dword v{vPfd}, v254, s[{sX}:{sX+3}], s{sQa} offen"),
                ([f"s_add_u32 s{sQb}, s{sQb}, {64*8192*(c0 if c0 == 2 else 3)}"], f"buffer_load_dword v{vPfd}, v255, s[{sWQ}:{sWQ+3}], s{sQb} offen")]
    NQ = 16 * 36
    S = Sched(NQ)
    fA = lambda t_: aK + 4 * t_
    fB = lambda p, q: vB + 16 * p + 4 * q
    fBs = lambda q: vB + 32 + 4 * q
    acc = lambda q, t_: vAcc + 32 * q + 4 * t_
    accs = lambda qs, u: vAcc + 128 + 8 * qs + 4 * u
    def rdA(ks, t_, jj):
        ad = vAd + 10 * ((ks >> 1) & 1); s = ks & 1
        if t_ < 8: return f"ds_read_b64_tr_b16 {ar(fA(t_)+2*jj,2)}, v{ad+4+(t_&3)} offset:{s*8192+(t_>>2)*1024+jj*512}"
        return f"ds_read_b64_tr_b16 {ar(fA(t_)+2*jj,2)}, v{ad+t_} offset:{s*8192+jj*512}"
    def rdB(ks, q):
        ad = vAd + 10 * ((ks >> 1) & 1); s = ks & 1
        if q < 4: return f"ds_read_b128 {vr(fB(ks&1,q),4)}, v{ad+2+s} offset:{2048*q}"
        return f"ds_read_b128 {vr(fBs(q-4),4)}, v{ad+s} offset:{32768+2048*(q-4)}"
    for ks in range(16):
        for i in range(36):
            if i < 32: t_, q = i >> 2, i & 3; a_, A, Bf = acc(q, t_), fA(t_), fB(ks & 1, q)
            else: u, qs = (i - 32) >> 1, i & 1; a_, A, Bf = accs(qs, u), fA(8 + u), fBs(qs)
            S.mf[36*ks + i] = Item(f"{MF} {vr(a_,4)}, {ar(A,4)}, {vr(Bf,4)}, {'0' if ks == 0 else vr(a_,4)}", "mf")
    QB = cfg.QB
    for c in range(8):
        gb = 72 * c + 36 + QB
        n = (13 + (cfg.wowarm if c == 0 else 0)) if c <= 5 else (8 if c == 6 else None)
        if cfg.k0pf and c in (cfg.k0pf, cfg.k0pf + 1): n += 1
        if cfg.wwpos and c in (cfg.wwpos, cfg.wwpos + 1) and n is not None: n += 1
        if cfg.qstamp: S.put(gb, Item("s_memtime s[96:97]", "s"))
        S.put(gb, Item(f"s_waitcnt vmcnt(CH{c+1}) lgkmcnt(0)" if n is not None else "s_waitcnt lgkmcnt(0)", "s"))
        S.put(gb, Item("s_barrier", "s"))
        if cfg.qstamp:
            S.put(gb, Item(f"v_mov_b32 v252, s96", "s")); S.put(gb, Item("s_memtime s[96:97]", "s")); S.put(gb, Item("s_waitcnt lgkmcnt(0)", "s"))
            S.put(gb, Item(f"v_mov_b32 v253, s96", "s"))
            S.put(gb, Item(f"buffer_store_dwordx2 v[252:253], v254, s[{sD}:{sD+3}], 0 offen", "s")); S.put(gb, Item(f"v_add_u32 v254, 8, v254", "s"))
    for ks in range(16):
        base = 36 * ks
        if ks:
            for k_, r in enumerate([rdA(ks, 8, 0), rdA(ks, 8, 1), rdB(ks, 4), rdB(ks, 5), rdA(ks, 9, 0), rdA(ks, 9, 1)]):
                S.put(base + (k_ >> 1), Item(r, "ds"))
        if ks < 15:
            lo0 = base + (QB if ks & 1 else 3)
            for q in range(4): S.put_win(lo0, base + 24, Item(rdB(ks + 1, q), "ds"))
            for t_ in range(8):
                for jj in range(2):
                    lo = max(base + 4 * t_ + 3, lo0)
                    if ks == 0 and cfg.qstart == 2: lo = max(lo, cfg.qb0)
                    g_r = S.put_win(lo, min(lo + 20, NQ - 1), Item(rdA(ks + 1, t_, jj), "ds"))
                    assert g_r < base + 36 + 4 * t_ - 6 and (ks & 1 or g_r < base + 36 + QB - 4), (ks, t_, g_r)
    for c in range(8):
        gb = 72 * c + 36 + QB
        if c + 3 < 8: lst = q_dma(c + 3)
        elif c == 5: lst = k_dma()
        elif c == 6: lst = v_dma(0)
        else:
            lst = k_dma(); lst[0] = (adv(sKo, sKs) + [f"s_add_u32 s{sKm}, s{sW8}, {KR[1]}"] + lst[0][0], lst[0][1])
            if cfg.k1pos: k1l = lst; lst = []
        if cfg.wwpos and c == cfg.wwpos - 1:
            lst = lst + [([], f"buffer_load_dword v{vPfd}, v254, s[{sD}:{sD+3}], s{sKt2} offen")]
        if cfg.k0pf and c == cfg.k0pf - 1:
            lst = lst + [([], f"buffer_load_dword v{vPfd}, v252, s[{sK}:{sK+3}], s{sKo} offen nt")]
        if cfg.qstart and c == 0:
            g_ = 1
            if cfg.qstart == 2:
                g_ = place_dmas(S, d0_[2:4], 1, 2) - 1
                S.put(cfg.qb0, Item("s_waitcnt vmcnt(CH0) lgkmcnt(0)", "s")); S.put(cfg.qb0, Item("s_barrier", "s"))
            g_ = place_dmas(S, q_dma(1), g_ + 1, 2, limit=36 + QB - 2)
            g_ = place_dmas(S, q_dma(2), g_, cfg.q2step, limit=gb + 50)
            g_ = place_dmas(S, lst, max(g_, gb + 2), 3, limit=gb + 72 + 40)
        elif cfg.qstart and c in (1, 2):
            g_ = place_dmas(S, lst, max(g_, gb + 2), 3 if c == 1 else 4, limit=gb + 72 + (20 if c == 1 else 0))
        else:
            place_dmas(S, lst, gb + 2, (cfg.qstep - (len(lst) > 13)) if c < 5 else cfg.kvstep, limit=min(gb + 72, NQ))
    if not cfg.qstart: place_dmas(S, q_dma(2), 1, 2, limit=36 + QB)
    if cfg.qpf2: place_dmas(S, qpf_l(5), cfg.qpfb, 2)
    for c in range(7):
        d = QSLOT[(c + 1) % 3] - QSLOT[c % 3]
        for k in range(10):
            S.put_win(72 * c + 4, 72 * c + 40, Item(f"v_add_u32 v{vAd+10*((c+1)&1)+k}, {d & 0xffffffff:#x}, v{vAd+10*(c&1)+k}", "v"))
    g = 0
    for i in range(192): g = S.put_win(g, NQ - 1, Item(f"v_accvgpr_write_b32 a{i}, 0", "v"))
    sys.stderr.write(f"qproj gaps over cap: {sum(c > CAP for c in S.cost)}\n")
    if not cfg.qstart: o += flat(q_dma(1))
    if cfg.qpf2:
        o += qpf_pre + flat(qpf_l(2))
    if cfg.kpf0:
        e("v_lshlrev_b32 v254, 7, v0"); e("v_add_u32 v254, 1024, v254")
        e(f"buffer_load_dword v{vPfd}, v254, s[{sK}:{sK+3}], s{sKo} offen nt")
        if cfg.kpf0 > 1: e(f"buffer_load_dword v{vPfd}, v254, s[{sV}:{sV+3}], s{sVo} offen nt")
    if cfg.ptouch:
        e(f"s_mul_i32 s{sT0}, s2, 20480"); e(f"s_add_u32 s{sT0}, s{sT0}, 0x1400000"); e(f"v_mov_b32 v{vPfd}, s{sT0}")
        if cfg.ptouch > 1:
            e(f"s_mul_i32 s{sT0}, s{sB}, 2359296"); e(f"s_lshl_b32 s{sT1}, s{sW}, 19"); e(f"s_add_u32 s{sT0}, s{sT0}, s{sT1}"); e(f"v_writelane_b32 v{vPfd}, s{sT0}, 1")
            e(f"s_lshl_b32 s{sT0}, s{sMt}, 17"); e(f"s_mul_i32 s{sT1}, s{sW}, {3*131072-1024}"); e(f"s_add_u32 s{sT0}, s{sT0}, s{sT1}"); e(f"v_writelane_b32 v{vPfd}, s{sT0}, 2")
        e(f"global_load_dword v{vPfd}, v{vPfd}, s[{sPTR+14}:{sPTR+15}]")
    stamp(o, 8, 2)
    if cfg.qstamp:
        e(f"s_add_u32 s{sD}, s{sPTR+14}, 0x4100000"); e(f"s_addc_u32 s{sD+1}, s{sPTR+15}, 0"); e(f"s_mov_b32 s{sD+2}, 0x100000"); e(f"s_mov_b32 s{sD+3}, 0x20000")
        e(f"s_lshl_b32 s{sT0}, s2, 2"); e(f"s_add_u32 s{sT0}, s{sT0}, s{sW}"); e(f"s_lshl_b32 s{sT0}, s{sT0}, 6"); e(f"v_mov_b32 v254, s{sT0}")
    if cfg.wowarm:
        e(f"s_mov_b32 s{sD}, s{sPTR+8}"); e(f"s_mov_b32 s{sD+1}, s{sPTR+9}"); e(f"s_mov_b32 s{sD+2}, 4194304"); e(f"s_mov_b32 s{sD+3}, 0x20000")
        e(f"v_and_b32 v{tA}, 31, v0"); e(f"v_lshlrev_b32 v{tA}, 7, v{tA}"); e(f"s_lshl_b32 s{sT0}, s2, 14"); e(f"s_lshl_b32 s{sT1}, s{sW}, 12"); e(f"s_add_u32 s{sT0}, s{sT0}, s{sT1}")
        e(f"buffer_load_dword v{vPfd}, v{tA}, s[{sD}:{sD+3}], s{sT0} offen")
    e(f"s_waitcnt vmcnt({0 if cfg.qstart else 13 + (cfg.ptouch > 0) + cfg.kpf0 + 2 * cfg.qpf2}) lgkmcnt(0)"); e("s_barrier")
    stamp(o, 1)
    first = [rdA(0, 0, 0), rdA(0, 0, 1)] + [rdB(0, q) for q in range(4)] + [rdA(0, t_, jj) for t_ in range(1, 10) for jj in range(2)] + [rdB(0, 4), rdB(0, 5)]
    qh = ([0] * 11 if cfg.qstart == 2 else []) if cfg.qstart else [1] * 13 + [-1] * ((cfg.ptouch > 0) + cfg.kpf0 + 2 * cfg.qpf2)
    for g, k, l in lgkm_waits([(-2, "ds", r) for r in first] + S.linear(0, NQ)):
        if "vmcnt(CH" in l:
            c_ = int(l.split("CH")[1][0]); assert qh.count(c_) == 13, (c_, qh)
            l = f"s_waitcnt vmcnt({len(qh) - 1 - max(i for i, x in enumerate(qh) if x == c_)}) lgkmcnt(0)"
        if l.startswith("buffer_"): qh.append(int(l.split()[-1]) if "; chunk" in l else -1)
        e(l)
    stamp(o, 2)
    def cvt_frag(src, dst):
        L = [f"v_mul_f32 v{src+i}, s{sQs}, v{src+i}" for i in range(8)]
        if cfg.pkq: L = [x for i in range(4) for x in (f"v_pk_mul_f32 {vr(src+2*i,2)}, {vr(src+2*i,2)}, v[252:253]", None)]
        L += [f"v_cvt_pk_bf16_f32 v{dst+i}, v{src+2*i}, v{src+2*i+1}" for i in range(4)]
        W = [f"v_permlane32_swap_b32 v{dst}, v{dst+2}", f"v_permlane32_swap_b32 v{dst+1}, v{dst+3}",
             f"v_permlane16_swap_b32 v{dst}, v{dst+2}", f"v_permlane16_swap_b32 v{dst+1}, v{dst+3}"]
        return L, W
    own = [(acc(q, 2 * c), vQ + 16 * q + 4 * c) for c in range(4) for q in range(4)]
    frs = own[:2] + [(accs(0, 0), vSh), (accs(1, 0), vSh + 4)] + own[2:]
    pendW = []
    for idx, (s_, d_) in enumerate(frs):
        L, W = cvt_frag(s_, d_)
        o += [x for x in L[:4] + pendW[:2] + L[4:8] + pendW[2:] + L[8:] if x]
        pendW = W
        if cfg.k1pos and idx >= 2 and idx % 2 == 0: o += flat([k1l.pop(0)])
        if idx == 4:
            e(f"v_lshlrev_b32 v10, 4, v0"); e(f"s_lshl_b32 s{sT0}, s{sW}, 10"); e(f"s_add_u32 s{sT0}, s{sT0}, {LDS_EX}")
            e(f"v_add_u32 v11, s{sT0}, v10"); e(f"v_add_u32 v10, {LDS_EX}, v10")
            e(f"ds_write_b128 v11, {vr(vSh,4)}"); e(f"ds_write_b128 v11, {vr(vSh+4,4)} offset:4096")
    o += pendW
    a1, a2, k0 = att_addr(vT)
    if cfg.flags:
        e(f"s_lshl_b32 s{sFo}, s{sB}, 1"); e(f"s_lshr_b32 s{sT0}, s{sH}, 4"); e(f"s_add_u32 s{sFo}, s{sFo}, s{sT0}"); e(f"s_lshl_b32 s{sFo}, s{sFo}, {cfg.fstr}")
        e(f"s_and_b32 s{sT0}, s{sH}, 15"); e(f"s_lshl_b32 s{sT0}, s{sT0}, {cfg.fsep}"); e(f"s_add_u32 s{sFo}, s{sFo}, s{sT0}"); e(f"s_add_u32 s{sFo}, s{sFo}, {FLAG_OFF}")
        if not cfg.clrpos:
            e(f"s_or_b32 s{sT0}, s{sW}, s{sRedo}"); e("s_cbranch_scc1 L_noclr")
            e(f"v_mov_b32 v{vT}, s{sFo}"); e(f"v_mov_b32 v{vT+1}, 0"); e("s_mov_b64 exec, 1")
            e(f"global_store_dword v{vT}, v{vT+1}, s[{sPTR+14}:{sPTR+15}] sc1"); e("s_mov_b64 exec, -1")
            e("L_noclr:")
    o += a1
    if cfg.s0: e("v_and_b32 v11, 48, v0"); e(f"v_add_u32 v11, {KR[0]}, v11")
    e(f"s_waitcnt vmcnt({16 if cfg.vlate else 8}) lgkmcnt(0)"); e("s_barrier")
    for c in range(4):
        if cfg.s0: e(f"ds_read_b128 {vr(vS+16+4*c,4)}, v11 offset:{(c&1)*64+(c>>1)*1024}")
        else: e(k_read(0, 0, c, base=k0))
    for i in range(8): e(f"ds_read_b128 {vr(vQ+64+4*i,4)}, v10 offset:{1024*i}")
    if cfg.dump_q:
        e("s_waitcnt lgkmcnt(0)")
        e(f"v_lshlrev_b32 v{tB}, 4, v0"); e(f"s_lshl_b32 s{sT0}, s{sH}, 2"); e(f"s_add_u32 s{sT0}, s{sT0}, s{sW}"); e(f"s_mul_i32 s{sT0}, s{sT0}, {18*1024}")
        for i in range(18):
            e(f"buffer_store_dwordx4 {vr(vQ+4*i,4)}, v{tB}, s[{sO}:{sO+3}], s{sT0} offen"); e(f"s_add_u32 s{sT0}, s{sT0}, 1024")
        e("s_waitcnt vmcnt(0)"); e("s_endpgm")
    def negm(E, srcs):
        tm = [vS + qt for qt in range(6)]
        for qt in range(6): E(f"v_mov_b32 v{tm[qt]}, v{srcs[qt]}")
        for qt in range(6): E(f"v_permlane32_swap_b32 v{srcs[qt]}, v{tm[qt]}")
        for qt in range(6): E(f"v_max_f32 v{srcs[qt]}, v{srcs[qt]}, v{tm[qt]}")
        for qt in range(6): E(f"v_mov_b32 v{tm[qt]}, v{srcs[qt]}")
        for qt in range(6): E(f"v_permlane16_swap_b32 v{srcs[qt]}, v{tm[qt]}")
        for qt in range(6): E(f"v_max_f32 v{srcs[qt]}, v{srcs[qt]}, v{tm[qt]}")
        for qt in range(6):
            for i in range(4): E(f"v_sub_f32 v{vNM+4*qt+i}, 0, v{srcs[qt]}")
    a2_all = list(a2)
    e(f"s_cmp_lg_u32 s{sRedo}, 0"); e("s_cbranch_scc1 L_truemax")
    if cfg.s0:
        o += a2[:16]; a2 = a2[16:]
        e("s_waitcnt lgkmcnt(8)")
        for i in range(16): e(f"v_xor_b32 v{vS+16+i}, 0x80008000, v{vS+16+i}")
        kfirst = [k_read(0, idx >> 2, idx & 3) for idx in range(8)]; kq_ = list(kfirst)
        s0m = lambda qt, c: f"{MF} {vr(vNM+4*qt,4)}, {vr(vS+16+4*c,4)}, {vr(vQ+16*qt+4*c,4)}, {'0' if c == 0 else vr(vNM+4*qt,4)}"
        for qt in range(2 if cfg.s0p else 6):
            if qt == 4: e("s_waitcnt lgkmcnt(0)")
            for c in range(4):
                e(s0m(qt, c))
                nv = 0
                if kq_: e(kq_.pop(0)); nv = 1
                if cfg.s0p and kq_: e(kq_.pop(0)); nv = 2
                while a2 and nv < 2:
                    l = a2.pop(0); e(l); nv += l.startswith("v_")
        if cfg.s0p: a2_rest = a2; e("s_waitcnt lgkmcnt(0)")
        else: o += a2
    else:
        o += a2[:10]; a2 = a2[10:]
        e("s_waitcnt lgkmcnt(8)")
        mx = [vS + 8 + qt for qt in range(6)]
        for qt in range(6):
            if qt == 4: e("s_waitcnt lgkmcnt(0)")
            nb = vNM + 4 * qt
            for c in range(4):
                e(f"{MF} {vr(nb,4)}, {ar(aK+4*c,4)}, {vr(vQ+16*qt+4*c,4)}, {'0' if c == 0 else vr(nb,4)}")
                if qt >= 2 and c == 1:
                    p = vNM + 4 * (qt - 2); e(f"v_max3_f32 v{mx[qt-2]}, v{p}, v{p+1}, v{p+2}"); e(f"v_max_f32 v{mx[qt-2]}, v{mx[qt-2]}, v{p+3}")
                else:
                    nv = 0
                    while a2 and nv < 2:
                        l = a2.pop(0); e(l); nv += l.startswith("v_")
        o += a2
        for qt in (4, 5):
            p = vNM + 4 * qt; e(f"v_max3_f32 v{mx[qt]}, v{p}, v{p+1}, v{p+2}"); e(f"v_max_f32 v{mx[qt]}, v{mx[qt]}, v{p+3}")
        negm(e, mx)
    if not cfg.vlate: e("s_barrier")
    e("L_att:")
    att_consts = [f"s_mov_b32 s{sCnt}, 3", f"s_mov_b32 s{sT3}, 65536", f"s_mov_b32 s{sQs}, {(-32768) & 0xffffffff:#x}", f"s_add_u32 s{sKm}, s{sW8}, {KR[2]}"]
    o += att_consts
    stamp(o, 3)
    if cfg.lstamp:
        e(f"s_add_u32 s{sX}, s{sPTR+14}, 0x4100000"); e(f"s_addc_u32 s{sX+1}, s{sPTR+15}, 0"); e(f"s_mov_b32 s{sX+2}, 0x100000"); e(f"s_mov_b32 s{sX+3}, 0x20000")
        e(f"s_lshl_b32 s{sT0}, s2, 2"); e(f"s_add_u32 s{sT0}, s{sT0}, s{sW}"); e(f"s_lshl_b32 s{sT0}, s{sT0}, 6"); e(f"v_mov_b32 v242, s{sT0}")
    A, bar = gen_attn_sched()
    N = A.n; CUT = 17 * PER
    sys.stderr.write(f"loop: overflow {sum(max(0, c - CAP) for c in A.cost)}, empty gaps {sum(c == 0 for c in A.cost)}\n")
    pro = lgkm_waits([x for x in A.linear(bar[1], N, keep=lambda it: it == 1) if not (cfg.s0 and x[2] in kfirst)], slack=100)
    def prologue(main):
        zl = (list(a2_rest) if main and cfg.s0p else []) + [f"v_mov_b32 v{vL+i}, 0" for i in range(24)]; pz = []
        if main and cfg.s0p: zl = zl[-24:-20] + zl[:-24] + zl[-20:]
        extra = {CUT + 16 + i: s0m(2 + (i >> 2), i & 3) for i in range(16)} if main and cfg.s0p else {}
        seenv = not cfg.vlate; nd_ = 0
        def fill():
            nv = 0
            while zl and nv < 2:
                l = zl.pop(0); pz.append(l); nv += l.startswith("v_")
        for g, k, l in pro:
            for gx in sorted(extra):
                if gx <= g: pz.append(extra.pop(gx)); fill() if len(zl) > 0 and gx % 2 == (CUT + cfg.e0 + 1) % 2 else None
            if not seenv and l.startswith("ds_read_b64_tr"):
                pz.extend(zl); zl.clear()
                pz.extend([f"s_waitcnt vmcnt({8 + nd_})", "s_barrier"]); seenv = True
            if k == "dma":
                nd_ += 1; assert seenv or f"s[{sV}:" in l
            pz.append(l)
            if k == "mf": fill()
        pz.extend(extra[g] for g in sorted(extra)); assert not zl
        return check_hazards(pz, "pro", fix=True)[0]
    pl = prologue(True)
    o += pl
    body = A.linear(0, N)
    two = lgkm_waits(body + [(10**6, "x", "MARK:")] + [(g + N, k, l) for g, k, l in body] + [(2 * N, "mf", body[0][2])])
    k_ = [i for i, x in enumerate(two) if x[2] == "MARK:"][0]
    body2 = [(g - N, k, l) for g, k, l in two[k_+1:-1]]
    e("L_loop:")
    bl = []
    for g, k, l in body2:
        if l.startswith("SWITCH"): continue
        bl.append(l)
        if g == N - 1 and k == "mf": bl += [f"s_sub_u32 s{sCnt}, s{sCnt}, 1", f"s_cmp_lg_u32 s{sCnt}, 0"]
    ci = bl.index(f"s_cmp_lg_u32 s{sCnt}, 0")
    assert not any("scc" in Ins(x).w for x in bl[ci+1:]), bl[ci:]
    bl.append("s_cbranch_scc1 L_loop")
    _, bad = check_hazards(pl[-30:] + bl + bl, "loop"); assert bad == 0 or cfg.lstamp
    o += bl
    ep = []; hist = []
    def E(l, tag=None):
        if cfg.nost and tag == "st" and (cfg.nost == 1 or len([x for x in hist if x == "st"]) % 2): l = l.replace(f"s[{sO}:{sO+3}]", f"s[{sWQ}:{sWQ+3}]")
        ep.append(l)
        if Ins(l).kind in ("vmem", "dma", "vstore"): hist.append("sig" if l.endswith("; wave 0") else tag)
    def vwait(tag):
        last = max(i for i, x in enumerate(hist) if x == tag)
        n = sum(1 for x in hist[last+1:] if x not in ("sig", "look"))
        return f"s_waitcnt vmcnt({min(63, n)})"
    vwait1 = vwait
    LS = [KR[2], KR[2] + 4096, LDS_V[0], LDS_V[0] + 4096, KR[0], KR[0] + 4096, LDS_V[1], LDS_V[1] + 4096, KR[1], KR[1] + 4096]
    RS = [("a", 128), ("a", 144), ("a", 160), ("a", 176), ("v", 76), ("v", 92), ("a", 192), ("a", 208),
          ("v", 156), ("v", 172), ("v", 188), ("v", 204), ("v", 12), ("v", 28), ("a", 224), ("a", 240)]
    LSOF = {0: 0}
    NR = len(RS); NW = 16
    vR = 236; vLn = 10; vZ = 11
    def rreg(step, nt, jj=None):
        k, b = RS[step % NR]; f = vr if k == "v" else ar
        return f(b + 4 * nt, 4) if jj is None else f(b + 4 * nt + 2 * jj, 2)
    def tr_reads(step):
        a = LS[LSOF[step]]; s_ = a >> 16
        return [f"ds_read_b64_tr_b16 {rreg(step, nt, jj)}, v{vRa+4*s_+nt} offset:{(a & 0xffff) + 2048*jj} ; wo step {step}" for nt in range(4) for jj in range(2)]
    def wo_dma(step):
        return [(([f"s_add_u32 m0, s{sW8}, {LS[LSOF[step]]}", f"s_xor_b32 s{sT2}, s{sR4}, {32768*step}"] if q == 0 else []),
                 f"buffer_load_dwordx4 v{vKv+q}, s[{sK}:{sK+3}], s{sT2} offen offset:{1024*q} lds ; wo step {step}") for q in range(4)]
    def emit_dma(step):
        for l in flat(wo_dma(step)): E(l, ("w", step))
    def emit_tr(step):
        E(vwait(("w", step)))
        for l in tr_reads(step): E(l)
    T = vT
    P, _ = gen_attn_sched(peel=True)
    G0 = bar[0]; B7 = bar[1]
    NP = CUT + NPV
    Z = Sched(NP)
    for g in range(0, CUT):
        Z.mf[g] = P.mf[g]
        for x in A.gap[g]:
            if x.it or x.text.startswith("SWITCH") or x.text.startswith("v_add_f32"): continue
            if g < G0 + 1:
                if f"s[{sK}:{sK+3}]" in x.text or f"s{sKm}" in x.text or f"s{sKo}" in x.text or f"s{sKo+1}" in x.text: continue
                Z.put(g, Item(x.text.replace("vmcnt(8)", "vmcnt(V7)") + (" ; V7" if x.kind == "dma" else ""), x.kind))
            elif x.kind in ("ds", "t") or "cvt_pk" in x.text: Z.put(g, Item(x.text, x.kind))
            elif g == B7 and x.text in ("s_barrier",): Z.put(g, Item("s_waitcnt lgkmcnt(0)", "s")); Z.put(g, Item(x.text, "s"))
    for i in range(NPV): Z.mf[CUT + i] = P.mf[CUT + 16 + i]
    gg = CUT - 1
    for g in range(CUT, N):
        for x in P.gap[g]:
            if x.it == 0 and not x.text.startswith("v_add_f32"): gg = Z.put_win(min(gg + 1, CUT + Q1 - 3), CUT + Q1 - 3, Item(x.text, x.kind))
    if cfg.hyb:
        for g in range(0, 2 * PER):
            for x in A.gap[g]:
                if x.text.startswith("v_add_f32") and not x.it and int(x.text.split("v")[-1]) < vS + 16 and g < PER - 4 + 1: Z.put(g, Item(x.text, "v"))
        for n in range(1, 18):
            tl_ = LAST_TILE[n - 9] if n >= 9 else UNIT_TILE[n]
            sb = vS + 16 * (n & 1); l = vL + 8 * tl_
            for j in range(8):
                g = PER * (n - 1) + cfg.e0 + 2 * j + 1
                Z.put_win(g, min(PER * (n + 1) - 4, g + 30 if n == 9 else 10**6), Item(f"v_add_f32 v{l+(j&1)}, v{l+(j&1)}, v{sb+j}", "v"), pack=True)
    tags = {}
    def zput(lo, hi, text, kind, tag=None, pack=True, cap=CAP):
        if tag: tags[text] = tag
        return Z.put_win(lo, hi, Item(text, kind), pack=pack, cap=cap)
    def zf(lo, text, kind, tag=None, w=2):
        if tag: tags[text] = tag
        lo = min(lo, NP - 1)
        g = min(range(lo, min(lo + w, NP)), key=lambda x: (Z.cost[x] + (4 if kind in ("ds", "dma") and any(y.kind == "t" for y in Z.gap[x]) else 0), x))
        Z.put(g, Item(text, kind)); return g
    if cfg.v7step:
        seqv = []
        for g in range(0, G0):
            keep = []
            for x in Z.gap[g]:
                if x.text.endswith("; V7") or (x.kind == "s" and "m0" in x.text): seqv.append(x); Z.cost[g] -= x.cost
                else: keep.append(x)
            Z.gap[g] = keep
        g = 1; pre_ = []
        for x in seqv:
            if x.kind == "s": pre_.append(x.text); continue
            g = zf(g, x.text, "dma")
            for l in pre_: Z.put(g - 1, Item(l, "s"))
            pre_ = []; g += cfg.v7step
    vXw, vXr, vF, vFw = T, T + 1, 242, T + 3
    ad = [f"s_lshl_b32 s{sT0}, s{sW}, 14", f"s_lshr_b32 s{sT1}, s{sW}, 1", f"s_mul_i32 s{sT1}, s{sT1}, {KR[0] - 32768}", f"s_add_u32 s{sT0}, s{sT0}, s{sT1}",
          f"v_add_u32 v{vXw}, s{sT0}, v{vLn}", f"s_lshl_b32 s{sT0}, s{sW}, 11", f"v_add_u32 v{vXr}, s{sT0}, v{vLn}", f"v_add_u32 v{vXr+1}, {KR[0]}, v{vXr}",
          f"v_lshlrev_b32 v{vF}, 2, v0", f"v_add_u32 v{vF}, {LS[1]}, v{vF}", f"v_add_u32 v{vFw}, s{sW8}, v{vF}",
          f"s_lshl_b32 s{sT1}, s{sH}, 12", f"s_lshl_b32 s{sT3}, s{sW}, 10", f"s_add_u32 s{sT3}, s{sT3}, s{sT1}", f"s_add_u32 s{sT3}, s{sT3}, {16*131072}",
          f"s_lshl_b32 s{sT0}, s{sW}, 19", f"s_add_u32 s{sT0}, s{sT0}, s{sT1}", f"s_add_u32 s{sT1}, s{sT3}, 131072"]
    XOFF = 0x1400000
    sXs, sXr = sVo, sVo + 1
    su = [f"s_lshl_b32 s{sT1}, s{sW}, 19", f"s_lshl_b32 s{sT0}, s{sOdd}, 21", f"s_or_b32 s{sT1}, s{sT1}, s{sT0}",
          f"s_mov_b32 s{sD}, s{sPTR+8}", f"s_mov_b32 s{sD+1}, s{sPTR+9}", f"s_mov_b32 s{sD+2}, 4194304", f"s_mov_b32 s{sD+3}, 0x20000",
          f"s_lshr_b32 s{sPfo}, s2, 3", f"s_lshl_b32 s{sPfo}, s{sPfo}, 13", f"s_add_u32 s{sPfo}, s{sPfo}, s{sT1}",
          f"s_and_b32 s{sPfr}, s2, {4 if cfg.xrot else 0}", f"s_lshl_b32 s{sPfr}, s{sPfr}, 16", f"v_lshlrev_b32 v{vPfo}, 7, v0"]
    if cfg.cpf2:
        su += [f"s_getpc_b64 s[{sCP}:{sCP+1}]", "L_pc1:", f"s_add_u32 s{sCP}, s{sCP}, {'L_tail-L_pc1' if cfg.cpf2 == 1 else 0}", f"s_addc_u32 s{sCP+1}, s{sCP+1}, 0",
               f"s_lshr_b32 s{sT2}, s2, 3", f"s_lshl_b32 s{sT2}, s{sT2}, 2", f"s_add_u32 s{sT2}, s{sT2}, s{sW}", f"s_lshl_b32 s{sT2}, s{sT2}, 6",
               f"v_min_u32 v11, {1 if cfg.cpf2 == 1 else 2}, v0", f"v_lshlrev_b32 v11, 13, v11", f"v_add_u32 v11, s{sT2}, v11"]
    su += ["PF", f"s_and_b32 s{sR4}, s{sCg}, {cfg.orot}", f"s_lshl_b32 s{sR4}, s{sR4}, 15", f"s_or_b32 s{sR4}, s{sR4}, s{sT1}"]
    if cfg.xrot: su += [f"s_and_b32 s{sT1}, s2, 6", f"s_lshl_b32 s{sT1}, s{sT1}, 16", f"s_xor_b32 s{sR4}, s{sR4}, s{sT1}"]
    wo_voff(su.append, vKv, vT); wo_srd(su.append, sK)
    kg, r4, c4, tA, tB = vT, vT+1, vT+2, vT+3, vT+4
    su += [f"v_lshrrev_b32 v{kg}, 4, v0", f"v_bfe_u32 v{r4}, v0, 2, 2", f"v_and_b32 v{c4}, 3, v0",
           f"v_and_b32 v{tA}, 1, v{kg}", f"v_lshl_add_u32 v{tA}, v{tA}, 2, v{r4}", f"v_lshrrev_b32 v{tB}, 1, v{tA}", f"v_lshlrev_b32 v{tB}, 5, v{tB}",
           f"v_lshl_add_u32 v{tB}, v{tA}, 7, v{tB}", f"v_lshrrev_b32 v{tA}, 1, v{kg}", f"v_lshl_add_u32 v{tB}, v{tA}, 10, v{tB}",
           f"v_lshl_add_u32 v{tB}, v{c4}, 3, v{tB}", f"v_add_u32 v{vRa}, s{sW8}, v{tB}", f"s_lshl_b32 s{sT1}, s{sW}, 5", f"v_xor_b32 v{vRa}, s{sT1}, v{vRa}"]
    su += [f"v_xor_b32 v{vRa+nt}, {32*nt}, v{vRa}" for nt in range(1, 4)]
    su += [f"v_add_u32 v{vRa+4*s_+nt}, {65536*s_}, v{vRa+nt}" for s_ in range(1, 3) for nt in range(4)]
    su += ["v_lshlrev_b32 v10, 4, v0"]
    g = 2
    for l in su:
        if l == "PF":
            gsu = g
            if cfg.cpf2: zf(max(gsu, cfg.cpos), f"global_load_dword v{vPfd}, v11, s[{sCP}:{sCP+1}]", "dma")
            gp = gsu
            for i, x in enumerate(cfg.pfpos.split(",") if cfg.wopf else []):
                gp = zf(max(int(x), gp + 2), f"buffer_load_dword v{vPfd}, v{vPfo}, s[{sD}:{sD+3}], s{sPfx} offen ; pf{i}", "dma")
                for l_ in (f"s_xor_b32 s{sPfx}, s{sPfo}, s{sPfr}", f"s_add_u32 s{sPfo}, s{sPfo}, 262144"): Z.put(gp - 1, Item(l_, "s"))
        elif l.startswith("v_"): g = zput(g, g + 12, l, "v", pack=False) + 1
        else: Z.put(g, Item(l, "s"))
    if cfg.flags and cfg.clrpos:
        assert cfg.cntat > G0 and cfg.clrpos < 20
        for l in [f"s_or_b32 s99, s{sW}, s{sRedo}", "s_cbranch_scc1 L_noclr", f"v_mov_b32 v{vR+2}, s{sFo}", f"v_mov_b32 v{vR+3}, 0", "s_mov_b64 exec, 1",
                  f"global_store_dword v{vR+2}, v{vR+3}, s[{sPTR+14}:{sPTR+15}] sc1 ; wave 0", "s_mov_b64 exec, -1", "s_nop 3", "L_noclr:"]: Z.put(cfg.clrpos, Item(l, "s"))
    if cfg.flags:
        for l in [f"s_or_b32 s99, s{sW}, s{sRedo}", "s_cbranch_scc1 L_nocnt", f"v_mov_b32 v{vR+2}, 0", f"v_mov_b32 v{vR+3}, 1", "s_mov_b64 exec, 1",
                  f"global_atomic_add v{vR+2}, v{vR+3}, s[{sPTR+12}:{sPTR+13}] ; wave 0", "s_mov_b64 exec, -1", "s_nop 3", "L_nocnt:"]: Z.put(cfg.cntat, Item(l, "s"))
        for l in [f"s_cmp_lg_u32 s{sW}, 0", "s_cbranch_scc1 L_noget", f"v_mov_b32 v{vPfo}, 0", "s_mov_b64 exec, 1",
                  f"global_load_dword v{vPfo}, v{vPfo}, s[{sPTR+12}:{sPTR+13}] sc1 ; wave 0", "s_mov_b64 exec, -1", "s_nop 3", "L_noget:"]: Z.put(cfg.cntpos, Item(l, "s"))
    gp = max(g, cfg.ppos)
    for l in [f"s_add_u32 s{sV}, s{sPTR+14}, {XOFF}", f"s_addc_u32 s{sV+1}, s{sPTR+15}, 0", f"s_mov_b32 s{sV+2}, {256*20480}", f"s_mov_b32 s{sV+3}, 0x20000",
              f"s_mul_i32 s{sXr}, s2, 20480", f"s_mul_i32 s{sT0}, s{sW}, 5120", f"s_add_u32 s{sXr}, s{sXr}, s{sT0}",
              f"s_xor_b32 s{sXs}, s2, 1", f"s_mul_i32 s{sXs}, s{sXs}, 20480", f"s_add_u32 s{sXs}, s{sXs}, s{sT0}", f"s_add_u32 s{sT0}, s{sXr}, 4096"]: Z.put(gp, Item(l, "s"))
    for i in range(4): gp = zf(gp, f"v_mov_b32 v{vR+i}, -1", "v") + 1
    for i in range(0 if cfg.nopoison else 5):
        gp = zf(gp + 1, f"buffer_store_dwordx4 {vr(vR,4)}, v10, s[{sV}:{sV+3}], s{sXr if i < 4 else sT0} offen offset:{1024*(i&3)} sc1 ; mark {i}", "dma") + 1
    assert gp < G0 - 4
    g = G0 + 20
    for l in ad:
        if l.startswith("v_"): g = zput(g, g + 12, l, "v", pack=False) + 1
        else: Z.put(g, Item(l, "s"))
    def burst(g, lines):
        for l in lines: Z.put(g, Item(l, "v"))
    def pk(b, r):
        return f"v_pk_mul_f32 {vr(b,2)}, {vr(b,2)}, {vr(r & ~1,2)} op_sel:[0,{r & 1}] op_sel_hi:[1,{r & 1}]"
    sFl = sVm
    g = cfg.xw0 or PER * 9 + 16 + NPV + 6
    if cfg.hyb: burst(g, [f"v_add_f32 v{vL+16}, v{vL+16}, v{vL+16+1}", f"v_mov_b32 v{vL+18}, v{vL+16}", "s_nop 1", f"v_permlane32_swap_b32 v{vL+16}, v{vL+18}", f"v_add_f32 v{vL+16}, v{vL+16}, v{vL+18}",
               f"v_mov_b32 v{vL+18}, v{vL+16}", "s_nop 1", f"v_permlane16_swap_b32 v{vL+16}, v{vL+18}", f"v_add_f32 v{vL+16}, v{vL+16}, v{vL+18}"])
    for i in range(16): g = zf(g, f"ds_write_b128 v{vXw}, {ar(aO+128+4*i,4)} offset:{1024*i}", "ds") + 1
    g = zf(g, f"ds_write_b32 v{vFw}, v{vL+16}", "ds"); g = zf(g, f"ds_write_b32 v{vFw}, v{vL+20} offset:256", "ds")
    Z.put(g - 4, Item(f"s_mov_b32 s{sKd}, {LTHRESH:#x}", "s"))
    g = zf(g, f"v_add_f32 v{vR+4}, v{vL+16}, v{vL+20}", "v") + 1
    g = zf(g, f"v_cmp_nge_f32 s[{sFl}:{sFl+1}], s{sKd}, v{vR+4}", "v")
    XA = g + 7
    Z.put(XA, Item("s_waitcnt lgkmcnt(0)", "s")); Z.put(XA, Item("s_barrier", "s"))
    bA = [vQ + 64 + 4 * i for i in range(4)]; bB = [vQ + 80 + 4 * i for i in range(4)]; bC = [vNM + 16, vNM + 20, vL + 16, vL + 20]
    lr = [[236, 237, 238, 239], [5, 6, 7, 8]]
    def prd(wv, dst): return [f"ds_read_b128 {vr(dst[i],4)}, v{vXr+(wv>>1)} offset:{16384*(wv&1)+8192*(i>>1)+1024*(i&1)}" for i in range(4)]
    def padd(d, x): return [f"v_pk_add_f32 {vr(d[i]+r,2)}, {vr(d[i]+r,2)}, {vr(x[i]+r,2)}" for i in range(4) for r in (0, 2)]
    g = XA
    rd = prd(0, bA) + prd(1, bB) + prd(2, bC) + [f"ds_read_b32 v{lr[j][wv]}, v{vF} offset:{8192*wv+256*j}" for wv in range(4) for j in range(2)]
    for i, r in enumerate(rd): g = zf(g + (i & 1), r, "ds")
    gt = g + 1
    g = gt + 8
    while any(y.kind == "t" for y in Z.gap[g]): g += 1
    burst(g, padd(bA, bB))
    g3 = g + 1
    for i, r in enumerate(prd(3, bB)): g3 = zf(g3 + (i & 1), r, "ds")
    g += 2
    lsum = []
    for j in range(2):
        x = lr[j]; lsum += [f"v_add_f32 v{x[0]}, v{x[0]}, v{x[1]}", f"v_add_f32 v{x[2]}, v{x[2]}, v{x[3]}", f"v_add_f32 v{x[0]}, v{x[0]}, v{x[2]}"]
    burst(g, padd(bA, bC) + lsum + [f"v_rcp_f32 v{lr[0][0]}, v{lr[0][0]}", f"v_rcp_f32 v{lr[0][1]}, v{lr[1][0]}"])
    XB = g3 + 9
    while any(y.kind == "t" for y in Z.gap[XB]): XB += 1
    Z.put(XB, Item("s_waitcnt lgkmcnt(0)", "s")); Z.put(XB, Item("s_barrier", "s"))
    burst(XB, padd(bA, bB) + [pk(bA[i] + r, lr[0][i >> 1]) for i in range(4) for r in (0, 2)]
          + [f"v_cvt_pk_bf16_f32 v{bB[0]+i}, v{bA[0]+2*i}, v{bA[0]+2*i+1}" for i in range(8)])
    g = XB
    for j in range(2):
        d = f"buffer_store_dwordx4 {vr(bB[j],4)}, v{vLn}, s[{sO}:{sO+3}], s{sT3 if j == 0 else sT1} offen{cfg.st_sc}"
        g = zf(g + 1, d, "dma", tag=("prov", "st"))
    GS = g + 2
    free = [(cfg.d0, 0)] + [(XB + 1, i) for i in (1, 2, 3, 4, 5)] + [(B7 + 1, i) for i in (6, 7, 8, 9)]
    ravail = [XA] * 4 + [GS] * 2 + [CUT - 16, CUT - 16]
    gd = cfg.d0; gtr = gt + 1; nxt = 0; pend = []; ntr = 0; LSOF.clear()
    while True:
        free.sort()
        t0 = max(gd, free[0][0]) if free else 10**6
        if pend and ntr < len(ravail):
            tt = max(pend[0][1] + cfg.land, ravail[ntr], gtr)
            if tt <= t0 and tt + 8 < NP:
                st, gi = pend.pop(0); g = tt
                for i, r in enumerate(tr_reads(st)): g = zf(g + (i & 1), r, "ds", tag=("need", ("w", st)) if i == 0 else None)
                gtr = g + 1; free.append((g + 8, LSOF[st])); ntr += 1
                continue
        if t0 + 8 >= NP or nxt >= NW: break
        gf, sl = free.pop(0); LSOF[nxt] = sl
        w_ = wo_dma(nxt)
        if any(LSOF.get(x) == sl for x in range(nxt)): w_[0] = ([f"s_waitcnt lgkmcnt(15) ; slot {nxt}"] + w_[0][0], w_[0][1])
        g = t0
        for q, (p_, d) in enumerate(w_):
            g = zf(g, d, "dma", tag=("prov", ("w", nxt)), w=2 if t0 + 12 < NP else 1)
            for l in p_: Z.put(g - 1, Item(l, "s"))
            g += 2 if t0 + 12 < NP else 1
        pend.append((nxt, g)); gd = max(t0 + cfg.dstep, g); nxt += 1
    free = [x[1] for x in sorted(free)]
    sys.stderr.write(f"last stage: XA {XA} XB {XB} GS {GS}; wo steps issued {nxt}, in registers {ntr}; overflow {sum(max(0, c - CAP) for c in Z.cost)}\n")
    E("L_last:")
    if cfg.pstamp:
        for i_, g_ in enumerate((0, G0 + 1, XB + 1, B7 + 1)): Z.put(g_, Item(f"s_memtime s[{sST2+2*i_}:{sST2+2*i_+1}]", "s"))
    seq = Z.linear(0, NP)
    seq2 = lgkm_waits([(g - N, k, l) for g, k, l in body if g >= bar[1] and not l.startswith("SWITCH")] + [(-1, "x", "MARK:")] + seq)
    seq2 = seq2[[x[2] for x in seq2].index("MARK:") + 1:]
    dsq = []
    for g, k, l in seq2:
        if "; slot" in l:
            st = int(l.split()[-1]); prev = max(x for x in range(st) if LSOF[x] == LSOF[st])
            idx = max(i for i, x in enumerate(dsq) if x.endswith(f"wo step {prev}"))
            l = f"s_waitcnt lgkmcnt({min(15, len(dsq) - 1 - idx)})"
        if l.startswith("ds_"): dsq.append(l)
        if l.endswith("; V7"): tags[l] = ("prov", "V7")
        if "vmcnt(V7)" in l: l = vwait("V7") + " lgkmcnt(0)"
        tg = tags.get(l)
        if tg and tg[0] == "need": E(vwait(tg[1]))
        E(l, tg[1] if tg and tg[0] == "prov" else None)
    E("L_tail:")
    stamp(ep, 4)
    if cfg.hyb:
        r0 = [f"v_add_f32 v{vL}, v{vL}, v{vL+1}", f"v_mov_b32 v{vL+2}, v{vL}", "s_nop 1", f"v_permlane32_swap_b32 v{vL}, v{vL+2}", f"v_add_f32 v{vL}, v{vL}, v{vL+2}",
               f"v_mov_b32 v{vL+2}, v{vL}", "s_nop 1", f"v_permlane16_swap_b32 v{vL}, v{vL+2}", f"v_add_f32 v{vL}, v{vL}, v{vL+2}"]
        r1 = [f"v_add_f32 v{vL+8}, v{vL+8}, v{vL+8+1}", f"v_mov_b32 v{vL+10}, v{vL+8}", "s_nop 1", f"v_permlane32_swap_b32 v{vL+8}, v{vL+10}", f"v_add_f32 v{vL+8}, v{vL+8}, v{vL+10}",
               f"v_mov_b32 v{vL+10}, v{vL+8}", "s_nop 1", f"v_permlane16_swap_b32 v{vL+8}, v{vL+10}", f"v_add_f32 v{vL+8}, v{vL+8}, v{vL+10}"]
        for x, y in zip(r0, r1):
            if x.startswith("v_"): E(x); E(y)
    for qt in range(4): E(f"v_rcp_f32 v{vR+qt}, v{vL+4*qt}")
    chk = [f"s_mov_b32 s{sT3}, {LTHRESH:#x}",
           f"v_add_f32 v{T}, v{vL}, v{vL+4}", f"v_add_f32 v{T+1}, v{vL+8}, v{vL+12}",
           f"v_add_f32 v{T}, v{T}, v{T+1}", f"v_cmp_nge_f32 vcc, s{sT3}, v{T}",
           f"v_lshlrev_b32 v{vF}, 2, v0", f"v_add_u32 v{vF}, {{FL}}, v{vF}", f"v_add_u32 v{T+1}, s{sW8}, v{vF}",
           f"s_or_b64 vcc, vcc, s[{sFl}:{sFl+1}]", f"s_cselect_b32 s{sT3}, 1, 0", f"v_mov_b32 v{T+2}, s{sT3}"]
    todo = [st for st, gi in pend]
    fl = 220
    if free: FS = free.pop(0); first = []
    else: first = [todo.pop(0)]; FS = LSOF[first[0]]
    for k in range(16):
        qt, kc = k >> 2, k & 3
        b0 = 108 + 12 * (k % 2)
        if k == 0:
            for st in first: emit_tr(st); ntr += 1
        if k == 3:
            E("s_waitcnt lgkmcnt(0)"); E("s_barrier")
            for wv in range(4): E(f"ds_read_b32 v{fl+wv}, v{vF} offset:{8192*wv}")
        if k == 4:
            E("s_waitcnt lgkmcnt(0)")
            E(f"v_or_b32 v{fl}, v{fl}, v{fl+1}"); E(f"v_or3_b32 v{fl}, v{fl}, v{fl+2}, v{fl+3}")
            E(f"v_readfirstlane_b32 s{sT2}, v{fl}")
            E(f"s_andn2_b32 s{sT2}, s{sT2}, s{sRedo}"); E(f"s_cmp_lg_u32 s{sT2}, 0"); E("s_cbranch_scc1 L_fallback")
        if k >= 5 and todo and todo[0] < 16:
            st = todo.pop(0); emit_tr(st); free.append(LSOF[st]); ntr += 1
        for i in range(8): E(f"v_accvgpr_read_b32 v{b0+i}, a{aO+32*qt+8*kc+i}")
        for i in range(4): E(pk(b0 + 2 * i, vR + qt))
        for i in range(4): E(f"v_cvt_pk_bf16_f32 v{b0+8+i}, v{b0+2*i}, v{b0+2*i+1}")
        E(f"buffer_store_dwordx4 {vr(b0+8,4)}, v{vLn}, s[{sO}:{sO+3}], s{sT0} offen offset:{1024*kc}{cfg.st_sc}", "st")
        if kc == 3 and qt < 3: E(f"s_add_u32 s{sT0}, s{sT0}, 131072")
        if k == 1:
            for l in chk: E(l.replace("{FL}", str(LS[FS])))
            E("s_waitcnt lgkmcnt(0)"); E(f"ds_write_b32 v{T+1}, v{T+2}")
    stamp(ep, 5)
    E("s_waitcnt lgkmcnt(0)")
    for _ in range(cfg.npost):
        if nxt < NW: LSOF[nxt] = free.pop(0); emit_dma(nxt); todo.append(nxt); nxt += 1
    E(f"s_mov_b32 s{sD}, s{sPTR+12}"); E(f"s_mov_b32 s{sD+1}, s{sPTR+13}"); E(f"s_mov_b32 s{sD+2}, 256"); E(f"s_mov_b32 s{sD+3}, 0x20000")
    E(f"s_lshl_b32 s{sT0}, s{sMt}, 17"); E(f"s_add_u32 s{sX}, s{sPTR+14}, s{sT0}"); E(f"s_addc_u32 s{sX+1}, s{sPTR+15}, 0")
    E(f"s_mov_b32 s{sX+2}, {9*131072}"); E(f"s_mov_b32 s{sX+3}, 0x20000")
    E(f"s_lshl_b32 s{sT0}, s{sMt}, 14"); E(f"s_add_u32 s{sWQ}, s{sPTR+10}, s{sT0}"); E(f"s_addc_u32 s{sWQ+1}, s{sPTR+11}, 0")
    E(f"s_mov_b32 s{sWQ+2}, {9*16384}"); E(f"s_mov_b32 s{sWQ+3}, 0x20000")
    vOo = 220
    E(f"v_mov_b32 v{vZ}, 0"); E(f"v_mov_b32 v{T}, 1"); E(f"s_mul_i32 s{sT2}, s{sOdd}, {5*131072}")
    E(f"v_add_u32 v{vOo}, s{sT2}, v{vLn}"); E(f"v_add_u32 v{vOo+4}, {4*131072}, v{vLn}"); E(f"v_subrev_u32 v{vOo+5}, s{sT2}, v{vLn}"); E(f"v_add_u32 v{vOo+5}, {5*131072}, v{vOo+5}")
    for i in range(1, 4): E(f"v_add_u32 v{vOo+i}, {131072*i}, v{vOo}"); E(f"v_add_u32 v{vOo+5+i}, {131072*i}, v{vOo+5}")
    sPo = sXm
    E(f"s_lshr_b32 s{sPo}, s{sR4}, 5")
    E(f"s_lshl_b32 s{sT0}, s{sB}, 1"); E(f"s_lshr_b32 s{sT1}, s{sH}, 4"); E(f"s_add_u32 s{sT0}, s{sT0}, s{sT1}"); E(f"s_lshl_b32 s{sT0}, s{sT0}, 4")
    E(f"s_lshl_b32 s{sT1}, s{sRg}, 1"); E(f"s_add_u32 s{sT1}, s{sT1}, s{sOdd}"); E(f"s_lshl_b32 s{sT1}, s{sT1}, 4")
    E(f"v_mov_b32 v{T+1}, s{sT0}"); E(f"v_writelane_b32 v{T+1}, s{sT1}, 0")
    E(f"s_lshl_b32 s{sT2}, s{sB}, 5"); E(f"s_add_u32 s{sT2}, s{sT2}, s{sH}")
    if cfg.flags:
        E(f"s_lshl_b32 s{sT1}, s{sT1}, {cfg.fstr - 4}"); E(f"s_add_u32 s{sT1}, s{sT1}, {FLAG_OFF}"); E(f"s_xor_b32 s{sT0}, s{sFo}, {4 << cfg.fsep}")
        E(f"v_lshlrev_b32 v{T+1}, {cfg.fsep}, v0"); E(f"v_add_u32 v{T+1}, s{sT1}, v{T+1}"); E(f"v_mov_b32 v{T+2}, s{sT0}"); E(f"v_cmp_gt_u32 vcc, 16, v0")
        E(f"v_cndmask_b32 v{T+1}, v{T+2}, v{T+1}, vcc"); E(f"v_mov_b32 v{T+2}, s{sFo}")
    E(vwait("st")); E("s_barrier")
    E(f"s_cmp_lg_u32 s{sW}, 0"); E("s_cbranch_scc1 L_nosig")
    E("s_mov_b64 exec, 1")
    if cfg.flags: ep.append(f"global_store_dword v{T+2}, v{T}, s[{sPTR+14}:{sPTR+15}] sc1")
    elif cfg.bflag: ep.append(f"buffer_store_byte v{T}, v{vZ}, s[{sD}:{sD+3}], s{sT2} offen sc1")
    else: ep.append(f"buffer_atomic_add v{T}, v{vZ}, s[{sD}:{sD+3}], s{sT0} offen")
    if cfg.epoll: E("s_mov_b64 exec, 0x1ffff"); ep.append(f"global_load_dword v{T+3}, v{T+1}, s[{sPTR+14}:{sPTR+15}] sc1")
    E("s_mov_b64 exec, -1")
    E("L_nosig:")
    hist.append("sig"); hist.append("look")
    stamp(ep, 6)
    if cfg.cpf3:
        E(f"s_getpc_b64 s[{sCP}:{sCP+1}]"); E(f"v_min_u32 v{T+9}, 1, v0"); E(f"v_lshlrev_b32 v{T+9}, 13, v{T+9}")
        E(f"s_lshr_b32 s{sT2}, s2, 3"); E(f"s_lshl_b32 s{sT2}, s{sT2}, 2"); E(f"s_add_u32 s{sT2}, s{sT2}, s{sW}"); E(f"s_lshl_b32 s{sT2}, s{sT2}, 6")
        E(f"v_add_u32 v{T+9}, s{sT2}, v{T+9}"); E(f"v_min_u32 v{T+9}, L_end-L_nosig, v{T+9}")
        E(f"global_load_dword v{T+9}, v{T+9}, s[{sCP}:{sCP+1}]")
    free.append(FS)
    late_dma = []
    while nxt < NW:
        LSOF[nxt] = free.pop(0); todo.append(nxt)
        if cfg.latew: late_dma.append(nxt)
        else: emit_dma(nxt)
        nxt += 1
    late_tr = list(todo)
    sys.stderr.write(f"wo steps still to be read into registers after the signal: {late_tr}\n")
    if cfg.trpre:
        for st in late_tr: emit_tr(st)
        late_tr = []
    stamp(ep, 7)
    E(f"s_cmp_lg_u32 s{sW}, 0"); E("s_cbranch_scc1 L_ready")
    E(f"s_mov_b32 s{sCnt}, 0x40000")
    if cfg.flags:
        E("L_cnt:")
        E(f"v_readfirstlane_b32 s{sT0}, v{vPfo}"); E(f"s_sub_u32 s{sCnt}, s{sCnt}, 1"); E(f"s_cmp_eq_u32 s{sCnt}, 0"); E("s_cbranch_scc1 L_ready")
        E(f"s_cmp_ge_u32 s{sT0}, 256"); E("s_cbranch_scc1 L_cntok")
        E("s_sleep 16"); ep.append(f"global_load_dword v{vPfo}, v{vZ}, s[{sPTR+12}:{sPTR+13}] sc1"); E("s_waitcnt vmcnt(0)"); E("s_branch L_cnt")
        E("L_cntok:")
    E(f"s_mov_b64 exec, {0x1ffff if cfg.flags else 3:#x}")
    if cfg.epoll:
        E(vwait("look")); E(f"v_cmp_ne_u32 vcc, 1, v{T+3}"); E("s_cmp_eq_u64 vcc, 0"); E("s_cbranch_scc1 L_got")
    E("L_poll:")
    if cfg.flags:
        ep.append(f"global_load_dword v{T+3}, v{T+1}, s[{sPTR+14}:{sPTR+15}] sc1")
        E("s_waitcnt vmcnt(0)"); E(f"v_cmp_ne_u32 vcc, 1, v{T+3}")
    elif cfg.bflag:
        ep.append(f"buffer_load_dwordx4 {vr(T+4,4)}, v{T+1}, s[{sD}:{sD+3}], 0 offen sc1")
        E("s_waitcnt vmcnt(0)"); E(f"v_and_b32 v{T+4}, v{T+4}, v{T+5}"); E(f"v_and_b32 v{T+6}, v{T+6}, v{T+7}"); E(f"v_and_b32 v{T+4}, v{T+4}, v{T+6}")
        E(f"v_cmp_ne_u32 vcc, 0x01010101, v{T+4}")
    else:
        ep.append(f"buffer_load_dword v{T+3}, v{T+1}, s[{sD}:{sD+3}], 0 offen sc1")
        E("s_waitcnt vmcnt(0)"); E(f"v_cmp_gt_u32 vcc, 16, v{T+3}")
    E(f"s_sub_u32 s{sCnt}, s{sCnt}, 1"); E(f"s_cmp_eq_u32 s{sCnt}, 0"); E("s_cbranch_scc1 L_got")
    E("s_cmp_eq_u64 vcc, 0"); E("s_cbranch_scc1 L_got")
    E(f"s_sleep {cfg.sleep}"); E("s_branch L_poll")
    E("L_got:"); E("s_mov_b64 exec, -1")
    E("L_ready:")
    E("s_barrier")
    stamp(ep, 8); stamp(ep, 5, True)
    TM = cfg.TM; NT_ = 16 - TM; W_ = 4 * NT_
    TORD = [4, 5, 6, 7, 8, 0, 1, 2, 3]
    uses = [(st, t) for st in range(TM) for t in range(9)] + [(st, t) for t in TORD for st in range(TM, 16)]
    OB = [("a", 108 + 4 * i) for i in range(5)] + [("v", 44 + 4 * i) for i in range(8)] + [("v", 144 + 4 * i) for i in range(3)]
    LAT = cfg.LAT; assert LAT + cfg.og + 1 <= len(OB) and LAT >= 2 * cfg.og - 1
    UK = len(uses) - 4 * NT_ if cfg.acc_ else len(uses)
    ob = lambda u: ar(128 + 4 * (u - UK), 4) if u >= UK else (vr if OB[u % len(OB)][0] == "v" else ar)(OB[u % len(OB)][1], 4)
    acc = lambda t, j: vr(108 + 4 * t, 4) if j == 0 else ar(12 * t + 4 * (j - 1), 4)
    sS = [sKo, sKo + 1, sKs, sVs, sKm, sKd, sKb, sKw]
    def oload(u):
        st, t = uses[u]
        pre = [f"s_xor_b32 s{sS[st & 7]}, s{sPo}, {1024*st}"] if (st, t) == next(x for x in uses if x[0] == st) else []
        return pre, f"buffer_load_dwordx4 {ob(u)}, v{vOo+t}, s[{sX}:{sX+3}], s{sS[st & 7]} offen{cfg.ld_sc} ; o {u}"
    for u in range(LAT):
        for l in flat([oload(u)]): E(l, ("o", u))
    NM = 4 * len(uses)
    SO = Sched(NM); tags = {}
    for u, (st, t) in enumerate(uses):
        for j in range(4):
            SO.mf[4*u + j] = Item(f"{MF} {acc(t,j)}, {rreg(st, j)}, {ob(u)}, {'0' if st == 0 else acc(t,j)} ; o {u}", "mf")
        if u + LAT < len(uses):
            p_, d = oload(u + LAT); tags[d] = ("prov", ("o", u + LAT))
            gl = 4 * (u - u % cfg.og) + (1 if cfg.og == 1 else u % cfg.og)
            if u + LAT >= UK: gl = 4 * (UK - LAT) + 1 + cfg.acc_ * (u + LAT - UK)
            for l in p_: SO.put(max(gl - 1, 0) if gl else 0, Item(l, "s"))
            SO.put(gl, Item(d, "dma"))
    dpos = {}
    for i, st in enumerate(late_dma):
        g = cfg.lw0 + cfg.lwstep * i
        for p_, d in wo_dma(st):
            tags[d] = ("prov", ("w", st)); g = place_dmas(SO, [(p_, d)], g, 2)
        dpos[st] = g
    g = 2
    for st in late_tr:
        if st in dpos: g = max(g, dpos[st] + 60)
        for k_, r in enumerate(tr_reads(st)):
            while SO.cost[g] > 4: g += 1
            SO.put(g, Item(r, "ds")); g += (2 if k_ & 1 else 0)
            if k_ == 0: tags[r] = ("need", ("w", st))
        assert g < 36 * st - 8
    tL, tH, r1, r2l, r2h, r3, va = 229, 230, 231, T + 4, T + 5, T + 6, T + 7
    ad = [f"v_add_u32 v{tL}, s{sW8}, v{vLn}", f"v_add_u32 v{tH}, 65536, v{tL}", f"v_xor_b32 v{r1}, 8192, v{tL}", f"v_xor_b32 v{r2l}, 16384, v{tL}",
          f"v_xor_b32 v{r2h}, 16384, v{tH}", f"v_xor_b32 v{r3}, 24576, v{tH}",
          f"v_and_b32 v{va}, 15, v0", f"v_lshlrev_b32 v{va}, 10, v{va}", f"v_lshrrev_b32 v{va+1}, 4, v0", f"v_lshl_add_u32 v{va}, v{va+1}, 3, v{va}",
          f"s_lshl_b32 s{sT0}, s{sCg}, 7", f"s_lshl_b32 s{sT1}, s{sW}, 5", f"s_add_u32 s{sT0}, s{sT0}, s{sT1}", f"s_add_u32 s{sT3}, s{sT0}, {4*16384}",
          f"s_mul_i32 s{sT1}, s{sOdd}, {5*16384}", f"s_add_u32 s{sT0}, s{sT0}, s{sT1}", f"s_add_u32 s{sT1}, s{sXs}, 4096", f"s_add_u32 s{sT2}, s{sXr}, 4096"]
    g = 36 * (TM - 3) + 2
    for l in ad:
        if l.startswith("v_"): SO.put(g, Item(l, "v")); g += 4
        else: SO.put(g, Item(l, "s"))
    SO.put(36 * TM - 4, Item("s_waitcnt lgkmcnt(0)", "s"))
    def loc(j, t): n = (j - 1) * 9 + t; return n // 8, (n // 8 & 1) * 32768 + (n % 8) * 1024
    def wr(j, t): r_, o_ = loc(j, t); return f"ds_write_b128 v{tL if r_ < 2 else tH}, {acc(t,j)} offset:{o_}"
    def rd(j, t, dst):
        r_, o_ = loc(j, t); a_ = {1: r1, 2: r2l if r_ < 2 else r2h, 3: r3}[j]
        assert (j != 1 or r_ < 2) and (j != 3 or r_ >= 2)
        return f"ds_read_b128 {vr(dst,4)}, v{a_} offset:{o_}"
    late = []
    for i, t in enumerate(TORD):
        for j in range(1, 4):
            gg = 36 * TM + W_ * i + W_ - 4 + j + 9 + (j - 1)
            if gg < NM: SO.put(gg, Item(wr(j, t), "ds"))
            else: late.append(wr(j, t))
    tmp = [76 + 4 * i for i in range(8)] + [156 + 4 * i for i in range(8)]
    def sums(t, b):
        a0 = 108 + 4 * t
        return [f"v_pk_add_f32 {vr(a0+r,2)}, {vr(a0+r,2)}, {vr(b[0]+r,2)}" for r in (0, 2)] + [f"v_pk_add_f32 {vr(b[1]+r,2)}, {vr(b[1]+r,2)}, {vr(b[2]+r,2)}" for r in (0, 2)] \
             + [f"v_pk_add_f32 {vr(a0+r,2)}, {vr(a0+r,2)}, {vr(b[1]+r,2)}" for r in (0, 2)]
    X1 = 36 * TM + W_ * 5 - 4 + 3 + 9 + 2 + cfg.x1d
    SO.put(X1, Item("s_waitcnt lgkmcnt(0)", "s")); SO.put(X1, Item("s_barrier", "s"))
    g = X1
    for i, t in enumerate(TORD[:5]):
        for j in range(1, 4): SO.put(g + (3 * i + j - 1) // 2, Item(rd(j, t, tmp[3*i+j-1]), "ds"))
    g = X1 + 14
    for i, t in enumerate(TORD[:5]):
        for l in sums(t, tmp[3*i:3*i+3]): SO.put(g, Item(l, "v"))
        d = f"buffer_store_dwordx4 {vr(108+4*t,4)}, v{vLn}, s[{sV}:{sV+3}], s{sT1 if i == 0 else sXs} offen offset:{0 if i == 0 else 1024*(i-1)} sc1 ; send {i}"
        SO.put(g + 1, Item(d, "dma")); g += 2
    assert g < NM - 2, (g, NM)
    seq = lgkm_waits(SO.linear(0, NM))
    E(vwait(("o", cfg.og - 1)))
    if not cfg.o3: stamp(ep, 6, True)
    for idx, (g, k, l) in enumerate(seq):
        tg = tags.get(l)
        if tg and tg[0] == "need": E(vwait(tg[1]))
        E(l, tg[1] if tg and tg[0] == "prov" else None)
        if k == "mf" and g % (4 * cfg.og) == 4 * cfg.og - 1 and g < NM - 1: E(vwait(("o", g // 4 + cfg.og)))
        if cfg.o3 and k == "mf" and g == 36 * TM: stamp(ep, 6, True)
        if k == "mf" and g == (NM // 2 - 1 if not cfg.o3 else X1 + cfg.o3 - 2): stamp(ep, 7, True)
        if k == "mf" and g == NM - 1: stamp(ep, 8, True)
    rcv = [44 + 4 * i for i in range(5)]
    rl = [f"buffer_load_dwordx4 {vr(rcv[i],4)}, v{vLn}, s[{sV}:{sV+3}], s{sXr if i < 4 else sT2} offen offset:{1024*(i&3)} sc1" for i in range(5)]
    for l in late: E(l)
    if not cfg.rlate:
        for l in rl: E(l)
    E("s_waitcnt lgkmcnt(0)"); E("s_barrier")
    tm2 = [156 + 4 * i for i in range(12)]
    for t in range(4):
        for j in range(1, 4): E(rd(j, t, tm2[3*t+j-1]))
    if cfg.rlate:
        for l in rl: E(l)
    for t in range(4):
        E(f"s_waitcnt lgkmcnt({3*(3-t)})")
        for l in sums(t, tm2[3*t:3*t+3]): E(l)
    E(f"s_mov_b32 s{sCnt}, 0x40000")
    E("L_rx:")
    E("s_waitcnt vmcnt(0)")
    E(f"v_max3_u32 v{T}, v{rcv[0]}, v{rcv[0]+1}, v{rcv[0]+2}")
    for i in range(3, 19, 2): E(f"v_max3_u32 v{T}, v{T}, v{rcv[0]+i}, v{rcv[0]+i+1}")
    E(f"v_max_u32 v{T}, v{T}, v{rcv[0]+19}"); E(f"v_cmp_eq_u32 vcc, -1, v{T}")
    E(f"s_sub_u32 s{sCnt}, s{sCnt}, 1"); E(f"s_cmp_eq_u32 s{sCnt}, 0"); E("s_cbranch_scc1 L_rxd")
    E("s_cmp_eq_u64 vcc, 0"); E("s_cbranch_scc1 L_rxd")
    E(f"s_sleep {cfg.rsleep}")
    for l in rl: ep.append(l)
    E("s_branch L_rx")
    E("L_rxd:")
    for t in range(5):
        a0 = 108 + 4 * t
        for r in (0, 2): E(f"v_pk_add_f32 {vr(a0+r,2)}, {vr(a0+r,2)}, {vr(rcv[t]+r,2)}")
        E(f"v_cvt_pk_bf16_f32 v{rcv[t]}, v{a0}, v{a0+1}"); E(f"v_cvt_pk_bf16_f32 v{rcv[t]+1}, v{a0+2}, v{a0+3}")
        E(f"buffer_store_dwordx2 {vr(rcv[t],2)}, v{va}, s[{sWQ}:{sWQ+3}], s{sT0 if t < 4 else sT3} offen{cfg.out_sc}")
        if t < 3: E(f"s_add_u32 s{sT0}, s{sT0}, 16384")
    if cfg.stamp:
        vt = 156
        E("s_waitcnt vmcnt(0)")
        E(f"s_memtime s[{sST+10}:{sST+11}]"); E(f"s_memrealtime s[{sST+12}:{sST+13}]"); E("s_waitcnt lgkmcnt(0)")
        E(f"s_add_u32 s{sD}, s{sPTR+14}, 0x4000000"); E(f"s_addc_u32 s{sD+1}, s{sPTR+15}, 0")
        E(f"s_mov_b32 s{sD+2}, 0x100000"); E(f"s_mov_b32 s{sD+3}, 0x20000")
        E(f"s_lshl_b32 s{sT0}, s2, 2"); E(f"s_add_u32 s{sT0}, s{sT0}, s{sW}"); E(f"s_lshl_b32 s{sT0}, s{sT0}, 7")
        for i in range(16): E(f"v_mov_b32 v{vt+i}, s{sST+i}")
        for i in range(8): E(f"v_mov_b32 v{vt+16+i}, s{sST2+i}")
        for i in range(6): E(f"buffer_store_dwordx4 {vr(vt+4*i,4)}, v{vZ}, s[{sD}:{sD+3}], s{sT0} offen offset:{16*i}")
    E("L_end:"); E("s_endpgm")
    E("L_fallback:")
    E(f"s_mov_b32 s{sRedo}, 1"); E("s_waitcnt vmcnt(0) lgkmcnt(0)"); E("s_barrier")
    E(f"s_load_dwordx16 s[{sPTR}:{sPTR+15}], s[0:1], 0")
    E("s_branch L_restart")
    E("L_truemax:")
    for l in a2_all: E(l)
    mx = [vT + 12 + qt for qt in range(6)]
    for qt in range(6): E(f"v_mov_b32 v{mx[qt]}, 0xff800000")
    E(f"s_mov_b32 s{sCnt}, 8"); E(f"s_add_u32 s{sKm}, s{sW8}, {KR[0]}")
    E("s_waitcnt vmcnt(0) lgkmcnt(0)")
    E("L_fb_loop:")
    E("s_barrier")
    for l in flat(k_dma()) + adv(sKo, sKs): E(l)
    E("s_waitcnt vmcnt(0)"); E("s_barrier")
    for j in range(4):
        for idx in range(8): E(k_read(j, idx >> 2, idx & 3))
        E("s_waitcnt lgkmcnt(0)")
        for k16 in range(2):
            for qt in range(6):
                nb = vNM + 4 * qt
                for c in range(4):
                    E(f"{MF} {vr(nb,4)}, {ar(aK+16*k16+4*c,4)}, {vr(vQ+16*qt+4*c,4)}, {'0' if c == 0 else vr(nb,4)}")
            E("s_nop 7")
            for qt in range(6):
                nb = vNM + 4 * qt
                E(f"v_max3_f32 v{mx[qt]}, v{mx[qt]}, v{nb}, v{nb+1}"); E(f"v_max3_f32 v{mx[qt]}, v{mx[qt]}, v{nb+2}, v{nb+3}")
            E("s_nop 3")
    E(f"s_sub_u32 s{sCnt}, s{sCnt}, 1"); E(f"s_cmp_lg_u32 s{sCnt}, 0"); E("s_cbranch_scc1 L_fb_loop")
    E("s_barrier")
    E(f"s_mov_b32 s{sKo}, s{sK0}"); E(f"s_add_u32 s{sKo+1}, s{sK0}, 4096")
    for l in flat(k_dma()) + adv(sKo, sKs): E(l)
    negm(E, mx)
    E("s_waitcnt vmcnt(0)"); E("s_barrier")
    if cfg.s0:
        for l in kfirst: E(l)
        E("s_waitcnt lgkmcnt(0)")
    if cfg.s0p:
        for l in att_consts + prologue(False): E(l)
        E("s_nop 7"); E("s_branch L_loop")
    else: E("s_branch L_att")
    pre = [l for g, k, l in body2 if g >= N - 12 and not l.startswith("SWITCH")]
    n0_ = len(ep)
    el, _ = check_hazards(pre + ["Y:"] + ep, "ep", fix=True)
    sys.stderr.write(f"nops added after the loop: {len(el) - len(pre) - 1 - n0_}\n")
    o += el[el.index("Y:") + 1:]
    return o

def main():
    k1 = [l for l in gen() if l]
    n0 = len(k1); k1, _ = check_hazards(k1, "k1", fix=True)
    sys.stderr.write(f"{len(k1)} lines, {len(k1)-n0} nops added by final pass\n")
    hdr = open("standalone__gqa_block_cached__near_ridge.s.ref").read().split("\n")[:9]
    doc = """;
; One workgroup of four waves per (batch, head); all 256 are resident at once, one per CU.
;  1. Q^T = wq_h^T x_b^T, eight 64-deep chunks staged in LDS by LDS-DMA; scaled by log2(e)/sqrt(128), packed to bf16.
;  2. Attention over eight stages of 128 keys (K ring of three slots, V ring of two). Each wave owns 64 queries and a quarter
;     of the keys of the last 32 queries. S^T = K Q^T - m leaves the MFMA with the shift already applied (m enters as the C
;     operand), P = exp2(S), O^T += V^T P^T and the row sums follow in a software pipeline of 16x16x32 MFMAs.
;     m is the score of the first key, a lower bound of the row maximum; if any row sum leaves [0, 2^64] (or is NaN) the
;     workgroup starts again, takes the true row maxima in a separate pass over K and repeats the attention with them.
;  3. o goes to the workspace (write-through), a flag per workgroup tells the readers. Flags are cleared by their owners first;
;     a counter in d_debug tells when all of them have been cleared in this launch.
;  4. out tile of 144 x 64 over half of the heads per workgroup; four waves split that K range, sum through LDS and exchange
;     half of the tile with the partner workgroup through a buffer the receiver has marked as empty beforehand.
; Written with a generator script of my own (instruction scheduling, wait counts and hazard distances are computed there).""".split("\n")
    out = hdr + [f"; @launch grid=(256,1,1) block=(256,1,1) lds={LDS_TOTAL}"] + doc + [
                 '.amdgcn_target "amdgcn-amd-amdhsa--gfx950"', ".text"]
    fmt = lambda l: l if l.endswith(":") else "    " + l
    out += [f".globl {cfg.name}", ".p2align 8", f".type {cfg.name},@function"] + [fmt(l) for l in k1]
    out += ["L_code_end:"]
    if cfg.cpf: out += [f".if (L_code_end - L_pc0) < {8192*cfg.cpf_n}", '.error "code prefetch range"', ".endif"]
    if cfg.cpf2 == 2: out += [".if (L_code_end - L_pc1) < 24576", '.error "code prefetch range"', ".endif"]
    out += ['.section .rodata,"a"', ".p2align 6", f""".amdhsa_kernel {cfg.name}
  .amdhsa_next_free_vgpr 512
  .amdhsa_next_free_sgpr 102
  .amdhsa_accum_offset 256
  .amdhsa_group_segment_fixed_size 0
  .amdhsa_kernarg_size 64
  .amdhsa_user_sgpr_count 2
  .amdhsa_user_sgpr_kernarg_segment_ptr 1
  .amdhsa_system_sgpr_workgroup_id_x 1
.end_amdhsa_kernel
"""]
    txt = "\n".join(out)
    if cfg.rt: txt = txt.replace("s_memtime", "s_memrealtime")
    open(sys.argv[1], "w").write(txt)
main()
```
